```python
import torch

def _softmax(x, axis=-1):
    return torch.softmax(x, dim=axis)
def _gelu(x):
    return torch.nn.functional.gelu(x, approximate="tanh")
def _silu(x):
    return torch.nn.functional.silu(x)
def _sigmoid(x):
    return torch.sigmoid(x)
def _layernorm(x, axis=-1, eps=1e-5):
    m = x.mean(dim=axis, keepdim=True)
    v = x.var(dim=axis, keepdim=True, unbiased=False)
    return (x - m) / torch.sqrt(v + eps)
def _scatter_add(tgt, idx, src, axis=0):
    return tgt.clone().index_add_(axis, idx, src)
def _segment_sum(src, seg, n):
    out = torch.zeros((n,) + src.shape[1:], dtype=src.dtype)
    return out.index_add_(0, seg, src)
def _pad(x, pw):
    flat = tuple(v for pair in reversed(pw) for v in pair)
    return torch.nn.functional.pad(x, flat)

kernel_name = 'concat_heads__linear_attn_block__spectral_gfnet__prompt'

def setup_inputs():

    _w = (lambda a: (lambda t: t.to(torch.bfloat16) if t.is_floating_point() else t)(torch.as_tensor(a)))
    def _A_setup():
        B, S, D = 1, 2048, 512
        return {
            "x": _w((lambda *s: torch.randn(*s, dtype=torch.bfloat16) * 0.05)(B, S, D)),
            "wqkv": _w((lambda *s: torch.randn(*s, dtype=torch.bfloat16) * 0.4)(D, 3 * D)),
            "wo": _w((lambda *s: torch.randn(*s, dtype=torch.bfloat16) * 0.05)(D, D)),
        }
    _A_in = _A_setup()

    def _B_setup():
        B, S, D = 1, 2048, 512
        Df = D // 2 + 1
        return {
            "x": _w((lambda *s: torch.randn(*s, dtype=torch.bfloat16) * 0.05)(B, S, D)),
            "w_r": _w((lambda *s: torch.randn(*s, dtype=torch.bfloat16) * 1.6)(S, Df) * 0.02),
            "w_i": _w((lambda *s: torch.randn(*s, dtype=torch.bfloat16) * 1.6)(S, Df) * 0.02),
        }
    _B_in = _B_setup()

    return {
        "A_x": _A_in["x"],
        "A_wqkv": _A_in["wqkv"],
        "A_wo": _A_in["wo"],
        "B_x": _B_in["x"],
        "B_w_r": _B_in["w_r"],
        "B_w_i": _B_in["w_i"],
    }

def reference(A_x, A_wqkv, A_wo, B_x, B_w_r, B_w_i):
    def _A_ref(x, wqkv, wo):
        B, S, D = x.shape
        H = 32; Dh = D // H
        qkv = (lambda x, *d: x.permute(*d))((x @ wqkv).reshape(B, S, 3, H, Dh), 2, 0, 3, 1, 4)
        q, k, v = qkv[0], qkv[1], qkv[2]
        phi = lambda t: torch.where(t > 0, t + 1, torch.exp(t)) + 1e-6
        pq, pk = phi(q), phi(k)
        kv = torch.einsum("bhsd,bhse->bhde", pk, v)
        z = torch.einsum("bhsd->bhd", pk)
        num = torch.einsum("bhqd,bhde->bhqe", pq, kv)
        den = torch.einsum("bhqd,bhd->bhq", pq, z)[..., None] + 1e-6
        o = num / den
        return (lambda x, *d: x.permute(*d))(o, 0, 2, 1, 3).reshape(B, S, D) @ wo

    def _B_ref(x, w_r, w_i):
        B, S, D = x.shape
        X = (lambda x, axes=(-2,-1): torch.fft.rfft2(x.float(), dim=axes))(x, axes=(-2, -1))
        W = w_r + 1j * w_i
        X = X * W
        y = (lambda x, s, axes=(-2,-1): torch.fft.irfft2(x, s=s, dim=axes).to(torch.bfloat16))(X, (S, D), axes=(-2, -1))
        return y

    a = _A_ref(A_x, A_wqkv, A_wo)
    b = _B_ref(B_x, B_w_r, B_w_i)
    return torch.concatenate([a, b], axis=-1)
```

```python
import re
import struct


def f2u(x):
    return struct.unpack("<I", struct.pack("<f", x))[0]


def fhex(x):
    return "0x%08x" % f2u(x)


_REG = re.compile(r"^(-?)(\|?)([vsa])(?:(\d+)|\[(\d+):(\d+)\])(\|?)$")


class Op:
    __slots__ = ("kind", "lo", "n", "neg", "abs", "val", "txt")

    def __init__(self, txt):
        self.txt = txt
        self.neg = False
        self.abs = False
        self.val = None
        self.lo = 0
        self.n = 0
        m = _REG.match(txt)
        if m:
            self.neg = m.group(1) == "-"
            self.abs = m.group(2) == "|"
            self.kind = m.group(3)
            if m.group(4) is not None:
                self.lo = int(m.group(4))
                self.n = 1
            else:
                self.lo = int(m.group(5))
                self.n = int(m.group(6)) - self.lo + 1
        elif txt in ("vcc", "exec"):
            self.kind = "s"
            self.lo = 106 if txt == "vcc" else 126
            self.n = 2
        elif txt in ("vcc_lo", "vcc_hi", "exec_lo", "exec_hi", "m0"):
            self.kind = "s"
            self.lo = {"vcc_lo": 106, "vcc_hi": 107, "exec_lo": 126, "exec_hi": 127, "m0": 124}[txt]
            self.n = 1
        elif txt == "off":
            self.kind = "off"
        elif re.match(r"^-?(0x[0-9a-fA-F]+|\d+)$", txt):
            self.kind = "imm"
            self.val = int(txt, 0)
        elif re.match(r"^-?\d+\.\d*(e-?\d+)?$", txt):
            self.kind = "fimm"
            self.val = float(txt)
        else:
            self.kind = "sym"

    def regs(self):
        if self.kind in ("v", "s", "a"):
            return {(self.kind, self.lo + i) for i in range(self.n)}
        return set()


TRANS = ("v_exp_f32", "v_log_f32", "v_rcp_f32", "v_rsq_f32", "v_sqrt_f32", "v_sin_f32", "v_cos_f32")
VCC = {("s", 106), ("s", 107)}
EXEC = {("s", 126), ("s", 127)}
M0 = {("s", 124)}
S_NODST = ("s_cmp", "s_waitcnt", "s_barrier", "s_cbranch", "s_branch", "s_nop", "s_sleep", "s_setprio",
           "s_bitcmp", "s_endpgm")


class Ins:
    def __init__(self, line):
        self.line = line
        body = line.split(";")[0].strip()
        parts = body.split(None, 1)
        self.mn = parts[0]
        base = self.mn
        for suf in ("_e32", "_e64", "_dpp"):
            if base.endswith(suf):
                base = base[: -len(suf)]
        self.base = base
        rest = parts[1] if len(parts) > 1 else ""
        self.mods = {}
        ops = []
        if base == "s_waitcnt":
            for k, v in re.findall(r"(\w+)\((\d+)\)", rest):
                self.mods[k] = int(v)
        elif base == "s_getreg_b32":
            ops = [rest.split(",")[0].strip()]
        else:
            toks, depth, cur = [], 0, ""
            for ch in rest:
                if ch == "[":
                    depth += 1
                if ch == "]":
                    depth -= 1
                if ch == "," and depth == 0:
                    toks.append(cur.strip())
                    cur = ""
                else:
                    cur += ch
            if cur.strip():
                toks.append(cur.strip())
            if toks:
                last = toks[-1].split()
                toks[-1] = last[0]
                for m in last[1:]:
                    if ":" in m:
                        k, v = m.split(":", 1)
                        if v.startswith("["):
                            self.mods[k] = [int(x) for x in v[1:-1].split(",")]
                        else:
                            self.mods[k] = int(v, 0)
                    else:
                        self.mods[m] = True
            ops = toks
        self.ops = [Op(t) for t in ops]
        self.classify()

    def classify(self):
        b, o = self.base, self.ops
        self.cls = None
        self.w = set()
        self.r = set()
        self.srcC = set()
        self.srcAB = set()
        self.passes = 0
        self.store_data = set()
        self.dpp = self.mn.endswith("_dpp")
        R = lambda i: o[i].regs() if i < len(o) else set()
        allr = lambda lo: set().union(*[x.regs() for x in o[lo:]]) if len(o) > lo else set()
        if b.startswith("v_mfma"):
            self.cls = "mfma"
            self.w = R(0)
            self.srcAB = R(1) | R(2)
            self.srcC = R(3)
            self.r = self.srcAB | self.srcC
            self.passes = 8 if "32x32" in b else 4
        elif b.startswith("v_"):
            self.cls = "valu"
            self.w = R(0)
            self.r = allr(1)
            if b.startswith("v_fmac") or b in ("v_writelane_b32",):
                self.r |= R(0)
            if "swap" in b:
                self.w = R(0) | R(1)
                self.r = R(0) | R(1)
            if b == "v_cndmask_b32" and len(o) == 3:
                self.r |= VCC
            if self.dpp:
                self.r |= R(0)
        elif b.startswith("ds_"):
            self.cls = "ds"
            if b.startswith("ds_read"):
                self.w = R(0)
                self.r = allr(1)
                if "d16" in b:
                    self.r |= R(0)
            else:
                self.r = allr(0)
        elif b.startswith("buffer_") or b.startswith("global_"):
            self.cls = "vmem"
            if "load" in b:
                if self.mods.get("lds") or "_lds_" in b:
                    self.r = allr(0) | M0
                    self.ldsdma = True
                else:
                    self.w = R(0)
                    self.r = allr(1)
                    if "d16" in b:
                        self.r |= R(0)
            else:
                self.r = allr(0)
                d = R(0) if b.startswith("buffer_") else R(1)
                if b.endswith("x4") or b.endswith("x3"):
                    self.store_data = d
        elif b.startswith("s_"):
            self.cls = "salu"
            if b.startswith("s_load") or b.startswith("s_mem") or b.startswith("s_atomic"):
                self.cls = "smem"
            if any(b.startswith(x) for x in S_NODST):
                self.r = allr(0)
            else:
                self.w = R(0)
                self.r = allr(1)
                if "saveexec" in b:
                    self.w |= EXEC
                    self.r |= EXEC
                if b in ("s_addk_i32", "s_mulk_i32", "s_bitset1_b32", "s_bitset0_b32", "s_cmov_b32"):
                    self.r |= R(0)
        else:
            raise ValueError("unknown instruction: " + self.line)
        self.trans = b in TRANS
        self.states = 1
        if b == "s_nop":
            self.states = o[0].val + 1


def need(p, c):
    n = 0
    vw = {x for x in p.w if x[0] != "s"}
    sw = {x for x in p.w if x[0] == "s"}
    if p.cls == "valu":
        if c.cls == "mfma" and (vw & c.r):
            n = max(n, 2)
        if c.cls == "mfma" and (sw & EXEC):
            n = max(n, 4)
        if p.trans and c.cls == "valu" and not c.trans and (vw & c.r):
            n = max(n, 1)
        if p.trans and c.cls in ("vmem", "ds") and (vw & c.r):
            n = max(n, 1)
        if c.cls == "valu" and (c.dpp or "permlane" in c.base) and (vw & c.r):
            n = max(n, 2)
        if c.cls == "valu" and c.base in ("v_readfirstlane_b32", "v_readlane_b32") and (vw & c.r):
            n = max(n, 1)
        if sw:
            if c.cls == "valu" and (sw & c.r):
                n = max(n, 4 if c.base in ("v_readlane_b32", "v_writelane_b32") else 2)
            if c.cls == "vmem" and (sw & c.r):
                n = max(n, 5)
            if c.cls in ("salu", "smem") and (sw & c.r):
                n = max(n, 1)
            if c.base.startswith("s_cbranch_vcc") and (sw & VCC):
                n = max(n, 1)
    if p.cls == "mfma":
        P = p.passes
        if c.cls == "mfma":
            if c.srcC & p.w:
                if not (c.srcC == p.w and c.passes == P):
                    n = max(n, P + 2)
            if c.srcAB & p.w:
                n = max(n, P + 4)
            if (c.w & p.w) and not (c.srcC == p.w and c.passes == P):
                n = max(n, P + 2)
        elif c.cls in ("valu", "vmem", "ds"):
            if (c.r | c.w) & p.w:
                n = max(n, P + 4)
            if c.cls == "valu" and (c.w & p.srcC):
                n = max(n, P - 1)
    if p.cls == "salu" and (p.w & M0) and getattr(c, "ldsdma", False):
        n = max(n, 1)
    if p.store_data and (c.w & p.store_data):
        n = max(n, 2 if c.cls in ("valu", "mfma") else 1)
    return n


class Asm:
    def __init__(self):
        self.items = []
        self.uid = 0

    def __call__(self, s):
        for line in s.split("\n"):
            line = line.strip()
            if not line or line.startswith(";"):
                continue
            self.i(line)

    def i(self, line):
        ins = Ins(line)
        dist = 0
        req = 0
        for kind, x in reversed(self.items):
            if kind == "t":
                continue
            if kind == "l":
                continue
            if x.base in ("s_branch", "s_endpgm"):
                break
            req = max(req, need(x, ins) - dist)
            dist += x.states
            if dist > 24:
                break
        while req > 0:
            k = min(req, 16)
            self.items.append(("i", Ins("s_nop %d" % (k - 1))))
            req -= k
        self.items.append(("i", ins))

    def label(self, name):
        self.items.append(("l", name))

    def text(self, t):
        self.items.append(("t", t))

    def newlabel(self, p="L"):
        self.uid += 1
        return "%s_%d" % (p, self.uid)

    def check_branches(self):
        pos = {x: i for i, (k, x) in enumerate(self.items) if k == "l"}
        bad = []
        for i, (k, x) in enumerate(self.items):
            if k != "i" or not (x.base.startswith("s_cbranch") or x.base == "s_branch"):
                continue
            tgt = pos[x.ops[0].txt]
            hist, d = [], 0
            for kk, y in reversed(self.items[: i + 1]):
                if kk != "i":
                    continue
                if y is not x and y.base in ("s_branch", "s_endpgm"):
                    break
                hist.append((y, d))
                d += y.states
                if d > 24:
                    break
            fwd = 0
            for kk, c in self.items[tgt:]:
                if kk != "i":
                    continue
                for y, dd in hist:
                    if need(y, c) > dd + fwd:
                        bad.append((y.line, c.line, need(y, c), dd + fwd))
                fwd += c.states
                if fwd > 24 or c.base in ("s_branch", "s_endpgm"):
                    break
        return bad

    def render(self):
        out = []
        for k, x in self.items:
            if k == "i":
                out.append("    " + x.line)
            elif k == "l":
                out.append(x + ":")
            else:
                out.append(x)
        return "\n".join(out) + "\n"

    def maxreg(self, kind):
        m = -1
        for k, x in self.items:
            if k == "i":
                for kk, r in x.r | x.w:
                    if kk == kind and not (kind == "s" and r >= 102):
                        m = max(m, r)
        return m


class Regs:
    def __init__(self, kind, start=0, limit=256):
        self.kind = kind
        self.p = start
        self.limit = limit

    def get(self, n=1, align=None):
        if align is None:
            align = 1 if n == 1 else (2 if self.kind == "v" else (2 if n == 2 else 4))
        self.p = (self.p + align - 1) // align * align
        r = self.p
        self.p += n
        assert self.p <= self.limit, "out of %s registers" % self.kind
        return r

    def mark(self):
        return self.p

    def reset(self, m):
        self.p = m


def v(r, n=1):
    return "v%d" % r if n == 1 else "v[%d:%d]" % (r, r + n - 1)


def s(r, n=1):
    return "s%d" % r if n == 1 else "s[%d:%d]" % (r, r + n - 1)
```

```python
KNAME = "concat_heads__linear_attn_block__spectral_gfnet__prompt_kernel"
HEADER = """; Kernarg layout for this problem (72 bytes, ptrs only, base s[0:1]):
"""

def wrap(body, grid, block, lds, nvgpr, nsgpr, notes=""):
    acc = (nvgpr + 3) // 4 * 4
    return (HEADER + notes +
        "; @launch grid=(%d,1,1) block=(%d,1,1) lds=%d\n" % (grid, block, lds) +
        '.amdgcn_target "amdgcn-amd-amdhsa--gfx950"\n.text\n.globl %s\n.p2align 8\n.type %s,@function\n%s:\n' % (KNAME, KNAME, KNAME) +
        body +
        '.section .rodata,"a"\n.p2align 6\n.amdhsa_kernel %s\n' % KNAME +
        "  .amdhsa_next_free_vgpr %d\n  .amdhsa_next_free_sgpr %d\n  .amdhsa_accum_offset %d\n" % (nvgpr, nsgpr, acc) +
        "  .amdhsa_group_segment_fixed_size 0\n  .amdhsa_kernarg_size 72\n  .amdhsa_user_sgpr_count 2\n"
        "  .amdhsa_user_sgpr_kernarg_segment_ptr 1\n  .amdhsa_system_sgpr_workgroup_id_x 1\n"
        "  .amdhsa_float_denorm_mode_32 3\n"
        ".end_amdhsa_kernel\n")
```

```python
import sys
from asmlib import *
from common import wrap

WS_EA = 0x0
WS_EB = 0x80
WS_FLAG = 0x1000
WS_RED = 0x10000
RED_STRIDE = 0x9000
WS_X2S = 0x60000
WS_PART = 0x80000
PLINE = 2176
WS_PQ = 0x200000
WS_X2 = 0x400000
WS_X1 = 0x600000
WS_STAMP = 0x1000000
WS_SIZE = 0x10000000
LDS_SIZE = 160 * 1024
TAGC_LO, TAGC_HI = 0x1E3779B1, 0x05EBCA6B
POLL_LIMIT = 1 << 18


class G:
    def __init__(self, stamps=False, opt=None):
        self.a = Asm()
        self.stamps = stamps
        self.opt = opt or {}
        self.nst = 0

    sW, sXCD, sI = 3, 4, 5
    sTL, sTH = 6, 7
    sE = 8
    sM16 = 10
    sCNT = 12
    pXA, pWQ, pWO, pXB, pWR, pWI, pOUT, pDBG, pWS = 16, 18, 20, 22, 24, 26, 28, 30, 32
    rWS, rOUT, rA, rB, rC = 36, 40, 44, 48, 52
    sT = 56
    sST = 72
    vL = 1

    def stamp(self):
        if not self.stamps:
            return
        k = self.nst
        assert k < 15
        self.a("s_memrealtime %s\ns_waitcnt lgkmcnt(0)" % s(self.sST + 2 * k, 2))
        self.nst += 1

    def end(self):
        a = self.a
        if self.stamps:
            self.stamp()
            a("s_mov_b64 exec, 1")
            a("s_lshl_b32 s56, s2, 3\ns_add_u32 s56, s56, s%d\ns_lshl_b32 s56, s56, 6\ns_add_u32 s56, s56, 0x%x" % (self.sW, WS_STAMP))
            a("v_mov_b32 v2, 0")
            for k in range(self.nst):
                a("v_mov_b32 v3, s%d\nbuffer_store_dword v3, v2, %s, s56 offen offset:%d" % (self.sST + 2 * k, s(self.rWS, 4), 4 * k))
            a("v_mov_b32 v3, %d\nbuffer_store_dword v3, v2, %s, s56 offen offset:60" % (self.nst, s(self.rWS, 4)))
        a("s_endpgm")

    def srd(self, r, p, size, add=None):
        a = self.a
        if add is None:
            a("s_mov_b32 s%d, s%d\ns_mov_b32 s%d, s%d" % (r, p, r + 1, p + 1))
        else:
            a("s_add_u32 s%d, s%d, %s\ns_addc_u32 s%d, s%d, 0" % (r, p, add, r + 1, p + 1))
        a("s_mov_b32 s%d, 0x%x\ns_mov_b32 s%d, 0x20000" % (r + 2, size, r + 3))

    def tags(self):
        self.a("""s_add_u32 s8, s8, 0x%x
        s_addc_u32 s9, s9, 0x%x
        s_and_b32 s6, s8, 0xbfffbfff
        s_and_b32 s7, s9, 0xbfffbfff""" % (TAGC_LO, TAGC_HI))

    def poll(self, issue, check, vacc, good=0, first_issued=False, between=None):
        a = self.a
        top, done = a.newlabel("POLL"), a.newlabel("DONE")
        chk = a.newlabel("CHK")
        a("s_mov_b32 s%d, 0x%x" % (self.sCNT, POLL_LIMIT))
        if first_issued:
            a("s_branch " + chk)
        a.label(top)
        issue()
        if first_issued:
            a.label(chk)
        a("s_waitcnt vmcnt(0)")
        check()
        if good == 0:
            a("v_cmp_ne_u32 vcc, 0, v%d" % vacc)
        else:
            a("v_cmp_eq_u32 vcc, -1, v%d" % vacc)
        a("s_cbranch_vccz " + done)
        a("s_sleep 1")
        a("s_sub_u32 s%d, s%d, 1" % (self.sCNT, self.sCNT))
        a("s_cbranch_scc0 " + top)
        a.label(done)

    def tagcheck(self, pieces, vacc):
        a = self.a
        first = True
        for p in pieces:
            if first:
                a("v_xor_b32 v%d, s%d, v%d" % (vacc, self.sTL, p + 1))
                first = False
            else:
                a("v_bitop3_b32 v%d, v%d, v%d, s%d bitop3:0xf6" % (vacc, vacc, p + 1, self.sTL))
            a("v_bitop3_b32 v%d, v%d, v%d, s%d bitop3:0xf6" % (vacc, vacc, p + 3, self.sTH))

    def prefetch_code(self, start, stop, vtmp):
        a = self.a
        lab = a.newlabel("PC")
        a("s_getpc_b64 s[56:57]")
        a.label(lab)
        a.items.append(("i", _sym_add("s_sub_u32 s56, s56, %s-%s" % (lab, start))))
        a("s_subb_u32 s57, s57, 0")
        a.items.append(("i", _sym_add("s_mov_b32 s58, %s-%s-4" % (stop, start))))
        a("v_lshlrev_b32 v%d, 7, v%d" % (vtmp, self.vL))
        a("v_min_u32 v%d, s58, v%d" % (vtmp, vtmp))
        a("global_load_dword v0, v%d, s[56:57]" % vtmp)

    def build(self):
        a = self.a
        a("s_cmp_ge_u32 s2, 256\ns_cbranch_scc1 EXIT")
        a("s_load_dwordx16 s[16:31], s[0:1], 0\ns_load_dwordx2 s[32:33], s[0:1], 64")
        if self.stamps:
            a("s_memrealtime %s" % s(self.sST, 2))
            self.nst = 1
        a("""v_lshrrev_b32 v2, 6, v0
        v_and_b32 v1, 63, v0
        s_and_b32 s4, s2, 7
        v_readfirstlane_b32 s3, v2
        s_lshr_b32 s5, s2, 3
        s_mov_b32 s10, 0xffff0000
        s_mov_b32 s11, 0xffff0000
        s_cmp_ge_u32 s5, 24
        s_cbranch_scc1 ROLE_B
        s_cmp_ge_u32 s3, 4
        s_cbranch_scc1 LOADER
        s_branch COMPUTE""")
        a.label("EXIT")
        a("s_endpgm")
        n0 = self.nst
        self.loader()
        self.nst = n0
        self.compute()
        self.nst = n0
        self.role_b()
        a.label("CODE_END")
        bad = a.check_branches()
        assert not bad, bad
        return a

    def gemm_params(self):
        a = self.a
        a("""s_lshr_b32 s60, s4, 1
        s_and_b32 s63, s5, 3
        s_lshl2_add_u32 s60, s60, s63
        s_and_b32 s64, s4, 1
        s_bfe_u32 s65, s5, 0x20002""")
        a("""s_lshl2_add_u32 s61, s64, s65
        s_lshl1_add_u32 s66, s64, s65
        s_add_u32 s62, s63, s65
        s_lshl_b32 s62, s62, 1
        s_lshl1_add_u32 s67, s65, s63
        s_lshl1_add_u32 s67, s67, 1
        s_cmp_ge_u32 s5, 16
        s_cselect_b32 s61, s66, s61
        s_cselect_b32 s62, s67, s62
        s_and_b32 s62, s62, 7""")

    def loader(self):
        a = self.a
        a.label("LOADER")
        self.gemm_params()
        vX, vW = 4, 8
        a("""s_sub_u32 s58, s3, 4
        s_lshl_b32 s63, s61, 7
        s_add_u32 s63, s63, 1024
        s_lshl_b32 s64, s61, 8
        s_cmp_ge_u32 s5, 16
        s_cselect_b32 s63, s64, s63
        s_movk_i32 s64, 128
        s_cselect_b32 s64, s64, 1024""")
        a("""v_lshrrev_b32 v2, 3, v1
        v_lshrrev_b32 v3, 4, v1
        v_and_b32 v12, 7, v1
        v_xor_b32 v12, v12, v3
        v_lshlrev_b32 v12, 4, v12
        v_lshl_add_u32 v12, v2, 10, v12
        s_lshl_b32 s65, s58, 15
        v_add_u32 v4, s65, v12
        v_xor_b32 v5, 64, v4
        v_add_u32 v5, 0x1c00, v5
        v_add_u32 v6, 0x3800, v4
        v_add_u32 v7, 0x3800, v5""")
        a("""v_bfe_u32 v12, v1, 2, 2
        v_xor_b32 v12, v12, v3
        v_lshrrev_b32 v13, 1, v12
        v_mul_u32_u24 v13, s64, v13
        v_and_b32 v14, 1, v12
        v_lshl_add_u32 v13, v14, 6, v13
        v_and_b32 v14, 3, v1
        v_lshl_add_u32 v13, v14, 4, v13
        v_mul_u32_u24 v15, 0xc00, v3
        s_mul_i32 s65, s58, 0xc000
        s_add_u32 s65, s65, s63
        v_add3_u32 v8, v13, v15, s65
        v_add_u32 v9, 0x2c00, v8
        v_add_u32 v10, 0x5800, v8
        v_add_u32 v11, 0x8400, v8""")
        a("""v_lshlrev_b32 v16, 6, v12
        v_lshl_add_u32 v16, v14, 4, v16
        v_lshl_add_u32 v16, v3, 10, v16
        s_lshl_b32 s65, s58, 15
        s_lshr_b32 s66, s5, 2
        s_lshl_b32 s66, s66, 8
        s_add_u32 s65, s65, s66
        v_add_u32 v16, s65, v16
        v_add_u32 v17, 0xc00, v16
        v_add_u32 v18, 0x1800, v16
        v_add_u32 v19, 0x2400, v16
        s_lshl_b32 s59, s58, 12
        s_lshl_b32 s63, s60, 17
        s_waitcnt lgkmcnt(0)""")
        self.srd(self.rA, self.pXA, 0x20000, add="s63")
        self.srd(self.rB, self.pWQ, 512 * 3072)

        def issue(c):
            slot = (c & 3) * 32768
            a("s_lshl_b32 s63, s62, 7\ns_mul_i32 s64, s62, 0x30000")
            a("s_add_u32 m0, s59, %d" % slot)
            a("s_add_u32 s62, s62, 1")
            for j in range(4):
                a("buffer_load_dwordx4 v%d, %s, s63 offen offset:%d lds" % (vX + j, s(self.rA, 4), j * 1024))
            a("s_add_u32 m0, s59, %d" % (slot + 16384))
            a("s_and_b32 s62, s62, 7")
            for j in range(4):
                a("buffer_load_dwordx4 v%d, %s, s64 offen offset:%d lds" % (vW + j, s(self.rB, 4), j * 1024))

        def issue_wo(c):
            slot = (c & 3) * 32768
            a("s_lshl_b32 s63, s68, 17\ns_lshl_b32 s64, s59, 1")
            a("s_add_u32 m0, s64, %d" % slot)
            a("s_add_u32 s68, s68, 1")
            for j in range(4):
                a("buffer_load_dwordx4 v%d, %s, s63 offen offset:%d lds" % (16 + j, s(self.rC, 4), j * 1024))
            a("s_add_u32 m0, s64, %d" % (slot + 4096))
            a("s_add_u32 s63, s63, 0x4000")
            for j in range(4):
                a("buffer_load_dwordx4 v%d, %s, s63 offen offset:%d lds" % (16 + j, s(self.rC, 4), j * 1024))
            a("s_and_b32 s68, s68, 3")

        for c in range(4):
            issue(c)
        a("s_load_dwordx2 s[8:9], s[32:33], %d" % WS_EA)
        self.srd(self.rWS, self.pWS, WS_SIZE)
        self.srd(self.rC, self.pWO, 512 * 1024)
        self.srd(self.rOUT, self.pOUT, 2048 * 2048)
        a("s_and_b32 s68, s5, 3")
        a("s_waitcnt lgkmcnt(0)")
        self.tags()
        a("s_waitcnt vmcnt(24)\ns_barrier")
        self.stamp()
        for c in range(1, 5):
            a("s_waitcnt vmcnt(16)\ns_barrier")
            issue(c + 3)
        a("s_cmp_ge_u32 s5, 16\ns_cbranch_scc1 QLOADER")
        n0 = self.nst
        for c in range(5, 8):
            a("s_waitcnt vmcnt(16)\ns_barrier")
            issue_wo(c + 3)
        self.stamp()
        a("s_barrier")
        issue_wo(11)
        a("s_waitcnt vmcnt(0)")
        self.stamp()
        a("s_branch KV_TAIL")
        self.kv_tail_nst = self.nst
        self.nst = n0
        a.label("QLOADER")
        self.reducer_setup()
        for c, n in ((5, 16), (6, 8), (7, 0)):
            a("s_waitcnt vmcnt(%d)\ns_barrier" % (n + (1 if self.opt.get("prewrite", 1) else 0) * 0))
        self.stamp()
        self.reducer()

    def reducer_setup(self):
        a = self.a
        a("""s_lshl3_add_u32 s60, s4, s5
        s_sub_u32 s60, s60, 16
        s_lshl2_add_u32 s60, s60, s58
        s_lshr_b32 s61, s60, 4
        s_and_b32 s60, s60, 15
        s_mul_i32 s63, s61, %d
        s_lshl_b32 s64, s60, 7
        s_add_u32 s63, s63, s64
        s_add_u32 s63, s63, 0x%x
        s_add_u32 s64, s63, %d
        s_add_u32 s65, s63, %d
        s_add_u32 s66, s63, %d""" % (32 * PLINE, WS_PART, 8 * PLINE, 16 * PLINE, 24 * PLINE))
        a("""s_mul_i32 s67, s61, %d
        s_lshl_b32 s61, s60, 7
        s_add_u32 s67, s67, s61
        s_add_u32 s67, s67, 0x%x""" % (PLINE, WS_RED))
        a("""v_lshrrev_b32 v2, 3, v1
        v_and_b32 v3, 7, v1
        v_lshlrev_b32 v3, 4, v3
        v_mov_b32 v22, %d
        v_mad_u32_u24 v20, v2, v22, v3
        v_mov_b32 v22, 0x%x
        v_mad_u32_u24 v21, v2, v22, v3""" % (PLINE, RED_STRIDE))
        a("""v_and_b32 v2, 1, v1
        v_lshlrev_b32 v2, 4, v2
        v_mov_b32 v3, 0x3f80
        v_lshlrev_b32 v3, v2, v3
        v_and_b32 v2, 2, v1
        v_cmp_eq_u32 vcc, 0, v2
        v_mov_b32 v25, 0
        v_mov_b32 v27, 0
        v_cndmask_b32 v24, 0, v3, vcc
        v_cndmask_b32 v26, v3, v25, vcc
        v_mov_b32 v29, s6
        v_mov_b32 v31, s7
        v_mov_b32 v33, s6
        v_mov_b32 v35, s7""")

    def reducer(self):
        a = self.a
        D, D2, acc, acc2, vacc = 40, 56, 72, 76, 80
        so = [63, 64, 65, 66]

        def body(dual):
            def issue():
                for i in range(4):
                    a("buffer_load_dwordx4 %s, v20, %s, s%d offen sc1" % (v(D + 4 * i, 4), s(self.rWS, 4), so[i]))
                if dual:
                    for i in range(4):
                        a("buffer_load_dwordx4 %s, v20, %s, s%d offen offset:128 sc1" % (v(D2 + 4 * i, 4), s(self.rWS, 4), so[i]))

            def check():
                self.tagcheck([D + 4 * i for i in range(8 if dual else 4)], vacc)

            self.poll(issue, check, vacc)
            self.stamp()
            sets = [(D, acc, 28, 0)] + ([(D2, acc2, 32, 128)] if dual else [])
            for d, ac, _, _ in sets:
                for i in range(4):
                    a("v_mfma_f32_16x16x32_bf16 %s, v[24:27], %s, %s" % (v(ac, 4), v(d + 4 * i, 4), v(ac, 4) if i else "0"))
            for d, ac, o, off in sets:
                for r in range(4):
                    a("v_add_f32_dpp v%d, v%d, v%d row_ror:8 row_mask:0xf bank_mask:0xf" % (d + r, ac + r, ac + r))
                a("v_cvt_pk_bf16_f32 v%d, v%d, v%d" % (o, d, d + 1))
                a("v_cvt_pk_bf16_f32 v%d, v%d, v%d" % (o + 2, d + 2, d + 3))
                a("buffer_store_dwordx4 %s, v21, %s, s67 offen offset:%d sc1" % (v(o, 4), s(self.rWS, 4), off))
            self.end()

        n0 = self.nst
        a("s_cmp_eq_u32 s60, 15\ns_cbranch_scc1 RED_DUAL")
        body(False)
        self.nst = n0
        a.label("RED_DUAL")
        body(True)

    def gemm_loop(self, acc, fr, ax, aw, xfirst):
        a = self.a

        def reads(n):
            c, ks = n >> 2, n & 3
            slot = c & 3
            hi, so = slot >> 1, (slot & 1) * 32768
            f = fr + 16 * (n % 3)
            L = []
            L.append("ds_read_b128 %s, v%d offset:%d" % (v(f, 4), ax[hi][ks], so))
            L.append("ds_read_b64_tr_b16 %s, v%d offset:%d" % (v(f + 8, 2), aw[hi][0], so + 16384 + ks * 4096))
            L.append("ds_read_b64_tr_b16 %s, v%d offset:%d" % (v(f + 10, 2), aw[hi][0], so + 16384 + ks * 4096 + 1024))
            L.append("ds_read_b128 %s, v%d offset:%d" % (v(f + 4, 4), ax[hi][ks], so + 4096))
            L.append("ds_read_b64_tr_b16 %s, v%d offset:%d" % (v(f + 12, 2), aw[hi][1], so + 16384 + ks * 4096))
            L.append("ds_read_b64_tr_b16 %s, v%d offset:%d" % (v(f + 14, 2), aw[hi][1], so + 16384 + ks * 4096 + 1024))
            return L

        def mfmas(n):
            f = fr + 16 * (n % 3)
            L = []
            for nb in range(2):
                for mb in range(2):
                    x, w = v(f + 4 * mb, 4), v(f + 8 + 4 * nb, 4)
                    d = v(acc[mb][nb], 16)
                    L.append("v_mfma_f32_32x32x16_bf16 %s, %s, %s, %s" % (d, x if xfirst else w, w if xfirst else x, d if n else "0"))
            return L

        a("s_barrier")
        self.stamp()
        for x in reads(0) + reads(1):
            a(x)
        for n in range(32):
            if n + 2 < 32:
                if (n + 2) % 4 == 0:
                    a("s_waitcnt lgkmcnt(0)\ns_barrier")
                else:
                    a("s_waitcnt lgkmcnt(6)")
                R = reads(n + 2)
            else:
                R = []
                if n == 30:
                    a("s_waitcnt lgkmcnt(6)")
                else:
                    a("s_waitcnt lgkmcnt(0)")
                    if xfirst:
                        a("s_barrier")
            M = mfmas(n)
            for i in range(4):
                a(M[i])
                for x in R[2 * i:2 * i + 2]:
                    a(x)

    def phi(self, src, dst, tmp, n):
        a = self.a
        for g in range(0, n, 8):
            for j in range(0, 8, 2):
                a("v_pk_mul_f32 %s, %s, s[56:57]" % (v(tmp + j, 2), v(src + g + j, 2)))
            for j in range(8):
                a("v_exp_f32_e64 v%d, v%d clamp" % (tmp + j, tmp + j))
                a("v_max_f32 v%d, s58, v%d" % (src + g + j, src + g + j))
            for j in range(0, 8, 2):
                a("v_pk_add_f32 %s, %s, %s" % (v(tmp + j, 2), v(tmp + j, 2), v(src + g + j, 2)))
            for j in range(0, 8, 2):
                a("v_cvt_pk_bf16_f32 v%d, v%d, v%d" % (dst + (g + j) // 2, tmp + j, tmp + j + 1))

    def compute(self):
        a = self.a
        a.label("COMPUTE")
        lab = a.newlabel("NOPF")
        a("s_cmp_ge_u32 s3, 2\ns_cbranch_scc1 " + lab)
        a("v_lshl_add_u32 v3, s3, 6, v1")
        sv = self.vL
        self.vL = 3
        self.prefetch_code("LOADER", "ROLE_B", 250)
        self.vL = sv
        a.label(lab)
        self.gemm_params()
        ax = [[4, 5, 6, 7], [8, 9, 10, 11]]
        aw = [[12, 13], [14, 15]]
        a("""s_lshr_b32 s63, s3, 1
        s_and_b32 s64, s3, 1
        v_and_b32 v2, 31, v1
        v_lshlrev_b32 v2, 7, v2
        s_lshl_b32 s65, s63, 13
        v_add_u32 v2, s65, v2
        v_lshrrev_b32 v3, 5, v1
        v_bfe_u32 v16, v1, 1, 3
        v_xor_b32 v16, v16, v3
        v_lshl_add_u32 v4, v16, 4, v2
        v_xor_b32 v5, 32, v4
        v_xor_b32 v6, 64, v4
        v_xor_b32 v7, 96, v4""")
        a("""v_bfe_u32 v16, v1, 2, 2
        v_lshl_add_u32 v17, v3, 3, v16
        v_xor_b32 v16, s64, v16
        v_lshlrev_b32 v16, 6, v16
        v_lshl_add_u32 v16, v17, 8, v16
        v_bfe_u32 v17, v1, 4, 1
        v_lshl_add_u32 v16, v17, 5, v16
        v_and_b32 v17, 3, v1
        v_lshl_add_u32 v12, v17, 3, v16
        v_xor_b32 v13, 128, v12""")
        for k in range(4):
            a("v_add_u32 v%d, 0x10000, v%d" % (8 + k, 4 + k))
        a("v_add_u32 v14, 0x10000, v12\nv_add_u32 v15, 0x10000, v13")
        a("s_waitcnt lgkmcnt(0)")
        a("s_load_dwordx2 s[8:9], s[32:33], %d" % WS_EA)
        self.srd(self.rWS, self.pWS, WS_SIZE)
        self.srd(self.rOUT, self.pOUT, 2048 * 2048)
        a("s_mov_b32 s56, %s\ns_mov_b32 s57, %s\ns_mov_b32 s58, %s" % (fhex(1.4426950408889634), fhex(1.4426950408889634), fhex(1e-6)))
        a("v_lshlrev_b32 v2, 4, v1")
        a("s_waitcnt lgkmcnt(0)")
        self.tags()
        acc = [[64, 96], [80, 112]]
        fr = 16
        a("s_cmp_ge_u32 s5, 16\ns_cbranch_scc1 QCOMPUTE")
        n0 = self.nst
        a("""s_lshl1_add_u32 s65, s61, s64
        s_lshl_b32 s65, s65, 5
        s_lshl1_add_u32 s66, s60, s63
        s_add_u32 s65, s65, s66
        s_mul_i32 s65, s65, %d
        s_add_u32 s65, s65, 0x%x""" % (PLINE, WS_PART))
        P0, P1, PZ, ONES, zaddr = 128, 132, 136, 140, 144
        for p in (P0, P1, PZ):
            a("v_mov_b32 v%d, s6\nv_mov_b32 v%d, s7" % (p + 1, p + 3))
        for j in range(4):
            a("v_mov_b32 v%d, 0x3f803f80" % (ONES + j))
        a("""v_lshrrev_b32 v3, 4, v1
        v_and_b32 v145, 1, v1
        v_lshl_add_u32 v3, v3, 1, v145
        v_lshlrev_b32 v%d, 4, v3
        s_mov_b32 s68, 0xaaaaaaaa
        s_mov_b32 s69, 0xaaaaaaaa""" % zaddr)
        self.gemm_loop(acc, fr, ax, aw, True)
        self.stamp()
        K0, K1, V0, V1 = acc[0][0], acc[1][0], acc[0][1], acc[1][1]
        pk, vv, tmp, D, D2 = 16, 32, 48, 148, 164
        self.phi(K0, pk, tmp, 16)
        for j in range(8):
            a("v_cvt_pk_bf16_f32 v%d, v%d, v%d" % (vv + j, V0 + 2 * j, V0 + 2 * j + 1))
        for i in range(2):
            a("v_mfma_f32_32x32x16_bf16 %s, %s, %s, %s" % (v(D, 16), v(pk + 4 * i, 4), v(vv + 4 * i, 4), v(D, 16) if i else "0"))
            a("v_mfma_f32_32x32x16_bf16 %s, %s, %s, %s" % (v(D2, 16), v(pk + 4 * i, 4), v(ONES, 4), v(D2, 16) if i else "0"))
        for j in range(8):
            a("v_cvt_pk_bf16_f32 v%d, v%d, v%d" % (vv + 8 + j, V1 + 2 * j, V1 + 2 * j + 1))
        self.phi(K1, pk + 8, tmp, 8)
        a("v_mfma_f32_32x32x16_bf16 %s, %s, %s, %s" % (v(D, 16), v(pk + 8, 4), v(vv + 8, 4), v(D, 16)))
        a("v_mfma_f32_32x32x16_bf16 %s, %s, %s, %s" % (v(D2, 16), v(pk + 8, 4), v(ONES, 4), v(D2, 16)))
        self.phi(K1 + 8, pk + 12, tmp, 8)
        a("v_mfma_f32_32x32x16_bf16 %s, %s, %s, %s" % (v(D, 16), v(pk + 12, 4), v(vv + 12, 4), v(D, 16)))
        a("v_mfma_f32_32x32x16_bf16 %s, %s, %s, %s" % (v(D2, 16), v(pk + 12, 4), v(ONES, 4), v(D2, 16)))
        for t in range(8):
            a("v_cndmask_b32 v%d, v%d, v%d, s[10:11]" % (tmp + t, D + t, D + 8 + t))
        for j, d in enumerate((P0, P0 + 2, P1, P1 + 2)):
            a("v_cvt_pk_bf16_f32 v%d, v%d, v%d" % (d, tmp + 2 * j, tmp + 2 * j + 1))
        a("buffer_store_dwordx4 %s, v2, %s, s65 offen sc1" % (v(P0, 4), s(self.rWS, 4)))
        a("buffer_store_dwordx4 %s, v2, %s, s65 offen offset:1024 sc1" % (v(P1, 4), s(self.rWS, 4)))
        for t in range(8):
            a("v_cndmask_b32 v%d, v%d, v%d, s[10:11]" % (tmp + t, D2 + t, D2 + 8 + t))
        for t in range(4):
            a("v_cndmask_b32 v%d, v%d, v%d, s[68:69]" % (tmp + t, tmp + t, tmp + 4 + t))
        a("v_cvt_pk_bf16_f32 v%d, v%d, v%d" % (PZ, tmp, tmp + 1))
        a("v_cvt_pk_bf16_f32 v%d, v%d, v%d" % (PZ + 2, tmp + 2, tmp + 3))
        a("s_mov_b32 exec_lo, 0x00030003\ns_mov_b32 exec_hi, 0x00030003")
        a("buffer_store_dwordx4 %s, v%d, %s, s65 offen offset:2048 sc1" % (v(PZ, 4), zaddr, s(self.rWS, 4)))
        a("s_mov_b64 exec, -1")
        self.stamp()
        assert self.nst == self.kv_tail_nst
        self.kv_tail()
        self.nst = n0
        a.label("QCOMPUTE")
        a("""s_lshl1_add_u32 s66, s60, s63
        s_lshl2_add_u32 s66, s66, s61
        s_lshl1_add_u32 s66, s66, s64
        s_lshl_b32 s65, s66, 13
        s_add_u32 s65, s65, 0x%x
        s_add_u32 s67, s65, 0x1000
        s_lshl_b32 s66, s66, 7
        s_add_u32 s66, s66, 0x%x""" % (WS_PQ, WS_FLAG))
        self.gemm_loop(acc, fr, ax, aw, False)
        self.stamp()
        k = 0
        for nb in range(2):
            for mb in range(2):
                d = 128 + 8 * k
                self.phi(acc[mb][nb], d, 48, 16)
                for h in range(2):
                    idx = h * 2 + mb
                    a("buffer_store_dwordx4 %s, v2, %s, s%d offen offset:%d sc1" % (v(d + 4 * h, 4), s(self.rWS, 4), 67 if nb else 65, idx * 1024))
                k += 1
        a("v_mov_b32 v4, s6\nv_mov_b32 v5, s7\nv_mov_b32 v3, 0")
        a("s_waitcnt vmcnt(0)")
        a("s_mov_b64 exec, 1")
        a("buffer_store_dwordx2 v[4:5], v3, %s, s66 offen sc1" % s(self.rWS, 4))
        self.end()

    def kv_tail(self):
        a = self.a
        a.label("KV_TAIL")
        WO, PQ, RD, OP, AC = 128, 16, 48, 80, 96
        a("""s_and_b32 s63, s3, 1
        s_lshr_b32 s64, s3, 1
        v_lshlrev_b32 v2, 4, v1
        v_bfe_u32 v4, v1, 2, 2
        v_lshrrev_b32 v3, 5, v1
        v_lshl_add_u32 v5, v3, 2, v4
        v_xor_b32 v4, s64, v4
        v_lshlrev_b32 v4, 6, v4
        v_lshl_add_u32 v4, v5, 8, v4
        v_and_b32 v5, 1, v1
        v_lshl_add_u32 v4, v5, 5, v4
        v_bfe_u32 v5, v1, 4, 1
        v_lshl_add_u32 v4, v5, 4, v4
        v_bfe_u32 v5, v1, 1, 1
        v_lshl_add_u32 v4, v5, 3, v4""")
        a("""s_sub_u32 s65, 0, s5
        s_lshl_b32 s65, s65, 15
        s_and_b32 s66, s65, 0x18000
        s_add_u32 s65, s65, 0x8000
        s_and_b32 s67, s65, 0x18000
        v_add_u32 v5, s67, v4
        s_add_u32 s65, s65, 0x8000
        s_and_b32 s67, s65, 0x18000
        v_add_u32 v6, s67, v4
        s_add_u32 s65, s65, 0x8000
        s_and_b32 s67, s65, 0x18000
        v_add_u32 v7, s67, v4
        v_add_u32 v4, s66, v4""")
        a("""s_and_b32 s65, s5, 3
        s_lshl2_add_u32 s65, s4, s65
        s_lshl3_add_u32 s66, s65, s3
        s_lshl_b32 s67, s66, 13
        s_add_u32 s67, s67, 0x%x
        s_add_u32 s68, s67, 0x1000
        s_lshl_b32 s66, s66, 7
        s_add_u32 s66, s66, 0x%x""" % (WS_PQ, WS_FLAG))
        a("""s_lshl2_add_u32 s69, s64, s63
        s_mul_i32 s70, s69, %d
        s_mul_i32 s71, s4, 0x%x
        s_add_u32 s70, s70, s71
        s_add_u32 s70, s70, 0x%x
        s_add_u32 s71, s70, %d
        v_lshrrev_b32 v8, 4, v1
        v_xor_b32 v8, 1, v8
        v_lshlrev_b32 v8, 5, v8
        v_mov_b32 v9, 0""" % (PLINE, RED_STRIDE, WS_RED, 2 * PLINE))
        a("s_barrier")
        self.stamp()
        for h in range(32):
            off = (h & 7) * 4096
            a("ds_read_b64_tr_b16 %s, v%d offset:%d" % (v(WO + 4 * h, 2), 4 + (h >> 3), off))
            a("ds_read_b64_tr_b16 %s, v%d offset:%d" % (v(WO + 4 * h + 2, 2), 4 + (h >> 3), off + 2048))
        self.poll(lambda: a("buffer_load_dwordx2 v[10:11], v9, %s, s66 offen sc1" % s(self.rWS, 4)),
                  lambda: a("v_xor_b32 v12, s6, v10\nv_bitop3_b32 v12, v12, v11, s7 bitop3:0xf6"), 12)
        for i in range(8):
            a("buffer_load_dwordx4 %s, v2, %s, s%d offen offset:%d sc1" % (v(PQ + 4 * i, 4), s(self.rWS, 4), 68 if i >= 4 else 67, (i & 3) * 1024))
        a("s_waitcnt lgkmcnt(0)\ns_barrier")
        a("""s_lshl_b32 s69, s69, 11
        v_add_u32 v10, s69, v2
        s_lshl_b32 s69, s63, 15
        v_add_u32 v11, s69, v2
        s_mov_b32 s58, %s""" % fhex(1e-6))
        a("""s_lshl_b32 s69, s3, 11
        s_add_u32 s69, s69, 0x20000
        v_and_b32 v13, 31, v1
        v_bfe_u32 v14, v1, 1, 2
        v_lshrrev_b32 v15, 5, v1
        v_lshlrev_b32 v15, 1, v15
        v_xor_b32 v14, v14, v15
        v_lshlrev_b32 v14, 4, v14
        v_lshl_add_u32 v13, v13, 6, v14
        v_add_u32 v13, s69, v13
        v_xor_b32 v14, 16, v13
        v_bfe_u32 v15, v1, 3, 2
        v_lshlrev_b32 v15, 4, v15
        v_xor_b32 v15, v15, v2
        v_add_u32 v15, s69, v15""")
        a("""v_lshrrev_b32 v3, 2, v1
        v_and_b32 v4, 3, v1
        v_lshlrev_b32 v4, 4, v4
        v_lshl_add_u32 v3, v3, 11, v4
        s_lshl1_add_u32 s65, s65, s63
        s_lshl_b32 s65, s65, 16
        s_lshr_b32 s69, s5, 2
        s_lshl2_add_u32 s69, s69, s64
        s_lshl_b32 s69, s69, 6
        s_add_u32 s65, s65, s69
        s_add_u32 s69, s65, 0x8000""")
        a("s_waitcnt vmcnt(0)")
        self.stamp()

        def issue():
            for pi in range(2):
                so = 70 + pi
                b = RD + 16 * pi
                a("buffer_load_dwordx4 %s, v2, %s, s%d offen sc1" % (v(b, 4), s(self.rWS, 4), so))
                a("buffer_load_dwordx4 %s, v2, %s, s%d offen offset:1024 sc1" % (v(b + 4, 4), s(self.rWS, 4), so))
                a("buffer_load_dwordx4 %s, v8, %s, s%d offen offset:2048 sc1" % (v(b + 8, 4), s(self.rWS, 4), so))
                a("buffer_load_dwordx4 %s, v8, %s, s%d offen offset:2064 sc1" % (v(b + 12, 4), s(self.rWS, 4), so))

        self.poll(issue, lambda: self.tagcheck([RD + 4 * i for i in range(8)], 12), 12)
        self.stamp()
        for pi in range(2):
            b = RD + 16 * pi
            for j in range(4):
                a("v_cndmask_b32 v%d, v%d, v%d, s[10:11]" % (OP + 8 * pi + j, b + 2 * j, b + 8 + 2 * j))
            for j in range(4):
                a("v_cndmask_b32 v%d, v%d, v%d, s[10:11]" % (OP + 8 * pi + 4 + j, b + 8 + 2 * j, b + 2 * j))
        accs = [AC, AC + 16, RD, RD + 16]
        items = [(pi, h, mb) for pi in range(2) for h in range(2) for mb in range(2)]

        def mf(i):
            pi, h, mb = items[i]
            a("v_mfma_f32_32x32x16_bf16 %s, %s, %s, 0" % (v(accs[i & 3], 16), v(OP + 8 * pi + 4 * h, 4), v(PQ + 4 * (pi * 4 + h * 2 + mb), 4)))

        def post(i):
            pi, h, mb = items[i]
            d = accs[i & 3]
            num, den = (d, d + 8) if h == 0 else (d + 8, d)
            a("v_add_f32 v%d, s58, v%d" % (den, den))
            a("v_rcp_f32 v%d, v%d" % (den, den))
            for j in range(0, 8, 2):
                a("v_pk_mul_f32 %s, %s, %s op_sel_hi:[1,0]" % (v(num + j, 2), v(num + j, 2), v(den, 2)))
            for j in range(4):
                a("v_cvt_pk_bf16_f32 v%d, v%d, v%d" % (den + 4 + j, num + 2 * j, num + 2 * j + 1))
            a("ds_write_b128 v10, %s offset:%d" % (v(den + 4, 4), mb * 32768 + (pi * 4 + h) * 1024))

        for i in range(3):
            mf(i)
        for i in range(8):
            if i + 3 < 8:
                mf(i + 3)
            post(i)
        a("s_waitcnt lgkmcnt(0)\ns_barrier")
        self.stamp()
        NB = 8
        OF = 16
        for h in range(NB):
            a("ds_read_b128 %s, v11 offset:%d" % (v(OF + 4 * h, 4), h * 1024))
        lab = a.newlabel("NOEP")
        a("s_or_b32 s56, s2, s3\ns_cbranch_scc1 " + lab)
        a("v_mov_b32 v6, s8\nv_mov_b32 v7, s9\ns_mov_b64 exec, 1")
        a("buffer_store_dwordx2 v[6:7], v9, %s, 0 offen offset:%d" % (s(self.rWS, 4), WS_EA))
        a("s_mov_b64 exec, -1")
        a.label(lab)
        for h in range(32):
            a("s_waitcnt lgkmcnt(%d)" % min(NB - 1, 31 - h))
            a("v_mfma_f32_32x32x16_bf16 %s, %s, %s, %s" % (v(AC, 16), v(WO + 4 * h, 4), v(OF + 4 * (h % NB), 4), v(AC, 16) if h else "0"))
            if h + NB < 32:
                a("ds_read_b128 %s, v11 offset:%d" % (v(OF + 4 * (h % NB), 4), (h + NB) * 1024))
        for j in range(8):
            a("v_cvt_pk_bf16_f32 v%d, v%d, v%d" % (48 + j, AC + 2 * j, AC + 2 * j + 1))
        a("""ds_write_b128 v13, v[48:51]
        ds_write_b128 v14, v[52:55]
        ds_read_b128 v[56:59], v15
        ds_read_b128 v[60:63], v15 offset:1024
        s_waitcnt lgkmcnt(1)""")
        fl = self.opt.get("outflag", "")
        a("buffer_store_dwordx4 v[56:59], v3, %s, s65 offen %s" % (s(self.rOUT, 4), fl))
        a("s_waitcnt lgkmcnt(0)")
        a("buffer_store_dwordx4 v[60:63], v3, %s, s69 offen %s" % (s(self.rOUT, 4), fl))
        self.end()

    def sincos(self, ang, c, sn, n):
        a = self.a
        for i in range(n):
            a("v_cos_f32 v%d, v%d" % (c + i, ang + i))
            a("v_sin_f32 v%d, v%d" % (sn + i, ang + i))

    def cvt(self, d, x, y):
        self.a("v_cvt_pk_bf16_f32 v%d, %s, %s" % (d, x, y))

    def role_b(self):
        a = self.a
        a.label("ROLE_B")
        XB, ZB, WB = 0, 32768, 65536
        a("""s_sub_u32 s61, s5, 24
        s_lshl3_add_u32 s60, s4, s61
        v_lshlrev_b32 v2, 4, v1
        s_lshl_b32 s62, s3, 7
        s_add_u32 s62, s62, s60
        s_lshl_b32 s62, s62, 10
        s_lshl_b32 m0, s3, 12
        s_add_u32 s63, s62, 0x%x
        s_add_u32 s64, s62, 0x%x
        s_add_u32 s65, s62, 0x%x""" % (0x100000 - 1024, 0x10000 - 2048, 0x110000 - 3072))
        a("""v_lshrrev_b32 v4, 5, v1
        v_and_b32 v5, 31, v1
        v_lshlrev_b32 v6, 4, v5
        v_lshl_add_u32 v3, v4, 15, v6
        s_lshl_b32 s66, s3, 18
        s_lshl_b32 s67, s61, 12
        s_add_u32 s66, s66, s67
        s_lshl_b32 s67, s4, 9
        s_add_u32 s66, s66, s67
        s_add_u32 s66, s66, 0x%x
        v_mov_b32 v8, -1
        v_mov_b32 v9, -1
        v_mov_b32 v10, -1
        v_mov_b32 v11, -1
        s_waitcnt lgkmcnt(0)""" % WS_X2)
        self.srd(self.rA, self.pXB, 0x200000)
        for q in range(4):
            a("buffer_load_dwordx4 v2, %s, s%d offen offset:%d lds" % (s(self.rA, 4), 62 + q, q * 1024))
        a("s_load_dwordx2 s[8:9], s[32:33], %d" % WS_EB)
        self.srd(self.rWS, self.pWS, WS_SIZE)
        lab = a.newlabel("NOPF")
        a("s_cmp_ge_u32 s3, 2\ns_cbranch_scc1 " + lab)
        a("v_lshl_add_u32 v7, s3, 6, v1")
        sv = self.vL
        self.vL = 7
        self.prefetch_code("ROLE_B", "CODE_END", 255)
        self.vL = sv
        a.label(lab)
        a("""s_lshl_b32 s67, s60, 6
        s_add_u32 s67, s67, 0x%x
        v_and_b32 v12, 15, v1
        v_lshrrev_b32 v13, 4, v1
        v_lshlrev_b32 v14, 4, v13
        v_lshl_add_u32 v14, v12, 8, v14
        s_lshr_b32 s71, s60, 1
        s_xor_b32 s62, s3, 3
        s_or_b32 s71, s71, s62""" % WS_X2S)
        lab = a.newlabel("NOSP")
        a("s_cbranch_scc1 " + lab)
        a("s_add_u32 s62, s67, 0x1000")
        for tp in range(2):
            for pp in range(2):
                a("buffer_store_dwordx4 v[8:11], v14, %s, s%d offen offset:%d sc1" % (s(self.rWS, 4), 62 if tp else 67, pp * 128))
        a.label(lab)
        a("s_mov_b32 s62, s66")
        for i in range(4):
            a("buffer_store_dwordx4 v[8:11], v3, %s, s62 offen sc1" % s(self.rWS, 4))
            if i < 3:
                a("s_add_u32 s62, s62, 0x10000")
        self.srd(self.rB, self.pWR, 2048 * 514)
        self.srd(self.rC, self.pWI, 2048 * 514)
        a("""v_bfe_u32 v15, v1, 3, 2
        s_lshl_b32 s62, s4, 2
        v_add_u32 v16, s62, v15
        v_lshl_add_u32 v16, v4, 5, v16
        v_mul_u32_u24 v16, 514, v16
        v_and_b32 v16, -16, v16
        v_and_b32 v17, 1, v15
        v_lshlrev_b32 v17, 1, v17
        v_sub_u32 v17, v1, v17
        v_and_b32 v18, 7, v17
        v_xor_b32 v19, 4, v18
        v_cmp_gt_u32 s[68:69], 5, v18
        v_cmp_gt_u32 vcc, 5, v19
        v_lshl_add_u32 v18, v18, 4, v16
        v_lshl_add_u32 v19, v19, 4, v16
        s_mul_i32 s62, s3, %d
        s_lshl_b32 s63, s61, 6
        s_add_u32 s62, s62, s63
        s_add_u32 s63, s62, %d
        s_add_u32 s64, s62, %d
        s_add_u32 s65, s62, %d
        s_lshl_b32 s70, s3, 12""" % (8 * 32 * 514, 64 * 514 - 1024, 128 * 514 - 2048, 192 * 514 - 3072))
        for half in range(2):
            a("s_mov_b64 exec, %s" % ("vcc" if half else "s[68:69]"))
            for arr in range(2):
                a("s_add_u32 m0, s70, %d" % (WB + arr * 32768))
                for q in (2 * half, 2 * half + 1):
                    a("buffer_load_dwordx4 v%d, %s, s%d offen offset:%d lds" % (18 + half, s(self.rC if arr else self.rB, 4), 62 + q, q * 1024))
        a("s_mov_b64 exec, -1")
        self.srd(self.rOUT, self.pOUT, 2048 * 2048)

        CS = 16
        G16 = 40
        TW0 = 48
        TW3 = 56
        F32 = 64
        F16 = 96
        TW1 = 104
        RA = 112
        T = 144
        ang, cs, sn = T, T + 16, T + 32
        keepc, keeps = T + 96, T + 104
        a("""v_cvt_f32_u32 v7, v12
        v_mul_f32 v7, %s, v7
        v_lshlrev_b32 v15, 2, v13
        v_cvt_f32_u32 v15, v15
        v_mul_f32 v%d, v7, v15""" % (fhex(1 / 32), ang))
        for t in range(1, 8):
            a("v_fmamk_f32 v%d, v7, %s, v%d" % (ang + t, fhex(float((t & 3) + 16 * (t >> 2))), ang))
        self.sincos(ang, cs, sn, 8)
        for j in range(4):
            c0, c1, s0, s1 = cs + 2 * j, cs + 2 * j + 1, sn + 2 * j, sn + 2 * j + 1
            self.cvt(CS + j, v(c0), v(c1))
            self.cvt(CS + 4 + j, v(c0), "-" + v(c1))
            self.cvt(CS + 8 + j, v(s0), v(s1))
            self.cvt(CS + 12 + j, v(s0), "-" + v(s1))
            self.cvt(CS + 16 + j, "-" + v(s0), "-" + v(s1))
            self.cvt(CS + 20 + j, "-" + v(s0), v(s1))
        for tau in range(2):
            for f in range(2):
                for x in range(4):
                    t = 4 * f + x
                    ng = "-" if (tau and x & 1) else ""
                    pg = "" if ng else "-"
                    self.cvt(F32 + ((tau * 2 + 0) * 2 + f) * 4 + x, ng + v(cs + t), ng + v(sn + t))
                    self.cvt(F32 + ((tau * 2 + 1) * 2 + f) * 4 + x, pg + v(sn + t), ng + v(cs + t))
        for x in range(4):
            a("v_add_f32 v%d, v%d, v%d" % (ang + 8 + x, ang + x, ang + x))
        for t in range(8):
            a("v_mul_f32 v%d, %s, v%d" % (ang + t, fhex(1 / 16), ang + t))
        self.sincos(ang + 8, cs, sn, 4)
        for x in range(4):
            a("v_fmamk_f32 v%d, v15, %s, v%d" % (ang + 12 + x, fhex(1 / 32), ang + x))
            if x:
                a("v_add_f32 v%d, %s, v%d" % (ang + 12 + x, fhex(x / 32), ang + 12 + x))
        for j in range(2):
            self.cvt(F16 + j, v(cs + 2 * j), v(cs + 2 * j + 1))
            self.cvt(F16 + 2 + j, v(sn + 2 * j), v(sn + 2 * j + 1))
            self.cvt(F16 + 4 + j, "-" + v(sn + 2 * j), "-" + v(sn + 2 * j + 1))
            self.cvt(F16 + 6 + j, v(cs + 2 * j), v(cs + 2 * j + 1))
        for x in range(4):
            a("v_mul_f32 v%d, %s, v%d" % (cs + x, fhex(2.0 ** -20), cs + x))
            a("v_mul_f32 v%d, %s, v%d" % (sn + x, fhex(2.0 ** -20), sn + x))
        for x in range(4):
            self.cvt(G16 + x, v(cs + x), "-" + v(sn + x))
            self.cvt(G16 + 4 + x, v(sn + x), v(cs + x))
        self.sincos(ang, TW0, TW0 + 4, 4)
        self.sincos(ang + 12, TW1, TW1 + 4, 4)
        self.sincos(ang + 4, TW3, TW3 + 4, 4)
        a("""v_cvt_f32_u32 v7, v5
        v_lshl_add_u32 v15, v4, 8, s60
        v_cvt_f32_u32 v15, v15
        v_mul_f32 v15, v15, v7
        v_mul_f32 v15, %s, v15
        v_mul_f32 v7, %s, v7
        v_lshlrev_b32 v9, 31, v1
        v_or_b32 v9, %s, v9
        v_sub_f32 v8, v15, v9
        v_add_f32 v9, v15, v9""" % (fhex(-1 / 2048), fhex(-1 / 32), fhex(0.125)))
        for uv in range(2):
            for f in range(2):
                for x in range(4):
                    k = 8 * f + x
                    d = ang + uv * 8 + f * 4 + x
                    if k == 0:
                        a("v_mov_b32 v%d, v%d" % (d, 8 + uv))
                    else:
                        a("v_fmamk_f32 v%d, v7, %s, v%d" % (d, fhex(float(k)), 8 + uv))
        self.sincos(ang, cs, sn, 16)
        for i in range(16):
            if i < 8:
                self.cvt(RA + i, v(cs + i), "-" + v(sn + i))
                self.cvt(RA + 16 + i, v(sn + i), v(cs + i))
            else:
                self.cvt(RA + i, v(cs + i), v(sn + i))
                self.cvt(RA + 16 + i, v(sn + i), "-" + v(cs + i))
        a("""s_lshl_b32 s62, s3, 12
        v_lshl_add_u32 v7, v1, 3, s62
        s_lshr_b32 s62, s3, 1
        s_lshl_b32 s62, s62, 13
        s_and_b32 s63, s3, 1
        s_lshl3_add_u32 s62, s63, s62
        s_add_u32 s62, s62, %d
        v_lshlrev_b32 v8, 11, v13
        v_lshl_add_u32 v8, v12, 4, v8
        v_add_u32 v8, s62, v8
        v_lshl_add_u32 v10, s3, 5, v5
        v_lshlrev_b32 v15, 13, v4
        v_add_u32 v15, %d, v15
        v_lshl_add_u32 v9, v10, 4, v15
        v_sub_u32 v10, 0, v10
        v_and_b32 v10, 0x1ff, v10
        v_lshl_add_u32 v10, v10, 4, v15
        v_lshl_add_u32 v11, v4, 19, v6
        s_lshl_b32 s62, s3, 6
        s_add_u32 s62, s62, s60
        s_lshl_b32 s62, s62, 10
        s_add_u32 s62, s62, 0x%x
        s_waitcnt lgkmcnt(0)""" % (ZB, ZB, WS_X1))
        self.tags()
        PC = T + 80
        a("s_waitcnt vmcnt(12)")
        self.stamp()
        XF, T1, U, X = T, T + 16, T + 48, T + 16
        for q in range(4):
            a("ds_read_b64_tr_b16 %s, v7 offset:%d" % (v(XF + 4 * q, 2), q * 1024))
            a("ds_read_b64_tr_b16 %s, v7 offset:%d" % (v(XF + 4 * q + 2, 2), q * 1024 + 512))
        for p in range(8):
            a("v_mov_b32 v%d, s6\nv_mov_b32 v%d, s7" % (PC + 4 * p + 1, PC + 4 * p + 3))
        M16 = "v_mfma_f32_16x16x32_bf16"
        M32 = "v_mfma_f32_32x32x16_bf16"

        def stage_cs(m, re, im, out, conj):
            S, N = (CS + 16, CS + 8) if conj else (CS + 8, CS + 16)
            for tau in range(2):
                a("%s %s, %s, %s, 0" % (M16, v(out + 4 * tau, 4), v(re, 4), v(CS + 4 * tau, 4)))
                a("%s %s, %s, %s, 0" % (M16, v(out + 8 + 4 * tau, 4), v(im, 4), v(CS + 4 * tau, 4)))
            for tau in range(2):
                a("%s %s, %s, %s, %s" % (M16, v(out + 4 * tau, 4), v(im, 4), v(S + 4 * tau, 4), v(out + 4 * tau, 4)))
                a("%s %s, %s, %s, %s" % (M16, v(out + 8 + 4 * tau, 4), v(re, 4), v(N + 4 * tau, 4), v(out + 8 + 4 * tau, 4)))

        def twiddle(t, tws, tmp, conj):
            for tau in range(2):
                for j in (0, 2):
                    re, im = t + 4 * tau + j, t + 8 + 4 * tau + j
                    c, sn_ = tws[tau] + j, tws[tau] + 4 + j
                    k = tmp + 8 * tau + 2 * j
                    a("v_pk_mul_f32 %s, %s, %s" % (v(k, 2), v(im, 2), v(sn_, 2)))
                    a("v_pk_mul_f32 %s, %s, %s" % (v(k + 2, 2), v(re, 2), v(sn_, 2)))
            ng = " neg_lo:[0,0,1] neg_hi:[0,0,1]"
            for tau in range(2):
                for j in (0, 2):
                    re, im = t + 4 * tau + j, t + 8 + 4 * tau + j
                    c = tws[tau] + j
                    k = tmp + 8 * tau + 2 * j
                    a("v_pk_fma_f32 %s, %s, %s, %s%s" % (v(re, 2), v(re, 2), v(c, 2), v(k, 2), ng if conj else ""))
                    a("v_pk_fma_f32 %s, %s, %s, %s%s" % (v(im, 2), v(im, 2), v(c, 2), v(k + 2, 2), "" if conj else ng))

        a("s_waitcnt lgkmcnt(4)")
        stage_cs(0, XF, XF + 4, T1, False)
        a("s_waitcnt lgkmcnt(0)")
        stage_cs(1, XF + 8, XF + 12, T1 + 16, False)
        for m in range(2):
            t = T1 + 16 * m
            twiddle(t, [TW0, TW1], T + 64, False)
            for tau in range(2):
                u = U + 8 * m + 4 * tau
                self.cvt(u, v(t + 4 * tau), v(t + 4 * tau + 1))
                self.cvt(u + 1, v(t + 4 * tau + 2), v(t + 4 * tau + 3))
                self.cvt(u + 2, v(t + 8 + 4 * tau), v(t + 8 + 4 * tau + 1))
                self.cvt(u + 3, v(t + 8 + 4 * tau + 2), v(t + 8 + 4 * tau + 3))
            for tau in range(2):
                u = U + 8 * m + 4 * tau
                a("%s %s, %s, %s, 0" % (M16, v(t + 4 * tau, 4), v(F16, 4), v(u, 4)))
                a("%s %s, %s, %s, 0" % (M16, v(t + 8 + 4 * tau, 4), v(F16 + 4, 4), v(u, 4)))
        ZW = T + 64
        for m in range(2):
            for i in range(8):
                self.cvt(ZW + 2 * i + m, v(T1 + 16 * m + i), v(T1 + 16 * m + 8 + i))
        for i in range(8):
            a("ds_write_b64 v8, %s offset:%d" % (v(ZW + 2 * i, 2), (i >> 2) * 256 + (i & 3) * 512))
        a("s_waitcnt vmcnt(8) lgkmcnt(0)\ns_barrier")
        self.stamp()
        for f in range(4):
            a("ds_read_b128 %s, v%d offset:%d" % (v(XF + 4 * f, 4), 9 + (f >> 1), (f & 1) * 16384))
        for f in range(4):
            a("s_waitcnt lgkmcnt(%d)" % (3 - f))
            for ri in range(2):
                d = v(T1 + 16 * ri, 16)
                a("%s %s, %s, %s, %s" % (M32, d, v(RA + 16 * ri + 4 * f, 4), v(XF + 4 * f, 4), d if f else "0"))
        for j in range(4):
            for ph in range(2):
                p = PC + 4 * (2 * j + ph)
                r = 4 * j + 2 * ph
                self.cvt(p, v(T1 + r), v(T1 + 16 + r))
                self.cvt(p + 2, v(T1 + r + 1), v(T1 + 16 + r + 1))
                a("buffer_store_dwordx4 %s, v11, %s, s62 offen offset:%d sc1" % (v(p, 4), s(self.rWS, 4), ph * 512))
            if j < 3:
                a("s_add_u32 s62, s62, 0x100000")
        a("""v_mov_b32 v6, s6
        v_mov_b32 v11, s7
        s_mov_b32 vcc_lo, 0xaaaaaaaa
        s_mov_b32 vcc_hi, 0xaaaaaaaa
        v_cndmask_b32 v6, v6, v11, vcc""")
        lab = a.newlabel("NOX")
        a("s_cmp_lg_u32 s3, 7\ns_cbranch_scc1 " + lab)
        a("ds_read_b128 %s, v15 offset:4096\nds_read_b128 %s, v15 offset:%d" % (v(XF, 4), v(XF + 4, 4), 4096 + 16384))
        a("s_lshl_b32 s62, s60, 10\ns_add_u32 s62, s62, 0x%x\nv_lshlrev_b32 v11, 3, v1\nv_mov_b32 v%d, v6" % (WS_X1 + 64 * 65536, XF + 9))
        a("s_waitcnt lgkmcnt(0)")
        for f in range(4):
            for ri in range(2):
                d = v(T1 + 16 * ri, 16)
                a("%s %s, %s, %s, %s" % (M32, d, v(XF + 4 * (f & 1), 4), v(RA + 16 * ri + 4 * f, 4), d if f else "0"))
        self.cvt(XF + 8, v(T1), v(T1 + 16))
        a("s_mov_b32 exec_hi, 0")
        a("buffer_store_dwordx2 %s, v11, %s, s62 offen sc1" % (v(XF + 8, 2), s(self.rWS, 4)))
        a("s_mov_b32 exec_hi, -1")
        a.label(lab)
        self.stamp()

        FL = 96
        FL2 = T + 64
        DAT = T
        FR = T + 32
        TM = T + 48
        a("""v_lshlrev_b32 v11, 13, v13
        v_lshl_add_u32 v11, v12, 3, v11
        s_lshl_b32 s62, s60, 16
        s_and_b32 s63, s3, 1
        s_lshl_b32 s64, s63, 9
        s_add_u32 s62, s62, s64
        s_lshr_b32 s70, s3, 1
        s_lshl_b32 s64, s70, 7
        s_add_u32 s62, s62, s64
        s_add_u32 s62, s62, 0x%x""" % WS_X1)
        a("""v_and_b32 v15, 1, v12
        v_lshl_add_u32 v%d, s63, 1, v15
        s_lshl_b32 s64, s4, 2
        v_add_u32 v%d, s64, v%d
        v_and_b32 v%d, 7, v%d
        v_lshrrev_b32 v%d, 1, v12
        s_lshl_b32 s64, s70, 3
        v_add3_u32 v%d, v%d, v%d, s64
        v_lshlrev_b32 v%d, 1, v%d
        v_lshl_add_u32 v15, v15, 5, v%d
        v_and_b32 v%d, 1, v13
        v_lshl_add_u32 v15, v%d, 6, v15
        v_and_b32 v15, 0x7f, v15
        v_lshl_add_u32 v15, v%d, 7, v15
        v_lshl_add_u32 v15, v13, 11, v15
        v_add_u32 v15, %d, v15""" % (TM, TM + 1, TM, TM + 1, TM + 1, TM + 2, TM + 1, TM + 1, TM + 2, TM + 1, TM + 1, TM + 1,
                                     TM + 2, TM + 2, TM, WB))
        a("v_cvt_f32_u32 v%d, v13\nv_mul_f32 v%d, %s, v%d" % (TM, TM, fhex(1 / 16), TM))
        for t in range(1, 8):
            a("v_add_f32 v%d, %s, v%d" % (TM + t, fhex(((t & 3) + 16 * (t >> 2)) / 64), TM))
        self.sincos(TM, FR, FR + 8, 8)

        def filt(dst, raw):
            for j in range(0, 8, 2):
                a("v_pk_add_f32 %s, %s, %s" % (v(dst + j, 2), v(raw + j, 2), v(raw + 8 + j, 2)))
                a("v_pk_add_f32 %s, %s, %s" % (v(dst + 8 + j, 2), v(raw + 16 + j, 2), v(raw + 24 + j, 2)))
                a("v_pk_add_f32 %s, %s, %s neg_lo:[0,1] neg_hi:[0,1]" % (v(raw + j, 2), v(raw + j, 2), v(raw + 8 + j, 2)))
                a("v_pk_add_f32 %s, %s, %s neg_lo:[0,1] neg_hi:[0,1]" % (v(raw + 16 + j, 2), v(raw + 16 + j, 2), v(raw + 24 + j, 2)))
            ng = " neg_lo:[0,0,1] neg_hi:[0,0,1]"
            for j in range(0, 8, 2):
                dr, di, c, sn_ = v(raw + j, 2), v(raw + 16 + j, 2), v(FR + j, 2), v(FR + 8 + j, 2)
                t1, t2 = v(raw + 8 + j, 2), v(raw + 24 + j, 2)
                a("v_pk_mul_f32 %s, %s, %s" % (t1, di, sn_))
                a("v_pk_mul_f32 %s, %s, %s" % (t2, dr, sn_))
                a("v_pk_fma_f32 %s, %s, %s, %s" % (v(dst + 16 + j, 2), dr, c, t1))
                a("v_pk_fma_f32 %s, %s, %s, %s%s" % (v(dst + 24 + j, 2), di, c, t2, ng))
                a("v_pk_fma_f32 %s, %s, %s, %s%s" % (v(dst + 32 + j, 2), dr, c, t1, ng))
                a("v_pk_fma_f32 %s, %s, %s, %s" % (v(dst + 40 + j, 2), di, c, t2))

        lab = a.newlabel("NOSP")
        a("s_cmp_lg_u32 s71, 0\ns_cbranch_scc1 " + lab)
        a("""v_lshl_add_u32 v%d, v13, 7, v12
        v_lshl_add_u32 v%d, s60, 4, v%d
        v_mul_u32_u24 v%d, 514, v%d""" % (TM, TM, TM, TM, TM))
        for pm in range(2):
            for t in range(8):
                a("s_mov_b32 s64, %d" % ((32 * pm + 16 * (t >> 2) + (t & 3)) * 32 * 514))
                a("buffer_load_short_d16_hi v%d, v%d, %s, s64 offen offset:512" % (DAT + 8 * pm + t, TM, s(self.rB, 4)))
                a("buffer_load_short_d16_hi v%d, v%d, %s, s64 offen offset:512" % (DAT + 16 + 8 * pm + t, TM, s(self.rC, 4)))
        a("s_waitcnt vmcnt(0)")
        filt(FL2, DAT)
        a.label(lab)
        a("s_waitcnt vmcnt(0)\ns_barrier")
        self.stamp()
        for arr in range(2):
            for pm in range(2):
                for t in range(8):
                    a("ds_read_u16_d16_hi v%d, v15 offset:%d" % (DAT + 16 * arr + 8 * pm + t, arr * 32768 + pm * 16384 + (t >> 2) * 8192 + (t & 3) * 512))
        SR = 2
        a("s_waitcnt lgkmcnt(0)")
        filt(FL, DAT)
        a("""v_lshlrev_b32 v15, 1, v13
        v_and_b32 v5, 7, v12
        v_xor_b32 v15, v15, v5
        s_lshl_b32 s64, s70, 3
        v_or_b32 v15, s64, v15
        v_lshlrev_b32 v15, 4, v15
        v_lshl_add_u32 v15, v12, 10, v15
        s_lshl_b32 s64, s63, 3
        v_add_u32 v15, s64, v15
        v_xor_b32 v5, 16, v15
        s_lshl_b32 s64, s63, 6
        v_xor_b32 v7, s64, v2
        s_lshl_b32 s64, s3, 12
        v_add_u32 v7, s64, v7""")
        self.stamp()
        n_b2 = self.nst

        def b2(fl, special):
            def issue():
                a("s_add_u32 s63, s62, 0x1000\ns_add_u32 s64, s62, 0x8000\ns_add_u32 s65, s62, 0x9000")
                for p in range(2):
                    for f in range(2):
                        for x in range(4):
                            a("buffer_load_dwordx2 %s, v11, %s, s%d offen offset:%d sc1" % (
                                v(DAT + 2 * ((p * 2 + f) * 4 + x), 2), s(self.rWS, 4), 62 + 2 * f + (x >> 1), (x & 1) * 2048 + p * 1024))

            def check():
                a("v_xor_b32 v%d, v6, v%d" % (TM, DAT + 1))
                for i in range(1, 16):
                    a("v_bitop3_b32 v%d, v%d, v%d, v6 bitop3:0xf6" % (TM, TM, DAT + 2 * i + 1))

            self.poll(issue, check, TM)
            if not special:
                self.stamp()
            for i in range(8):
                a("v_pk_mov_b32 %s, %s, %s op_sel:[0,0]" % (v(FR + 2 * i, 2), v(DAT + 4 * i, 2), v(DAT + 4 * i + 2, 2)))
            for p in range(2):
                for f in range(2):
                    for tau in range(2):
                        for ri in range(2):
                            d = v(DAT + 16 * p + 8 * ri + 4 * tau, 4)
                            a("%s %s, %s, %s, %s" % (M16, d, v(F32 + ((tau * 2 + ri) * 2 + f) * 4, 4), v(FR + 8 * p + 4 * f, 4), d if f else "0"))
            if not special:
                lab = a.newlabel("NOEP")
                a("s_or_b32 s56, s60, s3\ns_cbranch_scc1 " + lab)
                a("v_mov_b32 v%d, s8\nv_mov_b32 v%d, s9\nv_mov_b32 v%d, 0\ns_mov_b64 exec, 1" % (TM, TM + 1, TM + 2))
                a("buffer_store_dwordx2 %s, v%d, %s, 0 offen offset:%d" % (v(TM, 2), TM + 2, s(self.rWS, 4), WS_EB))
                a("s_mov_b64 exec, -1")
                a.label(lab)
            n1_ = " neg_lo:[1,0,0] neg_hi:[1,0,0]"
            for j in range(0, 8, 2):
                Er, Ei, Or, Oi = [v(DAT + 8 * k + j, 2) for k in range(4)]
                Ar, Ai, B1r, B1i, B2r, B2i = [v(fl + 8 * k + j, 2) for k in range(6)]
                k = TM + 8 * ((j >> 1) & 1)
                Pr, Pi, Qr, Qi = [v(k + 2 * i, 2) for i in range(4)]
                a("v_pk_mul_f32 %s, %s, %s" % (Pr, Ar, Er))
                a("v_pk_mul_f32 %s, %s, %s" % (Pi, Ar, Ei))
                a("v_pk_mul_f32 %s, %s, %s" % (Qr, B2r, Er))
                a("v_pk_mul_f32 %s, %s, %s" % (Qi, B2r, Ei))
                a("v_pk_fma_f32 %s, %s, %s, %s%s" % (Pr, Ai, Ei, Pr, n1_))
                a("v_pk_fma_f32 %s, %s, %s, %s" % (Pi, Ai, Er, Pi))
                a("v_pk_fma_f32 %s, %s, %s, %s%s" % (Qr, B2i, Ei, Qr, n1_))
                a("v_pk_fma_f32 %s, %s, %s, %s" % (Qi, B2i, Er, Qi))
                a("v_pk_fma_f32 %s, %s, %s, %s" % (Pr, B1r, Or, Pr))
                a("v_pk_fma_f32 %s, %s, %s, %s" % (Pi, B1r, Oi, Pi))
                a("v_pk_fma_f32 %s, %s, %s, %s" % (Qr, Ar, Or, Qr))
                a("v_pk_fma_f32 %s, %s, %s, %s" % (Qi, Ar, Oi, Qi))
                a("v_pk_fma_f32 %s, %s, %s, %s%s" % (Pr, B1i, Oi, Pr, n1_))
                a("v_pk_fma_f32 %s, %s, %s, %s" % (Pi, B1i, Or, Pi))
                a("v_pk_fma_f32 %s, %s, %s, %s%s" % (Qr, Ai, Oi, Qr, n1_))
                a("v_pk_fma_f32 %s, %s, %s, %s" % (Qi, Ai, Or, Qi))
                for e in range(2):
                    self.cvt(FR + j + e, v(k + e), "-" + v(k + 2 + e))
                    self.cvt(FR + 8 + j + e, v(k + 4 + e), "-" + v(k + 6 + e))
            for p in range(2):
                for f in range(2):
                    for tau in range(2):
                        for ri in range(2):
                            d = v(DAT + 16 * p + 8 * ri + 4 * tau, 4)
                            a("%s %s, %s, %s, %s" % (M16, d, v(FR + 8 * p + 4 * f, 4), v(F32 + ((tau * 2 + ri) * 2 + f) * 4, 4), d if f else "0"))
            for p in range(2):
                for tau in range(2):
                    o = TM + 8 * p + 4 * tau
                    for r in range(4):
                        self.cvt(o + r, v(DAT + 16 * p + 4 * tau + r), "-" + v(DAT + 16 * p + 8 + 4 * tau + r))
                    for r in range(4):
                        a("v_min_u32 v%d, -2, v%d" % (o + r, o + r))
                    if special:
                        a("buffer_store_dwordx4 %s, v14, %s, s%d offen offset:%d sc1" % (v(o, 4), s(self.rWS, 4), 68 if tau else 67, p * 128))
                    else:
                        a("ds_write_b64 v15, %s offset:%d" % (v(o, 2), tau * 16384 + p * 512))
                        a("ds_write_b64 v5, %s offset:%d" % (v(o + 2, 2), tau * 16384 + p * 512))

        b2(FL, False)
        for i in range(1, 4):
            a("v_xor_b32 v%d, %d, v7" % (FR + i, 16 * i))
        a("s_waitcnt lgkmcnt(0)\ns_barrier")
        self.stamp()
        for i in range(4):
            a("ds_read_b128 %s, v%d offset:%d" % (v(DAT + 4 * i, 4), FR + i if i else 7, i * 1024))
        for i in range(4):
            a("s_waitcnt lgkmcnt(%d)" % (3 - i))
            a("buffer_store_dwordx4 %s, v3, %s, s66 offen sc1" % (v(DAT + 4 * i, 4), s(self.rWS, 4)))
            if i < 3:
                a("s_add_u32 s66, s66, 0x10000")
        lab = a.newlabel("NOSP")
        a("s_cmp_lg_u32 s71, 0\ns_cbranch_scc1 " + lab)
        a("s_lshl_b32 s62, s60, 7\ns_add_u32 s62, s62, 0x%x\ns_add_u32 s68, s67, 0x1000" % (WS_X1 + 64 * 65536))
        b2(FL2, True)
        a.label(lab)
        self.stamp()

        ang, cs, sn = T + 48, T + 64, T + 80
        a("""v_lshlrev_b32 v11, 6, v12
        v_add_u32 v11, s60, v11
        v_cvt_f32_u32 v11, v11
        v_mul_f32 v11, %s, v11
        v_lshlrev_b32 v5, 2, v4
        v_cvt_f32_u32 v5, v5
        v_mul_f32 v5, v5, v11
        v_lshlrev_b32 v6, 27, v1
        v_and_b32 v6, 0x80000000, v6
        v_or_b32 v6, %s, v6
        v_sub_f32 v14, v5, v6
        v_add_f32 v5, v5, v6""" % (fhex(1 / 2048), fhex(0.125)))
        for f in range(4):
            for x in range(4):
                k = 8 * f + x
                b_ = 14 if x & 1 else 5
                if k == 0:
                    a("v_mov_b32 v%d, v%d" % (ang, b_))
                else:
                    a("v_fmamk_f32 v%d, v11, %s, v%d" % (ang + 4 * f + x, fhex(float(k)), b_))
        self.sincos(ang, cs, sn, 16)
        for i in range(16):
            self.cvt(RA + i, v(cs + i), "-" + v(sn + i))
            self.cvt(RA + 16 + i, v(sn + i), v(cs + i))
        a("""s_lshl_b32 s62, s60, 15
        s_lshl_b32 s63, s3, 12
        s_add_u32 s62, s62, s63
        s_add_u32 s62, s62, 0x%x
        v_bfe_u32 v5, v1, 2, 1
        v_lshlrev_b32 v5, 1, v5
        v_xor_b32 v5, v5, v13
        v_lshlrev_b32 v5, 3, v5
        v_lshl_add_u32 v5, v12, 5, v5
        s_add_u32 s63, s63, %d
        v_add_u32 v5, s63, v5
        v_bfe_u32 v6, v1, 3, 1
        v_lshlrev_b32 v6, 4, v6
        v_xor_b32 v6, v6, v2
        v_add_u32 v6, s63, v6
        s_lshl_b32 s64, s3, 7
        s_add_u32 s64, s64, s60
        s_lshl_b32 s64, s64, 11
        s_mov_b32 s56, 0.5
        s_mov_b32 s57, 0.5
        s_cmp_eq_u32 s3, 0
        s_cselect_b32 s68, -2, -1
        s_mov_b32 s69, s68""" % (WS_X2, WB))
        RE, IM, ZP = T + 16, T + 32, T + 48

        def radix_inv():
            for f in range(4):
                for ri in range(2):
                    d = v(RE + 16 * ri, 16)
                    a("%s %s, %s, %s, %s" % (M32, d, v(RA + 16 * ri + 4 * f, 4), v(XF + 4 * f, 4), d if f else "0"))

        def average():
            a("s_mov_b32 exec_lo, 1\ns_mov_b32 exec_hi, 1")
            for j in range(0, 8, 2):
                a("v_pk_add_f32 %s, %s, %s" % (v(RE + j, 2), v(RE + j, 2), v(RE + 8 + j, 2)))
                a("v_pk_add_f32 %s, %s, %s neg_lo:[0,1] neg_hi:[0,1]" % (v(IM + j, 2), v(IM + j, 2), v(IM + 8 + j, 2)))
            for j in range(0, 8, 2):
                a("v_pk_mul_f32 %s, %s, s[56:57]" % (v(RE + j, 2), v(RE + j, 2)))
                a("v_pk_mul_f32 %s, %s, s[56:57]" % (v(IM + j, 2), v(IM + j, 2)))

        def sentinel(base):
            a("v_max3_u32 v%d, v%d, v%d, v%d" % (TM + 40, base, base + 1, base + 2))
            for i in range(3, 15, 2):
                a("v_max3_u32 v%d, v%d, v%d, v%d" % (TM + 40, TM + 40, base + i, base + i + 1))
            a("v_max_u32 v%d, v%d, v%d" % (TM + 40, TM + 40, base + 15))

        a("s_waitcnt vmcnt(0)")
        self.stamp()
        self.poll(lambda: [a("buffer_load_dwordx4 %s, v2, %s, s62 offen offset:%d sc1" % (v(XF + 4 * f, 4), s(self.rWS, 4), f * 1024)) for f in range(4)],
                  lambda: sentinel(XF), TM + 40, good="ns")
        self.stamp()
        radix_inv()
        lab = a.newlabel("NOAVG")
        a("s_nop 10")
        a("s_cmp_lg_u32 s3, 0\ns_cbranch_scc1 " + lab)
        average()
        a("s_mov_b64 exec, -1")
        a.label(lab)
        for r in range(16):
            self.cvt(ZP + r, v(RE + r), ("-" if r >= 8 else "") + v(IM + r))
        a("ds_write_b128 v9, %s\nds_write_b128 v9, %s offset:16384" % (v(ZP, 4), v(ZP + 4, 4)))
        a("s_mov_b64 exec, s[68:69]")
        a("ds_write_b128 v10, %s\nds_write_b128 v10, %s offset:16384" % (v(ZP + 8, 4), v(ZP + 12, 4)))
        a("s_mov_b64 exec, -1")
        lab = a.newlabel("NOX")
        a("s_cmp_lg_u32 s3, 7\ns_cbranch_scc1 " + lab)
        a("s_lshl_b32 s62, s60, 7\ns_add_u32 s62, s62, 0x%x\nv_lshlrev_b32 v11, 4, v4\nv_lshlrev_b32 v14, 13, v4" % WS_X2S)
        self.poll(lambda: [a("buffer_load_dwordx4 %s, v11, %s, s62 offen offset:%d sc1" % (v(XF + 4 * f, 4), s(self.rWS, 4), f * 32)) for f in range(4)],
                  lambda: sentinel(XF), TM + 40, good="ns")
        radix_inv()
        average()
        for r in range(8):
            self.cvt(ZP + 16 + r, v(RE + r), v(IM + r))
        a("ds_write_b128 v14, %s offset:%d\nds_write_b128 v14, %s offset:%d" % (v(ZP + 16, 4), ZB + 4096, v(ZP + 20, 4), ZB + 4096 + 16384))
        a("s_mov_b64 exec, -1")
        a.label(lab)
        a("s_waitcnt lgkmcnt(0)\ns_barrier")
        self.stamp()
        ZR, ZF = T + 48, T
        for i in range(8):
            a("ds_read_b64 %s, v8 offset:%d" % (v(ZR + 2 * i, 2), (i >> 2) * 256 + (i & 3) * 512))
        for tau in range(2):
            a("s_waitcnt lgkmcnt(%d)" % (4 - 4 * tau))
            for m in range(2):
                for j in range(2):
                    b_ = ZR + 8 * tau + 4 * j
                    a("v_pk_mov_b32 %s, %s, %s op_sel:[%d,%d]" % (v(ZF + 8 * m + 4 * tau + 2 * j, 2), v(b_, 2), v(b_ + 2, 2), m, m))
        for m in range(2):
            t = T1 + 16 * m
            for tau in range(2):
                a("%s %s, %s, %s, 0" % (M16, v(t + 4 * tau, 4), v(ZF + 8 * m + 4 * tau, 4), v(G16, 4)))
                a("%s %s, %s, %s, 0" % (M16, v(t + 8 + 4 * tau, 4), v(ZF + 8 * m + 4 * tau, 4), v(G16 + 4, 4)))
        O4 = T + 80
        for m in range(2):
            t = T1 + 16 * m
            twiddle(t, [TW0, TW3], T + 64, True)
            u = U + 8 * m
            for j in range(8):
                self.cvt(u + j, v(t + 2 * j), v(t + 2 * j + 1))
            stage_cs(m, u, u + 4, O4 + 16 * m, True)
        fl = self.opt.get("outflag", "")
        for m in range(2):
            for ri in range(2):
                q = 2 * m + ri
                for tau in range(2):
                    o = O4 + 16 * m + 8 * ri + 4 * tau
                    d = T + 4 * q + 2 * tau
                    self.cvt(d, v(o), v(o + 1))
                    self.cvt(d + 1, v(o + 2), v(o + 3))
                    a("ds_write_b64 v5, %s offset:%d" % (v(d, 2), q * 1024 + tau * 512))
            for ri in range(2):
                q = 2 * m + ri
                a("ds_read_b128 %s, v6 offset:%d" % (v(T1 + 4 * q, 4), q * 1024))
        for q in range(4):
            a("s_add_u32 s65, s64, 0x%x" % ((q >> 1) * 64 * 2048 + (q & 1) * 1024 * 2048))
            a("s_waitcnt lgkmcnt(%d)" % (7 if q == 0 else 6 if q == 1 else 3 - q))
            a("buffer_store_dwordx4 %s, v2, %s, s65 offen offset:1024 %s" % (v(T1 + 4 * q, 4), s(self.rOUT, 4), fl))
        self.end()


def _sym_add(line):
    ins = Ins(line.rsplit(",", 1)[0] + ", 0")
    ins.line = line
    return ins


def generate(stamps=False, opt=None):
    g = G(stamps, opt)
    a = g.build()
    nv = a.maxreg("v") + 1
    ns = a.maxreg("s") + 1
    txt = wrap(a.render(), 256, 512, LDS_SIZE, nv, ns)
    return a, txt


if __name__ == "__main__":
    stamps = "--stamps" in sys.argv
    a, txt = generate(stamps)
    out = [x for x in sys.argv[1:] if not x.startswith("--")]
    open(out[0] if out else "k.s", "w").write(txt)
    print("instructions:", sum(1 for k, _ in a.items if k == "i"), "vgpr", a.maxreg("v") + 1, "sgpr", a.maxreg("s") + 1)
```

```python
import numpy as np
from asmlib import Ins, f2u

U32 = np.uint32
M32 = 0xFFFFFFFF
LANE = np.arange(64, dtype=np.int64)
np.seterr(all="ignore")


def bf16_rne(f):
    u = f.astype(np.float32).view(U32)
    r = ((u.astype(np.uint64) + 0x7FFF + ((u >> 16) & 1)) >> 16).astype(U32) & 0xFFFF
    nan = np.isnan(f)
    r = np.where(nan, ((u >> 16) | 0x40) & 0xFFFF, r).astype(U32)
    return r


def unpack_bf16(regs):
    lo = (regs << 16).view(np.float32)
    hi = (regs & U32(0xFFFF0000)).view(np.float32)
    out = np.empty((regs.shape[0] * 2, 64), np.float32)
    out[0::2] = lo
    out[1::2] = hi
    return out.T


class Mem:
    def __init__(self):
        self.bufs = []
        self.next = 0x7F0000000000

    def alloc(self, name, arr):
        arr = np.ascontiguousarray(arr).view(np.uint8).reshape(-1)
        base = self.next
        self.next += (len(arr) + (4 << 20)) // (2 << 20) * (2 << 20) + (2 << 20)
        self.bufs.append((base, arr, name))
        return base

    def find(self, addr_lo, addr_hi):
        for base, arr, name in self.bufs:
            if base <= addr_lo and addr_hi <= base + len(arr):
                return base, arr, name
        raise RuntimeError("global access out of any allocation: %x..%x" % (addr_lo, addr_hi))

    def read(self, addrs, nbytes):
        base, arr, _ = self.find(int(addrs.min()), int(addrs.max()) + nbytes)
        idx = (addrs - base)[:, None] + np.arange(nbytes)[None, :]
        return arr[idx]

    def write(self, addrs, data):
        nbytes = data.shape[1]
        base, arr, name = self.find(int(addrs.min()), int(addrs.max()) + nbytes)
        assert not name.startswith("in"), "store into input " + name
        idx = (addrs - base)[:, None] + np.arange(nbytes)[None, :]
        arr[idx] = data


class Yield(Exception):
    pass


class Wave:
    def __init__(self, prog, wg, wid, kernarg, wgid):
        self.p = prog
        self.wg = wg
        self.v = np.random.randint(0, 2**32, size=(512, 64), dtype=np.uint64).astype(U32)
        self.s = [int(x) for x in np.random.randint(0, 2**32, size=128, dtype=np.uint64)]
        self.s[0] = kernarg & M32
        self.s[1] = kernarg >> 32
        self.s[2] = wgid
        self.s[126] = M32
        self.s[127] = M32
        self.v[0] = (LANE + wid * 64).astype(U32)
        self.scc = 0
        self.pc = 0
        self.done = False
        self.at_barrier = False
        self.vmq = []
        self.lgq = []
        self.pend = {}
        self.n_ins = 0
        self.wid = wid
        self._em = None
        self._emk = None

    def execmask(self):
        k = (self.s[126], self.s[127])
        if k != self._emk:
            e = self.s[126] | (self.s[127] << 32)
            self._em = ((e >> LANE.astype(object)) & 1).astype(bool) if e != (1 << 64) - 1 else None
            self._emk = k
        return self._em

    def commit(self, q, n):
        while len(q) > n:
            fn, regs, _ = q.pop(0)
            if fn:
                fn()
            for r in regs:
                self.pend[r] -= 1
                if self.pend[r] == 0:
                    del self.pend[r]

    def push(self, q, fn, regs, kind):
        for r in regs:
            self.pend[r] = self.pend.get(r, 0) + 1
        q.append((fn, regs, kind))


class WG:
    def __init__(self, lds_size):
        self.lds = np.random.randint(0, 256, size=lds_size, dtype=np.uint8)
        self.waves = []


class Prog:
    def __init__(self, items, mem, late=True, table=None):
        self.mem = mem
        self.late = late
        self.ins = []
        self.labels = {}
        for k, x in items:
            if k == "l":
                self.labels[x] = len(self.ins)
            elif k == "i":
                self.ins.append(x)
        self.fn = [self.compile(i) for i in self.ins]
        self.clock = 0
        code = np.zeros(1 << 16, np.uint8)
        if table is not None:
            code[0x8000:0x8000 + table.nbytes] = table.view(np.uint8)
        self.code_base = mem.alloc("in_code", code)

    def su(self, o):
        if o.kind == "s":
            lo = o.lo
            return lambda w: w.s[lo]
        if o.kind == "imm":
            val = o.val & M32
            return lambda w: val
        if o.kind == "fimm":
            val = f2u(o.val)
            return lambda w: val
        raise ValueError(o.txt)

    def su64(self, o):
        if o.kind == "s":
            lo = o.lo
            return lambda w: w.s[lo] | (w.s[lo + 1] << 32)
        val = o.val & ((1 << 64) - 1)
        return lambda w: val

    def vu(self, o, k=0):
        if o.kind == "v":
            lo = o.lo + k
            return lambda w: w.v[lo]
        if o.kind == "s":
            lo = o.lo + k
            return lambda w: np.full(64, w.s[lo], U32)
        g = self.su(o)
        arr = np.full(64, g(None), U32)
        return lambda w: arr

    def vf(self, o, k=0):
        g = self.vu(o, k)
        neg, ab = o.neg, o.abs
        if not neg and not ab:
            return lambda w: g(w).view(np.float32)

        def f(w):
            x = g(w).view(np.float32)
            if ab:
                x = np.abs(x)
            return -x if neg else x

        return f

    @staticmethod
    def setv(w, r, val):
        em = w.execmask()
        val = val.view(U32) if val.dtype == np.float32 else val.astype(U32)
        if em is None:
            w.v[r] = val
        else:
            w.v[r] = np.where(em, val, w.v[r])

    def compile(self, I):
        b, o, mods = I.base, I.ops, I.mods
        setv = self.setv
        mem = self.mem
        F = np.float32
        if b == "s_endpgm":
            def f(w):
                w.commit(w.vmq, 0)
                w.commit(w.lgq, 0)
                w.done = True
                raise Yield
            return f
        if b in ("s_nop", "s_setprio"):
            return lambda w: None
        if b == "s_sleep":
            def f(w):
                self.flush_stores(w)
                w.pc += 1
                raise Yield
            return f
        if b == "s_waitcnt":
            vm, lg = mods.get("vmcnt"), mods.get("lgkmcnt")
            def f(w):
                if vm is not None:
                    if vm > 0 and len(w.vmq) > vm:
                        kinds = {k == "store" for _, _, k in w.vmq}
                        assert len(kinds) == 1, "counted vmcnt with loads and stores mixed"
                    w.commit(w.vmq, vm)
                if lg is not None:
                    if lg > 0:
                        assert all(k != "smem" for _, _, k in w.lgq), "counted lgkmcnt with SMEM outstanding"
                    w.commit(w.lgq, lg)
            return f
        if b == "s_barrier":
            def f(w):
                assert all(k != "dsw" for _, _, k in w.lgq), "barrier with ds_write outstanding at %d" % w.pc
                w.at_barrier = True
                w.pc += 1
                raise Yield
            return f
        if b == "s_branch" or b.startswith("s_cbranch"):
            name = o[0].txt
            cond = {
                "s_branch": lambda w: True,
                "s_cbranch_scc0": lambda w: w.scc == 0,
                "s_cbranch_scc1": lambda w: w.scc == 1,
                "s_cbranch_vccz": lambda w: (w.s[106] | w.s[107]) == 0,
                "s_cbranch_vccnz": lambda w: (w.s[106] | w.s[107]) != 0,
                "s_cbranch_execz": lambda w: (w.s[126] | w.s[127]) == 0,
                "s_cbranch_execnz": lambda w: (w.s[126] | w.s[127]) != 0,
            }[b]
            def f(w):
                if cond(w):
                    t = self.labels[name]
                    back = t <= w.pc
                    w.pc = t - 1
                    if back and name.startswith("POLL"):
                        self.flush_stores(w)
                        w.pc += 1
                        raise Yield
            return f
        if b.startswith("s_load_dword"):
            n = {"s_load_dword": 1, "s_load_dwordx2": 2, "s_load_dwordx4": 4, "s_load_dwordx8": 8, "s_load_dwordx16": 16}[b]
            base, off, d = self.su64(o[1]), self.su(o[2]), o[0].lo
            regs = list(I.w)
            def f(w):
                data = mem.read(np.array([base(w) + off(w)], np.int64), 4 * n)[0].view(U32)
                def c():
                    for i in range(n):
                        w.s[d + i] = int(data[i])
                w.push(w.lgq, c, regs, "smem")
            return f
        if b in ("s_memrealtime", "s_memtime"):
            d = o[0].lo
            regs = list(I.w)
            def f(w):
                self.clock += 1
                t = self.clock
                def c():
                    w.s[d] = t
                    w.s[d + 1] = 0
                w.push(w.lgq, c, regs, "smem")
            return f
        if b == "s_getpc_b64":
            d = o[0].lo
            def f(w):
                w.s[d] = self.code_base & M32
                w.s[d + 1] = self.code_base >> 32
            return f
        if b.startswith("s_cmp_") or b.startswith("s_bitcmp"):
            if b.endswith("u64"):
                a, c = self.su64(o[0]), self.su64(o[1])
            else:
                a, c = self.su(o[0]), self.su(o[1])
            sg = (lambda x: x - (1 << 32) if x >> 31 else x) if b.endswith("i32") else (lambda x: x)
            op = {"eq": lambda x, y: x == y, "lg": lambda x, y: x != y, "lt": lambda x, y: x < y, "le": lambda x, y: x <= y,
                  "gt": lambda x, y: x > y, "ge": lambda x, y: x >= y}.get(b.split("_")[2])
            if b == "s_bitcmp1_b32":
                op = lambda x, y: (x >> y) & 1 == 1
            if b == "s_bitcmp0_b32":
                op = lambda x, y: (x >> y) & 1 == 0
            def f(w):
                w.scc = int(op(sg(a(w)), sg(c(w))))
            return f
        if b in ("s_mov_b32", "s_movk_i32"):
            a, d = self.su(o[1]), o[0].lo
            def f(w):
                w.s[d] = a(w)
            return f
        if b == "s_mov_b64":
            a, d = self.su64(o[1]), o[0].lo
            def f(w):
                x = a(w)
                w.s[d] = x & M32
                w.s[d + 1] = x >> 32
            return f
        if b in ("s_and_saveexec_b64",):
            a, d = self.su64(o[1]), o[0].lo
            def f(w):
                e = w.s[126] | (w.s[127] << 32)
                x = a(w) & e
                w.s[d], w.s[d + 1] = e & M32, e >> 32
                w.s[126], w.s[127] = x & M32, x >> 32
                w.scc = int(x != 0)
            return f
        if b in ("s_and_b64", "s_or_b64", "s_xor_b64", "s_andn2_b64", "s_not_b64"):
            a = self.su64(o[1])
            c = self.su64(o[2]) if len(o) > 2 else None
            d = o[0].lo
            M64 = (1 << 64) - 1
            op = {"s_and_b64": lambda x, y: x & y, "s_or_b64": lambda x, y: x | y, "s_xor_b64": lambda x, y: x ^ y,
                  "s_andn2_b64": lambda x, y: x & ~y & M64, "s_not_b64": lambda x, y: ~x & M64}[b]
            def f(w):
                x = op(a(w), c(w) if c else 0)
                w.s[d], w.s[d + 1] = x & M32, x >> 32
                w.scc = int(x != 0)
            return f
        if b == "s_cselect_b32":
            a, c, d = self.su(o[1]), self.su(o[2]), o[0].lo
            def f(w):
                w.s[d] = a(w) if w.scc else c(w)
            return f
        if b == "s_cselect_b64":
            a, c, d = self.su64(o[1]), self.su64(o[2]), o[0].lo
            def f(w):
                x = a(w) if w.scc else c(w)
                w.s[d], w.s[d + 1] = x & M32, x >> 32
            return f
        if b == "s_addk_i32":
            d, k = o[0].lo, o[1].val
            def f(w):
                w.s[d] = (w.s[d] + k) & M32
            return f
        if b.startswith("s_") and len(o) == 3:
            a, c, d = self.su(o[1]), self.su(o[2]), o[0].lo
            def mk(fn, setscc):
                def f(w):
                    x, sc = fn(a(w), c(w), w.scc)
                    w.s[d] = x & M32
                    if setscc:
                        w.scc = int(sc)
                return f
            nz = lambda x: (x & M32, (x & M32) != 0)
            T = {
                "s_add_u32": (lambda x, y, c_: (x + y, (x + y) >> 32), 1),
                "s_add_i32": (lambda x, y, c_: (x + y, 0), 1),
                "s_addc_u32": (lambda x, y, c_: (x + y + c_, (x + y + c_) >> 32), 1),
                "s_sub_u32": (lambda x, y, c_: (x - y, x < y), 1),
                "s_subb_u32": (lambda x, y, c_: (x - y - c_, x < y + c_), 1),
                "s_sub_i32": (lambda x, y, c_: (x - y, 0), 1),
                "s_mul_i32": (lambda x, y, c_: (x * y, 0), 0),
                "s_and_b32": (lambda x, y, c_: nz(x & y), 1),
                "s_or_b32": (lambda x, y, c_: nz(x | y), 1),
                "s_xor_b32": (lambda x, y, c_: nz(x ^ y), 1),
                "s_andn2_b32": (lambda x, y, c_: nz(x & ~y), 1),
                "s_lshl_b32": (lambda x, y, c_: nz(x << (y & 31)), 1),
                "s_lshr_b32": (lambda x, y, c_: nz(x >> (y & 31)), 1),
                "s_bfe_u32": (lambda x, y, c_: nz((x >> (y & 31)) & ((1 << ((y >> 16) & 127)) - 1)), 1),
                "s_lshl1_add_u32": (lambda x, y, c_: ((x << 1) + y, 0), 1),
                "s_lshl2_add_u32": (lambda x, y, c_: ((x << 2) + y, 0), 1),
                "s_lshl3_add_u32": (lambda x, y, c_: ((x << 3) + y, 0), 1),
                "s_lshl4_add_u32": (lambda x, y, c_: ((x << 4) + y, 0), 1),
            }
            return mk(*T[b])
        if b.startswith("v_mfma"):
            big = "32x32" in b
            d, a, bb = o[0].lo, o[1].lo, o[2].lo
            c = o[3].lo if o[3].kind == "v" else None
            if big:
                n, nr = 32, 16
                rows = (8 * (np.arange(16)[:, None] >> 2) + 4 * (LANE[None, :] >> 5) + (np.arange(16)[:, None] & 3))
                cols = np.broadcast_to(LANE[None, :] & 31, (16, 64))
            else:
                n, nr = 16, 4
                rows = 4 * (LANE[None, :] >> 4) + np.arange(4)[:, None]
                cols = np.broadcast_to(LANE[None, :] & 15, (4, 64))
            g = 64 // n
            def f(w):
                assert w.execmask() is None, "mfma with partial exec"
                A = unpack_bf16(w.v[a:a + 4]).reshape(g, n, 8).transpose(1, 0, 2).reshape(n, g * 8)
                B = unpack_bf16(w.v[bb:bb + 4]).reshape(g, n, 8).transpose(1, 0, 2).reshape(n, g * 8)
                D = (A @ B.T)[rows, cols]
                if c is not None:
                    D = D + w.v[c:c + nr].view(F)
                w.v[d:d + nr] = D.astype(F).view(U32)
            return f
        if b.startswith("v_cmp_"):
            ty = b.split("_")[3]
            if ty == "f32":
                a, c = self.vf(o[1]), self.vf(o[2])
            elif ty == "i32":
                a0, c0 = self.vu(o[1]), self.vu(o[2])
                a, c = (lambda w: a0(w).view(np.int32)), (lambda w: c0(w).view(np.int32))
            else:
                a, c = self.vu(o[1]), self.vu(o[2])
            op = {"eq": np.equal, "ne": np.not_equal, "lt": np.less, "le": np.less_equal, "gt": np.greater,
                  "ge": np.greater_equal}[b.split("_")[2]]
            d = o[0].lo
            def f(w):
                m = op(a(w), c(w))
                em = w.execmask()
                if em is not None:
                    m = m & em
                x = np.packbits(m, bitorder="little").view(U32)
                w.s[d], w.s[d + 1] = int(x[0]), int(x[1])
            return f
        if b == "v_readfirstlane_b32":
            a, d = self.vu(o[1]), o[0].lo
            def f(w):
                em = w.execmask()
                i = 0 if em is None or not em.any() else int(np.argmax(em))
                w.s[d] = int(a(w)[i])
            return f
        if b == "v_cndmask_b32":
            a, c, d = self.vu(o[1]), self.vu(o[2]), o[0].lo
            ml = o[3].lo if len(o) > 3 else 106
            def f(w):
                m = np.unpackbits(np.array([w.s[ml], w.s[ml + 1]], U32).view(np.uint8), bitorder="little").astype(bool)
                setv(w, d, np.where(m, c(w), a(w)))
            return f
        if b == "v_cvt_pk_bf16_f32":
            a, c, d = self.vf(o[1]), self.vf(o[2]), o[0].lo
            return lambda w: setv(w, d, bf16_rne(a(w)) | (bf16_rne(c(w)) << 16))
        if b == "v_pk_mov_b32":
            sel = mods.get("op_sel", [0, 0])
            a, c, d = self.vu(o[1], sel[0]), self.vu(o[2], sel[1]), o[0].lo
            def f(w):
                x, y = a(w).copy(), c(w).copy()
                setv(w, d, x)
                setv(w, d + 1, y)
            return f
        if b in ("v_pk_fma_f32", "v_pk_mul_f32", "v_pk_add_f32"):
            ns = 3 if b == "v_pk_fma_f32" else 2
            sl = mods.get("op_sel", [0] * ns)
            sh = mods.get("op_sel_hi", [1] * ns)
            nl = mods.get("neg_lo", [0] * ns)
            nh = mods.get("neg_hi", [0] * ns)
            def comp(i, k):
                return self.vf(o[1 + i], k if o[1 + i].kind in ("v", "s") else 0)
            lo = [comp(i, sl[i]) for i in range(ns)]
            hi = [comp(i, sh[i]) for i in range(ns)]
            d = o[0].lo
            def ev(w, g, ng):
                x = [(-g[i](w) if ng[i] else g[i](w)) for i in range(ns)]
                if ns == 3:
                    return (x[0].astype(np.float64) * x[1] + x[2]).astype(F)
                return x[0] * x[1] if b == "v_pk_mul_f32" else x[0] + x[1]
            def f(w):
                x, y = ev(w, lo, nl), ev(w, hi, nh)
                setv(w, d, x)
                setv(w, d + 1, y)
            return f
        if b in ("v_permlane16_swap_b32", "v_permlane32_swap_b32"):
            d, c = o[0].lo, o[1].lo
            h = 16 if "16" in b else 32
            def f(w):
                x, y = w.v[d].copy(), w.v[c].copy()
                for base in range(0, 64, 2 * h):
                    t = y[base:base + h].copy()
                    y[base:base + h] = x[base + h:base + 2 * h]
                    x[base + h:base + 2 * h] = t
                w.v[d], w.v[c] = x, y
            return f
        fl1 = {
            "v_exp_f32": lambda x: np.exp2(x), "v_rcp_f32": lambda x: F(1) / x,
            "v_sin_f32": lambda x: np.sin(2 * np.pi * x.astype(np.float64)).astype(F),
            "v_cos_f32": lambda x: np.cos(2 * np.pi * x.astype(np.float64)).astype(F),
            "v_fract_f32": lambda x: x - np.floor(x),
        }
        clamp = mods.get("clamp")
        cl = (lambda x: np.nan_to_num(np.clip(x, 0, 1), nan=0.0).astype(F)) if clamp else (lambda x: x)
        if b in fl1:
            a, d, fn = self.vf(o[1]), o[0].lo, fl1[b]
            if b in ("v_sin_f32", "v_cos_f32"):
                def f(w):
                    x = a(w)
                    em = w.execmask()
                    assert np.all(np.abs(x if em is None else x[em]) <= 256), "sin/cos range"
                    setv(w, d, cl(fn(x).astype(F)))
                return f
            return lambda w: setv(w, d, cl(fn(a(w)).astype(F)))
        if b == "v_cvt_f32_u32":
            a, d = self.vu(o[1]), o[0].lo
            return lambda w: setv(w, d, a(w).astype(F))
        if b == "v_cvt_f32_i32":
            a, d = self.vu(o[1]), o[0].lo
            return lambda w: setv(w, d, a(w).view(np.int32).astype(F))
        fl2 = {
            "v_add_f32": lambda x, y: x + y, "v_sub_f32": lambda x, y: x - y, "v_subrev_f32": lambda x, y: y - x,
            "v_mul_f32": lambda x, y: x * y, "v_max_f32": np.fmax, "v_min_f32": np.fmin,
        }
        if b in fl2:
            a, c, d, fn = self.vf(o[1]), self.vf(o[2]), o[0].lo, fl2[b]
            if I.dpp:
                k = mods["row_ror"]
                idx = (LANE & ~15) | ((LANE - k) & 15)
                return lambda w: setv(w, d, fn(a(w)[idx], c(w)))
            return lambda w: setv(w, d, cl(fn(a(w), c(w))))
        if b in ("v_fma_f32", "v_fmaak_f32", "v_fmamk_f32"):
            a, c, e, d = self.vf(o[1]), self.vf(o[2]), self.vf(o[3]), o[0].lo
            return lambda w: setv(w, d, (a(w).astype(np.float64) * c(w) + e(w)).astype(F))
        if b == "v_fmac_f32":
            a, c, d = self.vf(o[1]), self.vf(o[2]), o[0].lo
            return lambda w: setv(w, d, (a(w).astype(np.float64) * c(w) + w.v[d].view(F)).astype(F))
        if b == "v_mov_b32":
            a, d = self.vu(o[1]), o[0].lo
            return lambda w: setv(w, d, a(w).copy())
        i2 = {
            "v_add_u32": lambda x, y: x + y, "v_sub_u32": lambda x, y: x - y, "v_subrev_u32": lambda x, y: y - x,
            "v_and_b32": lambda x, y: x & y, "v_or_b32": lambda x, y: x | y, "v_xor_b32": lambda x, y: x ^ y,
            "v_lshlrev_b32": lambda x, y: y << (x & 31), "v_lshrrev_b32": lambda x, y: y >> (x & 31),
            "v_mul_u32_u24": lambda x, y: (x & 0xFFFFFF) * (y & 0xFFFFFF), "v_mul_lo_u32": lambda x, y: x * y,
            "v_min_u32": np.minimum, "v_max_u32": np.maximum,
        }
        if b in i2:
            a, c, d, fn = self.vu(o[1]), self.vu(o[2]), o[0].lo, i2[b]
            return lambda w: setv(w, d, fn(a(w), c(w)))
        i3 = {
            "v_mad_u32_u24": lambda x, y, z: (x & 0xFFFFFF) * (y & 0xFFFFFF) + z,
            "v_lshl_add_u32": lambda x, y, z: (x << (y & 31)) + z, "v_add_lshl_u32": lambda x, y, z: (x + y) << (z & 31),
            "v_lshl_or_b32": lambda x, y, z: (x << (y & 31)) | z, "v_and_or_b32": lambda x, y, z: (x & y) | z,
            "v_or3_b32": lambda x, y, z: x | y | z, "v_add3_u32": lambda x, y, z: x + y + z,
            "v_bfe_u32": lambda x, y, z: (x >> (y & 31)) & ((U32(1) << (z & 31)) - U32(1)),
            "v_xad_u32": lambda x, y, z: (x ^ y) + z,
            "v_max3_u32": lambda x, y, z: np.maximum(np.maximum(x, y), z),
            "v_bfi_b32": lambda x, y, z: (x & y) | (~x & z),
        }
        if b in i3:
            a, c, e, d, fn = self.vu(o[1]), self.vu(o[2]), self.vu(o[3]), o[0].lo, i3[b]
            return lambda w: setv(w, d, fn(a(w), c(w), e(w)))
        if b == "v_bitop3_b32":
            a, c, e, d, tt = self.vu(o[1]), self.vu(o[2]), self.vu(o[3]), o[0].lo, mods["bitop3"]
            def f(w):
                x, y, z = a(w), c(w), e(w)
                r = np.zeros(64, U32)
                for i in range(8):
                    if (tt >> i) & 1:
                        r |= (x if i & 4 else ~x) & (y if i & 2 else ~y) & (z if i & 1 else ~z)
                setv(w, d, r)
            return f
        if b.startswith("ds_"):
            return self.compile_ds(I)
        if b.startswith("buffer_") or b.startswith("global_"):
            return self.compile_vmem(I)
        raise ValueError("emu: unsupported " + I.line)

    def flush_stores(self, w):
        for i, (fn, regs, kind) in enumerate(w.vmq):
            if kind == "store" and fn:
                fn()
                w.vmq[i] = (None, regs, kind)

    def compile_ds(self, I):
        b, o, mods = I.base, I.ops, I.mods
        regs = list(I.w)

        def rd(w, addr, n):
            lds = w.wg.lds
            assert addr.min() >= 0 and addr.max() + n <= len(lds), "LDS read OOB %d" % addr.max()
            assert np.all(addr % min(n, 16) == 0), "LDS read misaligned: " + I.line
            return lds[addr[:, None] + np.arange(n)[None, :]]

        if b.startswith("ds_read"):
            d, a = o[0].lo, o[1].lo
            if b == "ds_read_b64_tr_b16":
                off = mods.get("offset", 0)
                def f(w):
                    assert w.execmask() is None
                    x = rd(w, w.v[a].astype(np.int64) + off, 8).copy().view(np.uint16).reshape(4, 4, 4, 4)
                    y = np.ascontiguousarray(x.transpose(0, 2, 3, 1)).reshape(64, 4)
                    y = y.view(U32)
                    def c():
                        w.v[d] = y[:, 0]
                        w.v[d + 1] = y[:, 1]
                    w.push(w.lgq, c, regs, "dsr")
                return f
            if b in ("ds_read_u16_d16_hi", "ds_read_u16"):
                off = mods.get("offset", 0)
                hi = b.endswith("hi")
                def f(w):
                    assert w.execmask() is None
                    x = rd(w, w.v[a].astype(np.int64) + off, 2).copy().view(np.uint16)[:, 0].astype(U32)
                    def c():
                        w.v[d] = ((w.v[d] & 0xFFFF) | (x << 16)) if hi else x
                    w.push(w.lgq, c, regs, "dsr")
                return f
            if b.startswith("ds_read2"):
                es = 8 if b.endswith("b64") else 4
                st = es * (64 if "st64" in b else 1)
                offs = [mods.get("offset0", 0) * st, mods.get("offset1", 0) * st]
            else:
                es = {"ds_read_b32": 4, "ds_read_b64": 8, "ds_read_b128": 16}[b]
                offs = [mods.get("offset", 0)]
            def f(w):
                em = w.execmask()
                ad = w.v[a].astype(np.int64)
                if em is not None:
                    ad = np.where(em, ad, 0)
                xs = [rd(w, ad + of, es).copy().view(U32) for of in offs]
                def c():
                    k = d
                    for x in xs:
                        for j in range(x.shape[1]):
                            w.v[k] = x[:, j] if em is None else np.where(em, x[:, j], w.v[k])
                            k += 1
                w.push(w.lgq, c, regs, "dsr")
            return f
        if b.startswith("ds_write"):
            a = o[0].lo
            if b.startswith("ds_write2"):
                es = 8 if b.endswith("b64") else 4
                st = es * (64 if "st64" in b else 1)
                parts = [(o[1].lo, mods.get("offset0", 0) * st), (o[2].lo, mods.get("offset1", 0) * st)]
            else:
                es = {"ds_write_b32": 4, "ds_write_b64": 8, "ds_write_b128": 16}[b]
                parts = [(o[1].lo, mods.get("offset", 0))]
            def f(w):
                em = w.execmask()
                lds = w.wg.lds
                for r, of in parts:
                    ad = w.v[a].astype(np.int64) + of
                    data = np.ascontiguousarray(w.v[r:r + es // 4].T).view(np.uint8)
                    if em is not None:
                        ad, data = ad[em], data[em]
                    if len(ad) == 0:
                        continue
                    assert ad.max() + es <= len(lds), "LDS write OOB"
                    assert np.all(ad % es == 0), "LDS write misaligned: " + I.line
                    lds[ad[:, None] + np.arange(es)[None, :]] = data
                w.push(w.lgq, None, [], "dsw")
            return f
        raise ValueError(I.line)

    def compile_vmem(self, I):
        b, o, mods = I.base, I.ops, I.mods
        mem = self.mem
        isbuf = b.startswith("buffer_")
        load = "load" in b
        lds = getattr(I, "ldsdma", False)
        nb = 16 if b.endswith("x4") else 8 if b.endswith("x2") else 2 if "short" in b else 4
        off = mods.get("offset", 0)
        regs = list(I.w)
        if isbuf:
            k = 0 if lds else 1
            va, srd, so = o[k], o[k + 1].lo, self.su(o[k + 2])
            data = None if lds else o[0].lo
            assert mods.get("offen") or va.kind == "off"
            def addr(w):
                base = w.s[srd] | ((w.s[srd + 1] & 0xFFFF) << 32)
                assert w.s[srd + 3] == 0x20000 and (w.s[srd + 1] >> 16) == 0, "bad SRD"
                vo = w.v[va.lo].astype(np.int64) if va.kind == "v" else np.zeros(64, np.int64)
                o_ = vo + so(w) + off
                return base + o_, (o_ + nb) <= w.s[srd + 2], o_ < w.s[srd + 2]
        else:
            if load:
                k = 0 if lds else 1
                va, sa = o[k], o[k + 1]
                data = None if lds else o[0].lo
            else:
                va, sa, data = o[0], o[2], o[1].lo
            def addr(w):
                if sa.kind == "off":
                    x = w.v[va.lo].astype(np.int64) | (w.v[va.lo + 1].astype(np.int64) << 32)
                else:
                    x = w.v[va.lo].astype(np.int64) + (w.s[sa.lo] | (w.s[sa.lo + 1] << 32))
                t = np.ones(64, bool)
                return x + off, t, t

        def f(w):
            em = w.execmask()
            act = np.ones(64, bool) if em is None else em
            assert act.any(), "memory instruction with EXEC=0: " + I.line
            ad, inr, part = addr(w)
            assert np.all(ad[act] % min(nb, 4) == 0), "misaligned global access: " + I.line
            if load:
                x = np.zeros((64, nb), np.uint8)
                m = act & inr
                if m.any():
                    x[m] = mem.read(ad[m], nb)
                pm = act & part & ~inr
                for i in np.nonzero(pm)[0]:
                    base = w.s[srd] | ((w.s[srd + 1] & 0xFFFF) << 32)
                    for j in range(0, nb, 4):
                        if ad[i] + j + 4 - base <= w.s[srd + 2]:
                            x[i, j:j + 4] = mem.read(np.array([ad[i] + j]), 4)[0]
                if lds:
                    la = (w.s[124] & 0x3FFFC) + off + LANE * nb
                    assert la[act].max() + nb <= len(w.wg.lds), "LDS-DMA OOB"
                    def c():
                        w.wg.lds[la[act][:, None] + np.arange(nb)[None, :]] = x[act]
                    if self.late:
                        w.push(w.vmq, c, [], "dma")
                    else:
                        c()
                        w.push(w.vmq, None, [], "dma")
                elif nb == 2:
                    y = x.view(np.uint16)[:, 0].astype(U32)
                    hi = b.endswith("hi")
                    def c():
                        val = (y << 16) if hi else y
                        w.v[data] = np.where(act, val, w.v[data])
                    w.push(w.vmq, c, regs, "load")
                else:
                    y = x.view(U32)
                    def c():
                        for j in range(nb // 4):
                            w.v[data + j] = np.where(act, y[:, j], w.v[data + j])
                    w.push(w.vmq, c, regs, "load")
            else:
                assert np.all(inr[act]), "store out of SRD range: " + I.line
                x = np.ascontiguousarray(w.v[data:data + max(nb // 4, 1)].T).view(np.uint8)[:, :nb]
                a2, x2 = ad[act].copy(), x[act].copy()
                c = lambda: mem.write(a2, x2)
                if self.late:
                    w.push(w.vmq, c, [], "store")
                else:
                    c()
                    w.push(w.vmq, None, [], "store")
        return f

    def run_wave(self, w):
        ins, fn = self.ins, self.fn
        try:
            while True:
                I = ins[w.pc]
                if w.pend and I.base != "s_waitcnt":
                    bad = (I.r | I.w) & w.pend.keys()
                    if bad:
                        raise RuntimeError("use of register with outstanding load %s at: %s" % (sorted(bad)[:4], I.line))
                fn[w.pc](w)
                w.pc += 1
                w.n_ins += 1
        except Yield:
            pass
        except Exception:
            print("EMU ERROR wg", w.s[2] if False else "", "wave", w.wid, "pc", w.pc, ins[w.pc].line)
            raise


def run(items, mem, kernarg, wgids, nwaves, lds_size, late=True, reverse=False, max_rounds=300, table=None):
    prog = Prog(items, mem, late, table)
    wgs = []
    for g in wgids:
        wg = WG(lds_size)
        wg.waves = [Wave(prog, wg, i, kernarg, g) for i in range(nwaves)]
        wg.id = g
        wgs.append(wg)
    live = list(wgs)
    rounds = 0
    while live:
        rounds += 1
        if rounds >= max_rounds:
            from collections import Counter
            inv = {v_: k for k, v_ in prog.labels.items()}
            c = Counter((w.wid, w.pc, w.at_barrier) for wg in live for w in wg.waves if not w.done)
            for k, n in sorted(c.items()):
                print(k, n, prog.ins[k[1]].line, [prog.ins[k[1] + d].line for d in (-12, -8)])
            raise RuntimeError("emu: deadlock?")
        for wg in (reversed(live) if reverse else live):
            while True:
                ws = [w for w in wg.waves if not w.done]
                if not ws:
                    break
                for w in (reversed(ws) if reverse else ws):
                    if not w.at_barrier:
                        prog.run_wave(w)
                ws = [w for w in wg.waves if not w.done]
                if ws and all(w.at_barrier for w in ws):
                    for w in ws:
                        w.at_barrier = False
                    continue
                break
        live = [wg for wg in live if any(not w.done for w in wg.waves)]
    return wgs
```

```python
import sys
from asmlib import *
from common import wrap

WS_EA = 0x0
WS_EB = 0x80
WS_FLAG = 0x1000
WS_RED = 0x10000
RED_STRIDE = 0x9000
WS_X2S = 0x60000
WS_FB = 0x68000
WS_PART = 0x80000
PLINE = 2176
WS_H1 = 0x1000
WS_H2 = 0x190000
WS_HX = 0x1b0000
WS_PQ = 0x201000
WS_X2 = 0x402000
WS_X1 = 0x603000
WS_STAMP = 0x1000000
WS_SIZE = 0x10000000
LDS_SIZE = 160 * 1024
TAGC_LO, TAGC_HI = 0x1E3779B1, 0x05EBCA6B
POLL_LIMIT = 1 << 18


class G:
    def __init__(self, stamps=False, opt=None):
        self.a = Asm()
        self.stamps = stamps
        self.opt = opt or {}
        self.nst = 0

    sW, sXCD, sI = 3, 4, 5
    sTL, sTH = 6, 7
    sE = 8
    sM16 = 10
    sCNT = 12
    pXA, pWQ, pWO, pXB, pWR, pWI, pOUT, pDBG, pWS = 16, 18, 20, 22, 24, 26, 28, 30, 32
    rWS, rOUT, rA, rB, rC = 36, 40, 44, 48, 52
    sT = 56
    sST = 72
    vL = 1

    def stamp(self):
        if not self.stamps:
            return
        k = self.nst
        assert k < 15
        self.a("%s %s\ns_waitcnt lgkmcnt(0)" % ("s_memtime" if self.opt.get("cyc") else "s_memrealtime", s(self.sST + 2 * k, 2)))
        self.nst += 1

    def end(self, skip_loader=False):
        a = self.a
        if self.stamps:
            self.stamp()
            if self.opt.get("fine") and skip_loader:
                lab = a.newlabel("NODUMP")
                a("s_cmp_ge_u32 s3, 4\ns_cbranch_scc1 " + lab)
                self.dump_stamps()
                a.label(lab)
            else:
                self.dump_stamps()
        a("s_endpgm")

    def dump_stamps(self):
        a = self.a
        a("s_mov_b64 exec, 1")
        a("s_lshl3_add_u32 s56, s5, s4\ns_lshl_b32 s56, s56, 3\ns_add_u32 s56, s56, s%d\ns_lshl_b32 s56, s56, 6\ns_add_u32 s56, s56, 0x%x" % (self.sW, WS_STAMP))
        a("v_mov_b32 v2, 0")
        for k in range(self.nst):
            a("v_mov_b32 v3, s%d\nbuffer_store_dword v3, v2, %s, s56 offen offset:%d" % (self.sST + 2 * k, s(self.rWS, 4), 4 * k))
        a("v_mov_b32 v3, %d\nbuffer_store_dword v3, v2, %s, s56 offen offset:60" % (self.nst, s(self.rWS, 4)))
        a("s_mov_b64 exec, -1")

    def srd(self, r, p, size, add=None):
        a = self.a
        if add is None:
            a("s_mov_b32 s%d, s%d\ns_mov_b32 s%d, s%d" % (r, p, r + 1, p + 1))
        else:
            a("s_add_u32 s%d, s%d, %s\ns_addc_u32 s%d, s%d, 0" % (r, p, add, r + 1, p + 1))
        a("s_mov_b32 s%d, 0x%x\ns_mov_b32 s%d, 0x20000" % (r + 2, size, r + 3))

    def tags(self):
        self.a("""s_add_u32 s8, s8, 0x%x
        s_addc_u32 s9, s9, 0x%x
        s_and_b32 s6, s8, 0xbfffbfff
        s_and_b32 s7, s9, 0xbfffbfff
        s_bitcmp1_b32 s8, 0
        s_cselect_b32 s30, 0x10001, 0
        s_xor_b32 s31, s30, 0x10000
        s_xor_b32 s0, s30, 0x10001
        s_xor_b32 s1, s30, 1""" % (TAGC_LO, TAGC_HI))

    LT = [30, 31, 0, 1]

    def mark(self, base, vmask):
        return ["v_and_or_b32 v%d, v%d, v%d, s%d" % (base + e, base + e, vmask, self.LT[e]) for e in range(4)]

    def markcheck(self, base, n, vacc):
        a = self.a
        a("v_xor_b32 v%d, s%d, v%d" % (vacc, self.LT[0], base))
        for i in range(1, n):
            a("v_bitop3_b32 v%d, v%d, v%d, s%d bitop3:0xf6" % (vacc, vacc, base + i, self.LT[i & 3]))
        a("v_and_b32 v%d, 0x10001, v%d" % (vacc, vacc))

    def poll(self, issue, check, vacc, good=0, first_issued=False, between=None):
        a = self.a
        top, done = a.newlabel("POLL"), a.newlabel("DONE")
        chk = a.newlabel("CHK")
        a("s_mov_b32 s%d, 0x%x" % (self.sCNT, POLL_LIMIT))
        if first_issued:
            a("s_branch " + chk)
        a.label(top)
        issue()
        if first_issued:
            a.label(chk)
        a("s_waitcnt vmcnt(0)")
        check()
        if good == 0:
            a("v_cmp_ne_u32 vcc, 0, v%d" % vacc)
        else:
            a("v_cmp_eq_u32 vcc, -1, v%d" % vacc)
        a("s_cbranch_vccz " + done)
        a("s_sleep %d" % self.opt.get("sl", 1))
        a("s_sub_u32 s%d, s%d, 1" % (self.sCNT, self.sCNT))
        a("s_cbranch_scc0 " + top)
        a.label(done)

    def diag_delay(self, name):
        n = self.opt.get(name, 0)
        if n:
            self.a("s_sleep %d" % n)

    def hintpoll(self, vaddr, ssoff, vd, vacc):
        a = self.a
        self.poll(lambda: a("buffer_load_dwordx2 %s, v%d, %s, s%d offen sc1" % (v(vd, 2), vaddr, s(self.rWS, 4), ssoff)),
                  lambda: a("v_xor_b32 v%d, s6, v%d\nv_bitop3_b32 v%d, v%d, v%d, s7 bitop3:0xf6" % (vacc, vd, vacc, vacc, vd + 1)), vacc)

    def tagcheck(self, pieces, vacc):
        a = self.a
        first = True
        for p in pieces:
            if first:
                a("v_xor_b32 v%d, s%d, v%d" % (vacc, self.sTL, p + 1))
                first = False
            else:
                a("v_bitop3_b32 v%d, v%d, v%d, s%d bitop3:0xf6" % (vacc, vacc, p + 1, self.sTL))
            a("v_bitop3_b32 v%d, v%d, v%d, s%d bitop3:0xf6" % (vacc, vacc, p + 3, self.sTH))

    def touch_pages(self, vt, vd):
        a = self.a
        a("""v_and_b32 v{t}, 3, v1
        v_mul_u32_u24 v{t}, 0x201000, v{t}
        v_add_u32 v{t}, 0x200000, v{t}
        v_and_b32 v{d}, 3, v1
        v_cmp_eq_u32 vcc, 3, v{d}
        v_mov_b32 v{d}, 0x810000
        v_cndmask_b32 v{t}, v{t}, v{d}, vcc
        buffer_load_dword v{d}, v{t}, {ws}, 0 offen
        v_and_b32 v{t}, 3, v1
        v_lshlrev_b32 v{t}, 20, v{t}
        buffer_load_dword v{d2}, v{t}, {out}, 0 offen""".format(t=vt, d=vd, d2=vd + 1, ws=s(self.rWS, 4), out=s(self.rOUT, 4)))

    def prefetch_code(self, start, stop, vtmp):
        a = self.a
        lab = a.newlabel("PC")
        a("s_getpc_b64 s[56:57]")
        a.label(lab)
        a.items.append(("i", _sym_add("s_sub_u32 s56, s56, %s-%s" % (lab, start))))
        a("s_subb_u32 s57, s57, 0")
        a.items.append(("i", _sym_add("s_mov_b32 s58, %s-%s-4" % (stop, start))))
        a("v_lshlrev_b32 v%d, 7, v%d" % (vtmp, self.vL))
        a("v_min_u32 v%d, s58, v%d" % (vtmp, vtmp))
        a("global_load_dword v0, v%d, s[56:57]" % vtmp)

    def build(self):
        a = self.a
        a("s_cmp_ge_u32 s2, 256\ns_cbranch_scc1 EXIT")
        a("s_load_dwordx16 s[16:31], s[0:1], 0\ns_load_dwordx2 s[32:33], s[0:1], 64")
        if self.stamps:
            a("%s %s" % ("s_memtime" if self.opt.get("cyc") else "s_memrealtime", s(self.sST, 2)))
            self.nst = 1
        a("""v_lshrrev_b32 v2, 6, v0
        v_and_b32 v1, 63, v0
        s_and_b32 s4, s2, 7
        v_readfirstlane_b32 s3, v2
        s_lshr_b32 s5, s2, 3
        s_add_u32 s5, s5, %d
        s_and_b32 s5, s5, 31
        s_mov_b32 s10, 0xffff0000
        s_mov_b32 s11, 0xffff0000
        s_cmp_ge_u32 s5, 24
        s_cbranch_scc1 ROLE_B
        NOA_HOOK
        s_cmp_ge_u32 s3, 4
        s_cbranch_scc1 LOADER
        s_branch COMPUTE""".replace("NOA_HOOK", "s_branch NOA" if self.opt.get("noa") else "") % self.opt.get("rot", 24))
        if self.opt.get("noa"):
            a.label("NOA")
            a("s_waitcnt lgkmcnt(0)")
            self.srd(self.rWS, self.pWS, WS_SIZE)
            n0 = self.nst
            self.end()
            self.nst = n0
        a.label("EXIT")
        a("s_endpgm")
        n0 = self.nst
        self.loader()
        self.nst = n0
        self.compute()
        self.nst = n0
        self.role_b()
        a.label("CODE_END")
        bad = a.check_branches()
        assert not bad, bad
        return a

    def gemm_params(self, order=False):
        a = self.a
        a("""s_lshr_b32 s60, s4, 1
        s_and_b32 s63, s5, 3
        s_lshl2_add_u32 s60, s60, s63
        s_and_b32 s64, s4, 1
        s_bfe_u32 s65, s5, 0x20002
        s_lshl2_add_u32 s61, s64, s65
        s_lshl1_add_u32 s66, s64, s65
        s_cmp_ge_u32 s5, 16
        s_cselect_b32 s61, s66, s61""")
        if not order:
            return
        ORD = {
            "s4": [[(L + j) & 3 for j in range(4)] + [4 + ((L + j) & 3) for j in range(4)] for L in range(4)],
            "s4r": [[4 + ((L + j) & 3) for j in range(4)] + [(L + j) & 3 for j in range(4)] for L in range(4)],
            "s8": [[(2 * L + j) & 7 for j in range(8)] for L in range(4)],
            "s8o": [[(2 * L + 1 + j) & 7 for j in range(8)] for L in range(4)],
            "s26": [[L & 1, 1 - (L & 1)] + [2 + ((L + j) & 3) for j in range(4)] + [6 + (L & 1), 7 - (L & 1)] for L in range(4)],
            "s26q": [[6 + (L >> 1), 7 - (L >> 1)] + [2 + ((L + j) & 3) for j in range(4)] + [0, 1] for L in range(4)],
            "s143": [[0] + [1 + ((L + j) & 3) for j in range(4)] + [5 + ((L + j) % 3) for j in range(3)] for L in range(4)],
            "s1": [list(range(8))] * 4,
            "s1r": [list(range(7, -1, -1))] * 4,
        }
        pk = lambda o: sum(x << (4 * j) for j, x in enumerate(o))
        K = [pk(o) for o in ORD[self.opt.get("ok", "s4")]]
        Q = [pk(o) for o in ORD[self.opt.get("oq", "s4")]]
        a("""s_cselect_b32 s66, s65, 0
        s_add_u32 s62, s63, s65
        s_add_u32 s62, s62, s66
        s_cmp_ge_u32 s5, 16""")
        for j, r in enumerate((70, 71, 66, 67)):
            a("s_mov_b32 s%d, 0x%x\ns_cselect_b32 s%d, 0x%x, s%d" % (r, K[j], r, Q[j], r))
        a("""s_bitcmp1_b32 s62, 0
        s_cselect_b32 s70, s71, s70
        s_cselect_b32 s66, s67, s66
        s_bitcmp1_b32 s62, 1
        s_cselect_b32 s70, s66, s70""")

    def loader(self):
        a = self.a
        a.label("LOADER")
        self.gemm_params(True)
        vX, vW = 4, 8
        a("""s_sub_u32 s58, s3, 4
        s_lshl_b32 s63, s61, 7
        s_add_u32 s63, s63, 1024
        s_lshl_b32 s64, s61, 8
        s_cmp_ge_u32 s5, 16
        s_cselect_b32 s63, s64, s63
        s_movk_i32 s64, 128
        s_cselect_b32 s64, s64, 1024""")
        a("""v_lshrrev_b32 v2, 3, v1
        v_lshrrev_b32 v3, 4, v1
        v_and_b32 v12, 7, v1
        v_xor_b32 v12, v12, v3
        v_lshlrev_b32 v12, 4, v12
        v_lshl_add_u32 v12, v2, 10, v12
        s_lshl_b32 s65, s58, 15
        v_add_u32 v4, s65, v12
        v_xor_b32 v5, 64, v4
        v_add_u32 v5, 0x1c00, v5
        v_add_u32 v6, 0x3800, v4
        v_add_u32 v7, 0x3800, v5""")
        a("""v_bfe_u32 v12, v1, 2, 2
        v_xor_b32 v12, v12, v3
        v_lshrrev_b32 v13, 1, v12
        v_mul_u32_u24 v13, s64, v13
        v_and_b32 v14, 1, v12
        v_lshl_add_u32 v13, v14, 6, v13
        v_and_b32 v14, 3, v1
        v_lshl_add_u32 v13, v14, 4, v13
        v_mul_u32_u24 v15, 0xc00, v3
        s_mul_i32 s65, s58, 0xc000
        s_add_u32 s65, s65, s63
        v_add3_u32 v8, v13, v15, s65
        v_add_u32 v9, 0x2c00, v8
        v_add_u32 v10, 0x5800, v8
        v_add_u32 v11, 0x8400, v8
        s_lshl_b32 s59, s58, 12
        s_lshl_b32 s63, s60, 17
        s_waitcnt lgkmcnt(0)""")
        self.srd(self.rA, self.pXA, 0x20000, add="s63")
        self.srd(self.rB, self.pWQ, 512 * 3072)

        def issue(c):
            slot = (c & 3) * 32768
            a("s_bfe_u32 s62, s70, 0x%x" % (0x30000 + 4 * c))
            a("s_add_u32 m0, s59, %d" % slot)
            a("s_lshl_b32 s63, s62, 7")
            for j in range(4):
                a("buffer_load_dwordx4 v%d, %s, s63 offen offset:%d lds" % (vX + j, s(self.rA, 4), j * 1024))
            a("s_add_u32 m0, s59, %d" % (slot + 16384))
            a("s_mul_i32 s64, s62, 0x30000")
            for j in range(4):
                a("buffer_load_dwordx4 v%d, %s, s64 offen offset:%d lds" % (vW + j, s(self.rB, 4), j * 1024))

        WSLOT = [4, 0, 1, 2]

        def issue_wo(n):
            slot = WSLOT[n] * 32768
            a("s_lshl_b32 s63, s68, 17")
            a("s_add_u32 m0, s69, %d" % slot)
            a("s_add_u32 s68, s68, 1")
            for j in range(4):
                a("buffer_load_dwordx4 v%d, %s, s63 offen offset:%d lds" % (16 + j, s(self.rC, 4), j * 1024))
            a("s_add_u32 m0, s69, %d" % (slot + 4096))
            a("s_add_u32 s63, s63, 0x4000")
            for j in range(4):
                a("buffer_load_dwordx4 v%d, %s, s63 offen offset:%d lds" % (16 + j, s(self.rC, 4), j * 1024))
            a("s_and_b32 s68, s68, 3")

        def read_wo(n):
            ad, off = {4: (0, 0), 0: (14, 0), 1: (14, 32768), 2: (15, 0)}[WSLOT[n]]
            for h in range(8):
                r = 128 + 32 * n + 4 * h
                a("ds_read_b64_tr_b16 %s, v%d offset:%d" % (v(r, 2), ad, off + h * 4096))
                a("ds_read_b64_tr_b16 %s, v%d offset:%d" % (v(r + 2, 2), ad, off + h * 4096 + 2048))

        self.read_wo = read_wo
        fine = self.opt.get("fine")
        w0 = self.opt.get("wo0", 8)
        groups = []

        def iss(c):
            issue(c)
            groups.append(c)
            if c == w0:
                issue_wo(0)
                groups.append("w")

        def waitc(c):
            a("s_waitcnt vmcnt(%d)" % (8 * (len(groups) - 1 - groups.index(c))))

        if fine:
            self.stamp()
        issue(0)
        groups.append(0)
        a("s_load_dwordx2 s[8:9], s[32:33], %d" % WS_EA)
        self.srd(self.rC, self.pWO, 512 * 1024)
        a("s_cmp_ge_u32 s5, 16\ns_cselect_b32 s54, 0, s54")
        a("""s_and_b32 s68, s5, 3
        s_lshl_b32 s69, s58, 13
        v_lshlrev_b32 v16, 6, v12
        v_lshl_add_u32 v16, v14, 4, v16
        v_lshl_add_u32 v16, v3, 10, v16
        s_lshl_b32 s65, s58, 15
        s_lshr_b32 s66, s5, 2
        s_lshl_b32 s66, s66, 8
        s_add_u32 s65, s65, s66
        v_add_u32 v16, s65, v16
        v_add_u32 v17, 0xc00, v16
        v_add_u32 v18, 0x1800, v16
        v_add_u32 v19, 0x2400, v16
        v_bfe_u32 v14, v1, 2, 2
        v_lshrrev_b32 v15, 5, v1
        v_lshl_add_u32 v15, v15, 2, v14
        v_xor_b32 v14, s58, v14
        v_lshlrev_b32 v14, 6, v14
        v_lshl_add_u32 v14, v15, 8, v14
        v_and_b32 v15, 1, v1
        v_lshl_add_u32 v14, v15, 5, v14
        v_bfe_u32 v15, v1, 4, 1
        v_lshl_add_u32 v14, v15, 4, v14
        v_bfe_u32 v15, v1, 1, 1
        v_lshl_add_u32 v14, v15, 3, v14
        v_add_u32 v15, 0x10000, v14
        v_add_u32 v0, 0x20000, v14""")
        if w0 == 0:
            issue_wo(0)
            groups.append("w")
        else:
            iss(1)
        if fine:
            self.stamp()
        self.srd(self.rWS, self.pWS, WS_SIZE)
        self.srd(self.rOUT, self.pOUT, 2048 * 2048)
        a("s_waitcnt lgkmcnt(0)")
        self.tags()
        nxt = 1 if w0 == 0 else 2
        for c in range(0, 6):
            waitc(c)
            if fine and c:
                self.stamp()
            a("s_barrier")
            if c == 0 or (fine and c in (2, 4)):
                self.stamp()
            while nxt <= c + 2:
                iss(nxt)
                nxt += 1
        self.qwait = [8 * (len(groups) - 1 - groups.index(6))]
        a("s_cmp_ge_u32 s5, 16\ns_cbranch_scc1 QLOADER")
        n0 = self.nst
        for c in (6, 7):
            waitc(c)
            if fine:
                self.stamp()
            a("s_barrier")
            if w0 == c + 2:
                issue_wo(0)
                groups.append("w")
        self.stamp()
        if fine:
            self.dump_stamps()
            self.nst = 3
        if self.opt.get("h1", 0) == -1:
            lab = a.newlabel("NOH")
            a("s_cmp_lg_u32 s3, 4\ns_cbranch_scc1 " + lab)
            a("""s_lshl4_add_u32 s13, s61, s60
            s_lshl_b32 s13, s13, 7
            s_add_u32 s13, s13, 0x%x
            v_mov_b32 v4, s6
            v_mov_b32 v5, s7
            v_and_b32 v6, 15, v1
            v_lshlrev_b32 v6, 3, v6
            buffer_store_dwordx2 v[4:5], v6, %s, s13 offen sc1""" % (WS_H1, s(self.rWS, 4)))
            a.label(lab)
        issue_wo(1)
        issue_wo(2)
        self.tail_addr()
        a("s_waitcnt vmcnt(0)")
        self.stamp()
        a("s_barrier")
        issue_wo(3)
        for n in range(3):
            read_wo(n)
        a("s_branch KV_TAIL")
        self.kv_tail_nst = self.nst
        self.nst = n0
        a.label("QLOADER")
        self.reducer_setup()
        a("s_waitcnt vmcnt(%d)\ns_barrier\ns_waitcnt vmcnt(0)\ns_barrier" % self.qwait[0])
        if self.opt.get("prewrite", 1):
            a("buffer_store_dwordx4 v[24:27], v21, %s, s67 offen sc1" % s(self.rWS, 4))
            lab = a.newlabel("NOZ")
            a("s_cmp_lg_u32 s60, 15\ns_cbranch_scc1 " + lab)
            a("buffer_store_dwordx4 v[24:27], v21, %s, s67 offen offset:128 sc1" % s(self.rWS, 4))
            a.label(lab)
        if self.opt.get("h1", 0):
            a("s_lshl_b32 s68, s4, 11\ns_add_u32 s68, s68, 0x%x\nv_and_b32 v2, 15, v1\nv_lshlrev_b32 v2, 7, v2" % WS_H1)
            self.hintpoll(2, 68, 36, 38)
        else:
            a("s_barrier")
        self.diag_delay("d_part")
        self.stamp()
        self.reducer()

    def reducer_setup(self):
        a = self.a
        a("""s_lshl3_add_u32 s60, s4, s5
        s_sub_u32 s60, s60, 16
        s_lshl2_add_u32 s60, s60, s58
        s_lshr_b32 s61, s60, 4
        s_and_b32 s60, s60, 15
        s_mul_i32 s63, s61, %d
        s_lshl_b32 s64, s60, 7
        s_add_u32 s63, s63, s64
        s_add_u32 s63, s63, 0x%x
        s_add_u32 s64, s63, %d
        s_add_u32 s65, s63, %d
        s_add_u32 s66, s63, %d""" % (32 * PLINE, WS_PART, 8 * PLINE, 16 * PLINE, 24 * PLINE))
        a("""s_mul_i32 s67, s61, %d
        s_lshl_b32 s61, s60, 7
        s_add_u32 s67, s67, s61
        s_add_u32 s67, s67, 0x%x""" % (PLINE, WS_RED))
        a("""v_lshrrev_b32 v2, 3, v1
        v_and_b32 v3, 7, v1
        v_lshlrev_b32 v3, 4, v3
        v_mov_b32 v22, %d
        v_mad_u32_u24 v20, v2, v22, v3
        v_mov_b32 v22, 0x%x
        v_mad_u32_u24 v21, v2, v22, v3""" % (PLINE, RED_STRIDE))
        a("""v_and_b32 v2, 1, v1
        v_lshlrev_b32 v2, 4, v2
        v_mov_b32 v3, 0x3f80
        v_lshlrev_b32 v3, v2, v3
        v_and_b32 v2, 2, v1
        v_cmp_eq_u32 vcc, 0, v2
        v_mov_b32 v25, 0
        v_mov_b32 v27, 0
        v_cndmask_b32 v24, 0, v3, vcc
        v_cndmask_b32 v26, v3, v25, vcc
        v_mov_b32 v29, s6
        v_mov_b32 v31, s7
        v_mov_b32 v33, s6
        v_mov_b32 v35, s7""")

    def reducer(self):
        a = self.a
        D, D2, acc, acc2, vacc = 40, 56, 72, 76, 80
        so = [63, 64, 65, 66]

        def body(dual):
            def issue():
                for i in range(4):
                    a("buffer_load_dwordx4 %s, v20, %s, s%d offen sc1" % (v(D + 4 * i, 4), s(self.rWS, 4), so[i]))
                if dual:
                    for i in range(4):
                        a("buffer_load_dwordx4 %s, v20, %s, s%d offen offset:128 sc1" % (v(D2 + 4 * i, 4), s(self.rWS, 4), so[i]))

            def check():
                self.tagcheck([D + 4 * i for i in range(8 if dual else 4)], vacc)

            self.poll(issue, check, vacc)
            self.stamp()
            sets = [(D, acc, 28, 0)] + ([(D2, acc2, 32, 128)] if dual else [])
            for d, ac, _, _ in sets:
                for i in range(4):
                    a("v_mfma_f32_16x16x32_bf16 %s, v[24:27], %s, %s" % (v(ac, 4), v(d + 4 * i, 4), v(ac, 4) if i else "0"))
            for d, ac, o, off in sets:
                for r in range(4):
                    a("v_add_f32_dpp v%d, v%d, v%d row_ror:8 row_mask:0xf bank_mask:0xf" % (d + r, ac + r, ac + r))
                a("v_cvt_pk_bf16_f32 v%d, v%d, v%d" % (o, d, d + 1))
                a("v_cvt_pk_bf16_f32 v%d, v%d, v%d" % (o + 2, d + 2, d + 3))
                a("buffer_store_dwordx4 %s, v21, %s, s67 offen offset:%d sc1" % (v(o, 4), s(self.rWS, 4), off))
            self.end()

        n0 = self.nst
        a("s_cmp_eq_u32 s60, 15\ns_cbranch_scc1 RED_DUAL")
        body(False)
        self.nst = n0
        a.label("RED_DUAL")
        body(True)

    def lds_reset(self):
        self.lq_issued = 0
        self.lq_done = 0

    def lds(self, line):
        self.a(line)
        self.lq_issued += 1
        return self.lq_issued

    def lds_wait(self, seq):
        if seq > self.lq_done:
            n = min(self.lq_issued - seq, 15)
            self.a("s_waitcnt lgkmcnt(%d)" % n)
            self.lq_done = self.lq_issued - n

    @staticmethod
    def cost(line):
        m = line.split()[0]
        if m.startswith(("v_exp", "v_rcp", "v_sin", "v_cos")):
            return 8
        return 4

    def run_mfmas(self, mf, frags, pool, fillers, budget=24, maxread=2, maxout=14, hooks=None):
        a = self.a
        order = []
        last = {}
        for j, (_, ids) in enumerate(mf):
            for i in ids:
                if i not in last:
                    order.append(i)
                last[i] = j
        pool = list(pool)
        reg, seq = {}, {}
        rp = [0, 0]
        q = []

        def one_read():
            i = order[rp[0]]
            reads, pre = frags[i]
            if rp[1] == 0:
                if not pool:
                    return False
                if pre:
                    pre()
                reg[i] = pool.pop(0)
            sq = self.lds(reads[rp[1]].format(r=v(reg[i], 4), lo=v(reg[i], 2), hi=v(reg[i] + 2, 2)))
            rp[1] += 1
            if rp[1] == len(reads):
                seq[i] = sq
                rp[0] += 1
                rp[1] = 0
            return True

        while rp[0] < len(order) and self.lq_issued - self.lq_done < maxout - 2 and pool and not (rp[0] and frags[order[rp[0]]][1]):
            one_read()
        for j, (fmt, ids) in enumerate(mf):
            for i in ids:
                while i not in seq:
                    assert one_read()
            if ids:
                self.lds_wait(max(seq[i] for i in ids))
            a(fmt.format(*[v(reg[i], 4) for i in ids]))
            for i in ids:
                if last[i] == j:
                    pool.append(reg[i])
            if hooks and j in hooks:
                hooks[j]()
            b = budget
            k = 0
            while k < maxread and rp[0] < len(order) and self.lq_issued - self.lq_done < maxout:
                gate = frags[order[rp[0]]]
                if rp[1] == 0 and len(gate) > 2 and gate[2]() is False:
                    break
                if not one_read():
                    break
                k += 1
                b -= 4
            q += fillers.get(j, [])
            while q and b >= self.cost(q[0]):
                x = q.pop(0)
                b -= self.cost(x)
                self.emit_filler(x)
            self.fq = q
        return q

    def emit_filler(self, x):
        if x.startswith("ds_"):
            self.last_fill_lds = self.lds(x)
        elif x.startswith("WAITLDS"):
            self.lds_wait(self.last_fill_lds - int(x.split()[1]))
        else:
            self.a(x)

    def gemm_loop(self, acc, pool, ax, aw, xfirst, fill, Z, hooks=None):
        a = self.a
        frags, mf = {}, []
        seen = set()

        def fx(n, mb, tag):
            c, ks = n >> 2, n & 3
            slot = c & 3
            hi, so = slot >> 1, (slot & 1) * 32768
            pre = None
            if c not in seen:
                seen.add(c)
                pre = (lambda: a("s_barrier")) if c else None
            frags[("x", n, mb, tag)] = (["ds_read_b128 {r}, v%d offset:%d" % (ax[hi][ks], so + 4096 * mb)], pre)
            return ("x", n, mb, tag)

        def fw(n, nb):
            c, ks = n >> 2, n & 3
            slot = c & 3
            hi, so = slot >> 1, (slot & 1) * 32768 + 16384 + ks * 4096
            frags[("w", n, nb)] = (["ds_read_b64_tr_b16 {lo}, v%d offset:%d" % (aw[hi][nb], so),
                                    "ds_read_b64_tr_b16 {hi}, v%d offset:%d" % (aw[hi][nb], so + 1024)], None)
            return ("w", n, nb)

        def add(n, nbs, tag):
            X = [fx(n, 0, tag), fx(n, 1, tag)]
            for nb in nbs:
                W = fw(n, nb)
                for mb in range(2):
                    d = v(acc[mb][nb], 16)
                    if self.opt.get("nomfma") and n:
                        mf.append(("s_nop 0", [X[mb], W]))
                        continue
                    mf.append(("v_mfma_f32_32x32x16_bf16 %s, %s, %s" % (d, "{0}, {1}" if xfirst else "{1}, {0}", d if n else "0"), [X[mb], W]))

        for n in range(32 - Z):
            add(n, (0, 1), 0)
        for n in range(32 - Z, 32):
            add(n, (0,), 0)
        j0 = len(mf)
        for n in range(32 - Z, 32):
            add(n, (1,), 1)
        a("s_barrier")
        self.stamp()
        self.lds_reset()
        return self.run_mfmas(mf, frags, pool, {j0 + 1: fill}, hooks=hooks)

    def phi(self, src, dst, tmp, n):
        L = []
        for g in range(0, n, 8):
            for j in range(0, 8, 2):
                L.append("v_pk_mul_f32 %s, %s, s[56:57]" % (v(tmp + j, 2), v(src + g + j, 2)))
            for j in range(8):
                L.append("v_exp_f32_e64 v%d, v%d clamp" % (tmp + j, tmp + j))
                L.append("v_max_f32 v%d, s58, v%d" % (src + g + j, src + g + j))
            for j in range(0, 8, 2):
                L.append("v_pk_add_f32 %s, %s, %s" % (v(tmp + j, 2), v(tmp + j, 2), v(src + g + j, 2)))
            for j in range(0, 8, 2):
                L.append("v_cvt_pk_bf16_f32 v%d, v%d, v%d" % (dst + (g + j) // 2, tmp + j, tmp + j + 1))
        return L

    def compute(self):
        a = self.a
        ws = s(self.rWS, 4)
        a.label("COMPUTE")
        lab = a.newlabel("NOPF")
        a("s_cmp_ge_u32 s3, 3\ns_cbranch_scc1 " + lab)
        sv = self.vL
        self.vL = 0
        self.prefetch_code("LOADER", "ROLE_B", 3)
        self.vL = sv
        a.label(lab)
        self.gemm_params()
        ax = [[240, 241, 242, 243], [244, 245, 246, 247]]
        aw = [[248, 249], [250, 251]]
        a("""s_lshr_b32 s63, s3, 1
        s_and_b32 s64, s3, 1
        v_and_b32 v2, 31, v1
        v_lshlrev_b32 v2, 7, v2
        s_lshl_b32 s65, s63, 13
        v_add_u32 v2, s65, v2
        v_lshrrev_b32 v3, 5, v1
        v_bfe_u32 v16, v1, 1, 3
        v_xor_b32 v16, v16, v3
        v_lshl_add_u32 v240, v16, 4, v2
        v_xor_b32 v241, 32, v240
        v_xor_b32 v242, 64, v240
        v_xor_b32 v243, 96, v240""")
        a("""v_bfe_u32 v16, v1, 2, 2
        v_lshl_add_u32 v17, v3, 3, v16
        v_xor_b32 v16, s64, v16
        v_lshlrev_b32 v16, 6, v16
        v_lshl_add_u32 v16, v17, 8, v16
        v_bfe_u32 v17, v1, 4, 1
        v_lshl_add_u32 v16, v17, 5, v16
        v_and_b32 v17, 3, v1
        v_lshl_add_u32 v248, v17, 3, v16
        v_xor_b32 v249, 128, v248""")
        for k in range(4):
            a("v_add_u32 v%d, 0x10000, v%d" % (244 + k, 240 + k))
        a("v_add_u32 v250, 0x10000, v248\nv_add_u32 v251, 0x10000, v249")
        a("s_waitcnt lgkmcnt(0)")
        a("s_load_dwordx2 s[8:9], s[32:33], %d" % WS_EA)
        self.srd(self.rWS, self.pWS, WS_SIZE)
        if self.opt.get("touch", 0):
            lab = a.newlabel("NOT")
            a("s_cmp_lg_u32 s3, 3\ns_cbranch_scc1 " + lab)
            self.srd(self.rOUT, self.pOUT, 2048 * 2048)
            self.srd(self.rC, self.pWO, 512 * 1024)
            self.touch_pages(236, 237)
            a("""s_lshl4_add_u32 s69, s5, s4
            s_lshl3_add_u32 s69, s5, s4
            s_lshl_b32 s69, s69, 12
            v_and_b32 v236, 31, v1
            v_lshlrev_b32 v236, 7, v236
            buffer_load_dword v239, v236, %s, s69 offen""" % s(self.rC, 4))
            a.label(lab)
        a("s_mov_b32 s56, %s\ns_mov_b32 s57, %s\ns_mov_b32 s58, %s" % (fhex(1.4426950408889634), fhex(1.4426950408889634), fhex(1e-6)))
        a("v_lshlrev_b32 v2, 4, v1")
        acc = [[64, 96], [80, 112]]
        pool = list(range(16, 64, 4))
        Z = self.opt.get("z", 8)
        a("s_cmp_ge_u32 s5, 16\ns_cbranch_scc1 QCOMPUTE")
        n0 = self.nst
        a("""s_lshl1_add_u32 s59, s61, s64
        s_lshl_b32 s59, s59, 5
        s_lshl1_add_u32 s66, s60, s63
        s_add_u32 s59, s59, s66
        s_mul_i32 s59, s59, %d
        s_add_u32 s59, s59, 0x%x""" % (PLINE, WS_PART))
        a("""s_lshl4_add_u32 s13, s61, s60
        s_lshl_b32 s13, s13, 7
        s_add_u32 s14, s13, 0x%x
        s_add_u32 s13, s13, 0x%x
        v_and_b32 v146, 0x70, v2
        v_lshrrev_b32 v147, 3, v1
        v_lshl_add_u32 v147, v147, 14, v146""" % (WS_H2, WS_H1))
        P0, P1, PZ, ONES, zaddr = 128, 132, 136, 140, 144
        pk, vv, tmp, D, D2 = 180, 196, 212, 148, 164
        for j in range(4):
            a("v_mov_b32 v%d, 0x3f803f80" % (ONES + j))
        if self.opt.get("prewrite", 1):
            a("buffer_store_dwordx4 %s, v2, %s, s59 offen sc1" % (v(ONES, 4), ws))
            a("buffer_store_dwordx4 %s, v2, %s, s59 offen offset:1024 sc1" % (v(ONES, 4), ws))
            a("s_mov_b64 exec, 0xff")
            a("buffer_store_dwordx4 %s, v2, %s, s59 offen offset:2048 sc1" % (v(ONES, 4), ws))
            a("s_mov_b64 exec, -1")
        a("""v_lshrrev_b32 v3, 4, v1
        v_and_b32 v145, 1, v1
        v_lshl_add_u32 v3, v3, 1, v145
        v_lshlrev_b32 v%d, 4, v3
        s_mov_b32 s60, 0xaaaaaaaa
        s_mov_b32 s61, 0xaaaaaaaa""" % zaddr)
        self.tail_addr()
        a("s_waitcnt lgkmcnt(0)")
        self.tags()
        for p in (P0, P1, PZ):
            a("v_mov_b32 v%d, s6\nv_mov_b32 v%d, s7" % (p + 1, p + 3))
        a("v_mov_b32 v252, s6\nv_mov_b32 v253, s7\nv_mov_b32 v254, s6\nv_mov_b32 v255, s7")

        def hint(va, so):
            lab = a.newlabel("NOH")
            a("s_cmp_lg_u32 s3, 0\ns_cbranch_scc1 " + lab)
            a("buffer_store_dwordx4 v[252:255], v%d, %s, s%d offen sc1" % (va, ws, so))
            a.label(lab)

        K0, K1, V0, V1 = acc[0][0], acc[1][0], acc[0][1], acc[1][1]
        M32 = "v_mfma_f32_32x32x16_bf16"
        fill = []
        for i, src in enumerate((K0, K0 + 8, K1, K1 + 8)):
            fill += self.phi(src, pk + 4 * i, tmp, 8)
        hooks = {80: lambda: a("s_waitcnt vmcnt(0)")}
        if self.opt.get("h1", 0) > 0:
            hooks[self.opt.get("h1", 0)] = lambda: hint(146, 13)
        rest = self.gemm_loop(acc, pool, ax, aw, True, fill, Z, hooks)
        self.stamp()
        ndone = 4 - (len(rest) + 27) // 28
        for i in range(ndone):
            a("%s %s, %s, %s, %s" % (M32, v(D2, 16), v(pk + 4 * i, 4), v(ONES, 4), v(D2, 16) if i else "0"))
            for x in rest[:6]:
                a(x)
            rest = rest[6:]
        for x in rest:
            a(x)
        for i in range(4):
            src = (V0, V0 + 8, V1, V1 + 8)[i]
            for j in range(4):
                a("v_cvt_pk_bf16_f32 v%d, v%d, v%d" % (vv + 4 * i + j, src + 2 * j, src + 2 * j + 1))
            if i >= ndone:
                a("%s %s, %s, %s, %s" % (M32, v(D2, 16), v(pk + 4 * i, 4), v(ONES, 4), v(D2, 16) if i else "0"))
            elif i:
                a("%s %s, %s, %s, %s" % (M32, v(D, 16), v(pk + 4 * i - 4, 4), v(vv + 4 * i - 4, 4), v(D, 16) if i > 1 else "0"))
        for i in range(max(ndone - 1, 0), 4):
            a("%s %s, %s, %s, %s" % (M32, v(D, 16), v(pk + 4 * i, 4), v(vv + 4 * i, 4), v(D, 16) if i else "0"))
        if self.opt.get("h2", 0) == 1:
            hint(147, 14)
            a("s_nop 0")
        for t in range(8):
            a("v_cndmask_b32 v%d, v%d, v%d, s[10:11]" % (tmp + t, D2 + t, D2 + 8 + t))
        for t in range(4):
            a("v_cndmask_b32 v%d, v%d, v%d, s[60:61]" % (tmp + t, tmp + t, tmp + 4 + t))
        a("v_cvt_pk_bf16_f32 v%d, v%d, v%d" % (PZ, tmp, tmp + 1))
        a("v_cvt_pk_bf16_f32 v%d, v%d, v%d" % (PZ + 2, tmp + 2, tmp + 3))
        a("s_mov_b32 exec_lo, 0x00030003\ns_mov_b32 exec_hi, 0x00030003")
        a("buffer_store_dwordx4 %s, v%d, %s, s59 offen offset:2048 sc1" % (v(PZ, 4), zaddr, ws))
        a("s_mov_b64 exec, -1")
        for h, p in enumerate((P0, P1)):
            for t in range(4 * h, 4 * h + 4):
                a("v_cndmask_b32 v%d, v%d, v%d, s[10:11]" % (tmp + t, D + t, D + 8 + t))
            a("v_cvt_pk_bf16_f32 v%d, v%d, v%d" % (p, tmp + 4 * h, tmp + 4 * h + 1))
            a("v_cvt_pk_bf16_f32 v%d, v%d, v%d" % (p + 2, tmp + 4 * h + 2, tmp + 4 * h + 3))
            a("buffer_store_dwordx4 %s, v2, %s, s59 offen offset:%d sc1" % (v(p, 4), ws, 1024 * h))
        if self.opt.get("h2", 0) == 2:
            hint(147, 14)
        self.stamp()
        a("s_barrier")
        assert self.nst == self.kv_tail_nst
        self.kv_tail()
        self.nst = n0
        a.label("QCOMPUTE")
        a("""s_lshl1_add_u32 s66, s60, s63
        s_lshl2_add_u32 s66, s66, s61
        s_lshl1_add_u32 s66, s66, s64
        s_lshl_b32 s65, s66, 13
        s_add_u32 s65, s65, 0x%x
        s_add_u32 s67, s65, 0x1000
        v_mov_b32 v4, 0xfffefffe""" % WS_PQ)
        if self.opt.get("tabpf", 0):
            lab = a.newlabel("PC")
            a("s_getpc_b64 s[68:69]")
            a.label(lab)
            a.items.append(("i", _sym_add("s_add_u32 s68, s68, TABLE-%s" % lab, 0x8000)))
            a("s_addc_u32 s69, s69, 0\ns_mul_i32 s70, s3, 6144\nv_lshlrev_b32 v10, 7, v1\nv_min_u32 v10, 0x17fc, v10\nv_add_u32 v10, s70, v10")
            a("global_load_dword v10, v10, s[68:69]")
        a("s_waitcnt lgkmcnt(0)")
        self.tags()

        def qpost(nb):
            L = []
            for mb in range(2):
                for h in range(2):
                    d = 128 + 16 * nb + 8 * mb + 4 * h
                    L += self.phi(acc[mb][nb] + 8 * h, d, 212, 8) + self.mark(d, 4)
                    L.append("buffer_store_dwordx4 %s, v2, %s, s%d offen offset:%d sc1" % (v(d, 4), ws, 67 if nb else 65, (h * 2 + mb) * 1024))
            return L

        hooks = None
        rest = self.gemm_loop(acc, pool, ax, aw, False, qpost(0), Z, hooks)
        self.stamp()
        rest = rest + qpost(1)
        k = min(self.opt.get("redwait", 200), len(rest))
        for x in rest[:k]:
            a(x)
        if not self.opt.get("h1", 0):
            if self.opt.get("qdrain", 1):
                a("s_waitcnt vmcnt(0)")
            a("s_barrier")
        for x in rest[k:]:
            a(x)
        self.end()

    def tail_addr(self):
        a = self.a
        a("""s_and_b32 s63, s3, 1
        s_lshr_b32 s64, s3, 1
        v_lshlrev_b32 v2, 4, v1
        s_and_b32 s65, s5, 3
        s_lshl2_add_u32 s65, s4, s65
        s_lshl3_add_u32 s66, s65, s3
        s_lshl_b32 s67, s66, 13
        s_add_u32 s67, s67, 0x%x""" % WS_PQ)
        a("""s_lshl2_add_u32 s63, s64, s63
        s_mul_i32 s70, s63, %d
        s_mul_i32 s71, s4, 0x%x
        s_add_u32 s70, s70, s71
        s_add_u32 s70, s70, 0x%x
        s_add_u32 s71, s70, %d
        v_lshrrev_b32 v8, 4, v1
        v_xor_b32 v8, 1, v8
        v_lshlrev_b32 v8, 5, v8
        v_mov_b32 v9, 0
        s_lshl_b32 s63, s63, 11
        v_add_u32 v13, s63, v2""" % (PLINE, RED_STRIDE, WS_RED, 2 * PLINE))

    def kv_tail(self):
        a = self.a
        ws = s(self.rWS, 4)
        M32 = "v_mfma_f32_32x32x16_bf16"
        a.label("KV_TAIL")
        WO, PQ, RD, OP, AC = 128, 16, 48, 80, 96
        a("s_waitcnt vmcnt(0)")
        a("s_add_u32 s68, s67, 0x1000\ns_mov_b32 s58, %s" % fhex(1e-6))
        pqload = lambda: [a("buffer_load_dwordx4 %s, v2, %s, s%d offen offset:%d sc1" % (v(PQ + 4 * i, 4), ws, 68 if i >= 4 else 67, (i & 3) * 1024)) for i in range(8)]
        self.diag_delay("d_pq")
        if not self.opt.get("pqlate", 1):
            pqload()
        a("s_waitcnt lgkmcnt(0)\ns_barrier")
        self.stamp()
        if self.opt.get("pqlate", 1):
            pqload()
        lab = a.newlabel("NOWO")
        a("s_cmp_lt_u32 s3, 4\ns_cbranch_scc1 " + lab)
        self.read_wo(3)
        a.label(lab)

        self.poll(pqload, lambda: self.markcheck(PQ, 32, 12), 12, first_issued=True)
        self.stamp()

        def issue():
            for pi in range(2):
                so = 70 + pi
                b = RD + 16 * pi
                a("buffer_load_dwordx4 %s, v2, %s, s%d offen sc1" % (v(b, 4), ws, so))
                a("buffer_load_dwordx4 %s, v2, %s, s%d offen offset:1024 sc1" % (v(b + 4, 4), ws, so))
                a("buffer_load_dwordx4 %s, v8, %s, s%d offen offset:2048 sc1" % (v(b + 8, 4), ws, so))
                a("buffer_load_dwordx4 %s, v8, %s, s%d offen offset:2064 sc1" % (v(b + 12, 4), ws, so))

        a("""s_lshl_b32 s63, s5, 13
        s_and_b32 s64, s63, 0x6000
        v_add_u32 v4, s64, v2
        s_add_u32 s63, s63, 0x2000
        s_and_b32 s64, s63, 0x6000
        v_add_u32 v5, s64, v2
        s_add_u32 s63, s63, 0x2000
        s_and_b32 s64, s63, 0x6000
        v_add_u32 v6, s64, v2
        s_add_u32 s63, s63, 0x2000
        s_and_b32 s64, s63, 0x6000
        v_add_u32 v7, s64, v2
        s_lshl_b32 s69, s3, 12
        s_add_u32 s69, s69, 0x14000
        v_and_b32 v10, 31, v1
        v_bfe_u32 v14, v1, 1, 2
        v_lshrrev_b32 v15, 5, v1
        v_lshlrev_b32 v15, 1, v15
        v_xor_b32 v14, v14, v15
        v_lshlrev_b32 v14, 4, v14
        v_lshl_add_u32 v10, v10, 6, v14
        v_add_u32 v10, s69, v10
        v_xor_b32 v14, 16, v10
        v_bfe_u32 v15, v1, 3, 2
        v_lshlrev_b32 v15, 4, v15
        v_xor_b32 v15, v15, v2
        v_add_u32 v15, s69, v15
        v_lshrrev_b32 v3, 2, v1
        v_and_b32 v11, 3, v1
        v_lshlrev_b32 v11, 4, v11
        v_lshl_add_u32 v3, v3, 11, v11
        s_lshl_b32 s65, s65, 17
        s_lshr_b32 s69, s5, 2
        s_and_b32 s64, s3, 3
        s_lshl2_add_u32 s69, s69, s64
        s_lshl_b32 s69, s69, 6
        s_add_u32 s64, s65, s69
        s_add_u32 s65, s64, 0x8000
        s_add_u32 s66, s64, 0x10000
        s_add_u32 s67, s64, 0x18000""")
        if self.opt.get("h2", 0):
            a("""s_lshl_b32 s63, s4, 14
            s_lshr_b32 s69, s3, 1
            s_lshl_b32 s69, s69, 12
            s_add_u32 s63, s63, s69
            s_add_u32 s63, s63, 0x%x
            v_and_b32 v11, 31, v1
            v_lshlrev_b32 v11, 7, v11""" % WS_H2)
            self.hintpoll(11, 63, RD, 12)
        self.diag_delay("d_red")
        self.poll(issue, lambda: self.tagcheck([RD + 4 * i for i in range(8)], 12), 12)
        self.stamp()
        accs = [AC, AC + 16, RD, RD + 16]

        def sel(i):
            pi, h = i >> 1, i & 1
            b = RD + 16 * pi
            for j in range(4):
                x, y = (b + 2 * j, b + 8 + 2 * j) if h == 0 else (b + 8 + 2 * j, b + 2 * j)
                a("v_cndmask_b32 v%d, v%d, v%d, s[10:11]" % (OP + 4 * i + j, x, y))

        def mf(i, mb, d):
            return "%s %s, %s, %s, 0" % (M32, v(d, 16), v(OP + 4 * i, 4), v(PQ + 4 * (i * 2 + mb), 4))

        def post(i, mb, d):
            pi, h = i >> 1, i & 1
            num, den = (d, d + 8) if h == 0 else (d + 8, d)
            L = ["v_add_f32 v%d, s58, v%d" % (den, den), "v_rcp_f32 v%d, v%d" % (den, den)]
            for j in range(0, 8, 2):
                L.append("v_pk_mul_f32 %s, %s, %s op_sel_hi:[1,0]" % (v(num + j, 2), v(num + j, 2), v(den, 2)))
            for j in range(4):
                L.append("v_cvt_pk_bf16_f32 v%d, v%d, v%d" % (den + 4 + j, num + 2 * j, num + 2 * j + 1))
            L.append("ds_write_b128 v13, %s offset:%d" % (v(den + 4, 4), mb * 32768 + (pi * 4 + h) * 1024))
            return L

        sel(0)
        sel(1)
        a(mf(0, 0, accs[0]))
        sel(2)
        a(mf(1, 0, accs[1]))
        sel(3)
        a(mf(2, 0, accs[2]))
        for i in range(4):
            if i == 0:
                a(mf(3, 0, accs[3]))
            for x in post(i, 0, accs[i]):
                a(x)
        acc1 = [RD, RD + 16, AC + 16, RD]
        a(mf(0, 1, acc1[0]))
        a(mf(1, 1, acc1[1]))
        a("s_waitcnt lgkmcnt(0)\ns_barrier")
        self.stamp()
        a("s_cmp_ge_u32 s3, 4\ns_cbranch_scc1 OUT_GEMM")
        n0 = self.nst
        a(mf(2, 1, acc1[2]))
        a(mf(3, 1, AC))
        for i in range(4):
            for x in post(i, 1, acc1[i] if i < 3 else AC):
                a(x)
        lab = a.newlabel("NOEP")
        a("s_or_b32 s56, s4, s3\ns_or_b32 s56, s56, s5\ns_cbranch_scc1 " + lab)
        a("v_mov_b32 v6, s8\nv_mov_b32 v7, s9\ns_mov_b64 exec, 1")
        a("buffer_store_dwordx2 v[6:7], v9, %s, 0 offen offset:%d" % (ws, WS_EA))
        a("s_mov_b64 exec, -1")
        a.label(lab)
        a("s_waitcnt lgkmcnt(0)\ns_barrier")
        self.end()
        self.nst = n0
        a.label("OUT_GEMM")
        fl = self.opt.get("outflag", "")
        out = s(self.rOUT, 4)
        frags, mfl = {}, []
        pool = [PQ + 8 * i for i in range(4)] + [PQ + 4, PQ + 12]

        def b11b():
            assert not self.fq
            self.lds_wait(self.last_fill_lds)
            a("s_barrier")

        AC2 = OP
        for mb in range(2):
            d = v(AC2 if mb else AC, 16)
            for h in range(32):
                frags[(mb, h)] = (["ds_read_b128 {r}, v%d offset:%d" % (4 + (h >> 3), mb * 32768 + (h & 7) * 1024)],
                                  b11b if (mb, h) == (1, 0) else None)
                mfl.append(("%s %s, %s, {0}, %s" % (M32, d, v(WO + 4 * h, 4), d if h else "0"), [(mb, h)]))
                if mb == 0 and h == 0:
                    mfl.append((mf(2, 1, acc1[2]), []))
                if mb == 0 and h == 4:
                    mfl.append((mf(3, 1, acc1[3]), []))

        def epi(mb, d, t):
            L = ["v_cvt_pk_bf16_f32 v%d, v%d, v%d" % (t + j, d + 2 * j, d + 2 * j + 1) for j in range(8)]
            L += ["ds_write_b128 v10, %s offset:%d" % (v(t, 4), mb * 2048), "ds_write_b128 v14, %s offset:%d" % (v(t + 4, 4), mb * 2048),
                  "ds_read_b128 %s, v15 offset:%d" % (v(t + 8, 4), mb * 2048), "ds_read_b128 %s, v15 offset:%d" % (v(t + 12, 4), mb * 2048 + 1024)]
            L2 = ["WAITLDS 1", "buffer_store_dwordx4 %s, v3, %s, s%d offen %s" % (v(t + 8, 4), out, 64 + 2 * mb, fl),
                  "WAITLDS 0", "buffer_store_dwordx4 %s, v3, %s, s%d offen %s" % (v(t + 12, 4), out, 65 + 2 * mb, fl)]
            return L, L2

        e0, e0b = epi(0, AC, RD)
        fillers = {0: post(0, 1, acc1[0]) + post(1, 1, acc1[1]), 6: post(2, 1, acc1[2]), 9: post(3, 1, acc1[3]), 36: e0, 46: e0b}
        self.lds_reset()
        rest = self.run_mfmas(mfl, frags, pool, fillers, maxread=1)
        assert not rest
        e1, e1b = epi(1, AC2, RD + 16)
        for x in e1 + e1b:
            self.emit_filler(x)
        self.end(True)

    def sincos(self, ang, c, sn, n):
        a = self.a
        for i in range(n):
            a("v_cos_f32 v%d, v%d" % (c + i, ang + i))
            a("v_sin_f32 v%d, v%d" % (sn + i, ang + i))

    def cvt(self, d, x, y):
        self.a("v_cvt_pk_bf16_f32 v%d, %s, %s" % (d, x, y))

    def role_b(self):
        a = self.a
        a.label("ROLE_B")
        if self.opt.get("nob"):
            a("s_waitcnt lgkmcnt(0)")
            self.srd(self.rWS, self.pWS, WS_SIZE)
            n0 = self.nst
            self.end()
            self.nst = n0
        XB, ZB, WB, TB = 0, 32768, 65536, 131072
        RAB = TB + 24576
        M16 = "v_mfma_f32_16x16x32_bf16"
        M32 = "v_mfma_f32_32x32x16_bf16"
        ws = s(self.rWS, 4)
        XW, SW, XW3 = 0, 3, 1
        a("""s_and_b32 s61, s5, 7
        s_lshl3_add_u32 s60, s4, s61
        v_lshlrev_b32 v2, 4, v1
        s_lshl_b32 s62, s3, 7
        s_add_u32 s62, s62, s60
        s_lshl_b32 s62, s62, 10
        s_add_u32 s63, s62, 0x%x
        s_add_u32 s64, s62, 0x%x
        s_add_u32 s65, s62, 0x%x
        s_lshl_b32 s70, s3, 12
        s_mov_b32 s46, 0x200000
        s_mov_b32 s47, 0x20000""" % (0x100000 - 1024, 0x10000 - 2048, 0x110000 - 3072))
        lab = a.newlabel("PC")
        a("s_getpc_b64 s[56:57]")
        a.label(lab)
        a.items.append(("i", _sym_add("s_add_u32 s58, s56, TABLE-%s" % lab, 0x8000)))
        a("s_addc_u32 s59, s57, 0")
        a("""s_mul_i32 s66, s3, 3072
        v_add_u32 v7, s66, v2
        v_lshlrev_b32 v4, 7, v0""")
        a.items.append(("i", _sym_add("s_mov_b32 s67, CODE_END-%s-4" % lab)))
        a("v_min_u32 v4, s67, v4")
        a("s_add_u32 m0, s66, %d" % TB)
        for q in range(3):
            a("global_load_lds_dwordx4 v7, s[58:59] offset:%d" % (q * 1024))
        lab = a.newlabel("NOPF")
        a("s_cmp_ge_u32 s3, 2\ns_cbranch_scc1 " + lab)
        a("global_load_dword v0, v4, s[56:57]")
        a.label(lab)
        a("s_mov_b32 m0, s70")
        a("s_waitcnt lgkmcnt(0)\ns_mov_b32 s44, s22\ns_mov_b32 s45, s23")
        for q in range(4):
            a("buffer_load_dwordx4 v2, %s, s%d offen offset:%d lds" % (s(self.rA, 4), 62 + q, q * 1024))
        a("s_load_dwordx2 s[8:9], s[32:33], %d" % WS_EB)
        self.srd(self.rWS, self.pWS, WS_SIZE)
        self.bpf = self.opt.get("bpf", 0)
        if self.bpf:
            self.srd(self.rB, self.pWQ, 512 * 3072)
            a("""s_lshl3_add_u32 s13, s61, s3
            s_lshl_b32 s13, s13, 2
            s_add_u32 s13, s13, 256
            s_mul_i32 s13, s13, 3072
            s_and_b32 s14, s4, 1
            s_lshl_b32 s14, s14, 9
            s_add_u32 s13, s13, s14
            s_add_u32 s13, s13, 1024
            v_bfe_u32 v8, v1, 3, 2
            v_mul_u32_u24 v8, 0xc00, v8
            v_bfe_u32 v9, v1, 2, 1
            v_lshl_add_u32 v8, v9, 10, v8
            v_and_b32 v9, 3, v1
            v_lshl_add_u32 v8, v9, 7, v8
            s_mov_b32 exec_hi, 0
            buffer_load_dword v127, v8, %s, s13 offen
            s_mov_b32 exec_hi, -1""" % s(self.rB, 4))
        a("""v_lshrrev_b32 v4, 5, v1
        v_and_b32 v5, 31, v1
        v_lshlrev_b32 v6, 4, v5
        v_lshl_add_u32 v3, v4, 15, v6
        v_lshl_add_u32 v11, v4, 18, v6
        s_lshl_b32 s66, s3, 18
        s_lshl_b32 s67, s61, 12
        s_add_u32 s66, s66, s67
        s_lshl_b32 s67, s4, 9
        s_add_u32 s66, s66, s67
        s_add_u32 s66, s66, 0x%x
        s_lshl_b32 s13, s3, 6
        s_add_u32 s13, s13, s60
        s_lshl_b32 s13, s13, 9
        s_add_u32 s13, s13, 0x%x
        v_mov_b32 v14, 0xfffefffe
        s_lshl_b32 s14, s60, 9
        s_add_u32 s14, s14, 0x%x""" % (WS_X2, WS_X1, WS_X1 + 64 * 32768))
        a("""s_lshl_b32 s67, s4, 10
        s_add_u32 s67, s67, 0x%x
        v_and_b32 v12, 15, v1
        v_lshrrev_b32 v13, 4, v1
        s_xor_b32 s71, s61, 7
        s_xor_b32 s62, s3, %d
        s_or_b32 s71, s71, s62""" % (WS_X2S, SW))
        a("""s_bitcmp1_b32 s61, 0
        s_cselect_b64 s[48:49], s[26:27], s[24:25]
        s_cselect_b64 s[52:53], s[24:25], s[26:27]
        s_cselect_b32 s34, 0x8000, 0
        s_mov_b32 s50, 0x%x
        s_mov_b32 s51, 0x20000
        s_mov_b32 s54, 0x%x
        s_mov_b32 s55, 0x20000
        s_add_u32 s34, s34, s70
        s_add_u32 s34, s34, %d
        s_xor_b32 s35, s34, 0x8000""" % (2048 * 514, 2048 * 514, WB))
        self.srd(self.rOUT, self.pOUT, 2048 * 2048)

        CS, TW0, TWX, F16 = 16, 40, 48, 56
        RA = 64
        T = 144
        a("""v_cvt_f32_u32 v16, v5
        s_bfe_u32 s62, s3, 0x10001
        s_and_b32 s63, s3, 1
        s_lshl2_add_u32 s62, s62, s63
        s_lshl_b32 s62, s62, 7
        s_add_u32 s62, s62, s60
        v_lshl_add_u32 v17, v4, 8, s62
        v_cvt_f32_u32 v17, v17
        v_mul_f32 v17, v17, v16
        s_lshr_b32 s62, s3, 2
        v_xor_b32 v18, s62, v1
        v_lshlrev_b32 v18, 31, v18
        v_or_b32 v18, %s, v18
        v_fmamk_f32 v17, v17, %s, v18
        v_fmamk_f32 v18, v16, %s, v17
        s_lshl_b32 s62, s62, 31
        v_cos_f32 v20, v17
        v_sin_f32 v21, v17
        v_cos_f32 v22, v18
        v_sin_f32 v23, v18
        s_lshr_b32 s64, s3, 1
        s_lshl_b32 s64, s64, 10
        s_lshl3_add_u32 s64, s63, s64
        s_add_u32 s64, s64, %d
        v_add_u32 v15, s64, v2""" % (fhex(0.125), fhex(1 / 2048), fhex(1 / 32), RAB))
        a("""v_cvt_pk_bf16_f32 v24, v20, v21
        v_cvt_pk_bf16_f32 v25, v22, v23
        v_cvt_pk_bf16_f32 v26, -v21, v20
        v_cvt_pk_bf16_f32 v27, -v23, v22
        v_xor_b32 v24, s62, v24
        v_xor_b32 v25, s62, v25
        v_xor_b32 v26, s62, v26
        v_xor_b32 v27, s62, v27
        ds_write_b64 v15, v[24:25]
        ds_write_b64 v15, v[26:27] offset:4096""")
        a("""v_lshlrev_b32 v16, 6, v12
        v_add_u32 v16, s60, v16
        v_cvt_f32_u32 v16, v16
        v_mul_f32 v16, %s, v16
        s_lshr_b32 s62, s3, 1
        s_lshl2_add_u32 s62, s62, s63
        s_lshl_b32 s62, s62, 1
        v_lshl_add_u32 v17, v4, 2, s62
        v_cvt_f32_u32 v17, v17
        v_lshlrev_b32 v18, 27, v1
        v_and_b32 v18, 0x80000000, v18
        v_or_b32 v18, %s, v18
        v_fma_f32 v19, v17, v16, v18
        v_sub_f32 v18, v16, v18
        v_fma_f32 v18, v17, v16, v18
        v_cos_f32 v20, v19
        v_sin_f32 v21, v19
        v_cos_f32 v22, v18
        v_sin_f32 v23, v18
        v_cvt_pk_bf16_f32 v140, v20, -v21
        v_cvt_pk_bf16_f32 v142, v21, v20
        v_cvt_pk_bf16_f32 v141, v22, -v23
        v_cvt_pk_bf16_f32 v143, v23, v22""" % (fhex(1 / 2048), fhex(0.125)))
        FA = 128
        a("""v_bfe_u32 v16, v1, 3, 2
        s_lshl_b32 s62, s4, 2
        v_add_u32 v17, s62, v16
        v_lshl_add_u32 v17, v4, 5, v17
        v_mul_u32_u24 v17, 514, v17
        v_and_b32 v17, -16, v17
        v_sub_u32 v16, v1, v16
        v_and_b32 v18, 7, v16
        v_xor_b32 v19, 4, v18
        v_cmp_gt_u32 s[68:69], 5, v18
        v_cmp_gt_u32 s[58:59], 5, v19
        v_lshl_add_u32 v128, v18, 4, v17
        v_lshl_add_u32 v129, v19, 4, v17""")
        a("""v_lshl_add_u32 v7, v1, 3, s70
        s_lshr_b32 s62, s3, 1
        s_lshl_b32 s62, s62, 13
        s_lshl3_add_u32 s62, s63, s62
        s_add_u32 s62, s62, %d
        v_lshlrev_b32 v8, 11, v13
        v_lshl_add_u32 v8, v12, 4, v8
        v_add_u32 v8, s62, v8
        v_lshl_add_u32 v10, s3, 5, v5
        v_lshlrev_b32 v130, 13, v4
        v_add_u32 v130, %d, v130
        v_lshl_add_u32 v9, v10, 4, v130
        v_sub_u32 v10, 0, v10
        v_and_b32 v10, 0x1ff, v10
        v_lshl_add_u32 v10, v10, 4, v130
        v_add_u32 v131, %d, v2
        s_mul_i32 s62, s3, %d
        s_lshl_b32 s63, s61, 6
        s_add_u32 s62, s62, s63
        s_add_u32 s63, s62, %d
        s_add_u32 s64, s62, %d
        s_add_u32 s65, s62, %d
        s_waitcnt lgkmcnt(0)""" % (ZB, ZB, TB, 8 * 32 * 514, 64 * 514 - 1024, 128 * 514 - 2048, 192 * 514 - 3072))
        self.tags()

        def tab(reg, q, n):
            for i in range(n):
                a("ds_read_b128 %s, v131 offset:%d" % (v(reg + 4 * i, 4), (q + i) * 1024))

        fdp = [int(x) for x in str(self.opt.get("fdp", "2402"))[-4:].rjust(4, "0")]
        fdn = [0]

        def fnext(n=1):
            for _ in range(n):
                fdma(fdn[0] >> 2, fdn[0] & 3)
                fdn[0] += 1

        def fdma(second, q):
            if self.opt.get("nofd"):
                return
            a("s_mov_b64 exec, %s" % ("s[58:59]" if q >> 1 else "s[68:69]"))
            a("s_mov_b32 m0, s%d" % (35 if second else 34))
            a("buffer_load_dwordx4 v%d, %s, s%d offen offset:%d lds" % (FA + (q >> 1), s(52 if second else 48, 4), 62 + q, q * 1024))
            a("s_mov_b64 exec, -1")

        a("s_waitcnt vmcnt(%d)\ns_barrier" % (5 if self.bpf else 4))
        XF, T1, U = T, T + 16, T + 48
        tab(CS, TQ_CS, 12)
        tab(RA, 24, 8)
        fnext(fdp[0])
        a("s_waitcnt vmcnt(%d)" % ((1 if self.bpf else 0) + fdp[0]))
        self.stamp()
        if self.opt.get("touch", 0):
            lab = a.newlabel("NOT")
            a("s_cmp_lg_u32 s3, 2\ns_cbranch_scc1 " + lab)
            self.touch_pages(136, 137)
            a.label(lab)
        for q in range(4):
            a("ds_read_b64_tr_b16 %s, v7 offset:%d" % (v(XF + 4 * q, 2), q * 1024))
            a("ds_read_b64_tr_b16 %s, v7 offset:%d" % (v(XF + 4 * q + 2, 2), q * 1024 + 512))
        sp1 = [(fdp[1] + 3 - i) // 4 for i in range(4)]
        fnext(sp1[0])

        def stage_cs(re, im, out, conj):
            S, N = (CS + 16, CS + 8) if conj else (CS + 8, CS + 16)
            for tau in range(2):
                a("%s %s, %s, %s, 0" % (M16, v(out + 4 * tau, 4), v(re, 4), v(CS + 4 * tau, 4)))
                a("%s %s, %s, %s, 0" % (M16, v(out + 8 + 4 * tau, 4), v(im, 4), v(CS + 4 * tau, 4)))
            for tau in range(2):
                a("%s %s, %s, %s, %s" % (M16, v(out + 4 * tau, 4), v(im, 4), v(S + 4 * tau, 4), v(out + 4 * tau, 4)))
                a("%s %s, %s, %s, %s" % (M16, v(out + 8 + 4 * tau, 4), v(re, 4), v(N + 4 * tau, 4), v(out + 8 + 4 * tau, 4)))

        def twiddle(t, tws, tmp, conj):
            for tau in range(2):
                for j in (0, 2):
                    re, im = t + 4 * tau + j, t + 8 + 4 * tau + j
                    sn_ = tws[tau] + 4 + j
                    k = tmp + 8 * tau + 2 * j
                    a("v_pk_mul_f32 %s, %s, %s" % (v(k, 2), v(im, 2), v(sn_, 2)))
                    a("v_pk_mul_f32 %s, %s, %s" % (v(k + 2, 2), v(re, 2), v(sn_, 2)))
            ng = " neg_lo:[0,0,1] neg_hi:[0,0,1]"
            for tau in range(2):
                for j in (0, 2):
                    re, im = t + 4 * tau + j, t + 8 + 4 * tau + j
                    c = tws[tau] + j
                    k = tmp + 8 * tau + 2 * j
                    a("v_pk_fma_f32 %s, %s, %s, %s%s" % (v(re, 2), v(re, 2), v(c, 2), v(k, 2), ng if conj else ""))
                    a("v_pk_fma_f32 %s, %s, %s, %s%s" % (v(im, 2), v(im, 2), v(c, 2), v(k + 2, 2), "" if conj else ng))

        a("s_waitcnt lgkmcnt(4)")
        stage_cs(XF, XF + 4, T1, False)
        a("s_waitcnt lgkmcnt(0)")
        stage_cs(XF + 8, XF + 12, T1 + 16, False)
        fnext(sp1[1])
        for m in range(2):
            t = T1 + 16 * m
            twiddle(t, [TW0, TWX], T + 64, False)
            for tau in range(2):
                u = U + 8 * m + 4 * tau
                self.cvt(u, v(t + 4 * tau), v(t + 4 * tau + 1))
                self.cvt(u + 1, v(t + 4 * tau + 2), v(t + 4 * tau + 3))
                self.cvt(u + 2, v(t + 8 + 4 * tau), v(t + 8 + 4 * tau + 1))
                self.cvt(u + 3, v(t + 8 + 4 * tau + 2), v(t + 8 + 4 * tau + 3))
            for tau in range(2):
                u = U + 8 * m + 4 * tau
                a("%s %s, %s, %s, 0" % (M16, v(t + 4 * tau, 4), v(F16, 4), v(u, 4)))
                a("%s %s, %s, %s, 0" % (M16, v(t + 8 + 4 * tau, 4), v(F16 + 4, 4), v(u, 4)))
            fnext(sp1[2 + m])
        fd = 2 if fdp[3] == 0 else 1
        ZW = T + 64
        for i in range(8):
            self.cvt(ZW + 2 * i, v(T1 + i), v(T1 + 8 + i))
        for i in range(8):
            self.cvt(ZW + 2 * i + 1, v(T1 + 16 + i), v(T1 + 24 + i))
            a("ds_write_b64 v8, %s offset:%d" % (v(ZW + 2 * i, 2), (i >> 2) * 256 + (i & 3) * 512))
        a("s_waitcnt lgkmcnt(0)\ns_barrier")
        self.stamp()
        for f in range(4):
            a("ds_read_b128 %s, v%d offset:%d" % (v(XF + 4 * f, 4), 9 + (f >> 1), (f & 1) * 16384))
        fnext(fdp[2])
        PC = T + 48

        def pieces(src, j, dst, mark=True):
            for h in range(2):
                self.cvt(dst + h, v(src + 4 * j + 2 * h), v(src + 4 * j + 2 * h + 1))
                self.cvt(dst + 2 + h, v(src + 16 + 4 * j + 2 * h), v(src + 16 + 4 * j + 2 * h + 1))
            if mark:
                for x in self.mark(dst, 14):
                    a(x)

        lab = a.newlabel("NOX")
        a("s_cmp_lg_u32 s3, %d\ns_cbranch_scc1 %s" % (XW, lab))
        XE, TE = T + 64, T + 80
        a("ds_read_b128 %s, v130 offset:4096\nds_read_b128 %s, v130 offset:%d" % (v(XE, 4), v(XE + 4, 4), 4096 + 16384))
        a("v_lshlrev_b32 v16, 1, v6\nv_lshl_add_u32 v16, v4, 4, v16")
        a("s_waitcnt lgkmcnt(0)")
        for f in range(4):
            for ri in range(2):
                d = v(TE + 16 * ri, 16)
                a("%s %s, %s, %s, %s" % (M32, d, v(RA + 16 * ri + 4 * f, 4), v(XE + 4 * (f & 1), 4), d if f else "0"))
        a.label(lab)
        for f in range(4):
            a("s_waitcnt lgkmcnt(%d)" % (3 - f))
            for ri in range(2):
                d = v(T1 + 16 * ri, 16)
                a("%s %s, %s, %s, %s" % (M32, d, v(RA + 16 * ri + 4 * f, 4), v(XF + 4 * f, 4), d if f else "0"))
        if fd == 2:
            a("s_waitcnt vmcnt(0)")
        lab = a.newlabel("NOX")
        a("s_cmp_lg_u32 s3, %d\ns_cbranch_scc1 %s" % (XW, lab))
        for j in range(4):
            a("s_mov_b32 exec_lo, %d\ns_mov_b32 exec_hi, %d" % (1 << j, 1 << j))
            pieces(TE, j, XE + 8, False)
        a("s_mov_b32 exec_lo, 15\ns_mov_b32 exec_hi, 15")
        for x in self.mark(XE + 8, 14):
            a(x)
        a("buffer_store_dwordx4 %s, v16, %s, s14 offen sc1" % (v(XE + 8, 4), ws))
        a("s_mov_b64 exec, -1")
        a.label(lab)
        a("ds_write_b64 v15, v[140:141]\nds_write_b64 v15, v[142:143] offset:4096")
        a("s_nop 6")
        for j in range(4):
            pieces(T1, j, PC + 4 * j)
            a("buffer_store_dwordx4 %s, v11, %s, s13 offen sc1" % (v(PC + 4 * j, 4), ws))
            if j < 3:
                a("s_add_u32 s13, s13, 0x80000")
        self.stamp()
        fnext(fdp[3])
        assert fdn[0] == 8

        F32 = 16
        FL = 48
        LD, LD2 = 96, 112
        FL2 = T + 64
        DAT, FR, TM = T, T + 32, T + 48
        tab(F32, TQ_F32, 4)
        tab(FR, TQ_OM, 4)
        a("""v_lshrrev_b32 v11, 2, v1
        v_xor_b32 v11, v11, v4
        v_lshlrev_b32 v129, 9, v11
        v_and_b32 v11, 3, v1
        v_lshl_add_u32 v11, v11, 4, v129
        s_lshl_b32 s62, s4, 4
        v_xor_b32 v129, s62, v11
        s_lshl_b32 s62, s60, 15
        s_lshl_b32 s64, s3, 6
        s_add_u32 s62, s62, s64
        s_add_u32 s62, s62, 0x%x
        s_add_u32 s70, s70, %d
        v_add_u32 v6, s70, v2
        v_and_b32 v132, 1, v13
        v_lshl_add_u32 v132, v13, 3, v132
        v_bfe_u32 v133, v1, 3, 1
        v_lshl_add_u32 v132, v133, 1, v132
        v_lshlrev_b32 v132, 6, v132
        v_and_b32 v133, 3, v1
        v_lshl_add_u32 v132, v133, 4, v132
        v_bfe_u32 v133, v1, 2, 1
        v_lshl_add_u32 v132, v133, 3, v132
        v_add_u32 v132, s70, v132
        v_xor_b32 v133, 64, v132""" % (WS_X1, ZB))

        def faddr(dst, kk, t1, t2):
            a("""v_and_b32 v{t2}, 3, v12
            s_lshl_b32 s15, s4, 2
            v_add_u32 v{t1}, s15, v{t2}
            v_and_b32 v{t1}, 7, v{t1}
            v_add_lshl_u32 v{t1}, v{t1}, v{kk}, 1
            v_lshl_add_u32 v{t1}, v{t2}, 4, v{t1}
            v_lshl_add_u32 v{t1}, v13, 6, v{t1}
            v_and_b32 v{t1}, 0x7f, v{t1}
            v_lshl_add_u32 v{t1}, v{t2}, 7, v{t1}
            v_lshl_add_u32 v{t1}, v13, 11, v{t1}
            v_add_u32 v{dst}, {wb}, v{t1}""".format(dst=dst, kk=kk, t1=t1, t2=t2, wb=WB))

        a("v_lshrrev_b32 v%d, 2, v12\nv_lshl_add_u32 v%d, s3, 2, v%d" % (LD, LD, LD))
        faddr(128, LD, LD + 1, LD + 2)
        a("""v_lshl_add_u32 v15, s3, 2, v13
        v_and_b32 v5, 7, v12
        v_xor_b32 v15, v15, v5
        v_lshlrev_b32 v15, 4, v15
        v_lshl_add_u32 v15, v12, 10, v15
        s_and_b32 s63, s3, 1
        s_lshl_b32 s64, s63, 6
        v_xor_b32 v7, s64, v2
        s_lshl_b32 s64, s3, 12
        v_add_u32 v7, s64, v7
        v_xor_b32 v136, 16, v7
        v_xor_b32 v137, 32, v7
        v_xor_b32 v138, 48, v7
        s_mov_b32 s64, 0x80008000
        s_waitcnt lgkmcnt(0)""")
        for i in range(16):
            a(("v_xor_b32 v%d, s64, v%d" if i & 1 else "v_mov_b32 v%d, v%d") % (F32 + 16 + i, F32 + i))
        a("s_add_u32 s63, s62, 0x2000\ns_add_u32 s64, s62, 0x4000\ns_add_u32 s65, s62, 0x6000")
        if fd != 2:
            a("s_waitcnt vmcnt(0)")
        a("s_barrier")
        self.stamp()

        def fread(addr):
            for arr in range(2):
                for pm in range(2):
                    for t in range(8):
                        a("ds_read_u16_d16_hi v%d, v%d offset:%d" % (DAT + 16 * arr + 8 * pm + t, addr, arr * 32768 + pm * 16384 + (t >> 2) * 8192 + (t & 3) * 512))

        def filt(dst, raw):
            for j in range(0, 8, 2):
                a("v_pk_add_f32 %s, %s, %s" % (v(dst + j, 2), v(raw + j, 2), v(raw + 8 + j, 2)))
                a("v_pk_add_f32 %s, %s, %s" % (v(dst + 8 + j, 2), v(raw + 16 + j, 2), v(raw + 24 + j, 2)))
                a("v_pk_add_f32 %s, %s, %s neg_lo:[0,1] neg_hi:[0,1]" % (v(raw + j, 2), v(raw + j, 2), v(raw + 8 + j, 2)))
                a("v_pk_add_f32 %s, %s, %s neg_lo:[0,1] neg_hi:[0,1]" % (v(raw + 16 + j, 2), v(raw + 16 + j, 2), v(raw + 24 + j, 2)))
            ng = " neg_lo:[0,0,1] neg_hi:[0,0,1]"
            for j in range(0, 8, 2):
                dr, di, c, sn_ = v(raw + j, 2), v(raw + 16 + j, 2), v(FR + j, 2), v(FR + 8 + j, 2)
                t1, t2 = v(raw + 8 + j, 2), v(raw + 24 + j, 2)
                a("v_pk_mul_f32 %s, %s, %s" % (t1, di, sn_))
                a("v_pk_mul_f32 %s, %s, %s" % (t2, dr, sn_))
                a("v_pk_fma_f32 %s, %s, %s, %s" % (v(dst + 16 + j, 2), dr, c, t1))
                a("v_pk_fma_f32 %s, %s, %s, %s%s" % (v(dst + 24 + j, 2), di, c, t2, ng))
                a("v_pk_fma_f32 %s, %s, %s, %s%s" % (v(dst + 32 + j, 2), dr, c, t1, ng))
                a("v_pk_fma_f32 %s, %s, %s, %s" % (v(dst + 40 + j, 2), di, c, t2))

        VS = 139

        sentinel = lambda base: self.markcheck(base, 16, VS)

        def x1load(special):
            for i in range(4):
                a("buffer_load_dwordx4 %s, v%d, %s, s%d offen sc1" % (v((LD2 if special else LD) + 4 * i, 4), 129 if special else 11, ws, (56 if special else 62) + i))

        def x1first():
            lab = a.newlabel("NOSP")
            a("s_cmp_lg_u32 s71, 0\ns_cbranch_scc1 " + lab)
            for i in range(4):
                a("s_mov_b32 s%d, 0x%x" % (56 + i, WS_X1 + 64 * 32768 + 0x2000 * i))
            x1load(True)
            a.label(lab)
            x1load(False)

        if fd != 2:
            x1first()
        fread(128)
        a("""v_and_b32 v134, 0x70, v2
        v_lshrrev_b32 v135, 3, v1
        v_lshl_add_u32 v134, v135, 13, v134
        s_lshl_b32 s14, s60, 7
        s_add_u32 s14, s14, 0x%x
        v_mov_b32 v140, s6
        v_mov_b32 v141, s7
        v_mov_b32 v142, s6
        v_mov_b32 v143, s7""" % WS_HX)
        a("s_waitcnt lgkmcnt(0)")
        filt(FL, DAT)
        if fd == 2:
            a("s_waitcnt vmcnt(0)")
            self.diag_delay("d_x1")
            x1first()
        self.stamp()

        def hintx(pos):
            if self.opt.get("hx", 0) == pos:
                lab = a.newlabel("NOH")
                a("s_cmp_lg_u32 s3, 7\ns_cbranch_scc1 " + lab)
                a("buffer_store_dwordx4 v[140:143], v134, %s, s14 offen sc1" % ws)
                a.label(lab)

        def b2(fl, special):
            ld = LD2 if special else LD
            self.poll(lambda: x1load(special), lambda: sentinel(ld), VS, first_issued=True)
            if not special:
                self.stamp()
            for i in range(4):
                a("ds_write_b128 v6, %s offset:%d" % (v(ld + 4 * i, 4), i * 1024))
            for p in range(2):
                for f in range(2):
                    for h in range(2):
                        a("ds_read_b64_tr_b16 %s, v%d offset:%d" % (v(FR + 8 * p + 4 * f + 2 * h, 2), 132 + p, f * 2048 + h * 256))
            if not special:
                hintx(1)
            for p in range(2):
                for f in range(2):
                    a("s_waitcnt lgkmcnt(%d)" % (6 - 4 * p - 2 * f))
                    for tau in range(2):
                        for ri in range(2):
                            d = v(DAT + 16 * p + 8 * ri + 4 * tau, 4)
                            a("%s %s, %s, %s, %s" % (M16, d, v(F32 + ((tau * 2 + ri) * 2 + f) * 4, 4), v(FR + 8 * p + 4 * f, 4), d if f else "0"))
            if not special:
                hintx(2)
            n1_ = " neg_lo:[1,0,0] neg_hi:[1,0,0]"

            def inv(f):
                for p in range(2):
                    for tau in range(2):
                        for ri in range(2):
                            d = v(OUT + 16 * p + 8 * ri + 4 * tau, 4)
                            a("%s %s, %s, %s, %s" % (M16, d, v(FR + 8 * p + 4 * f, 4), v(F32 + ((tau * 2 + ri) * 2 + f) * 4, 4), d if f else "0"))

            OUT = DAT
            for j in range(0, 8, 2):
                Er, Ei, Or, Oi = [v(DAT + 8 * k + j, 2) for k in range(4)]
                Ar, Ai, B1r, B1i, B2r, B2i = [v(fl + 8 * k + j, 2) for k in range(6)]
                k = TM + 8 * ((j >> 1) & 1)
                Pr, Pi, Qr, Qi = [v(k + 2 * i, 2) for i in range(4)]
                a("v_pk_mul_f32 %s, %s, %s" % (Pr, Ar, Er))
                a("v_pk_mul_f32 %s, %s, %s" % (Pi, Ar, Ei))
                a("v_pk_mul_f32 %s, %s, %s" % (Qr, B2r, Er))
                a("v_pk_mul_f32 %s, %s, %s" % (Qi, B2r, Ei))
                a("v_pk_fma_f32 %s, %s, %s, %s%s" % (Pr, Ai, Ei, Pr, n1_))
                a("v_pk_fma_f32 %s, %s, %s, %s" % (Pi, Ai, Er, Pi))
                a("v_pk_fma_f32 %s, %s, %s, %s%s" % (Qr, B2i, Ei, Qr, n1_))
                a("v_pk_fma_f32 %s, %s, %s, %s" % (Qi, B2i, Er, Qi))
                a("v_pk_fma_f32 %s, %s, %s, %s" % (Pr, B1r, Or, Pr))
                a("v_pk_fma_f32 %s, %s, %s, %s" % (Pi, B1r, Oi, Pi))
                a("v_pk_fma_f32 %s, %s, %s, %s" % (Qr, Ar, Or, Qr))
                a("v_pk_fma_f32 %s, %s, %s, %s" % (Qi, Ar, Oi, Qi))
                a("v_pk_fma_f32 %s, %s, %s, %s%s" % (Pr, B1i, Oi, Pr, n1_))
                a("v_pk_fma_f32 %s, %s, %s, %s" % (Pi, B1i, Or, Pi))
                a("v_pk_fma_f32 %s, %s, %s, %s%s" % (Qr, Ai, Oi, Qr, n1_))
                a("v_pk_fma_f32 %s, %s, %s, %s" % (Qi, Ai, Or, Qi))
                for e in range(2):
                    self.cvt(FR + j + e, v(k + e), "-" + v(k + 2 + e))
                    self.cvt(FR + 8 + j + e, v(k + 4 + e), "-" + v(k + 6 + e))
            for p in range(2):
                for f in range(2):
                    for tau in range(2):
                        for ri in range(2):
                            d = v(DAT + 16 * p + 8 * ri + 4 * tau, 4)
                            a("%s %s, %s, %s, %s" % (M16, d, v(FR + 8 * p + 4 * f, 4), v(F32 + ((tau * 2 + ri) * 2 + f) * 4, 4), d if f else "0"))
            if not special:
                hintx(3)
            if special:
                a("s_mov_b64 exec, 0xffff")
            for p in range(2):
                for tau in range(2):
                    o = TM + 8 * p + 4 * tau
                    for r in range(4):
                        self.cvt(o + r, v(DAT + 16 * p + 4 * tau + r), "-" + v(DAT + 16 * p + 8 + 4 * tau + r))
                    for x in self.mark(o, 14):
                        a(x)
                    if special:
                        a("buffer_store_dwordx4 %s, v2, %s, s67 offen offset:%d sc1" % (v(o, 4), ws, tau * 512 + p * 256))
                    else:
                        a("ds_write_b128 v15, %s offset:%d" % (v(o, 4), tau * 16384 + p * 512))
            if special:
                a("s_mov_b64 exec, -1")

        lab = a.newlabel("NOSP")
        a("s_cmp_lg_u32 s71, 0\ns_cbranch_scc1 " + lab)
        a("v_mov_b32 v%d, 32" % TM)
        faddr(128, TM, TM + 1, TM + 2)
        fread(128)
        a("s_waitcnt lgkmcnt(0)")
        filt(FL2, DAT)
        self.poll(lambda: x1load(False), lambda: sentinel(LD), VS, first_issued=True)
        b2(FL2, True)
        skip = a.newlabel("B2GO")
        self.b2_skip = skip
        a("s_branch " + skip)
        a.label(lab)
        sp = self.poll
        first = [True]

        def poll_then_label(*args, **kw):
            sp(*args, **kw)
            if first[0]:
                a.label(skip)
                first[0] = False
        self.poll = poll_then_label
        b2(FL, False)
        self.poll = sp
        a("s_waitcnt lgkmcnt(0)\ns_barrier")
        self.stamp()
        ST = LD
        for i in range(4):
            a("ds_read_b128 %s, v%d offset:%d" % (v(ST + 4 * i, 4), 135 + i if i else 7, i * 1024))
        for i in range(4):
            a("s_waitcnt lgkmcnt(%d)" % (3 - i))
            a("buffer_store_dwordx4 %s, v3, %s, s66 offen sc1" % (v(ST + 4 * i, 4), ws))
            if i < 3:
                a("s_add_u32 s66, s66, 0x10000")
        self.stamp()
        lab = a.newlabel("NOEP")
        a("s_or_b32 s56, s60, s3\ns_cbranch_scc1 " + lab)
        a("v_mov_b32 v%d, s8\nv_mov_b32 v%d, s9\nv_mov_b32 v%d, 0\ns_mov_b64 exec, 1" % (TM, TM + 1, TM + 2))
        a("buffer_store_dwordx2 %s, v%d, %s, 0 offen offset:%d" % (v(TM, 2), TM + 2, ws, WS_EB))
        a("s_mov_b64 exec, -1")
        a.label(lab)

        G16 = F16
        tab(RA, 24, 8)
        tab(CS, TQ_CS, 8)
        tab(TWX, TQ_TW3, 4)
        a("""s_lshl_b32 s62, s60, 15
        s_lshl_b32 s63, s3, 12
        s_add_u32 s62, s62, s63
        s_add_u32 s62, s62, 0x%x
        v_bfe_u32 v5, v1, 2, 1
        v_lshlrev_b32 v5, 1, v5
        v_xor_b32 v5, v5, v13
        v_lshlrev_b32 v5, 3, v5
        v_lshl_add_u32 v5, v12, 5, v5
        s_add_u32 s63, s63, %d
        v_add_u32 v5, s63, v5
        v_bfe_u32 v6, v1, 3, 1
        v_lshlrev_b32 v6, 4, v6
        v_xor_b32 v6, v6, v2
        v_add_u32 v6, s63, v6
        s_lshl_b32 s64, s3, 7
        s_add_u32 s64, s64, s60
        s_lshl_b32 s64, s64, 11
        s_mov_b32 s56, 0.5
        s_mov_b32 s57, 0.5
        s_cmp_eq_u32 s3, 0
        s_cselect_b32 s68, -2, -1
        s_mov_b32 s69, s68
        s_lshr_b32 s63, s60, 5
        s_and_b32 s65, s60, 1
        s_lshl1_add_u32 s63, s63, s65
        s_bfe_u32 s65, s60, 0x40001
        s_lshl4_add_u32 s63, s63, s65
        v_and_b32 v11, 7, v1
        v_xor_b32 v11, s63, v11
        v_lshlrev_b32 v11, 4, v11
        v_lshl_add_u32 v11, v4, 10, v11
        s_mov_b32 s63, 0x%x
        s_mov_b32 s65, 0x%x""" % (WS_X2, WB, WS_X2S, WS_X2S + 4096))
        RE, IM, ZP, XS = T + 16, T + 32, T + 48, LD2

        def radix_inv(x):
            for f in range(4):
                for ri in range(2):
                    d = v(RE + 16 * ri, 16)
                    a("%s %s, %s, %s, %s" % (M32, d, v(RA + 16 * ri + 4 * f, 4), v(x + 4 * f, 4), d if f else "0"))

        def average():
            a("s_mov_b32 exec_lo, 1\ns_mov_b32 exec_hi, 1")
            for j in range(0, 8, 2):
                a("v_pk_add_f32 %s, %s, %s" % (v(RE + j, 2), v(RE + j, 2), v(RE + 8 + j, 2)))
                a("v_pk_add_f32 %s, %s, %s neg_lo:[0,1] neg_hi:[0,1]" % (v(IM + j, 2), v(IM + j, 2), v(IM + 8 + j, 2)))
            for j in range(0, 8, 2):
                a("v_pk_mul_f32 %s, %s, s[56:57]" % (v(RE + j, 2), v(RE + j, 2)))
                a("v_pk_mul_f32 %s, %s, s[56:57]" % (v(IM + j, 2), v(IM + j, 2)))

        xsload = lambda: [a("buffer_load_dwordx4 %s, v11, %s, s%d offen offset:%d sc1" % (v(XS + 4 * f, 4), ws, 65 if f >> 1 else 63, (f & 1) * 2048)) for f in range(4)]
        x2load = lambda: [a("buffer_load_dwordx4 %s, v2, %s, s62 offen offset:%d sc1" % (v(XF + 4 * f, 4), ws, f * 1024)) for f in range(4)]
        def extra_tile():
            radix_inv(XS)
            average()
            for r in range(8):
                self.cvt(ZP + 16 + r, v(RE + r), v(IM + r))
            a("ds_write_b128 v130, %s offset:4096\nds_write_b128 v130, %s offset:%d" % (v(ZP + 16, 4), v(ZP + 20, 4), 4096 + 16384))
            a("s_mov_b64 exec, -1")

        lab = a.newlabel("NOX")
        lab2 = a.newlabel("X2GO")
        a("s_cmp_lg_u32 s3, %d\ns_cbranch_scc1 %s" % (XW3, lab))
        xsload()
        a("s_waitcnt vmcnt(0)")
        sentinel(XS)
        a("v_cmp_ne_u32 vcc, 0, v%d" % VS)
        late = a.newlabel("XSLATE")
        a("s_mov_b32 s15, 1\ns_cbranch_vccnz " + late)
        a("s_mov_b32 s15, 0")
        x2load()
        a("s_waitcnt lgkmcnt(0)")
        extra_tile()
        a("s_branch " + lab2)
        a.label(lab)
        a("s_mov_b32 s15, 0")
        if self.opt.get("k7", 1):
            a("s_cmp_eq_u32 s61, 7\ns_cbranch_scc1 " + late)
        a("s_waitcnt vmcnt(0)")
        self.diag_delay("d_x2")
        if self.opt.get("d_x27"):
            a("s_cmp_lg_u32 s3, 7\ns_cbranch_scc1 " + late)
            self.diag_delay("d_x27")
        a.label(late)
        x2load()
        a("s_waitcnt lgkmcnt(0)")
        a.label(lab2)
        self.stamp()
        self.poll(x2load, lambda: sentinel(XF), VS, first_issued=True)
        self.stamp()
        radix_inv(XF)
        lab = a.newlabel("NOAVG")
        a("s_nop 10")
        a("s_cmp_lg_u32 s3, 0\ns_cbranch_scc1 " + lab)
        average()
        a("s_mov_b64 exec, -1")
        a.label(lab)
        for r in range(8):
            self.cvt(ZP + r, v(RE + r), v(IM + r))
        a("ds_write_b128 v9, %s\nds_write_b128 v9, %s offset:16384" % (v(ZP, 4), v(ZP + 4, 4)))
        for r in range(8, 16):
            self.cvt(ZP + r, v(RE + r), "-" + v(IM + r))
        a("s_mov_b64 exec, s[68:69]")
        a("ds_write_b128 v10, %s\nds_write_b128 v10, %s offset:16384" % (v(ZP + 8, 4), v(ZP + 12, 4)))
        a("s_mov_b64 exec, -1")
        lab = a.newlabel("NOX")
        a("s_cmp_eq_u32 s15, 0\ns_cbranch_scc1 " + lab)
        self.poll(xsload, lambda: sentinel(XS), VS)
        extra_tile()
        a.label(lab)
        a("s_waitcnt lgkmcnt(0)\ns_barrier")
        self.stamp()
        ZR, ZF = T + 48, T
        for i in range(8):
            a("ds_read_b64 %s, v8 offset:%d" % (v(ZR + 2 * i, 2), (i >> 2) * 256 + (i & 3) * 512))
        for tau in range(2):
            a("s_waitcnt lgkmcnt(%d)" % (4 - 4 * tau))
            for m in range(2):
                for j in range(2):
                    b_ = ZR + 8 * tau + 4 * j
                    a("v_pk_mov_b32 %s, %s, %s op_sel:[%d,%d]" % (v(ZF + 8 * m + 4 * tau + 2 * j, 2), v(b_, 2), v(b_ + 2, 2), m, m))
        for m in range(2):
            t = T1 + 16 * m
            for tau in range(2):
                a("%s %s, %s, %s, 0" % (M16, v(t + 4 * tau, 4), v(ZF + 8 * m + 4 * tau, 4), v(G16, 4)))
                a("%s %s, %s, %s, 0" % (M16, v(t + 8 + 4 * tau, 4), v(ZF + 8 * m + 4 * tau, 4), v(G16 + 4, 4)))
        O4 = T + 80
        for m in range(2):
            t = T1 + 16 * m
            twiddle(t, [TW0, TWX], T + 64, True)
            u = U + 8 * m
            for j in range(8):
                self.cvt(u + j, v(t + 2 * j), v(t + 2 * j + 1))
            stage_cs(u, u + 4, O4 + 16 * m, True)
        fl = self.opt.get("outflag", "")
        for m in range(2):
            for ri in range(2):
                q = 2 * m + ri
                for tau in range(2):
                    o = O4 + 16 * m + 8 * ri + 4 * tau
                    d = T + 4 * q + 2 * tau
                    self.cvt(d, v(o), v(o + 1))
                    self.cvt(d + 1, v(o + 2), v(o + 3))
                    a("ds_write_b64 v5, %s offset:%d" % (v(d, 2), q * 1024 + tau * 512))
            for ri in range(2):
                q = 2 * m + ri
                a("ds_read_b128 %s, v6 offset:%d" % (v(T1 + 4 * q, 4), q * 1024))
        for q in range(4):
            a("s_add_u32 s65, s64, 0x%x" % ((q >> 1) * 64 * 2048 + (q & 1) * 1024 * 2048))
            a("s_waitcnt lgkmcnt(%d)" % (7 if q == 0 else 6 if q == 1 else 3 - q))
            a("buffer_store_dwordx4 %s, v2, %s, s65 offen offset:1024 %s" % (v(T1 + 4 * q, 4), s(self.rOUT, 4), fl))
        self.end()


TQ_CS, TQ_TW0, TQ_TW1, TQ_TW3, TQ_F32, TQ_OM = 0, 6, 8, 12, 16, 20


def make_table():
    import numpy as np
    from emu import bf16_rne
    l = np.arange(64)
    c, g = l & 15, l >> 4
    pk = lambda x, y: (bf16_rne(np.float32(x)) | (bf16_rne(np.float32(y)) << 16)).astype(np.uint32)
    fl = lambda x: np.float32(x).view(np.uint32)
    cs = lambda a_: (np.cos(2 * np.pi * a_), np.sin(2 * np.pi * a_))
    idx2 = [16 * (t >> 2) + 4 * g + (t & 3) for t in range(8)]
    R = []
    C = [[cs((c + 16 * tau) * idx2[t] / 32.0) for t in range(8)] for tau in range(2)]
    for k, sg in ((0, 1), (1, 1), (1, -1)):
        for tau in range(2):
            for j in range(4):
                R.append(pk(sg * C[tau][2 * j][k], sg * C[tau][2 * j + 1][k]))

    def tw(angs):
        for k in range(2):
            for x in angs:
                R.append(fl(cs(x)[k]))
    tw([c * idx2[r] / 512.0 for r in range(4)])
    tw([(c + 16) * idx2[r] / 512.0 for r in range(4)])
    H = [cs(c * idx2[x] / 16.0) for x in range(4)]
    R += [pk(H[0][0], H[1][0]), pk(H[2][0], H[3][0]), pk(H[0][1], H[1][1]), pk(H[2][1], H[3][1])]
    R += [pk(-H[0][1], -H[1][1]), pk(-H[2][1], -H[3][1]), pk(H[0][0], H[1][0]), pk(H[2][0], H[3][0])]
    tw([c * idx2[4 + r] / 512.0 for r in range(4)])
    sc = 2.0 ** -20
    R += [pk(sc * H[x][0], -sc * H[x][1]) for x in range(4)] + [pk(sc * H[x][1], sc * H[x][0]) for x in range(4)]
    R += [pk(C[0][t][0], C[0][t][1]) for t in range(8)] + [pk(-C[0][t][1], C[0][t][0]) for t in range(8)]
    for k in range(2):
        for t in range(8):
            R.append(fl(cs(idx2[t] / 64.0)[k]))
    R = np.array(R, np.uint32)
    assert R.shape == (96, 64)
    return np.ascontiguousarray(R.reshape(24, 4, 64).transpose(0, 2, 1)).reshape(-1)


def _sym_add(line, emuval=0):
    ins = Ins(line.rsplit(",", 1)[0] + ", %d" % emuval)
    ins.line = line
    return ins


def generate(stamps=False, opt=None):
    g = G(stamps, opt)
    a = g.build()
    nv = a.maxreg("v") + 1
    ns = a.maxreg("s") + 1
    tb = make_table()
    body = a.render() + ".p2align 8\n.type TABLE,@object\nTABLE:\n"
    for i in range(0, len(tb), 8):
        body += ".long " + ",".join("0x%08x" % x for x in tb[i:i + 8]) + "\n"
    body += ".size TABLE, %d\n" % (4 * len(tb))
    txt = wrap(body, 256, 512, LDS_SIZE, nv, ns)
    return a, txt


if __name__ == "__main__":
    stamps = "--stamps" in sys.argv
    opt = {}
    for x in sys.argv[1:]:
        if x.startswith("--") and "=" in x:
            k, val = x[2:].split("=", 1)
            opt[k] = int(val) if val.lstrip("-").isdigit() else val
    a, txt = generate(stamps, opt)
    out = [x for x in sys.argv[1:] if not x.startswith("--")]
    open(out[0] if out else "k.s", "w").write(txt)
    print("instructions:", sum(1 for k, _ in a.items if k == "i"), "vgpr", a.maxreg("v") + 1, "sgpr", a.maxreg("s") + 1)
```

```python
import sys
from asmlib import *
from common import wrap

WS_EA = 0x0
WS_EB = 0x80
WS_FLAG = 0x1000
WS_RED = 0x10000
RED_STRIDE = 0x9000
WS_X2S = 0x60000
WS_FB = 0x68000
WS_PART = 0x80000
PLINE = 2176
WS_H1 = 0x1000
WS_H2 = 0x190000
WS_HX = 0x1b0000
WS_PQ = 0x202000
WS_X2 = 0x403000
WS_X1 = 0x604000
WS_STAMP = 0x1000000
WS_SIZE = 0x10000000
LDS_SIZE = 160 * 1024
TAGC_LO, TAGC_HI = 0x1E3779B1, 0x05EBCA6B
POLL_LIMIT = 1 << 18


class G:
    def __init__(self, stamps=False, opt=None):
        self.a = Asm()
        self.stamps = stamps
        self.opt = opt or {}
        self.nst = 0

    sW, sXCD, sI = 3, 4, 5
    sTL, sTH = 6, 7
    sE = 8
    sM16 = 10
    sCNT = 12
    pXA, pWQ, pWO, pXB, pWR, pWI, pOUT, pDBG, pWS = 16, 18, 20, 22, 24, 26, 28, 30, 32
    rWS, rOUT, rA, rB, rC = 36, 40, 44, 48, 52
    sT = 56
    sST = 72
    vL = 1

    def stamp(self):
        pr = self.opt.get("probe")
        if pr:
            if "%s:%d" % (self.role, self.nst) in pr.split("+"):
                self.a("s_memrealtime s[76:77]\ns_waitcnt lgkmcnt(0)")
            self.nst += 1
            return
        if not self.stamps:
            return
        k = self.nst
        assert k < 15
        self.a("%s %s\ns_waitcnt lgkmcnt(0)" % ("s_memtime" if self.opt.get("cyc") else "s_memrealtime", s(self.sST + 2 * k, 2)))
        self.nst += 1

    def end(self, skip_loader=False):
        a = self.a
        if self.opt.get("probe"):
            self.stamp()
            lab = a.newlabel("SPIN")
            a("s_waitcnt lgkmcnt(0)\ns_sub_u32 s76, s76, s72\ns_lshl_b32 s76, s76, 2\ns_add_u32 s76, s76, 2000\ns_min_u32 s76, s76, 20000")
            a.label(lab)
            a("s_memrealtime s[74:75]\ns_waitcnt lgkmcnt(0)\ns_sub_u32 s74, s74, s72\ns_cmp_lt_u32 s74, s76\ns_cbranch_scc1 %s" % lab)
        if self.opt.get("fixdur"):
            lab, done = a.newlabel("SPIN"), a.newlabel("SPD")
            if self.opt.get("fixwg", -1) >= 0:
                a("s_cmp_lg_u32 s2, %d\ns_cbranch_scc1 %s" % (self.opt["fixwg"], done))
            a.label(lab)
            a("s_memrealtime s[74:75]\ns_waitcnt lgkmcnt(0)\ns_sub_u32 s74, s74, s72\ns_cmp_lt_u32 s74, %d\ns_cbranch_scc1 %s" % (self.opt["fixdur"], lab))
            a.label(done)
        if self.stamps:
            self.stamp()
            if self.opt.get("fine") and skip_loader:
                lab = a.newlabel("NODUMP")
                a("s_cmp_ge_u32 s3, 4\ns_cbranch_scc1 " + lab)
                self.dump_stamps()
                a.label(lab)
            else:
                self.dump_stamps()
        a("s_endpgm")

    def dump_stamps(self):
        a = self.a
        a("s_mov_b64 exec, 1")
        a("s_lshl3_add_u32 s56, s5, s4\ns_lshl_b32 s56, s56, 3\ns_add_u32 s56, s56, s%d\ns_lshl_b32 s56, s56, 6\ns_add_u32 s56, s56, 0x%x" % (self.sW, WS_STAMP))
        a("v_mov_b32 v2, 0")
        for k in range(self.nst):
            a("v_mov_b32 v3, s%d\nbuffer_store_dword v3, v2, %s, s56 offen offset:%d" % (self.sST + 2 * k, s(self.rWS, 4), 4 * k))
        a("v_mov_b32 v3, %d\nbuffer_store_dword v3, v2, %s, s56 offen offset:60" % (self.nst, s(self.rWS, 4)))
        a("s_mov_b64 exec, -1")

    def srd(self, r, p, size, add=None):
        a = self.a
        if add is None:
            a("s_mov_b32 s%d, s%d\ns_mov_b32 s%d, s%d" % (r, p, r + 1, p + 1))
        else:
            a("s_add_u32 s%d, s%d, %s\ns_addc_u32 s%d, s%d, 0" % (r, p, add, r + 1, p + 1))
        a("s_mov_b32 s%d, 0x%x\ns_mov_b32 s%d, 0x20000" % (r + 2, size, r + 3))

    def tags(self):
        self.a("""s_add_u32 s8, s8, 0x%x
        s_addc_u32 s9, s9, 0x%x
        s_and_b32 s6, s8, 0xbfffbfff
        s_and_b32 s7, s9, 0xbfffbfff
        s_bitcmp1_b32 s8, 0
        s_cselect_b32 s30, 0x10001, 0
        s_xor_b32 s31, s30, 0x10000
        s_xor_b32 s0, s30, 0x10001
        s_xor_b32 s1, s30, 1""" % (TAGC_LO, TAGC_HI))

    LT = [30, 31, 0, 1]

    def mark(self, base, vmask):
        return ["v_and_or_b32 v%d, v%d, v%d, s%d" % (base + e, base + e, vmask, self.LT[e]) for e in range(4)]

    def markcheck(self, base, n, vacc):
        a = self.a
        a("v_xor_b32 v%d, s%d, v%d" % (vacc, self.LT[0], base))
        for i in range(1, n):
            a("v_bitop3_b32 v%d, v%d, v%d, s%d bitop3:0xf6" % (vacc, vacc, base + i, self.LT[i & 3]))
        a("v_and_b32 v%d, 0x10001, v%d" % (vacc, vacc))

    def poll(self, issue, check, vacc, good=0, first_issued=False, between=None):
        a = self.a
        top, done = a.newlabel("POLL"), a.newlabel("DONE")
        chk = a.newlabel("CHK")
        a("s_mov_b32 s%d, 0x%x" % (self.sCNT, POLL_LIMIT))
        if first_issued:
            a("s_branch " + chk)
        a.label(top)
        issue()
        if first_issued:
            a.label(chk)
        a("s_waitcnt vmcnt(0)")
        check()
        if good == 0:
            a("v_cmp_ne_u32 vcc, 0, v%d" % vacc)
        else:
            a("v_cmp_eq_u32 vcc, -1, v%d" % vacc)
        a("s_cbranch_vccz " + done)
        a("s_sleep %d" % self.opt.get("sl", 1))
        a("s_sub_u32 s%d, s%d, 1" % (self.sCNT, self.sCNT))
        a("s_cbranch_scc0 " + top)
        a.label(done)

    def diag_delay(self, name):
        n = self.opt.get(name, 0)
        if n:
            self.a("s_sleep %d" % n)

    def hintpoll(self, vaddr, ssoff, vd, vacc):
        a = self.a
        self.poll(lambda: a("buffer_load_dwordx2 %s, v%d, %s, s%d offen sc1" % (v(vd, 2), vaddr, s(self.rWS, 4), ssoff)),
                  lambda: a("v_xor_b32 v%d, s6, v%d\nv_bitop3_b32 v%d, v%d, v%d, s7 bitop3:0xf6" % (vacc, vd, vacc, vacc, vd + 1)), vacc)

    def tagcheck(self, pieces, vacc):
        a = self.a
        first = True
        for p in pieces:
            if first:
                a("v_xor_b32 v%d, s%d, v%d" % (vacc, self.sTL, p + 1))
                first = False
            else:
                a("v_bitop3_b32 v%d, v%d, v%d, s%d bitop3:0xf6" % (vacc, vacc, p + 1, self.sTL))
            a("v_bitop3_b32 v%d, v%d, v%d, s%d bitop3:0xf6" % (vacc, vacc, p + 3, self.sTH))

    def touch_pages(self, vt, vd):
        a = self.a
        a("""v_and_b32 v{t}, 3, v1
        v_mul_u32_u24 v{t}, 0x201000, v{t}
        v_add_u32 v{t}, 0x200000, v{t}
        v_and_b32 v{d}, 3, v1
        v_cmp_eq_u32 vcc, 3, v{d}
        v_mov_b32 v{d}, 0x810000
        v_cndmask_b32 v{t}, v{t}, v{d}, vcc
        buffer_load_dword v{d}, v{t}, {ws}, 0 offen
        v_and_b32 v{t}, 3, v1
        v_lshlrev_b32 v{t}, 20, v{t}
        buffer_load_dword v{d2}, v{t}, {out}, 0 offen""".format(t=vt, d=vd, d2=vd + 1, ws=s(self.rWS, 4), out=s(self.rOUT, 4)))

    def prefetch_code(self, start, stop, vtmp):
        a = self.a
        lab = a.newlabel("PC")
        a("s_getpc_b64 s[56:57]")
        a.label(lab)
        a.items.append(("i", _sym_add("s_sub_u32 s56, s56, %s-%s" % (lab, start))))
        a("s_subb_u32 s57, s57, 0")
        a.items.append(("i", _sym_add("s_mov_b32 s58, %s-%s-4" % (stop, start))))
        a("v_lshlrev_b32 v%d, 7, v%d" % (vtmp, self.vL))
        a("v_min_u32 v%d, s58, v%d" % (vtmp, vtmp))
        a("global_load_dword v0, v%d, s[56:57]" % vtmp)

    def build(self):
        a = self.a
        a("s_cmp_ge_u32 s2, 256\ns_cbranch_scc1 EXIT")
        a("s_load_dwordx16 s[16:31], s[0:1], 0\ns_load_dwordx2 s[32:33], s[0:1], 64")
        if self.opt.get("fixdur") or self.opt.get("probe"):
            a("s_memrealtime s[72:73]\ns_memrealtime s[76:77]")
            self.nst = 1
        if self.stamps:
            a("%s %s" % ("s_memtime" if self.opt.get("cyc") else "s_memrealtime", s(self.sST, 2)))
            self.nst = 1
        a("""v_lshrrev_b32 v2, 6, v0
        v_and_b32 v1, 63, v0
        s_and_b32 s4, s2, 7
        v_readfirstlane_b32 s3, v2
        s_lshr_b32 s5, s2, 3
        s_add_u32 s5, s5, %d
        s_and_b32 s5, s5, 31
        s_mov_b32 s10, 0xffff0000
        s_mov_b32 s11, 0xffff0000
        s_cmp_ge_u32 s5, 24
        s_cbranch_scc1 ROLE_B
        NOA_HOOK
        s_cmp_ge_u32 s3, 4
        s_cbranch_scc1 LOADER
        s_branch COMPUTE""".replace("NOA_HOOK", "s_branch NOA" if self.opt.get("noa") else "") % self.opt.get("rot", 24))
        if self.opt.get("noa"):
            a.label("NOA")
            a("s_waitcnt lgkmcnt(0)")
            self.srd(self.rWS, self.pWS, WS_SIZE)
            n0 = self.nst
            self.end()
            self.nst = n0
        a.label("EXIT")
        a("s_endpgm")
        n0 = self.nst
        self.loader()
        self.nst = n0
        self.compute()
        self.nst = n0
        self.role_b()
        a.label("CODE_END")
        bad = a.check_branches()
        assert not bad, bad
        return a

    def gemm_params(self, order=False):
        a = self.a
        a("""s_lshr_b32 s60, s4, 1
        s_and_b32 s63, s5, 3
        s_lshl2_add_u32 s60, s60, s63
        s_and_b32 s64, s4, 1
        s_bfe_u32 s65, s5, 0x20002
        s_lshl2_add_u32 s61, s64, s65
        s_lshl1_add_u32 s66, s64, s65
        s_cmp_ge_u32 s5, 16
        s_cselect_b32 s61, s66, s61""")
        if not order:
            return
        ORD = {
            "s4": [[(L + j) & 3 for j in range(4)] + [4 + ((L + j) & 3) for j in range(4)] for L in range(4)],
            "s4r": [[4 + ((L + j) & 3) for j in range(4)] + [(L + j) & 3 for j in range(4)] for L in range(4)],
            "s8": [[(2 * L + j) & 7 for j in range(8)] for L in range(4)],
            "s8o": [[(2 * L + 1 + j) & 7 for j in range(8)] for L in range(4)],
            "s26": [[L & 1, 1 - (L & 1)] + [2 + ((L + j) & 3) for j in range(4)] + [6 + (L & 1), 7 - (L & 1)] for L in range(4)],
            "s26q": [[6 + (L >> 1), 7 - (L >> 1)] + [2 + ((L + j) & 3) for j in range(4)] + [0, 1] for L in range(4)],
            "s143": [[0] + [1 + ((L + j) & 3) for j in range(4)] + [5 + ((L + j) % 3) for j in range(3)] for L in range(4)],
            "s1": [list(range(8))] * 4,
            "s1r": [list(range(7, -1, -1))] * 4,
        }
        pk = lambda o: sum(x << (4 * j) for j, x in enumerate(o))
        K = [pk(o) for o in ORD[self.opt.get("ok", "s4")]]
        Q = [pk(o) for o in ORD[self.opt.get("oq", "s4")]]
        a("""s_cselect_b32 s66, s65, 0
        s_add_u32 s62, s63, s65
        s_add_u32 s62, s62, s66
        s_cmp_ge_u32 s5, 16""")
        for j, r in enumerate((70, 71, 66, 67)):
            a("s_mov_b32 s%d, 0x%x\ns_cselect_b32 s%d, 0x%x, s%d" % (r, K[j], r, Q[j], r))
        a("""s_bitcmp1_b32 s62, 0
        s_cselect_b32 s70, s71, s70
        s_cselect_b32 s66, s67, s66
        s_bitcmp1_b32 s62, 1
        s_cselect_b32 s70, s66, s70""")

    def loader(self):
        a = self.a
        a.label("LOADER")
        self.role = "L"
        self.gemm_params(True)
        vX, vW = 4, 8
        a("""s_sub_u32 s58, s3, 4
        s_lshl_b32 s63, s61, 7
        s_add_u32 s63, s63, 1024
        s_lshl_b32 s64, s61, 8
        s_cmp_ge_u32 s5, 16
        s_cselect_b32 s63, s64, s63
        s_movk_i32 s64, 128
        s_cselect_b32 s64, s64, 1024""")
        a("""v_lshrrev_b32 v2, 3, v1
        v_lshrrev_b32 v3, 4, v1
        v_and_b32 v12, 7, v1
        v_xor_b32 v12, v12, v3
        v_lshlrev_b32 v12, 4, v12
        v_lshl_add_u32 v12, v2, 10, v12
        s_lshl_b32 s65, s58, 15
        v_add_u32 v4, s65, v12
        v_xor_b32 v5, 64, v4
        v_add_u32 v5, 0x1c00, v5
        v_add_u32 v6, 0x3800, v4
        v_add_u32 v7, 0x3800, v5""")
        a("""v_bfe_u32 v12, v1, 2, 2
        v_xor_b32 v12, v12, v3
        v_lshrrev_b32 v13, 1, v12
        v_mul_u32_u24 v13, s64, v13
        v_and_b32 v14, 1, v12
        v_lshl_add_u32 v13, v14, 6, v13
        v_and_b32 v14, 3, v1
        v_lshl_add_u32 v13, v14, 4, v13
        v_mul_u32_u24 v15, 0xc00, v3
        s_mul_i32 s65, s58, 0xc000
        s_add_u32 s65, s65, s63
        v_add3_u32 v8, v13, v15, s65
        v_add_u32 v9, 0x2c00, v8
        v_add_u32 v10, 0x5800, v8
        v_add_u32 v11, 0x8400, v8
        s_lshl_b32 s59, s58, 12
        s_lshl_b32 s63, s60, 17
        s_waitcnt lgkmcnt(0)""")
        self.srd(self.rA, self.pXA, 0x20000, add="s63")
        self.srd(self.rB, self.pWQ, 512 * 3072)

        def issue(c):
            slot = (c & 3) * 32768
            a("s_bfe_u32 s62, s70, 0x%x" % (0x30000 + 4 * c))
            a("s_add_u32 m0, s59, %d" % slot)
            a("s_lshl_b32 s63, s62, 7")
            for j in range(4):
                a("buffer_load_dwordx4 v%d, %s, s63 offen offset:%d %s lds" % (vX + j, s(self.rA, 4), j * 1024, "nt" if self.opt.get("nta") else ""))
            a("s_add_u32 m0, s59, %d" % (slot + 16384))
            a("s_mul_i32 s64, s62, 0x30000")
            for j in range(4):
                a("buffer_load_dwordx4 v%d, %s, s64 offen offset:%d lds" % (vW + j, s(self.rB, 4), j * 1024))

        WSLOT = [4, 0, 1, 2]

        def issue_wo(n):
            slot = WSLOT[n] * 32768
            a("s_lshl_b32 s63, s68, 17")
            a("s_add_u32 m0, s69, %d" % slot)
            a("s_add_u32 s68, s68, 1")
            for j in range(4):
                a("buffer_load_dwordx4 v%d, %s, s63 offen offset:%d lds" % (16 + j, s(self.rC, 4), j * 1024))
            a("s_add_u32 m0, s69, %d" % (slot + 4096))
            a("s_add_u32 s63, s63, 0x4000")
            for j in range(4):
                a("buffer_load_dwordx4 v%d, %s, s63 offen offset:%d lds" % (16 + j, s(self.rC, 4), j * 1024))
            a("s_and_b32 s68, s68, 3")

        def read_wo(n):
            ad, off = {4: (0, 0), 0: (14, 0), 1: (14, 32768), 2: (15, 0)}[WSLOT[n]]
            for h in range(8):
                r = 128 + 32 * n + 4 * h
                a("ds_read_b64_tr_b16 %s, v%d offset:%d" % (v(r, 2), ad, off + h * 4096))
                a("ds_read_b64_tr_b16 %s, v%d offset:%d" % (v(r + 2, 2), ad, off + h * 4096 + 2048))

        self.read_wo = read_wo
        fine = self.opt.get("fine")
        w0 = self.opt.get("wo0", 8)
        groups = []

        def iss(c):
            issue(c)
            groups.append(c)
            if c == w0:
                issue_wo(0)
                groups.append("w")
            if c == self.opt.get("qt", -1):
                qtouch()
            if c == self.opt.get("qwo", -1):
                qwo()

        gsz = lambda g: {"t": 1, "u": 2}.get(g, 8)
        after = lambda c: sum(gsz(g) for g in groups[groups.index(c) + 1:])

        def waitc(c):
            a("s_waitcnt vmcnt(%d)" % after(c))

        def qtouch():
            a("""s_mov_b64 s[40:41], s[18:19]
            s_cmp_ge_u32 s5, 16
            s_cselect_b32 s42, 0x180000, 0
            s_mov_b32 s43, 0x20000
            s_and_b32 s13, s5, 7
            s_lshl2_add_u32 s13, s13, s58
            s_lshl_b32 s13, s13, 3
            s_add_u32 s13, s13, 256
            s_mul_i32 s13, s13, 3072
            s_and_b32 s14, s4, 1
            s_lshl_b32 s14, s14, 9
            s_add_u32 s13, s13, s14
            s_add_u32 s13, s13, 1024
            v_mul_u32_u24 v22, 0xc00, v2
            v_bfe_u32 v23, v1, 2, 1
            v_lshl_add_u32 v22, v23, 10, v22
            v_and_b32 v23, 3, v1
            v_lshl_add_u32 v22, v23, 7, v22
            buffer_load_dword v120, v22, s[40:43], s13 offen""")
            groups.append("t")

        def qwo():
            a("""s_mov_b64 s[72:73], s[20:21]
            s_cmp_ge_u32 s5, 16
            s_cselect_b32 s74, 0x80000, 0
            s_mov_b32 s75, 0x20000
            s_and_b32 s13, s5, 7
            s_lshl2_add_u32 s13, s13, s58
            s_lshl_b32 s13, s13, 14
            s_add_u32 s14, s13, 0x2000
            v_lshlrev_b32 v22, 7, v1
            buffer_load_dword v121, v22, s[72:75], s13 offen
            buffer_load_dword v122, v22, s[72:75], s14 offen""".replace("s[72:73]", "s[24:25]").replace("s74", "s26").replace("s75", "s27").replace("s[72:75]", "s[24:27]"))
            groups.append("u")

        if fine:
            self.stamp()
        issue(0)
        groups.append(0)
        a("s_load_dwordx2 s[8:9], s[32:33], %d" % WS_EA)
        self.srd(self.rC, self.pWO, 512 * 1024)
        a("s_cmp_ge_u32 s5, 16\ns_cselect_b32 s54, 0, s54")
        a("""s_and_b32 s68, s5, 3
        s_lshl_b32 s69, s58, 13
        v_lshlrev_b32 v16, 6, v12
        v_lshl_add_u32 v16, v14, 4, v16
        v_lshl_add_u32 v16, v3, 10, v16
        s_lshl_b32 s65, s58, 15
        s_lshr_b32 s66, s5, 2
        s_lshl_b32 s66, s66, 8
        s_add_u32 s65, s65, s66
        v_add_u32 v16, s65, v16
        v_add_u32 v17, 0xc00, v16
        v_add_u32 v18, 0x1800, v16
        v_add_u32 v19, 0x2400, v16
        v_bfe_u32 v14, v1, 2, 2
        v_lshrrev_b32 v15, 5, v1
        v_lshl_add_u32 v15, v15, 2, v14
        v_xor_b32 v14, s58, v14
        v_lshlrev_b32 v14, 6, v14
        v_lshl_add_u32 v14, v15, 8, v14
        v_and_b32 v15, 1, v1
        v_lshl_add_u32 v14, v15, 5, v14
        v_bfe_u32 v15, v1, 4, 1
        v_lshl_add_u32 v14, v15, 4, v14
        v_bfe_u32 v15, v1, 1, 1
        v_lshl_add_u32 v14, v15, 3, v14
        v_add_u32 v15, 0x10000, v14
        v_add_u32 v0, 0x20000, v14""")
        if self.opt.get("qt", -1) == 0:
            qtouch()
        if w0 == 0:
            issue_wo(0)
            groups.append("w")
        else:
            iss(1)
        if fine:
            self.stamp()
        self.srd(self.rWS, self.pWS, WS_SIZE)
        self.srd(self.rOUT, self.pOUT, 2048 * 2048)
        a("s_waitcnt lgkmcnt(0)")
        self.tags()
        nxt = 1 if w0 == 0 else 2
        for c in range(0, 6):
            waitc(c)
            if fine and c:
                self.stamp()
            a("s_barrier")
            if c == 0 or (fine and c in (2, 4)):
                self.stamp()
            while nxt <= c + 2:
                iss(nxt)
                nxt += 1
        self.qwait = [after(6)]
        a("s_cmp_ge_u32 s5, 16\ns_cbranch_scc1 QLOADER")
        n0 = self.nst
        for c in (6, 7):
            waitc(c)
            if fine:
                self.stamp()
            a("s_barrier")
            if w0 == c + 2:
                issue_wo(0)
                groups.append("w")
        self.stamp()
        if fine:
            self.dump_stamps()
            self.nst = 3
        if self.opt.get("h1", 0) == -1:
            lab = a.newlabel("NOH")
            a("s_cmp_lg_u32 s3, 4\ns_cbranch_scc1 " + lab)
            a("""s_lshl4_add_u32 s13, s61, s60
            s_lshl_b32 s13, s13, 7
            s_add_u32 s13, s13, 0x%x
            v_mov_b32 v4, s6
            v_mov_b32 v5, s7
            v_and_b32 v6, 15, v1
            v_lshlrev_b32 v6, 3, v6
            buffer_store_dwordx2 v[4:5], v6, %s, s13 offen sc1""" % (WS_H1, s(self.rWS, 4)))
            a.label(lab)
        issue_wo(1)
        issue_wo(2)
        self.tail_addr()
        a("s_waitcnt vmcnt(0)")
        self.stamp()
        a("s_barrier")
        issue_wo(3)
        for n in range(3):
            read_wo(n)
        a("s_waitcnt vmcnt(0)")
        a("s_branch KV_TAIL")
        self.kv_tail_nst = self.nst
        self.nst = n0
        a.label("QLOADER")
        self.role = "R"
        self.reducer_setup()
        a("s_waitcnt vmcnt(%d)\ns_barrier\ns_waitcnt vmcnt(0)\ns_barrier" % self.qwait[0])
        if self.opt.get("prewrite", 1):
            a("buffer_store_dwordx4 v[24:27], v21, %s, s67 offen sc1" % s(self.rWS, 4))
            lab = a.newlabel("NOZ")
            a("s_cmp_lg_u32 s60, 15\ns_cbranch_scc1 " + lab)
            a("buffer_store_dwordx4 v[24:27], v21, %s, s67 offen offset:128 sc1" % s(self.rWS, 4))
            a.label(lab)
        if self.opt.get("h1", 0):
            a("s_lshl_b32 s68, s4, 11\ns_add_u32 s68, s68, 0x%x\nv_and_b32 v2, 15, v1\nv_lshlrev_b32 v2, 7, v2" % WS_H1)
            self.hintpoll(2, 68, 36, 38)
        else:
            a("s_barrier")
        self.diag_delay("d_part")
        self.stamp()
        self.reducer()

    def reducer_setup(self):
        a = self.a
        a("""s_lshl3_add_u32 s60, s4, s5
        s_sub_u32 s60, s60, 16
        s_lshl2_add_u32 s60, s60, s58
        s_lshr_b32 s61, s60, 4
        s_and_b32 s60, s60, 15
        s_mul_i32 s63, s61, %d
        s_lshl_b32 s64, s60, 7
        s_add_u32 s63, s63, s64
        s_add_u32 s63, s63, 0x%x
        s_add_u32 s64, s63, %d
        s_add_u32 s65, s63, %d
        s_add_u32 s66, s63, %d""" % (32 * PLINE, WS_PART, 8 * PLINE, 16 * PLINE, 24 * PLINE))
        a("""s_mul_i32 s67, s61, %d
        s_lshl_b32 s61, s60, 7
        s_add_u32 s67, s67, s61
        s_add_u32 s67, s67, 0x%x""" % (PLINE, WS_RED))
        a("""v_lshrrev_b32 v2, 3, v1
        v_and_b32 v3, 7, v1
        v_lshlrev_b32 v3, 4, v3
        v_mov_b32 v22, %d
        v_mad_u32_u24 v20, v2, v22, v3
        v_mov_b32 v22, 0x%x
        v_mad_u32_u24 v21, v2, v22, v3""" % (PLINE, RED_STRIDE))
        a("""v_and_b32 v2, 1, v1
        v_lshlrev_b32 v2, 4, v2
        v_mov_b32 v3, 0x3f80
        v_lshlrev_b32 v3, v2, v3
        v_and_b32 v2, 2, v1
        v_cmp_eq_u32 vcc, 0, v2
        v_mov_b32 v25, 0
        v_mov_b32 v27, 0
        v_cndmask_b32 v24, 0, v3, vcc
        v_cndmask_b32 v26, v3, v25, vcc
        v_mov_b32 v29, s6
        v_mov_b32 v31, s7
        v_mov_b32 v33, s6
        v_mov_b32 v35, s7""")

    def reducer(self):
        a = self.a
        D, D2, acc, acc2, vacc = 40, 56, 72, 76, 80
        so = [63, 64, 65, 66]

        def body(dual):
            def issue():
                for i in range(4):
                    a("buffer_load_dwordx4 %s, v20, %s, s%d offen sc1" % (v(D + 4 * i, 4), s(self.rWS, 4), so[i]))
                if dual:
                    for i in range(4):
                        a("buffer_load_dwordx4 %s, v20, %s, s%d offen offset:128 sc1" % (v(D2 + 4 * i, 4), s(self.rWS, 4), so[i]))

            def check():
                self.tagcheck([D + 4 * i for i in range(8 if dual else 4)], vacc)

            self.poll(issue, check, vacc)
            self.stamp()
            sets = [(D, acc, 28, 0)] + ([(D2, acc2, 32, 128)] if dual else [])
            for d, ac, _, _ in sets:
                for i in range(4):
                    a("v_mfma_f32_16x16x32_bf16 %s, v[24:27], %s, %s" % (v(ac, 4), v(d + 4 * i, 4), v(ac, 4) if i else "0"))
            for d, ac, o, off in sets:
                for r in range(4):
                    a("v_add_f32_dpp v%d, v%d, v%d row_ror:8 row_mask:0xf bank_mask:0xf" % (d + r, ac + r, ac + r))
                a("v_cvt_pk_bf16_f32 v%d, v%d, v%d" % (o, d, d + 1))
                a("v_cvt_pk_bf16_f32 v%d, v%d, v%d" % (o + 2, d + 2, d + 3))
                a("buffer_store_dwordx4 %s, v21, %s, s67 offen offset:%d sc1" % (v(o, 4), s(self.rWS, 4), off))
            self.end()

        n0 = self.nst
        a("s_cmp_eq_u32 s60, 15\ns_cbranch_scc1 RED_DUAL")
        body(False)
        self.nst = n0
        a.label("RED_DUAL")
        body(True)

    def lds_reset(self):
        self.lq_issued = 0
        self.lq_done = 0

    def lds(self, line):
        self.a(line)
        self.lq_issued += 1
        return self.lq_issued

    def lds_wait(self, seq):
        if seq > self.lq_done:
            n = min(self.lq_issued - seq, 15)
            self.a("s_waitcnt lgkmcnt(%d)" % n)
            self.lq_done = self.lq_issued - n

    @staticmethod
    def cost(line):
        m = line.split()[0]
        if m.startswith(("v_exp", "v_rcp", "v_sin", "v_cos")):
            return 8
        return 4

    def run_mfmas(self, mf, frags, pool, fillers, budget=24, maxread=2, maxout=14, hooks=None):
        a = self.a
        order = []
        last = {}
        for j, (_, ids) in enumerate(mf):
            for i in ids:
                if i not in last:
                    order.append(i)
                last[i] = j
        pool = list(pool)
        reg, seq = {}, {}
        rp = [0, 0]
        q = []

        def one_read():
            i = order[rp[0]]
            reads, pre = frags[i]
            if rp[1] == 0:
                if not pool:
                    return False
                if pre:
                    pre()
                reg[i] = pool.pop(0)
            sq = self.lds(reads[rp[1]].format(r=v(reg[i], 4), lo=v(reg[i], 2), hi=v(reg[i] + 2, 2)))
            rp[1] += 1
            if rp[1] == len(reads):
                seq[i] = sq
                rp[0] += 1
                rp[1] = 0
            return True

        while rp[0] < len(order) and self.lq_issued - self.lq_done < maxout - 2 and pool and not (rp[0] and frags[order[rp[0]]][1]):
            one_read()
        for j, (fmt, ids) in enumerate(mf):
            for i in ids:
                while i not in seq:
                    assert one_read()
            if ids:
                self.lds_wait(max(seq[i] for i in ids))
            a(fmt.format(*[v(reg[i], 4) for i in ids]))
            for i in ids:
                if last[i] == j:
                    pool.append(reg[i])
            if hooks and j in hooks:
                hooks[j]()
            b = budget
            k = 0
            while k < maxread and rp[0] < len(order) and self.lq_issued - self.lq_done < maxout:
                gate = frags[order[rp[0]]]
                if rp[1] == 0 and len(gate) > 2 and gate[2]() is False:
                    break
                if not one_read():
                    break
                k += 1
                b -= 4
            q += fillers.get(j, [])
            while q and b >= self.cost(q[0]):
                x = q.pop(0)
                b -= self.cost(x)
                self.emit_filler(x)
            self.fq = q
        return q

    def emit_filler(self, x):
        if x.startswith("ds_"):
            self.last_fill_lds = self.lds(x)
        elif x.startswith("WAITLDS"):
            self.lds_wait(self.last_fill_lds - int(x.split()[1]))
        else:
            self.a(x)

    def gemm_loop(self, acc, pool, ax, aw, xfirst, fill, Z, hooks=None):
        a = self.a
        frags, mf = {}, []
        seen = set()

        def fx(n, mb, tag):
            c, ks = n >> 2, n & 3
            slot = c & 3
            hi, so = slot >> 1, (slot & 1) * 32768
            pre = None
            if c not in seen:
                seen.add(c)
                pre = (lambda: a("s_barrier")) if c else None
            frags[("x", n, mb, tag)] = (["ds_read_b128 {r}, v%d offset:%d" % (ax[hi][ks], so + 4096 * mb)], pre)
            return ("x", n, mb, tag)

        def fw(n, nb):
            c, ks = n >> 2, n & 3
            slot = c & 3
            hi, so = slot >> 1, (slot & 1) * 32768 + 16384 + ks * 4096
            frags[("w", n, nb)] = (["ds_read_b64_tr_b16 {lo}, v%d offset:%d" % (aw[hi][nb], so),
                                    "ds_read_b64_tr_b16 {hi}, v%d offset:%d" % (aw[hi][nb], so + 1024)], None)
            return ("w", n, nb)

        def add(n, nbs, tag):
            X = [fx(n, 0, tag), fx(n, 1, tag)]
            for nb in nbs:
                W = fw(n, nb)
                for mb in range(2):
                    d = v(acc[mb][nb], 16)
                    if self.opt.get("nomfma") and n:
                        mf.append(("s_nop 0", [X[mb], W]))
                        continue
                    mf.append(("v_mfma_f32_32x32x16_bf16 %s, %s, %s" % (d, "{0}, {1}" if xfirst else "{1}, {0}", d if n else "0"), [X[mb], W]))

        for n in range(32 - Z):
            add(n, (0, 1), 0)
        for n in range(32 - Z, 32):
            add(n, (0,), 0)
        j0 = len(mf)
        for n in range(32 - Z, 32):
            add(n, (1,), 1)
        a("s_barrier")
        self.stamp()
        self.lds_reset()
        return self.run_mfmas(mf, frags, pool, {j0 + 1: fill}, hooks=hooks)

    def phi(self, src, dst, tmp, n):
        L = []
        for g in range(0, n, 8):
            for j in range(0, 8, 2):
                L.append("v_pk_mul_f32 %s, %s, s[56:57]" % (v(tmp + j, 2), v(src + g + j, 2)))
            for j in range(8):
                L.append("v_exp_f32_e64 v%d, v%d clamp" % (tmp + j, tmp + j))
                L.append("v_max_f32 v%d, s58, v%d" % (src + g + j, src + g + j))
            for j in range(0, 8, 2):
                L.append("v_pk_add_f32 %s, %s, %s" % (v(tmp + j, 2), v(tmp + j, 2), v(src + g + j, 2)))
            for j in range(0, 8, 2):
                L.append("v_cvt_pk_bf16_f32 v%d, v%d, v%d" % (dst + (g + j) // 2, tmp + j, tmp + j + 1))
        return L

    def compute(self):
        a = self.a
        ws = s(self.rWS, 4)
        a.label("COMPUTE")
        self.role = "K"
        lab = a.newlabel("NOPF")
        a("s_cmp_ge_u32 s3, 3\ns_cbranch_scc1 " + lab)
        sv = self.vL
        self.vL = 0
        self.prefetch_code("LOADER", "ROLE_B", 3)
        self.vL = sv
        a.label(lab)
        self.gemm_params()
        ax = [[240, 241, 242, 243], [244, 245, 246, 247]]
        aw = [[248, 249], [250, 251]]
        a("""s_lshr_b32 s63, s3, 1
        s_and_b32 s64, s3, 1
        v_and_b32 v2, 31, v1
        v_lshlrev_b32 v2, 7, v2
        s_lshl_b32 s65, s63, 13
        v_add_u32 v2, s65, v2
        v_lshrrev_b32 v3, 5, v1
        v_bfe_u32 v16, v1, 1, 3
        v_xor_b32 v16, v16, v3
        v_lshl_add_u32 v240, v16, 4, v2
        v_xor_b32 v241, 32, v240
        v_xor_b32 v242, 64, v240
        v_xor_b32 v243, 96, v240""")
        a("""v_bfe_u32 v16, v1, 2, 2
        v_lshl_add_u32 v17, v3, 3, v16
        v_xor_b32 v16, s64, v16
        v_lshlrev_b32 v16, 6, v16
        v_lshl_add_u32 v16, v17, 8, v16
        v_bfe_u32 v17, v1, 4, 1
        v_lshl_add_u32 v16, v17, 5, v16
        v_and_b32 v17, 3, v1
        v_lshl_add_u32 v248, v17, 3, v16
        v_xor_b32 v249, 128, v248""")
        for k in range(4):
            a("v_add_u32 v%d, 0x10000, v%d" % (244 + k, 240 + k))
        a("v_add_u32 v250, 0x10000, v248\nv_add_u32 v251, 0x10000, v249")
        a("s_waitcnt lgkmcnt(0)")
        a("s_load_dwordx2 s[8:9], s[32:33], %d" % WS_EA)
        self.srd(self.rWS, self.pWS, WS_SIZE)
        if self.opt.get("touch", 0):
            lab = a.newlabel("NOT")
            a("s_cmp_lg_u32 s3, 3\ns_cbranch_scc1 " + lab)
            self.srd(self.rOUT, self.pOUT, 2048 * 2048)
            self.srd(self.rC, self.pWO, 512 * 1024)
            self.touch_pages(236, 237)
            a("""s_lshl4_add_u32 s69, s5, s4
            s_lshl3_add_u32 s69, s5, s4
            s_lshl_b32 s69, s69, 12
            v_and_b32 v236, 31, v1
            v_lshlrev_b32 v236, 7, v236
            buffer_load_dword v239, v236, %s, s69 offen""" % s(self.rC, 4))
            a.label(lab)
        a("s_mov_b32 s56, %s\ns_mov_b32 s57, %s\ns_mov_b32 s58, %s" % (fhex(1.4426950408889634), fhex(1.4426950408889634), fhex(1e-6)))
        a("v_lshlrev_b32 v2, 4, v1")
        acc = [[64, 96], [80, 112]]
        pool = list(range(16, 64, 4))
        Z = self.opt.get("z", 4)
        a("s_cmp_ge_u32 s5, 16\ns_cbranch_scc1 QCOMPUTE")
        n0 = self.nst
        a("""s_lshl1_add_u32 s59, s61, s64
        s_lshl_b32 s59, s59, 5
        s_lshl1_add_u32 s66, s60, s63
        s_add_u32 s59, s59, s66
        s_mul_i32 s59, s59, %d
        s_add_u32 s59, s59, 0x%x""" % (PLINE, WS_PART))
        a("""s_lshl4_add_u32 s13, s61, s60
        s_lshl_b32 s13, s13, 7
        s_add_u32 s14, s13, 0x%x
        s_add_u32 s13, s13, 0x%x
        v_and_b32 v146, 0x70, v2
        v_lshrrev_b32 v147, 3, v1
        v_lshl_add_u32 v147, v147, 14, v146""" % (WS_H2, WS_H1))
        P0, P1, PZ, ONES, zaddr = 128, 132, 136, 140, 144
        pk, vv, tmp, D, D2 = 180, 196, 212, 148, 164
        for j in range(4):
            a("v_mov_b32 v%d, 0x3f803f80" % (ONES + j))
        if self.opt.get("prewrite", 1):
            a("buffer_store_dwordx4 %s, v2, %s, s59 offen sc1" % (v(ONES, 4), ws))
            a("buffer_store_dwordx4 %s, v2, %s, s59 offen offset:1024 sc1" % (v(ONES, 4), ws))
            a("s_mov_b64 exec, 0xff")
            a("buffer_store_dwordx4 %s, v2, %s, s59 offen offset:2048 sc1" % (v(ONES, 4), ws))
            a("s_mov_b64 exec, -1")
        a("""v_lshrrev_b32 v3, 4, v1
        v_and_b32 v145, 1, v1
        v_lshl_add_u32 v3, v3, 1, v145
        v_lshlrev_b32 v%d, 4, v3
        s_mov_b32 s60, 0xaaaaaaaa
        s_mov_b32 s61, 0xaaaaaaaa""" % zaddr)
        self.tail_addr()
        a("s_waitcnt lgkmcnt(0)")
        self.tags()
        for p in (P0, P1, PZ):
            a("v_mov_b32 v%d, s6\nv_mov_b32 v%d, s7" % (p + 1, p + 3))
        a("v_mov_b32 v252, s6\nv_mov_b32 v253, s7\nv_mov_b32 v254, s6\nv_mov_b32 v255, s7")

        def hint(va, so):
            lab = a.newlabel("NOH")
            a("s_cmp_lg_u32 s3, 0\ns_cbranch_scc1 " + lab)
            a("buffer_store_dwordx4 v[252:255], v%d, %s, s%d offen sc1" % (va, ws, so))
            a.label(lab)

        K0, K1, V0, V1 = acc[0][0], acc[1][0], acc[0][1], acc[1][1]
        M32 = "v_mfma_f32_32x32x16_bf16"
        fill = []
        for i, src in enumerate((K0, K0 + 8, K1, K1 + 8)):
            fill += self.phi(src, pk + 4 * i, tmp, 8)
        hooks = {80: lambda: a("s_waitcnt vmcnt(0)")}
        if self.opt.get("h1", 0) > 0:
            hooks[self.opt.get("h1", 0)] = lambda: hint(146, 13)
        rest = self.gemm_loop(acc, pool, ax, aw, True, fill, Z, hooks)
        self.stamp()
        ndone = 4 - (len(rest) + 27) // 28
        for i in range(ndone):
            a("%s %s, %s, %s, %s" % (M32, v(D2, 16), v(pk + 4 * i, 4), v(ONES, 4), v(D2, 16) if i else "0"))
            for x in rest[:6]:
                a(x)
            rest = rest[6:]
        for x in rest:
            a(x)
        for i in range(4):
            src = (V0, V0 + 8, V1, V1 + 8)[i]
            for j in range(4):
                a("v_cvt_pk_bf16_f32 v%d, v%d, v%d" % (vv + 4 * i + j, src + 2 * j, src + 2 * j + 1))
            if i >= ndone:
                a("%s %s, %s, %s, %s" % (M32, v(D2, 16), v(pk + 4 * i, 4), v(ONES, 4), v(D2, 16) if i else "0"))
            elif i:
                a("%s %s, %s, %s, %s" % (M32, v(D, 16), v(pk + 4 * i - 4, 4), v(vv + 4 * i - 4, 4), v(D, 16) if i > 1 else "0"))
        for i in range(max(ndone - 1, 0), 4):
            a("%s %s, %s, %s, %s" % (M32, v(D, 16), v(pk + 4 * i, 4), v(vv + 4 * i, 4), v(D, 16) if i else "0"))
        if self.opt.get("h2", 0) == 1:
            hint(147, 14)
            a("s_nop 0")
        for t in range(8):
            a("v_cndmask_b32 v%d, v%d, v%d, s[10:11]" % (tmp + t, D2 + t, D2 + 8 + t))
        for t in range(4):
            a("v_cndmask_b32 v%d, v%d, v%d, s[60:61]" % (tmp + t, tmp + t, tmp + 4 + t))
        a("v_cvt_pk_bf16_f32 v%d, v%d, v%d" % (PZ, tmp, tmp + 1))
        a("v_cvt_pk_bf16_f32 v%d, v%d, v%d" % (PZ + 2, tmp + 2, tmp + 3))
        a("s_mov_b32 exec_lo, 0x00030003\ns_mov_b32 exec_hi, 0x00030003")
        a("buffer_store_dwordx4 %s, v%d, %s, s59 offen offset:2048 sc1" % (v(PZ, 4), zaddr, ws))
        a("s_mov_b64 exec, -1")
        for h, p in enumerate((P0, P1)):
            for t in range(4 * h, 4 * h + 4):
                a("v_cndmask_b32 v%d, v%d, v%d, s[10:11]" % (tmp + t, D + t, D + 8 + t))
            a("v_cvt_pk_bf16_f32 v%d, v%d, v%d" % (p, tmp + 4 * h, tmp + 4 * h + 1))
            a("v_cvt_pk_bf16_f32 v%d, v%d, v%d" % (p + 2, tmp + 4 * h + 2, tmp + 4 * h + 3))
            a("buffer_store_dwordx4 %s, v2, %s, s59 offen offset:%d sc1" % (v(p, 4), ws, 1024 * h))
        if self.opt.get("h2", 0) == 2:
            hint(147, 14)
        self.stamp()
        a("s_barrier")
        assert self.nst == self.kv_tail_nst
        self.kv_tail()
        self.nst = n0
        a.label("QCOMPUTE")
        self.role = "Q"
        a("""s_lshl1_add_u32 s66, s60, s63
        s_lshl2_add_u32 s66, s66, s61
        s_lshl1_add_u32 s66, s66, s64
        s_lshl_b32 s65, s66, 13
        s_add_u32 s65, s65, 0x%x
        s_add_u32 s67, s65, 0x1000
        v_mov_b32 v4, 0xfffefffe""" % WS_PQ)
        if self.opt.get("pwq"):
            a("v_mov_b32 v5, v4\nv_mov_b32 v6, v4\nv_mov_b32 v7, v4")
        pw1 = lambda i: a("buffer_store_dwordx4 v[4:7], v2, %s, s%d offen offset:%d sc1" % (ws, 67 if i >= 4 else 65, (i & 3) * 1024))
        if self.opt.get("pwq") == 1:
            for i in range(8):
                pw1(i)
        if self.opt.get("tabpf", 0):
            lab = a.newlabel("PC")
            a("s_getpc_b64 s[68:69]")
            a.label(lab)
            a.items.append(("i", _sym_add("s_add_u32 s68, s68, TABLE-%s" % lab, 0x8000)))
            a("s_addc_u32 s69, s69, 0\ns_mul_i32 s70, s3, 6144\nv_lshlrev_b32 v10, 7, v1\nv_min_u32 v10, 0x17fc, v10\nv_add_u32 v10, s70, v10")
            a("global_load_dword v10, v10, s[68:69]")
        a("s_waitcnt lgkmcnt(0)")
        self.tags()

        def qpost(nb):
            L = []
            for mb in range(2):
                for h in range(2):
                    d = 128 + 16 * nb + 8 * mb + 4 * h
                    L += self.phi(acc[mb][nb] + 8 * h, d, 212, 8) + self.mark(d, 4)
                    L.append("buffer_store_dwordx4 %s, v2, %s, s%d offen offset:%d sc1" % (v(d, 4), ws, 67 if nb else 65, (h * 2 + mb) * 1024))
            return L

        hooks = {110: lambda: a("s_waitcnt vmcnt(0)")}
        if self.opt.get("pwq", 0) > 1:
            for i in range(8):
                hooks[self.opt["pwq"] + self.opt.get("pwqs", 4) * i] = (lambda i=i: pw1(i))
        rest = self.gemm_loop(acc, pool, ax, aw, False, qpost(0), Z, hooks)
        self.stamp()
        rest = rest + qpost(1)
        k = min(self.opt.get("redwait", 200), len(rest))
        for x in rest[:k]:
            a(x)
        if not self.opt.get("h1", 0):
            if self.opt.get("qdrain", 1):
                a("s_waitcnt vmcnt(0)")
            a("s_barrier")
        for x in rest[k:]:
            a(x)
        self.end()

    def tail_addr(self):
        a = self.a
        a("""s_and_b32 s63, s3, 1
        s_lshr_b32 s64, s3, 1
        v_lshlrev_b32 v2, 4, v1
        s_and_b32 s65, s5, 3
        s_lshl2_add_u32 s65, s4, s65
        s_lshl3_add_u32 s66, s65, s3
        s_lshl_b32 s67, s66, 13
        s_add_u32 s67, s67, 0x%x""" % WS_PQ)
        a("""s_lshl2_add_u32 s63, s64, s63
        s_mul_i32 s70, s63, %d
        s_mul_i32 s71, s4, 0x%x
        s_add_u32 s70, s70, s71
        s_add_u32 s70, s70, 0x%x
        s_add_u32 s71, s70, %d
        v_lshrrev_b32 v8, 4, v1
        v_xor_b32 v8, 1, v8
        v_lshlrev_b32 v8, 5, v8
        v_mov_b32 v9, 0
        s_lshl_b32 s63, s63, 11
        v_add_u32 v13, s63, v2""" % (PLINE, RED_STRIDE, WS_RED, 2 * PLINE))

    def kv_tail(self):
        a = self.a
        ws = s(self.rWS, 4)
        M32 = "v_mfma_f32_32x32x16_bf16"
        a.label("KV_TAIL")
        WO, PQ, RD, OP, AC = 128, 16, 48, 80, 96
        if not self.opt.get("nodrain"):
            a("s_waitcnt vmcnt(0)")
        a("s_add_u32 s68, s67, 0x1000\ns_mov_b32 s58, %s" % fhex(1e-6))
        pqload = lambda: [a("buffer_load_dwordx4 %s, v2, %s, s%d offen offset:%d sc1" % (v(PQ + 4 * i, 4), ws, 68 if i >= 4 else 67, (i & 3) * 1024)) for i in range(8)]
        self.diag_delay("d_pq")
        if not self.opt.get("pqlate", 1):
            pqload()
        a("s_waitcnt lgkmcnt(0)\ns_barrier")
        self.stamp()
        if self.opt.get("pqlate", 1):
            pqload()
        lab = a.newlabel("NOWO")
        a("s_cmp_lt_u32 s3, 4\ns_cbranch_scc1 " + lab)
        self.read_wo(3)
        a.label(lab)

        self.poll(pqload, lambda: self.markcheck(PQ, 32, 12), 12, first_issued=True)
        self.stamp()

        def issue():
            for pi in range(2):
                so = 70 + pi
                b = RD + 16 * pi
                a("buffer_load_dwordx4 %s, v2, %s, s%d offen sc1" % (v(b, 4), ws, so))
                a("buffer_load_dwordx4 %s, v2, %s, s%d offen offset:1024 sc1" % (v(b + 4, 4), ws, so))
                a("buffer_load_dwordx4 %s, v8, %s, s%d offen offset:2048 sc1" % (v(b + 8, 4), ws, so))
                a("buffer_load_dwordx4 %s, v8, %s, s%d offen offset:2064 sc1" % (v(b + 12, 4), ws, so))

        a("""s_lshl_b32 s63, s5, 13
        s_and_b32 s64, s63, 0x6000
        v_add_u32 v4, s64, v2
        s_add_u32 s63, s63, 0x2000
        s_and_b32 s64, s63, 0x6000
        v_add_u32 v5, s64, v2
        s_add_u32 s63, s63, 0x2000
        s_and_b32 s64, s63, 0x6000
        v_add_u32 v6, s64, v2
        s_add_u32 s63, s63, 0x2000
        s_and_b32 s64, s63, 0x6000
        v_add_u32 v7, s64, v2
        s_lshl_b32 s69, s3, 12
        s_add_u32 s69, s69, 0x14000
        v_and_b32 v10, 31, v1
        v_bfe_u32 v14, v1, 1, 2
        v_lshrrev_b32 v15, 5, v1
        v_lshlrev_b32 v15, 1, v15
        v_xor_b32 v14, v14, v15
        v_lshlrev_b32 v14, 4, v14
        v_lshl_add_u32 v10, v10, 6, v14
        v_add_u32 v10, s69, v10
        v_xor_b32 v14, 16, v10
        v_bfe_u32 v15, v1, 3, 2
        v_lshlrev_b32 v15, 4, v15
        v_xor_b32 v15, v15, v2
        v_add_u32 v15, s69, v15
        v_lshrrev_b32 v3, 2, v1
        v_and_b32 v11, 3, v1
        v_lshlrev_b32 v11, 4, v11
        v_lshl_add_u32 v3, v3, 11, v11
        s_lshl_b32 s65, s65, 17
        s_lshr_b32 s69, s5, 2
        s_and_b32 s64, s3, 3
        s_lshl2_add_u32 s69, s69, s64
        s_lshl_b32 s69, s69, 6
        s_add_u32 s64, s65, s69
        s_add_u32 s65, s64, 0x8000
        s_add_u32 s66, s64, 0x10000
        s_add_u32 s67, s64, 0x18000""")
        if self.opt.get("h2", 0):
            a("""s_lshl_b32 s63, s4, 14
            s_lshr_b32 s69, s3, 1
            s_lshl_b32 s69, s69, 12
            s_add_u32 s63, s63, s69
            s_add_u32 s63, s63, 0x%x
            v_and_b32 v11, 31, v1
            v_lshlrev_b32 v11, 7, v11""" % WS_H2)
            self.hintpoll(11, 63, RD, 12)
        self.diag_delay("d_red")
        self.poll(issue, lambda: self.tagcheck([RD + 4 * i for i in range(8)], 12), 12)
        self.stamp()
        accs = [AC, AC + 16, RD, RD + 16]

        def sel(i):
            pi, h = i >> 1, i & 1
            b = RD + 16 * pi
            for j in range(4):
                x, y = (b + 2 * j, b + 8 + 2 * j) if h == 0 else (b + 8 + 2 * j, b + 2 * j)
                a("v_cndmask_b32 v%d, v%d, v%d, s[10:11]" % (OP + 4 * i + j, x, y))

        def mf(i, mb, d):
            return "%s %s, %s, %s, 0" % (M32, v(d, 16), v(OP + 4 * i, 4), v(PQ + 4 * (i * 2 + mb), 4))

        def post(i, mb, d):
            pi, h = i >> 1, i & 1
            num, den = (d, d + 8) if h == 0 else (d + 8, d)
            L = ["v_add_f32 v%d, s58, v%d" % (den, den), "v_rcp_f32 v%d, v%d" % (den, den)]
            for j in range(0, 8, 2):
                L.append("v_pk_mul_f32 %s, %s, %s op_sel_hi:[1,0]" % (v(num + j, 2), v(num + j, 2), v(den, 2)))
            for j in range(4):
                L.append("v_cvt_pk_bf16_f32 v%d, v%d, v%d" % (den + 4 + j, num + 2 * j, num + 2 * j + 1))
            L.append("ds_write_b128 v13, %s offset:%d" % (v(den + 4, 4), mb * 32768 + (pi * 4 + h) * 1024))
            return L

        sel(0)
        sel(1)
        a(mf(0, 0, accs[0]))
        sel(2)
        a(mf(1, 0, accs[1]))
        sel(3)
        a(mf(2, 0, accs[2]))
        for i in range(4):
            if i == 0:
                a(mf(3, 0, accs[3]))
            for x in post(i, 0, accs[i]):
                a(x)
        acc1 = [RD, RD + 16, AC + 16, RD]
        a(mf(0, 1, acc1[0]))
        a(mf(1, 1, acc1[1]))
        a("s_waitcnt lgkmcnt(0)\ns_barrier")
        self.stamp()
        a("s_cmp_ge_u32 s3, 4\ns_cbranch_scc1 OUT_GEMM")
        n0 = self.nst
        a(mf(2, 1, acc1[2]))
        a(mf(3, 1, AC))
        for i in range(4):
            for x in post(i, 1, acc1[i] if i < 3 else AC):
                a(x)
        lab = a.newlabel("NOEP")
        a("s_or_b32 s56, s4, s3\ns_or_b32 s56, s56, s5\ns_cbranch_scc1 " + lab)
        a("v_mov_b32 v6, s8\nv_mov_b32 v7, s9\ns_mov_b64 exec, 1")
        a("buffer_store_dwordx2 v[6:7], v9, %s, 0 offen offset:%d" % (ws, WS_EA))
        a("s_mov_b64 exec, -1")
        a.label(lab)
        a("s_waitcnt lgkmcnt(0)\ns_barrier")
        self.end()
        self.nst = n0
        a.label("OUT_GEMM")
        fl = self.opt.get("outflag", "")
        out = s(self.rOUT, 4)
        frags, mfl = {}, []
        pool = [PQ + 8 * i for i in range(4)] + [PQ + 4, PQ + 12]

        def b11b():
            assert not self.fq
            self.lds_wait(self.last_fill_lds)
            a("s_barrier")

        AC2 = OP
        for mb in range(2):
            d = v(AC2 if mb else AC, 16)
            for h in range(32):
                frags[(mb, h)] = (["ds_read_b128 {r}, v%d offset:%d" % (4 + (h >> 3), mb * 32768 + (h & 7) * 1024)],
                                  b11b if (mb, h) == (1, 0) else None)
                mfl.append(("%s %s, %s, {0}, %s" % (M32, d, v(WO + 4 * h, 4), d if h else "0"), [(mb, h)]))
                if mb == 0 and h == 0:
                    mfl.append((mf(2, 1, acc1[2]), []))
                if mb == 0 and h == 4:
                    mfl.append((mf(3, 1, acc1[3]), []))

        def epi(mb, d, t):
            L = ["v_cvt_pk_bf16_f32 v%d, v%d, v%d" % (t + j, d + 2 * j, d + 2 * j + 1) for j in range(8)]
            L += ["ds_write_b128 v10, %s offset:%d" % (v(t, 4), mb * 2048), "ds_write_b128 v14, %s offset:%d" % (v(t + 4, 4), mb * 2048),
                  "ds_read_b128 %s, v15 offset:%d" % (v(t + 8, 4), mb * 2048), "ds_read_b128 %s, v15 offset:%d" % (v(t + 12, 4), mb * 2048 + 1024)]
            L2 = ["WAITLDS 1", "buffer_store_dwordx4 %s, v3, %s, s%d offen %s" % (v(t + 8, 4), out, 64 + 2 * mb, fl),
                  "WAITLDS 0", "buffer_store_dwordx4 %s, v3, %s, s%d offen %s" % (v(t + 12, 4), out, 65 + 2 * mb, fl)]
            return L, L2

        e0, e0b = epi(0, AC, RD)
        fillers = {0: post(0, 1, acc1[0]) + post(1, 1, acc1[1]), 6: post(2, 1, acc1[2]), 9: post(3, 1, acc1[3]), 36: e0, 46: e0b}
        self.lds_reset()
        rest = self.run_mfmas(mfl, frags, pool, fillers, maxread=1)
        assert not rest
        e1, e1b = epi(1, AC2, RD + 16)
        for x in e1 + e1b:
            self.emit_filler(x)
        self.end(True)

    def sincos(self, ang, c, sn, n):
        a = self.a
        for i in range(n):
            a("v_cos_f32 v%d, v%d" % (c + i, ang + i))
            a("v_sin_f32 v%d, v%d" % (sn + i, ang + i))

    def cvt(self, d, x, y):
        self.a("v_cvt_pk_bf16_f32 v%d, %s, %s" % (d, x, y))

    def role_b(self):
        a = self.a
        a.label("ROLE_B")
        self.role = "B"
        if self.opt.get("nob"):
            a("s_waitcnt lgkmcnt(0)")
            self.srd(self.rWS, self.pWS, WS_SIZE)
            n0 = self.nst
            self.end()
            self.nst = n0
        XB, ZB, WB, TB = 0, 32768, 65536, 131072
        RAB = TB + 24576
        M16 = "v_mfma_f32_16x16x32_bf16"
        M32 = "v_mfma_f32_32x32x16_bf16"
        ws = s(self.rWS, 4)
        XW, SW, XW3 = 0, 3, 1
        a("""s_and_b32 s61, s5, 7
        s_lshl3_add_u32 s60, s4, s61
        v_lshlrev_b32 v2, 4, v1
        s_lshl_b32 s62, s3, 7
        s_add_u32 s62, s62, s60
        s_lshl_b32 s62, s62, 10
        s_add_u32 s63, s62, 0x%x
        s_add_u32 s64, s62, 0x%x
        s_add_u32 s65, s62, 0x%x
        s_lshl_b32 s70, s3, 12
        s_mov_b32 s46, 0x200000
        s_mov_b32 s47, 0x20000""" % (0x100000 - 1024, 0x10000 - 2048, 0x110000 - 3072))
        lab = a.newlabel("PC")
        a("s_getpc_b64 s[56:57]")
        a.label(lab)
        a.items.append(("i", _sym_add("s_add_u32 s58, s56, TABLE-%s" % lab, 0x8000)))
        a("s_addc_u32 s59, s57, 0")
        a("""s_mul_i32 s66, s3, 3072
        v_add_u32 v7, s66, v2
        v_lshlrev_b32 v4, 7, v0""")
        a.items.append(("i", _sym_add("s_mov_b32 s67, CODE_END-%s-4" % lab)))
        a("v_min_u32 v4, s67, v4")
        a("s_add_u32 m0, s66, %d" % TB)
        for q in range(3):
            a("global_load_lds_dwordx4 v7, s[58:59] offset:%d" % (q * 1024))
        lab = a.newlabel("NOPF")
        a("s_cmp_ge_u32 s3, 2\ns_cbranch_scc1 " + lab)
        a("global_load_dword v0, v4, s[56:57]")
        a.label(lab)
        a("s_mov_b32 m0, s70")
        a("s_waitcnt lgkmcnt(0)\ns_mov_b32 s44, s22\ns_mov_b32 s45, s23")
        for q in range(4):
            a("buffer_load_dwordx4 v2, %s, s%d offen offset:%d %s lds" % (s(self.rA, 4), 62 + q, q * 1024, "nt" if self.opt.get("ntx", 1) else ""))
        a("s_load_dwordx2 s[8:9], s[32:33], %d" % WS_EB)
        self.srd(self.rWS, self.pWS, WS_SIZE)
        self.bpf = self.opt.get("bpf", 0)
        if self.opt.get("tlb", 0):
            self.bpf = 1
            a("""s_mov_b64 s[48:49], s[32:33]
            s_mov_b32 s50, 0x804a00
            s_cmp_eq_u32 s3, 1
            s_cselect_b64 s[48:49], s[28:29], s[48:49]
            s_cselect_b32 s50, 0x400000, s50
            s_cmp_eq_u32 s3, 2
            s_cselect_b64 s[48:49], s[20:21], s[48:49]
            s_cselect_b32 s50, 0x80000, s50
            s_cmp_eq_u32 s3, 3
            s_cselect_b64 s[48:49], s[24:25], s[48:49]
            s_cselect_b32 s50, 0x101000, s50
            s_cmp_eq_u32 s3, 4
            s_cselect_b64 s[48:49], s[26:27], s[48:49]
            s_cselect_b32 s50, 0x101000, s50
            s_cmp_ge_u32 s3, 5
            s_cselect_b32 s50, 0, s50
            s_mov_b32 s51, 0x20000
            v_and_b32 v8, 7, v1
            v_mul_u32_u24 v8, 0x201000, v8
            v_add_u32 v8, 0x900, v8
            s_sub_u32 s13, s50, 4
            v_min_u32 v8, s13, v8
            buffer_load_dword v127, v8, s[48:51], 0 offen""")
        def wopf():
            a("s_mov_b32 s22, 0x80000\ns_mov_b32 s23, 0x20000\ns_lshl3_add_u32 s15, s60, s3\ns_lshl_b32 s15, s15, 10")
            a("buffer_load_dwordx4 v[116:119], v2, s[20:23], s15 offen")

        if self.opt.get("wopf", 2) == 1:
            self.bpf += 1
            wopf()
        if False:
            self.srd(self.rB, self.pWQ, 512 * 3072)
            a("""s_lshl3_add_u32 s13, s61, s3
            s_lshl_b32 s13, s13, 2
            s_add_u32 s13, s13, 256
            s_mul_i32 s13, s13, 3072
            s_and_b32 s14, s4, 1
            s_lshl_b32 s14, s14, 9
            s_add_u32 s13, s13, s14
            s_add_u32 s13, s13, 1024
            v_bfe_u32 v8, v1, 3, 2
            v_mul_u32_u24 v8, 0xc00, v8
            v_bfe_u32 v9, v1, 2, 1
            v_lshl_add_u32 v8, v9, 10, v8
            v_and_b32 v9, 3, v1
            v_lshl_add_u32 v8, v9, 7, v8
            s_mov_b32 exec_hi, 0
            buffer_load_dword v127, v8, %s, s13 offen
            s_mov_b32 exec_hi, -1""" % s(self.rB, 4))
        a("""v_lshrrev_b32 v4, 5, v1
        v_and_b32 v5, 31, v1
        v_lshlrev_b32 v6, 4, v5
        v_lshl_add_u32 v3, s3, 3, v4
        v_xor_b32 v3, s60, v3
        v_lshl_add_u32 v3, v3, 9, v6
        v_lshl_add_u32 v11, v4, 3, s3
        v_xor_b32 v8, s60, v11
        v_lshl_add_u32 v11, v11, 15, v6
        v_lshl_add_u32 v11, v8, 9, v11
        v_mov_b32 v135, v11
        s_lshl_b32 s66, s60, 15
        s_add_u32 s66, s66, 0x%x
        s_mov_b32 s13, 0x%x
        v_mov_b32 v14, 0xfffefffe
        s_lshl_b32 s14, s60, 9
        s_add_u32 s14, s14, 0x%x""" % (WS_X1, WS_X1, WS_X1 + 64 * 32768))
        a("""s_lshl_b32 s67, s4, 10
        s_add_u32 s67, s67, 0x%x
        v_and_b32 v12, 15, v1
        v_lshrrev_b32 v13, 4, v1
        s_xor_b32 s71, s61, 7
        s_xor_b32 s62, s3, %d
        s_or_b32 s71, s71, s62""" % (WS_X2S, SW))
        a("""s_bitcmp1_b32 s61, 0
        s_cselect_b64 s[48:49], s[26:27], s[24:25]
        s_cselect_b64 s[52:53], s[24:25], s[26:27]
        s_cselect_b32 s34, 0x8000, 0
        s_mov_b32 s50, 0x%x
        s_mov_b32 s51, 0x20000
        s_mov_b32 s54, 0x%x
        s_mov_b32 s55, 0x20000
        s_add_u32 s34, s34, s70
        s_add_u32 s34, s34, %d
        s_xor_b32 s35, s34, 0x8000""" % (2048 * 514, 2048 * 514, WB))
        self.srd(self.rOUT, self.pOUT, 2048 * 2048)

        CS, TW0, TWX, F16 = 16, 40, 48, 56
        RA = 64
        T = 144
        a("""v_cvt_f32_u32 v16, v5
        s_bfe_u32 s62, s3, 0x10001
        s_and_b32 s63, s3, 1
        s_lshl2_add_u32 s62, s62, s63
        s_lshl_b32 s62, s62, 7
        s_add_u32 s62, s62, s60
        v_lshl_add_u32 v17, v4, 8, s62
        v_cvt_f32_u32 v17, v17
        v_mul_f32 v17, v17, v16
        s_lshr_b32 s62, s3, 2
        v_xor_b32 v18, s62, v1
        v_lshlrev_b32 v18, 31, v18
        v_or_b32 v18, %s, v18
        v_fmamk_f32 v17, v17, %s, v18
        v_fmamk_f32 v18, v16, %s, v17
        s_lshl_b32 s62, s62, 31
        v_cos_f32 v20, v17
        v_sin_f32 v21, v17
        v_cos_f32 v22, v18
        v_sin_f32 v23, v18
        s_lshr_b32 s64, s3, 1
        s_lshl_b32 s64, s64, 10
        s_lshl3_add_u32 s64, s63, s64
        s_add_u32 s64, s64, %d
        v_add_u32 v15, s64, v2""" % (fhex(0.125), fhex(1 / 2048), fhex(1 / 32), RAB))
        a("""v_cvt_pk_bf16_f32 v24, v20, v21
        v_cvt_pk_bf16_f32 v25, v22, v23
        v_cvt_pk_bf16_f32 v26, -v21, v20
        v_cvt_pk_bf16_f32 v27, -v23, v22
        v_xor_b32 v24, s62, v24
        v_xor_b32 v25, s62, v25
        v_xor_b32 v26, s62, v26
        v_xor_b32 v27, s62, v27
        ds_write_b64 v15, v[24:25]
        ds_write_b64 v15, v[26:27] offset:4096""")
        a("""v_lshlrev_b32 v16, 6, v12
        v_add_u32 v16, s60, v16
        v_cvt_f32_u32 v16, v16
        v_mul_f32 v16, %s, v16
        s_lshr_b32 s62, s3, 1
        s_lshl2_add_u32 s62, s62, s63
        s_lshl_b32 s62, s62, 1
        v_lshl_add_u32 v17, v4, 2, s62
        v_cvt_f32_u32 v17, v17
        v_lshlrev_b32 v18, 27, v1
        v_and_b32 v18, 0x80000000, v18
        v_or_b32 v18, %s, v18
        v_fma_f32 v19, v17, v16, v18
        v_sub_f32 v18, v16, v18
        v_fma_f32 v18, v17, v16, v18
        v_cos_f32 v20, v19
        v_sin_f32 v21, v19
        v_cos_f32 v22, v18
        v_sin_f32 v23, v18
        v_cvt_pk_bf16_f32 v140, v20, -v21
        v_cvt_pk_bf16_f32 v142, v21, v20
        v_cvt_pk_bf16_f32 v141, v22, -v23
        v_cvt_pk_bf16_f32 v143, v23, v22""" % (fhex(1 / 2048), fhex(0.125)))
        FA = 128
        a("""v_bfe_u32 v16, v1, 3, 2
        s_lshl_b32 s62, s4, 2
        v_add_u32 v17, s62, v16
        v_lshl_add_u32 v17, v4, 5, v17
        v_mul_u32_u24 v17, 514, v17
        v_and_b32 v17, -16, v17
        v_sub_u32 v16, v1, v16
        v_and_b32 v18, 7, v16
        v_xor_b32 v19, 4, v18
        v_cmp_gt_u32 s[68:69], 5, v18
        v_cmp_gt_u32 s[58:59], 5, v19
        v_lshl_add_u32 v128, v18, 4, v17
        v_lshl_add_u32 v129, v19, 4, v17""")
        a("""v_lshl_add_u32 v7, v1, 3, s70
        s_lshr_b32 s62, s3, 1
        s_lshl_b32 s62, s62, 13
        s_lshl3_add_u32 s62, s63, s62
        s_add_u32 s62, s62, %d
        v_lshlrev_b32 v8, 11, v13
        v_lshl_add_u32 v8, v12, 4, v8
        v_add_u32 v8, s62, v8
        v_lshl_add_u32 v10, s3, 5, v5
        v_lshlrev_b32 v130, 13, v4
        v_add_u32 v130, %d, v130
        v_lshl_add_u32 v9, v10, 4, v130
        v_sub_u32 v10, 0, v10
        v_and_b32 v10, 0x1ff, v10
        v_lshl_add_u32 v10, v10, 4, v130
        v_add_u32 v131, %d, v2
        s_mul_i32 s62, s3, %d
        s_lshl_b32 s63, s61, 6
        s_add_u32 s62, s62, s63
        s_add_u32 s63, s62, %d
        s_add_u32 s64, s62, %d
        s_add_u32 s65, s62, %d
        s_waitcnt lgkmcnt(0)""" % (ZB, ZB, TB, 8 * 32 * 514, 64 * 514 - 1024, 128 * 514 - 2048, 192 * 514 - 3072))
        self.tags()

        def tab(reg, q, n):
            for i in range(n):
                a("ds_read_b128 %s, v131 offset:%d" % (v(reg + 4 * i, 4), (q + i) * 1024))

        fdp = [int(x) for x in str(self.opt.get("fdp", "2402"))[-4:].rjust(4, "0")]
        fdn = [0]

        def fnext(n=1):
            for _ in range(n):
                fdma(fdn[0] >> 2, fdn[0] & 3)
                fdn[0] += 1

        def fdma(second, q):
            if self.opt.get("nofd"):
                return
            a("s_mov_b64 exec, %s" % ("s[58:59]" if q >> 1 else "s[68:69]"))
            a("s_mov_b32 m0, s%d" % (35 if second else 34))
            a("buffer_load_dwordx4 v%d, %s, s%d offen offset:%d %s lds" % (FA + (q >> 1), s(52 if second else 48, 4), 62 + q, q * 1024, "nt" if self.opt.get("ntf", 1) else ""))
            a("s_mov_b64 exec, -1")

        a("s_waitcnt vmcnt(%d)\ns_barrier" % (4 + self.bpf))
        XF, T1, U = T, T + 16, T + 48
        tab(CS, TQ_CS, 12)
        tab(RA, 24, 8)
        fnext(fdp[0])
        a("s_waitcnt vmcnt(%d)" % (self.bpf + fdp[0]))
        self.stamp()
        if self.opt.get("touch", 0):
            lab = a.newlabel("NOT")
            a("s_cmp_lg_u32 s3, 2\ns_cbranch_scc1 " + lab)
            self.touch_pages(136, 137)
            a.label(lab)
        for q in range(4):
            a("ds_read_b64_tr_b16 %s, v7 offset:%d" % (v(XF + 4 * q, 2), q * 1024))
            a("ds_read_b64_tr_b16 %s, v7 offset:%d" % (v(XF + 4 * q + 2, 2), q * 1024 + 512))
        if self.opt.get("wopf", 2) == 2:
            wopf()
        pwb = self.opt.get("pwb", 0)
        if pwb:
            a("v_mov_b32 v120, 0\nv_mov_b32 v121, 0\nv_mov_b32 v122, 0\nv_mov_b32 v123, 0")
        if pwb & 1:
            for i in range(4):
                a("s_add_u32 s15, s13, 0x%x" % (i * 0x80000))
                a("buffer_store_dwordx4 v[120:123], v11, %s, s15 offen sc1" % ws)
        sp1 = [(fdp[1] + 3 - i) // 4 for i in range(4)]
        fnext(sp1[0])

        def stage_cs(re, im, out, conj):
            S, N = (CS + 16, CS + 8) if conj else (CS + 8, CS + 16)
            for tau in range(2):
                a("%s %s, %s, %s, 0" % (M16, v(out + 4 * tau, 4), v(re, 4), v(CS + 4 * tau, 4)))
                a("%s %s, %s, %s, 0" % (M16, v(out + 8 + 4 * tau, 4), v(im, 4), v(CS + 4 * tau, 4)))
            for tau in range(2):
                a("%s %s, %s, %s, %s" % (M16, v(out + 4 * tau, 4), v(im, 4), v(S + 4 * tau, 4), v(out + 4 * tau, 4)))
                a("%s %s, %s, %s, %s" % (M16, v(out + 8 + 4 * tau, 4), v(re, 4), v(N + 4 * tau, 4), v(out + 8 + 4 * tau, 4)))

        def twiddle(t, tws, tmp, conj):
            for tau in range(2):
                for j in (0, 2):
                    re, im = t + 4 * tau + j, t + 8 + 4 * tau + j
                    sn_ = tws[tau] + 4 + j
                    k = tmp + 8 * tau + 2 * j
                    a("v_pk_mul_f32 %s, %s, %s" % (v(k, 2), v(im, 2), v(sn_, 2)))
                    a("v_pk_mul_f32 %s, %s, %s" % (v(k + 2, 2), v(re, 2), v(sn_, 2)))
            ng = " neg_lo:[0,0,1] neg_hi:[0,0,1]"
            for tau in range(2):
                for j in (0, 2):
                    re, im = t + 4 * tau + j, t + 8 + 4 * tau + j
                    c = tws[tau] + j
                    k = tmp + 8 * tau + 2 * j
                    a("v_pk_fma_f32 %s, %s, %s, %s%s" % (v(re, 2), v(re, 2), v(c, 2), v(k, 2), ng if conj else ""))
                    a("v_pk_fma_f32 %s, %s, %s, %s%s" % (v(im, 2), v(im, 2), v(c, 2), v(k + 2, 2), "" if conj else ng))

        a("s_waitcnt lgkmcnt(4)")
        stage_cs(XF, XF + 4, T1, False)
        a("s_waitcnt lgkmcnt(0)")
        stage_cs(XF + 8, XF + 12, T1 + 16, False)
        fnext(sp1[1])
        for m in range(2):
            t = T1 + 16 * m
            twiddle(t, [TW0, TWX], T + 64, False)
            for tau in range(2):
                u = U + 8 * m + 4 * tau
                self.cvt(u, v(t + 4 * tau), v(t + 4 * tau + 1))
                self.cvt(u + 1, v(t + 4 * tau + 2), v(t + 4 * tau + 3))
                self.cvt(u + 2, v(t + 8 + 4 * tau), v(t + 8 + 4 * tau + 1))
                self.cvt(u + 3, v(t + 8 + 4 * tau + 2), v(t + 8 + 4 * tau + 3))
            for tau in range(2):
                u = U + 8 * m + 4 * tau
                a("%s %s, %s, %s, 0" % (M16, v(t + 4 * tau, 4), v(F16, 4), v(u, 4)))
                a("%s %s, %s, %s, 0" % (M16, v(t + 8 + 4 * tau, 4), v(F16 + 4, 4), v(u, 4)))
            fnext(sp1[2 + m])
        fd = 2 if fdp[3] == 0 else 1
        ZW = T + 64
        for i in range(8):
            self.cvt(ZW + 2 * i, v(T1 + i), v(T1 + 8 + i))
        for i in range(8):
            self.cvt(ZW + 2 * i + 1, v(T1 + 16 + i), v(T1 + 24 + i))
            a("ds_write_b64 v8, %s offset:%d" % (v(ZW + 2 * i, 2), (i >> 2) * 256 + (i & 3) * 512))
        a("s_waitcnt lgkmcnt(0)\ns_barrier")
        self.stamp()
        for f in range(4):
            a("ds_read_b128 %s, v%d offset:%d" % (v(XF + 4 * f, 4), 9 + (f >> 1), (f & 1) * 16384))
        fnext(fdp[2])
        PC = T + 48

        def pieces(src, j, dst, mark=True):
            for h in range(2):
                self.cvt(dst + h, v(src + 4 * j + 2 * h), v(src + 4 * j + 2 * h + 1))
                self.cvt(dst + 2 + h, v(src + 16 + 4 * j + 2 * h), v(src + 16 + 4 * j + 2 * h + 1))
            if mark:
                for x in self.mark(dst, 14):
                    a(x)

        lab = a.newlabel("NOX")
        a("s_cmp_lg_u32 s3, %d\ns_cbranch_scc1 %s" % (XW, lab))
        XE, TE = T + 64, T + 80
        a("ds_read_b128 %s, v130 offset:4096\nds_read_b128 %s, v130 offset:%d" % (v(XE, 4), v(XE + 4, 4), 4096 + 16384))
        a("v_lshlrev_b32 v16, 1, v6\nv_lshl_add_u32 v16, v4, 4, v16")
        a("s_waitcnt lgkmcnt(0)")
        for f in range(4):
            for ri in range(2):
                d = v(TE + 16 * ri, 16)
                a("%s %s, %s, %s, %s" % (M32, d, v(RA + 16 * ri + 4 * f, 4), v(XE + 4 * (f & 1), 4), d if f else "0"))
        a.label(lab)
        for f in range(4):
            a("s_waitcnt lgkmcnt(%d)" % (3 - f))
            for ri in range(2):
                d = v(T1 + 16 * ri, 16)
                a("%s %s, %s, %s, %s" % (M32, d, v(RA + 16 * ri + 4 * f, 4), v(XF + 4 * f, 4), d if f else "0"))
        if fd == 2 or pwb & 1:
            a("s_waitcnt vmcnt(0)")
        lab = a.newlabel("NOX")
        a("s_cmp_lg_u32 s3, %d\ns_cbranch_scc1 %s" % (XW, lab))
        for j in range(4):
            a("s_mov_b32 exec_lo, %d\ns_mov_b32 exec_hi, %d" % (1 << j, 1 << j))
            pieces(TE, j, XE + 8, False)
        a("s_mov_b32 exec_lo, 15\ns_mov_b32 exec_hi, 15")
        for x in self.mark(XE + 8, 14):
            a(x)
        a("buffer_store_dwordx4 %s, v16, %s, s14 offen sc1" % (v(XE + 8, 4), ws))
        a("s_mov_b64 exec, -1")
        a.label(lab)
        a("ds_write_b64 v15, v[140:141]\nds_write_b64 v15, v[142:143] offset:4096")
        a("s_nop 6")
        for j in range(4):
            pieces(T1, j, PC + 4 * j)
            a("buffer_store_dwordx4 %s, v11, %s, s13 offen sc1" % (v(PC + 4 * j, 4), ws))
            if j < 3:
                a("v_xor_b32 v11, 0x%x, v11" % ((j ^ (j + 1)) * 0x82000))
        self.stamp()
        if pwb & 2:
            for i in range(4):
                a("s_add_u32 s15, s66, 0x%x" % (i * 0x10000))
                a("buffer_store_dwordx4 v[120:123], v3, %s, s15 offen sc1" % ws)
        fnext(fdp[3])
        assert fdn[0] == 8

        F32 = 16
        FL = 48
        LD, LD2 = 96, 112
        FL2 = T + 64
        DAT, FR, TM = T, T + 32, T + 48
        tab(F32, TQ_F32, 4)
        tab(FR, TQ_OM, 4)
        a("""v_lshrrev_b32 v11, 2, v1
        v_xor_b32 v11, v11, v4
        v_lshlrev_b32 v129, 9, v11
        v_and_b32 v11, 3, v1
        v_lshl_add_u32 v11, v11, 4, v129
        s_lshl_b32 s62, s4, 4
        v_xor_b32 v129, s62, v11
        s_and_b32 s62, s60, 15
        s_lshl_b32 s62, s62, 9
        v_xor_b32 v11, s62, v11
        s_lshl_b32 s62, s60, 15
        s_lshl_b32 s64, s3, 6
        s_add_u32 s62, s62, s64
        s_lshr_b32 s64, s60, 4
        s_lshl_b32 s64, s64, 13
        s_add_u32 s62, s62, s64
        v_add_u32 v11, 0x%x, v11
        s_add_u32 s70, s70, %d
        v_add_u32 v6, s70, v2
        v_and_b32 v132, 1, v13
        v_lshl_add_u32 v132, v13, 3, v132
        v_bfe_u32 v133, v1, 3, 1
        v_lshl_add_u32 v132, v133, 1, v132
        v_lshlrev_b32 v132, 6, v132
        v_and_b32 v133, 3, v1
        v_lshl_add_u32 v132, v133, 4, v132
        v_bfe_u32 v133, v1, 2, 1
        v_lshl_add_u32 v132, v133, 3, v132
        v_add_u32 v132, s70, v132
        v_xor_b32 v133, 64, v132""" % (WS_X1, ZB))

        def faddr(dst, kk, t1, t2):
            a("""v_and_b32 v{t2}, 3, v12
            s_lshl_b32 s15, s4, 2
            v_add_u32 v{t1}, s15, v{t2}
            v_and_b32 v{t1}, 7, v{t1}
            v_add_lshl_u32 v{t1}, v{t1}, v{kk}, 1
            v_lshl_add_u32 v{t1}, v{t2}, 4, v{t1}
            v_lshl_add_u32 v{t1}, v13, 6, v{t1}
            v_and_b32 v{t1}, 0x7f, v{t1}
            v_lshl_add_u32 v{t1}, v{t2}, 7, v{t1}
            v_lshl_add_u32 v{t1}, v13, 11, v{t1}
            v_add_u32 v{dst}, {wb}, v{t1}""".format(dst=dst, kk=kk, t1=t1, t2=t2, wb=WB))

        a("v_lshrrev_b32 v%d, 2, v12\nv_lshl_add_u32 v%d, s3, 2, v%d" % (LD, LD, LD))
        faddr(128, LD, LD + 1, LD + 2)
        a("""v_lshl_add_u32 v15, s3, 2, v13
        v_and_b32 v5, 7, v12
        v_xor_b32 v15, v15, v5
        v_lshlrev_b32 v15, 4, v15
        v_lshl_add_u32 v15, v12, 10, v15
        s_and_b32 s63, s3, 1
        s_lshl_b32 s64, s63, 6
        v_xor_b32 v7, s64, v2
        s_lshl_b32 s64, s3, 12
        v_add_u32 v7, s64, v7
        v_xor_b32 v136, 16, v7
        v_xor_b32 v137, 32, v7
        v_xor_b32 v138, 48, v7
        s_mov_b32 s64, 0x80008000
        s_waitcnt lgkmcnt(0)""")
        for i in range(16):
            a(("v_xor_b32 v%d, s64, v%d" if i & 1 else "v_mov_b32 v%d, v%d") % (F32 + 16 + i, F32 + i))
        a("s_xor_b32 s63, s62, 0x2000\ns_xor_b32 s64, s62, 0x4000\ns_xor_b32 s65, s62, 0x6000")
        if fd != 2:
            a("s_waitcnt vmcnt(0)")
        a("s_barrier")
        self.stamp()

        def fread(addr):
            for arr in range(2):
                for pm in range(2):
                    for t in range(8):
                        a("ds_read_u16_d16_hi v%d, v%d offset:%d" % (DAT + 16 * arr + 8 * pm + t, addr, arr * 32768 + pm * 16384 + (t >> 2) * 8192 + (t & 3) * 512))

        def filt(dst, raw):
            for j in range(0, 8, 2):
                a("v_pk_add_f32 %s, %s, %s" % (v(dst + j, 2), v(raw + j, 2), v(raw + 8 + j, 2)))
                a("v_pk_add_f32 %s, %s, %s" % (v(dst + 8 + j, 2), v(raw + 16 + j, 2), v(raw + 24 + j, 2)))
                a("v_pk_add_f32 %s, %s, %s neg_lo:[0,1] neg_hi:[0,1]" % (v(raw + j, 2), v(raw + j, 2), v(raw + 8 + j, 2)))
                a("v_pk_add_f32 %s, %s, %s neg_lo:[0,1] neg_hi:[0,1]" % (v(raw + 16 + j, 2), v(raw + 16 + j, 2), v(raw + 24 + j, 2)))
            ng = " neg_lo:[0,0,1] neg_hi:[0,0,1]"
            for j in range(0, 8, 2):
                dr, di, c, sn_ = v(raw + j, 2), v(raw + 16 + j, 2), v(FR + j, 2), v(FR + 8 + j, 2)
                t1, t2 = v(raw + 8 + j, 2), v(raw + 24 + j, 2)
                a("v_pk_mul_f32 %s, %s, %s" % (t1, di, sn_))
                a("v_pk_mul_f32 %s, %s, %s" % (t2, dr, sn_))
                a("v_pk_fma_f32 %s, %s, %s, %s" % (v(dst + 16 + j, 2), dr, c, t1))
                a("v_pk_fma_f32 %s, %s, %s, %s%s" % (v(dst + 24 + j, 2), di, c, t2, ng))
                a("v_pk_fma_f32 %s, %s, %s, %s%s" % (v(dst + 32 + j, 2), dr, c, t1, ng))
                a("v_pk_fma_f32 %s, %s, %s, %s" % (v(dst + 40 + j, 2), di, c, t2))

        VS = 139

        sentinel = lambda base: self.markcheck(base, 16, VS)

        def x1load(special):
            for i in range(4):
                a("buffer_load_dwordx4 %s, v%d, %s, s%d offen sc1" % (v((LD2 if special else LD) + 4 * i, 4), 129 if special else 11, ws, (56 if special else 62) + i))

        def x1first():
            lab = a.newlabel("NOSP")
            a("s_cmp_lg_u32 s71, 0\ns_cbranch_scc1 " + lab)
            for i in range(4):
                a("s_mov_b32 s%d, 0x%x" % (56 + i, WS_X1 + 64 * 32768 + 0x2000 * i))
            x1load(True)
            a.label(lab)
            x1load(False)

        if fd != 2:
            x1first()
        fread(128)
        a("s_waitcnt lgkmcnt(0)")
        filt(FL, DAT)
        if fd == 2:
            a("s_waitcnt vmcnt(0)")
            self.diag_delay("d_x1")
            x1first()
        self.stamp()

        def hintx(pos):
            if self.opt.get("hx", 0) == pos:
                lab = a.newlabel("NOH")
                a("s_cmp_lg_u32 s3, 7\ns_cbranch_scc1 " + lab)
                a("buffer_store_dwordx4 v[140:143], v134, %s, s14 offen sc1" % ws)
                a.label(lab)

        def b2(fl, special):
            ld = LD2 if special else LD
            self.poll(lambda: x1load(special), lambda: sentinel(ld), VS, first_issued=True)
            for r in self.LT:
                a("s_xor_b32 s%d, s%d, 1" % (r, r))
            if not special:
                a.label(self.b2_skip)
                self.stamp()
            for i in range(4):
                a("ds_write_b128 v6, %s offset:%d" % (v(ld + 4 * i, 4), i * 1024))
            for p in range(2):
                for f in range(2):
                    for h in range(2):
                        a("ds_read_b64_tr_b16 %s, v%d offset:%d" % (v(FR + 8 * p + 4 * f + 2 * h, 2), 132 + p, f * 2048 + h * 256))
            if not special:
                hintx(1)
            for p in range(2):
                for f in range(2):
                    a("s_waitcnt lgkmcnt(%d)" % (6 - 4 * p - 2 * f))
                    for tau in range(2):
                        for ri in range(2):
                            d = v(DAT + 16 * p + 8 * ri + 4 * tau, 4)
                            a("%s %s, %s, %s, %s" % (M16, d, v(F32 + ((tau * 2 + ri) * 2 + f) * 4, 4), v(FR + 8 * p + 4 * f, 4), d if f else "0"))
            if not special:
                hintx(2)
            n1_ = " neg_lo:[1,0,0] neg_hi:[1,0,0]"

            def inv(f):
                for p in range(2):
                    for tau in range(2):
                        for ri in range(2):
                            d = v(OUT + 16 * p + 8 * ri + 4 * tau, 4)
                            a("%s %s, %s, %s, %s" % (M16, d, v(FR + 8 * p + 4 * f, 4), v(F32 + ((tau * 2 + ri) * 2 + f) * 4, 4), d if f else "0"))

            OUT = DAT
            for j in range(0, 8, 2):
                Er, Ei, Or, Oi = [v(DAT + 8 * k + j, 2) for k in range(4)]
                Ar, Ai, B1r, B1i, B2r, B2i = [v(fl + 8 * k + j, 2) for k in range(6)]
                k = TM + 8 * ((j >> 1) & 1)
                Pr, Pi, Qr, Qi = [v(k + 2 * i, 2) for i in range(4)]
                a("v_pk_mul_f32 %s, %s, %s" % (Pr, Ar, Er))
                a("v_pk_mul_f32 %s, %s, %s" % (Pi, Ar, Ei))
                a("v_pk_mul_f32 %s, %s, %s" % (Qr, B2r, Er))
                a("v_pk_mul_f32 %s, %s, %s" % (Qi, B2r, Ei))
                a("v_pk_fma_f32 %s, %s, %s, %s%s" % (Pr, Ai, Ei, Pr, n1_))
                a("v_pk_fma_f32 %s, %s, %s, %s" % (Pi, Ai, Er, Pi))
                a("v_pk_fma_f32 %s, %s, %s, %s%s" % (Qr, B2i, Ei, Qr, n1_))
                a("v_pk_fma_f32 %s, %s, %s, %s" % (Qi, B2i, Er, Qi))
                a("v_pk_fma_f32 %s, %s, %s, %s" % (Pr, B1r, Or, Pr))
                a("v_pk_fma_f32 %s, %s, %s, %s" % (Pi, B1r, Oi, Pi))
                a("v_pk_fma_f32 %s, %s, %s, %s" % (Qr, Ar, Or, Qr))
                a("v_pk_fma_f32 %s, %s, %s, %s" % (Qi, Ar, Oi, Qi))
                a("v_pk_fma_f32 %s, %s, %s, %s%s" % (Pr, B1i, Oi, Pr, n1_))
                a("v_pk_fma_f32 %s, %s, %s, %s" % (Pi, B1i, Or, Pi))
                a("v_pk_fma_f32 %s, %s, %s, %s%s" % (Qr, Ai, Oi, Qr, n1_))
                a("v_pk_fma_f32 %s, %s, %s, %s" % (Qi, Ai, Or, Qi))
                for e in range(2):
                    self.cvt(FR + j + e, v(k + e), "-" + v(k + 2 + e))
                    self.cvt(FR + 8 + j + e, v(k + 4 + e), "-" + v(k + 6 + e))
            for p in range(2):
                for f in range(2):
                    for tau in range(2):
                        for ri in range(2):
                            d = v(DAT + 16 * p + 8 * ri + 4 * tau, 4)
                            a("%s %s, %s, %s, %s" % (M16, d, v(FR + 8 * p + 4 * f, 4), v(F32 + ((tau * 2 + ri) * 2 + f) * 4, 4), d if f else "0"))
            if not special:
                hintx(3)
            if special:
                a("s_mov_b64 exec, 0xffff")
            for p in range(2):
                for tau in range(2):
                    o = TM + 8 * p + 4 * tau
                    for r in range(4):
                        self.cvt(o + r, v(DAT + 16 * p + 4 * tau + r), "-" + v(DAT + 16 * p + 8 + 4 * tau + r))
                    for x in self.mark(o, 14):
                        a(x)
                    if special:
                        a("buffer_store_dwordx4 %s, v2, %s, s67 offen offset:%d sc1" % (v(o, 4), ws, tau * 512 + p * 256))
                    else:
                        a("ds_write_b128 v15, %s offset:%d" % (v(o, 4), tau * 16384 + p * 512))
            if special:
                a("s_mov_b64 exec, -1")

        lab = a.newlabel("NOSP")
        a("s_cmp_lg_u32 s71, 0\ns_cbranch_scc1 " + lab)
        a("v_mov_b32 v%d, 32" % TM)
        faddr(128, TM, TM + 1, TM + 2)
        fread(128)
        a("s_waitcnt lgkmcnt(0)")
        filt(FL2, DAT)
        self.poll(lambda: x1load(False), lambda: sentinel(LD), VS, first_issued=True)
        b2(FL2, True)
        skip = a.newlabel("B2GO")
        self.b2_skip = skip
        a("s_branch " + skip)
        a.label(lab)
        b2(FL, False)
        a("s_waitcnt lgkmcnt(0)\ns_barrier")
        self.stamp()
        ST = LD
        for i in range(4):
            a("ds_read_b128 %s, v%d offset:%d" % (v(ST + 4 * i, 4), 135 + i if i else 7, i * 1024))
        for i in range(4):
            a("s_waitcnt lgkmcnt(%d)" % (3 - i))
            a("buffer_store_dwordx4 %s, v3, %s, s66 offen sc1" % (v(ST + 4 * i, 4), ws))
            if i < 3:
                a("v_xor_b32 v3, 0x%x, v3" % ((i ^ (i + 1)) * 0x400))
        self.stamp()
        lab = a.newlabel("NOEP")
        a("s_or_b32 s56, s60, s3\ns_cbranch_scc1 " + lab)
        a("v_mov_b32 v%d, s8\nv_mov_b32 v%d, s9\nv_mov_b32 v%d, 0\ns_mov_b64 exec, 1" % (TM, TM + 1, TM + 2))
        a("buffer_store_dwordx2 %s, v%d, %s, 0 offen offset:%d" % (v(TM, 2), TM + 2, ws, WS_EB))
        a("s_mov_b64 exec, -1")
        a.label(lab)

        G16 = F16
        tab(RA, 24, 8)
        tab(CS, TQ_CS, 8)
        tab(TWX, TQ_TW3, 4)
        a("""s_lshl_b32 s63, s3, 12
        v_mov_b32 v132, v135
        v_xor_b32 v133, 0x82000, v135
        v_xor_b32 v134, 0x104000, v135
        v_xor_b32 v135, 0x186000, v135
        s_mov_b32 s62, 0x%x
        v_bfe_u32 v5, v1, 2, 1
        v_lshlrev_b32 v5, 1, v5
        v_xor_b32 v5, v5, v13
        v_lshlrev_b32 v5, 3, v5
        v_lshl_add_u32 v5, v12, 5, v5
        s_add_u32 s63, s63, %d
        v_add_u32 v5, s63, v5
        v_bfe_u32 v6, v1, 3, 1
        v_lshlrev_b32 v6, 4, v6
        v_xor_b32 v6, v6, v2
        v_add_u32 v6, s63, v6
        s_lshl_b32 s64, s3, 7
        s_add_u32 s64, s64, s60
        s_lshl_b32 s64, s64, 11
        s_mov_b32 s56, 0.5
        s_mov_b32 s57, 0.5
        s_cmp_eq_u32 s3, 0
        s_cselect_b32 s68, -2, -1
        s_mov_b32 s69, s68
        s_lshr_b32 s63, s60, 5
        s_and_b32 s65, s60, 1
        s_lshl1_add_u32 s63, s63, s65
        s_bfe_u32 s65, s60, 0x40001
        s_lshl4_add_u32 s63, s63, s65
        v_and_b32 v11, 7, v1
        v_xor_b32 v11, s63, v11
        v_lshlrev_b32 v11, 4, v11
        v_lshl_add_u32 v11, v4, 10, v11
        s_mov_b32 s63, 0x%x
        s_mov_b32 s65, 0x%x""" % (WS_X1, WB, WS_X2S, WS_X2S + 4096))
        RE, IM, ZP, XS = T + 16, T + 32, T + 48, LD2

        def radix_inv(x):
            for f in range(4):
                for ri in range(2):
                    d = v(RE + 16 * ri, 16)
                    a("%s %s, %s, %s, %s" % (M32, d, v(RA + 16 * ri + 4 * f, 4), v(x + 4 * f, 4), d if f else "0"))

        def average():
            a("s_mov_b32 exec_lo, 1\ns_mov_b32 exec_hi, 1")
            for j in range(0, 8, 2):
                a("v_pk_add_f32 %s, %s, %s" % (v(RE + j, 2), v(RE + j, 2), v(RE + 8 + j, 2)))
                a("v_pk_add_f32 %s, %s, %s neg_lo:[0,1] neg_hi:[0,1]" % (v(IM + j, 2), v(IM + j, 2), v(IM + 8 + j, 2)))
            for j in range(0, 8, 2):
                a("v_pk_mul_f32 %s, %s, s[56:57]" % (v(RE + j, 2), v(RE + j, 2)))
                a("v_pk_mul_f32 %s, %s, s[56:57]" % (v(IM + j, 2), v(IM + j, 2)))

        xsload = lambda: [a("buffer_load_dwordx4 %s, v11, %s, s%d offen offset:%d sc1" % (v(XS + 4 * f, 4), ws, 65 if f >> 1 else 63, (f & 1) * 2048)) for f in range(4)]
        x2load = lambda: [a("buffer_load_dwordx4 %s, v%d, %s, s62 offen sc1" % (v(XF + 4 * f, 4), 132 + f, ws)) for f in range(4)]
        def extra_tile():
            radix_inv(XS)
            average()
            for r in range(8):
                self.cvt(ZP + 16 + r, v(RE + r), v(IM + r))
            a("ds_write_b128 v130, %s offset:4096\nds_write_b128 v130, %s offset:%d" % (v(ZP + 16, 4), v(ZP + 20, 4), 4096 + 16384))
            a("s_mov_b64 exec, -1")

        lab = a.newlabel("NOX")
        lab2 = a.newlabel("X2GO")
        a("s_cmp_lg_u32 s3, %d\ns_cbranch_scc1 %s" % (XW3, lab))
        xsload()
        a("s_waitcnt vmcnt(0)")
        sentinel(XS)
        a("v_cmp_ne_u32 vcc, 0, v%d" % VS)
        late = a.newlabel("XSLATE")
        a("s_mov_b32 s15, 1\ns_cbranch_vccnz " + late)
        a("s_mov_b32 s15, 0")
        x2load()
        a("s_waitcnt lgkmcnt(0)")
        extra_tile()
        a("s_branch " + lab2)
        a.label(lab)
        a("s_mov_b32 s15, 0")
        if self.opt.get("k7", 1):
            a("s_cmp_eq_u32 s61, 7\ns_cbranch_scc1 " + late)
        a("s_waitcnt vmcnt(0)")
        self.diag_delay("d_x2")
        if self.opt.get("d_x27"):
            a("s_cmp_lg_u32 s3, 7\ns_cbranch_scc1 " + late)
            self.diag_delay("d_x27")
        a.label(late)
        x2load()
        a("s_waitcnt lgkmcnt(0)")
        a.label(lab2)
        self.stamp()
        self.poll(x2load, lambda: sentinel(XF), VS, first_issued=True)
        self.stamp()
        radix_inv(XF)
        lab = a.newlabel("NOAVG")
        a("s_nop 10")
        a("s_cmp_lg_u32 s3, 0\ns_cbranch_scc1 " + lab)
        average()
        a("s_mov_b64 exec, -1")
        a.label(lab)
        for r in range(8):
            self.cvt(ZP + r, v(RE + r), v(IM + r))
        a("ds_write_b128 v9, %s\nds_write_b128 v9, %s offset:16384" % (v(ZP, 4), v(ZP + 4, 4)))
        for r in range(8, 16):
            self.cvt(ZP + r, v(RE + r), "-" + v(IM + r))
        a("s_mov_b64 exec, s[68:69]")
        a("ds_write_b128 v10, %s\nds_write_b128 v10, %s offset:16384" % (v(ZP + 8, 4), v(ZP + 12, 4)))
        a("s_mov_b64 exec, -1")
        lab = a.newlabel("NOX")
        a("s_cmp_eq_u32 s15, 0\ns_cbranch_scc1 " + lab)
        self.poll(xsload, lambda: sentinel(XS), VS)
        extra_tile()
        a.label(lab)
        a("s_waitcnt lgkmcnt(0)\ns_barrier")
        self.stamp()
        ZR, ZF = T + 48, T
        for i in range(8):
            a("ds_read_b64 %s, v8 offset:%d" % (v(ZR + 2 * i, 2), (i >> 2) * 256 + (i & 3) * 512))
        for tau in range(2):
            a("s_waitcnt lgkmcnt(%d)" % (4 - 4 * tau))
            for m in range(2):
                for j in range(2):
                    b_ = ZR + 8 * tau + 4 * j
                    a("v_pk_mov_b32 %s, %s, %s op_sel:[%d,%d]" % (v(ZF + 8 * m + 4 * tau + 2 * j, 2), v(b_, 2), v(b_ + 2, 2), m, m))
        for m in range(2):
            t = T1 + 16 * m
            for tau in range(2):
                a("%s %s, %s, %s, 0" % (M16, v(t + 4 * tau, 4), v(ZF + 8 * m + 4 * tau, 4), v(G16, 4)))
                a("%s %s, %s, %s, 0" % (M16, v(t + 8 + 4 * tau, 4), v(ZF + 8 * m + 4 * tau, 4), v(G16 + 4, 4)))
        O4 = T + 80
        for m in range(2):
            t = T1 + 16 * m
            twiddle(t, [TW0, TWX], T + 64, True)
            u = U + 8 * m
            for j in range(8):
                self.cvt(u + j, v(t + 2 * j), v(t + 2 * j + 1))
            stage_cs(u, u + 4, O4 + 16 * m, True)
        fl = self.opt.get("outflag", "")
        for m in range(2):
            for ri in range(2):
                q = 2 * m + ri
                for tau in range(2):
                    o = O4 + 16 * m + 8 * ri + 4 * tau
                    d = T + 4 * q + 2 * tau
                    self.cvt(d, v(o), v(o + 1))
                    self.cvt(d + 1, v(o + 2), v(o + 3))
                    a("ds_write_b64 v5, %s offset:%d" % (v(d, 2), q * 1024 + tau * 512))
            for ri in range(2):
                q = 2 * m + ri
                a("ds_read_b128 %s, v6 offset:%d" % (v(T1 + 4 * q, 4), q * 1024))
        for q in range(4):
            a("s_add_u32 s65, s64, 0x%x" % ((q >> 1) * 64 * 2048 + (q & 1) * 1024 * 2048))
            a("s_waitcnt lgkmcnt(%d)" % (7 if q == 0 else 6 if q == 1 else 3 - q))
            a("buffer_store_dwordx4 %s, v2, %s, s65 offen offset:1024 %s" % (v(T1 + 4 * q, 4), s(self.rOUT, 4), fl))
        self.end()


TQ_CS, TQ_TW0, TQ_TW1, TQ_TW3, TQ_F32, TQ_OM = 0, 6, 8, 12, 16, 20


def make_table():
    import numpy as np
    from emu import bf16_rne
    l = np.arange(64)
    c, g = l & 15, l >> 4
    pk = lambda x, y: (bf16_rne(np.float32(x)) | (bf16_rne(np.float32(y)) << 16)).astype(np.uint32)
    fl = lambda x: np.float32(x).view(np.uint32)
    cs = lambda a_: (np.cos(2 * np.pi * a_), np.sin(2 * np.pi * a_))
    idx2 = [16 * (t >> 2) + 4 * g + (t & 3) for t in range(8)]
    R = []
    C = [[cs((c + 16 * tau) * idx2[t] / 32.0) for t in range(8)] for tau in range(2)]
    for k, sg in ((0, 1), (1, 1), (1, -1)):
        for tau in range(2):
            for j in range(4):
                R.append(pk(sg * C[tau][2 * j][k], sg * C[tau][2 * j + 1][k]))

    def tw(angs):
        for k in range(2):
            for x in angs:
                R.append(fl(cs(x)[k]))
    tw([c * idx2[r] / 512.0 for r in range(4)])
    tw([(c + 16) * idx2[r] / 512.0 for r in range(4)])
    H = [cs(c * idx2[x] / 16.0) for x in range(4)]
    R += [pk(H[0][0], H[1][0]), pk(H[2][0], H[3][0]), pk(H[0][1], H[1][1]), pk(H[2][1], H[3][1])]
    R += [pk(-H[0][1], -H[1][1]), pk(-H[2][1], -H[3][1]), pk(H[0][0], H[1][0]), pk(H[2][0], H[3][0])]
    tw([c * idx2[4 + r] / 512.0 for r in range(4)])
    sc = 2.0 ** -20
    R += [pk(sc * H[x][0], -sc * H[x][1]) for x in range(4)] + [pk(sc * H[x][1], sc * H[x][0]) for x in range(4)]
    R += [pk(C[0][t][0], C[0][t][1]) for t in range(8)] + [pk(-C[0][t][1], C[0][t][0]) for t in range(8)]
    for k in range(2):
        for t in range(8):
            R.append(fl(cs(idx2[t] / 64.0)[k]))
    R = np.array(R, np.uint32)
    assert R.shape == (96, 64)
    return np.ascontiguousarray(R.reshape(24, 4, 64).transpose(0, 2, 1)).reshape(-1)


def _sym_add(line, emuval=0):
    ins = Ins(line.rsplit(",", 1)[0] + ", %d" % emuval)
    ins.line = line
    return ins


def generate(stamps=False, opt=None):
    g = G(stamps, opt)
    a = g.build()
    nv = a.maxreg("v") + 1
    ns = a.maxreg("s") + 1
    tb = make_table()
    body = a.render() + ".p2align 8\n.type TABLE,@object\nTABLE:\n"
    for i in range(0, len(tb), 8):
        body += ".long " + ",".join("0x%08x" % x for x in tb[i:i + 8]) + "\n"
    body += ".size TABLE, %d\n" % (4 * len(tb))
    txt = wrap(body, 256, 512, LDS_SIZE, nv, ns)
    return a, txt


if __name__ == "__main__":
    stamps = "--stamps" in sys.argv
    opt = {}
    for x in sys.argv[1:]:
        if x.startswith("--") and "=" in x:
            k, val = x[2:].split("=", 1)
            opt[k] = int(val) if val.lstrip("-").isdigit() else val
    a, txt = generate(stamps, opt)
    out = [x for x in sys.argv[1:] if not x.startswith("--")]
    open(out[0] if out else "k.s", "w").write(txt)
    print("instructions:", sum(1 for k, _ in a.items if k == "i"), "vgpr", a.maxreg("v") + 1, "sgpr", a.maxreg("s") + 1)
```

```python
import numpy as np
from asmlib import Ins, f2u

U32 = np.uint32
M32 = 0xFFFFFFFF
LANE = np.arange(64, dtype=np.int64)
np.seterr(all="ignore")


def bf16_rne(f):
    u = f.astype(np.float32).view(U32)
    r = ((u.astype(np.uint64) + 0x7FFF + ((u >> 16) & 1)) >> 16).astype(U32) & 0xFFFF
    nan = np.isnan(f)
    r = np.where(nan, ((u >> 16) | 0x40) & 0xFFFF, r).astype(U32)
    return r


def unpack_bf16(regs):
    lo = (regs << 16).view(np.float32)
    hi = (regs & U32(0xFFFF0000)).view(np.float32)
    out = np.empty((regs.shape[0] * 2, 64), np.float32)
    out[0::2] = lo
    out[1::2] = hi
    return out.T


class Mem:
    def __init__(self):
        self.bufs = []
        self.next = 0x7F0000000000

    def alloc(self, name, arr):
        arr = np.ascontiguousarray(arr).view(np.uint8).reshape(-1)
        base = self.next
        self.next += (len(arr) + (4 << 20)) // (2 << 20) * (2 << 20) + (2 << 20)
        self.bufs.append((base, arr, name))
        return base

    def find(self, addr_lo, addr_hi):
        for base, arr, name in self.bufs:
            if base <= addr_lo and addr_hi <= base + len(arr):
                return base, arr, name
        raise RuntimeError("global access out of any allocation: %x..%x" % (addr_lo, addr_hi))

    def read(self, addrs, nbytes):
        base, arr, _ = self.find(int(addrs.min()), int(addrs.max()) + nbytes)
        idx = (addrs - base)[:, None] + np.arange(nbytes)[None, :]
        return arr[idx]

    def write(self, addrs, data):
        nbytes = data.shape[1]
        base, arr, name = self.find(int(addrs.min()), int(addrs.max()) + nbytes)
        assert not name.startswith("in"), "store into input " + name
        idx = (addrs - base)[:, None] + np.arange(nbytes)[None, :]
        arr[idx] = data


class Yield(Exception):
    pass


class Wave:
    def __init__(self, prog, wg, wid, kernarg, wgid):
        self.p = prog
        self.wg = wg
        self.v = np.random.randint(0, 2**32, size=(512, 64), dtype=np.uint64).astype(U32)
        self.s = [int(x) for x in np.random.randint(0, 2**32, size=128, dtype=np.uint64)]
        self.s[0] = kernarg & M32
        self.s[1] = kernarg >> 32
        self.s[2] = wgid
        self.s[126] = M32
        self.s[127] = M32
        self.v[0] = (LANE + wid * 64).astype(U32)
        self.scc = 0
        self.pc = 0
        self.done = False
        self.at_barrier = False
        self.vmq = []
        self.lgq = []
        self.pend = {}
        self.n_ins = 0
        self.wid = wid
        self._em = None
        self._emk = None

    def execmask(self):
        k = (self.s[126], self.s[127])
        if k != self._emk:
            e = self.s[126] | (self.s[127] << 32)
            self._em = ((e >> LANE.astype(object)) & 1).astype(bool) if e != (1 << 64) - 1 else None
            self._emk = k
        return self._em

    def commit(self, q, n):
        while len(q) > n:
            fn, regs, _ = q.pop(0)
            if fn:
                fn()
            for r in regs:
                self.pend[r] -= 1
                if self.pend[r] == 0:
                    del self.pend[r]

    def push(self, q, fn, regs, kind):
        for r in regs:
            self.pend[r] = self.pend.get(r, 0) + 1
        q.append((fn, regs, kind))


class WG:
    def __init__(self, lds_size):
        self.lds = np.random.randint(0, 256, size=lds_size, dtype=np.uint8)
        self.waves = []


class Prog:
    def __init__(self, items, mem, late=True, table=None):
        self.mem = mem
        self.late = late
        self.ins = []
        self.labels = {}
        for k, x in items:
            if k == "l":
                self.labels[x] = len(self.ins)
            elif k == "i":
                self.ins.append(x)
        self.fn = [self.compile(i) for i in self.ins]
        self.clock = 0
        code = np.zeros(1 << 16, np.uint8)
        if table is not None:
            code[0x8000:0x8000 + table.nbytes] = table.view(np.uint8)
        self.code_base = mem.alloc("in_code", code)

    def su(self, o):
        if o.kind == "s":
            lo = o.lo
            return lambda w: w.s[lo]
        if o.kind == "imm":
            val = o.val & M32
            return lambda w: val
        if o.kind == "fimm":
            val = f2u(o.val)
            return lambda w: val
        raise ValueError(o.txt)

    def su64(self, o):
        if o.kind == "s":
            lo = o.lo
            return lambda w: w.s[lo] | (w.s[lo + 1] << 32)
        val = o.val & ((1 << 64) - 1)
        return lambda w: val

    def vu(self, o, k=0):
        if o.kind == "v":
            lo = o.lo + k
            return lambda w: w.v[lo]
        if o.kind == "s":
            lo = o.lo + k
            return lambda w: np.full(64, w.s[lo], U32)
        g = self.su(o)
        arr = np.full(64, g(None), U32)
        return lambda w: arr

    def vf(self, o, k=0):
        g = self.vu(o, k)
        neg, ab = o.neg, o.abs
        if not neg and not ab:
            return lambda w: g(w).view(np.float32)

        def f(w):
            x = g(w).view(np.float32)
            if ab:
                x = np.abs(x)
            return -x if neg else x

        return f

    @staticmethod
    def setv(w, r, val):
        em = w.execmask()
        val = val.view(U32) if val.dtype == np.float32 else val.astype(U32)
        if em is None:
            w.v[r] = val
        else:
            w.v[r] = np.where(em, val, w.v[r])

    def compile(self, I):
        b, o, mods = I.base, I.ops, I.mods
        setv = self.setv
        mem = self.mem
        F = np.float32
        if b == "s_endpgm":
            def f(w):
                w.commit(w.vmq, 0)
                w.commit(w.lgq, 0)
                w.done = True
                raise Yield
            return f
        if b in ("s_nop", "s_setprio"):
            return lambda w: None
        if b == "s_sleep":
            def f(w):
                self.flush_stores(w)
                w.pc += 1
                raise Yield
            return f
        if b == "s_waitcnt":
            vm, lg = mods.get("vmcnt"), mods.get("lgkmcnt")
            def f(w):
                if vm is not None:
                    if vm > 0 and len(w.vmq) > vm:
                        kinds = {k == "store" for _, _, k in w.vmq}
                        assert len(kinds) == 1, "counted vmcnt with loads and stores mixed"
                    w.commit(w.vmq, vm)
                if lg is not None:
                    if lg > 0:
                        assert all(k != "smem" for _, _, k in w.lgq), "counted lgkmcnt with SMEM outstanding"
                    w.commit(w.lgq, lg)
            return f
        if b == "s_barrier":
            def f(w):
                assert all(k != "dsw" for _, _, k in w.lgq), "barrier with ds_write outstanding at %d" % w.pc
                w.at_barrier = True
                w.pc += 1
                raise Yield
            return f
        if b == "s_branch" or b.startswith("s_cbranch"):
            name = o[0].txt
            cond = {
                "s_branch": lambda w: True,
                "s_cbranch_scc0": lambda w: w.scc == 0,
                "s_cbranch_scc1": lambda w: w.scc == 1,
                "s_cbranch_vccz": lambda w: (w.s[106] | w.s[107]) == 0,
                "s_cbranch_vccnz": lambda w: (w.s[106] | w.s[107]) != 0,
                "s_cbranch_execz": lambda w: (w.s[126] | w.s[127]) == 0,
                "s_cbranch_execnz": lambda w: (w.s[126] | w.s[127]) != 0,
            }[b]
            def f(w):
                if cond(w):
                    t = self.labels[name]
                    back = t <= w.pc
                    w.pc = t - 1
                    if back and name.startswith("POLL"):
                        self.flush_stores(w)
                        w.pc += 1
                        raise Yield
            return f
        if b.startswith("s_load_dword"):
            n = {"s_load_dword": 1, "s_load_dwordx2": 2, "s_load_dwordx4": 4, "s_load_dwordx8": 8, "s_load_dwordx16": 16}[b]
            base, off, d = self.su64(o[1]), self.su(o[2]), o[0].lo
            regs = list(I.w)
            def f(w):
                data = mem.read(np.array([base(w) + off(w)], np.int64), 4 * n)[0].view(U32)
                def c():
                    for i in range(n):
                        w.s[d + i] = int(data[i])
                w.push(w.lgq, c, regs, "smem")
            return f
        if b in ("s_memrealtime", "s_memtime"):
            d = o[0].lo
            regs = list(I.w)
            def f(w):
                self.clock += 1
                t = self.clock
                def c():
                    w.s[d] = t
                    w.s[d + 1] = 0
                w.push(w.lgq, c, regs, "smem")
            return f
        if b == "s_getpc_b64":
            d = o[0].lo
            def f(w):
                w.s[d] = self.code_base & M32
                w.s[d + 1] = self.code_base >> 32
            return f
        if b.startswith("s_cmp_") or b.startswith("s_bitcmp"):
            if b.endswith("u64"):
                a, c = self.su64(o[0]), self.su64(o[1])
            else:
                a, c = self.su(o[0]), self.su(o[1])
            sg = (lambda x: x - (1 << 32) if x >> 31 else x) if b.endswith("i32") else (lambda x: x)
            op = {"eq": lambda x, y: x == y, "lg": lambda x, y: x != y, "lt": lambda x, y: x < y, "le": lambda x, y: x <= y,
                  "gt": lambda x, y: x > y, "ge": lambda x, y: x >= y}.get(b.split("_")[2])
            if b == "s_bitcmp1_b32":
                op = lambda x, y: (x >> y) & 1 == 1
            if b == "s_bitcmp0_b32":
                op = lambda x, y: (x >> y) & 1 == 0
            def f(w):
                w.scc = int(op(sg(a(w)), sg(c(w))))
            return f
        if b in ("s_mov_b32", "s_movk_i32"):
            a, d = self.su(o[1]), o[0].lo
            def f(w):
                w.s[d] = a(w)
            return f
        if b == "s_mov_b64":
            a, d = self.su64(o[1]), o[0].lo
            def f(w):
                x = a(w)
                w.s[d] = x & M32
                w.s[d + 1] = x >> 32
            return f
        if b in ("s_and_saveexec_b64",):
            a, d = self.su64(o[1]), o[0].lo
            def f(w):
                e = w.s[126] | (w.s[127] << 32)
                x = a(w) & e
                w.s[d], w.s[d + 1] = e & M32, e >> 32
                w.s[126], w.s[127] = x & M32, x >> 32
                w.scc = int(x != 0)
            return f
        if b in ("s_and_b64", "s_or_b64", "s_xor_b64", "s_andn2_b64", "s_not_b64"):
            a = self.su64(o[1])
            c = self.su64(o[2]) if len(o) > 2 else None
            d = o[0].lo
            M64 = (1 << 64) - 1
            op = {"s_and_b64": lambda x, y: x & y, "s_or_b64": lambda x, y: x | y, "s_xor_b64": lambda x, y: x ^ y,
                  "s_andn2_b64": lambda x, y: x & ~y & M64, "s_not_b64": lambda x, y: ~x & M64}[b]
            def f(w):
                x = op(a(w), c(w) if c else 0)
                w.s[d], w.s[d + 1] = x & M32, x >> 32
                w.scc = int(x != 0)
            return f
        if b == "s_cselect_b32":
            a, c, d = self.su(o[1]), self.su(o[2]), o[0].lo
            def f(w):
                w.s[d] = a(w) if w.scc else c(w)
            return f
        if b == "s_cselect_b64":
            a, c, d = self.su64(o[1]), self.su64(o[2]), o[0].lo
            def f(w):
                x = a(w) if w.scc else c(w)
                w.s[d], w.s[d + 1] = x & M32, x >> 32
            return f
        if b == "s_atomic_add":
            d, base = o[0].lo, self.su64(o[1])
            def f(w):
                ad = np.array([base(w)], np.int64)
                old = mem.read(ad, 4).copy().view(U32)
                mem.write(ad, (old + U32(w.s[d])).view(np.uint8).reshape(1, 4))
                def c():
                    w.s[d] = int(old[0, 0])
                w.push(w.lgq, c, [("s", d)], "smem")
            return f
        if b == "s_ff1_i32_b32":
            a, d = self.su(o[1]), o[0].lo
            def f(w):
                x = a(w)
                w.s[d] = ((x & -x).bit_length() - 1) & M32
            return f
        if b == "s_bitset0_b32":
            a, d = self.su(o[1]), o[0].lo
            def f(w):
                w.s[d] &= ~(1 << (a(w) & 31)) & M32
            return f
        if b == "buffer_atomic_add":
            d, srd = o[0].lo, o[2].lo
            def f(w):
                assert (w.s[126], w.s[127]) == (1, 0)
                ad = np.array([w.s[srd] | ((w.s[srd + 1] & 0xFFFF) << 32)], np.int64)
                old = mem.read(ad, 4).copy().view(U32)
                mem.write(ad, (old + w.v[d][0]).view(np.uint8).reshape(1, 4))
                def c():
                    w.v[d][0] = old[0, 0]
                w.push(w.vmq, c, [("v", d)], "load")
            return f
        if b == "s_addk_i32":
            d, k = o[0].lo, o[1].val
            def f(w):
                w.s[d] = (w.s[d] + k) & M32
            return f
        if b.startswith("s_") and len(o) == 3:
            a, c, d = self.su(o[1]), self.su(o[2]), o[0].lo
            def mk(fn, setscc):
                def f(w):
                    x, sc = fn(a(w), c(w), w.scc)
                    w.s[d] = x & M32
                    if setscc:
                        w.scc = int(sc)
                return f
            nz = lambda x: (x & M32, (x & M32) != 0)
            T = {
                "s_add_u32": (lambda x, y, c_: (x + y, (x + y) >> 32), 1),
                "s_add_i32": (lambda x, y, c_: (x + y, 0), 1),
                "s_addc_u32": (lambda x, y, c_: (x + y + c_, (x + y + c_) >> 32), 1),
                "s_sub_u32": (lambda x, y, c_: (x - y, x < y), 1),
                "s_subb_u32": (lambda x, y, c_: (x - y - c_, x < y + c_), 1),
                "s_sub_i32": (lambda x, y, c_: (x - y, 0), 1),
                "s_mul_i32": (lambda x, y, c_: (x * y, 0), 0),
                "s_and_b32": (lambda x, y, c_: nz(x & y), 1),
                "s_or_b32": (lambda x, y, c_: nz(x | y), 1),
                "s_xor_b32": (lambda x, y, c_: nz(x ^ y), 1),
                "s_andn2_b32": (lambda x, y, c_: nz(x & ~y), 1),
                "s_lshl_b32": (lambda x, y, c_: nz(x << (y & 31)), 1),
                "s_lshr_b32": (lambda x, y, c_: nz(x >> (y & 31)), 1),
                "s_bfe_u32": (lambda x, y, c_: nz((x >> (y & 31)) & ((1 << ((y >> 16) & 127)) - 1)), 1),
                "s_lshl1_add_u32": (lambda x, y, c_: ((x << 1) + y, 0), 1),
                "s_lshl2_add_u32": (lambda x, y, c_: ((x << 2) + y, 0), 1),
                "s_lshl3_add_u32": (lambda x, y, c_: ((x << 3) + y, 0), 1),
                "s_lshl4_add_u32": (lambda x, y, c_: ((x << 4) + y, 0), 1),
            }
            return mk(*T[b])
        if b.startswith("v_mfma"):
            big = "32x32" in b
            d, a, bb = o[0].lo, o[1].lo, o[2].lo
            c = o[3].lo if o[3].kind == "v" else None
            if big:
                n, nr = 32, 16
                rows = (8 * (np.arange(16)[:, None] >> 2) + 4 * (LANE[None, :] >> 5) + (np.arange(16)[:, None] & 3))
                cols = np.broadcast_to(LANE[None, :] & 31, (16, 64))
            else:
                n, nr = 16, 4
                rows = 4 * (LANE[None, :] >> 4) + np.arange(4)[:, None]
                cols = np.broadcast_to(LANE[None, :] & 15, (4, 64))
            g = 64 // n
            def f(w):
                assert w.execmask() is None, "mfma with partial exec"
                A = unpack_bf16(w.v[a:a + 4]).reshape(g, n, 8).transpose(1, 0, 2).reshape(n, g * 8)
                B = unpack_bf16(w.v[bb:bb + 4]).reshape(g, n, 8).transpose(1, 0, 2).reshape(n, g * 8)
                D = (A @ B.T)[rows, cols]
                if c is not None:
                    D = D + w.v[c:c + nr].view(F)
                w.v[d:d + nr] = D.astype(F).view(U32)
            return f
        if b.startswith("v_cmp_"):
            ty = b.split("_")[3]
            if ty == "f32":
                a, c = self.vf(o[1]), self.vf(o[2])
            elif ty == "i32":
                a0, c0 = self.vu(o[1]), self.vu(o[2])
                a, c = (lambda w: a0(w).view(np.int32)), (lambda w: c0(w).view(np.int32))
            else:
                a, c = self.vu(o[1]), self.vu(o[2])
            op = {"eq": np.equal, "ne": np.not_equal, "lt": np.less, "le": np.less_equal, "gt": np.greater,
                  "ge": np.greater_equal}[b.split("_")[2]]
            d = o[0].lo
            def f(w):
                m = op(a(w), c(w))
                em = w.execmask()
                if em is not None:
                    m = m & em
                x = np.packbits(m, bitorder="little").view(U32)
                w.s[d], w.s[d + 1] = int(x[0]), int(x[1])
            return f
        if b == "v_readfirstlane_b32":
            a, d = self.vu(o[1]), o[0].lo
            def f(w):
                em = w.execmask()
                i = 0 if em is None or not em.any() else int(np.argmax(em))
                w.s[d] = int(a(w)[i])
            return f
        if b == "v_cndmask_b32":
            a, c, d = self.vu(o[1]), self.vu(o[2]), o[0].lo
            ml = o[3].lo if len(o) > 3 else 106
            def f(w):
                m = np.unpackbits(np.array([w.s[ml], w.s[ml + 1]], U32).view(np.uint8), bitorder="little").astype(bool)
                setv(w, d, np.where(m, c(w), a(w)))
            return f
        if b == "v_cvt_pk_bf16_f32":
            a, c, d = self.vf(o[1]), self.vf(o[2]), o[0].lo
            return lambda w: setv(w, d, bf16_rne(a(w)) | (bf16_rne(c(w)) << 16))
        if b == "v_pk_mov_b32":
            sel = mods.get("op_sel", [0, 0])
            a, c, d = self.vu(o[1], sel[0]), self.vu(o[2], sel[1]), o[0].lo
            def f(w):
                x, y = a(w).copy(), c(w).copy()
                setv(w, d, x)
                setv(w, d + 1, y)
            return f
        if b in ("v_pk_fma_f32", "v_pk_mul_f32", "v_pk_add_f32"):
            ns = 3 if b == "v_pk_fma_f32" else 2
            sl = mods.get("op_sel", [0] * ns)
            sh = mods.get("op_sel_hi", [1] * ns)
            nl = mods.get("neg_lo", [0] * ns)
            nh = mods.get("neg_hi", [0] * ns)
            def comp(i, k):
                return self.vf(o[1 + i], k if o[1 + i].kind in ("v", "s") else 0)
            lo = [comp(i, sl[i]) for i in range(ns)]
            hi = [comp(i, sh[i]) for i in range(ns)]
            d = o[0].lo
            def ev(w, g, ng):
                x = [(-g[i](w) if ng[i] else g[i](w)) for i in range(ns)]
                if ns == 3:
                    return (x[0].astype(np.float64) * x[1] + x[2]).astype(F)
                return x[0] * x[1] if b == "v_pk_mul_f32" else x[0] + x[1]
            def f(w):
                x, y = ev(w, lo, nl), ev(w, hi, nh)
                setv(w, d, x)
                setv(w, d + 1, y)
            return f
        if b in ("v_permlane16_swap_b32", "v_permlane32_swap_b32"):
            d, c = o[0].lo, o[1].lo
            h = 16 if "16" in b else 32
            def f(w):
                x, y = w.v[d].copy(), w.v[c].copy()
                for base in range(0, 64, 2 * h):
                    t = y[base:base + h].copy()
                    y[base:base + h] = x[base + h:base + 2 * h]
                    x[base + h:base + 2 * h] = t
                w.v[d], w.v[c] = x, y
            return f
        fl1 = {
            "v_exp_f32": lambda x: np.exp2(x), "v_rcp_f32": lambda x: F(1) / x,
            "v_sin_f32": lambda x: np.sin(2 * np.pi * x.astype(np.float64)).astype(F),
            "v_cos_f32": lambda x: np.cos(2 * np.pi * x.astype(np.float64)).astype(F),
            "v_fract_f32": lambda x: x - np.floor(x),
        }
        clamp = mods.get("clamp")
        cl = (lambda x: np.nan_to_num(np.clip(x, 0, 1), nan=0.0).astype(F)) if clamp else (lambda x: x)
        if b in fl1:
            a, d, fn = self.vf(o[1]), o[0].lo, fl1[b]
            if b in ("v_sin_f32", "v_cos_f32"):
                def f(w):
                    x = a(w)
                    em = w.execmask()
                    assert np.all(np.abs(x if em is None else x[em]) <= 256), "sin/cos range"
                    setv(w, d, cl(fn(x).astype(F)))
                return f
            return lambda w: setv(w, d, cl(fn(a(w)).astype(F)))
        if b == "v_cvt_f32_u32":
            a, d = self.vu(o[1]), o[0].lo
            return lambda w: setv(w, d, a(w).astype(F))
        if b == "v_cvt_f32_i32":
            a, d = self.vu(o[1]), o[0].lo
            return lambda w: setv(w, d, a(w).view(np.int32).astype(F))
        fl2 = {
            "v_add_f32": lambda x, y: x + y, "v_sub_f32": lambda x, y: x - y, "v_subrev_f32": lambda x, y: y - x,
            "v_mul_f32": lambda x, y: x * y, "v_max_f32": np.fmax, "v_min_f32": np.fmin,
        }
        if b in fl2:
            a, c, d, fn = self.vf(o[1]), self.vf(o[2]), o[0].lo, fl2[b]
            if I.dpp:
                k = mods["row_ror"]
                idx = (LANE & ~15) | ((LANE - k) & 15)
                return lambda w: setv(w, d, fn(a(w)[idx], c(w)))
            return lambda w: setv(w, d, cl(fn(a(w), c(w))))
        if b in ("v_fma_f32", "v_fmaak_f32", "v_fmamk_f32"):
            a, c, e, d = self.vf(o[1]), self.vf(o[2]), self.vf(o[3]), o[0].lo
            return lambda w: setv(w, d, (a(w).astype(np.float64) * c(w) + e(w)).astype(F))
        if b == "v_fmac_f32":
            a, c, d = self.vf(o[1]), self.vf(o[2]), o[0].lo
            return lambda w: setv(w, d, (a(w).astype(np.float64) * c(w) + w.v[d].view(F)).astype(F))
        if b == "v_mov_b32":
            a, d = self.vu(o[1]), o[0].lo
            return lambda w: setv(w, d, a(w).copy())
        i2 = {
            "v_add_u32": lambda x, y: x + y, "v_sub_u32": lambda x, y: x - y, "v_subrev_u32": lambda x, y: y - x,
            "v_and_b32": lambda x, y: x & y, "v_or_b32": lambda x, y: x | y, "v_xor_b32": lambda x, y: x ^ y,
            "v_lshlrev_b32": lambda x, y: y << (x & 31), "v_lshrrev_b32": lambda x, y: y >> (x & 31),
            "v_mul_u32_u24": lambda x, y: (x & 0xFFFFFF) * (y & 0xFFFFFF), "v_mul_lo_u32": lambda x, y: x * y,
            "v_min_u32": np.minimum, "v_max_u32": np.maximum,
        }
        if b in i2:
            a, c, d, fn = self.vu(o[1]), self.vu(o[2]), o[0].lo, i2[b]
            return lambda w: setv(w, d, fn(a(w), c(w)))
        i3 = {
            "v_mad_u32_u24": lambda x, y, z: (x & 0xFFFFFF) * (y & 0xFFFFFF) + z,
            "v_lshl_add_u32": lambda x, y, z: (x << (y & 31)) + z, "v_add_lshl_u32": lambda x, y, z: (x + y) << (z & 31),
            "v_lshl_or_b32": lambda x, y, z: (x << (y & 31)) | z, "v_and_or_b32": lambda x, y, z: (x & y) | z,
            "v_or3_b32": lambda x, y, z: x | y | z, "v_add3_u32": lambda x, y, z: x + y + z,
            "v_bfe_u32": lambda x, y, z: (x >> (y & 31)) & ((U32(1) << (z & 31)) - U32(1)),
            "v_xad_u32": lambda x, y, z: (x ^ y) + z,
            "v_max3_u32": lambda x, y, z: np.maximum(np.maximum(x, y), z),
            "v_bfi_b32": lambda x, y, z: (x & y) | (~x & z),
        }
        if b in i3:
            a, c, e, d, fn = self.vu(o[1]), self.vu(o[2]), self.vu(o[3]), o[0].lo, i3[b]
            return lambda w: setv(w, d, fn(a(w), c(w), e(w)))
        if b == "v_bitop3_b32":
            a, c, e, d, tt = self.vu(o[1]), self.vu(o[2]), self.vu(o[3]), o[0].lo, mods["bitop3"]
            def f(w):
                x, y, z = a(w), c(w), e(w)
                r = np.zeros(64, U32)
                for i in range(8):
                    if (tt >> i) & 1:
                        r |= (x if i & 4 else ~x) & (y if i & 2 else ~y) & (z if i & 1 else ~z)
                setv(w, d, r)
            return f
        if b.startswith("ds_"):
            return self.compile_ds(I)
        if b.startswith("buffer_") or b.startswith("global_"):
            return self.compile_vmem(I)
        raise ValueError("emu: unsupported " + I.line)

    def flush_stores(self, w):
        for i, (fn, regs, kind) in enumerate(w.vmq):
            if kind == "store" and fn:
                fn()
                w.vmq[i] = (None, regs, kind)

    def compile_ds(self, I):
        b, o, mods = I.base, I.ops, I.mods
        regs = list(I.w)

        def rd(w, addr, n):
            lds = w.wg.lds
            assert addr.min() >= 0 and addr.max() + n <= len(lds), "LDS read OOB %d" % addr.max()
            assert np.all(addr % min(n, 16) == 0), "LDS read misaligned: " + I.line
            return lds[addr[:, None] + np.arange(n)[None, :]]

        if b.startswith("ds_read"):
            d, a = o[0].lo, o[1].lo
            if b == "ds_read_b64_tr_b16":
                off = mods.get("offset", 0)
                def f(w):
                    assert w.execmask() is None
                    x = rd(w, w.v[a].astype(np.int64) + off, 8).copy().view(np.uint16).reshape(4, 4, 4, 4)
                    y = np.ascontiguousarray(x.transpose(0, 2, 3, 1)).reshape(64, 4)
                    y = y.view(U32)
                    def c():
                        w.v[d] = y[:, 0]
                        w.v[d + 1] = y[:, 1]
                    w.push(w.lgq, c, regs, "dsr")
                return f
            if b in ("ds_read_u16_d16_hi", "ds_read_u16"):
                off = mods.get("offset", 0)
                hi = b.endswith("hi")
                def f(w):
                    assert w.execmask() is None
                    x = rd(w, w.v[a].astype(np.int64) + off, 2).copy().view(np.uint16)[:, 0].astype(U32)
                    def c():
                        w.v[d] = ((w.v[d] & 0xFFFF) | (x << 16)) if hi else x
                    w.push(w.lgq, c, regs, "dsr")
                return f
            if b.startswith("ds_read2"):
                es = 8 if b.endswith("b64") else 4
                st = es * (64 if "st64" in b else 1)
                offs = [mods.get("offset0", 0) * st, mods.get("offset1", 0) * st]
            else:
                es = {"ds_read_b32": 4, "ds_read_b64": 8, "ds_read_b128": 16}[b]
                offs = [mods.get("offset", 0)]
            def f(w):
                em = w.execmask()
                ad = w.v[a].astype(np.int64)
                if em is not None:
                    ad = np.where(em, ad, 0)
                xs = [rd(w, ad + of, es).copy().view(U32) for of in offs]
                def c():
                    k = d
                    for x in xs:
                        for j in range(x.shape[1]):
                            w.v[k] = x[:, j] if em is None else np.where(em, x[:, j], w.v[k])
                            k += 1
                w.push(w.lgq, c, regs, "dsr")
            return f
        if b.startswith("ds_write"):
            a = o[0].lo
            if b.startswith("ds_write2"):
                es = 8 if b.endswith("b64") else 4
                st = es * (64 if "st64" in b else 1)
                parts = [(o[1].lo, mods.get("offset0", 0) * st), (o[2].lo, mods.get("offset1", 0) * st)]
            else:
                es = {"ds_write_b32": 4, "ds_write_b64": 8, "ds_write_b128": 16}[b]
                parts = [(o[1].lo, mods.get("offset", 0))]
            def f(w):
                em = w.execmask()
                lds = w.wg.lds
                for r, of in parts:
                    ad = w.v[a].astype(np.int64) + of
                    data = np.ascontiguousarray(w.v[r:r + es // 4].T).view(np.uint8)
                    if em is not None:
                        ad, data = ad[em], data[em]
                    if len(ad) == 0:
                        continue
                    assert ad.max() + es <= len(lds), "LDS write OOB"
                    assert np.all(ad % es == 0), "LDS write misaligned: " + I.line
                    lds[ad[:, None] + np.arange(es)[None, :]] = data
                w.push(w.lgq, None, [], "dsw")
            return f
        raise ValueError(I.line)

    def compile_vmem(self, I):
        b, o, mods = I.base, I.ops, I.mods
        mem = self.mem
        isbuf = b.startswith("buffer_")
        load = "load" in b
        lds = getattr(I, "ldsdma", False)
        nb = 16 if b.endswith("x4") else 8 if b.endswith("x2") else 2 if "short" in b else 4
        off = mods.get("offset", 0)
        regs = list(I.w)
        if isbuf:
            k = 0 if lds else 1
            va, srd, so = o[k], o[k + 1].lo, self.su(o[k + 2])
            data = None if lds else o[0].lo
            assert mods.get("offen") or va.kind == "off"
            def addr(w):
                base = w.s[srd] | ((w.s[srd + 1] & 0xFFFF) << 32)
                assert w.s[srd + 3] == 0x20000 and (w.s[srd + 1] >> 16) == 0, "bad SRD"
                vo = w.v[va.lo].astype(np.int64) if va.kind == "v" else np.zeros(64, np.int64)
                o_ = vo + so(w) + off
                return base + o_, (o_ + nb) <= w.s[srd + 2], o_ < w.s[srd + 2]
        else:
            if load:
                k = 0 if lds else 1
                va, sa = o[k], o[k + 1]
                data = None if lds else o[0].lo
            else:
                va, sa, data = o[0], o[2], o[1].lo
            def addr(w):
                if sa.kind == "off":
                    x = w.v[va.lo].astype(np.int64) | (w.v[va.lo + 1].astype(np.int64) << 32)
                else:
                    x = w.v[va.lo].astype(np.int64) + (w.s[sa.lo] | (w.s[sa.lo + 1] << 32))
                t = np.ones(64, bool)
                return x + off, t, t

        def f(w):
            em = w.execmask()
            act = np.ones(64, bool) if em is None else em
            assert act.any(), "memory instruction with EXEC=0: " + I.line
            ad, inr, part = addr(w)
            assert np.all(ad[act] % min(nb, 4) == 0), "misaligned global access: " + I.line
            if load:
                x = np.zeros((64, nb), np.uint8)
                m = act & inr
                if m.any():
                    x[m] = mem.read(ad[m], nb)
                pm = act & part & ~inr
                for i in np.nonzero(pm)[0]:
                    base = w.s[srd] | ((w.s[srd + 1] & 0xFFFF) << 32)
                    for j in range(0, nb, 4):
                        if ad[i] + j + 4 - base <= w.s[srd + 2]:
                            x[i, j:j + 4] = mem.read(np.array([ad[i] + j]), 4)[0]
                if lds:
                    la = (w.s[124] & 0x3FFFC) + off + LANE * nb
                    assert la[act].max() + nb <= len(w.wg.lds), "LDS-DMA OOB"
                    def c():
                        w.wg.lds[la[act][:, None] + np.arange(nb)[None, :]] = x[act]
                    if self.late:
                        w.push(w.vmq, c, [], "dma")
                    else:
                        c()
                        w.push(w.vmq, None, [], "dma")
                elif nb == 2:
                    y = x.view(np.uint16)[:, 0].astype(U32)
                    hi = b.endswith("hi")
                    def c():
                        val = (y << 16) if hi else y
                        w.v[data] = np.where(act, val, w.v[data])
                    w.push(w.vmq, c, regs, "load")
                else:
                    y = x.view(U32)
                    def c():
                        for j in range(nb // 4):
                            w.v[data + j] = np.where(act, y[:, j], w.v[data + j])
                    w.push(w.vmq, c, regs, "load")
            else:
                assert np.all(inr[act]), "store out of SRD range: " + I.line
                x = np.ascontiguousarray(w.v[data:data + max(nb // 4, 1)].T).view(np.uint8)[:, :nb]
                a2, x2 = ad[act].copy(), x[act].copy()
                c = lambda: mem.write(a2, x2)
                if self.late:
                    w.push(w.vmq, c, [], "store")
                else:
                    c()
                    w.push(w.vmq, None, [], "store")
        return f

    def run_wave(self, w):
        ins, fn = self.ins, self.fn
        try:
            while True:
                I = ins[w.pc]
                if w.pend and I.base != "s_waitcnt":
                    bad = (I.r | I.w) & w.pend.keys()
                    if bad:
                        raise RuntimeError("use of register with outstanding load %s at: %s" % (sorted(bad)[:4], I.line))
                fn[w.pc](w)
                w.pc += 1
                w.n_ins += 1
        except Yield:
            pass
        except Exception:
            print("EMU ERROR wg", w.s[2] if False else "", "wave", w.wid, "pc", w.pc, ins[w.pc].line)
            raise


def run(items, mem, kernarg, wgids, nwaves, lds_size, late=True, reverse=False, max_rounds=300, table=None):
    prog = Prog(items, mem, late, table)
    wgs = []
    for g in wgids:
        wg = WG(lds_size)
        wg.waves = [Wave(prog, wg, i, kernarg, g) for i in range(nwaves)]
        wg.id = g
        wgs.append(wg)
    live = list(wgs)
    rounds = 0
    while live:
        rounds += 1
        if rounds >= max_rounds:
            from collections import Counter
            inv = {v_: k for k, v_ in prog.labels.items()}
            c = Counter((w.wid, w.pc, w.at_barrier) for wg in live for w in wg.waves if not w.done)
            for k, n in sorted(c.items()):
                print(k, n, prog.ins[k[1]].line, [prog.ins[k[1] + d].line for d in (-12, -8)])
            raise RuntimeError("emu: deadlock?")
        for wg in (reversed(live) if reverse else live):
            while True:
                ws = [w for w in wg.waves if not w.done]
                if not ws:
                    break
                for w in (reversed(ws) if reverse else ws):
                    if not w.at_barrier:
                        prog.run_wave(w)
                ws = [w for w in wg.waves if not w.done]
                if ws and all(w.at_barrier for w in ws):
                    for w in ws:
                        w.at_barrier = False
                    continue
                break
        live = [wg for wg in live if any(not w.done for w in wg.waves)]
    return wgs
```

```python
import sys
from asmlib import *
from common import wrap

WS_EP = 0x0
WS_GO = 0x1000
WS_NOTE = 0x800
WS_RED = 0x10000
RED_STRIDE = 0x4800
WS_X2S = 0x60000
WS_PART = 0x80000
PLINE = 1152
WS_PQ = 0x200000
WS_X1 = 0x400000
WS_STAMP = 0x1000000
WS_SIZE = 0x10000000
LDS_SIZE = 160 * 1024
TAGC_LO, TAGC_HI = 0x1E3779B1, 0x05EBCA6B
POLL_LIMIT = 1 << 18
M16 = "v_mfma_f32_16x16x32_bf16"
M32 = "v_mfma_f32_32x32x16_bf16"
XB, ZB, WB, TB = 0, 32768, 65536, 131072
RAB = TB + 24576


class G:
    def __init__(self, stamps=False, opt=None):
        self.a = Asm()
        self.stamps = stamps
        self.opt = opt or {}
        self.nst = 0
        self.role = ""

    sW = 3
    sTL, sTH = 6, 7
    sCNT = 12
    pXA, pWQ, pWO, pXB, pWR, pWI, pOUT, pDBG, pWS = 16, 18, 20, 22, 24, 26, 28, 30, 32
    rWS, rOUT, rA, rB, rC = 36, 40, 44, 48, 52
    sST = 72
    LT = [16, 17, 0, 1]

    def stamp(self):
        pr = self.opt.get("probe")
        if pr:
            if "%s:%d" % (self.role, self.nst) in pr.split("+"):
                self.a("s_memrealtime s[76:77]\ns_waitcnt lgkmcnt(0)")
            self.nst += 1
            return
        if not self.stamps:
            return
        k = self.nst
        assert k < 15
        self.a("%s %s\ns_waitcnt lgkmcnt(0)" % ("s_memtime" if self.opt.get("cyc") else "s_memrealtime", s(self.sST + 2 * k, 2)))
        self.nst += 1

    def end(self):
        a = self.a
        if self.opt.get("probe"):
            self.stamp()
            lab = a.newlabel("SPIN")
            a("s_waitcnt lgkmcnt(0)\ns_sub_u32 s76, s76, s72\ns_lshl_b32 s76, s76, 2\ns_add_u32 s76, s76, 2000\ns_min_u32 s76, s76, 20000")
            a.label(lab)
            a("s_memrealtime s[74:75]\ns_waitcnt lgkmcnt(0)\ns_sub_u32 s74, s74, s72\ns_cmp_lt_u32 s74, s76\ns_cbranch_scc1 %s" % lab)
        if self.stamps:
            self.stamp()
            a("s_mov_b64 exec, 1")
            a("s_lshl3_add_u32 s56, s5, s4\ns_lshl_b32 s56, s56, 3\ns_add_u32 s56, s56, s3\ns_lshl_b32 s56, s56, 6\ns_add_u32 s56, s56, 0x%x" % WS_STAMP)
            a("v_mov_b32 v2, 0")
            for k in range(self.nst):
                a("v_mov_b32 v3, s%d\nbuffer_store_dword v3, v2, %s, s56 offen offset:%d" % (self.sST + 2 * k, s(self.rWS, 4), 4 * k))
            a("v_mov_b32 v3, %d\nbuffer_store_dword v3, v2, %s, s56 offen offset:60" % (self.nst, s(self.rWS, 4)))
        a("s_endpgm")

    def pad_stamps(self, n):
        while (self.stamps or self.opt.get("probe")) and self.nst < n:
            if self.stamps:
                self.a("s_mov_b32 s%d, s%d" % (self.sST + 2 * self.nst, self.sST + 2 * self.nst - 2))
            self.nst += 1

    def srd(self, r, p, size):
        self.a("s_mov_b32 s%d, s%d\ns_mov_b32 s%d, s%d\ns_mov_b32 s%d, 0x%x\ns_mov_b32 s%d, 0x20000" % (r, p, r + 1, p + 1, r + 2, size, r + 3))

    def tags(self):
        t = self.LT
        self.a("""s_add_u32 s8, s8, 0x%x
        s_addc_u32 s9, s9, 0x%x
        s_and_b32 s6, s8, 0xbfffbfff
        s_and_b32 s7, s9, 0xbfffbfff
        s_bitcmp1_b32 s8, 0
        s_cselect_b32 s%d, 0x10001, 0
        s_xor_b32 s%d, s%d, 0x10000
        s_xor_b32 s%d, s%d, 0x10001
        s_xor_b32 s%d, s%d, 1""" % (TAGC_LO, TAGC_HI, t[0], t[1], t[0], t[2], t[0], t[3], t[0]))

    def flip_marks(self):
        for r in self.LT:
            self.a("s_xor_b32 s%d, s%d, 1" % (r, r))

    def mark(self, base, vmask):
        return ["v_and_or_b32 v%d, v%d, v%d, s%d" % (base + e, base + e, vmask, self.LT[e]) for e in range(4)]

    def markcheck(self, base, n, vacc):
        a = self.a
        a("v_xor_b32 v%d, s%d, v%d" % (vacc, self.LT[0], base))
        for i in range(1, n):
            a("v_bitop3_b32 v%d, v%d, v%d, s%d bitop3:0xf6" % (vacc, vacc, base + i, self.LT[i & 3]))
        a("v_and_b32 v%d, 0x10001, v%d" % (vacc, vacc))

    def tagcheck(self, pieces, vacc):
        a = self.a
        for i, p in enumerate(pieces):
            if i == 0:
                a("v_xor_b32 v%d, s%d, v%d" % (vacc, self.sTL, p + 1))
            else:
                a("v_bitop3_b32 v%d, v%d, v%d, s%d bitop3:0xf6" % (vacc, vacc, p + 1, self.sTL))
            a("v_bitop3_b32 v%d, v%d, v%d, s%d bitop3:0xf6" % (vacc, vacc, p + 3, self.sTH))

    def poll(self, issue, check, vacc, first_issued=False):
        a = self.a
        top, done, chk = a.newlabel("POLL"), a.newlabel("DONE"), a.newlabel("CHK")
        a("s_mov_b32 s%d, 0x%x" % (self.sCNT, POLL_LIMIT))
        if first_issued:
            a("s_branch " + chk)
        a.label(top)
        issue()
        if first_issued:
            a.label(chk)
        a("s_waitcnt vmcnt(0)")
        check()
        a("v_cmp_ne_u32 vcc, 0, v%d" % vacc)
        a("s_cbranch_vccz " + done)
        a("s_sleep %d" % self.opt.get("sl", 2))
        a("s_sub_u32 s%d, s%d, 1" % (self.sCNT, self.sCNT))
        a("s_cbranch_scc0 " + top)
        a.label(done)

    def diag_delay(self, name):
        n = self.opt.get(name, 0)
        if n:
            self.a("s_sleep %d" % n)

    def cvt(self, d, x, y):
        self.a("v_cvt_pk_bf16_f32 v%d, %s, %s" % (d, x, y))

    def build(self):
        a = self.a
        a.label("CODE0")
        a("""s_load_dwordx2 s[44:45], s[0:1], 0
        s_load_dwordx2 s[48:49], s[0:1], 8
        s_load_dwordx16 s[16:31], s[0:1], 0
        s_load_dwordx2 s[32:33], s[0:1], 64""")
        if self.opt.get("probe"):
            a("s_memrealtime s[72:73]\ns_memrealtime s[76:77]")
            self.nst = 1
        if self.stamps:
            a("%s %s" % ("s_memtime" if self.opt.get("cyc") else "s_memrealtime", s(self.sST, 2)))
            self.nst = 1
        a("""v_lshrrev_b32 v2, 6, v0
        v_and_b32 v1, 63, v0
        s_and_b32 s4, s2, 7
        v_readfirstlane_b32 s3, v2
        s_lshr_b32 s5, s2, 3
        s_cmp_ge_u32 s5, 32
        s_cbranch_scc1 EXIT
        s_mov_b32 s46, 0x200000
        s_mov_b32 s47, 0x20000
        ROT""".replace("ROT", "s_cmp_lt_u32 s5, 24\ns_cbranch_scc1 NOT_B" if self.opt.get("rot", 24) == 0 else "s_sub_u32 s5, s5, 8\ns_cbranch_scc0 NOT_B"))
        n0 = self.nst
        self.b_head()
        a.label("EXIT")
        a("s_endpgm")
        a.label("NOT_B")
        a("s_cmp_ge_u32 s3, 4\ns_cbranch_scc1 LOADER")
        pc = a.newlabel("PC")
        a("s_cmp_eq_u32 s3, 3\ns_cbranch_scc1 COMPUTE\ns_getpc_b64 s[56:57]")
        a.label(pc)
        a.items.append(("i", _sym_add("s_mov_b32 s58, ROLE_B-4-%s" % pc)))
        a("v_lshlrev_b32 v3, 7, v0\nv_min_u32 v3, s58, v3\nglobal_load_dword v0, v3, s[56:57]\ns_branch COMPUTE")
        a.label("LOADER")
        self.loader()
        self.nst = n0
        self.compute()
        self.nst = n0
        self.role_b()
        a.label("CODE_END")
        bad = a.check_branches()
        assert not bad, bad
        return a

    def b_head(self):
        a = self.a
        lab = a.newlabel("PC")
        a("s_getpc_b64 s[56:57]")
        a.label(lab)
        a.items.append(("i", _sym_add("s_add_u32 s58, s56, TABLE-%s" % lab, 0x8000)))
        a("""s_addc_u32 s59, s57, 0
        v_lshlrev_b32 v2, 4, v1
        s_mul_i32 s66, s3, 3072
        v_add_u32 v7, s66, v2
        s_add_u32 m0, s66, %d
        s_and_b32 s5, s5, 31""" % TB)
        for q in range(3):
            a("global_load_lds_dwordx4 v7, s[58:59] offset:%d" % (q * 1024))
        a("""s_and_b32 s61, s5, 7
        s_lshl3_add_u32 s60, s4, s61
        s_lshl_b32 s62, s3, 7
        s_add_u32 s62, s62, s60
        s_lshl_b32 s62, s62, 10
        s_add_u32 s63, s62, 0x%x
        s_add_u32 s64, s62, 0x%x
        s_add_u32 s65, s62, 0x%x
        s_lshl_b32 s70, s3, 12
        s_mov_b32 m0, s70
        s_waitcnt lgkmcnt(0)
        s_mov_b64 s[44:45], s[22:23]""" % (0x100000 - 1024, 0x10000 - 2048, 0x110000 - 3072))
        for q in range(4):
            a("buffer_load_dwordx4 v2, %s, s%d offen offset:%d nt lds" % (s(self.rA, 4), 62 + q, q * 1024))
        a("s_cmp_ge_u32 s3, 2\ns_cbranch_scc1 ROLE_B")
        a.items.append(("i", _sym_add("s_add_u32 s56, s56, ROLE_B-%s" % lab)))
        a("s_addc_u32 s57, s57, 0")
        a.items.append(("i", _sym_add("s_mov_b32 s58, CODE_END-4-ROLE_B")))
        a("v_lshlrev_b32 v3, 7, v0\nv_min_u32 v3, s58, v3\nglobal_load_dword v0, v3, s[56:57]")
        a("s_branch ROLE_B")

    def loader(self):
        a = self.a
        ws = s(self.rWS, 4)
        self.role = "L"
        vX, vW = 4, 8
        a("""s_lshr_b32 s60, s4, 1
        s_and_b32 s63, s5, 3
        s_lshl2_add_u32 s60, s60, s63
        s_bfe_u32 s65, s5, 0x20002
        s_lshr_b32 s66, s5, 4
        s_lshl_b32 s70, s65, s66
        s_add_u32 s70, s70, s63
        s_and_b32 s70, s70, 3
        s_sub_u32 s58, s3, 4
        s_lshl2_add_u32 s63, s60, s58
        s_lshl_b32 s63, s63, 15
        v_lshrrev_b32 v2, 3, v1
        v_lshrrev_b32 v3, 4, v1
        v_and_b32 v12, 7, v1
        v_xor_b32 v12, v12, v3
        v_lshl_add_u32 v12, v12, 4, s63
        v_lshl_add_u32 v4, v2, 10, v12
        v_xor_b32 v5, 64, v4
        v_add_u32 v5, 0x1c00, v5
        v_add_u32 v6, 0x3800, v4
        v_add_u32 v7, 0x3800, v5
        s_lshl_b32 s59, s58, 12""")

        def issue_x(c):
            a("s_add_u32 m0, s59, %d" % ((c & 3) * 32768))
            if self.opt.get("rotord"):
                a("s_add_u32 s62, s70, %d\ns_and_b32 s62, s62, 3\ns_or_b32 s62, s62, %d\ns_lshl_b32 s63, s62, 7" % (c & 3, c & 4))
            else:
                a("s_xor_b32 s62, s70, %d\ns_lshl_b32 s63, s62, 7" % c)
            if c == 0:
                a("s_waitcnt lgkmcnt(0)")
            for j in range(4):
                a("buffer_load_dwordx4 v%d, %s, s63 offen offset:%d lds" % (vX + j, s(self.rA, 4), j * 1024))

        def issue_w(c):
            a("s_add_u32 m0, s59, %d" % ((c & 3) * 32768 + 16384))
            a("s_mul_i32 s64, s62, 0x30000")
            for j in range(4):
                a("buffer_load_dwordx4 v%d, %s, s64 offen offset:%d lds" % (vW + j, s(self.rB, 4), j * 1024))

        def issue(c):
            issue_x(c)
            issue_w(c)

        issue_x(0)
        a("""s_and_b32 s64, s4, 1
        s_lshl2_add_u32 s61, s64, s65
        s_lshl1_add_u32 s66, s64, s65
        s_lshl_b32 s63, s61, 7
        s_add_u32 s63, s63, 1024
        s_lshl_b32 s64, s66, 8
        s_cmp_ge_u32 s5, 16
        s_cselect_b32 s63, s64, s63
        s_cselect_b32 s64, 7, 10
        v_bfe_u32 v12, v1, 2, 2
        v_xor_b32 v12, v12, v3
        v_lshrrev_b32 v13, 1, v12
        v_lshlrev_b32 v13, s64, v13
        v_and_b32 v14, 1, v12
        v_lshl_add_u32 v13, v14, 6, v13
        v_and_b32 v14, 3, v1
        v_lshl_add_u32 v13, v14, 4, v13
        v_mul_u32_u24 v15, 0xc00, v3
        s_mul_i32 s65, s58, 0xc000
        s_add_u32 s65, s65, s63
        v_add3_u32 v8, v13, v15, s65
        v_add_u32 v9, 0x2c00, v8
        v_add_u32 v10, 0x5800, v8
        v_add_u32 v11, 0x8400, v8
        s_mov_b32 s50, 0x180000
        s_mov_b32 s51, 0x20000""")
        issue_w(0)
        a("s_load_dwordx2 s[8:9], s[32:33], %d" % WS_EP)
        issue(1)
        self.srd(self.rWS, self.pWS, WS_SIZE)
        self.srd(self.rOUT, self.pOUT, 2048 * 2048)
        a("s_waitcnt lgkmcnt(0)")
        self.tags()
        for c in range(0, 6):
            a("s_waitcnt vmcnt(8)\ns_barrier")
            if c == 0:
                self.stamp()
            issue(c + 2)
        a("s_cmp_ge_u32 s5, 16\ns_cbranch_scc1 QLOADER")
        n0 = self.nst
        WSLOT = [4, 0, 1, 2]
        self.srd(self.rC, self.pWO, 512 * 1024)
        a("""s_and_b32 s68, s5, 3
        s_lshl_b32 s69, s58, 13
        v_lshlrev_b32 v16, 6, v12
        v_lshl_add_u32 v16, v14, 4, v16
        v_lshl_add_u32 v16, v3, 10, v16
        s_lshl_b32 s65, s58, 15
        s_lshr_b32 s66, s5, 2
        s_lshl_b32 s66, s66, 8
        s_add_u32 s65, s65, s66
        v_add_u32 v16, s65, v16
        v_add_u32 v17, 0xc00, v16
        v_add_u32 v18, 0x1800, v16
        v_add_u32 v19, 0x2400, v16""")

        def issue_wo(n):
            slot = WSLOT[n] * 32768
            a("s_add_u32 m0, s69, %d" % slot)
            a("s_xor_b32 s63, s68, %d\ns_lshl_b32 s63, s63, 17" % n)
            for j in range(4):
                a("buffer_load_dwordx4 v%d, %s, s63 offen offset:%d lds" % (16 + j, s(self.rC, 4), j * 1024))
            a("s_add_u32 m0, s69, %d" % (slot + 4096))
            a("s_add_u32 s63, s63, 0x4000")
            for j in range(4):
                a("buffer_load_dwordx4 v%d, %s, s63 offen offset:%d lds" % (16 + j, s(self.rC, 4), j * 1024))

        def read_wo(n):
            ad, off = {4: (0, 0), 0: (14, 0), 1: (14, 32768), 2: (15, 0)}[WSLOT[n]]
            for h in range(8):
                r = 128 + 32 * n + 4 * h
                a("ds_read_b64_tr_b16 %s, v%d offset:%d" % (v(r, 2), ad, off + h * 4096))
                a("ds_read_b64_tr_b16 %s, v%d offset:%d" % (v(r + 2, 2), ad, off + h * 4096 + 2048))

        a("s_waitcnt vmcnt(8)\ns_barrier")
        issue_wo(0)
        a("s_waitcnt vmcnt(8)\ns_barrier")
        self.stamp()
        issue_wo(1)
        issue_wo(2)
        a("""v_bfe_u32 v14, v1, 2, 2
        v_lshrrev_b32 v15, 5, v1
        v_lshl_add_u32 v15, v15, 2, v14
        v_xor_b32 v14, s58, v14
        v_lshlrev_b32 v14, 6, v14
        v_lshl_add_u32 v14, v15, 8, v14
        v_and_b32 v15, 1, v1
        v_lshl_add_u32 v14, v15, 5, v14
        v_bfe_u32 v15, v1, 4, 1
        v_lshl_add_u32 v14, v15, 4, v14
        v_bfe_u32 v15, v1, 1, 1
        v_lshl_add_u32 v14, v15, 3, v14
        v_add_u32 v15, 0x10000, v14
        v_add_u32 v0, 0x20000, v14""")
        self.tail_addr()
        a("s_waitcnt vmcnt(0)")
        self.stamp()
        a("s_barrier")
        issue_wo(3)
        for n in range(3):
            read_wo(n)
        self.read_wo = read_wo
        a("s_branch KV_TAIL")
        self.kv_tail_nst = self.nst
        self.nst = n0
        a.label("QLOADER")
        self.role = "R"
        self.reducer_setup()
        a("s_waitcnt vmcnt(8)\ns_barrier\ns_waitcnt vmcnt(0)\ns_barrier")
        if self.opt.get("prewrite", 1):
            lab = a.newlabel("NOZ")
            a("s_cmp_gt_u32 s71, 8\ns_cbranch_scc1 " + lab)
            a("buffer_store_dwordx4 v[32:35], v21, %s, s67 offen sc1" % ws)
            a.label(lab)
        lab = a.newlabel("PC")
        a("s_getpc_b64 s[56:57]")
        a.label(lab)
        a.items.append(("i", _sym_add("s_add_u32 s56, s56, TABLE-%s" % lab, 0x8000)))
        a("s_addc_u32 s57, s57, 0\nv_lshlrev_b32 v2, 4, v1\nv_add_u32 v3, s59, v2\ns_add_u32 m0, s59, %d" % TB)
        for q in range(4):
            a("global_load_lds_dwordx4 v3, s[56:57] offset:%d" % (q * 1024))
        self.ra_inv(1, 84)
        a("ds_write_b64 v90, v[88:89]")
        a("s_waitcnt vmcnt(0) lgkmcnt(0)\ns_barrier")
        self.stamp()
        self.reducer()

    def ra_inv(self, half, t):
        self.a("""v_and_b32 v{0}, 7, v1
        v_lshlrev_b32 v{0}, 6, v{0}
        s_add_u32 s62, s60, {h}
        v_add_u32 v{0}, s62, v{0}
        v_cvt_f32_u32 v{0}, v{0}
        v_mul_f32 v{0}, {c1}, v{0}
        s_lshr_b32 s62, s3, 1
        s_and_b32 s15, s3, 1
        s_lshl2_add_u32 s14, s62, s15
        s_lshl_b32 s14, s14, 1
        v_lshrrev_b32 v{1}, 5, v1
        v_lshl_add_u32 v{1}, v{1}, 2, s14
        v_cvt_f32_u32 v{1}, v{1}
        v_bfe_u32 v{2}, v1, 3, 1
        v_cvt_f32_u32 v{2}, v{2}
        v_mul_f32 v{2}, {c2}, v{2}
        v_fma_f32 v{1}, v{1}, v{0}, v{2}
        v_lshlrev_b32 v{2}, 27, v1
        v_and_b32 v{2}, 0x80000000, v{2}
        v_or_b32 v{2}, {c3}, v{2}
        v_add_f32 v{3}, v{1}, v{2}
        v_sub_f32 v{2}, v{0}, v{2}
        v_add_f32 v{2}, v{1}, v{2}
        v_cos_f32 v{0}, v{3}
        v_sin_f32 v{3}, v{3}
        v_cos_f32 v{1}, v{2}
        v_sin_f32 v{2}, v{2}
        s_lshl_b32 s62, s62, 10
        s_lshl3_add_u32 s62, s15, s62
        s_add_u32 s62, s62, {rab}
        v_add_u32 v{6}, s62, v2
        v_cvt_pk_bf16_f32 v{4}, v{0}, -v{3}
        v_cvt_pk_bf16_f32 v{5}, v{1}, -v{2}""".format(*[t + i for i in range(7)], h=512 * half, c1=fhex(1 / 2048), c2=fhex(-0.25),
                                                      c3=fhex(0.125), rab=RAB))

    def reducer_setup(self):
        a = self.a
        a("""s_lshl3_add_u32 s60, s4, s5
        s_sub_u32 s60, s60, 16
        s_lshr_b32 s61, s60, 2
        s_and_b32 s71, s60, 3
        s_lshl2_add_u32 s71, s58, s71
        s_mul_i32 s63, s61, %d
        s_lshl_b32 s64, s71, 7
        s_add_u32 s63, s63, s64
        s_add_u32 s63, s63, 0x%x
        s_mul_i32 s67, s61, %d
        s_add_u32 s67, s67, s64
        s_add_u32 s67, s67, 0x%x
        s_add_u32 s64, s63, %d
        s_add_u32 s65, s63, %d
        s_add_u32 s66, s63, %d""" % (32 * PLINE, WS_PART, PLINE, WS_RED, 8 * PLINE, 16 * PLINE, 24 * PLINE))
        a("""v_lshrrev_b32 v2, 3, v1
        v_and_b32 v3, 7, v1
        v_lshlrev_b32 v3, 4, v3
        v_mov_b32 v22, %d
        v_mad_u32_u24 v20, v2, v22, v3
        v_mov_b32 v22, 0x%x
        v_mad_u32_u24 v21, v2, v22, v3""" % (PLINE, RED_STRIDE))
        a("""v_and_b32 v2, 1, v1
        v_lshlrev_b32 v2, 4, v2
        v_mov_b32 v3, 0x3f80
        v_lshlrev_b32 v3, v2, v3
        v_and_b32 v2, 2, v1
        v_cmp_eq_u32 vcc, 0, v2
        v_mov_b32 v24, 0
        v_mov_b32 v25, 0
        v_mov_b32 v28, 0
        v_mov_b32 v29, 0
        v_cndmask_b32 v26, 0, v3, vcc
        v_cndmask_b32 v27, v3, v25, vcc
        v_mov_b32 v32, 0xfffefffe
        v_mov_b32 v33, 0
        v_mov_b32 v34, 0
        v_mov_b32 v35, 0""")

    def reducer(self):
        a = self.a
        ws = s(self.rWS, 4)
        D, acc, vacc, o = 40, 72, 80, 36
        lab = a.newlabel("NORED")
        n0 = self.nst
        self.pad_stamps(9)
        self.nst = n0
        a("s_cmp_gt_u32 s71, 8\ns_cbranch_scc1 HELPER")
        self.poll(lambda: [a("buffer_load_dwordx4 %s, v20, %s, s%d offen sc1" % (v(D + 4 * i, 4), ws, 63 + i)) for i in range(4)],
                  lambda: self.markcheck(D, 16, vacc), vacc)
        self.stamp()
        for i in range(4):
            for h in range(2):
                a("%s %s, %s, %s, %s" % (M16, v(acc + 4 * h, 4), v(26 - 2 * h, 4), v(D + 4 * i, 4), v(acc + 4 * h, 4) if i else "0"))
        for r in range(8):
            a("v_add_f32_dpp v%d, v%d, v%d row_ror:8 row_mask:0xf bank_mask:0xf" % (56 + r, acc + r, acc + r))
        for j in range(4):
            self.cvt(o + j, v(56 + 2 * j), v(57 + 2 * j))
        for x in self.mark(o, 32):
            a(x)
        a("buffer_store_dwordx4 %s, v21, %s, s67 offen sc1" % (v(o, 4), ws))
        self.stamp()
        self.pad_stamps(9)
        a("s_branch HELPER")

    def lds_reset(self):
        self.lq_issued = 0
        self.lq_done = 0

    def lds(self, line):
        self.a(line)
        self.lq_issued += 1
        return self.lq_issued

    def lds_wait(self, seq):
        if seq > self.lq_done:
            n = min(self.lq_issued - seq, 15)
            self.a("s_waitcnt lgkmcnt(%d)" % n)
            self.lq_done = self.lq_issued - n

    @staticmethod
    def cost(line):
        m = line.split()[0]
        if m.startswith(("v_exp", "v_rcp", "v_sin", "v_cos")):
            return 8
        return 4

    def run_mfmas(self, mf, frags, pool, fillers, budget=24, maxread=2, maxout=14, hooks=None):
        a = self.a
        order = []
        last = {}
        for j, (_, ids) in enumerate(mf):
            for i in ids:
                if i not in last:
                    order.append(i)
                last[i] = j
        pool = list(pool)
        reg, seq = {}, {}
        rp = [0, 0]
        q = []

        def one_read():
            i = order[rp[0]]
            reads, pre = frags[i]
            if rp[1] == 0:
                if not pool:
                    return False
                if pre:
                    pre()
                reg[i] = pool.pop(0)
            sq = self.lds(reads[rp[1]].format(r=v(reg[i], 4), lo=v(reg[i], 2), hi=v(reg[i] + 2, 2)))
            rp[1] += 1
            if rp[1] == len(reads):
                seq[i] = sq
                rp[0] += 1
                rp[1] = 0
            return True

        while rp[0] < len(order) and self.lq_issued - self.lq_done < maxout - 2 and pool and not (rp[0] and frags[order[rp[0]]][1]):
            one_read()
        for j, (fmt, ids) in enumerate(mf):
            for i in ids:
                while i not in seq:
                    assert one_read()
            if ids:
                self.lds_wait(max(seq[i] for i in ids))
            a(fmt.format(*[v(reg[i], 4) for i in ids]))
            for i in ids:
                if last[i] == j:
                    pool.append(reg[i])
            if hooks and j in hooks:
                hooks[j]()
            b = budget
            k = 0
            while k < maxread and rp[0] < len(order) and self.lq_issued - self.lq_done < maxout:
                gate = frags[order[rp[0]]]
                if rp[1] == 0 and len(gate) > 2 and gate[2]() is False:
                    break
                if not one_read():
                    break
                k += 1
                b -= 4
            q += fillers.get(j, [])
            while q and b >= self.cost(q[0]):
                x = q.pop(0)
                b -= self.cost(x)
                self.emit_filler(x)
            self.fq = q
        return q

    def emit_filler(self, x):
        if x.startswith("ds_"):
            self.last_fill_lds = self.lds(x)
        elif x.startswith("WAITLDS"):
            self.lds_wait(self.last_fill_lds - int(x.split()[1]))
        else:
            self.a(x)

    def gemm_loop(self, acc, pool, ax, aw, xfirst, fill, Z, hooks=None):
        a = self.a
        frags, mf = {}, []
        seen = set()

        def fx(n, mb, tag):
            c, ks = n >> 2, n & 3
            slot = c & 3
            hi, so = slot >> 1, (slot & 1) * 32768
            pre = None
            if c not in seen:
                seen.add(c)
                pre = (lambda: a("s_barrier")) if c else None
            frags[("x", n, mb, tag)] = (["ds_read_b128 {r}, v%d offset:%d" % (ax[hi][ks], so + 4096 * mb)], pre)
            return ("x", n, mb, tag)

        def fw(n, nb):
            c, ks = n >> 2, n & 3
            slot = c & 3
            hi, so = slot >> 1, (slot & 1) * 32768 + 16384 + ks * 4096
            frags[("w", n, nb)] = (["ds_read_b64_tr_b16 {lo}, v%d offset:%d" % (aw[hi][nb], so),
                                    "ds_read_b64_tr_b16 {hi}, v%d offset:%d" % (aw[hi][nb], so + 1024)], None)
            return ("w", n, nb)

        def add(n, nbs, tag):
            X = [fx(n, 0, tag), fx(n, 1, tag)]
            for nb in nbs:
                W = fw(n, nb)
                for mb in range(2):
                    d = v(acc[mb][nb], 16)
                    mf.append(("v_mfma_f32_32x32x16_bf16 %s, %s, %s" % (d, "{0}, {1}" if xfirst else "{1}, {0}", d if n else "0"), [X[mb], W]))

        for n in range(32 - Z):
            add(n, (0, 1), 0)
        for n in range(32 - Z, 32):
            add(n, (0,), 0)
        j0 = len(mf)
        for n in range(32 - Z, 32):
            add(n, (1,), 1)
        a("s_barrier")
        self.stamp()
        self.lds_reset()
        return self.run_mfmas(mf, frags, pool, {j0 + 1: fill}, hooks=hooks)

    def phi(self, src, dst, tmp, n):
        L = []
        for g in range(0, n, 8):
            for j in range(0, 8, 2):
                L.append("v_pk_mul_f32 %s, %s, s[56:57]" % (v(tmp + j, 2), v(src + g + j, 2)))
            for j in range(8):
                L.append("v_exp_f32_e64 v%d, v%d clamp" % (tmp + j, tmp + j))
                L.append("v_max_f32 v%d, s58, v%d" % (src + g + j, src + g + j))
            for j in range(0, 8, 2):
                L.append("v_pk_add_f32 %s, %s, %s" % (v(tmp + j, 2), v(tmp + j, 2), v(src + g + j, 2)))
            for j in range(0, 8, 2):
                L.append("v_cvt_pk_bf16_f32 v%d, v%d, v%d" % (dst + (g + j) // 2, tmp + j, tmp + j + 1))
        return L

    def compute(self):
        a = self.a
        ws = s(self.rWS, 4)
        a.label("COMPUTE")
        self.role = "K"
        ax = [[240, 241, 242, 243], [244, 245, 246, 247]]
        aw = [[248, 249], [250, 251]]
        a("""s_lshr_b32 s60, s4, 1
        s_and_b32 s68, s5, 3
        s_lshl2_add_u32 s60, s60, s68
        s_and_b32 s64, s4, 1
        s_bfe_u32 s65, s5, 0x20002
        s_lshl2_add_u32 s61, s64, s65
        s_lshl1_add_u32 s66, s64, s65
        s_lshr_b32 s63, s3, 1
        s_and_b32 s64, s3, 1
        s_lshr_b32 s67, s5, 4
        s_lshl_b32 s69, s64, s67
        s_movk_i32 s70, 128
        s_lshr_b32 s70, s70, s67
        s_cmp_ge_u32 s5, 16
        s_cselect_b32 s61, s66, s61
        s_mov_b32 s10, 0xffff0000
        s_mov_b32 s11, 0xffff0000""")
        a("""v_and_b32 v2, 31, v1
        v_lshlrev_b32 v2, 7, v2
        s_lshl_b32 s65, s63, 13
        v_add_u32 v2, s65, v2
        v_lshrrev_b32 v3, 5, v1
        v_bfe_u32 v16, v1, 1, 3
        v_xor_b32 v16, v16, v3
        v_lshl_add_u32 v240, v16, 4, v2
        v_xor_b32 v241, 32, v240
        v_xor_b32 v242, 64, v240
        v_xor_b32 v243, 96, v240""")
        a("""v_bfe_u32 v16, v1, 2, 2
        v_lshl_add_u32 v17, v3, 3, v16
        v_xor_b32 v16, s69, v16
        v_lshlrev_b32 v16, 6, v16
        v_lshl_add_u32 v16, v17, 8, v16
        v_bfe_u32 v17, v1, 4, 1
        v_lshl_add_u32 v16, v17, 5, v16
        v_and_b32 v17, 3, v1
        v_lshl_add_u32 v248, v17, 3, v16
        v_xor_b32 v249, s70, v248""")
        for k in range(4):
            a("v_add_u32 v%d, 0x10000, v%d" % (244 + k, 240 + k))
        a("v_add_u32 v250, 0x10000, v248\nv_add_u32 v251, 0x10000, v249")
        a("s_waitcnt lgkmcnt(0)")
        a("s_load_dwordx2 s[8:9], s[32:33], %d" % WS_EP)
        self.srd(self.rWS, self.pWS, WS_SIZE)
        self.srd(self.rOUT, self.pOUT, 2048 * 2048)
        a("s_mov_b32 s56, %s\ns_mov_b32 s57, %s\ns_mov_b32 s58, %s" % (fhex(1.4426950408889634), fhex(1.4426950408889634), fhex(1e-6)))
        a("v_lshlrev_b32 v2, 4, v1")
        acc = [[64, 96], [80, 112]]
        pool = list(range(16, 64, 4))
        Z = self.opt.get("z", 4)
        CN = 252
        a("s_cmp_ge_u32 s5, 16\ns_cbranch_scc1 QCOMPUTE")
        n0 = self.nst
        a("""s_lshl1_add_u32 s59, s61, s64
        s_lshl_b32 s59, s59, 5
        s_lshl1_add_u32 s66, s60, s63
        s_add_u32 s59, s59, s66
        s_mul_i32 s59, s59, %d
        s_add_u32 s59, s59, 0x%x""" % (PLINE, WS_PART))
        P0, P1, PZ, ONES, zaddr = 128, 132, 136, 140, 144
        pk, vv, tmp, D, D2 = 180, 196, 212, 148, 164
        for j in range(4):
            a("v_mov_b32 v%d, 0x3f803f80" % (ONES + j))

        def prewrite():
            a("buffer_store_dwordx4 %s, v2, %s, s59 offen sc1" % (v(ONES, 4), ws))
            a("s_mov_b64 exec, 0xff")
            a("buffer_store_dwordx4 %s, v2, %s, s59 offen offset:1024 sc1" % (v(ONES, 4), ws))
            a("s_mov_b64 exec, -1")

        pw = self.opt.get("prewrite", 1)
        if pw == 1:
            prewrite()
        a("""v_lshrrev_b32 v3, 4, v1
        v_and_b32 v145, 1, v1
        v_lshl_add_u32 v4, v3, 1, v145
        v_lshlrev_b32 v%d, 4, v4
        v_mov_b32 v145, 0xfffefffe""" % zaddr)
        self.tail_addr()
        a("s_waitcnt lgkmcnt(0)")
        self.tags()
        K0, K1, V0, V1 = acc[0][0], acc[1][0], acc[0][1], acc[1][1]
        fill = []
        for i, src in enumerate((K0, K0 + 8, K1, K1 + 8)):
            fill += self.phi(src, pk + 4 * i, tmp, 8)
        hooks = {100: lambda: a("s_waitcnt vmcnt(0)")}
        if pw > 1:
            hooks[pw] = prewrite
        rest = self.gemm_loop(acc, pool, ax, aw, True, fill, Z, hooks)
        self.stamp()
        ndone = 4 - (len(rest) + 27) // 28
        for i in range(ndone):
            a("%s %s, %s, %s, %s" % (M32, v(D2, 16), v(pk + 4 * i, 4), v(ONES, 4), v(D2, 16) if i else "0"))
            for x in rest[:6]:
                a(x)
            rest = rest[6:]
        vsrc = (V0, V0 + 8, V1, V1 + 8)
        vcvt = lambda i: [a("v_cvt_pk_bf16_f32 v%d, v%d, v%d" % (vv + 4 * i + j, vsrc[i] + 2 * j, vsrc[i] + 2 * j + 1)) for j in range(4)]
        mD = lambda i: a("%s %s, %s, %s, %s" % (M32, v(D, 16), v(pk + 4 * i, 4), v(vv + 4 * i, 4), v(D, 16) if i else "0"))
        mZ = lambda i: a("%s %s, %s, %s, %s" % (M32, v(D2, 16), v(pk + 4 * i, 4), v(ONES, 4), v(D2, 16) if i else "0"))
        nd = 0
        for i in range(ndone, 4):
            n = len(rest) - 28 * (3 - i)
            grp, rest = rest[:n], rest[n:]
            for k, x in enumerate(grp):
                a(x)
                if k == 8 and nd < i:
                    vcvt(nd)
                if k == 12 and nd < i:
                    mD(nd)
                    nd += 1
            vcvt(nd)
            mZ(i)
            mD(nd)
            nd += 1
        while nd < 4:
            vcvt(nd)
            mD(nd)
            nd += 1
        for src, p in ((D2, PZ), (D, P0)):
            for t in range(8):
                a("v_cndmask_b32 v%d, v%d, v%d, s[10:11]" % (tmp + t, src + t, src + 8 + t))
            for j in range(4):
                self.cvt(p + j, v(tmp + 2 * j), v(tmp + 2 * j + 1))
            for x in self.mark(p, 145):
                a(x)
            if p == PZ:
                a("s_mov_b32 exec_lo, 0x00030003\ns_mov_b32 exec_hi, 0x00030003")
                a("buffer_store_dwordx4 %s, v%d, %s, s59 offen offset:1024 sc1" % (v(PZ, 4), zaddr, ws))
                a("s_mov_b64 exec, -1")
            else:
                a("buffer_store_dwordx4 %s, v2, %s, s59 offen sc1" % (v(p, 4), ws))
        self.stamp()
        a("s_barrier")
        assert self.nst == self.kv_tail_nst
        self.kv_tail()
        self.nst = n0
        a.label("QCOMPUTE")
        self.role = "Q"
        a("""s_lshl1_add_u32 s66, s60, s63
        s_lshl2_add_u32 s66, s66, s61
        s_lshl1_add_u32 s66, s66, s64
        s_lshl_b32 s65, s66, 13
        s_add_u32 s65, s65, 0x%x
        s_add_u32 s67, s65, 0x1000
        v_mov_b32 v4, 0xfffefffe
        s_lshl3_add_u32 s60, s4, s5
        s_sub_u32 s60, s60, 16""" % WS_PQ)
        self.ra_inv(1, 8)
        a("s_waitcnt lgkmcnt(0)")
        a("ds_write_b64 v14, v[12:13]")
        self.tags()
        a("s_waitcnt lgkmcnt(0)")

        def qpost(nb):
            L = []
            for mb in range(2):
                for h in range(2):
                    d = 128 + 16 * nb + 8 * mb + 4 * h
                    L += self.phi(acc[mb][nb] + 8 * h, d, 212, 8) + self.mark(d, 4)
                    L.append("buffer_store_dwordx4 %s, v2, %s, s%d offen offset:%d sc1" % (v(d, 4), ws, 67 if nb else 65, (h * 2 + mb) * 1024))
            return L

        rest = self.gemm_loop(acc, pool, ax, aw, False, qpost(0), self.opt.get("zq", 4), {100: lambda: a("s_waitcnt vmcnt(0)")})
        self.stamp()
        for x in rest + qpost(1):
            a(x)
        a("s_waitcnt vmcnt(%d)\ns_barrier" % self.opt.get("qdr", 0))
        self.stamp()
        self.pad_stamps(9)
        a.label("HELPER")
        a("s_lshl_b32 s62, s60, 7\ns_add_u32 s62, s62, 0x%x\ns_movk_i32 s34, 512" % WS_GO)
        self.flip_marks()
        a("s_branch B3_ENTRY")

    def tail_addr(self):
        a = self.a
        a("""v_lshlrev_b32 v2, 4, v1
        s_and_b32 s65, s5, 3
        s_lshl2_add_u32 s65, s4, s65
        s_lshl3_add_u32 s66, s65, s3
        s_lshl_b32 s67, s66, 13
        s_add_u32 s67, s67, 0x%x
        s_mul_i32 s70, s3, %d
        s_mul_i32 s71, s4, 0x%x
        s_add_u32 s70, s70, s71
        s_add_u32 s70, s70, 0x%x
        s_add_u32 s71, s70, %d
        v_lshrrev_b32 v8, 4, v1
        v_xor_b32 v8, 1, v8
        v_and_b32 v9, 1, v1
        v_lshl_add_u32 v8, v8, 1, v9
        v_lshlrev_b32 v8, 4, v8
        s_lshl_b32 s63, s3, 12
        v_add_u32 v13, s63, v2
        s_mov_b32 s10, 0xffff0000
        s_mov_b32 s11, 0xffff0000""" % (WS_PQ, 2 * PLINE, RED_STRIDE, WS_RED, PLINE))

    def kv_tail(self):
        a = self.a
        ws = s(self.rWS, 4)
        a.label("KV_TAIL")
        WO, PQ, RD, OP, AC = 128, 16, 48, 80, 96
        a("s_waitcnt vmcnt(0)")
        a("s_add_u32 s68, s67, 0x1000\ns_mov_b32 s58, %s" % fhex(1e-6))
        pqload = lambda: [a("buffer_load_dwordx4 %s, v2, %s, s%d offen offset:%d sc1" % (v(PQ + 4 * i, 4), ws, 68 if i >= 4 else 67, (i & 3) * 1024)) for i in range(8)]
        self.diag_delay("d_pq")
        pql = self.opt.get("pqlate", 1)
        if pql != 1:
            pqload()
        if pql == 2:
            self.stamp()
            self.poll(pqload, lambda: self.markcheck(PQ, 32, 12), 12, first_issued=True)
        a("s_waitcnt lgkmcnt(0)\ns_barrier")
        self.stamp()
        if pql == 1:
            pqload()
        lab = a.newlabel("NOWO")
        a("s_cmp_lt_u32 s3, 4\ns_cbranch_scc1 " + lab)
        self.read_wo(3)
        a.label(lab)
        if pql != 2:
            self.poll(pqload, lambda: self.markcheck(PQ, 32, 12), 12, first_issued=True)
            self.stamp()

        def issue():
            for pi in range(2):
                a("buffer_load_dwordx4 %s, v2, %s, s70 offen offset:%d sc1" % (v(RD + 8 * pi, 4), ws, pi * PLINE))
                a("buffer_load_dwordx4 %s, v8, %s, s70 offen offset:%d sc1" % (v(RD + 8 * pi + 4, 4), ws, pi * PLINE + 1024))

        a("""s_lshl_b32 s63, s5, 13
        s_and_b32 s64, s63, 0x6000
        v_add_u32 v4, s64, v2
        v_xor_b32 v5, 0x2000, v4
        v_xor_b32 v6, 0x4000, v4
        v_xor_b32 v7, 0x6000, v4
        s_lshl_b32 s69, s3, 12
        s_add_u32 s69, s69, 0x14000
        v_and_b32 v10, 31, v1
        v_bfe_u32 v14, v1, 1, 2
        v_lshrrev_b32 v15, 5, v1
        v_lshlrev_b32 v15, 1, v15
        v_xor_b32 v14, v14, v15
        v_lshlrev_b32 v14, 4, v14
        v_lshl_add_u32 v10, v10, 6, v14
        v_add_u32 v10, s69, v10
        v_xor_b32 v14, 16, v10
        v_bfe_u32 v15, v1, 3, 2
        v_lshlrev_b32 v15, 4, v15
        v_xor_b32 v15, v15, v2
        v_add_u32 v15, s69, v15
        v_lshrrev_b32 v3, 2, v1
        v_and_b32 v11, 3, v1
        v_lshlrev_b32 v11, 4, v11
        v_lshl_add_u32 v3, v3, 11, v11
        s_lshl_b32 s65, s65, 17
        s_lshr_b32 s69, s5, 2
        s_and_b32 s64, s3, 3
        s_lshl2_add_u32 s69, s69, s64
        s_lshl_b32 s69, s69, 6
        s_add_u32 s64, s65, s69
        s_add_u32 s65, s64, 0x8000
        s_add_u32 s66, s64, 0x10000
        s_add_u32 s67, s64, 0x18000""")
        self.diag_delay("d_red")
        self.poll(issue, lambda: self.markcheck(RD, 16, 12), 12)
        self.stamp()
        accs = [AC, AC + 16, RD, RD + 16]

        def sel(i):
            pi, h = i >> 1, i & 1
            b = RD + 8 * pi
            for j in range(4):
                x, y = (b + j, b + 4 + j) if h == 0 else (b + 4 + j, b + j)
                a("v_cndmask_b32 v%d, v%d, v%d, s[10:11]" % (OP + 4 * i + j, x, y))

        def mf(i, mb, d):
            return "%s %s, %s, %s, 0" % (M32, v(d, 16), v(OP + 4 * i, 4), v(PQ + 4 * (i * 2 + mb), 4))

        def post(i, mb, d):
            pi, h = i >> 1, i & 1
            num, den = (d, d + 8) if h == 0 else (d + 8, d)
            L = ["v_add_f32 v%d, s58, v%d" % (den, den), "v_rcp_f32 v%d, v%d" % (den, den)]
            for j in range(0, 8, 2):
                L.append("v_pk_mul_f32 %s, %s, %s op_sel_hi:[1,0]" % (v(num + j, 2), v(num + j, 2), v(den, 2)))
            for j in range(4):
                L.append("v_cvt_pk_bf16_f32 v%d, v%d, v%d" % (den + 4 + j, num + 2 * j, num + 2 * j + 1))
            L.append("ds_write_b128 v13, %s offset:%d" % (v(den + 4, 4), mb * 32768 + i * 1024))
            return L

        sel(0)
        sel(1)
        a(mf(0, 0, accs[0]))
        sel(2)
        a(mf(1, 0, accs[1]))
        sel(3)
        a(mf(2, 0, accs[2]))
        for i in range(4):
            if i == 0:
                a(mf(3, 0, accs[3]))
            for x in post(i, 0, accs[i]):
                a(x)
        acc1 = [RD, RD + 16, AC + 16, RD]
        a(mf(0, 1, acc1[0]))
        a(mf(1, 1, acc1[1]))
        a("s_waitcnt lgkmcnt(0)\ns_barrier")
        self.stamp()
        a("s_cmp_ge_u32 s3, 4\ns_cbranch_scc1 OUT_GEMM")
        n0 = self.nst
        a(mf(2, 1, acc1[2]))
        a(mf(3, 1, AC))
        for i in range(4):
            for x in post(i, 1, acc1[i] if i < 3 else AC):
                a(x)
        a("s_waitcnt lgkmcnt(0)\ns_barrier")
        lab = a.newlabel("NOEP")
        a("s_or_b32 s56, s4, s3\ns_or_b32 s56, s56, s5\ns_cbranch_scc1 " + lab)
        self.poll(lambda: a("buffer_load_dwordx2 v[6:7], off, %s, 0 offset:%d sc1" % (ws, WS_NOTE)),
                  lambda: a("v_xor_b32 v12, s6, v6\nv_bitop3_b32 v12, v12, v7, s7 bitop3:0xf6"), 12)
        a("v_mov_b32 v6, s8\nv_mov_b32 v7, s9\ns_mov_b64 exec, 1")
        a("buffer_store_dwordx2 v[6:7], off, %s, 0 offset:%d" % (ws, WS_EP))
        a("s_mov_b64 exec, -1")
        a.label(lab)
        self.end()
        self.nst = n0
        a.label("OUT_GEMM")
        fl = self.opt.get("outflag", "sc1")
        out = s(self.rOUT, 4)
        frags, mfl = {}, []
        pool = [PQ + 8 * i for i in range(4)] + [PQ + 4, PQ + 12]

        def b11b():
            assert not self.fq
            self.lds_wait(self.last_fill_lds)
            a("s_barrier")

        AC2 = OP
        for mb in range(2):
            d = v(AC2 if mb else AC, 16)
            for h in range(32):
                frags[(mb, h)] = (["ds_read_b128 {r}, v%d offset:%d" % (4 + (h >> 3), mb * 32768 + (h & 7) * 1024)],
                                  b11b if (mb, h) == (1, 0) else None)
                mfl.append(("%s %s, %s, {0}, %s" % (M32, d, v(WO + 4 * h, 4), d if h else "0"), [(mb, h)]))
                if mb == 0 and h == 0:
                    mfl.append((mf(2, 1, acc1[2]), []))
                if mb == 0 and h == 4:
                    mfl.append((mf(3, 1, acc1[3]), []))

        def epi(mb, d, t):
            L = ["v_cvt_pk_bf16_f32 v%d, v%d, v%d" % (t + j, d + 2 * j, d + 2 * j + 1) for j in range(8)]
            L += ["ds_write_b128 v10, %s offset:%d" % (v(t, 4), mb * 2048), "ds_write_b128 v14, %s offset:%d" % (v(t + 4, 4), mb * 2048),
                  "ds_read_b128 %s, v15 offset:%d" % (v(t + 8, 4), mb * 2048), "ds_read_b128 %s, v15 offset:%d" % (v(t + 12, 4), mb * 2048 + 1024)]
            L2 = ["WAITLDS 1", "buffer_store_dwordx4 %s, v3, %s, s%d offen %s" % (v(t + 8, 4), out, 64 + 2 * mb, fl),
                  "WAITLDS 0", "buffer_store_dwordx4 %s, v3, %s, s%d offen %s" % (v(t + 12, 4), out, 65 + 2 * mb, fl)]
            return L, L2

        e0, e0b = epi(0, AC, RD)
        fillers = {0: post(0, 1, acc1[0]) + post(1, 1, acc1[1]), 6: post(2, 1, acc1[2]), 9: post(3, 1, acc1[3]), 36: e0, 46: e0b}
        self.lds_reset()
        rest = self.run_mfmas(mfl, frags, pool, fillers, maxread=1)
        assert not rest
        e1, e1b = epi(1, AC2, RD + 16)
        for x in e1 + e1b:
            self.emit_filler(x)
        self.end()

    def role_b(self):
        a = self.a
        a.label("ROLE_B")
        self.role = "B"
        ws = s(self.rWS, 4)
        XW, SW, XW3 = 0, 3, 1
        a("s_load_dwordx2 s[8:9], s[32:33], %d" % WS_EP)
        self.srd(self.rWS, self.pWS, WS_SIZE)
        a("""v_lshrrev_b32 v4, 5, v1
        v_and_b32 v5, 31, v1
        v_lshlrev_b32 v6, 4, v5
        v_lshl_add_u32 v3, s3, 3, v4
        v_xor_b32 v3, s60, v3
        v_lshl_add_u32 v3, v3, 9, v6
        v_lshl_add_u32 v11, v4, 3, s3
        v_xor_b32 v8, s60, v11
        v_lshl_add_u32 v11, v11, 15, v6
        v_lshl_add_u32 v11, v8, 9, v11
        s_lshl_b32 s66, s60, 15
        s_add_u32 s66, s66, 0x%x
        s_mov_b32 s13, 0x%x
        v_mov_b32 v14, 0xfffefffe""" % (WS_X1, WS_X1))
        a("""s_lshl_b32 s67, s4, 10
        s_add_u32 s67, s67, 0x%x
        v_and_b32 v12, 15, v1
        v_lshrrev_b32 v13, 4, v1
        s_xor_b32 s71, s61, 7
        s_xor_b32 s62, s3, %d
        s_or_b32 s71, s71, s62""" % (WS_X2S, SW))
        a("""s_bitcmp1_b32 s61, 0
        s_cselect_b64 s[48:49], s[26:27], s[24:25]
        s_cselect_b64 s[52:53], s[24:25], s[26:27]
        s_cselect_b32 s34, 0x8000, 0
        s_mov_b32 s50, 0x%x
        s_mov_b32 s51, 0x20000
        s_mov_b32 s54, 0x%x
        s_mov_b32 s55, 0x20000
        s_add_u32 s34, s34, s70
        s_add_u32 s34, s34, %d
        s_xor_b32 s35, s34, 0x8000""" % (2048 * 514, 2048 * 514, WB))
        self.srd(self.rOUT, self.pOUT, 2048 * 2048)

        CS, TW0, TWX, F16 = 16, 40, 48, 56
        RA = 64
        T = 144
        a("""v_cvt_f32_u32 v16, v5
        s_bfe_u32 s62, s3, 0x10001
        s_and_b32 s63, s3, 1
        s_lshl2_add_u32 s62, s62, s63
        s_lshl_b32 s62, s62, 7
        s_add_u32 s62, s62, s60
        v_lshl_add_u32 v17, v4, 8, s62
        v_cvt_f32_u32 v17, v17
        v_mul_f32 v17, v17, v16
        s_lshr_b32 s62, s3, 2
        v_xor_b32 v18, s62, v1
        v_lshlrev_b32 v18, 31, v18
        v_or_b32 v18, %s, v18
        v_fmamk_f32 v17, v17, %s, v18
        v_fmamk_f32 v18, v16, %s, v17
        s_lshl_b32 s62, s62, 31
        v_cos_f32 v20, v17
        v_sin_f32 v21, v17
        v_cos_f32 v22, v18
        v_sin_f32 v23, v18
        s_lshr_b32 s64, s3, 1
        s_lshl_b32 s64, s64, 10
        s_lshl3_add_u32 s64, s63, s64
        s_add_u32 s64, s64, %d
        v_add_u32 v15, s64, v2""" % (fhex(0.125), fhex(1 / 2048), fhex(1 / 32), RAB))
        a("""v_cvt_pk_bf16_f32 v24, v20, v21
        v_cvt_pk_bf16_f32 v25, v22, v23
        v_cvt_pk_bf16_f32 v26, -v21, v20
        v_cvt_pk_bf16_f32 v27, -v23, v22
        v_xor_b32 v24, s62, v24
        v_xor_b32 v25, s62, v25
        v_xor_b32 v26, s62, v26
        v_xor_b32 v27, s62, v27
        ds_write_b64 v15, v[24:25]
        ds_write_b64 v15, v[26:27] offset:4096""")
        self.ra_inv(0, 136)
        a("s_lshl_b32 s14, s60, 9\ns_add_u32 s14, s14, 0x%x\ns_and_b32 s63, s3, 1" % (WS_X1 + 64 * 32768))
        FA = 128
        a("""v_bfe_u32 v16, v1, 3, 2
        s_lshl_b32 s62, s4, 2
        v_add_u32 v17, s62, v16
        v_lshl_add_u32 v17, v4, 5, v17
        v_mul_u32_u24 v17, 514, v17
        v_and_b32 v17, -16, v17
        v_sub_u32 v16, v1, v16
        v_and_b32 v18, 7, v16
        v_xor_b32 v19, 4, v18
        v_cmp_gt_u32 s[68:69], 5, v18
        v_cmp_gt_u32 s[58:59], 5, v19
        v_lshl_add_u32 v128, v18, 4, v17
        v_lshl_add_u32 v129, v19, 4, v17""")
        a("""v_lshl_add_u32 v7, v1, 3, s70
        s_lshr_b32 s62, s3, 1
        s_lshl_b32 s62, s62, 13
        s_lshl3_add_u32 s62, s63, s62
        s_add_u32 s62, s62, %d
        v_lshlrev_b32 v8, 11, v13
        v_lshl_add_u32 v8, v12, 4, v8
        v_add_u32 v8, s62, v8
        v_lshl_add_u32 v10, s3, 5, v5
        v_lshlrev_b32 v130, 13, v4
        v_add_u32 v130, %d, v130
        v_lshl_add_u32 v9, v10, 4, v130
        v_sub_u32 v10, 0, v10
        v_and_b32 v10, 0x1ff, v10
        v_lshl_add_u32 v10, v10, 4, v130
        v_add_u32 v131, %d, v2
        s_mul_i32 s62, s3, %d
        s_lshl_b32 s63, s61, 6
        s_add_u32 s62, s62, s63
        s_add_u32 s63, s62, %d
        s_add_u32 s64, s62, %d
        s_add_u32 s65, s62, %d
        s_waitcnt lgkmcnt(0)""" % (ZB, ZB, TB, 8 * 32 * 514, 64 * 514 - 1024, 128 * 514 - 2048, 192 * 514 - 3072))
        self.tags()

        def tab(reg, q, n):
            for i in range(n):
                a("ds_read_b128 %s, v131 offset:%d" % (v(reg + 4 * i, 4), (q + i) * 1024))

        fdp = [int(x) for x in str(self.opt.get("fdp", "2402"))[-4:].rjust(4, "0")]
        fdn = [0]

        def fnext(n=1):
            for _ in range(n):
                fdma(fdn[0] >> 2, fdn[0] & 3)
                fdn[0] += 1

        def fdma(second, q):
            a("s_mov_b64 exec, %s" % ("s[58:59]" if q >> 1 else "s[68:69]"))
            a("s_mov_b32 m0, s%d" % (35 if second else 34))
            a("buffer_load_dwordx4 v%d, %s, s%d offen offset:%d %s lds" % (FA + (q >> 1), s(52 if second else 48, 4), 62 + q, q * 1024, "nt"))
            a("s_mov_b64 exec, -1")

        a("s_waitcnt vmcnt(%d)\ns_barrier" % 4)
        XF, T1, U = T, T + 16, T + 48
        tab(CS, TQ_CS, 12)
        tab(RA, 24, 8)
        fnext(fdp[0])
        a("s_waitcnt vmcnt(%d)" % fdp[0])
        self.stamp()
        for q in range(4):
            a("ds_read_b64_tr_b16 %s, v7 offset:%d" % (v(XF + 4 * q, 2), q * 1024))
            a("ds_read_b64_tr_b16 %s, v7 offset:%d" % (v(XF + 4 * q + 2, 2), q * 1024 + 512))
        a("s_mov_b32 s22, 0x80000\ns_mov_b32 s23, 0x20000\ns_lshl3_add_u32 s15, s60, s3\ns_lshl_b32 s15, s15, 10")
        a("buffer_load_dwordx4 v[116:119], v2, s[20:23], s15 offen")
        sp1 = [(fdp[1] + 3 - i) // 4 for i in range(4)]
        fnext(sp1[0])

        def stage_cs(re, im, out, conj):
            S, N = (CS + 16, CS + 8) if conj else (CS + 8, CS + 16)
            for tau in range(2):
                a("%s %s, %s, %s, 0" % (M16, v(out + 4 * tau, 4), v(re, 4), v(CS + 4 * tau, 4)))
                a("%s %s, %s, %s, 0" % (M16, v(out + 8 + 4 * tau, 4), v(im, 4), v(CS + 4 * tau, 4)))
            for tau in range(2):
                a("%s %s, %s, %s, %s" % (M16, v(out + 4 * tau, 4), v(im, 4), v(S + 4 * tau, 4), v(out + 4 * tau, 4)))
                a("%s %s, %s, %s, %s" % (M16, v(out + 8 + 4 * tau, 4), v(re, 4), v(N + 4 * tau, 4), v(out + 8 + 4 * tau, 4)))

        def twiddle(t, tws, tmp, conj):
            for tau in range(2):
                for j in (0, 2):
                    re, im = t + 4 * tau + j, t + 8 + 4 * tau + j
                    sn_ = tws[tau] + 4 + j
                    k = tmp + 8 * tau + 2 * j
                    a("v_pk_mul_f32 %s, %s, %s" % (v(k, 2), v(im, 2), v(sn_, 2)))
                    a("v_pk_mul_f32 %s, %s, %s" % (v(k + 2, 2), v(re, 2), v(sn_, 2)))
            ng = " neg_lo:[0,0,1] neg_hi:[0,0,1]"
            for tau in range(2):
                for j in (0, 2):
                    re, im = t + 4 * tau + j, t + 8 + 4 * tau + j
                    c = tws[tau] + j
                    k = tmp + 8 * tau + 2 * j
                    a("v_pk_fma_f32 %s, %s, %s, %s%s" % (v(re, 2), v(re, 2), v(c, 2), v(k, 2), ng if conj else ""))
                    a("v_pk_fma_f32 %s, %s, %s, %s%s" % (v(im, 2), v(im, 2), v(c, 2), v(k + 2, 2), "" if conj else ng))

        a("s_waitcnt lgkmcnt(4)")
        stage_cs(XF, XF + 4, T1, False)
        a("s_waitcnt lgkmcnt(0)")
        stage_cs(XF + 8, XF + 12, T1 + 16, False)
        fnext(sp1[1])
        for m in range(2):
            t = T1 + 16 * m
            twiddle(t, [TW0, TWX], T + 64, False)
            for tau in range(2):
                u = U + 8 * m + 4 * tau
                self.cvt(u, v(t + 4 * tau), v(t + 4 * tau + 1))
                self.cvt(u + 1, v(t + 4 * tau + 2), v(t + 4 * tau + 3))
                self.cvt(u + 2, v(t + 8 + 4 * tau), v(t + 8 + 4 * tau + 1))
                self.cvt(u + 3, v(t + 8 + 4 * tau + 2), v(t + 8 + 4 * tau + 3))
            for tau in range(2):
                u = U + 8 * m + 4 * tau
                a("%s %s, %s, %s, 0" % (M16, v(t + 4 * tau, 4), v(F16, 4), v(u, 4)))
                a("%s %s, %s, %s, 0" % (M16, v(t + 8 + 4 * tau, 4), v(F16 + 4, 4), v(u, 4)))
            fnext(sp1[2 + m])
        fd = 2 if fdp[3] == 0 else 1
        ZW = T + 64
        for i in range(8):
            self.cvt(ZW + 2 * i, v(T1 + i), v(T1 + 8 + i))
        for i in range(8):
            self.cvt(ZW + 2 * i + 1, v(T1 + 16 + i), v(T1 + 24 + i))
            a("ds_write_b64 v8, %s offset:%d" % (v(ZW + 2 * i, 2), (i >> 2) * 256 + (i & 3) * 512))
        a("s_waitcnt lgkmcnt(0)\ns_barrier")
        self.stamp()
        for f in range(4):
            a("ds_read_b128 %s, v%d offset:%d" % (v(XF + 4 * f, 4), 9 + (f >> 1), (f & 1) * 16384))
        fnext(fdp[2])
        PC = T + 48

        def pieces(src, j, dst, mark=True):
            for h in range(2):
                self.cvt(dst + h, v(src + 4 * j + 2 * h), v(src + 4 * j + 2 * h + 1))
                self.cvt(dst + 2 + h, v(src + 16 + 4 * j + 2 * h), v(src + 16 + 4 * j + 2 * h + 1))
            if mark:
                for x in self.mark(dst, 14):
                    a(x)

        lab = a.newlabel("NOX")
        a("s_cmp_lg_u32 s3, %d\ns_cbranch_scc1 %s" % (XW, lab))
        XE, TE = T + 64, T + 80
        a("ds_read_b128 %s, v130 offset:4096\nds_read_b128 %s, v130 offset:%d" % (v(XE, 4), v(XE + 4, 4), 4096 + 16384))
        a("v_lshlrev_b32 v16, 1, v6\nv_lshl_add_u32 v16, v4, 4, v16")
        a("s_waitcnt lgkmcnt(0)")
        for f in range(4):
            for ri in range(2):
                d = v(TE + 16 * ri, 16)
                a("%s %s, %s, %s, %s" % (M32, d, v(RA + 16 * ri + 4 * f, 4), v(XE + 4 * (f & 1), 4), d if f else "0"))
        a.label(lab)
        for f in range(4):
            a("s_waitcnt lgkmcnt(%d)" % (3 - f))
            for ri in range(2):
                d = v(T1 + 16 * ri, 16)
                a("%s %s, %s, %s, %s" % (M32, d, v(RA + 16 * ri + 4 * f, 4), v(XF + 4 * f, 4), d if f else "0"))
        if fd == 2:
            a("s_waitcnt vmcnt(0)")
        lab = a.newlabel("NOX")
        a("s_cmp_lg_u32 s3, %d\ns_cbranch_scc1 %s" % (XW, lab))
        for j in range(4):
            a("s_mov_b32 exec_lo, %d\ns_mov_b32 exec_hi, %d" % (1 << j, 1 << j))
            pieces(TE, j, XE + 8, False)
        a("s_mov_b32 exec_lo, 15\ns_mov_b32 exec_hi, 15")
        for x in self.mark(XE + 8, 14):
            a(x)
        a("buffer_store_dwordx4 %s, v16, %s, s14 offen sc1" % (v(XE + 8, 4), ws))
        a("s_mov_b64 exec, -1")
        a.label(lab)
        a("ds_write_b64 v142, v[140:141]")
        a("s_nop 7")
        for j in range(4):
            pieces(T1, j, PC + 4 * j)
            a("buffer_store_dwordx4 %s, v11, %s, s13 offen sc1" % (v(PC + 4 * j, 4), ws))
            if j < 3:
                a("v_xor_b32 v11, 0x%x, v11" % ((j ^ (j + 1)) * 0x82000))
        self.stamp()
        fnext(fdp[3])
        assert fdn[0] == 8

        F32 = 16
        FL = 48
        LD, LD2 = 96, 112
        FL2 = T + 64
        DAT, FR, TM = T, T + 32, T + 48
        tab(F32, TQ_F32, 4)
        tab(FR, TQ_OM, 4)
        a("""v_lshrrev_b32 v11, 2, v1
        v_xor_b32 v11, v11, v4
        v_lshlrev_b32 v129, 9, v11
        v_and_b32 v11, 3, v1
        v_lshl_add_u32 v11, v11, 4, v129
        s_lshl_b32 s62, s4, 4
        v_xor_b32 v129, s62, v11
        s_and_b32 s62, s60, 15
        s_lshl_b32 s62, s62, 9
        v_xor_b32 v11, s62, v11
        s_lshl_b32 s62, s60, 15
        s_lshl_b32 s64, s3, 6
        s_add_u32 s62, s62, s64
        s_lshr_b32 s64, s60, 4
        s_lshl_b32 s64, s64, 13
        s_add_u32 s62, s62, s64
        v_add_u32 v11, 0x%x, v11
        s_add_u32 s70, s70, %d
        v_add_u32 v6, s70, v2
        v_and_b32 v132, 1, v13
        v_lshl_add_u32 v132, v13, 3, v132
        v_bfe_u32 v133, v1, 3, 1
        v_lshl_add_u32 v132, v133, 1, v132
        v_lshlrev_b32 v132, 6, v132
        v_and_b32 v133, 3, v1
        v_lshl_add_u32 v132, v133, 4, v132
        v_bfe_u32 v133, v1, 2, 1
        v_lshl_add_u32 v132, v133, 3, v132
        v_add_u32 v132, s70, v132
        v_xor_b32 v133, 64, v132""" % (WS_X1, ZB))

        def faddr(dst, kk, t1, t2):
            a("""v_and_b32 v{t2}, 3, v12
            s_lshl_b32 s15, s4, 2
            v_add_u32 v{t1}, s15, v{t2}
            v_and_b32 v{t1}, 7, v{t1}
            v_add_lshl_u32 v{t1}, v{t1}, v{kk}, 1
            v_lshl_add_u32 v{t1}, v{t2}, 4, v{t1}
            v_lshl_add_u32 v{t1}, v13, 6, v{t1}
            v_and_b32 v{t1}, 0x7f, v{t1}
            v_lshl_add_u32 v{t1}, v{t2}, 7, v{t1}
            v_lshl_add_u32 v{t1}, v13, 11, v{t1}
            v_add_u32 v{dst}, {wb}, v{t1}""".format(dst=dst, kk=kk, t1=t1, t2=t2, wb=WB))

        a("v_lshrrev_b32 v%d, 2, v12\nv_lshl_add_u32 v%d, s3, 2, v%d" % (LD, LD, LD))
        faddr(128, LD, LD + 1, LD + 2)
        a("""v_lshl_add_u32 v15, s3, 2, v13
        v_and_b32 v5, 7, v12
        v_xor_b32 v15, v15, v5
        v_lshlrev_b32 v15, 4, v15
        v_lshl_add_u32 v15, v12, 10, v15
        s_and_b32 s63, s3, 1
        s_lshl_b32 s64, s63, 6
        v_xor_b32 v7, s64, v2
        s_lshl_b32 s64, s3, 12
        v_add_u32 v7, s64, v7
        v_xor_b32 v136, 16, v7
        v_xor_b32 v137, 32, v7
        v_xor_b32 v138, 48, v7
        s_mov_b32 s64, 0x80008000
        s_waitcnt lgkmcnt(0)""")
        for i in range(16):
            a(("v_xor_b32 v%d, s64, v%d" if i & 1 else "v_mov_b32 v%d, v%d") % (F32 + 16 + i, F32 + i))
        a("s_xor_b32 s63, s62, 0x2000\ns_xor_b32 s64, s62, 0x4000\ns_xor_b32 s65, s62, 0x6000")
        if fd != 2:
            a("s_waitcnt vmcnt(0)")
        a("s_barrier")
        self.stamp()

        def fread(addr):
            for arr in range(2):
                for pm in range(2):
                    for t in range(8):
                        a("ds_read_u16_d16_hi v%d, v%d offset:%d" % (DAT + 16 * arr + 8 * pm + t, addr, arr * 32768 + pm * 16384 + (t >> 2) * 8192 + (t & 3) * 512))

        def filt(dst, raw):
            for j in range(0, 8, 2):
                a("v_pk_add_f32 %s, %s, %s" % (v(dst + j, 2), v(raw + j, 2), v(raw + 8 + j, 2)))
                a("v_pk_add_f32 %s, %s, %s" % (v(dst + 8 + j, 2), v(raw + 16 + j, 2), v(raw + 24 + j, 2)))
                a("v_pk_add_f32 %s, %s, %s neg_lo:[0,1] neg_hi:[0,1]" % (v(raw + j, 2), v(raw + j, 2), v(raw + 8 + j, 2)))
                a("v_pk_add_f32 %s, %s, %s neg_lo:[0,1] neg_hi:[0,1]" % (v(raw + 16 + j, 2), v(raw + 16 + j, 2), v(raw + 24 + j, 2)))
            ng = " neg_lo:[0,0,1] neg_hi:[0,0,1]"
            for j in range(0, 8, 2):
                dr, di, c, sn_ = v(raw + j, 2), v(raw + 16 + j, 2), v(FR + j, 2), v(FR + 8 + j, 2)
                t1, t2 = v(raw + 8 + j, 2), v(raw + 24 + j, 2)
                a("v_pk_mul_f32 %s, %s, %s" % (t1, di, sn_))
                a("v_pk_mul_f32 %s, %s, %s" % (t2, dr, sn_))
                a("v_pk_fma_f32 %s, %s, %s, %s" % (v(dst + 16 + j, 2), dr, c, t1))
                a("v_pk_fma_f32 %s, %s, %s, %s%s" % (v(dst + 24 + j, 2), di, c, t2, ng))
                a("v_pk_fma_f32 %s, %s, %s, %s%s" % (v(dst + 32 + j, 2), dr, c, t1, ng))
                a("v_pk_fma_f32 %s, %s, %s, %s" % (v(dst + 40 + j, 2), di, c, t2))

        VS = 139

        sentinel = lambda base: self.markcheck(base, 16, VS)

        def x1load(special):
            for i in range(4):
                a("buffer_load_dwordx4 %s, v%d, %s, s%d offen sc1" % (v((LD2 if special else LD) + 4 * i, 4), 129 if special else 11, ws, (56 if special else 62) + i))

        def x1first():
            lab = a.newlabel("NOSP")
            a("s_cmp_lg_u32 s71, 0\ns_cbranch_scc1 " + lab)
            for i in range(4):
                a("s_mov_b32 s%d, 0x%x" % (56 + i, WS_X1 + 64 * 32768 + 0x2000 * i))
            x1load(True)
            a.label(lab)
            x1load(False)

        x1l = self.opt.get("x1late", 2)
        if fd != 2 and x1l == 0:
            x1first()
        fread(128)
        a("s_waitcnt lgkmcnt(0)")
        if fd != 2 and x1l == 1:
            x1first()
        filt(FL, DAT)
        if fd != 2 and x1l == 2:
            x1first()
        if fd == 2:
            a("s_waitcnt vmcnt(0)")
            self.diag_delay("d_x1")
            x1first()
        self.stamp()

        def hintx(pos):
            if self.opt.get("go", 4) == pos:
                lab = a.newlabel("NOH")
                a("s_cmp_lg_u32 s3, 7\ns_cbranch_scc1 " + lab)
                a("""s_lshl_b32 s14, s60, 7
                s_add_u32 s14, s14, 0x%x
                v_mov_b32 v140, s6
                v_mov_b32 v141, s7
                v_lshlrev_b32 v142, 3, v12
                buffer_store_dwordx2 v[140:141], v142, %s, s14 offen sc1""" % (WS_GO, ws))
                a.label(lab)

        def b2(fl, special):
            ld = LD2 if special else LD
            self.poll(lambda: x1load(special), lambda: sentinel(ld), VS, first_issued=True)
            self.flip_marks()
            if not special:
                a.label(self.b2_skip)
                self.stamp()
            for i in range(4):
                a("ds_write_b128 v6, %s offset:%d" % (v(ld + 4 * i, 4), i * 1024))
            for p in range(2):
                for f in range(2):
                    for h in range(2):
                        a("ds_read_b64_tr_b16 %s, v%d offset:%d" % (v(FR + 8 * p + 4 * f + 2 * h, 2), 132 + p, f * 2048 + h * 256))
            if not special:
                hintx(1)
            for p in range(2):
                for f in range(2):
                    a("s_waitcnt lgkmcnt(%d)" % (6 - 4 * p - 2 * f))
                    for tau in range(2):
                        for ri in range(2):
                            d = v(DAT + 16 * p + 8 * ri + 4 * tau, 4)
                            a("%s %s, %s, %s, %s" % (M16, d, v(F32 + ((tau * 2 + ri) * 2 + f) * 4, 4), v(FR + 8 * p + 4 * f, 4), d if f else "0"))
            if not special:
                hintx(2)
            n1_ = " neg_lo:[1,0,0] neg_hi:[1,0,0]"

            for j in range(0, 8, 2):
                Er, Ei, Or, Oi = [v(DAT + 8 * k + j, 2) for k in range(4)]
                Ar, Ai, B1r, B1i, B2r, B2i = [v(fl + 8 * k + j, 2) for k in range(6)]
                k = TM + 8 * ((j >> 1) & 1)
                Pr, Pi, Qr, Qi = [v(k + 2 * i, 2) for i in range(4)]
                a("v_pk_mul_f32 %s, %s, %s" % (Pr, Ar, Er))
                a("v_pk_mul_f32 %s, %s, %s" % (Pi, Ar, Ei))
                a("v_pk_mul_f32 %s, %s, %s" % (Qr, B2r, Er))
                a("v_pk_mul_f32 %s, %s, %s" % (Qi, B2r, Ei))
                a("v_pk_fma_f32 %s, %s, %s, %s%s" % (Pr, Ai, Ei, Pr, n1_))
                a("v_pk_fma_f32 %s, %s, %s, %s" % (Pi, Ai, Er, Pi))
                a("v_pk_fma_f32 %s, %s, %s, %s%s" % (Qr, B2i, Ei, Qr, n1_))
                a("v_pk_fma_f32 %s, %s, %s, %s" % (Qi, B2i, Er, Qi))
                a("v_pk_fma_f32 %s, %s, %s, %s" % (Pr, B1r, Or, Pr))
                a("v_pk_fma_f32 %s, %s, %s, %s" % (Pi, B1r, Oi, Pi))
                a("v_pk_fma_f32 %s, %s, %s, %s" % (Qr, Ar, Or, Qr))
                a("v_pk_fma_f32 %s, %s, %s, %s" % (Qi, Ar, Oi, Qi))
                a("v_pk_fma_f32 %s, %s, %s, %s%s" % (Pr, B1i, Oi, Pr, n1_))
                a("v_pk_fma_f32 %s, %s, %s, %s" % (Pi, B1i, Or, Pi))
                a("v_pk_fma_f32 %s, %s, %s, %s%s" % (Qr, Ai, Oi, Qr, n1_))
                a("v_pk_fma_f32 %s, %s, %s, %s" % (Qi, Ai, Or, Qi))
                for e in range(2):
                    self.cvt(FR + j + e, v(k + e), "-" + v(k + 2 + e))
                    self.cvt(FR + 8 + j + e, v(k + 4 + e), "-" + v(k + 6 + e))
            for p in range(2):
                for f in range(2):
                    for tau in range(2):
                        for ri in range(2):
                            d = v(DAT + 16 * p + 8 * ri + 4 * tau, 4)
                            a("%s %s, %s, %s, %s" % (M16, d, v(FR + 8 * p + 4 * f, 4), v(F32 + ((tau * 2 + ri) * 2 + f) * 4, 4), d if f else "0"))
            if not special:
                hintx(3)
            if special:
                a("s_mov_b64 exec, 0xffff")
            for p in range(2):
                for tau in range(2):
                    o = TM + 8 * p + 4 * tau
                    for r in range(4):
                        self.cvt(o + r, v(DAT + 16 * p + 4 * tau + r), "-" + v(DAT + 16 * p + 8 + 4 * tau + r))
                    for x in self.mark(o, 14):
                        a(x)
                    if special:
                        a("buffer_store_dwordx4 %s, v2, %s, s67 offen offset:%d sc1" % (v(o, 4), ws, tau * 512 + p * 256))
                    else:
                        a("ds_write_b128 v15, %s offset:%d" % (v(o, 4), tau * 16384 + p * 512))
            if special:
                a("s_mov_b64 exec, -1")

        lab = a.newlabel("NOSP")
        a("s_cmp_lg_u32 s71, 0\ns_cbranch_scc1 " + lab)
        a("v_mov_b32 v%d, 32" % TM)
        faddr(128, TM, TM + 1, TM + 2)
        fread(128)
        a("s_waitcnt lgkmcnt(0)")
        filt(FL2, DAT)
        self.poll(lambda: x1load(False), lambda: sentinel(LD), VS, first_issued=True)
        b2(FL2, True)
        skip = a.newlabel("B2GO")
        self.b2_skip = skip
        a("s_branch " + skip)
        a.label(lab)
        b2(FL, False)
        a("s_waitcnt lgkmcnt(0)\ns_barrier")
        self.stamp()
        hintx(4)
        ST = LD
        for i in range(4):
            a("ds_read_b128 %s, v%d offset:%d" % (v(ST + 4 * i, 4), 135 + i if i else 7, i * 1024))
        for i in range(4):
            a("s_waitcnt lgkmcnt(%d)" % (3 - i))
            a("buffer_store_dwordx4 %s, v3, %s, s66 offen sc1" % (v(ST + 4 * i, 4), ws))
            if i < 3:
                a("v_xor_b32 v3, 0x%x, v3" % ((i ^ (i + 1)) * 0x400))
        self.stamp()
        lab = a.newlabel("NONOTE")
        a("s_or_b32 s56, s60, s3\ns_cbranch_scc1 " + lab)
        a("v_mov_b32 v140, s6\nv_mov_b32 v141, s7\nv_lshlrev_b32 v142, 3, v12")
        a("buffer_store_dwordx2 v[140:141], v142, %s, 0 offen offset:%d sc1" % (ws, WS_NOTE))
        a.label(lab)
        a("s_mov_b32 s34, 0")
        self.pad_stamps(9)

        a.label("B3_ENTRY")
        G16 = F16
        a("v_lshlrev_b32 v2, 4, v1\nv_add_u32 v131, %d, v2" % TB)
        tab(RA, 24, 4)
        tab(CS, TQ_CS, 8)
        tab(TWX, TQ_TW3, 4)
        a("""v_lshrrev_b32 v4, 5, v1
        v_and_b32 v5, 31, v1
        v_and_b32 v12, 15, v1
        v_lshrrev_b32 v13, 4, v1
        v_lshl_add_u32 v132, v4, 3, s3
        v_xor_b32 v8, s60, v132
        v_lshlrev_b32 v132, 15, v132
        v_lshl_add_u32 v132, v5, 4, v132
        v_lshl_add_u32 v132, v8, 9, v132
        v_xor_b32 v133, 0x82000, v132
        v_xor_b32 v134, 0x104000, v132
        v_xor_b32 v135, 0x186000, v132
        v_lshl_add_u32 v10, s3, 5, v5
        v_lshlrev_b32 v130, 13, v4
        v_add_u32 v130, %d, v130
        v_lshl_add_u32 v9, v10, 4, v130
        v_sub_u32 v10, 0, v10
        v_and_b32 v10, 0x1ff, v10
        v_lshl_add_u32 v10, v10, 4, v130
        s_lshr_b32 s63, s3, 2
        s_lshl_b32 s63, s63, 13
        s_and_b32 s64, s3, 3
        s_lshl2_add_u32 s63, s64, s63
        s_add_u32 s63, s63, %d
        v_lshlrev_b32 v8, 11, v13
        v_lshl_add_u32 v8, v12, 4, v8
        v_add_u32 v8, s63, v8
        s_lshl_b32 s63, s3, 11
        s_add_u32 s63, s63, %d
        v_bfe_u32 v5, v1, 2, 1
        v_lshlrev_b32 v5, 1, v5
        v_xor_b32 v5, v5, v13
        v_lshlrev_b32 v5, 3, v5
        v_lshl_add_u32 v5, v12, 5, v5
        v_add_u32 v5, s63, v5
        v_bfe_u32 v6, v1, 3, 1
        v_lshlrev_b32 v6, 4, v6
        v_xor_b32 v6, v6, v2
        v_add_u32 v6, s63, v6
        s_lshl_b32 s64, s3, 6
        s_add_u32 s64, s64, s60
        s_add_u32 s64, s64, s34
        s_lshl_b32 s64, s64, 11
        s_add_u32 s66, s64, 0x200000
        s_mov_b32 s56, 0.5
        s_mov_b32 s57, 0.5
        s_cmp_eq_u32 s3, 0
        s_cselect_b32 s68, -2, -1
        s_mov_b32 s69, s68
        s_lshr_b32 s63, s60, 5
        s_and_b32 s65, s60, 1
        s_lshl1_add_u32 s63, s63, s65
        s_bfe_u32 s65, s60, 0x40001
        s_lshl4_add_u32 s63, s63, s65
        v_and_b32 v11, 7, v1
        v_xor_b32 v11, s63, v11
        v_lshlrev_b32 v11, 4, v11
        v_lshl_add_u32 v11, v4, 10, v11
        s_mov_b32 s63, 0x%x
        s_mov_b32 s65, 0x%x""" % (ZB, ZB, WB, WS_X2S, WS_X2S + 4096))
        lab = a.newlabel("NOGO")
        a("s_cmp_eq_u32 s34, 0\ns_cbranch_scc1 " + lab)
        self.poll(lambda: a("buffer_load_dwordx2 v[140:141], off, %s, s62 sc1" % ws),
                  lambda: a("v_xor_b32 v%d, s6, v140\nv_bitop3_b32 v%d, v%d, v141, s7 bitop3:0xf6" % (VS, VS, VS)), VS)
        a.label(lab)
        a("s_mov_b32 s62, 0x%x" % WS_X1)
        RE, ZP, XS = T + 16, T + 48, LD2

        def radix_inv(x):
            for f in range(4):
                d = v(RE, 16)
                a("%s %s, %s, %s, %s" % (M32, d, v(RA + 4 * f, 4), v(x + 4 * f, 4), d if f else "0"))

        def average():
            a("s_mov_b32 exec_lo, 1\ns_mov_b32 exec_hi, 1")
            for j in (0, 2):
                a("v_pk_add_f32 %s, %s, %s" % (v(RE + j, 2), v(RE + j, 2), v(RE + 8 + j, 2)))
                a("v_pk_add_f32 %s, %s, %s neg_lo:[0,1] neg_hi:[0,1]" % (v(RE + 4 + j, 2), v(RE + 4 + j, 2), v(RE + 12 + j, 2)))
            for j in range(0, 8, 2):
                a("v_pk_mul_f32 %s, %s, s[56:57]" % (v(RE + j, 2), v(RE + j, 2)))

        def extra_tile():
            radix_inv(XS)
            average()
            for r in range(4):
                self.cvt(ZP + 8 + r, v(RE + r), v(RE + 4 + r))
            a("ds_write_b128 v130, %s offset:4096" % v(ZP + 8, 4))
            a("s_mov_b64 exec, -1")

        xsload = lambda: [a("buffer_load_dwordx4 %s, v11, %s, s%d offen offset:%d sc1" % (v(XS + 4 * f, 4), ws, 65 if f >> 1 else 63, (f & 1) * 2048)) for f in range(4)]
        x2load = lambda: [a("buffer_load_dwordx4 %s, v%d, %s, s62 offen sc1" % (v(XF + 4 * f, 4), 132 + f, ws)) for f in range(4)]
        lab = a.newlabel("NODR")
        a("s_and_b32 s15, s60, 7\ns_cmp_eq_u32 s15, 7\ns_cbranch_scc1 " + lab)
        a("s_waitcnt vmcnt(0)")
        self.diag_delay("d_x2")
        a.label(lab)
        x2load()
        lab = a.newlabel("NOX")
        a("s_cmp_lg_u32 s3, %d\ns_cbranch_scc1 %s" % (XW3, lab))
        xsload()
        a.label(lab)
        a("s_waitcnt lgkmcnt(0)")
        self.stamp()
        self.poll(x2load, lambda: sentinel(XF), VS, first_issued=True)
        self.stamp()
        radix_inv(XF)
        lab = a.newlabel("NOAVG")
        a("s_nop 9")
        a("s_cmp_lg_u32 s3, 0\ns_cbranch_scc1 " + lab)
        average()
        a("s_mov_b64 exec, -1")
        a.label(lab)
        for r in range(4):
            self.cvt(ZP + r, v(RE + r), v(RE + 4 + r))
        a("ds_write_b128 v9, %s" % v(ZP, 4))
        for r in range(4):
            self.cvt(ZP + 4 + r, v(RE + 8 + r), "-" + v(RE + 12 + r))
        a("s_mov_b64 exec, s[68:69]")
        a("ds_write_b128 v10, %s" % v(ZP + 4, 4))
        a("s_mov_b64 exec, -1")
        lab = a.newlabel("NOX")
        a("s_cmp_lg_u32 s3, %d\ns_cbranch_scc1 %s" % (XW3, lab))
        self.poll(xsload, lambda: sentinel(XS), VS, first_issued=True)
        extra_tile()
        a.label(lab)
        a("s_waitcnt lgkmcnt(0)\ns_barrier")
        self.stamp()
        ZF = T
        for tau in range(2):
            for j in range(2):
                a("ds_read2st64_b32 %s, v8 offset0:%d offset1:%d" % (v(ZF + 4 * tau + 2 * j, 2), tau + 4 * j, tau + 4 * j + 2))
        for tau in range(2):
            a("s_waitcnt lgkmcnt(%d)" % (2 - 2 * tau))
            a("%s %s, %s, %s, 0" % (M16, v(T1 + 4 * tau, 4), v(ZF + 4 * tau, 4), v(G16, 4)))
            a("%s %s, %s, %s, 0" % (M16, v(T1 + 8 + 4 * tau, 4), v(ZF + 4 * tau, 4), v(G16 + 4, 4)))
        O4 = T + 80
        twiddle(T1, [TW0, TWX], T + 64, True)
        for j in range(8):
            self.cvt(U + j, v(T1 + 2 * j), v(T1 + 2 * j + 1))
        stage_cs(U, U + 4, O4, True)
        fl = self.opt.get("outflag", "sc1")
        for ri in range(2):
            for tau in range(2):
                o = O4 + 8 * ri + 4 * tau
                d = T + 4 * ri + 2 * tau
                self.cvt(d, v(o), v(o + 1))
                self.cvt(d + 1, v(o + 2), v(o + 3))
                a("ds_write_b64 v5, %s offset:%d" % (v(d, 2), ri * 1024 + tau * 512))
            a("ds_read_b128 %s, v6 offset:%d" % (v(T1 + 4 * ri, 4), ri * 1024))
        for ri in range(2):
            a("s_waitcnt lgkmcnt(%d)" % (3 - 3 * ri))
            a("buffer_store_dwordx4 %s, v2, %s, s%d offen offset:1024 %s" % (v(T1 + 4 * ri, 4), s(self.rOUT, 4), 64 + 2 * ri, fl))
        self.end()


TQ_CS, TQ_TW0, TQ_TW1, TQ_TW3, TQ_F32, TQ_OM = 0, 6, 8, 12, 16, 20


def make_table():
    import numpy as np
    from emu import bf16_rne
    l = np.arange(64)
    c, g = l & 15, l >> 4
    pk = lambda x, y: (bf16_rne(np.float32(x)) | (bf16_rne(np.float32(y)) << 16)).astype(np.uint32)
    fl = lambda x: np.float32(x).view(np.uint32)
    cs = lambda a_: (np.cos(2 * np.pi * a_), np.sin(2 * np.pi * a_))
    idx2 = [16 * (t >> 2) + 4 * g + (t & 3) for t in range(8)]
    R = []
    C = [[cs((c + 16 * tau) * idx2[t] / 32.0) for t in range(8)] for tau in range(2)]
    for k, sg in ((0, 1), (1, 1), (1, -1)):
        for tau in range(2):
            for j in range(4):
                R.append(pk(sg * C[tau][2 * j][k], sg * C[tau][2 * j + 1][k]))

    def tw(angs):
        for k in range(2):
            for x in angs:
                R.append(fl(cs(x)[k]))
    tw([c * idx2[r] / 512.0 for r in range(4)])
    tw([(c + 16) * idx2[r] / 512.0 for r in range(4)])
    H = [cs(c * idx2[x] / 16.0) for x in range(4)]
    R += [pk(H[0][0], H[1][0]), pk(H[2][0], H[3][0]), pk(H[0][1], H[1][1]), pk(H[2][1], H[3][1])]
    R += [pk(-H[0][1], -H[1][1]), pk(-H[2][1], -H[3][1]), pk(H[0][0], H[1][0]), pk(H[2][0], H[3][0])]
    tw([c * idx2[4 + r] / 512.0 for r in range(4)])
    sc = 2.0 ** -20
    R += [pk(sc * H[x][0], -sc * H[x][1]) for x in range(4)] + [pk(sc * H[x][1], sc * H[x][0]) for x in range(4)]
    R += [pk(C[0][t][0], C[0][t][1]) for t in range(8)] + [pk(-C[0][t][1], C[0][t][0]) for t in range(8)]
    for k in range(2):
        for t in range(8):
            R.append(fl(cs(idx2[t] / 64.0)[k]))
    R = np.array(R, np.uint32)
    assert R.shape == (96, 64)
    return np.ascontiguousarray(R.reshape(24, 4, 64).transpose(0, 2, 1)).reshape(-1)


def _sym_add(line, emuval=0):
    ins = Ins(line.rsplit(",", 1)[0] + ", %d" % emuval)
    ins.line = line
    return ins


def generate(stamps=False, opt=None):
    g = G(stamps, opt)
    a = g.build()
    nv = a.maxreg("v") + 1
    ns = a.maxreg("s") + 1
    tb = make_table()
    body = a.render() + ".p2align 8\n.type TABLE,@object\nTABLE:\n"
    for i in range(0, len(tb), 8):
        body += ".long " + ",".join("0x%08x" % x for x in tb[i:i + 8]) + "\n"
    body += ".size TABLE, %d\n" % (4 * len(tb))
    txt = wrap(body, 256, 512, LDS_SIZE, nv, ns)
    return a, txt


if __name__ == "__main__":
    stamps = "--stamps" in sys.argv
    opt = {}
    for x in sys.argv[1:]:
        if x.startswith("--") and "=" in x:
            k, val = x[2:].split("=", 1)
            opt[k] = int(val) if val.lstrip("-").isdigit() else val
    a, txt = generate(stamps, opt)
    out = [x for x in sys.argv[1:] if not x.startswith("--")]
    open(out[0] if out else "k.s", "w").write(txt)
    print("instructions:", sum(1 for k, _ in a.items if k == "i"), "vgpr", a.maxreg("v") + 1, "sgpr", a.maxreg("s") + 1)
```

```python
import re
import struct


def f2u(x):
    return struct.unpack("<I", struct.pack("<f", x))[0]


def fhex(x):
    return "0x%08x" % f2u(x)


_REG = re.compile(r"^(-?)(\|?)([vsa])(?:(\d+)|\[(\d+):(\d+)\])(\|?)$")


class Op:
    __slots__ = ("kind", "lo", "n", "neg", "abs", "val", "txt")

    def __init__(self, txt):
        self.txt = txt
        self.neg = False
        self.abs = False
        self.val = None
        self.lo = 0
        self.n = 0
        m = _REG.match(txt)
        if m:
            self.neg = m.group(1) == "-"
            self.abs = m.group(2) == "|"
            self.kind = m.group(3)
            if m.group(4) is not None:
                self.lo = int(m.group(4))
                self.n = 1
            else:
                self.lo = int(m.group(5))
                self.n = int(m.group(6)) - self.lo + 1
        elif txt in ("vcc", "exec"):
            self.kind = "s"
            self.lo = 106 if txt == "vcc" else 126
            self.n = 2
        elif txt in ("vcc_lo", "vcc_hi", "exec_lo", "exec_hi", "m0"):
            self.kind = "s"
            self.lo = {"vcc_lo": 106, "vcc_hi": 107, "exec_lo": 126, "exec_hi": 127, "m0": 124}[txt]
            self.n = 1
        elif txt == "off":
            self.kind = "off"
        elif re.match(r"^-?(0x[0-9a-fA-F]+|\d+)$", txt):
            self.kind = "imm"
            self.val = int(txt, 0)
        elif re.match(r"^-?\d+\.\d*(e-?\d+)?$", txt):
            self.kind = "fimm"
            self.val = float(txt)
        else:
            self.kind = "sym"

    def regs(self):
        if self.kind in ("v", "s", "a"):
            return {(self.kind, self.lo + i) for i in range(self.n)}
        return set()


TRANS = ("v_exp_f32", "v_log_f32", "v_rcp_f32", "v_rsq_f32", "v_sqrt_f32", "v_sin_f32", "v_cos_f32")
VCC = {("s", 106), ("s", 107)}
EXEC = {("s", 126), ("s", 127)}
M0 = {("s", 124)}
S_NODST = ("s_cmp", "s_waitcnt", "s_barrier", "s_cbranch", "s_branch", "s_nop", "s_sleep", "s_setprio",
           "s_bitcmp", "s_endpgm")


class Ins:
    def __init__(self, line):
        self.line = line
        body = line.split(";")[0].strip()
        parts = body.split(None, 1)
        self.mn = parts[0]
        base = self.mn
        for suf in ("_e32", "_e64", "_dpp"):
            if base.endswith(suf):
                base = base[: -len(suf)]
        self.base = base
        rest = parts[1] if len(parts) > 1 else ""
        self.mods = {}
        ops = []
        if base == "s_waitcnt":
            for k, v in re.findall(r"(\w+)\((\d+)\)", rest):
                self.mods[k] = int(v)
        elif base == "s_getreg_b32":
            ops = [rest.split(",")[0].strip()]
        else:
            toks, depth, cur = [], 0, ""
            for ch in rest:
                if ch == "[":
                    depth += 1
                if ch == "]":
                    depth -= 1
                if ch == "," and depth == 0:
                    toks.append(cur.strip())
                    cur = ""
                else:
                    cur += ch
            if cur.strip():
                toks.append(cur.strip())
            if toks:
                last = toks[-1].split()
                toks[-1] = last[0]
                for m in last[1:]:
                    if ":" in m:
                        k, v = m.split(":", 1)
                        if v.startswith("["):
                            self.mods[k] = [int(x) for x in v[1:-1].split(",")]
                        else:
                            self.mods[k] = int(v, 0)
                    else:
                        self.mods[m] = True
            ops = toks
        self.ops = [Op(t) for t in ops]
        self.classify()

    def classify(self):
        b, o = self.base, self.ops
        self.cls = None
        self.w = set()
        self.r = set()
        self.srcC = set()
        self.srcAB = set()
        self.passes = 0
        self.store_data = set()
        self.dpp = self.mn.endswith("_dpp")
        R = lambda i: o[i].regs() if i < len(o) else set()
        allr = lambda lo: set().union(*[x.regs() for x in o[lo:]]) if len(o) > lo else set()
        if b.startswith("v_mfma"):
            self.cls = "mfma"
            self.w = R(0)
            self.srcAB = R(1) | R(2)
            self.srcC = R(3)
            self.r = self.srcAB | self.srcC
            self.passes = 8 if "32x32" in b else 4
        elif b.startswith("v_"):
            self.cls = "valu"
            self.w = R(0)
            self.r = allr(1)
            if b.startswith("v_fmac") or b in ("v_writelane_b32",):
                self.r |= R(0)
            if "swap" in b:
                self.w = R(0) | R(1)
                self.r = R(0) | R(1)
            if b == "v_cndmask_b32" and len(o) == 3:
                self.r |= VCC
            if self.dpp:
                self.r |= R(0)
        elif b.startswith("ds_"):
            self.cls = "ds"
            if b.startswith("ds_read"):
                self.w = R(0)
                self.r = allr(1)
                if "d16" in b:
                    self.r |= R(0)
            else:
                self.r = allr(0)
        elif b.startswith("buffer_") or b.startswith("global_"):
            self.cls = "vmem"
            if "load" in b:
                if self.mods.get("lds") or "_lds_" in b:
                    self.r = allr(0) | M0
                    self.ldsdma = True
                else:
                    self.w = R(0)
                    self.r = allr(1)
                    if "d16" in b:
                        self.r |= R(0)
            else:
                self.r = allr(0)
                d = R(0) if b.startswith("buffer_") else R(1)
                if b.endswith("x4") or b.endswith("x3"):
                    self.store_data = d
        elif b.startswith("s_"):
            self.cls = "salu"
            if b.startswith("s_load") or b.startswith("s_mem") or b.startswith("s_atomic"):
                self.cls = "smem"
            if any(b.startswith(x) for x in S_NODST):
                self.r = allr(0)
            else:
                self.w = R(0)
                self.r = allr(1)
                if "saveexec" in b:
                    self.w |= EXEC
                    self.r |= EXEC
                if b in ("s_addk_i32", "s_mulk_i32", "s_bitset1_b32", "s_bitset0_b32", "s_cmov_b32"):
                    self.r |= R(0)
        else:
            raise ValueError("unknown instruction: " + self.line)
        self.trans = b in TRANS
        self.states = 1
        if b == "s_nop":
            self.states = o[0].val + 1


def need(p, c):
    n = 0
    vw = {x for x in p.w if x[0] != "s"}
    sw = {x for x in p.w if x[0] == "s"}
    if p.cls == "valu":
        if c.cls == "mfma" and (vw & c.r):
            n = max(n, 2)
        if c.cls == "mfma" and (sw & EXEC):
            n = max(n, 4)
        if p.trans and c.cls == "valu" and not c.trans and (vw & c.r):
            n = max(n, 1)
        if p.trans and c.cls in ("vmem", "ds") and (vw & c.r):
            n = max(n, 1)
        if c.cls == "valu" and (c.dpp or "permlane" in c.base) and (vw & c.r):
            n = max(n, 2)
        if c.cls == "valu" and c.base in ("v_readfirstlane_b32", "v_readlane_b32") and (vw & c.r):
            n = max(n, 1)
        if sw:
            if c.cls == "valu" and (sw & c.r):
                n = max(n, 4 if c.base in ("v_readlane_b32", "v_writelane_b32") else 2)
            if c.cls == "vmem" and (sw & c.r):
                n = max(n, 5)
            if c.cls in ("salu", "smem") and (sw & c.r):
                n = max(n, 1)
            if c.base.startswith("s_cbranch_vcc") and (sw & VCC):
                n = max(n, 1)
    if p.cls == "mfma":
        P = p.passes
        if c.cls == "mfma":
            if c.srcC & p.w:
                if not (c.srcC == p.w and c.passes == P):
                    n = max(n, P + 2)
            if c.srcAB & p.w:
                n = max(n, P + 4)
            if (c.w & p.w) and not (c.srcC == p.w and c.passes == P):
                n = max(n, P + 2)
        elif c.cls in ("valu", "vmem", "ds"):
            if (c.r | c.w) & p.w:
                n = max(n, P + 4)
            if c.cls == "valu" and (c.w & p.srcC):
                n = max(n, P - 1)
    if p.cls == "salu" and (p.w & M0) and getattr(c, "ldsdma", False):
        n = max(n, 1)
    if p.store_data and (c.w & p.store_data):
        n = max(n, 2 if c.cls in ("valu", "mfma") else 1)
    return n


class Asm:
    def __init__(self):
        self.items = []
        self.uid = 0

    def __call__(self, s):
        for line in s.split("\n"):
            line = line.strip()
            if not line or line.startswith(";"):
                continue
            self.i(line)

    def i(self, line):
        ins = Ins(line)
        dist = 0
        req = 0
        for kind, x in reversed(self.items):
            if kind == "t":
                continue
            if kind == "l":
                continue
            if x.base in ("s_branch", "s_endpgm"):
                break
            req = max(req, need(x, ins) - dist)
            dist += x.states
            if dist > 24:
                break
        while req > 0:
            k = min(req, 16)
            self.items.append(("i", Ins("s_nop %d" % (k - 1))))
            req -= k
        self.items.append(("i", ins))

    def label(self, name):
        self.items.append(("l", name))

    def text(self, t):
        self.items.append(("t", t))

    def newlabel(self, p="L"):
        self.uid += 1
        return "%s_%d" % (p, self.uid)

    def walkify(self, start, end, nseg, ret, protect, prefix):
        pos = {x: i for i, (k, x) in enumerate(self.items) if k == "l"}
        i0, i1 = pos[start], pos[end]

        def bad(x):
            if x.cls in ("vmem", "smem") or x.base in ("s_barrier", "s_endpgm", "s_sleep", "s_branch", "s_cbranch_scc0", "s_cbranch_scc1", "s_cbranch_vccnz", "s_cbranch_vccz"):
                return True
            if x.base == "s_waitcnt" and "vmcnt" in x.mods:
                return True
            return bool(x.w & (EXEC | {("s", r) for r in protect}))

        reg = self.items[i0 + 1:i1]
        idx = [j for j, (k, x) in enumerate(reg) if k == "i"]
        runs, cur = [], None
        for n, j in enumerate(idx):
            if bad(reg[j][1]):
                if cur and n - cur[2] <= 3:
                    cur[1], cur[2] = j, n
                else:
                    cur = [j, j, n]
                    runs.append(cur)
        cost = lambda x: 8 if x.cls == "mfma" and x.passes == 8 else 4 if x.cls == "mfma" else 2
        tot = sum(cost(reg[j][1]) for j in idx)
        out, acc, seg, r = [("l", prefix + "0")], 0, 1, 0
        for j, it in enumerate(reg):
            if r < len(runs) and j == runs[r][0]:
                cutp = seg < nseg and acc >= tot * seg / nseg - tot / (3 * nseg)
                lab = prefix + str(seg) if cutp else self.newlabel("WS")
                out.append(("i", Ins("s_cbranch_execz " + (ret if cutp else lab))))
                seg += cutp
            out.append(it)
            if it[0] == "i":
                acc += cost(it[1])
            if r < len(runs) and j == runs[r][1]:
                out.append(("l", lab))
                r += 1
        while seg < nseg:
            out.append(("l", prefix + str(seg)))
            seg += 1
        out.append(("i", Ins("s_cbranch_execz " + ret)))
        self.items[i0 + 1:i1] = out

    def check_branches(self):
        pos = {x: i for i, (k, x) in enumerate(self.items) if k == "l"}
        bad = []
        for i, (k, x) in enumerate(self.items):
            if k != "i" or not (x.base.startswith("s_cbranch") or x.base == "s_branch"):
                continue
            if x.base == "s_cbranch_execz" or x.ops[0].txt.startswith("WK"):
                continue
            tgt = pos[x.ops[0].txt]
            hist, d = [], 0
            for kk, y in reversed(self.items[: i + 1]):
                if kk != "i":
                    continue
                if y is not x and y.base in ("s_branch", "s_endpgm"):
                    break
                hist.append((y, d))
                d += y.states
                if d > 24:
                    break
            fwd = 0
            for kk, c in self.items[tgt:]:
                if kk != "i":
                    continue
                for y, dd in hist:
                    if need(y, c) > dd + fwd:
                        bad.append((y.line, c.line, need(y, c), dd + fwd))
                fwd += c.states
                if fwd > 24 or c.base in ("s_branch", "s_endpgm"):
                    break
        return bad

    def render(self):
        out = []
        for k, x in self.items:
            if k == "i":
                out.append("    " + x.line)
            elif k == "l":
                out.append(x + ":")
            else:
                out.append(x)
        return "\n".join(out) + "\n"

    def maxreg(self, kind):
        m = -1
        for k, x in self.items:
            if k == "i":
                for kk, r in x.r | x.w:
                    if kk == kind and not (kind == "s" and r >= 102):
                        m = max(m, r)
        return m


class Regs:
    def __init__(self, kind, start=0, limit=256):
        self.kind = kind
        self.p = start
        self.limit = limit

    def get(self, n=1, align=None):
        if align is None:
            align = 1 if n == 1 else (2 if self.kind == "v" else (2 if n == 2 else 4))
        self.p = (self.p + align - 1) // align * align
        r = self.p
        self.p += n
        assert self.p <= self.limit, "out of %s registers" % self.kind
        return r

    def mark(self):
        return self.p

    def reset(self, m):
        self.p = m


def v(r, n=1):
    return "v%d" % r if n == 1 else "v[%d:%d]" % (r, r + n - 1)


def s(r, n=1):
    return "s%d" % r if n == 1 else "s[%d:%d]" % (r, r + n - 1)
```

```python
import numpy as np
from asmlib import Ins, f2u

U32 = np.uint32
M32 = 0xFFFFFFFF
LANE = np.arange(64, dtype=np.int64)
np.seterr(all="ignore")


def bf16_rne(f):
    u = f.astype(np.float32).view(U32)
    r = ((u.astype(np.uint64) + 0x7FFF + ((u >> 16) & 1)) >> 16).astype(U32) & 0xFFFF
    nan = np.isnan(f)
    r = np.where(nan, ((u >> 16) | 0x40) & 0xFFFF, r).astype(U32)
    return r


def unpack_bf16(regs):
    lo = (regs << 16).view(np.float32)
    hi = (regs & U32(0xFFFF0000)).view(np.float32)
    out = np.empty((regs.shape[0] * 2, 64), np.float32)
    out[0::2] = lo
    out[1::2] = hi
    return out.T


class Mem:
    def __init__(self):
        self.bufs = []
        self.next = 0x7F0000000000

    def alloc(self, name, arr):
        arr = np.ascontiguousarray(arr).view(np.uint8).reshape(-1)
        base = self.next
        self.next += (len(arr) + (4 << 20)) // (2 << 20) * (2 << 20) + (2 << 20)
        self.bufs.append((base, arr, name))
        return base

    def find(self, addr_lo, addr_hi):
        for base, arr, name in self.bufs:
            if base <= addr_lo and addr_hi <= base + len(arr):
                return base, arr, name
        raise RuntimeError("global access out of any allocation: %x..%x" % (addr_lo, addr_hi))

    def read(self, addrs, nbytes):
        base, arr, _ = self.find(int(addrs.min()), int(addrs.max()) + nbytes)
        idx = (addrs - base)[:, None] + np.arange(nbytes)[None, :]
        return arr[idx]

    def write(self, addrs, data):
        nbytes = data.shape[1]
        base, arr, name = self.find(int(addrs.min()), int(addrs.max()) + nbytes)
        assert not name.startswith("in"), "store into input " + name
        idx = (addrs - base)[:, None] + np.arange(nbytes)[None, :]
        arr[idx] = data


class Yield(Exception):
    pass


class Wave:
    def __init__(self, prog, wg, wid, kernarg, wgid):
        self.p = prog
        self.wg = wg
        self.v = np.random.randint(0, 2**32, size=(512, 64), dtype=np.uint64).astype(U32)
        self.s = [int(x) for x in np.random.randint(0, 2**32, size=128, dtype=np.uint64)]
        self.s[0] = kernarg & M32
        self.s[1] = kernarg >> 32
        self.s[2] = wgid
        self.s[126] = M32
        self.s[127] = M32
        self.v[0] = (LANE + wid * 64).astype(U32)
        self.scc = 0
        self.pc = 0
        self.done = False
        self.at_barrier = False
        self.vmq = []
        self.lgq = []
        self.pend = {}
        self.n_ins = 0
        self.wid = wid
        self._em = None
        self._emk = None

    def execmask(self):
        k = (self.s[126], self.s[127])
        if k != self._emk:
            e = self.s[126] | (self.s[127] << 32)
            self._em = ((e >> LANE.astype(object)) & 1).astype(bool) if e != (1 << 64) - 1 else None
            self._emk = k
        return self._em

    def commit(self, q, n):
        while len(q) > n:
            fn, regs, _ = q.pop(0)
            if fn:
                fn()
            for r in regs:
                self.pend[r] -= 1
                if self.pend[r] == 0:
                    del self.pend[r]

    def push(self, q, fn, regs, kind):
        for r in regs:
            self.pend[r] = self.pend.get(r, 0) + 1
        q.append((fn, regs, kind))


class WG:
    def __init__(self, lds_size):
        self.lds = np.random.randint(0, 256, size=lds_size, dtype=np.uint8)
        self.waves = []


class Prog:
    def __init__(self, items, mem, late=True, table=None):
        self.mem = mem
        self.late = late
        self.ins = []
        self.labels = {}
        for k, x in items:
            if k == "l":
                self.labels[x] = len(self.ins)
            elif k == "i":
                self.ins.append(x)
        self.fn = [self.compile(i) for i in self.ins]
        self.clock = 0
        code = np.zeros(1 << 16, np.uint8)
        if table is not None:
            code[0x8000:0x8000 + table.nbytes] = table.view(np.uint8)
        self.code_base = mem.alloc("in_code", code)

    def su(self, o):
        if o.kind == "s":
            lo = o.lo
            return lambda w: w.s[lo]
        if o.kind == "imm":
            val = o.val & M32
            return lambda w: val
        if o.kind == "fimm":
            val = f2u(o.val)
            return lambda w: val
        raise ValueError(o.txt)

    def su64(self, o):
        if o.kind == "s":
            lo = o.lo
            return lambda w: w.s[lo] | (w.s[lo + 1] << 32)
        val = o.val & ((1 << 64) - 1)
        return lambda w: val

    def vu(self, o, k=0):
        if o.kind == "v":
            lo = o.lo + k
            return lambda w: w.v[lo]
        if o.kind == "s":
            lo = o.lo + k
            return lambda w: np.full(64, w.s[lo], U32)
        g = self.su(o)
        arr = np.full(64, g(None), U32)
        return lambda w: arr

    def vf(self, o, k=0):
        g = self.vu(o, k)
        neg, ab = o.neg, o.abs
        if not neg and not ab:
            return lambda w: g(w).view(np.float32)

        def f(w):
            x = g(w).view(np.float32)
            if ab:
                x = np.abs(x)
            return -x if neg else x

        return f

    @staticmethod
    def setv(w, r, val):
        em = w.execmask()
        val = val.view(U32) if val.dtype == np.float32 else val.astype(U32)
        if em is None:
            w.v[r] = val
        else:
            w.v[r] = np.where(em, val, w.v[r])

    def compile(self, I):
        b, o, mods = I.base, I.ops, I.mods
        setv = self.setv
        mem = self.mem
        F = np.float32
        if b == "s_endpgm":
            def f(w):
                w.commit(w.vmq, 0)
                w.commit(w.lgq, 0)
                w.done = True
                raise Yield
            return f
        if b in ("s_nop", "s_setprio"):
            return lambda w: None
        if b == "s_sleep":
            def f(w):
                self.flush_stores(w)
                w.pc += 1
                raise Yield
            return f
        if b == "s_waitcnt":
            vm, lg = mods.get("vmcnt"), mods.get("lgkmcnt")
            def f(w):
                if vm is not None:
                    if vm > 0 and len(w.vmq) > vm:
                        kinds = {k == "store" for _, _, k in w.vmq}
                        assert len(kinds) == 1, "counted vmcnt with loads and stores mixed"
                    w.commit(w.vmq, vm)
                if lg is not None:
                    if lg > 0:
                        assert all(k != "smem" for _, _, k in w.lgq), "counted lgkmcnt with SMEM outstanding"
                    w.commit(w.lgq, lg)
            return f
        if b == "s_barrier":
            def f(w):
                assert all(k != "dsw" for _, _, k in w.lgq), "barrier with ds_write outstanding at %d" % w.pc
                w.at_barrier = True
                w.pc += 1
                raise Yield
            return f
        if b == "s_branch" or b.startswith("s_cbranch"):
            name = o[0].txt
            cond = {
                "s_branch": lambda w: True,
                "s_cbranch_scc0": lambda w: w.scc == 0,
                "s_cbranch_scc1": lambda w: w.scc == 1,
                "s_cbranch_vccz": lambda w: (w.s[106] | w.s[107]) == 0,
                "s_cbranch_vccnz": lambda w: (w.s[106] | w.s[107]) != 0,
                "s_cbranch_execz": lambda w: (w.s[126] | w.s[127]) == 0,
                "s_cbranch_execnz": lambda w: (w.s[126] | w.s[127]) != 0,
            }[b]
            def f(w):
                if cond(w):
                    t = self.labels[name]
                    back = t <= w.pc
                    w.pc = t - 1
                    if back and name.startswith("POLL"):
                        self.flush_stores(w)
                        w.pc += 1
                        raise Yield
            return f
        if b.startswith("s_load_dword"):
            n = {"s_load_dword": 1, "s_load_dwordx2": 2, "s_load_dwordx4": 4, "s_load_dwordx8": 8, "s_load_dwordx16": 16}[b]
            base, off, d = self.su64(o[1]), self.su(o[2]), o[0].lo
            regs = list(I.w)
            def f(w):
                data = mem.read(np.array([base(w) + off(w)], np.int64), 4 * n)[0].view(U32)
                def c():
                    for i in range(n):
                        w.s[d + i] = int(data[i])
                w.push(w.lgq, c, regs, "smem")
            return f
        if b in ("s_memrealtime", "s_memtime"):
            d = o[0].lo
            regs = list(I.w)
            def f(w):
                self.clock += 1
                t = self.clock
                def c():
                    w.s[d] = t
                    w.s[d + 1] = 0
                w.push(w.lgq, c, regs, "smem")
            return f
        if b == "s_getpc_b64":
            d = o[0].lo
            def f(w):
                w.s[d] = self.code_base & M32
                w.s[d + 1] = self.code_base >> 32
            return f
        if b.startswith("s_cmp_") or b.startswith("s_bitcmp"):
            if b.endswith("u64"):
                a, c = self.su64(o[0]), self.su64(o[1])
            else:
                a, c = self.su(o[0]), self.su(o[1])
            sg = (lambda x: x - (1 << 32) if x >> 31 else x) if b.endswith("i32") else (lambda x: x)
            op = {"eq": lambda x, y: x == y, "lg": lambda x, y: x != y, "lt": lambda x, y: x < y, "le": lambda x, y: x <= y,
                  "gt": lambda x, y: x > y, "ge": lambda x, y: x >= y}.get(b.split("_")[2])
            if b == "s_bitcmp1_b32":
                op = lambda x, y: (x >> y) & 1 == 1
            if b == "s_bitcmp0_b32":
                op = lambda x, y: (x >> y) & 1 == 0
            def f(w):
                w.scc = int(op(sg(a(w)), sg(c(w))))
            return f
        if b in ("s_mov_b32", "s_movk_i32"):
            a, d = self.su(o[1]), o[0].lo
            def f(w):
                w.s[d] = a(w)
            return f
        if b == "s_mov_b64":
            a, d = self.su64(o[1]), o[0].lo
            def f(w):
                x = a(w)
                w.s[d] = x & M32
                w.s[d + 1] = x >> 32
            return f
        if b in ("s_and_saveexec_b64",):
            a, d = self.su64(o[1]), o[0].lo
            def f(w):
                e = w.s[126] | (w.s[127] << 32)
                x = a(w) & e
                w.s[d], w.s[d + 1] = e & M32, e >> 32
                w.s[126], w.s[127] = x & M32, x >> 32
                w.scc = int(x != 0)
            return f
        if b in ("s_and_b64", "s_or_b64", "s_xor_b64", "s_andn2_b64", "s_not_b64"):
            a = self.su64(o[1])
            c = self.su64(o[2]) if len(o) > 2 else None
            d = o[0].lo
            M64 = (1 << 64) - 1
            op = {"s_and_b64": lambda x, y: x & y, "s_or_b64": lambda x, y: x | y, "s_xor_b64": lambda x, y: x ^ y,
                  "s_andn2_b64": lambda x, y: x & ~y & M64, "s_not_b64": lambda x, y: ~x & M64}[b]
            def f(w):
                x = op(a(w), c(w) if c else 0)
                w.s[d], w.s[d + 1] = x & M32, x >> 32
                w.scc = int(x != 0)
            return f
        if b == "s_cselect_b32":
            a, c, d = self.su(o[1]), self.su(o[2]), o[0].lo
            def f(w):
                w.s[d] = a(w) if w.scc else c(w)
            return f
        if b == "s_cselect_b64":
            a, c, d = self.su64(o[1]), self.su64(o[2]), o[0].lo
            def f(w):
                x = a(w) if w.scc else c(w)
                w.s[d], w.s[d + 1] = x & M32, x >> 32
            return f
        if b == "s_atomic_add":
            d, base = o[0].lo, self.su64(o[1])
            def f(w):
                ad = np.array([base(w)], np.int64)
                old = mem.read(ad, 4).copy().view(U32)
                mem.write(ad, (old + U32(w.s[d])).view(np.uint8).reshape(1, 4))
                def c():
                    w.s[d] = int(old[0, 0])
                w.push(w.lgq, c, [("s", d)], "smem")
            return f
        if b == "s_ff1_i32_b32":
            a, d = self.su(o[1]), o[0].lo
            def f(w):
                x = a(w)
                w.s[d] = ((x & -x).bit_length() - 1) & M32
            return f
        if b == "s_bitset0_b32":
            a, d = self.su(o[1]), o[0].lo
            def f(w):
                w.s[d] &= ~(1 << (a(w) & 31)) & M32
            return f
        if b == "buffer_atomic_add":
            d, srd = o[0].lo, o[2].lo
            def f(w):
                assert (w.s[126], w.s[127]) == (1, 0)
                ad = np.array([w.s[srd] | ((w.s[srd + 1] & 0xFFFF) << 32)], np.int64)
                old = mem.read(ad, 4).copy().view(U32)
                mem.write(ad, (old + w.v[d][0]).view(np.uint8).reshape(1, 4))
                def c():
                    w.v[d][0] = old[0, 0]
                w.push(w.vmq, c, [("v", d)], "load")
            return f
        if b == "s_addk_i32":
            d, k = o[0].lo, o[1].val
            def f(w):
                w.s[d] = (w.s[d] + k) & M32
            return f
        if b.startswith("s_") and len(o) == 3:
            a, c, d = self.su(o[1]), self.su(o[2]), o[0].lo
            def mk(fn, setscc):
                def f(w):
                    x, sc = fn(a(w), c(w), w.scc)
                    w.s[d] = x & M32
                    if setscc:
                        w.scc = int(sc)
                return f
            nz = lambda x: (x & M32, (x & M32) != 0)
            T = {
                "s_add_u32": (lambda x, y, c_: (x + y, (x + y) >> 32), 1),
                "s_add_i32": (lambda x, y, c_: (x + y, 0), 1),
                "s_addc_u32": (lambda x, y, c_: (x + y + c_, (x + y + c_) >> 32), 1),
                "s_sub_u32": (lambda x, y, c_: (x - y, x < y), 1),
                "s_subb_u32": (lambda x, y, c_: (x - y - c_, x < y + c_), 1),
                "s_sub_i32": (lambda x, y, c_: (x - y, 0), 1),
                "s_mul_i32": (lambda x, y, c_: (x * y, 0), 0),
                "s_and_b32": (lambda x, y, c_: nz(x & y), 1),
                "s_or_b32": (lambda x, y, c_: nz(x | y), 1),
                "s_xor_b32": (lambda x, y, c_: nz(x ^ y), 1),
                "s_andn2_b32": (lambda x, y, c_: nz(x & ~y), 1),
                "s_lshl_b32": (lambda x, y, c_: nz(x << (y & 31)), 1),
                "s_lshr_b32": (lambda x, y, c_: nz(x >> (y & 31)), 1),
                "s_bfe_u32": (lambda x, y, c_: nz((x >> (y & 31)) & ((1 << ((y >> 16) & 127)) - 1)), 1),
                "s_lshl1_add_u32": (lambda x, y, c_: ((x << 1) + y, 0), 1),
                "s_lshl2_add_u32": (lambda x, y, c_: ((x << 2) + y, 0), 1),
                "s_lshl3_add_u32": (lambda x, y, c_: ((x << 3) + y, 0), 1),
                "s_lshl4_add_u32": (lambda x, y, c_: ((x << 4) + y, 0), 1),
            }
            return mk(*T[b])
        if b.startswith("v_mfma"):
            big = "32x32" in b
            d, a, bb = o[0].lo, o[1].lo, o[2].lo
            c = o[3].lo if o[3].kind == "v" else None
            if big:
                n, nr = 32, 16
                rows = (8 * (np.arange(16)[:, None] >> 2) + 4 * (LANE[None, :] >> 5) + (np.arange(16)[:, None] & 3))
                cols = np.broadcast_to(LANE[None, :] & 31, (16, 64))
            else:
                n, nr = 16, 4
                rows = 4 * (LANE[None, :] >> 4) + np.arange(4)[:, None]
                cols = np.broadcast_to(LANE[None, :] & 15, (4, 64))
            g = 64 // n
            def f(w):
                if (w.s[126] | w.s[127]) == 0:
                    w.v[d:d + nr] = 0xDEADBEEF
                    return
                assert w.execmask() is None, "mfma with partial exec"
                A = unpack_bf16(w.v[a:a + 4]).reshape(g, n, 8).transpose(1, 0, 2).reshape(n, g * 8)
                B = unpack_bf16(w.v[bb:bb + 4]).reshape(g, n, 8).transpose(1, 0, 2).reshape(n, g * 8)
                D = (A @ B.T)[rows, cols]
                if c is not None:
                    D = D + w.v[c:c + nr].view(F)
                w.v[d:d + nr] = D.astype(F).view(U32)
            return f
        if b.startswith("v_cmp_"):
            ty = b.split("_")[3]
            if ty == "f32":
                a, c = self.vf(o[1]), self.vf(o[2])
            elif ty == "i32":
                a0, c0 = self.vu(o[1]), self.vu(o[2])
                a, c = (lambda w: a0(w).view(np.int32)), (lambda w: c0(w).view(np.int32))
            else:
                a, c = self.vu(o[1]), self.vu(o[2])
            op = {"eq": np.equal, "ne": np.not_equal, "lt": np.less, "le": np.less_equal, "gt": np.greater,
                  "ge": np.greater_equal}[b.split("_")[2]]
            d = o[0].lo
            def f(w):
                m = op(a(w), c(w))
                em = w.execmask()
                if em is not None:
                    m = m & em
                x = np.packbits(m, bitorder="little").view(U32)
                w.s[d], w.s[d + 1] = int(x[0]), int(x[1])
            return f
        if b == "v_readfirstlane_b32":
            a, d = self.vu(o[1]), o[0].lo
            def f(w):
                em = w.execmask()
                i = 0 if em is None or not em.any() else int(np.argmax(em))
                w.s[d] = int(a(w)[i])
            return f
        if b == "v_cndmask_b32":
            a, c, d = self.vu(o[1]), self.vu(o[2]), o[0].lo
            ml = o[3].lo if len(o) > 3 else 106
            def f(w):
                m = np.unpackbits(np.array([w.s[ml], w.s[ml + 1]], U32).view(np.uint8), bitorder="little").astype(bool)
                setv(w, d, np.where(m, c(w), a(w)))
            return f
        if b == "v_cvt_pk_bf16_f32":
            a, c, d = self.vf(o[1]), self.vf(o[2]), o[0].lo
            return lambda w: setv(w, d, bf16_rne(a(w)) | (bf16_rne(c(w)) << 16))
        if b == "v_pk_mov_b32":
            sel = mods.get("op_sel", [0, 0])
            a, c, d = self.vu(o[1], sel[0]), self.vu(o[2], sel[1]), o[0].lo
            def f(w):
                x, y = a(w).copy(), c(w).copy()
                setv(w, d, x)
                setv(w, d + 1, y)
            return f
        if b in ("v_pk_fma_f32", "v_pk_mul_f32", "v_pk_add_f32"):
            ns = 3 if b == "v_pk_fma_f32" else 2
            sl = mods.get("op_sel", [0] * ns)
            sh = mods.get("op_sel_hi", [1] * ns)
            nl = mods.get("neg_lo", [0] * ns)
            nh = mods.get("neg_hi", [0] * ns)
            def comp(i, k):
                return self.vf(o[1 + i], k if o[1 + i].kind in ("v", "s") else 0)
            lo = [comp(i, sl[i]) for i in range(ns)]
            hi = [comp(i, sh[i]) for i in range(ns)]
            d = o[0].lo
            def ev(w, g, ng):
                x = [(-g[i](w) if ng[i] else g[i](w)) for i in range(ns)]
                if ns == 3:
                    return (x[0].astype(np.float64) * x[1] + x[2]).astype(F)
                return x[0] * x[1] if b == "v_pk_mul_f32" else x[0] + x[1]
            def f(w):
                x, y = ev(w, lo, nl), ev(w, hi, nh)
                setv(w, d, x)
                setv(w, d + 1, y)
            return f
        if b in ("v_permlane16_swap_b32", "v_permlane32_swap_b32"):
            d, c = o[0].lo, o[1].lo
            h = 16 if "16" in b else 32
            def f(w):
                x, y = w.v[d].copy(), w.v[c].copy()
                for base in range(0, 64, 2 * h):
                    t = y[base:base + h].copy()
                    y[base:base + h] = x[base + h:base + 2 * h]
                    x[base + h:base + 2 * h] = t
                w.v[d], w.v[c] = x, y
            return f
        fl1 = {
            "v_exp_f32": lambda x: np.exp2(x), "v_rcp_f32": lambda x: F(1) / x,
            "v_sin_f32": lambda x: np.sin(2 * np.pi * x.astype(np.float64)).astype(F),
            "v_cos_f32": lambda x: np.cos(2 * np.pi * x.astype(np.float64)).astype(F),
            "v_fract_f32": lambda x: x - np.floor(x),
        }
        clamp = mods.get("clamp")
        cl = (lambda x: np.nan_to_num(np.clip(x, 0, 1), nan=0.0).astype(F)) if clamp else (lambda x: x)
        if b in fl1:
            a, d, fn = self.vf(o[1]), o[0].lo, fl1[b]
            if b in ("v_sin_f32", "v_cos_f32"):
                def f(w):
                    x = a(w)
                    em = w.execmask()
                    assert np.all(np.abs(x if em is None else x[em]) <= 256), "sin/cos range"
                    setv(w, d, cl(fn(x).astype(F)))
                return f
            return lambda w: setv(w, d, cl(fn(a(w)).astype(F)))
        if b == "v_cvt_f32_u32":
            a, d = self.vu(o[1]), o[0].lo
            return lambda w: setv(w, d, a(w).astype(F))
        if b == "v_cvt_f32_i32":
            a, d = self.vu(o[1]), o[0].lo
            return lambda w: setv(w, d, a(w).view(np.int32).astype(F))
        fl2 = {
            "v_add_f32": lambda x, y: x + y, "v_sub_f32": lambda x, y: x - y, "v_subrev_f32": lambda x, y: y - x,
            "v_mul_f32": lambda x, y: x * y, "v_max_f32": np.fmax, "v_min_f32": np.fmin,
        }
        if b in fl2:
            a, c, d, fn = self.vf(o[1]), self.vf(o[2]), o[0].lo, fl2[b]
            if I.dpp:
                k = mods["row_ror"]
                idx = (LANE & ~15) | ((LANE - k) & 15)
                return lambda w: setv(w, d, fn(a(w)[idx], c(w)))
            return lambda w: setv(w, d, cl(fn(a(w), c(w))))
        if b in ("v_fma_f32", "v_fmaak_f32", "v_fmamk_f32"):
            a, c, e, d = self.vf(o[1]), self.vf(o[2]), self.vf(o[3]), o[0].lo
            return lambda w: setv(w, d, (a(w).astype(np.float64) * c(w) + e(w)).astype(F))
        if b == "v_fmac_f32":
            a, c, d = self.vf(o[1]), self.vf(o[2]), o[0].lo
            idx = ((LANE & ~15) | ((LANE - mods["row_ror"]) & 15)) if I.dpp else LANE
            return lambda w: setv(w, d, (a(w)[idx].astype(np.float64) * c(w) + w.v[d].view(F)).astype(F))
        if b == "v_mov_b32":
            a, d = self.vu(o[1]), o[0].lo
            return lambda w: setv(w, d, a(w).copy())
        i2 = {
            "v_add_u32": lambda x, y: x + y, "v_sub_u32": lambda x, y: x - y, "v_subrev_u32": lambda x, y: y - x,
            "v_and_b32": lambda x, y: x & y, "v_or_b32": lambda x, y: x | y, "v_xor_b32": lambda x, y: x ^ y,
            "v_lshlrev_b32": lambda x, y: y << (x & 31), "v_lshrrev_b32": lambda x, y: y >> (x & 31),
            "v_mul_u32_u24": lambda x, y: (x & 0xFFFFFF) * (y & 0xFFFFFF), "v_mul_lo_u32": lambda x, y: x * y,
            "v_min_u32": np.minimum, "v_max_u32": np.maximum,
        }
        if b in i2:
            a, c, d, fn = self.vu(o[1]), self.vu(o[2]), o[0].lo, i2[b]
            return lambda w: setv(w, d, fn(a(w), c(w)))
        i3 = {
            "v_mad_u32_u24": lambda x, y, z: (x & 0xFFFFFF) * (y & 0xFFFFFF) + z,
            "v_lshl_add_u32": lambda x, y, z: (x << (y & 31)) + z, "v_add_lshl_u32": lambda x, y, z: (x + y) << (z & 31),
            "v_lshl_or_b32": lambda x, y, z: (x << (y & 31)) | z, "v_and_or_b32": lambda x, y, z: (x & y) | z,
            "v_or3_b32": lambda x, y, z: x | y | z, "v_add3_u32": lambda x, y, z: x + y + z,
            "v_bfe_u32": lambda x, y, z: (x >> (y & 31)) & ((U32(1) << (z & 31)) - U32(1)),
            "v_xad_u32": lambda x, y, z: (x ^ y) + z,
            "v_max3_u32": lambda x, y, z: np.maximum(np.maximum(x, y), z),
            "v_bfi_b32": lambda x, y, z: (x & y) | (~x & z),
        }
        if b in i3:
            a, c, e, d, fn = self.vu(o[1]), self.vu(o[2]), self.vu(o[3]), o[0].lo, i3[b]
            return lambda w: setv(w, d, fn(a(w), c(w), e(w)))
        if b == "v_bitop3_b32":
            a, c, e, d, tt = self.vu(o[1]), self.vu(o[2]), self.vu(o[3]), o[0].lo, mods["bitop3"]
            def f(w):
                x, y, z = a(w), c(w), e(w)
                r = np.zeros(64, U32)
                for i in range(8):
                    if (tt >> i) & 1:
                        r |= (x if i & 4 else ~x) & (y if i & 2 else ~y) & (z if i & 1 else ~z)
                setv(w, d, r)
            return f
        if b.startswith("ds_"):
            g = self.compile_ds(I)
            def f(w):
                if (w.s[126] | w.s[127]) == 0:
                    w.push(w.lgq, None, [], "dsr")
                else:
                    g(w)
            return f
        if b.startswith("buffer_") or b.startswith("global_"):
            return self.compile_vmem(I)
        raise ValueError("emu: unsupported " + I.line)

    def flush_stores(self, w):
        for i, (fn, regs, kind) in enumerate(w.vmq):
            if kind == "store" and fn:
                fn()
                w.vmq[i] = (None, regs, kind)

    def compile_ds(self, I):
        b, o, mods = I.base, I.ops, I.mods
        regs = list(I.w)

        def rd(w, addr, n):
            lds = w.wg.lds
            assert addr.min() >= 0 and addr.max() + n <= len(lds), "LDS read OOB %d" % addr.max()
            assert np.all(addr % min(n, 16) == 0), "LDS read misaligned: " + I.line
            return lds[addr[:, None] + np.arange(n)[None, :]]

        if b.startswith("ds_read"):
            d, a = o[0].lo, o[1].lo
            if b == "ds_read_b64_tr_b16":
                off = mods.get("offset", 0)
                def f(w):
                    assert w.execmask() is None
                    x = rd(w, w.v[a].astype(np.int64) + off, 8).copy().view(np.uint16).reshape(4, 4, 4, 4)
                    y = np.ascontiguousarray(x.transpose(0, 2, 3, 1)).reshape(64, 4)
                    y = y.view(U32)
                    def c():
                        w.v[d] = y[:, 0]
                        w.v[d + 1] = y[:, 1]
                    w.push(w.lgq, c, regs, "dsr")
                return f
            if b in ("ds_read_u16_d16_hi", "ds_read_u16"):
                off = mods.get("offset", 0)
                hi = b.endswith("hi")
                def f(w):
                    assert w.execmask() is None
                    x = rd(w, w.v[a].astype(np.int64) + off, 2).copy().view(np.uint16)[:, 0].astype(U32)
                    def c():
                        w.v[d] = ((w.v[d] & 0xFFFF) | (x << 16)) if hi else x
                    w.push(w.lgq, c, regs, "dsr")
                return f
            if b.startswith("ds_read2"):
                es = 8 if b.endswith("b64") else 4
                st = es * (64 if "st64" in b else 1)
                offs = [mods.get("offset0", 0) * st, mods.get("offset1", 0) * st]
            else:
                es = {"ds_read_b32": 4, "ds_read_b64": 8, "ds_read_b128": 16}[b]
                offs = [mods.get("offset", 0)]
            def f(w):
                em = w.execmask()
                ad = w.v[a].astype(np.int64)
                if em is not None:
                    ad = np.where(em, ad, 0)
                xs = [rd(w, ad + of, es).copy().view(U32) for of in offs]
                def c():
                    k = d
                    for x in xs:
                        for j in range(x.shape[1]):
                            w.v[k] = x[:, j] if em is None else np.where(em, x[:, j], w.v[k])
                            k += 1
                w.push(w.lgq, c, regs, "dsr")
            return f
        if b.startswith("ds_write"):
            a = o[0].lo
            if b.startswith("ds_write2"):
                es = 8 if b.endswith("b64") else 4
                st = es * (64 if "st64" in b else 1)
                parts = [(o[1].lo, mods.get("offset0", 0) * st), (o[2].lo, mods.get("offset1", 0) * st)]
            else:
                es = {"ds_write_b32": 4, "ds_write_b64": 8, "ds_write_b128": 16}[b]
                parts = [(o[1].lo, mods.get("offset", 0))]
            def f(w):
                em = w.execmask()
                lds = w.wg.lds
                for r, of in parts:
                    ad = w.v[a].astype(np.int64) + of
                    data = np.ascontiguousarray(w.v[r:r + es // 4].T).view(np.uint8)
                    if em is not None:
                        ad, data = ad[em], data[em]
                    if len(ad) == 0:
                        continue
                    assert ad.max() + es <= len(lds), "LDS write OOB"
                    assert np.all(ad % es == 0), "LDS write misaligned: " + I.line
                    lds[ad[:, None] + np.arange(es)[None, :]] = data
                w.push(w.lgq, None, [], "dsw")
            return f
        raise ValueError(I.line)

    def compile_vmem(self, I):
        b, o, mods = I.base, I.ops, I.mods
        mem = self.mem
        isbuf = b.startswith("buffer_")
        load = "load" in b
        lds = getattr(I, "ldsdma", False)
        nb = 16 if b.endswith("x4") else 8 if b.endswith("x2") else 2 if "short" in b else 4
        off = mods.get("offset", 0)
        regs = list(I.w)
        if isbuf:
            k = 0 if lds else 1
            va, srd, so = o[k], o[k + 1].lo, self.su(o[k + 2])
            data = None if lds else o[0].lo
            assert mods.get("offen") or va.kind == "off"
            def addr(w):
                base = w.s[srd] | ((w.s[srd + 1] & 0xFFFF) << 32)
                assert w.s[srd + 3] == 0x20000 and (w.s[srd + 1] >> 16) == 0, "bad SRD"
                vo = w.v[va.lo].astype(np.int64) if va.kind == "v" else np.zeros(64, np.int64)
                o_ = vo + so(w) + off
                return base + o_, (o_ + nb) <= w.s[srd + 2], o_ < w.s[srd + 2]
        else:
            if load:
                k = 0 if lds else 1
                va, sa = o[k], o[k + 1]
                data = None if lds else o[0].lo
            else:
                va, sa, data = o[0], o[2], o[1].lo
            def addr(w):
                if sa.kind == "off":
                    x = w.v[va.lo].astype(np.int64) | (w.v[va.lo + 1].astype(np.int64) << 32)
                else:
                    x = w.v[va.lo].astype(np.int64) + (w.s[sa.lo] | (w.s[sa.lo + 1] << 32))
                t = np.ones(64, bool)
                return x + off, t, t

        def f(w):
            em = w.execmask()
            act = np.ones(64, bool) if em is None else em
            assert act.any(), "memory instruction with EXEC=0: " + I.line
            ad, inr, part = addr(w)
            assert np.all(ad[act] % min(nb, 4) == 0), "misaligned global access: " + I.line
            if load:
                x = np.zeros((64, nb), np.uint8)
                m = act & inr
                if m.any():
                    x[m] = mem.read(ad[m], nb)
                pm = act & part & ~inr
                for i in np.nonzero(pm)[0]:
                    base = w.s[srd] | ((w.s[srd + 1] & 0xFFFF) << 32)
                    for j in range(0, nb, 4):
                        if ad[i] + j + 4 - base <= w.s[srd + 2]:
                            x[i, j:j + 4] = mem.read(np.array([ad[i] + j]), 4)[0]
                if lds:
                    la = (w.s[124] & 0x3FFFC) + off + LANE * nb
                    assert la[act].max() + nb <= len(w.wg.lds), "LDS-DMA OOB"
                    def c():
                        w.wg.lds[la[act][:, None] + np.arange(nb)[None, :]] = x[act]
                    if self.late:
                        w.push(w.vmq, c, [], "dma")
                    else:
                        c()
                        w.push(w.vmq, None, [], "dma")
                elif nb == 2:
                    y = x.view(np.uint16)[:, 0].astype(U32)
                    hi = b.endswith("hi")
                    def c():
                        val = (y << 16) if hi else y
                        w.v[data] = np.where(act, val, w.v[data])
                    w.push(w.vmq, c, regs, "load")
                else:
                    y = x.view(U32)
                    def c():
                        for j in range(nb // 4):
                            w.v[data + j] = np.where(act, y[:, j], w.v[data + j])
                    w.push(w.vmq, c, regs, "load")
            else:
                assert np.all(inr[act]), "store out of SRD range: " + I.line
                x = np.ascontiguousarray(w.v[data:data + max(nb // 4, 1)].T).view(np.uint8)[:, :nb]
                a2, x2 = ad[act].copy(), x[act].copy()
                c = lambda: mem.write(a2, x2)
                if self.late:
                    w.push(w.vmq, c, [], "store")
                else:
                    c()
                    w.push(w.vmq, None, [], "store")
        return f

    def run_wave(self, w):
        ins, fn = self.ins, self.fn
        try:
            while True:
                I = ins[w.pc]
                if w.pend and I.base != "s_waitcnt":
                    bad = (I.r | I.w) & w.pend.keys()
                    if bad:
                        raise RuntimeError("use of register with outstanding load %s at: %s" % (sorted(bad)[:4], I.line))
                fn[w.pc](w)
                w.pc += 1
                w.n_ins += 1
        except Yield:
            pass
        except Exception:
            print("EMU ERROR wg", w.s[2] if False else "", "wave", w.wid, "pc", w.pc, ins[w.pc].line)
            raise


def run(items, mem, kernarg, wgids, nwaves, lds_size, late=True, reverse=False, max_rounds=300, table=None):
    prog = Prog(items, mem, late, table)
    wgs = []
    for g in wgids:
        wg = WG(lds_size)
        wg.waves = [Wave(prog, wg, i, kernarg, g) for i in range(nwaves)]
        wg.id = g
        wgs.append(wg)
    live = list(wgs)
    rounds = 0
    while live:
        rounds += 1
        if rounds >= max_rounds:
            from collections import Counter
            inv = {v_: k for k, v_ in prog.labels.items()}
            c = Counter((w.wid, w.pc, w.at_barrier) for wg in live for w in wg.waves if not w.done)
            for k, n in sorted(c.items()):
                print(k, n, prog.ins[k[1]].line, [prog.ins[k[1] + d].line for d in (-12, -8)])
            raise RuntimeError("emu: deadlock?")
        for wg in (reversed(live) if reverse else live):
            while True:
                ws = [w for w in wg.waves if not w.done]
                if not ws:
                    break
                for w in (reversed(ws) if reverse else ws):
                    if not w.at_barrier:
                        prog.run_wave(w)
                ws = [w for w in wg.waves if not w.done]
                if ws and all(w.at_barrier for w in ws):
                    for w in ws:
                        w.at_barrier = False
                    continue
                break
        live = [wg for wg in live if any(not w.done for w in wg.waves)]
    return wgs
```

```python
import sys
from asmlib import *
from common import wrap

WS_EP = 0x0
WS_GO = 0x1000
WS_NOTE = 0x800
WS_RED = 0x10000
RED_STRIDE = 0x4800
WS_X2S = 0x60000
WS_PART = 0x80000
PLINE = 1152
WS_PQ = 0x200000
WS_X1 = 0x400000
WS_STAMP = 0x1000000
WS_SIZE = 0x10000000
LDS_SIZE = 160 * 1024
TAGC_LO, TAGC_HI = 0x1E3779B1, 0x05EBCA6B
POLL_LIMIT = 1 << 18
M16 = "v_mfma_f32_16x16x32_bf16"
M32 = "v_mfma_f32_32x32x16_bf16"
XB, ZB, WB, TB = 0, 32768, 65536, 131072
RAB = TB + 24576


class G:
    def __init__(self, stamps=False, opt=None):
        self.a = Asm()
        self.stamps = stamps
        self.opt = opt or {}
        self.nst = 0
        self.role = ""

    sW = 3
    sTL, sTH = 6, 7
    sCNT = 12
    pXA, pWQ, pWO, pXB, pWR, pWI, pOUT, pDBG, pWS = 16, 18, 20, 22, 24, 26, 28, 30, 32
    rWS, rOUT, rA, rB, rC = 36, 40, 44, 48, 52
    sST = 72
    LT = [16, 17, 0, 1]

    def stamp(self):
        pr = self.opt.get("probe")
        if pr:
            if "%s:%d" % (self.role, self.nst) in pr.split("+"):
                self.a("s_memrealtime s[76:77]\ns_waitcnt lgkmcnt(0)")
            self.nst += 1
            return
        if not self.stamps:
            return
        k = self.nst
        assert k < 15
        self.a("%s %s\ns_waitcnt lgkmcnt(0)" % ("s_memtime" if self.opt.get("cyc") else "s_memrealtime", s(self.sST + 2 * k, 2)))
        self.nst += 1

    def end(self):
        a = self.a
        if self.opt.get("probe"):
            self.stamp()
            lab = a.newlabel("SPIN")
            a("s_waitcnt lgkmcnt(0)\ns_sub_u32 s76, s76, s72\ns_lshl_b32 s76, s76, 2\ns_add_u32 s76, s76, 2000\ns_min_u32 s76, s76, 20000")
            a.label(lab)
            a("s_memrealtime s[74:75]\ns_waitcnt lgkmcnt(0)\ns_sub_u32 s74, s74, s72\ns_cmp_lt_u32 s74, s76\ns_cbranch_scc1 %s" % lab)
        if self.stamps:
            self.stamp()
            a("s_waitcnt vmcnt(0)")
            self.stamp()
            a("s_mov_b64 exec, 1")
            a("s_lshl3_add_u32 s56, s5, s4\ns_lshl_b32 s56, s56, 3\ns_add_u32 s56, s56, s3\ns_lshl_b32 s56, s56, 6\ns_add_u32 s56, s56, 0x%x" % WS_STAMP)
            a("v_mov_b32 v2, 0")
            for k in range(self.nst):
                a("v_mov_b32 v3, s%d\nbuffer_store_dword v3, v2, %s, s56 offen offset:%d" % (self.sST + 2 * k, s(self.rWS, 4), 4 * k))
            a("v_mov_b32 v3, %d\nbuffer_store_dword v3, v2, %s, s56 offen offset:60" % (self.nst, s(self.rWS, 4)))
        a("s_endpgm")

    def pad_stamps(self, n):
        while (self.stamps or self.opt.get("probe")) and self.nst < n:
            if self.stamps:
                self.a("s_mov_b32 s%d, s%d" % (self.sST + 2 * self.nst, self.sST + 2 * self.nst - 2))
            self.nst += 1

    def srd(self, r, p, size):
        self.a("s_mov_b32 s%d, s%d\ns_mov_b32 s%d, s%d\ns_mov_b32 s%d, 0x%x\ns_mov_b32 s%d, 0x20000" % (r, p, r + 1, p + 1, r + 2, size, r + 3))

    def tags(self):
        t = self.LT
        self.a("""s_add_u32 s8, s8, 0x%x
        s_addc_u32 s9, s9, 0x%x
        s_and_b32 s6, s8, 0xbfffbfff
        s_and_b32 s7, s9, 0xbfffbfff
        s_bitcmp1_b32 s8, 0
        s_cselect_b32 s%d, 0x10001, 0
        s_xor_b32 s%d, s%d, 0x10000
        s_xor_b32 s%d, s%d, 0x10001
        s_xor_b32 s%d, s%d, 1""" % (TAGC_LO, TAGC_HI, t[0], t[1], t[0], t[2], t[0], t[3], t[0]))

    def flip_marks(self):
        for r in self.LT:
            self.a("s_xor_b32 s%d, s%d, 1" % (r, r))

    def mark(self, base, vmask):
        return ["v_and_or_b32 v%d, v%d, v%d, s%d" % (base + e, base + e, vmask, self.LT[e]) for e in range(4)]

    def markcheck(self, base, n, vacc):
        a = self.a
        a("v_xor_b32 v%d, s%d, v%d" % (vacc, self.LT[0], base))
        for i in range(1, n):
            a("v_bitop3_b32 v%d, v%d, v%d, s%d bitop3:0xf6" % (vacc, vacc, base + i, self.LT[i & 3]))
        a("v_and_b32 v%d, 0x10001, v%d" % (vacc, vacc))

    def tagcheck(self, pieces, vacc):
        a = self.a
        for i, p in enumerate(pieces):
            if i == 0:
                a("v_xor_b32 v%d, s%d, v%d" % (vacc, self.sTL, p + 1))
            else:
                a("v_bitop3_b32 v%d, v%d, v%d, s%d bitop3:0xf6" % (vacc, vacc, p + 1, self.sTL))
            a("v_bitop3_b32 v%d, v%d, v%d, s%d bitop3:0xf6" % (vacc, vacc, p + 3, self.sTH))

    def poll(self, issue, check, vacc, first_issued=False):
        a = self.a
        top, done, chk = a.newlabel("POLL"), a.newlabel("DONE"), a.newlabel("CHK")
        a("s_mov_b32 s%d, 0x%x" % (self.sCNT, POLL_LIMIT))
        if first_issued:
            a("s_branch " + chk)
        a.label(top)
        issue()
        if first_issued:
            a.label(chk)
        a("s_waitcnt vmcnt(0)")
        check()
        a("v_cmp_ne_u32 vcc, 0, v%d" % vacc)
        a("s_cbranch_vccz " + done)
        a("s_sleep %d" % self.opt.get("sl", 2))
        a("s_sub_u32 s%d, s%d, 1" % (self.sCNT, self.sCNT))
        a("s_cbranch_scc0 " + top)
        a.label(done)

    def diag_delay(self, name):
        n = self.opt.get(name, 0)
        if n:
            self.a("s_sleep %d" % n)

    def cvt(self, d, x, y):
        self.a("v_cvt_pk_bf16_f32 v%d, %s, %s" % (d, x, y))

    def build(self):
        a = self.a
        a.label("CODE0")
        if self.opt.get("probe"):
            a("s_memrealtime s[72:73]\ns_memrealtime s[76:77]")
            self.nst = 1
        if self.stamps:
            a("%s %s" % ("s_memtime" if self.opt.get("cyc") else "s_memrealtime", s(self.sST, 2)))
            self.nst = 1
        a("""v_lshrrev_b32 v2, 6, v0
        v_and_b32 v1, 63, v0
        s_and_b32 s4, s2, 7
        v_readfirstlane_b32 s3, v2
        s_lshr_b32 s5, s2, 3
        s_cmp_ge_u32 s5, 32
        s_cbranch_scc1 EXIT
        ROT""".replace("ROT", "s_cmp_lt_u32 s5, 24\ns_cbranch_scc1 NOT_B" if self.opt.get("rot", 24) == 0 else "s_sub_u32 s5, s5, 8\ns_cbranch_scc0 NOT_B"))
        n0 = self.nst
        self.b_head()
        a.label("EXIT")
        a("s_endpgm")
        a.label("NOT_B")
        a("s_cmp_ge_u32 s3, 4\ns_cbranch_scc1 LOADER")
        pc = a.newlabel("PC")
        if self.opt.get("pfs", 1):
            a("s_cmp_lg_u32 s3, 0\ns_cbranch_scc1 COMPUTE\ns_getpc_b64 s[56:57]")
            a.label(pc)
            a.items.append(("i", _sym_add("s_mov_b32 s58, ROLE_B-4-%s" % pc)))
            a("v_and_b32 v3, 7, v1\nv_mul_u32_u24 v3, 24, v3\nv_add_lshl_u32 v3, v3, s5, 7\nv_min_u32 v3, s58, v3\nglobal_load_dword v0, v3, s[56:57]\ns_branch COMPUTE")
        else:
            a("s_cmp_eq_u32 s3, 3\ns_cbranch_scc1 COMPUTE\ns_getpc_b64 s[56:57]")
            a.label(pc)
            a.items.append(("i", _sym_add("s_mov_b32 s58, ROLE_B-4-%s" % pc)))
            a("v_lshlrev_b32 v3, 7, v0\nv_min_u32 v3, s58, v3\nglobal_load_dword v0, v3, s[56:57]\ns_branch COMPUTE")
        a.label("LOADER")
        self.loader()
        self.nst = n0
        self.compute()
        self.nst = n0
        self.role_b()
        a.label("CODE_END")
        prot = [0, 1, 3, 4, 5, 60, 61, 70] + list(range(72, 102))
        if self.opt.get("walk", 0) & 1:
            a.walkify("WA_0", "WA_1", 3, "WRET_A", prot, "WKA")
            a.walkify("WL_0", "WL_1", 1, "WRET_A", prot, "WKL")
            a.walkify("WQ_0", "WQ_1", 2, "WRET_A", prot, "WKQ")
            a.walkify("WR_0", "WR_1", 1, "WRET_A", prot, "WKR")
        if self.opt.get("walk", 0) & 2:
            a.walkify("WB_0", "WB_1", 6, "WRET_B", prot, "WKB")
            a.walkify("WC_0", "WC_1", 1, "WRET_C", prot, "WKC")
        bad = a.check_branches()
        assert not bad, bad
        return a

    KARG = "s_load_dwordx16 s[16:31], s[0:1], 0\ns_load_dwordx2 s[32:33], s[0:1], 64"

    def b_head(self):
        a = self.a
        lab = a.newlabel("PC")
        a("s_load_dwordx2 s[44:45], s[0:1], 24")
        a("s_getpc_b64 s[56:57]")
        a.label(lab)
        a.items.append(("i", _sym_add("s_add_u32 s58, s56, TABLE-%s" % lab, 0x8000)))
        a("""s_addc_u32 s59, s57, 0
        v_lshlrev_b32 v2, 4, v1
        s_mul_i32 s66, s3, 3072
        v_add_u32 v7, s66, v2
        s_add_u32 m0, s66, %d
        s_and_b32 s5, s5, 31""" % TB)
        for q in range(3):
            a("global_load_lds_dwordx4 v7, s[58:59] offset:%d" % (q * 1024))
        a("""s_and_b32 s61, s5, 7
        s_lshl3_add_u32 s60, s4, s61
        s_lshl_b32 s62, s3, 7
        s_add_u32 s62, s62, s60
        s_lshl_b32 s62, s62, 10
        s_add_u32 s63, s62, 0x%x
        s_add_u32 s64, s62, 0x%x
        s_add_u32 s65, s62, 0x%x
        s_lshl_b32 s70, s3, 12
        s_mov_b32 m0, s70
        s_mov_b32 s46, 0x200000
        s_mov_b32 s47, 0x20000
        s_waitcnt lgkmcnt(0)""" % (0x100000 - 1024, 0x10000 - 2048, 0x110000 - 3072))
        for q in range(4):
            a("buffer_load_dwordx4 v2, %s, s%d offen offset:%d nt lds" % (s(self.rA, 4), 62 + q, q * 1024))
        a("s_cmp_ge_u32 s3, %d\ns_cbranch_scc1 ROLE_B" % (1 if self.opt.get("pfb", 1) else 2))
        a.items.append(("i", _sym_add("s_add_u32 s56, s56, ROLE_B-%s" % lab)))
        a("s_addc_u32 s57, s57, 0")
        a.items.append(("i", _sym_add("s_mov_b32 s58, CODE_END-4-ROLE_B")))
        if self.opt.get("pfb", 1):
            a("v_and_b32 v3, 15, v1\nv_lshlrev_b32 v3, 3, v3\nv_add_lshl_u32 v3, v3, s61, 7")
        else:
            a("v_lshlrev_b32 v3, 7, v0")
        a("v_min_u32 v3, s58, v3\nglobal_load_dword v0, v3, s[56:57]")
        a("s_branch ROLE_B")

    def loader(self):
        a = self.a
        ws = s(self.rWS, 4)
        self.role = "L"
        vX, vW = 4, 8
        a("""s_load_dwordx4 s[44:47], s[0:1], 0
        s_lshr_b32 s60, s4, 1
        s_and_b32 s63, s5, 3
        s_lshl2_add_u32 s60, s60, s63
        s_bfe_u32 s65, s5, 0x20002
        s_lshr_b32 s66, s5, 4
        s_lshl_b32 s70, s65, s66
        s_add_u32 s70, s70, s63
        s_and_b32 s70, s70, 3
        QREV
        s_sub_u32 s58, s3, 4
        s_lshl2_add_u32 s63, s60, s58
        s_lshl_b32 s63, s63, 15
        v_lshrrev_b32 v2, 3, v1
        v_lshrrev_b32 v3, 4, v1
        v_and_b32 v12, 7, v1
        v_xor_b32 v12, v12, v3
        v_lshl_add_u32 v12, v12, 4, s63
        v_lshl_add_u32 v4, v2, 10, v12
        v_xor_b32 v5, 64, v4
        v_add_u32 v5, 0x1c00, v5
        v_add_u32 v6, 0x3800, v4
        v_add_u32 v7, 0x3800, v5
        s_lshl_b32 s59, s58, 12""".replace("QREV", "s_lshl2_add_u32 s70, s66, s70" if self.opt.get("qrev") else ""))

        def issue_x(c):
            a("s_add_u32 m0, s59, %d" % ((c % 5) * 32768))
            if self.opt.get("rotord"):
                a("s_add_u32 s62, s70, %d\ns_and_b32 s62, s62, 3\ns_or_b32 s62, s62, %d\ns_lshl_b32 s63, s62, 7" % (c & 3, c & 4))
            else:
                a("s_xor_b32 s62, s70, %d\ns_lshl_b32 s63, s62, 7" % c)
            if c == 0:
                a("s_waitcnt lgkmcnt(0)\ns_mov_b64 s[48:49], s[46:47]\ns_mov_b32 s46, 0x200000\ns_mov_b32 s47, 0x20000")
            for j in range(4):
                a("buffer_load_dwordx4 v%d, %s, s63 offen offset:%d lds" % (vX + j, s(self.rA, 4), j * 1024))

        def issue_w(c):
            a("s_add_u32 m0, s59, %d" % ((c % 5) * 32768 + 16384))
            a("s_mul_i32 s64, s62, 0x30000")
            for j in range(4):
                a("buffer_load_dwordx4 v%d, %s, s64 offen offset:%d lds" % (vW + j, s(self.rB, 4), j * 1024))

        def issue(c):
            issue_x(c)
            issue_w(c)

        issue_x(0)
        a(self.KARG)
        a("""s_and_b32 s64, s4, 1
        s_lshl2_add_u32 s61, s64, s65
        s_lshl1_add_u32 s66, s64, s65
        s_lshl_b32 s63, s61, 7
        s_add_u32 s63, s63, 1024
        s_lshl_b32 s64, s66, 8
        s_cmp_ge_u32 s5, 16
        s_cselect_b32 s63, s64, s63
        s_cselect_b32 s64, 7, 10
        v_bfe_u32 v12, v1, 2, 2
        v_xor_b32 v12, v12, v3
        v_lshrrev_b32 v13, 1, v12
        v_lshlrev_b32 v13, s64, v13
        v_and_b32 v14, 1, v12
        v_lshl_add_u32 v13, v14, 6, v13
        v_and_b32 v14, 3, v1
        v_lshl_add_u32 v13, v14, 4, v13
        v_mul_u32_u24 v15, 0xc00, v3
        s_mul_i32 s65, s58, 0xc000
        s_add_u32 s65, s65, s63
        v_add3_u32 v8, v13, v15, s65
        v_add_u32 v9, 0x2c00, v8
        v_add_u32 v10, 0x5800, v8
        v_add_u32 v11, 0x8400, v8
        s_mov_b32 s50, 0x180000
        s_mov_b32 s51, 0x20000""")
        issue_w(0)
        issue_x(1)
        a("s_waitcnt lgkmcnt(0)")
        a("s_load_dwordx2 s[8:9], s[32:33], %d" % WS_EP)
        issue_w(1)
        self.srd(self.rWS, self.pWS, WS_SIZE)
        self.srd(self.rOUT, self.pOUT, 2048 * 2048)
        a("s_waitcnt lgkmcnt(0)")
        self.tags()
        ramp = self.opt.get("ramp", 9)
        groups = [0, 1]
        waitc = lambda c: a("s_waitcnt vmcnt(%d)\ns_barrier" % (8 * (len(groups) - 1 - groups.index(c))))
        c = 0
        while groups[-1] != 7:
            waitc(c)
            if c == 0:
                self.stamp()
            for _ in range(int(str(self.opt.get("sched", "9111111"))[c + 1])):
                groups.append(groups[-1] + 1)
                issue(groups[-1])
            c += 1
        cq, gq = c, list(groups)
        a("s_cmp_ge_u32 s5, 16\ns_cbranch_scc1 QLOADER")
        n0 = self.nst
        WSLOT = [3, 4, 0, 2]
        self.srd(self.rC, self.pWO, 512 * 1024)
        a("""s_and_b32 s68, s5, 3
        s_lshl_b32 s69, s58, 13
        v_lshlrev_b32 v16, 6, v12
        v_lshl_add_u32 v16, v14, 4, v16
        v_lshl_add_u32 v16, v3, 10, v16
        s_lshl_b32 s65, s58, 15
        s_lshr_b32 s66, s5, 2
        s_lshl_b32 s66, s66, 8
        s_add_u32 s65, s65, s66
        v_add_u32 v16, s65, v16
        v_add_u32 v17, 0xc00, v16
        v_add_u32 v18, 0x1800, v16
        v_add_u32 v19, 0x2400, v16""")

        def issue_wo(n, sl=None):
            slot = (WSLOT[n] if sl is None else sl) * 32768
            a("s_add_u32 m0, s69, %d" % slot)
            a("s_xor_b32 s63, s68, %d\ns_lshl_b32 s63, s63, 17" % n)
            for j in range(4):
                a("buffer_load_dwordx4 v%d, %s, s63 offen offset:%d lds" % (16 + j, s(self.rC, 4), j * 1024))
            a("s_add_u32 m0, s69, %d" % (slot + 4096))
            a("s_add_u32 s63, s63, 0x4000")
            for j in range(4):
                a("buffer_load_dwordx4 v%d, %s, s63 offen offset:%d lds" % (16 + j, s(self.rC, 4), j * 1024))

        def read_wo(n, sl=None):
            ad, off = {4: (0, 0), 0: (14, 0), 1: (14, 32768), 3: (15, 32768), 2: (15, 0)}[WSLOT[n] if sl is None else sl]
            for h in range(8):
                r = 128 + 32 * n + 4 * h
                a("ds_read_b64_tr_b16 %s, v%d offset:%d" % (v(r, 2), ad, off + h * 4096))
                a("ds_read_b64_tr_b16 %s, v%d offset:%d" % (v(r + 2, 2), ad, off + h * 4096 + 2048))

        wsched = {self.opt.get("w0", 6): [0]}
        wsched.setdefault(self.opt.get("w1", 7), []).append(1)
        w2late = self.opt.get("w2late", 0)
        if not w2late:
            wsched.setdefault(7, []).append(2)
        for c in range(cq, 8):
            waitc(c)
            if c == 7:
                self.stamp()
            for n in wsched.get(c, []):
                issue_wo(n)
                groups.append("w%d" % n)
        assert len(groups) == 11 - w2late
        a.label("WL_0")
        self.wo_addr()
        self.tail_addr()
        a("s_waitcnt vmcnt(0)")
        self.stamp()
        a("s_barrier")
        if w2late:
            WSLOT[:] = [3, 4, 2, 1]
        if w2late:
            issue_wo(2)
        issue_wo(3)
        self.read_wo = read_wo
        if self.opt.get("wide"):
            for j in range(4):
                a("v_xor_b32 v%d, 0x100, v%d" % (16 + j, 16 + j))
            issue_wo(0, 1)
            for n in range(3):
                read_wo(n)
            a("s_waitcnt vmcnt(0) lgkmcnt(0)\ns_barrier")
            self.stamp()
            if self.opt["wide"] == 1:
                self.w_pqload()
            for n in range(1, 4):
                issue_wo(n, WSLOT[n - 1])
            read_wo(3)
            if self.opt["wide"] == 3:
                self.w_pqload()
                a("s_waitcnt vmcnt(4)")
            if self.opt["wide"] == 2:
                a("s_waitcnt vmcnt(0)")
        else:
            for n in range(3 - w2late):
                read_wo(n)
        a.label("WL_1")
        a("s_branch KV_TAIL")
        self.kv_tail_nst = self.nst
        self.nst = n0
        a.label("QLOADER")
        self.role = "R"
        self.reducer_setup()
        groups = gq
        for c in range(cq, 8):
            a("s_waitcnt vmcnt(%d)\ns_barrier" % (8 * (7 - c)))
        if self.opt.get("prewrite", 1):
            lab = a.newlabel("NOZ")
            a("s_cmp_gt_u32 s71, 8\ns_cbranch_scc1 " + lab)
            a("buffer_store_dwordx4 v[32:35], v21, %s, s67 offen sc1" % ws)
            a.label(lab)
        lab = a.newlabel("PC")
        a("s_getpc_b64 s[56:57]")
        a.label(lab)
        a.items.append(("i", _sym_add("s_add_u32 s56, s56, TABLE-%s" % lab, 0x8000)))
        a("s_addc_u32 s57, s57, 0\nv_lshlrev_b32 v2, 4, v1\nv_add_u32 v3, s59, v2\ns_add_u32 m0, s59, %d" % TB)
        for q in range(4):
            a("global_load_lds_dwordx4 v3, s[56:57] offset:%d" % (q * 1024))
        self.ra_inv(1, 84)
        a("ds_write_b64 v90, v[88:89]")
        a("s_waitcnt vmcnt(0) lgkmcnt(0)\ns_barrier")
        self.stamp()
        self.reducer()

    def ra_inv(self, half, t):
        self.a("""v_and_b32 v{0}, 7, v1
        v_lshlrev_b32 v{0}, 6, v{0}
        s_add_u32 s62, s60, {h}
        v_add_u32 v{0}, s62, v{0}
        v_cvt_f32_u32 v{0}, v{0}
        v_mul_f32 v{0}, {c1}, v{0}
        s_lshr_b32 s62, s3, 1
        s_and_b32 s15, s3, 1
        s_lshl2_add_u32 s14, s62, s15
        s_lshl_b32 s14, s14, 1
        v_lshrrev_b32 v{1}, 5, v1
        v_lshl_add_u32 v{1}, v{1}, 2, s14
        v_cvt_f32_u32 v{1}, v{1}
        v_bfe_u32 v{2}, v1, 3, 1
        v_cvt_f32_u32 v{2}, v{2}
        v_mul_f32 v{2}, {c2}, v{2}
        v_fma_f32 v{1}, v{1}, v{0}, v{2}
        v_lshlrev_b32 v{2}, 27, v1
        v_and_b32 v{2}, 0x80000000, v{2}
        v_or_b32 v{2}, {c3}, v{2}
        v_add_f32 v{3}, v{1}, v{2}
        v_sub_f32 v{2}, v{0}, v{2}
        v_add_f32 v{2}, v{1}, v{2}
        v_cos_f32 v{0}, v{3}
        v_sin_f32 v{3}, v{3}
        v_cos_f32 v{1}, v{2}
        v_sin_f32 v{2}, v{2}
        s_lshl_b32 s62, s62, 10
        s_lshl3_add_u32 s62, s15, s62
        s_add_u32 s62, s62, {rab}
        v_add_u32 v{6}, s62, v2
        v_cvt_pk_bf16_f32 v{4}, v{0}, -v{3}
        v_cvt_pk_bf16_f32 v{5}, v{1}, -v{2}""".format(*[t + i for i in range(7)], h=512 * half, c1=fhex(1 / 2048), c2=fhex(-0.25),
                                                      c3=fhex(0.125), rab=RAB))

    def reducer_setup(self):
        a = self.a
        a("""s_lshl3_add_u32 s60, s4, s5
        s_sub_u32 s60, s60, 16
        s_lshr_b32 s61, s60, 2
        s_and_b32 s71, s60, 3
        s_lshl2_add_u32 s71, s58, s71
        s_mul_i32 s63, s61, %d
        s_lshl_b32 s64, s71, 7
        s_add_u32 s63, s63, s64
        s_add_u32 s63, s63, 0x%x
        s_mul_i32 s67, s61, %d
        s_add_u32 s67, s67, s64
        s_add_u32 s67, s67, 0x%x
        s_add_u32 s64, s63, %d
        s_add_u32 s65, s63, %d
        s_add_u32 s66, s63, %d""" % (32 * PLINE, WS_PART, PLINE, WS_RED, 8 * PLINE, 16 * PLINE, 24 * PLINE))
        a("""v_lshrrev_b32 v2, 3, v1
        v_and_b32 v3, 7, v1
        v_lshlrev_b32 v3, 4, v3
        v_mov_b32 v22, %d
        v_mad_u32_u24 v20, v2, v22, v3
        v_mov_b32 v22, 0x%x
        v_mad_u32_u24 v21, v2, v22, v3""" % (PLINE, RED_STRIDE))
        a("""v_and_b32 v2, 1, v1
        v_lshlrev_b32 v2, 4, v2
        v_mov_b32 v3, 0x3f80
        v_lshlrev_b32 v3, v2, v3
        v_and_b32 v2, 2, v1
        v_cmp_eq_u32 vcc, 0, v2
        v_mov_b32 v24, 0
        v_mov_b32 v25, 0
        v_mov_b32 v28, 0
        v_mov_b32 v29, 0
        v_cndmask_b32 v26, 0, v3, vcc
        v_cndmask_b32 v27, v3, v25, vcc
        v_mov_b32 v32, 0xfffefffe
        v_mov_b32 v33, 0
        v_mov_b32 v34, 0
        v_mov_b32 v35, 0""")

    def reducer(self):
        a = self.a
        ws = s(self.rWS, 4)
        D, acc, vacc, o = 40, 72, 80, 36
        lab = a.newlabel("NORED")
        n0 = self.nst
        self.pad_stamps(9)
        self.nst = n0
        a("s_cmp_gt_u32 s71, 8\ns_cbranch_scc1 HELPER")
        a.label("WR_0")
        self.diag_delay("d_part")
        self.poll(lambda: [a("buffer_load_dwordx4 %s, v20, %s, s%d offen sc1" % (v(D + 4 * i, 4), ws, 63 + i)) for i in range(4)],
                  lambda: self.markcheck(D, 16, vacc), vacc)
        self.stamp()
        for i in range(4):
            for h in range(2):
                a("%s %s, %s, %s, %s" % (M16, v(acc + 4 * h, 4), v(26 - 2 * h, 4), v(D + 4 * i, 4), v(acc + 4 * h, 4) if i else "0"))
        for r in range(8):
            a("v_add_f32_dpp v%d, v%d, v%d row_ror:8 row_mask:0xf bank_mask:0xf" % (56 + r, acc + r, acc + r))
        for j in range(4):
            self.cvt(o + j, v(56 + 2 * j), v(57 + 2 * j))
        for x in self.mark(o, 32):
            a(x)
        a("buffer_store_dwordx4 %s, v21, %s, s67 offen sc1" % (v(o, 4), ws))
        a.label("WR_1")
        self.stamp()
        self.pad_stamps(9)
        a("s_branch HELPER")

    def lds_reset(self):
        self.lq_issued = 0
        self.lq_done = 0

    def lds(self, line):
        self.a(line)
        self.lq_issued += 1
        return self.lq_issued

    def lds_wait(self, seq):
        if seq > self.lq_done:
            n = min(self.lq_issued - seq, 15)
            self.a("s_waitcnt lgkmcnt(%d)" % n)
            self.lq_done = self.lq_issued - n

    @staticmethod
    def cost(line):
        m = line.split()[0]
        if m.startswith(("v_exp", "v_rcp", "v_sin", "v_cos")):
            return 8
        return 4

    def run_mfmas(self, mf, frags, pool, fillers, budget=24, maxread=2, maxout=14, hooks=None):
        a = self.a
        order = []
        last = {}
        for j, (_, ids) in enumerate(mf):
            for i in ids:
                if i not in last:
                    order.append(i)
                last[i] = j
        pool = list(pool)
        reg, seq = {}, {}
        rp = [0, 0]
        q = []

        def one_read():
            i = order[rp[0]]
            reads, pre = frags[i]
            if rp[1] == 0:
                if not pool:
                    return False
                if pre:
                    pre()
                reg[i] = pool.pop(0)
            sq = self.lds(reads[rp[1]].format(r=v(reg[i], 4), lo=v(reg[i], 2), hi=v(reg[i] + 2, 2)))
            rp[1] += 1
            if rp[1] == len(reads):
                seq[i] = sq
                rp[0] += 1
                rp[1] = 0
            return True

        while rp[0] < len(order) and self.lq_issued - self.lq_done < maxout - 2 and pool and not (rp[0] and frags[order[rp[0]]][1]):
            one_read()
        for j, (fmt, ids) in enumerate(mf):
            for i in ids:
                while i not in seq:
                    assert one_read()
            if ids:
                self.lds_wait(max(seq[i] for i in ids))
            a(fmt.format(*[v(reg[i], 4) for i in ids]))
            for i in ids:
                if last[i] == j:
                    pool.append(reg[i])
            if hooks and j in hooks:
                hooks[j]()
            b = budget
            k = 0
            while k < maxread and rp[0] < len(order) and self.lq_issued - self.lq_done < maxout:
                gate = frags[order[rp[0]]]
                if rp[1] == 0 and len(gate) > 2 and gate[2]() is False:
                    break
                if not one_read():
                    break
                k += 1
                b -= 4
            q += fillers.get(j, [])
            while q and b >= self.cost(q[0]):
                x = q.pop(0)
                b -= self.cost(x)
                self.emit_filler(x)
            self.fq = q
        return q

    def emit_filler(self, x):
        if x.startswith("ds_"):
            self.last_fill_lds = self.lds(x)
        elif x.startswith("WAITLDS"):
            self.lds_wait(self.last_fill_lds - int(x.split()[1]))
        else:
            self.a(x)

    def gemm_loop(self, acc, pool, ax, aw, xfirst, fill, Z, hooks=None):
        a = self.a
        frags, mf = {}, []
        seen = set()

        def fx(n, mb, tag):
            c, ks = n >> 2, n & 3
            slot = c % 5
            hi, so = slot >> 1, (slot & 1) * 32768
            pre = None
            if ("x", n, mb, tag) in frags:
                return ("x", n, mb, tag)
            if c not in seen:
                seen.add(c)
                pre = (lambda: a("s_barrier")) if c else None
            frags[("x", n, mb, tag)] = (["ds_read_b128 {r}, v%d offset:%d" % (ax[hi][ks], so + 4096 * mb)], pre)
            return ("x", n, mb, tag)

        def fw(n, nb):
            c, ks = n >> 2, n & 3
            slot = c % 5
            hi, so = slot >> 1, (slot & 1) * 32768 + 16384 + ks * 4096
            frags[("w", n, nb)] = (["ds_read_b64_tr_b16 {lo}, v%d offset:%d" % (aw[hi][nb], so),
                                    "ds_read_b64_tr_b16 {hi}, v%d offset:%d" % (aw[hi][nb], so + 1024)], None)
            return ("w", n, nb)

        def add(n, nbs, tag):
            X = [fx(n, 0, tag), fx(n, 1, tag)]
            for nb in nbs:
                W = fw(n, nb)
                for mb in range(2):
                    d = v(acc[mb][nb], 16)
                    mf.append(("v_mfma_f32_32x32x16_bf16 %s, %s, %s" % (d, "{0}, {1}" if xfirst else "{1}, {0}", d if n else "0"), [X[mb], W]))

        for n in range(32 - Z):
            add(n, (0, 1), 0)
        for n in range(32 - Z, 32):
            add(n, (0,), 0)
        j0 = len(mf)
        for n in range(32 - Z, 32):
            add(n, (1,), 0 if self.opt.get("keepx", 1) else 1)
        a("s_barrier")
        self.stamp()
        self.lds_reset()
        return self.run_mfmas(mf, frags, pool, {j0 + 1: fill}, hooks=hooks)

    def phi(self, src, dst, tmp, n):
        L = []
        for g in range(0, n, 8):
            for j in range(0, 8, 2):
                L.append("v_pk_mul_f32 %s, %s, s[56:57]" % (v(tmp + j, 2), v(src + g + j, 2)))
            for j in range(8):
                L.append("v_exp_f32_e64 v%d, v%d clamp" % (tmp + j, tmp + j))
                L.append("v_max_f32 v%d, s58, v%d" % (src + g + j, src + g + j))
            for j in range(0, 8, 2):
                L.append("v_pk_add_f32 %s, %s, %s" % (v(tmp + j, 2), v(tmp + j, 2), v(src + g + j, 2)))
            for j in range(0, 8, 2):
                L.append("v_cvt_pk_bf16_f32 v%d, v%d, v%d" % (dst + (g + j) // 2, tmp + j, tmp + j + 1))
        return L

    def compute(self):
        a = self.a
        ws = s(self.rWS, 4)
        a.label("COMPUTE")
        self.role = "K"
        if self.opt.get("walk", 0) & 1:
            a("""s_mov_b64 exec, 0
            s_cmp_ge_u32 s5, 16
            s_cbranch_scc1 WKQ
            s_cmp_eq_u32 s3, 0
            s_cbranch_scc1 WKA0
            s_cmp_eq_u32 s3, 1
            s_cbranch_scc1 WKA1
            s_cmp_eq_u32 s3, 2
            s_cbranch_scc1 WKA2
            s_branch WKL0""")
            a.label("WKQ")
            a("""s_cmp_eq_u32 s3, 0
            s_cbranch_scc1 WKQ0
            s_cmp_eq_u32 s3, 1
            s_cbranch_scc1 WKQ1
            s_cmp_eq_u32 s3, 2
            s_cbranch_scc1 WKR0
            s_branch WKC0""" if self.opt.get("walk", 0) & 2 else "s_cmp_eq_u32 s3, 0\ns_cbranch_scc1 WKQ0\ns_cmp_eq_u32 s3, 1\ns_cbranch_scc1 WKQ1\ns_branch WKR0")
            a.label("WRET_A")
            a("s_mov_b64 exec, -1\ns_waitcnt lgkmcnt(0)\ns_nop 15")
        ax = [[240, 241, 242, 243], [244, 245, 246, 247], [252, 253, 254, 255]]
        aw = [[248, 249], [250, 251], [146, 147]]
        a("""s_lshr_b32 s60, s4, 1
        s_and_b32 s68, s5, 3
        s_lshl2_add_u32 s60, s60, s68
        s_and_b32 s64, s4, 1
        s_bfe_u32 s65, s5, 0x20002
        s_lshl2_add_u32 s61, s64, s65
        s_lshl1_add_u32 s66, s64, s65
        s_lshr_b32 s63, s3, 1
        s_and_b32 s64, s3, 1
        s_lshr_b32 s67, s5, 4
        s_lshl_b32 s69, s64, s67
        s_movk_i32 s70, 128
        s_lshr_b32 s70, s70, s67
        s_cmp_ge_u32 s5, 16
        s_cselect_b32 s61, s66, s61
        s_mov_b32 s10, 0xffff0000
        s_mov_b32 s11, 0xffff0000""")
        a(self.KARG)
        a("""v_and_b32 v2, 31, v1
        v_lshlrev_b32 v2, 7, v2
        s_lshl_b32 s65, s63, 13
        v_add_u32 v2, s65, v2
        v_lshrrev_b32 v3, 5, v1
        v_bfe_u32 v16, v1, 1, 3
        v_xor_b32 v16, v16, v3
        v_lshl_add_u32 v240, v16, 4, v2
        v_xor_b32 v241, 32, v240
        v_xor_b32 v242, 64, v240
        v_xor_b32 v243, 96, v240""")
        a("""v_bfe_u32 v16, v1, 2, 2
        v_lshl_add_u32 v17, v3, 3, v16
        v_xor_b32 v16, s69, v16
        v_lshlrev_b32 v16, 6, v16
        v_lshl_add_u32 v16, v17, 8, v16
        v_bfe_u32 v17, v1, 4, 1
        v_lshl_add_u32 v16, v17, 5, v16
        v_and_b32 v17, 3, v1
        v_lshl_add_u32 v248, v17, 3, v16
        v_xor_b32 v249, s70, v248""")
        for k in range(4):
            a("v_add_u32 v%d, 0x10000, v%d" % (244 + k, 240 + k))
            a("v_add_u32 v%d, 0x20000, v%d" % (252 + k, 240 + k))
        a("v_add_u32 v250, 0x10000, v248\nv_add_u32 v251, 0x10000, v249\nv_add_u32 v146, 0x20000, v248\nv_add_u32 v147, 0x20000, v249")
        a("s_waitcnt lgkmcnt(0)")
        a("s_load_dwordx2 s[8:9], s[32:33], %d" % WS_EP)
        self.srd(self.rWS, self.pWS, WS_SIZE)
        self.srd(self.rOUT, self.pOUT, 2048 * 2048)
        a("s_mov_b32 s56, %s\ns_mov_b32 s57, %s\ns_mov_b32 s58, %s" % (fhex(1.4426950408889634), fhex(1.4426950408889634), fhex(1e-6)))
        a("v_lshlrev_b32 v2, 4, v1")
        acc = [[64, 96], [80, 112]]
        pool = list(range(16, 64, 4))
        Z = self.opt.get("z", 4)
        CN = 252
        a("s_cmp_ge_u32 s5, 16\ns_cbranch_scc1 QCOMPUTE")
        n0 = self.nst
        a("""s_lshl1_add_u32 s59, s61, s64
        s_lshl_b32 s59, s59, 5
        s_lshl1_add_u32 s66, s60, s63
        s_add_u32 s59, s59, s66
        s_mul_i32 s59, s59, %d
        s_add_u32 s59, s59, 0x%x""" % (PLINE, WS_PART))
        P0, P1, PZ, ONES, zaddr = 128, 132, 136, 140, 144
        pk, vv, tmp, D, D2 = 180, 196, 212, 148, 164
        for j in range(4):
            a("v_mov_b32 v%d, 0x3f803f80" % (ONES + j))

        def prewrite():
            a("buffer_store_dwordx4 %s, v2, %s, s59 offen sc1" % (v(ONES, 4), ws))
            a("s_mov_b64 exec, 0xff")
            a("buffer_store_dwordx4 %s, v2, %s, s59 offen offset:1024 sc1" % (v(ONES, 4), ws))
            a("s_mov_b64 exec, -1")

        pw = self.opt.get("prewrite", 1)
        if pw == 1:
            prewrite()
        a("""v_lshrrev_b32 v3, 4, v1
        v_and_b32 v145, 1, v1
        v_lshl_add_u32 v4, v3, 1, v145
        v_lshlrev_b32 v%d, 4, v4
        v_mov_b32 v145, 0xfffefffe
        s_mov_b32 s60, 0x00030003
        s_mov_b32 s61, 0x00030003""" % zaddr)
        self.tail_addr()
        a("s_waitcnt lgkmcnt(0)")
        self.tags()
        K0, K1, V0, V1 = acc[0][0], acc[1][0], acc[0][1], acc[1][1]
        fill = []
        for i, src in enumerate((K0, K0 + 8, K1, K1 + 8)):
            fill += self.phi(src, pk + 4 * i, tmp, 8)
        hooks = {100: lambda: a("s_waitcnt vmcnt(0)")}
        if pw > 1:
            hooks[pw] = prewrite
        big = list(range(148, 180, 4)) + list(range(220, 240, 4)) if self.opt.get("keepx", 1) else []
        hooks[128 - 2 * Z] = lambda: a.label("WA_0")
        rest = self.gemm_loop(acc, pool + big, ax, aw, True, fill, Z, hooks)
        self.stamp()
        ndone = 4 - (len(rest) + 27) // 28
        for i in range(ndone):
            a("%s %s, %s, %s, %s" % (M32, v(D2, 16), v(pk + 4 * i, 4), v(ONES, 4), v(D2, 16) if i else "0"))
            for x in rest[:6]:
                a(x)
            rest = rest[6:]
        vsrc = (V0, V0 + 8, V1, V1 + 8)
        vcvt = lambda i: [a("v_cvt_pk_bf16_f32 v%d, v%d, v%d" % (vv + 4 * i + j, vsrc[i] + 2 * j, vsrc[i] + 2 * j + 1)) for j in range(4)]
        mD = lambda i: a("%s %s, %s, %s, %s" % (M32, v(D, 16), v(pk + 4 * i, 4), v(vv + 4 * i, 4), v(D, 16) if i else "0"))
        mZ = lambda i: a("%s %s, %s, %s, %s" % (M32, v(D2, 16), v(pk + 4 * i, 4), v(ONES, 4), v(D2, 16) if i else "0"))
        nd = 0
        for i in range(ndone, 4):
            n = len(rest) - 28 * (3 - i)
            grp, rest = rest[:n], rest[n:]
            for k, x in enumerate(grp):
                a(x)
                if k == 8 and nd < i:
                    vcvt(nd)
                if k == 12 and nd < i:
                    mD(nd)
                    nd += 1
            vcvt(nd)
            mZ(i)
            mD(nd)
            nd += 1
        while nd < 4:
            vcvt(nd)
            mD(nd)
            nd += 1
        for src, p in ((D2, PZ), (D, P0)):
            for j in range(4):
                self.cvt(p + j, v(src + 2 * j), v(src + 2 * j + 1))
            a("s_mov_b64 exec, s[10:11]")
            for j in range(4):
                self.cvt(p + j, v(src + 8 + 2 * j), v(src + 9 + 2 * j))
            a("s_mov_b64 exec, %s" % ("s[60:61]" if p == PZ else "-1"))
            for x in self.mark(p, 145):
                a(x)
            if p == PZ:
                a("buffer_store_dwordx4 %s, v%d, %s, s59 offen offset:1024 sc1" % (v(PZ, 4), zaddr, ws))
                a("s_mov_b64 exec, -1")
            else:
                a("buffer_store_dwordx4 %s, v2, %s, s59 offen sc1" % (v(p, 4), ws))
        self.stamp()
        a("s_barrier")
        if self.opt.get("wide"):
            self.wo_addr()
            if self.opt["wide"] == 1:
                a("s_waitcnt vmcnt(0)")
            a("s_barrier")
            self.stamp()
            if self.opt["wide"] == 1:
                self.w_pqload()
            self.read_wo(0, 1)
            assert self.nst == self.kv_tail_nst
            self.wide_tail()
        else:
            assert self.nst == self.kv_tail_nst
            self.kv_tail()
        a.label("WA_1")
        a("s_endpgm")
        self.nst = n0
        a.label("QCOMPUTE")
        self.role = "Q"
        a("""s_lshl1_add_u32 s66, s60, s63
        s_lshl2_add_u32 s66, s66, s61
        s_lshl1_add_u32 s66, s66, s64
        s_lshl_b32 s65, s66, 13
        s_add_u32 s65, s65, 0x%x
        s_add_u32 s67, s65, 0x1000
        v_mov_b32 v4, 0xfffefffe
        s_lshl3_add_u32 s60, s4, s5
        s_sub_u32 s60, s60, 16""" % WS_PQ)
        self.ra_inv(1, 8)
        a("s_waitcnt lgkmcnt(0)")
        self.tags()

        def qpost(nb):
            L = []
            for mb in range(2):
                for h in range(2):
                    d = 128 + 16 * nb + 8 * mb + 4 * h
                    L += self.phi(acc[mb][nb] + 8 * h, d, 212, 8) + self.mark(d, 4)
                    L.append("buffer_store_dwordx4 %s, v2, %s, s%d offen offset:%d sc1" % (v(d, 4), ws, 67 if nb else 65, (h * 2 + mb) * 1024))
            return L

        big = list(range(160, 212, 4)) if self.opt.get("keepx", 1) else []
        rest = self.gemm_loop(acc, pool + big, ax, aw, False, qpost(0), self.opt.get("zq", 4), {100: lambda: a("s_waitcnt vmcnt(0)"), 128 - 2 * self.opt.get("zq", 4): lambda: a.label("WQ_0")})
        self.stamp()
        a("ds_write_b64 v14, v[12:13]")
        for x in rest + qpost(1):
            a(x)
        a.label("WQ_1")
        a("s_waitcnt vmcnt(%d) lgkmcnt(0)\ns_barrier" % self.opt.get("qdr", 0))
        self.stamp()
        self.pad_stamps(9)
        a.label("HELPER")
        a("s_lshl_b32 s62, s60, 7\ns_add_u32 s62, s62, 0x%x\ns_movk_i32 s34, 512" % WS_GO)
        self.flip_marks()
        a("s_branch B3_ENTRY")

    def wo_addr(self):
        a = self.a
        a("s_and_b32 s63, s3, 3")
        a("""v_bfe_u32 v14, v1, 2, 2
        v_lshrrev_b32 v15, 5, v1
        v_lshl_add_u32 v15, v15, 2, v14
        v_xor_b32 v14, s63, v14
        v_lshlrev_b32 v14, 6, v14
        v_lshl_add_u32 v14, v15, 8, v14
        v_and_b32 v15, 1, v1
        v_lshl_add_u32 v14, v15, 5, v14
        v_bfe_u32 v15, v1, 4, 1
        v_lshl_add_u32 v14, v15, 4, v14
        v_bfe_u32 v15, v1, 1, 1
        v_lshl_add_u32 v14, v15, 3, v14
        v_add_u32 v15, 0x10000, v14
        v_add_u32 v0, 0x20000, v14""")

    def tail_addr(self):
        a = self.a
        a("""v_lshlrev_b32 v2, 4, v1
        s_and_b32 s65, s5, 3
        s_lshl2_add_u32 s65, s4, s65
        s_lshl3_add_u32 s66, s65, s3
        s_lshl_b32 s67, s66, 13
        s_add_u32 s67, s67, 0x%x
        s_mul_i32 s70, s3, %d
        s_mul_i32 s71, s4, 0x%x
        s_add_u32 s70, s70, s71
        s_add_u32 s70, s70, 0x%x
        s_add_u32 s71, s70, %d
        v_lshrrev_b32 v8, 4, v1
        v_xor_b32 v8, 1, v8
        v_and_b32 v9, 1, v1
        v_lshl_add_u32 v8, v8, 1, v9
        v_lshlrev_b32 v8, 4, v8
        s_lshl_b32 s63, s3, 12
        v_add_u32 v13, s63, v2
        s_mov_b32 s10, 0xffff0000
        s_mov_b32 s11, 0xffff0000""" % (WS_PQ, 2 * PLINE, RED_STRIDE, WS_RED, PLINE))
        if self.opt.get("wide"):
            a("s_bfe_u32 s63, s5, 0x10002\ns_lshl_b32 s63, s63, 10\ns_add_u32 s67, s67, s63\ns_add_u32 s71, s67, 0x1000")

    def w_pqload(self):
        for i in range(4):
            self.a("buffer_load_dwordx4 %s, v2, %s, s%d offen offset:%d sc1" % (v(32 + 4 * i, 4), s(self.rWS, 4), 71 if i >= 2 else 67, (i & 1) * 2048))

    def wide_tail(self):
        a = self.a
        ws = s(self.rWS, 4)
        a.label("KV_TAIL")
        WO, PQ, RD, OP, AC = 128, 32, 48, 16, 64
        a("""s_mov_b32 s58, %s
        s_lshl_b32 s63, s5, 13
        s_and_b32 s64, s63, 0x6000
        s_add_u32 s64, s64, 0x8000
        v_add_u32 v4, s64, v2
        v_xor_b32 v5, 0x2000, v4
        v_xor_b32 v6, 0x4000, v4
        v_xor_b32 v7, 0x6000, v4
        s_lshl_b32 s63, s3, 11
        s_add_u32 s63, s63, 0x10000
        v_and_b32 v10, 31, v1
        v_bfe_u32 v11, v1, 1, 2
        v_lshrrev_b32 v9, 5, v1
        v_lshlrev_b32 v9, 1, v9
        v_xor_b32 v11, v11, v9
        v_lshlrev_b32 v11, 4, v11
        v_lshl_add_u32 v10, v10, 6, v11
        v_add_u32 v10, s63, v10
        v_bfe_u32 v9, v1, 3, 2
        v_lshlrev_b32 v9, 4, v9
        v_xor_b32 v9, v9, v2
        v_add_u32 v9, s63, v9
        v_lshrrev_b32 v3, 2, v1
        v_and_b32 v11, 3, v1
        v_lshlrev_b32 v11, 4, v11
        v_lshl_add_u32 v3, v3, 11, v11
        v_xor_b32 v11, 16, v10
        s_lshr_b32 s63, s5, 2
        s_and_b32 s64, s63, 1
        s_lshl1_add_u32 s65, s65, s64
        s_lshl_b32 s65, s65, 16
        s_lshl_b32 s63, s63, 2
        s_xor_b32 s63, s63, s3
        s_xor_b32 s63, s63, 4
        s_lshl_b32 s63, s63, 6
        s_add_u32 s64, s65, s63
        s_add_u32 s65, s64, 0x8000""" % fhex(1e-6))
        wd = self.opt["wide"]
        if wd == 1:
            self.poll(self.w_pqload, lambda: self.markcheck(PQ, 16, 12), 12, first_issued=True)
        a("s_waitcnt lgkmcnt(0)\ns_barrier")
        self.stamp()
        if wd == 2:
            self.w_pqload()
        if wd == 3:
            lab = a.newlabel("NOPQ")
            a("s_cmp_ge_u32 s3, 4\ns_cbranch_scc1 " + lab)
            self.w_pqload()
            a.label(lab)

        def issue():
            for pi in range(2):
                a("buffer_load_dwordx4 %s, v2, %s, s70 offen offset:%d sc1" % (v(RD + 8 * pi, 4), ws, pi * PLINE))
                a("buffer_load_dwordx4 %s, v8, %s, s70 offen offset:%d sc1" % (v(RD + 8 * pi + 4, 4), ws, pi * PLINE + 1024))

        self.diag_delay("d_red")
        issue()
        lab = a.newlabel("NOWO")
        a("s_cmp_ge_u32 s3, 4\ns_cbranch_scc1 " + lab)
        for n, sl in ((1, 3), (2, 4), (3, 0)):
            self.read_wo(n, sl)
        a.label(lab)
        if wd != 1:
            self.poll(self.w_pqload, lambda: self.markcheck(PQ, 16, 12), 12, first_issued=True)
        self.poll(issue, lambda: self.markcheck(RD, 16, 12), 12, first_issued=True)
        self.stamp()

        def sel(i):
            b = RD + 8 * (i >> 1)
            for j in range(4):
                x, y = (b + j, b + 4 + j) if i & 1 == 0 else (b + 4 + j, b + j)
                a("v_cndmask_b32 v%d, v%d, v%d, s[10:11]" % (OP + 4 * i + j, x, y))

        mf = lambda i: a("%s %s, %s, %s, 0" % (M32, v(AC + 16 * i, 16), v(OP + 4 * i, 4), v(PQ + 4 * i, 4)))
        sel(0)
        sel(1)
        mf(0)
        sel(2)
        mf(1)
        sel(3)
        mf(2)
        for i in range(4):
            d = AC + 16 * i
            num, den = (d, d + 8) if i & 1 == 0 else (d + 8, d)
            if i == 0:
                mf(3)
            a("v_add_f32 v%d, s58, v%d\nv_rcp_f32 v%d, v%d" % (den, den, den, den))
            for j in range(0, 8, 2):
                a("v_pk_mul_f32 %s, %s, %s op_sel_hi:[1,0]" % (v(num + j, 2), v(num + j, 2), v(den, 2)))
            for j in range(4):
                self.cvt(den + 4 + j, v(num + 2 * j), v(num + 2 * j + 1))
            a("ds_write_b128 v13, %s offset:%d" % (v(den + 4, 4), 32768 + i * 1024))
        a("s_waitcnt lgkmcnt(0)\ns_barrier")
        self.stamp()
        frags, mfl = {}, []
        d = v(AC, 16)
        for h in range(32):
            frags[h] = (["ds_read_b128 {r}, v%d offset:%d" % (4 + (h >> 3), (h & 7) * 1024)], None)
            mfl.append(("%s %s, %s, {0}, %s" % (M32, d, v(WO + 4 * h, 4), d if h else "0"), [h]))
        self.lds_reset()
        self.run_mfmas(mfl, frags, list(range(16, 48, 4)), {}, maxread=1)
        fl = self.opt.get("outflag", "sc1")
        t = AC + 16
        for j in range(8):
            self.cvt(t + j, v(AC + 2 * j), v(AC + 2 * j + 1))
        a("ds_write_b128 v10, %s\nds_write_b128 v11, %s" % (v(t, 4), v(t + 4, 4)))
        a("ds_read_b128 %s, v9\nds_read_b128 %s, v9 offset:1024" % (v(t + 8, 4), v(t + 12, 4)))
        for k in range(2):
            a("s_waitcnt lgkmcnt(%d)" % (1 - k))
            a("buffer_store_dwordx4 %s, v3, %s, s%d offen %s" % (v(t + 8 + 4 * k, 4), s(self.rOUT, 4), 64 + k, fl))
        lab = a.newlabel("NOEP")
        a("s_or_b32 s56, s4, s3\ns_or_b32 s56, s56, s5\ns_cbranch_scc1 " + lab)
        self.poll(lambda: a("buffer_load_dwordx2 v[6:7], off, %s, 0 offset:%d sc1" % (ws, WS_NOTE)),
                  lambda: a("v_xor_b32 v12, s6, v6\nv_bitop3_b32 v12, v12, v7, s7 bitop3:0xf6"), 12)
        a("v_mov_b32 v6, s8\nv_mov_b32 v7, s9\ns_mov_b64 exec, 1")
        a("buffer_store_dwordx2 v[6:7], off, %s, 0 offset:%d" % (ws, WS_EP))
        a("s_mov_b64 exec, -1")
        a.label(lab)
        self.end()

    def kv_tail(self):
        a = self.a
        ws = s(self.rWS, 4)
        a.label("KV_TAIL")
        WO, PQ, RD, OP, AC = 128, 16, 48, 80, 96
        a("s_waitcnt vmcnt(0)")
        a("s_add_u32 s68, s67, 0x1000\ns_mov_b32 s58, %s" % fhex(1e-6))
        pqload = lambda: [a("buffer_load_dwordx4 %s, v2, %s, s%d offen offset:%d sc1" % (v(PQ + 4 * i, 4), ws, 68 if i >= 4 else 67, (i & 3) * 1024)) for i in range(8)]
        self.diag_delay("d_pq")
        pql = self.opt.get("pqlate", 1)
        if pql != 1:
            pqload()
        if pql == 2:
            self.stamp()
            self.poll(pqload, lambda: self.markcheck(PQ, 32, 12), 12, first_issued=True)
        a("s_waitcnt lgkmcnt(0)\ns_barrier")
        self.stamp()
        if pql == 1:
            pqload()
        lab = a.newlabel("NOWO")
        a("s_cmp_lt_u32 s3, 4\ns_cbranch_scc1 " + lab)
        if self.opt.get("w2late", 0):
            self.read_wo(2)
        self.read_wo(3)
        a.label(lab)
        if pql != 2:
            self.poll(pqload, lambda: self.markcheck(PQ, 32, 12), 12, first_issued=True)
            self.stamp()

        def issue():
            for pi in range(2):
                a("buffer_load_dwordx4 %s, v2, %s, s70 offen offset:%d sc1" % (v(RD + 8 * pi, 4), ws, pi * PLINE))
                a("buffer_load_dwordx4 %s, v8, %s, s70 offen offset:%d sc1" % (v(RD + 8 * pi + 4, 4), ws, pi * PLINE + 1024))

        a("""s_lshl_b32 s63, s5, 13
        s_and_b32 s64, s63, 0x6000
        s_add_u32 s64, s64, OBASE
        v_add_u32 v13, OBASE, v13
        v_add_u32 v4, s64, v2
        v_xor_b32 v5, 0x2000, v4
        v_xor_b32 v6, 0x4000, v4
        v_xor_b32 v7, 0x6000, v4
        s_lshl_b32 s69, s3, 12
        s_add_u32 s69, s69, STG
        v_and_b32 v10, 31, v1
        v_bfe_u32 v14, v1, 1, 2
        v_lshrrev_b32 v15, 5, v1
        v_lshlrev_b32 v15, 1, v15
        v_xor_b32 v14, v14, v15
        v_lshlrev_b32 v14, 4, v14
        v_lshl_add_u32 v10, v10, 6, v14
        v_add_u32 v10, s69, v10
        v_xor_b32 v14, 16, v10
        v_bfe_u32 v15, v1, 3, 2
        v_lshlrev_b32 v15, 4, v15
        v_xor_b32 v15, v15, v2
        v_add_u32 v15, s69, v15
        v_lshrrev_b32 v3, 2, v1
        v_and_b32 v11, 3, v1
        v_lshlrev_b32 v11, 4, v11
        v_lshl_add_u32 v3, v3, 11, v11
        s_lshl_b32 s65, s65, 17
        s_lshr_b32 s69, s5, 2
        s_and_b32 s64, s3, 3
        s_lshl2_add_u32 s69, s69, s64
        s_lshl_b32 s69, s69, 6
        s_add_u32 s64, s65, s69
        s_add_u32 s65, s64, 0x8000
        s_add_u32 s66, s64, 0x10000
        s_add_u32 s67, s64, 0x18000""".replace("OBASE", "0x18000" if self.opt.get("w2late", 0) else "0").replace("STG", "0" if self.opt.get("w2late", 0) else "0x14000"))
        if self.opt.get("rbar"):
            a("s_barrier")
        self.diag_delay("d_red")
        self.poll(issue, lambda: self.markcheck(RD, 16, 12), 12)
        self.stamp()
        accs = [AC, AC + 16, RD, RD + 16]

        def sel(i):
            pi, h = i >> 1, i & 1
            b = RD + 8 * pi
            for j in range(4):
                x, y = (b + j, b + 4 + j) if h == 0 else (b + 4 + j, b + j)
                a("v_cndmask_b32 v%d, v%d, v%d, s[10:11]" % (OP + 4 * i + j, x, y))

        def mf(i, mb, d):
            return "%s %s, %s, %s, 0" % (M32, v(d, 16), v(OP + 4 * i, 4), v(PQ + 4 * (i * 2 + mb), 4))

        def post(i, mb, d):
            pi, h = i >> 1, i & 1
            num, den = (d, d + 8) if h == 0 else (d + 8, d)
            L = ["v_add_f32 v%d, s58, v%d" % (den, den), "v_rcp_f32 v%d, v%d" % (den, den)]
            for j in range(0, 8, 2):
                L.append("v_pk_mul_f32 %s, %s, %s op_sel_hi:[1,0]" % (v(num + j, 2), v(num + j, 2), v(den, 2)))
            for j in range(4):
                L.append("v_cvt_pk_bf16_f32 v%d, v%d, v%d" % (den + 4 + j, num + 2 * j, num + 2 * j + 1))
            L.append("ds_write_b128 v13, %s offset:%d" % (v(den + 4, 4), mb * 32768 + i * 1024))
            return L

        sel(0)
        sel(1)
        a(mf(0, 0, accs[0]))
        sel(2)
        a(mf(1, 0, accs[1]))
        sel(3)
        a(mf(2, 0, accs[2]))
        for i in range(4):
            if i == 0:
                a(mf(3, 0, accs[3]))
            for x in post(i, 0, accs[i]):
                a(x)
        acc1 = [RD, RD + 16, AC + 16, RD]
        a(mf(0, 1, acc1[0]))
        a(mf(1, 1, acc1[1]))
        a("s_waitcnt lgkmcnt(0)\ns_barrier")
        self.stamp()
        a("s_cmp_ge_u32 s3, 4\ns_cbranch_scc1 OUT_GEMM")
        n0 = self.nst
        a(mf(2, 1, acc1[2]))
        a(mf(3, 1, AC))
        for i in range(4):
            for x in post(i, 1, acc1[i] if i < 3 else AC):
                a(x)
        a("s_waitcnt lgkmcnt(0)\ns_barrier")
        lab = a.newlabel("NOEP")
        a("s_or_b32 s56, s4, s3\ns_or_b32 s56, s56, s5\ns_cbranch_scc1 " + lab)
        self.poll(lambda: a("buffer_load_dwordx2 v[6:7], off, %s, 0 offset:%d sc1" % (ws, WS_NOTE)),
                  lambda: a("v_xor_b32 v12, s6, v6\nv_bitop3_b32 v12, v12, v7, s7 bitop3:0xf6"), 12)
        a("v_mov_b32 v6, s8\nv_mov_b32 v7, s9\ns_mov_b64 exec, 1")
        a("buffer_store_dwordx2 v[6:7], off, %s, 0 offset:%d" % (ws, WS_EP))
        a("s_mov_b64 exec, -1")
        a.label(lab)
        self.end()
        self.nst = n0
        a.label("OUT_GEMM")
        fl = self.opt.get("outflag", "sc1")
        out = s(self.rOUT, 4)
        frags, mfl = {}, []
        pool = [PQ + 8 * i for i in range(4)] + [PQ + 4, PQ + 12]

        def b11b():
            assert not self.fq
            self.lds_wait(self.last_fill_lds)
            a("s_barrier")

        AC2 = OP
        for mb in range(2):
            d = v(AC2 if mb else AC, 16)
            for h in range(32):
                frags[(mb, h)] = (["ds_read_b128 {r}, v%d offset:%d" % (4 + (h >> 3), mb * 32768 + (h & 7) * 1024)],
                                  b11b if (mb, h) == (1, 0) else None)
                mfl.append(("%s %s, %s, {0}, %s" % (M32, d, v(WO + 4 * h, 4), d if h else "0"), [(mb, h)]))
                if mb == 0 and h == 0:
                    mfl.append((mf(2, 1, acc1[2]), []))
                if mb == 0 and h == 4:
                    mfl.append((mf(3, 1, acc1[3]), []))

        def epi(mb, d, t):
            L = ["v_cvt_pk_bf16_f32 v%d, v%d, v%d" % (t + j, d + 2 * j, d + 2 * j + 1) for j in range(8)]
            L += ["ds_write_b128 v10, %s offset:%d" % (v(t, 4), mb * 2048), "ds_write_b128 v14, %s offset:%d" % (v(t + 4, 4), mb * 2048),
                  "ds_read_b128 %s, v15 offset:%d" % (v(t + 8, 4), mb * 2048), "ds_read_b128 %s, v15 offset:%d" % (v(t + 12, 4), mb * 2048 + 1024)]
            L2 = ["WAITLDS 1", "buffer_store_dwordx4 %s, v3, %s, s%d offen %s" % (v(t + 8, 4), out, 64 + 2 * mb, fl),
                  "WAITLDS 0", "buffer_store_dwordx4 %s, v3, %s, s%d offen %s" % (v(t + 12, 4), out, 65 + 2 * mb, fl)]
            return L, L2

        e0, e0b = epi(0, AC, RD)
        fillers = {0: post(0, 1, acc1[0]) + post(1, 1, acc1[1]), 6: post(2, 1, acc1[2]), 9: post(3, 1, acc1[3]), 36: e0, 46: e0b}
        self.lds_reset()
        rest = self.run_mfmas(mfl, frags, pool, fillers, maxread=1)
        assert not rest
        e1, e1b = epi(1, AC2, RD + 16)
        for x in e1 + e1b:
            self.emit_filler(x)
        self.end()

    def role_b(self):
        a = self.a
        a.label("ROLE_B")
        self.role = "B"
        ws = s(self.rWS, 4)
        XW, SW, XW3 = 0, 3, 1
        if self.opt.get("walk", 0) & 2:
            a("s_mov_b64 exec, 0")
            for w in range(1, 7):
                a("s_cmp_eq_u32 s3, %d\ns_cbranch_scc1 WKB%d" % (w, w - 1))
            a("s_cmp_eq_u32 s3, 7\ns_cbranch_scc1 WKC0")
            a.label("WRET_C")
            a("s_cmp_lt_u32 s5, 24\ns_cbranch_scc1 WRET_A" if self.opt.get("walk", 0) & 1 else "s_nop 0")
            a.label("WRET_B")
            a("s_mov_b64 exec, -1\ns_waitcnt lgkmcnt(0)\ns_nop 15")
        a(self.KARG)
        a("s_waitcnt lgkmcnt(0)")
        a("s_load_dwordx2 s[8:9], s[32:33], %d" % WS_EP)
        self.srd(self.rWS, self.pWS, WS_SIZE)
        a("""v_lshrrev_b32 v4, 5, v1
        v_and_b32 v5, 31, v1
        v_lshlrev_b32 v6, 4, v5
        v_lshl_add_u32 v3, s3, 3, v4
        v_xor_b32 v3, s60, v3
        v_lshl_add_u32 v3, v3, 9, v6
        v_lshl_add_u32 v11, v4, 3, s3
        v_xor_b32 v8, s60, v11
        v_lshl_add_u32 v11, v11, 15, v6
        v_lshl_add_u32 v11, v8, 9, v11
        s_lshl_b32 s66, s60, 15
        s_add_u32 s66, s66, 0x%x
        s_mov_b32 s13, 0x%x
        v_mov_b32 v14, 0xfffefffe""" % (WS_X1, WS_X1))
        a("""s_lshl_b32 s67, s4, 10
        s_add_u32 s67, s67, 0x%x
        v_and_b32 v12, 15, v1
        v_lshrrev_b32 v13, 4, v1
        s_xor_b32 s71, s61, 7
        s_xor_b32 s62, s3, %d
        s_or_b32 s71, s71, s62""" % (WS_X2S, SW))
        a("""s_bitcmp1_b32 s61, 0
        s_cselect_b64 s[48:49], s[26:27], s[24:25]
        s_cselect_b64 s[52:53], s[24:25], s[26:27]
        s_cselect_b32 s34, 0x8000, 0
        s_mov_b32 s50, 0x%x
        s_mov_b32 s51, 0x20000
        s_mov_b32 s54, 0x%x
        s_mov_b32 s55, 0x20000
        s_add_u32 s34, s34, s70
        s_add_u32 s34, s34, %d
        s_xor_b32 s35, s34, 0x8000
        s_mov_b64 s[26:27], s[16:17]""" % (2048 * 514, 2048 * 514, WB))
        self.srd(self.rOUT, self.pOUT, 2048 * 2048)

        CS, TW0, TWX, F16 = 16, 40, 48, 56
        RA = 64
        T = 144
        a("""v_cvt_f32_u32 v16, v5
        s_bfe_u32 s62, s3, 0x10001
        s_and_b32 s63, s3, 1
        s_lshl2_add_u32 s62, s62, s63
        s_lshl_b32 s62, s62, 7
        s_add_u32 s62, s62, s60
        v_lshl_add_u32 v17, v4, 8, s62
        v_cvt_f32_u32 v17, v17
        v_mul_f32 v17, v17, v16
        s_lshr_b32 s62, s3, 2
        v_xor_b32 v18, s62, v1
        v_lshlrev_b32 v18, 31, v18
        v_or_b32 v18, %s, v18
        v_fmamk_f32 v17, v17, %s, v18
        v_fmamk_f32 v18, v16, %s, v17
        s_lshl_b32 s62, s62, 31
        v_cos_f32 v20, v17
        v_sin_f32 v21, v17
        v_cos_f32 v22, v18
        v_sin_f32 v23, v18
        s_lshr_b32 s64, s3, 1
        s_lshl_b32 s64, s64, 10
        s_lshl3_add_u32 s64, s63, s64
        s_add_u32 s64, s64, %d
        v_add_u32 v15, s64, v2""" % (fhex(0.125), fhex(1 / 2048), fhex(1 / 32), RAB))
        a("""v_cvt_pk_bf16_f32 v24, v20, v21
        v_cvt_pk_bf16_f32 v25, v22, v23
        v_cvt_pk_bf16_f32 v26, -v21, v20
        v_cvt_pk_bf16_f32 v27, -v23, v22
        v_xor_b32 v24, s62, v24
        v_xor_b32 v25, s62, v25
        v_xor_b32 v26, s62, v26
        v_xor_b32 v27, s62, v27
        ds_write_b64 v15, v[24:25]
        ds_write_b64 v15, v[26:27] offset:4096""")
        self.ra_inv(0, 136)
        a("s_lshl_b32 s14, s60, 9\ns_add_u32 s14, s14, 0x%x\ns_and_b32 s63, s3, 1" % (WS_X1 + 64 * 32768))
        FA = 128
        a("""v_bfe_u32 v16, v1, 3, 2
        s_lshl_b32 s62, s4, 2
        v_add_u32 v17, s62, v16
        v_lshl_add_u32 v17, v4, 5, v17
        v_mul_u32_u24 v17, 514, v17
        v_and_b32 v17, -16, v17
        v_sub_u32 v16, v1, v16
        v_and_b32 v18, 7, v16
        v_xor_b32 v19, 4, v18
        v_cmp_gt_u32 s[68:69], 5, v18
        v_cmp_gt_u32 s[58:59], 5, v19
        v_lshl_add_u32 v128, v18, 4, v17
        v_lshl_add_u32 v129, v19, 4, v17""")
        a("""v_lshl_add_u32 v7, v1, 3, s70
        s_lshr_b32 s62, s3, 1
        s_lshl_b32 s62, s62, 13
        s_lshl3_add_u32 s62, s63, s62
        s_add_u32 s62, s62, %d
        v_lshlrev_b32 v8, 11, v13
        v_lshl_add_u32 v8, v12, 4, v8
        v_add_u32 v8, s62, v8
        v_lshl_add_u32 v10, s3, 5, v5
        v_lshlrev_b32 v130, 13, v4
        v_add_u32 v130, %d, v130
        v_lshl_add_u32 v9, v10, 4, v130
        v_sub_u32 v10, 0, v10
        v_and_b32 v10, 0x1ff, v10
        v_lshl_add_u32 v10, v10, 4, v130
        v_add_u32 v131, %d, v2
        s_mul_i32 s62, s3, %d
        s_lshl_b32 s63, s61, 6
        s_add_u32 s62, s62, s63
        s_add_u32 s63, s62, %d
        s_add_u32 s64, s62, %d
        s_add_u32 s65, s62, %d
        s_waitcnt lgkmcnt(0)""" % (ZB, ZB, TB, 8 * 32 * 514, 64 * 514 - 1024, 128 * 514 - 2048, 192 * 514 - 3072))
        self.tags()

        def tab(reg, q, n):
            for i in range(n):
                a("ds_read_b128 %s, v131 offset:%d" % (v(reg + 4 * i, 4), (q + i) * 1024))

        fdp = [int(x) for x in str(self.opt.get("fdp", "2402"))[-4:].rjust(4, "0")]
        fdn = [0]

        def fnext(n=1):
            for _ in range(n):
                fdma(fdn[0] >> 2, fdn[0] & 3)
                fdn[0] += 1

        def fdma(second, q):
            a("s_mov_b64 exec, %s" % ("s[58:59]" if q >> 1 else "s[68:69]"))
            a("s_mov_b32 m0, s%d" % (35 if second else 34))
            a("buffer_load_dwordx4 v%d, %s, s%d offen offset:%d %s lds" % (FA + (q >> 1), s(52 if second else 48, 4), 62 + q, q * 1024, "nt"))
            a("s_mov_b64 exec, -1")

        a("s_waitcnt vmcnt(%d)\ns_barrier" % 4)
        XF, T1, U = T, T + 16, T + 48
        tab(CS, TQ_CS, 12)
        tab(RA, 24, 8)
        bpf = self.opt.get("bpf", 0)
        nb = 0
        if bpf:
            a("""s_lshl3_add_u32 s15, s61, s3
            s_lshl_b32 s15, s15, 2
            s_add_u32 s15, s15, 256
            s_mul_i32 s15, s15, 3072
            s_and_b32 s56, s4, 1
            s_lshl_b32 s56, s56, 9
            s_add_u32 s15, s15, s56
            v_mul_u32_u24 v124, 0xc00, v13
            v_bfe_u32 v125, v1, 2, 2
            v_lshl_add_u32 v124, v125, 10, v124
            v_and_b32 v125, 3, v1
            v_lshl_add_u32 v124, v125, 7, v124
            s_mov_b64 s[44:45], s[18:19]
            s_mov_b32 s46, 0x180000
            s_mov_b32 exec_lo, MASK
            s_mov_b32 exec_hi, MASK
            buffer_load_dword v126, v124, s[44:47], s15 offen
            s_mov_b64 exec, -1""".replace("MASK", "0x0fff0fff" if bpf == 2 else "0x0ff00ff0"))
            nb = 1
        mpf = self.opt.get("mpf", 0)
        if mpf:
            a("""s_lshl3_add_u32 s56, s60, s3
            s_mul_i32 s15, s56, 1536
            s_add_u32 s15, s15, 0xc0000
            v_lshlrev_b32 v124, 7, v1
            s_mov_b64 s[44:45], s[18:19]
            s_mov_b32 s46, 0x180000
            s_mov_b64 exec, 0xfff
            buffer_load_dword v126, v124, s[44:47], s15 offen""")
            nb += 1
            if mpf == 2:
                a("""s_mov_b64 exec, 0xffff
                v_lshrrev_b32 v124, 2, v1
                v_and_b32 v125, 3, v1
                v_lshlrev_b32 v125, 7, v125
                v_lshl_add_u32 v124, v124, 10, v125
                s_lshl_b32 s15, s56, 12
                s_mov_b64 s[44:45], s[26:27]
                s_mov_b32 s46, 0x200000
                buffer_load_dword v127, v124, s[44:47], s15 offen offset:512""")
                nb += 1
            a("s_mov_b64 exec, -1")
        fnext(fdp[0])
        a("s_waitcnt vmcnt(%d)" % (fdp[0] + nb))
        self.stamp()
        a.label("WB_0")
        for q in range(4):
            a("ds_read_b64_tr_b16 %s, v7 offset:%d" % (v(XF + 4 * q, 2), q * 1024))
            a("ds_read_b64_tr_b16 %s, v7 offset:%d" % (v(XF + 4 * q + 2, 2), q * 1024 + 512))
        a("s_mov_b32 s22, 0x80000\ns_mov_b32 s23, 0x20000\ns_lshl3_add_u32 s15, s60, s3\ns_lshl_b32 s15, s15, 10")
        a("buffer_load_dwordx4 v[116:119], v2, s[20:23], s15 offen")
        sp1 = [(fdp[1] + 3 - i) // 4 for i in range(4)]
        fnext(sp1[0])

        def stage_cs(re, im, out, conj):
            S, N = (CS + 16, CS + 8) if conj else (CS + 8, CS + 16)
            for tau in range(2):
                a("%s %s, %s, %s, 0" % (M16, v(out + 4 * tau, 4), v(re, 4), v(CS + 4 * tau, 4)))
                a("%s %s, %s, %s, 0" % (M16, v(out + 8 + 4 * tau, 4), v(im, 4), v(CS + 4 * tau, 4)))
            for tau in range(2):
                a("%s %s, %s, %s, %s" % (M16, v(out + 4 * tau, 4), v(im, 4), v(S + 4 * tau, 4), v(out + 4 * tau, 4)))
                a("%s %s, %s, %s, %s" % (M16, v(out + 8 + 4 * tau, 4), v(re, 4), v(N + 4 * tau, 4), v(out + 8 + 4 * tau, 4)))

        def twiddle(t, tws, tmp, conj):
            for tau in range(2):
                for j in (0, 2):
                    re, im = t + 4 * tau + j, t + 8 + 4 * tau + j
                    sn_ = tws[tau] + 4 + j
                    k = tmp + 8 * tau + 2 * j
                    a("v_pk_mul_f32 %s, %s, %s" % (v(k, 2), v(im, 2), v(sn_, 2)))
                    a("v_pk_mul_f32 %s, %s, %s" % (v(k + 2, 2), v(re, 2), v(sn_, 2)))
            ng = " neg_lo:[0,0,1] neg_hi:[0,0,1]"
            for tau in range(2):
                for j in (0, 2):
                    re, im = t + 4 * tau + j, t + 8 + 4 * tau + j
                    c = tws[tau] + j
                    k = tmp + 8 * tau + 2 * j
                    a("v_pk_fma_f32 %s, %s, %s, %s%s" % (v(re, 2), v(re, 2), v(c, 2), v(k, 2), ng if conj else ""))
                    a("v_pk_fma_f32 %s, %s, %s, %s%s" % (v(im, 2), v(im, 2), v(c, 2), v(k + 2, 2), "" if conj else ng))

        a("s_waitcnt lgkmcnt(4)")
        stage_cs(XF, XF + 4, T1, False)
        a("s_waitcnt lgkmcnt(0)")
        stage_cs(XF + 8, XF + 12, T1 + 16, False)
        fnext(sp1[1])
        for m in range(2):
            t = T1 + 16 * m
            twiddle(t, [TW0, TWX], T + 64, False)
            for tau in range(2):
                u = U + 8 * m + 4 * tau
                self.cvt(u, v(t + 4 * tau), v(t + 4 * tau + 1))
                self.cvt(u + 1, v(t + 4 * tau + 2), v(t + 4 * tau + 3))
                self.cvt(u + 2, v(t + 8 + 4 * tau), v(t + 8 + 4 * tau + 1))
                self.cvt(u + 3, v(t + 8 + 4 * tau + 2), v(t + 8 + 4 * tau + 3))
            for tau in range(2):
                u = U + 8 * m + 4 * tau
                a("%s %s, %s, %s, 0" % (M16, v(t + 4 * tau, 4), v(F16, 4), v(u, 4)))
                a("%s %s, %s, %s, 0" % (M16, v(t + 8 + 4 * tau, 4), v(F16 + 4, 4), v(u, 4)))
            fnext(sp1[2 + m])
        fd = 2 if fdp[3] == 0 else 1
        ZW = T + 64
        for i in range(8):
            self.cvt(ZW + 2 * i, v(T1 + i), v(T1 + 8 + i))
        for i in range(8):
            self.cvt(ZW + 2 * i + 1, v(T1 + 16 + i), v(T1 + 24 + i))
            a("ds_write_b64 v8, %s offset:%d" % (v(ZW + 2 * i, 2), (i >> 2) * 256 + (i & 3) * 512))
        a("s_waitcnt lgkmcnt(0)\ns_barrier")
        self.stamp()
        for f in range(4):
            a("ds_read_b128 %s, v%d offset:%d" % (v(XF + 4 * f, 4), 9 + (f >> 1), (f & 1) * 16384))
        fnext(fdp[2])
        PC = T + 48

        def pieces(src, j, dst, mark=True):
            for h in range(2):
                self.cvt(dst + h, v(src + 4 * j + 2 * h), v(src + 4 * j + 2 * h + 1))
                self.cvt(dst + 2 + h, v(src + 16 + 4 * j + 2 * h), v(src + 16 + 4 * j + 2 * h + 1))
            if mark:
                for x in self.mark(dst, 14):
                    a(x)

        lab = a.newlabel("NOX")
        a("s_cmp_lg_u32 s3, %d\ns_cbranch_scc1 %s" % (XW, lab))
        XE, TE = T + 64, T + 80
        a("ds_read_b128 %s, v130 offset:4096\nds_read_b128 %s, v130 offset:%d" % (v(XE, 4), v(XE + 4, 4), 4096 + 16384))
        a("v_lshlrev_b32 v16, 1, v6\nv_lshl_add_u32 v16, v4, 4, v16")
        a("s_waitcnt lgkmcnt(0)")
        for f in range(4):
            for ri in range(2):
                d = v(TE + 16 * ri, 16)
                a("%s %s, %s, %s, %s" % (M32, d, v(RA + 16 * ri + 4 * f, 4), v(XE + 4 * (f & 1), 4), d if f else "0"))
        a.label(lab)
        for f in range(4):
            a("s_waitcnt lgkmcnt(%d)" % (3 - f))
            for ri in range(2):
                d = v(T1 + 16 * ri, 16)
                a("%s %s, %s, %s, %s" % (M32, d, v(RA + 16 * ri + 4 * f, 4), v(XF + 4 * f, 4), d if f else "0"))
        if fd == 2:
            a("s_waitcnt vmcnt(0)")
        lab = a.newlabel("NOX")
        a("s_cmp_lg_u32 s3, %d\ns_cbranch_scc1 %s" % (XW, lab))
        for j in range(4):
            a("s_mov_b32 exec_lo, %d\ns_mov_b32 exec_hi, %d" % (1 << j, 1 << j))
            pieces(TE, j, XE + 8, False)
        a("s_mov_b32 exec_lo, 15\ns_mov_b32 exec_hi, 15")
        for x in self.mark(XE + 8, 14):
            a(x)
        a("buffer_store_dwordx4 %s, v16, %s, s14 offen sc1" % (v(XE + 8, 4), ws))
        a("s_mov_b64 exec, -1")
        a.label(lab)
        a("ds_write_b64 v142, v[140:141]")
        a("s_nop 7")
        for j in range(4):
            pieces(T1, j, PC + 4 * j)
            a("buffer_store_dwordx4 %s, v11, %s, s13 offen sc1" % (v(PC + 4 * j, 4), ws))
            if j < 3:
                a("v_xor_b32 v11, 0x%x, v11" % ((j ^ (j + 1)) * 0x82000))
        self.stamp()
        fnext(fdp[3])
        assert fdn[0] == 8

        F32 = 16
        FL = 48
        LD, LD2 = 96, 112
        FL2 = T + 64
        DAT, FR, TM = T, T + 32, T + 48
        tab(F32, TQ_F32, 4)
        tab(FR, TQ_OM, 4)
        a("""v_lshrrev_b32 v11, 2, v1
        v_xor_b32 v11, v11, v4
        v_lshlrev_b32 v129, 9, v11
        v_and_b32 v11, 3, v1
        v_lshl_add_u32 v11, v11, 4, v129
        s_lshl_b32 s62, s4, 4
        v_xor_b32 v129, s62, v11
        s_and_b32 s62, s60, 15
        s_lshl_b32 s62, s62, 9
        v_xor_b32 v11, s62, v11
        s_lshl_b32 s62, s60, 15
        s_lshl_b32 s64, s3, 6
        s_add_u32 s62, s62, s64
        s_lshr_b32 s64, s60, 4
        s_lshl_b32 s64, s64, 13
        s_add_u32 s62, s62, s64
        v_add_u32 v11, 0x%x, v11
        s_add_u32 s70, s70, %d
        v_add_u32 v6, s70, v2
        v_and_b32 v132, 1, v13
        v_lshl_add_u32 v132, v13, 3, v132
        v_bfe_u32 v133, v1, 3, 1
        v_lshl_add_u32 v132, v133, 1, v132
        v_lshlrev_b32 v132, 6, v132
        v_and_b32 v133, 3, v1
        v_lshl_add_u32 v132, v133, 4, v132
        v_bfe_u32 v133, v1, 2, 1
        v_lshl_add_u32 v132, v133, 3, v132
        v_add_u32 v132, s70, v132
        v_xor_b32 v133, 64, v132""" % (WS_X1, ZB))

        def faddr(dst, kk, t1, t2):
            a("""v_and_b32 v{t2}, 3, v12
            s_lshl_b32 s15, s4, 2
            v_add_u32 v{t1}, s15, v{t2}
            v_and_b32 v{t1}, 7, v{t1}
            v_add_lshl_u32 v{t1}, v{t1}, v{kk}, 1
            v_lshl_add_u32 v{t1}, v{t2}, 4, v{t1}
            v_lshl_add_u32 v{t1}, v13, 6, v{t1}
            v_and_b32 v{t1}, 0x7f, v{t1}
            v_lshl_add_u32 v{t1}, v{t2}, 7, v{t1}
            v_lshl_add_u32 v{t1}, v13, 11, v{t1}
            v_add_u32 v{dst}, {wb}, v{t1}""".format(dst=dst, kk=kk, t1=t1, t2=t2, wb=WB))

        a("v_lshrrev_b32 v%d, 2, v12\nv_lshl_add_u32 v%d, s3, 2, v%d" % (LD, LD, LD))
        faddr(128, LD, LD + 1, LD + 2)
        a("""v_lshl_add_u32 v15, s3, 2, v13
        v_and_b32 v5, 7, v12
        v_xor_b32 v15, v15, v5
        v_lshlrev_b32 v15, 4, v15
        v_lshl_add_u32 v15, v12, 10, v15
        s_and_b32 s63, s3, 1
        s_lshl_b32 s64, s63, 6
        v_xor_b32 v7, s64, v2
        s_lshl_b32 s64, s3, 12
        v_add_u32 v7, s64, v7
        v_xor_b32 v136, 16, v7
        v_xor_b32 v137, 32, v7
        v_xor_b32 v138, 48, v7
        s_mov_b32 s64, 0x80008000
        s_waitcnt lgkmcnt(0)""")
        for i in range(16):
            a(("v_xor_b32 v%d, s64, v%d" if i & 1 else "v_mov_b32 v%d, v%d") % (F32 + 16 + i, F32 + i))
        a("s_xor_b32 s63, s62, 0x2000\ns_xor_b32 s64, s62, 0x4000\ns_xor_b32 s65, s62, 0x6000")
        if fd != 2:
            a("s_waitcnt vmcnt(0)")
        a("s_barrier")
        self.stamp()

        def fread(addr):
            for arr in range(2):
                for pm in range(2):
                    for t in range(8):
                        a("ds_read_u16_d16_hi v%d, v%d offset:%d" % (DAT + 16 * arr + 8 * pm + t, addr, arr * 32768 + pm * 16384 + (t >> 2) * 8192 + (t & 3) * 512))

        def filt(dst, raw, both=True):
            for j in range(0, 8, 2):
                a("v_pk_add_f32 %s, %s, %s" % (v(dst + j, 2), v(raw + j, 2), v(raw + 8 + j, 2)))
                a("v_pk_add_f32 %s, %s, %s" % (v(dst + 8 + j, 2), v(raw + 16 + j, 2), v(raw + 24 + j, 2)))
                a("v_pk_add_f32 %s, %s, %s neg_lo:[0,1] neg_hi:[0,1]" % (v(raw + j, 2), v(raw + j, 2), v(raw + 8 + j, 2)))
                a("v_pk_add_f32 %s, %s, %s neg_lo:[0,1] neg_hi:[0,1]" % (v(raw + 16 + j, 2), v(raw + 16 + j, 2), v(raw + 24 + j, 2)))
            ng = " neg_lo:[0,0,1] neg_hi:[0,0,1]"
            for j in range(0, 8, 2):
                dr, di, c, sn_ = v(raw + j, 2), v(raw + 16 + j, 2), v(FR + j, 2), v(FR + 8 + j, 2)
                t1, t2 = v(raw + 8 + j, 2), v(raw + 24 + j, 2)
                a("v_pk_mul_f32 %s, %s, %s" % (t1, di, sn_))
                a("v_pk_mul_f32 %s, %s, %s" % (t2, dr, sn_))
                a("v_pk_fma_f32 %s, %s, %s, %s" % (v(dst + 16 + j, 2), dr, c, t1))
                a("v_pk_fma_f32 %s, %s, %s, %s%s" % (v(dst + 24 + j, 2), di, c, t2, ng))
                if both:
                    a("v_pk_fma_f32 %s, %s, %s, %s%s" % (v(dst + 32 + j, 2), dr, c, t1, ng))
                    a("v_pk_fma_f32 %s, %s, %s, %s" % (v(dst + 40 + j, 2), di, c, t2))

        VS = 139

        sentinel = lambda base: self.markcheck(base, 16, VS)

        def x1load(special):
            for i in range(4):
                a("buffer_load_dwordx4 %s, v%d, %s, s%d offen sc1" % (v((LD2 if special else LD) + 4 * i, 4), 129 if special else 11, ws, (56 if special else 62) + i))

        def x1first():
            lab = a.newlabel("NOSP")
            a("s_cmp_lg_u32 s71, 0\ns_cbranch_scc1 " + lab)
            for i in range(4):
                a("s_mov_b32 s%d, 0x%x" % (56 + i, WS_X1 + 64 * 32768 + 0x2000 * i))
            x1load(True)
            a.label(lab)
            x1load(False)

        x1l = self.opt.get("x1late", 2)
        if fd != 2 and x1l == 0:
            x1first()
        fread(128)
        a("s_waitcnt lgkmcnt(0)")
        if fd != 2 and x1l == 1:
            x1first()
        filt(FL, DAT)
        if fd != 2 and x1l == 2:
            x1first()
        if fd == 2:
            a("s_waitcnt vmcnt(0)")
            self.diag_delay("d_x1")
            x1first()
        self.stamp()

        def hintx(pos):
            if self.opt.get("go", 4) == pos:
                lab = a.newlabel("NOH")
                a("s_cmp_lg_u32 s3, 7\ns_cbranch_scc1 " + lab)
                a("""s_lshl_b32 s14, s60, 7
                s_add_u32 s14, s14, 0x%x
                v_mov_b32 v140, s6
                v_mov_b32 v141, s7
                v_lshlrev_b32 v142, 3, v12
                buffer_store_dwordx2 v[140:141], v142, %s, s14 offen sc1""" % (WS_GO, ws))
                a.label(lab)

        def b2(fl, special):
            ld = LD2 if special else LD
            self.poll(lambda: x1load(special), lambda: sentinel(ld), VS, first_issued=True)
            self.flip_marks()
            if not special:
                a.label(self.b2_skip)
                self.stamp()
            for i in range(4):
                a("ds_write_b128 v6, %s offset:%d" % (v(ld + 4 * i, 4), i * 1024))
            for p in range(2):
                for f in range(2):
                    for h in range(2):
                        a("ds_read_b64_tr_b16 %s, v%d offset:%d" % (v(FR + 8 * p + 4 * f + 2 * h, 2), 132 + p, f * 2048 + h * 256))
            if not special:
                hintx(1)
            for p in range(2):
                for f in range(2):
                    a("s_waitcnt lgkmcnt(%d)" % (6 - 4 * p - 2 * f))
                    for tau in range(2):
                        for ri in range(2):
                            d = v(DAT + 16 * p + 8 * ri + 4 * tau, 4)
                            a("%s %s, %s, %s, %s" % (M16, d, v(F32 + ((tau * 2 + ri) * 2 + f) * 4, 4), v(FR + 8 * p + 4 * f, 4), d if f else "0"))
            if not special:
                hintx(2)
            n1_ = " neg_lo:[1,0,0] neg_hi:[1,0,0]"

            for j in range(0, 8, 2):
                Er, Ei, Or, Oi = [v(DAT + 8 * k + j, 2) for k in range(4)]
                Ar, Ai, B1r, B1i, B2r, B2i = [v(fl + 8 * k + j, 2) for k in range(6)]
                k = TM + 8 * ((j >> 1) & 1)
                Pr, Pi, Qr, Qi = [v(k + 2 * i, 2) for i in range(4)]
                a("v_pk_mul_f32 %s, %s, %s" % (Pr, Ar, Er))
                a("v_pk_mul_f32 %s, %s, %s" % (Pi, Ar, Ei))
                a("v_pk_mul_f32 %s, %s, %s" % (Qr, B2r, Er))
                a("v_pk_mul_f32 %s, %s, %s" % (Qi, B2r, Ei))
                a("v_pk_fma_f32 %s, %s, %s, %s%s" % (Pr, Ai, Ei, Pr, n1_))
                a("v_pk_fma_f32 %s, %s, %s, %s" % (Pi, Ai, Er, Pi))
                a("v_pk_fma_f32 %s, %s, %s, %s%s" % (Qr, B2i, Ei, Qr, n1_))
                a("v_pk_fma_f32 %s, %s, %s, %s" % (Qi, B2i, Er, Qi))
                a("v_pk_fma_f32 %s, %s, %s, %s" % (Pr, B1r, Or, Pr))
                a("v_pk_fma_f32 %s, %s, %s, %s" % (Pi, B1r, Oi, Pi))
                a("v_pk_fma_f32 %s, %s, %s, %s" % (Qr, Ar, Or, Qr))
                a("v_pk_fma_f32 %s, %s, %s, %s" % (Qi, Ar, Oi, Qi))
                a("v_pk_fma_f32 %s, %s, %s, %s%s" % (Pr, B1i, Oi, Pr, n1_))
                a("v_pk_fma_f32 %s, %s, %s, %s" % (Pi, B1i, Or, Pi))
                a("v_pk_fma_f32 %s, %s, %s, %s%s" % (Qr, Ai, Oi, Qr, n1_))
                a("v_pk_fma_f32 %s, %s, %s, %s" % (Qi, Ai, Or, Qi))
                for e in range(2):
                    self.cvt(FR + j + e, v(k + e), "-" + v(k + 2 + e))
                    self.cvt(FR + 8 + j + e, v(k + 4 + e), "-" + v(k + 6 + e))
            for p in range(2):
                for f in range(2):
                    for tau in range(2):
                        for ri in range(2):
                            d = v(DAT + 16 * p + 8 * ri + 4 * tau, 4)
                            a("%s %s, %s, %s, %s" % (M16, d, v(FR + 8 * p + 4 * f, 4), v(F32 + ((tau * 2 + ri) * 2 + f) * 4, 4), d if f else "0"))
            if not special:
                hintx(3)
            if special:
                a("s_mov_b64 exec, 0xffff")
            for p in range(2):
                for tau in range(2):
                    o = TM + 8 * p + 4 * tau
                    for r in range(4):
                        self.cvt(o + r, v(DAT + 16 * p + 4 * tau + r), "-" + v(DAT + 16 * p + 8 + 4 * tau + r))
                    for x in self.mark(o, 14):
                        a(x)
                    if special:
                        a("buffer_store_dwordx4 %s, v2, %s, s67 offen offset:%d sc1" % (v(o, 4), ws, tau * 512 + p * 256))
                    else:
                        a("ds_write_b128 v15, %s offset:%d" % (v(o, 4), tau * 16384 + p * 512))
            if special:
                a("s_mov_b64 exec, -1")

        lab = a.newlabel("NOSP")
        a("s_cmp_lg_u32 s71, 0\ns_cbranch_scc1 " + lab)
        a("v_mov_b32 v%d, 32" % TM)
        faddr(128, TM, TM + 1, TM + 2)
        fread(128)
        a("""v_lshlrev_b32 v{t}, 29, v1
        v_and_b32 v{t}, 0x80000000, v{t}
        v_and_b32 v{u}, 3, v1
        v_lshlrev_b32 v{u}, 4, v{u}
        v_xor_b32 v128, v132, v{u}
        v_and_b32 v{u}, 1, v1
        v_lshlrev_b32 v{u}, 6, v{u}
        v_xor_b32 v128, v128, v{u}""".format(t=TM, u=TM + 1))
        for j in range(8):
            a("v_xor_b32 v%d, v%d, v%d" % (FR + 8 + j, TM, FR + 8 + j))
        a("s_waitcnt lgkmcnt(0)")
        filt(FL2, DAT, False)
        self.poll(lambda: x1load(False), lambda: sentinel(LD), VS, first_issued=True)
        self.poll(lambda: x1load(True), lambda: sentinel(LD2), VS, first_issued=True)
        self.flip_marks()
        for i in range(4):
            a("ds_write_b128 v6, %s offset:%d" % (v(LD2 + 4 * i, 4), i * 1024))
        for f in range(2):
            for h in range(2):
                a("ds_read_b64_tr_b16 %s, v128 offset:%d" % (v(FR + 4 * f + 2 * h, 2), f * 2048 + h * 256))
        for f in range(2):
            a("s_waitcnt lgkmcnt(%d)" % (2 - 2 * f))
            for tau in range(2):
                for ri in range(2):
                    d = v(DAT + 8 * ri + 4 * tau, 4)
                    a("%s %s, %s, %s, %s" % (M16, d, v(F32 + ((tau * 2 + ri) * 2 + f) * 4, 4), v(FR + 4 * f, 4), d if f else "0"))
        for j in range(0, 8, 2):
            Xr, Xi, Ar, Ai = v(DAT + j, 2), v(DAT + 8 + j, 2), v(FL2 + j, 2), v(FL2 + 8 + j, 2)
            a("v_pk_mul_f32 %s, %s, %s" % (v(TM + j, 2), Ar, Xr))
            a("v_pk_mul_f32 %s, %s, %s" % (v(TM + 8 + j, 2), Ar, Xi))
            a("v_pk_fma_f32 %s, %s, %s, %s neg_lo:[1,0,0] neg_hi:[1,0,0]" % (v(TM + j, 2), Ai, Xi, v(TM + j, 2)))
            a("v_pk_fma_f32 %s, %s, %s, %s" % (v(TM + 8 + j, 2), Ai, Xr, v(TM + 8 + j, 2)))
        dpp = " row_ror:4 row_mask:0xf bank_mask:0xf"
        for k in range(2):
            for j in range(8):
                a("v_fmac_f32_dpp v%d, %sv%d, v%d%s" % (TM + j, "-" if k else "", DAT + 8 * k + j, FL2 + 16 + 8 * k + j, dpp))
                a("v_fmac_f32_dpp v%d, v%d, v%d%s" % (TM + 8 + j, DAT + 8 * (1 - k) + j, FL2 + 16 + 8 * k + j, dpp))
        for j in range(8):
            self.cvt(FR + j, v(TM + j), "-" + v(TM + 8 + j))
        for f in range(2):
            for tau in range(2):
                for ri in range(2):
                    d = v(DAT + 8 * ri + 4 * tau, 4)
                    a("%s %s, %s, %s, %s" % (M16, d, v(FR + 4 * f, 4), v(F32 + ((tau * 2 + ri) * 2 + f) * 4, 4), d if f else "0"))
        a("s_mov_b32 exec_hi, 0")
        for tau in range(2):
            o = FL2 + 4 * tau
            for r in range(4):
                self.cvt(o + r, v(DAT + 4 * tau + r), "-" + v(DAT + 8 + 4 * tau + r))
            for x in self.mark(o, 14):
                a(x)
            a("buffer_store_dwordx4 %s, v2, %s, s67 offen offset:%d sc1" % (v(o, 4), ws, tau * 512))
        a("s_mov_b32 exec_hi, -1")
        skip = a.newlabel("B2GO")
        self.b2_skip = skip
        a("s_branch " + skip)
        a.label(lab)
        b2(FL, False)
        a("s_waitcnt lgkmcnt(0)\ns_barrier")
        self.stamp()
        hintx(4)
        ST = LD
        for i in range(4):
            a("ds_read_b128 %s, v%d offset:%d" % (v(ST + 4 * i, 4), 135 + i if i else 7, i * 1024))
        for i in range(4):
            a("s_waitcnt lgkmcnt(%d)" % (3 - i))
            a("buffer_store_dwordx4 %s, v3, %s, s66 offen sc1" % (v(ST + 4 * i, 4), ws))
            if i < 3:
                a("v_xor_b32 v3, 0x%x, v3" % ((i ^ (i + 1)) * 0x400))
        self.stamp()
        lab = a.newlabel("NONOTE")
        a("s_or_b32 s56, s60, s3\ns_cbranch_scc1 " + lab)
        a("v_mov_b32 v140, s6\nv_mov_b32 v141, s7\nv_lshlrev_b32 v142, 3, v12")
        a("buffer_store_dwordx2 v[140:141], v142, %s, 0 offen offset:%d sc1" % (ws, WS_NOTE))
        a.label(lab)
        a.label("WB_1")
        a("s_mov_b32 s34, 0")
        self.pad_stamps(9)

        a.label("B3_ENTRY")
        G16 = F16
        a("v_lshlrev_b32 v2, 4, v1\nv_add_u32 v131, %d, v2" % TB)
        tab(RA, 24, 4)
        tab(CS, TQ_CS, 8)
        tab(TWX, TQ_TW3, 4)
        a("""v_lshrrev_b32 v4, 5, v1
        v_and_b32 v5, 31, v1
        v_and_b32 v12, 15, v1
        v_lshrrev_b32 v13, 4, v1
        v_lshl_add_u32 v132, v4, 3, s3
        v_xor_b32 v8, s60, v132
        v_lshlrev_b32 v132, 15, v132
        v_lshl_add_u32 v132, v5, 4, v132
        v_lshl_add_u32 v132, v8, 9, v132
        v_xor_b32 v133, 0x82000, v132
        v_xor_b32 v134, 0x104000, v132
        v_xor_b32 v135, 0x186000, v132
        v_lshl_add_u32 v10, s3, 5, v5
        v_lshlrev_b32 v130, 13, v4
        v_add_u32 v130, %d, v130
        v_lshl_add_u32 v9, v10, 4, v130
        v_sub_u32 v10, 0, v10
        v_and_b32 v10, 0x1ff, v10
        v_lshl_add_u32 v10, v10, 4, v130
        s_lshr_b32 s63, s3, 2
        s_lshl_b32 s63, s63, 13
        s_and_b32 s64, s3, 3
        s_lshl2_add_u32 s63, s64, s63
        s_add_u32 s63, s63, %d
        v_lshlrev_b32 v8, 11, v13
        v_lshl_add_u32 v8, v12, 4, v8
        v_add_u32 v8, s63, v8
        s_lshl_b32 s63, s3, 11
        s_add_u32 s63, s63, %d
        v_bfe_u32 v5, v1, 2, 1
        v_lshlrev_b32 v5, 1, v5
        v_xor_b32 v5, v5, v13
        v_lshlrev_b32 v5, 3, v5
        v_lshl_add_u32 v5, v12, 5, v5
        v_add_u32 v5, s63, v5
        v_bfe_u32 v6, v1, 3, 1
        v_lshlrev_b32 v6, 4, v6
        v_xor_b32 v6, v6, v2
        v_add_u32 v6, s63, v6
        s_lshl_b32 s64, s3, 6
        s_add_u32 s64, s64, s60
        s_add_u32 s64, s64, s34
        s_lshl_b32 s64, s64, 11
        s_add_u32 s66, s64, 0x200000
        s_mov_b32 s56, 0.5
        s_mov_b32 s57, 0.5
        s_cmp_eq_u32 s3, 0
        s_cselect_b32 s68, -2, -1
        s_mov_b32 s69, s68
        s_lshr_b32 s63, s60, 5
        s_and_b32 s65, s60, 1
        s_lshl1_add_u32 s63, s63, s65
        s_bfe_u32 s65, s60, 0x40001
        s_lshl4_add_u32 s63, s63, s65
        v_and_b32 v11, 7, v1
        v_xor_b32 v11, s63, v11
        v_lshlrev_b32 v11, 4, v11
        v_lshl_add_u32 v11, v4, 10, v11
        s_mov_b32 s63, 0x%x
        s_mov_b32 s65, 0x%x""" % (ZB, ZB, WB, WS_X2S, WS_X2S + 4096))
        lab = a.newlabel("NOGO")
        a("s_cmp_eq_u32 s34, 0\ns_cbranch_scc1 " + lab)
        self.poll(lambda: a("buffer_load_dwordx2 v[140:141], off, %s, s62 sc1" % ws),
                  lambda: a("v_xor_b32 v%d, s6, v140\nv_bitop3_b32 v%d, v%d, v141, s7 bitop3:0xf6" % (VS, VS, VS)), VS)
        a.label(lab)
        a("s_mov_b32 s62, 0x%x" % WS_X1)
        RE, ZP, XS = T + 16, T + 48, LD2

        def radix_inv(x):
            for f in range(4):
                d = v(RE, 16)
                a("%s %s, %s, %s, %s" % (M32, d, v(RA + 4 * f, 4), v(x + 4 * f, 4), d if f else "0"))

        def average():
            a("s_mov_b32 exec_lo, 1\ns_mov_b32 exec_hi, 1")
            for j in (0, 2):
                a("v_pk_add_f32 %s, %s, %s" % (v(RE + j, 2), v(RE + j, 2), v(RE + 8 + j, 2)))
                a("v_pk_add_f32 %s, %s, %s neg_lo:[0,1] neg_hi:[0,1]" % (v(RE + 4 + j, 2), v(RE + 4 + j, 2), v(RE + 12 + j, 2)))
            for j in range(0, 8, 2):
                a("v_pk_mul_f32 %s, %s, s[56:57]" % (v(RE + j, 2), v(RE + j, 2)))

        def extra_tile():
            radix_inv(XS)
            average()
            for r in range(4):
                self.cvt(ZP + 8 + r, v(RE + r), v(RE + 4 + r))
            a("ds_write_b128 v130, %s offset:4096" % v(ZP + 8, 4))
            a("s_mov_b64 exec, -1")

        xsload = lambda: [a("buffer_load_dwordx4 %s, v11, %s, s%d offen offset:%d sc1" % (v(XS + 4 * f, 4), ws, 65 if f >> 1 else 63, (f & 1) * 2048)) for f in range(4)]
        x2load = lambda: [a("buffer_load_dwordx4 %s, v%d, %s, s62 offen sc1" % (v(XF + 4 * f, 4), 132 + f, ws)) for f in range(4)]
        lab = a.newlabel("NODR")
        a("s_and_b32 s15, s60, 7\ns_cmp_eq_u32 s15, 7\ns_cbranch_scc1 " + lab)
        a("s_waitcnt vmcnt(0)")
        self.diag_delay("d_x2")
        a.label(lab)
        x2load()
        lab = a.newlabel("NOX")
        a("s_cmp_lg_u32 s3, %d\ns_cbranch_scc1 %s" % (XW3, lab))
        xsload()
        a.label(lab)
        a("s_waitcnt lgkmcnt(0)")
        self.stamp()
        a.label("WC_0")
        self.poll(x2load, lambda: sentinel(XF), VS, first_issued=True)
        self.stamp()
        radix_inv(XF)
        lab = a.newlabel("NOAVG")
        a("s_nop 9")
        a("s_cmp_lg_u32 s3, 0\ns_cbranch_scc1 " + lab)
        average()
        a("s_mov_b64 exec, -1")
        a.label(lab)
        for r in range(4):
            self.cvt(ZP + r, v(RE + r), v(RE + 4 + r))
        a("ds_write_b128 v9, %s" % v(ZP, 4))
        for r in range(4):
            self.cvt(ZP + 4 + r, v(RE + 8 + r), "-" + v(RE + 12 + r))
        a("s_mov_b64 exec, s[68:69]")
        a("ds_write_b128 v10, %s" % v(ZP + 4, 4))
        a("s_mov_b64 exec, -1")
        lab = a.newlabel("NOX")
        a("s_cmp_lg_u32 s3, %d\ns_cbranch_scc1 %s" % (XW3, lab))
        self.poll(xsload, lambda: sentinel(XS), VS, first_issued=True)
        extra_tile()
        a.label(lab)
        a("s_waitcnt lgkmcnt(0)\ns_barrier")
        self.stamp()
        ZF = T
        for tau in range(2):
            for j in range(2):
                a("ds_read2st64_b32 %s, v8 offset0:%d offset1:%d" % (v(ZF + 4 * tau + 2 * j, 2), tau + 4 * j, tau + 4 * j + 2))
        for tau in range(2):
            a("s_waitcnt lgkmcnt(%d)" % (2 - 2 * tau))
            a("%s %s, %s, %s, 0" % (M16, v(T1 + 4 * tau, 4), v(ZF + 4 * tau, 4), v(G16, 4)))
            a("%s %s, %s, %s, 0" % (M16, v(T1 + 8 + 4 * tau, 4), v(ZF + 4 * tau, 4), v(G16 + 4, 4)))
        O4 = T + 80
        twiddle(T1, [TW0, TWX], T + 64, True)
        for j in range(8):
            self.cvt(U + j, v(T1 + 2 * j), v(T1 + 2 * j + 1))
        stage_cs(U, U + 4, O4, True)
        fl = self.opt.get("outflag", "sc1")
        for ri in range(2):
            for tau in range(2):
                o = O4 + 8 * ri + 4 * tau
                d = T + 4 * ri + 2 * tau
                self.cvt(d, v(o), v(o + 1))
                self.cvt(d + 1, v(o + 2), v(o + 3))
                a("ds_write_b64 v5, %s offset:%d" % (v(d, 2), ri * 1024 + tau * 512))
            a("ds_read_b128 %s, v6 offset:%d" % (v(T1 + 4 * ri, 4), ri * 1024))
        a.label("WC_1")
        for ri in range(2):
            a("s_waitcnt lgkmcnt(%d)" % (3 - 3 * ri))
            a("buffer_store_dwordx4 %s, v2, %s, s%d offen offset:1024 %s" % (v(T1 + 4 * ri, 4), s(self.rOUT, 4), 64 + 2 * ri, fl))
        self.end()


TQ_CS, TQ_TW0, TQ_TW1, TQ_TW3, TQ_F32, TQ_OM = 0, 6, 8, 12, 16, 20


def make_table():
    import numpy as np
    from emu import bf16_rne
    l = np.arange(64)
    c, g = l & 15, l >> 4
    pk = lambda x, y: (bf16_rne(np.float32(x)) | (bf16_rne(np.float32(y)) << 16)).astype(np.uint32)
    fl = lambda x: np.float32(x).view(np.uint32)
    cs = lambda a_: (np.cos(2 * np.pi * a_), np.sin(2 * np.pi * a_))
    idx2 = [16 * (t >> 2) + 4 * g + (t & 3) for t in range(8)]
    R = []
    C = [[cs((c + 16 * tau) * idx2[t] / 32.0) for t in range(8)] for tau in range(2)]
    for k, sg in ((0, 1), (1, 1), (1, -1)):
        for tau in range(2):
            for j in range(4):
                R.append(pk(sg * C[tau][2 * j][k], sg * C[tau][2 * j + 1][k]))

    def tw(angs):
        for k in range(2):
            for x in angs:
                R.append(fl(cs(x)[k]))
    tw([c * idx2[r] / 512.0 for r in range(4)])
    tw([(c + 16) * idx2[r] / 512.0 for r in range(4)])
    H = [cs(c * idx2[x] / 16.0) for x in range(4)]
    R += [pk(H[0][0], H[1][0]), pk(H[2][0], H[3][0]), pk(H[0][1], H[1][1]), pk(H[2][1], H[3][1])]
    R += [pk(-H[0][1], -H[1][1]), pk(-H[2][1], -H[3][1]), pk(H[0][0], H[1][0]), pk(H[2][0], H[3][0])]
    tw([c * idx2[4 + r] / 512.0 for r in range(4)])
    sc = 2.0 ** -20
    R += [pk(sc * H[x][0], -sc * H[x][1]) for x in range(4)] + [pk(sc * H[x][1], sc * H[x][0]) for x in range(4)]
    R += [pk(C[0][t][0], C[0][t][1]) for t in range(8)] + [pk(-C[0][t][1], C[0][t][0]) for t in range(8)]
    for k in range(2):
        for t in range(8):
            R.append(fl(cs(idx2[t] / 64.0)[k]))
    R = np.array(R, np.uint32)
    assert R.shape == (96, 64)
    return np.ascontiguousarray(R.reshape(24, 4, 64).transpose(0, 2, 1)).reshape(-1)


def _sym_add(line, emuval=0):
    ins = Ins(line.rsplit(",", 1)[0] + ", %d" % emuval)
    ins.line = line
    return ins


def generate(stamps=False, opt=None):
    g = G(stamps, opt)
    a = g.build()
    nv = a.maxreg("v") + 1
    ns = a.maxreg("s") + 1
    tb = make_table()
    tail = ".p2align 8\n.type TABLE,@object\nTABLE:\n"
    for i in range(0, len(tb), 8):
        tail += ".long " + ",".join("0x%08x" % x for x in tb[i:i + 8]) + "\n"
    tail += ".size TABLE, %d\n" % (4 * len(tb))
    render = lambda: wrap(a.render() + tail, 256, 512, LDS_SIZE, nv, ns)
    if g.opt.get("align", 1):
        from align import align
        print("align:", align(a, render, g.opt.get("minrun", 5)))
    return a, render()


if __name__ == "__main__":
    stamps = "--stamps" in sys.argv
    opt = {}
    for x in sys.argv[1:]:
        if x.startswith("--") and "=" in x:
            k, val = x[2:].split("=", 1)
            opt[k] = int(val) if val.lstrip("-").isdigit() else val
    a, txt = generate(stamps, opt)
    out = [x for x in sys.argv[1:] if not x.startswith("--")]
    open(out[0] if out else "k.s", "w").write(txt)
    print("instructions:", sum(1 for k, _ in a.items if k == "i"), "vgpr", a.maxreg("v") + 1, "sgpr", a.maxreg("s") + 1)
```

```python
import re
import struct


def f2u(x):
    return struct.unpack("<I", struct.pack("<f", x))[0]


def fhex(x):
    return "0x%08x" % f2u(x)


_REG = re.compile(r"^(-?)(\|?)([vsa])(?:(\d+)|\[(\d+):(\d+)\])(\|?)$")


class Op:
    __slots__ = ("kind", "lo", "n", "neg", "abs", "val", "txt")

    def __init__(self, txt):
        self.txt = txt
        self.neg = False
        self.abs = False
        self.val = None
        self.lo = 0
        self.n = 0
        m = _REG.match(txt)
        if m:
            self.neg = m.group(1) == "-"
            self.abs = m.group(2) == "|"
            self.kind = m.group(3)
            if m.group(4) is not None:
                self.lo = int(m.group(4))
                self.n = 1
            else:
                self.lo = int(m.group(5))
                self.n = int(m.group(6)) - self.lo + 1
        elif txt in ("vcc", "exec"):
            self.kind = "s"
            self.lo = 106 if txt == "vcc" else 126
            self.n = 2
        elif txt in ("vcc_lo", "vcc_hi", "exec_lo", "exec_hi", "m0"):
            self.kind = "s"
            self.lo = {"vcc_lo": 106, "vcc_hi": 107, "exec_lo": 126, "exec_hi": 127, "m0": 124}[txt]
            self.n = 1
        elif txt == "off":
            self.kind = "off"
        elif re.match(r"^-?(0x[0-9a-fA-F]+|\d+)$", txt):
            self.kind = "imm"
            self.val = int(txt, 0)
        elif re.match(r"^-?\d+\.\d*(e-?\d+)?$", txt):
            self.kind = "fimm"
            self.val = float(txt)
        else:
            self.kind = "sym"

    def regs(self):
        if self.kind in ("v", "s", "a"):
            return {(self.kind, self.lo + i) for i in range(self.n)}
        return set()


TRANS = ("v_exp_f32", "v_log_f32", "v_rcp_f32", "v_rsq_f32", "v_sqrt_f32", "v_sin_f32", "v_cos_f32")
VCC = {("s", 106), ("s", 107)}
EXEC = {("s", 126), ("s", 127)}
M0 = {("s", 124)}
S_NODST = ("s_cmp", "s_waitcnt", "s_barrier", "s_cbranch", "s_branch", "s_nop", "s_sleep", "s_setprio",
           "s_bitcmp", "s_endpgm")


class Ins:
    def __init__(self, line):
        self.line = line
        body = line.split(";")[0].strip()
        parts = body.split(None, 1)
        self.mn = parts[0]
        base = self.mn
        for suf in ("_e32", "_e64", "_dpp"):
            if base.endswith(suf):
                base = base[: -len(suf)]
        self.base = base
        rest = parts[1] if len(parts) > 1 else ""
        self.mods = {}
        ops = []
        if base == "s_waitcnt":
            for k, v in re.findall(r"(\w+)\((\d+)\)", rest):
                self.mods[k] = int(v)
        elif base == "s_getreg_b32":
            ops = [rest.split(",")[0].strip()]
        else:
            toks, depth, cur = [], 0, ""
            for ch in rest:
                if ch == "[":
                    depth += 1
                if ch == "]":
                    depth -= 1
                if ch == "," and depth == 0:
                    toks.append(cur.strip())
                    cur = ""
                else:
                    cur += ch
            if cur.strip():
                toks.append(cur.strip())
            if toks:
                last = toks[-1].split()
                toks[-1] = last[0]
                for m in last[1:]:
                    if ":" in m:
                        k, v = m.split(":", 1)
                        if v.startswith("["):
                            self.mods[k] = [int(x) for x in v[1:-1].split(",")]
                        else:
                            self.mods[k] = int(v, 0)
                    else:
                        self.mods[m] = True
            ops = toks
        self.ops = [Op(t) for t in ops]
        self.classify()

    def classify(self):
        b, o = self.base, self.ops
        self.cls = None
        self.w = set()
        self.r = set()
        self.srcC = set()
        self.srcAB = set()
        self.passes = 0
        self.store_data = set()
        self.dpp = self.mn.endswith("_dpp")
        R = lambda i: o[i].regs() if i < len(o) else set()
        allr = lambda lo: set().union(*[x.regs() for x in o[lo:]]) if len(o) > lo else set()
        if b.startswith("v_mfma"):
            self.cls = "mfma"
            self.w = R(0)
            self.srcAB = R(1) | R(2)
            self.srcC = R(3)
            self.r = self.srcAB | self.srcC
            self.passes = 8 if "32x32" in b else 4
        elif b.startswith("v_"):
            self.cls = "valu"
            self.w = R(0)
            self.r = allr(1)
            if b.startswith("v_fmac") or b in ("v_writelane_b32",):
                self.r |= R(0)
            if "swap" in b:
                self.w = R(0) | R(1)
                self.r = R(0) | R(1)
            if b == "v_cndmask_b32" and len(o) == 3:
                self.r |= VCC
            if self.dpp:
                self.r |= R(0)
        elif b.startswith("ds_"):
            self.cls = "ds"
            if b.startswith("ds_read"):
                self.w = R(0)
                self.r = allr(1)
                if "d16" in b:
                    self.r |= R(0)
            else:
                self.r = allr(0)
        elif b.startswith("buffer_") or b.startswith("global_"):
            self.cls = "vmem"
            if "load" in b:
                if self.mods.get("lds") or "_lds_" in b:
                    self.r = allr(0) | M0
                    self.ldsdma = True
                else:
                    self.w = R(0)
                    self.r = allr(1)
                    if "d16" in b:
                        self.r |= R(0)
            else:
                self.r = allr(0)
                d = R(0) if b.startswith("buffer_") else R(1)
                if b.endswith("x4") or b.endswith("x3"):
                    self.store_data = d
        elif b.startswith("s_"):
            self.cls = "salu"
            if b.startswith("s_load") or b.startswith("s_mem") or b.startswith("s_atomic"):
                self.cls = "smem"
            if any(b.startswith(x) for x in S_NODST):
                self.r = allr(0)
            else:
                self.w = R(0)
                self.r = allr(1)
                if "saveexec" in b:
                    self.w |= EXEC
                    self.r |= EXEC
                if b in ("s_addk_i32", "s_mulk_i32", "s_bitset1_b32", "s_bitset0_b32", "s_cmov_b32"):
                    self.r |= R(0)
        else:
            raise ValueError("unknown instruction: " + self.line)
        self.trans = b in TRANS
        self.states = 1
        if b == "s_nop":
            self.states = o[0].val + 1


def need(p, c):
    n = 0
    vw = {x for x in p.w if x[0] != "s"}
    sw = {x for x in p.w if x[0] == "s"}
    if p.cls == "valu":
        if c.cls == "mfma" and (vw & c.r):
            n = max(n, 2)
        if c.cls == "mfma" and (sw & EXEC):
            n = max(n, 4)
        if p.trans and c.cls == "valu" and not c.trans and (vw & c.r):
            n = max(n, 1)
        if p.trans and c.cls in ("vmem", "ds") and (vw & c.r):
            n = max(n, 1)
        if c.cls == "valu" and (c.dpp or "permlane" in c.base) and (vw & c.r):
            n = max(n, 2)
        if c.cls == "valu" and c.base in ("v_readfirstlane_b32", "v_readlane_b32") and (vw & c.r):
            n = max(n, 1)
        if sw:
            if c.cls == "valu" and (sw & c.r):
                n = max(n, 4 if c.base in ("v_readlane_b32", "v_writelane_b32") else 2)
            if c.cls == "vmem" and (sw & c.r):
                n = max(n, 5)
            if c.cls in ("salu", "smem") and (sw & c.r):
                n = max(n, 1)
            if c.base.startswith("s_cbranch_vcc") and (sw & VCC):
                n = max(n, 1)
    if p.cls == "mfma":
        P = p.passes
        if c.cls == "mfma":
            if c.srcC & p.w:
                if not (c.srcC == p.w and c.passes == P):
                    n = max(n, P + 2)
            if c.srcAB & p.w:
                n = max(n, P + 4)
            if (c.w & p.w) and not (c.srcC == p.w and c.passes == P):
                n = max(n, P + 2)
        elif c.cls in ("valu", "vmem", "ds"):
            if (c.r | c.w) & p.w:
                n = max(n, P + 4)
            if c.cls == "valu" and (c.w & p.srcC):
                n = max(n, P - 1)
    if p.cls == "salu" and (p.w & M0) and getattr(c, "ldsdma", False):
        n = max(n, 1)
    if p.store_data and (c.w & p.store_data):
        n = max(n, 2 if c.cls in ("valu", "mfma") else 1)
    return n


def unpack_pk(line):
    if not line.startswith(("v_pk_mul_f32", "v_pk_add_f32", "v_pk_fma_f32")):
        return [line]
    I = Ins(line)
    ns = len(I.ops) - 1
    out = []
    for h, (sel, neg) in enumerate(((I.mods.get("op_sel", [0] * ns), I.mods.get("neg_lo", [0] * ns)),
                                    (I.mods.get("op_sel_hi", [1] * ns), I.mods.get("neg_hi", [0] * ns)))):
        src = ["%s%s%d" % ("-" if neg[i] else "", o.kind, o.lo + sel[i]) for i, o in enumerate(I.ops[1:])]
        out.append("%s_e64 v%d, %s" % (I.base.replace("_pk", ""), I.ops[0].lo + h, ", ".join(src)) if ns == 2 else
                   "v_fma_f32 v%d, %s" % (I.ops[0].lo + h, ", ".join(src)))
    return out


class Asm:
    unpk = False

    def __init__(self):
        self.items = []
        self.uid = 0

    cap = None

    def __call__(self, s, at=None):
        L = [x.strip() for x in s.split("\n") if x.strip() and not x.strip().startswith(";")]
        if self.unpk:
            L = [y for x in L for y in unpack_pk(x)]
        if self.cap is not None:
            if at is not None:
                self.cap.append((L, at))
            else:
                self.cap += [x for x in L if not x.startswith("s_waitcnt lgkmcnt")]
            return
        for line in L:
            self.i(line)

    def capture(self, on=True):
        if on:
            self.cap = []

    def flush(self, pre=(), **kw):
        if self.cap is None:
            return
        from lsched import schedule
        c, self.cap = self.cap, None
        return schedule(c, self.i, pre, **kw)

    def i(self, line):
        ins = Ins(line)
        dist = 0
        req = 0
        for kind, x in reversed(self.items):
            if kind == "t":
                continue
            if kind == "l":
                continue
            if x.base in ("s_branch", "s_endpgm"):
                break
            req = max(req, need(x, ins) - dist)
            dist += x.states
            if dist > 24:
                break
        while req > 0:
            k = min(req, 16)
            self.items.append(("i", Ins("s_nop %d" % (k - 1))))
            req -= k
        self.items.append(("i", ins))

    def label(self, name):
        self.items.append(("l", name))

    def text(self, t):
        self.items.append(("t", t))

    def newlabel(self, p="L"):
        self.uid += 1
        return "%s_%d" % (p, self.uid)

    def walkify(self, start, end, nseg, ret, protect, prefix):
        pos = {x: i for i, (k, x) in enumerate(self.items) if k == "l"}
        i0, i1 = pos[start], pos[end]

        def bad(x):
            if x.cls in ("vmem", "smem") or x.base in ("s_barrier", "s_endpgm", "s_sleep", "s_branch", "s_cbranch_scc0", "s_cbranch_scc1", "s_cbranch_vccnz", "s_cbranch_vccz"):
                return True
            if x.base == "s_waitcnt" and "vmcnt" in x.mods:
                return True
            return bool(x.w & (EXEC | {("s", r) for r in protect}))

        reg = self.items[i0 + 1:i1]
        idx = [j for j, (k, x) in enumerate(reg) if k == "i"]
        runs, cur = [], None
        for n, j in enumerate(idx):
            if bad(reg[j][1]):
                if cur and n - cur[2] <= 3:
                    cur[1], cur[2] = j, n
                else:
                    cur = [j, j, n]
                    runs.append(cur)
        cost = lambda x: 8 if x.cls == "mfma" and x.passes == 8 else 4 if x.cls == "mfma" else 2
        tot = sum(cost(reg[j][1]) for j in idx)
        out, acc, seg, r = [("l", prefix + "0")], 0, 1, 0
        for j, it in enumerate(reg):
            if r < len(runs) and j == runs[r][0]:
                cutp = seg < nseg and acc >= tot * seg / nseg - tot / (3 * nseg)
                lab = prefix + str(seg) if cutp else self.newlabel("WS")
                out.append(("i", Ins("s_cbranch_execz " + (ret if cutp else lab))))
                seg += cutp
            out.append(it)
            if it[0] == "i":
                acc += cost(it[1])
            if r < len(runs) and j == runs[r][1]:
                out.append(("l", lab))
                r += 1
        while seg < nseg:
            out.append(("l", prefix + str(seg)))
            seg += 1
        out.append(("i", Ins("s_cbranch_execz " + ret)))
        self.items[i0 + 1:i1] = out

    def check_branches(self):
        pos = {x: i for i, (k, x) in enumerate(self.items) if k == "l"}
        bad = []
        for i, (k, x) in enumerate(self.items):
            if k != "i" or not (x.base.startswith("s_cbranch") or x.base == "s_branch"):
                continue
            if x.base == "s_cbranch_execz" or x.ops[0].txt.startswith("WK"):
                continue
            tgt = pos[x.ops[0].txt]
            hist, d = [], 0
            for kk, y in reversed(self.items[: i + 1]):
                if kk != "i":
                    continue
                if y is not x and y.base in ("s_branch", "s_endpgm"):
                    break
                hist.append((y, d))
                d += y.states
                if d > 24:
                    break
            fwd = 0
            for kk, c in self.items[tgt:]:
                if kk != "i":
                    continue
                for y, dd in hist:
                    if need(y, c) > dd + fwd:
                        bad.append((y.line, c.line, need(y, c), dd + fwd))
                fwd += c.states
                if fwd > 24 or c.base in ("s_branch", "s_endpgm"):
                    break
        return bad

    def render(self):
        out = []
        for k, x in self.items:
            if k == "i":
                out.append("    " + x.line)
            elif k == "l":
                out.append(x + ":")
            else:
                out.append(x)
        return "\n".join(out) + "\n"

    def maxreg(self, kind):
        m = -1
        for k, x in self.items:
            if k == "i":
                for kk, r in x.r | x.w:
                    if kk == kind and not (kind == "s" and r >= 102):
                        m = max(m, r)
        return m


class Regs:
    def __init__(self, kind, start=0, limit=256):
        self.kind = kind
        self.p = start
        self.limit = limit

    def get(self, n=1, align=None):
        if align is None:
            align = 1 if n == 1 else (2 if self.kind == "v" else (2 if n == 2 else 4))
        self.p = (self.p + align - 1) // align * align
        r = self.p
        self.p += n
        assert self.p <= self.limit, "out of %s registers" % self.kind
        return r

    def mark(self):
        return self.p

    def reset(self, m):
        self.p = m


def v(r, n=1):
    return "v%d" % r if n == 1 else "v[%d:%d]" % (r, r + n - 1)


def s(r, n=1):
    return "s%d" % r if n == 1 else "s[%d:%d]" % (r, r + n - 1)
```

```python
from asmlib import Ins, need as hz

def schedule(lines, emit, pre_lds=(), mf_scale=1.0, lds_lat=120):
    items = []
    at = {}
    for x in lines:
        if isinstance(x, tuple):
            at[len(items)] = x[1]
            x = x[0]
        g = [Ins(y) for y in (x if isinstance(x, list) else [x])]
        r = set().union(*[i.r for i in g]); w = set().union(*[i.w for i in g])
        items.append((g, r, w))
    n = len(items)
    isds = [any(i.cls == "ds" for i in it[0]) for it in items]
    isvm = [any(i.cls == "vmem" for i in it[0]) for it in items]
    ismf = [it[0][0].cls == "mfma" for it in items]
    cost = [sum(8 if (i.cls == "mfma" or i.trans) else 4 for i in it[0]) for it in items]
    preds = [[] for _ in range(n)]
    for j in range(n):
        for i in range(j):
            (gi, ri, wi), (gj, rj, wj) = items[i], items[j]
            lat = None
            if wi & rj:
                if ismf[i]:
                    p = gi[0].passes
                    lat = 4 * p if (ismf[j] and gj[0].srcC == gi[0].w and not (gj[0].srcAB & wi)) else 4 * (p + 5)
                elif isds[i]:
                    lat = lds_lat
                else:
                    lat = cost[i] + (8 if ismf[j] else 4 if gi[-1].trans else 0)
            elif (wi & wj):
                lat = 4 * (gi[0].passes + 5) if ismf[i] else lds_lat if isds[i] else cost[i]
            elif (ri & wj):
                lat = 4 * gi[0].passes if (ismf[i] and gi[0].srcC & wj) else cost[i] + (8 if isvm[i] else 0)
            elif (isds[i] and isds[j]) or (isvm[i] and isvm[j]):
                lat = cost[i]
            if lat is not None:
                preds[j].append((i, lat))
    succ = [[] for _ in range(n)]
    for j in range(n):
        for i, l in preds[j]:
            succ[i].append((j, l))
    prio = [0] * n
    for i in reversed(range(n)):
        prio[i] = cost[i] + max([l + prio[j] - cost[i] for j, l in succ[i]] + [0])
    for j in at:
        prio[j] = 10 ** 6
    issued, done, wr = 0, 0, {}
    ready0 = {}
    for k, y in enumerate(pre_lds):
        issued += 1
        for r in Ins(y).w:
            wr[r] = issued
            ready0[r] = lds_lat - 8 * (len(pre_lds) - k) + 8 * k
    t, pipe, start, left = 0, 0, {}, set(range(n))
    slot, cnt = {}, 0
    while left:
        best = None
        for j in left:
            if any(i in left for i, _ in preds[j]):
                continue
            e = max([t, at.get(j, 0)] + [start[i] + l for i, l in preds[j]] + [ready0.get(r, 0) for r in items[j][1] | items[j][2]])
            if ismf[j]:
                e = max(e, pipe)
            miss = max([hz(items[i][0][-1], items[j][0][0]) - (cnt - slot[i] - 1) for i, _ in preds[j]] + [0])
            e = max(e, t + 4 * miss)
            key = (e > t, e if e > t else 0, 0 if j in at else 1 if ismf[j] else 2, j if ismf[j] else -prio[j], j)
            if best is None or key < best[0]:
                best = (key, j, e)
        _, j, e = best
        g, r, w = items[j]
        need = max([wr.get(x, 0) for x in (r | w)] + [0])
        if need > done:
            c = min(issued - need, 15)
            emit("s_waitcnt lgkmcnt(%d)" % c)
            done = issued - c
            e += 4
            cnt += 1
        cnt += max([hz(items[i][0][-1], g[0]) - (cnt - slot[i] - 1) for i, _ in preds[j]] + [0])
        cnt += len(g)
        slot[j] = cnt - 1
        for i in g:
            emit(i.line)
            if i.cls == "ds":
                issued += 1
                for x in i.w:
                    wr[x] = issued
        start[j] = e
        t = e + cost[j]
        if ismf[j]:
            pipe = e + int(4 * g[0].passes * mf_scale)
        left.remove(j)
    return t
```

```python
import sys
from asmlib import *
from common import wrap

WS_EP = 0x0
WS_GO = 0x1000
WS_NOTE = 0x800
WS_RED = 0x10000
RED_STRIDE = 0x4800
WS_X2S = 0x60000
WS_PART = 0x80000
PLINE = 1152
WS_PQ = 0x200000
WS_X1 = 0x400000
WS_STAMP = 0x1000000
WS_SIZE = 0x10000000
LDS_SIZE = 160 * 1024
TAGC_LO, TAGC_HI = 0x1E3779B1, 0x05EBCA6B
POLL_LIMIT = 1 << 18
M16 = "v_mfma_f32_16x16x32_bf16"
M32 = "v_mfma_f32_32x32x16_bf16"
XB, ZB, WB, TB = 0, 32768, 65536, 131072
RAB = TB + 24576


class G:
    def __init__(self, stamps=False, opt=None):
        self.a = Asm()
        self.stamps = stamps
        self.opt = opt or {}
        self.nst = 0
        self.role = ""

    sW = 3
    sTL, sTH = 6, 7
    sCNT = 12
    pXA, pWQ, pWO, pXB, pWR, pWI, pOUT, pDBG, pWS = 16, 18, 20, 22, 24, 26, 28, 30, 32
    rWS, rOUT, rA, rB, rC = 36, 40, 44, 48, 52
    sST = 72
    LT = [16, 17, 0, 1]

    def stamp(self):
        pr = self.opt.get("probe")
        if pr:
            if "%s:%d" % (self.role, self.nst) in pr.split("+"):
                self.a("s_memrealtime s[76:77]\ns_waitcnt lgkmcnt(0)")
            self.nst += 1
            return
        if not self.stamps:
            return
        k = self.nst
        assert k < 15
        self.a("%s %s\ns_waitcnt lgkmcnt(0)" % ("s_memtime" if self.opt.get("cyc") else "s_memrealtime", s(self.sST + 2 * k, 2)))
        self.nst += 1

    def end(self):
        a = self.a
        if self.opt.get("probe"):
            self.stamp()
            lab = a.newlabel("SPIN")
            a("s_waitcnt lgkmcnt(0)\ns_sub_u32 s76, s76, s72\ns_lshl_b32 s76, s76, 2\ns_add_u32 s76, s76, 2000\ns_min_u32 s76, s76, 20000")
            a.label(lab)
            a("s_memrealtime s[74:75]\ns_waitcnt lgkmcnt(0)\ns_sub_u32 s74, s74, s72\ns_cmp_lt_u32 s74, s76\ns_cbranch_scc1 %s" % lab)
        if self.stamps:
            self.stamp()
            a("s_waitcnt vmcnt(0)")
            self.stamp()
            a("s_mov_b64 exec, 1")
            a("s_lshl3_add_u32 s56, s5, s4\ns_lshl_b32 s56, s56, 3\ns_add_u32 s56, s56, s3\ns_lshl_b32 s56, s56, 6\ns_add_u32 s56, s56, 0x%x" % WS_STAMP)
            a("v_mov_b32 v2, 0")
            for k in range(self.nst):
                a("v_mov_b32 v3, s%d\nbuffer_store_dword v3, v2, %s, s56 offen offset:%d" % (self.sST + 2 * k, s(self.rWS, 4), 4 * k))
            a("v_mov_b32 v3, %d\nbuffer_store_dword v3, v2, %s, s56 offen offset:60" % (self.nst, s(self.rWS, 4)))
        a("s_endpgm")

    def pad_stamps(self, n):
        while (self.stamps or self.opt.get("probe")) and self.nst < n:
            if self.stamps:
                self.a("s_mov_b32 s%d, s%d" % (self.sST + 2 * self.nst, self.sST + 2 * self.nst - 2))
            self.nst += 1

    def srd(self, r, p, size):
        self.a("s_mov_b32 s%d, s%d\ns_mov_b32 s%d, s%d\ns_mov_b32 s%d, 0x%x\ns_mov_b32 s%d, 0x20000" % (r, p, r + 1, p + 1, r + 2, size, r + 3))

    def tags(self):
        t = self.LT
        self.a("""s_add_u32 s8, s8, 0x%x
        s_addc_u32 s9, s9, 0x%x
        s_and_b32 s6, s8, 0xbfffbfff
        s_and_b32 s7, s9, 0xbfffbfff
        s_bitcmp1_b32 s8, 0
        s_cselect_b32 s%d, 0x10001, 0
        s_xor_b32 s%d, s%d, 0x10000
        s_xor_b32 s%d, s%d, 0x10001
        s_xor_b32 s%d, s%d, 1""" % (TAGC_LO, TAGC_HI, t[0], t[1], t[0], t[2], t[0], t[3], t[0]))

    def flip_marks(self):
        for r in self.LT:
            self.a("s_xor_b32 s%d, s%d, 1" % (r, r))

    def mark(self, base, vmask):
        return ["v_and_or_b32 v%d, v%d, v%d, s%d" % (base + e, base + e, vmask, self.LT[e]) for e in range(4)]

    def markcheck(self, base, n, vacc):
        a = self.a
        a("v_xor_b32 v%d, s%d, v%d" % (vacc, self.LT[0], base))
        for i in range(1, n):
            a("v_bitop3_b32 v%d, v%d, v%d, s%d bitop3:0xf6" % (vacc, vacc, base + i, self.LT[i & 3]))
        a("v_and_b32 v%d, 0x10001, v%d" % (vacc, vacc))

    def tagcheck(self, pieces, vacc):
        a = self.a
        for i, p in enumerate(pieces):
            if i == 0:
                a("v_xor_b32 v%d, s%d, v%d" % (vacc, self.sTL, p + 1))
            else:
                a("v_bitop3_b32 v%d, v%d, v%d, s%d bitop3:0xf6" % (vacc, vacc, p + 1, self.sTL))
            a("v_bitop3_b32 v%d, v%d, v%d, s%d bitop3:0xf6" % (vacc, vacc, p + 3, self.sTH))

    def poll(self, issue, check, vacc, first_issued=False):
        a = self.a
        top, done, chk = a.newlabel("POLL"), a.newlabel("DONE"), a.newlabel("CHK")
        a("s_mov_b32 s%d, 0x%x" % (self.sCNT, POLL_LIMIT))
        if first_issued:
            a("s_branch " + chk)
        a.label(top)
        issue()
        if first_issued:
            a.label(chk)
        a("s_waitcnt vmcnt(0)")
        check()
        a("v_cmp_ne_u32 vcc, 0, v%d" % vacc)
        a("s_cbranch_vccz " + done)
        a("s_sleep %d" % self.opt.get("sl", 2))
        a("s_sub_u32 s%d, s%d, 1" % (self.sCNT, self.sCNT))
        a("s_cbranch_scc0 " + top)
        a.label(done)

    def diag_delay(self, name):
        n = self.opt.get(name, 0)
        if n:
            self.a("s_sleep %d" % n)

    def cvt(self, d, x, y):
        self.a("v_cvt_pk_bf16_f32 v%d, %s, %s" % (d, x, y))

    def build(self):
        a = self.a
        a.label("CODE0")
        if self.opt.get("probe"):
            a("s_memrealtime s[72:73]\ns_memrealtime s[76:77]")
            self.nst = 1
        if self.stamps:
            a("%s %s" % ("s_memtime" if self.opt.get("cyc") else "s_memrealtime", s(self.sST, 2)))
            self.nst = 1
        a("""v_lshrrev_b32 v2, 6, v0
        v_and_b32 v1, 63, v0
        s_and_b32 s4, s2, 7
        v_readfirstlane_b32 s3, v2
        s_lshr_b32 s5, s2, 3
        s_cmp_ge_u32 s5, 32
        s_cbranch_scc1 EXIT
        ROT""".replace("ROT", "s_cmp_lt_u32 s5, 24\ns_cbranch_scc1 NOT_B" if self.opt.get("rot", 24) == 0 else "s_sub_u32 s5, s5, 8\ns_cbranch_scc0 NOT_B"))
        n0 = self.nst
        self.b_head()
        a.label("EXIT")
        a("s_endpgm")
        a.label("NOT_B")
        a("s_cmp_ge_u32 s3, 4\ns_cbranch_scc1 LOADER")
        pc = a.newlabel("PC")
        if self.opt.get("pfs", 1):
            a("s_cmp_lg_u32 s3, 0\ns_cbranch_scc1 COMPUTE\ns_getpc_b64 s[56:57]")
            a.label(pc)
            a.items.append(("i", _sym_add("s_mov_b32 s58, ROLE_B-4-%s" % pc)))
            a("v_and_b32 v3, 7, v1\nv_mul_u32_u24 v3, 24, v3\nv_add_lshl_u32 v3, v3, s5, 7\nv_min_u32 v3, s58, v3\nglobal_load_dword v0, v3, s[56:57]\ns_branch COMPUTE")
        else:
            a("s_cmp_eq_u32 s3, 3\ns_cbranch_scc1 COMPUTE\ns_getpc_b64 s[56:57]")
            a.label(pc)
            a.items.append(("i", _sym_add("s_mov_b32 s58, ROLE_B-4-%s" % pc)))
            a("v_lshlrev_b32 v3, 7, v0\nv_min_u32 v3, s58, v3\nglobal_load_dword v0, v3, s[56:57]\ns_branch COMPUTE")
        a.label("LOADER")
        self.loader()
        self.nst = n0
        self.compute()
        self.nst = n0
        self.role_b()
        a.label("CODE_END")
        prot = [0, 1, 3, 4, 5, 60, 61, 70] + list(range(72, 102))
        if self.opt.get("walk", 0) & 1:
            a.walkify("WA_0", "WA_1", 3, "WRET_A", prot, "WKA")
            a.walkify("WL_0", "WL_1", 1, "WRET_A", prot, "WKL")
            a.walkify("WQ_0", "WQ_1", 2, "WRET_A", prot, "WKQ")
            a.walkify("WR_0", "WR_1", 1, "WRET_A", prot, "WKR")
        if self.opt.get("walk", 0) & 2:
            a.walkify("WB_0", "WB_1", 6, "WRET_B", prot, "WKB")
            a.walkify("WC_0", "WC_1", 1, "WRET_C", prot, "WKC")
        bad = a.check_branches()
        assert not bad, bad
        return a

    KARG = "s_load_dwordx16 s[16:31], s[0:1], 0\ns_load_dwordx2 s[32:33], s[0:1], 64"

    def b_head(self):
        a = self.a
        lab = a.newlabel("PC")
        a("s_load_dwordx2 s[44:45], s[0:1], 24")
        a("s_getpc_b64 s[56:57]")
        a.label(lab)
        a.items.append(("i", _sym_add("s_add_u32 s58, s56, TABLE-%s" % lab, 0x8000)))
        a("""s_addc_u32 s59, s57, 0
        v_lshlrev_b32 v2, 4, v1
        s_mul_i32 s66, s3, 3072
        v_add_u32 v7, s66, v2
        s_add_u32 m0, s66, %d
        s_and_b32 s5, s5, 31""" % TB)
        for q in range(3):
            a("global_load_lds_dwordx4 v7, s[58:59] offset:%d" % (q * 1024))
        a("""s_and_b32 s61, s5, 7
        s_lshl3_add_u32 s60, s4, s61
        s_lshl_b32 s62, s3, 7
        s_add_u32 s62, s62, s60
        s_lshl_b32 s62, s62, 10
        s_add_u32 s63, s62, 0x%x
        s_add_u32 s64, s62, 0x%x
        s_add_u32 s65, s62, 0x%x
        s_lshl_b32 s70, s3, 12
        s_mov_b32 m0, s70
        s_mov_b32 s46, 0x200000
        s_mov_b32 s47, 0x20000
        s_waitcnt lgkmcnt(0)""" % (0x100000 - 1024, 0x10000 - 2048, 0x110000 - 3072))
        for q in range(4):
            a("buffer_load_dwordx4 v2, %s, s%d offen offset:%d nt lds" % (s(self.rA, 4), 62 + q, q * 1024))
        a("s_cmp_ge_u32 s3, %d\ns_cbranch_scc1 ROLE_B" % (1 if self.opt.get("pfb", 1) else 2))
        a.items.append(("i", _sym_add("s_add_u32 s56, s56, ROLE_B-%s" % lab)))
        a("s_addc_u32 s57, s57, 0")
        a.items.append(("i", _sym_add("s_mov_b32 s58, CODE_END-4-ROLE_B")))
        if self.opt.get("pfb", 1):
            a("v_and_b32 v3, 15, v1\nv_lshlrev_b32 v3, 3, v3\nv_add_lshl_u32 v3, v3, s61, 7")
        else:
            a("v_lshlrev_b32 v3, 7, v0")
        a("v_min_u32 v3, s58, v3\nglobal_load_dword v0, v3, s[56:57]")
        a("s_branch ROLE_B")

    def loader(self):
        a = self.a
        ws = s(self.rWS, 4)
        self.role = "L"
        vX, vW = 4, 8
        a("""s_load_dwordx4 s[44:47], s[0:1], 0
        s_lshr_b32 s60, s4, 1
        s_and_b32 s63, s5, 3
        s_lshl2_add_u32 s60, s60, s63
        s_bfe_u32 s65, s5, 0x20002
        s_lshr_b32 s66, s5, 4
        s_lshl_b32 s70, s65, s66
        s_add_u32 s70, s70, s63
        s_and_b32 s70, s70, 3
        QREV
        s_sub_u32 s58, s3, 4
        s_lshl2_add_u32 s63, s60, s58
        s_lshl_b32 s63, s63, 15
        v_lshrrev_b32 v2, 3, v1
        v_lshrrev_b32 v3, 4, v1
        v_and_b32 v12, 7, v1
        v_xor_b32 v12, v12, v3
        v_lshl_add_u32 v12, v12, 4, s63
        v_lshl_add_u32 v4, v2, 10, v12
        v_xor_b32 v5, 64, v4
        v_add_u32 v5, 0x1c00, v5
        v_add_u32 v6, 0x3800, v4
        v_add_u32 v7, 0x3800, v5
        s_lshl_b32 s59, s58, 12""".replace("QREV", "s_lshl2_add_u32 s70, s66, s70" if self.opt.get("qrev") else ""))

        def issue_x(c):
            a("s_add_u32 m0, s59, %d" % ((c % 5) * 32768))
            if self.opt.get("rotord"):
                a("s_add_u32 s62, s70, %d\ns_and_b32 s62, s62, 3\ns_or_b32 s62, s62, %d\ns_lshl_b32 s63, s62, 7" % (c & 3, c & 4))
            else:
                a("s_xor_b32 s62, s70, %d\ns_lshl_b32 s63, s62, 7" % c)
            if c == 0:
                a("s_waitcnt lgkmcnt(0)\ns_mov_b64 s[48:49], s[46:47]\ns_mov_b32 s46, 0x200000\ns_mov_b32 s47, 0x20000")
            for j in range(4):
                a("buffer_load_dwordx4 v%d, %s, s63 offen offset:%d lds" % (vX + j, s(self.rA, 4), j * 1024))

        def issue_w(c):
            a("s_add_u32 m0, s59, %d" % ((c % 5) * 32768 + 16384))
            a("s_mul_i32 s64, s62, 0x30000")
            for j in range(4):
                a("buffer_load_dwordx4 v%d, %s, s64 offen offset:%d lds" % (vW + j, s(self.rB, 4), j * 1024))

        def issue(c):
            issue_x(c)
            issue_w(c)

        issue_x(0)
        a(self.KARG)
        a("""s_and_b32 s64, s4, 1
        s_lshl2_add_u32 s61, s64, s65
        s_lshl1_add_u32 s66, s64, s65
        s_lshl_b32 s63, s61, 7
        s_add_u32 s63, s63, 1024
        s_lshl_b32 s64, s66, 8
        s_cmp_ge_u32 s5, 16
        s_cselect_b32 s63, s64, s63
        s_cselect_b32 s64, 7, 10
        v_bfe_u32 v12, v1, 2, 2
        v_xor_b32 v12, v12, v3
        v_lshrrev_b32 v13, 1, v12
        v_lshlrev_b32 v13, s64, v13
        v_and_b32 v14, 1, v12
        v_lshl_add_u32 v13, v14, 6, v13
        v_and_b32 v14, 3, v1
        v_lshl_add_u32 v13, v14, 4, v13
        v_mul_u32_u24 v15, 0xc00, v3
        s_mul_i32 s65, s58, 0xc000
        s_add_u32 s65, s65, s63
        v_add3_u32 v8, v13, v15, s65
        v_add_u32 v9, 0x2c00, v8
        v_add_u32 v10, 0x5800, v8
        v_add_u32 v11, 0x8400, v8
        s_mov_b32 s50, 0x180000
        s_mov_b32 s51, 0x20000""")
        issue_w(0)
        issue_x(1)
        a("s_waitcnt lgkmcnt(0)")
        a("s_load_dwordx2 s[8:9], s[32:33], %d" % WS_EP)
        issue_w(1)
        self.srd(self.rWS, self.pWS, WS_SIZE)
        self.srd(self.rOUT, self.pOUT, 2048 * 2048)
        a("s_waitcnt lgkmcnt(0)")
        self.tags()
        ramp = self.opt.get("ramp", 9)
        groups = [0, 1]
        waitc = lambda c: a("s_waitcnt vmcnt(%d)\ns_barrier" % (8 * (len(groups) - 1 - groups.index(c))))
        c = 0
        while groups[-1] != 7:
            waitc(c)
            if c == 0:
                self.stamp()
            for _ in range(int(str(self.opt.get("sched", "9111111"))[c + 1])):
                groups.append(groups[-1] + 1)
                issue(groups[-1])
            c += 1
        cq, gq = c, list(groups)
        a("s_cmp_ge_u32 s5, 16\ns_cbranch_scc1 QLOADER")
        n0 = self.nst
        WSLOT = [3, 4, 0, 2]
        self.srd(self.rC, self.pWO, 512 * 1024)
        a("""s_and_b32 s68, s5, 3
        s_lshl_b32 s69, s58, 13
        v_lshlrev_b32 v16, 6, v12
        v_lshl_add_u32 v16, v14, 4, v16
        v_lshl_add_u32 v16, v3, 10, v16
        s_lshl_b32 s65, s58, 15
        s_lshr_b32 s66, s5, 2
        s_lshl_b32 s66, s66, 8
        s_add_u32 s65, s65, s66
        v_add_u32 v16, s65, v16
        v_add_u32 v17, 0xc00, v16
        v_add_u32 v18, 0x1800, v16
        v_add_u32 v19, 0x2400, v16""")

        def issue_wo(n, sl=None):
            slot = (WSLOT[n] if sl is None else sl) * 32768
            a("s_add_u32 m0, s69, %d" % slot)
            a("s_xor_b32 s63, s68, %d\ns_lshl_b32 s63, s63, 17" % n)
            for j in range(4):
                a("buffer_load_dwordx4 v%d, %s, s63 offen offset:%d lds" % (16 + j, s(self.rC, 4), j * 1024))
            a("s_add_u32 m0, s69, %d" % (slot + 4096))
            a("s_add_u32 s63, s63, 0x4000")
            for j in range(4):
                a("buffer_load_dwordx4 v%d, %s, s63 offen offset:%d lds" % (16 + j, s(self.rC, 4), j * 1024))

        def read_wo(n, sl=None):
            ad, off = {4: (0, 0), 0: (14, 0), 1: (14, 32768), 3: (15, 32768), 2: (15, 0)}[WSLOT[n] if sl is None else sl]
            for h in range(8):
                r = 128 + 32 * n + 4 * h
                a("ds_read_b64_tr_b16 %s, v%d offset:%d" % (v(r, 2), ad, off + h * 4096))
                a("ds_read_b64_tr_b16 %s, v%d offset:%d" % (v(r + 2, 2), ad, off + h * 4096 + 2048))

        wsched = {self.opt.get("w0", 6): [0]}
        wsched.setdefault(self.opt.get("w1", 7), []).append(1)
        w2late = self.opt.get("w2late", 0)
        if not w2late:
            wsched.setdefault(7, []).append(2)
        for c in range(cq, 8):
            waitc(c)
            if c == 7:
                self.stamp()
            for n in wsched.get(c, []):
                issue_wo(n)
                groups.append("w%d" % n)
        assert len(groups) == 11 - w2late
        a.label("WL_0")
        self.wo_addr()
        self.tail_addr()
        a("s_waitcnt vmcnt(0)")
        self.stamp()
        a("s_barrier")
        if w2late:
            WSLOT[:] = [3, 4, 2, 1]
        if w2late:
            issue_wo(2)
        issue_wo(3)
        self.read_wo = read_wo
        if self.opt.get("wide"):
            for j in range(4):
                a("v_xor_b32 v%d, 0x100, v%d" % (16 + j, 16 + j))
            issue_wo(0, 1)
            for n in range(3):
                read_wo(n)
            a("s_waitcnt vmcnt(0) lgkmcnt(0)\ns_barrier")
            self.stamp()
            if self.opt["wide"] == 1:
                self.w_pqload()
            for n in range(1, 4):
                issue_wo(n, WSLOT[n - 1])
            read_wo(3)
            if self.opt["wide"] == 3:
                self.w_pqload()
                a("s_waitcnt vmcnt(4)")
            if self.opt["wide"] == 2:
                a("s_waitcnt vmcnt(0)")
        else:
            for n in range(3 - w2late):
                read_wo(n)
        a.label("WL_1")
        a("s_branch KV_TAIL")
        self.kv_tail_nst = self.nst
        self.nst = n0
        a.label("QLOADER")
        self.role = "R"
        self.reducer_setup()
        groups = gq
        for c in range(cq, 8):
            a("s_waitcnt vmcnt(%d)\ns_barrier" % (8 * (7 - c)))
        if self.opt.get("prewrite", 1):
            lab = a.newlabel("NOZ")
            a("s_cmp_gt_u32 s71, 8\ns_cbranch_scc1 " + lab)
            a("buffer_store_dwordx4 v[32:35], v21, %s, s67 offen sc1" % ws)
            a.label(lab)
        lab = a.newlabel("PC")
        a("s_getpc_b64 s[56:57]")
        a.label(lab)
        a.items.append(("i", _sym_add("s_add_u32 s56, s56, TABLE-%s" % lab, 0x8000)))
        a("s_addc_u32 s57, s57, 0\nv_lshlrev_b32 v2, 4, v1\nv_add_u32 v3, s59, v2\ns_add_u32 m0, s59, %d" % TB)
        for q in range(4):
            a("global_load_lds_dwordx4 v3, s[56:57] offset:%d" % (q * 1024))
        self.ra_inv(1, 84)
        a("ds_write_b64 v90, v[88:89]")
        a("s_waitcnt vmcnt(0) lgkmcnt(0)\ns_barrier")
        self.stamp()
        self.reducer()

    def ra_inv(self, half, t):
        self.a("""v_and_b32 v{0}, 7, v1
        v_lshlrev_b32 v{0}, 6, v{0}
        s_add_u32 s62, s60, {h}
        v_add_u32 v{0}, s62, v{0}
        v_cvt_f32_u32 v{0}, v{0}
        v_mul_f32 v{0}, {c1}, v{0}
        s_lshr_b32 s62, s3, 1
        s_and_b32 s15, s3, 1
        s_lshl2_add_u32 s14, s62, s15
        s_lshl_b32 s14, s14, 1
        v_lshrrev_b32 v{1}, 5, v1
        v_lshl_add_u32 v{1}, v{1}, 2, s14
        v_cvt_f32_u32 v{1}, v{1}
        v_bfe_u32 v{2}, v1, 3, 1
        v_cvt_f32_u32 v{2}, v{2}
        v_mul_f32 v{2}, {c2}, v{2}
        v_fma_f32 v{1}, v{1}, v{0}, v{2}
        v_lshlrev_b32 v{2}, 27, v1
        v_and_b32 v{2}, 0x80000000, v{2}
        v_or_b32 v{2}, {c3}, v{2}
        v_add_f32 v{3}, v{1}, v{2}
        v_sub_f32 v{2}, v{0}, v{2}
        v_add_f32 v{2}, v{1}, v{2}
        v_cos_f32 v{0}, v{3}
        v_sin_f32 v{3}, v{3}
        v_cos_f32 v{1}, v{2}
        v_sin_f32 v{2}, v{2}
        s_lshl_b32 s62, s62, 10
        s_lshl3_add_u32 s62, s15, s62
        s_add_u32 s62, s62, {rab}
        v_add_u32 v{6}, s62, v2
        v_cvt_pk_bf16_f32 v{4}, v{0}, -v{3}
        v_cvt_pk_bf16_f32 v{5}, v{1}, -v{2}""".format(*[t + i for i in range(7)], h=512 * half, c1=fhex(1 / 2048), c2=fhex(-0.25),
                                                      c3=fhex(0.125), rab=RAB))

    def reducer_setup(self):
        a = self.a
        a("""s_lshl3_add_u32 s60, s4, s5
        s_sub_u32 s60, s60, 16
        s_lshr_b32 s61, s60, 2
        s_and_b32 s71, s60, 3
        s_lshl2_add_u32 s71, s58, s71
        s_mul_i32 s63, s61, %d
        s_lshl_b32 s64, s71, 7
        s_add_u32 s63, s63, s64
        s_add_u32 s63, s63, 0x%x
        s_mul_i32 s67, s61, %d
        s_add_u32 s67, s67, s64
        s_add_u32 s67, s67, 0x%x
        s_add_u32 s64, s63, %d
        s_add_u32 s65, s63, %d
        s_add_u32 s66, s63, %d""" % (32 * PLINE, WS_PART, PLINE, WS_RED, 8 * PLINE, 16 * PLINE, 24 * PLINE))
        a("""v_lshrrev_b32 v2, 3, v1
        v_and_b32 v3, 7, v1
        v_lshlrev_b32 v3, 4, v3
        v_mov_b32 v22, %d
        v_mad_u32_u24 v20, v2, v22, v3
        v_mov_b32 v22, 0x%x
        v_mad_u32_u24 v21, v2, v22, v3""" % (PLINE, RED_STRIDE))
        a("""v_and_b32 v2, 1, v1
        v_lshlrev_b32 v2, 4, v2
        v_mov_b32 v3, 0x3f80
        v_lshlrev_b32 v3, v2, v3
        v_and_b32 v2, 2, v1
        v_cmp_eq_u32 vcc, 0, v2
        v_mov_b32 v24, 0
        v_mov_b32 v25, 0
        v_mov_b32 v28, 0
        v_mov_b32 v29, 0
        v_cndmask_b32 v26, 0, v3, vcc
        v_cndmask_b32 v27, v3, v25, vcc
        v_mov_b32 v32, 0xfffefffe
        v_mov_b32 v33, 0
        v_mov_b32 v34, 0
        v_mov_b32 v35, 0""")

    def reducer(self):
        a = self.a
        ws = s(self.rWS, 4)
        D, acc, vacc, o = 40, 72, 80, 36
        lab = a.newlabel("NORED")
        n0 = self.nst
        self.pad_stamps(9)
        self.nst = n0
        a("s_cmp_gt_u32 s71, 8\ns_cbranch_scc1 HELPER")
        a.label("WR_0")
        self.diag_delay("d_part")
        self.poll(lambda: [a("buffer_load_dwordx4 %s, v20, %s, s%d offen sc1" % (v(D + 4 * i, 4), ws, 63 + i)) for i in range(4)],
                  lambda: self.markcheck(D, 16, vacc), vacc)
        self.stamp()
        for i in range(4):
            for h in range(2):
                a("%s %s, %s, %s, %s" % (M16, v(acc + 4 * h, 4), v(26 - 2 * h, 4), v(D + 4 * i, 4), v(acc + 4 * h, 4) if i else "0"))
        for r in range(8):
            a("v_add_f32_dpp v%d, v%d, v%d row_ror:8 row_mask:0xf bank_mask:0xf" % (56 + r, acc + r, acc + r))
        for j in range(4):
            self.cvt(o + j, v(56 + 2 * j), v(57 + 2 * j))
        for x in self.mark(o, 32):
            a(x)
        a("buffer_store_dwordx4 %s, v21, %s, s67 offen sc1" % (v(o, 4), ws))
        a.label("WR_1")
        self.stamp()
        self.pad_stamps(9)
        a("s_branch HELPER")

    def lds_reset(self):
        self.lq_issued = 0
        self.lq_done = 0

    def lds(self, line):
        self.a(line)
        self.lq_issued += 1
        return self.lq_issued

    def lds_wait(self, seq):
        if seq > self.lq_done:
            n = min(self.lq_issued - seq, 15)
            self.a("s_waitcnt lgkmcnt(%d)" % n)
            self.lq_done = self.lq_issued - n

    @staticmethod
    def cost(line):
        m = line.split()[0]
        if m == "MARK":
            return 0
        if m.startswith(("v_exp", "v_rcp", "v_sin", "v_cos")):
            return 8
        return 4

    def run_mfmas(self, mf, frags, pool, fillers, budget=24, maxread=2, maxout=14, hooks=None):
        a = self.a
        order = []
        last = {}
        for j, (_, ids) in enumerate(mf):
            for i in ids:
                if i not in last:
                    order.append(i)
                last[i] = j
        pool = list(pool)
        reg, seq = {}, {}
        rp = [0, 0]
        q = []

        def one_read():
            i = order[rp[0]]
            reads, pre = frags[i]
            if rp[1] == 0:
                if not pool:
                    return False
                if pre:
                    pre()
                reg[i] = pool.pop(0)
            sq = self.lds(reads[rp[1]].format(r=v(reg[i], 4), lo=v(reg[i], 2), hi=v(reg[i] + 2, 2)))
            rp[1] += 1
            if rp[1] == len(reads):
                seq[i] = sq
                rp[0] += 1
                rp[1] = 0
            return True

        while rp[0] < len(order) and self.lq_issued - self.lq_done < maxout - 2 and pool and not (rp[0] and frags[order[rp[0]]][1]):
            one_read()
        for j, (fmt, ids) in enumerate(mf):
            for i in ids:
                while i not in seq:
                    assert one_read()
            if ids:
                self.lds_wait(max(seq[i] for i in ids))
            a(fmt.format(*[v(reg[i], 4) for i in ids]))
            for i in ids:
                if last[i] == j:
                    pool.append(reg[i])
            if hooks and j in hooks:
                hooks[j]()
            b = budget
            k = 0
            while k < maxread and rp[0] < len(order) and self.lq_issued - self.lq_done < maxout:
                gate = frags[order[rp[0]]]
                if rp[1] == 0 and len(gate) > 2 and gate[2]() is False:
                    break
                if not one_read():
                    break
                k += 1
                b -= 4
            q += fillers.get(j, [])
            while q and b >= self.cost(q[0]):
                if self.opt.get("upf", 1) and q[0].startswith("v_pk_"):
                    q[0:1] = unpack_pk(q[0])
                x = q.pop(0)
                b -= self.cost(x)
                self.emit_filler(x)
            self.fq = q
        return q

    def emit_filler(self, x):
        if x == "MARK":
            pass
        elif x.startswith("ds_"):
            self.last_fill_lds = self.lds(x)
        elif x.startswith("WAITLDS"):
            self.lds_wait(self.last_fill_lds - int(x.split()[1]))
        else:
            self.a(x)

    def gemm_loop(self, acc, pool, ax, aw, xfirst, fill, Z, hooks=None):
        a = self.a
        frags, mf = {}, []
        seen = set()

        def fx(n, mb, tag):
            c, ks = n >> 2, n & 3
            slot = c % 5
            hi, so = slot >> 1, (slot & 1) * 32768
            pre = None
            if ("x", n, mb, tag) in frags:
                return ("x", n, mb, tag)
            if c not in seen:
                seen.add(c)
                pre = (lambda: a("s_barrier")) if c else None
            frags[("x", n, mb, tag)] = (["ds_read_b128 {r}, v%d offset:%d" % (ax[hi][ks], so + 4096 * mb)], pre)
            return ("x", n, mb, tag)

        def fw(n, nb):
            c, ks = n >> 2, n & 3
            slot = c % 5
            hi, so = slot >> 1, (slot & 1) * 32768 + 16384 + ks * 4096
            frags[("w", n, nb)] = (["ds_read_b64_tr_b16 {lo}, v%d offset:%d" % (aw[hi][nb], so),
                                    "ds_read_b64_tr_b16 {hi}, v%d offset:%d" % (aw[hi][nb], so + 1024)], None)
            return ("w", n, nb)

        def add(n, nbs, tag):
            X = [fx(n, 0, tag), fx(n, 1, tag)]
            for nb in nbs:
                W = fw(n, nb)
                for mb in range(2):
                    d = v(acc[mb][nb], 16)
                    mf.append(("v_mfma_f32_32x32x16_bf16 %s, %s, %s" % (d, "{0}, {1}" if xfirst else "{1}, {0}", d if n else "0"), [X[mb], W]))

        for n in range(32 - Z):
            add(n, (0, 1), 0)
        for n in range(32 - Z, 32):
            add(n, (0,), 0)
        j0 = len(mf)
        for n in range(32 - Z, 32):
            add(n, (1,), 0 if self.opt.get("keepx", 1) else 1)
        a("s_barrier")
        self.stamp()
        self.lds_reset()
        return self.run_mfmas(mf, frags, pool, {j0 + 1: fill}, hooks=hooks)

    def phi(self, src, dst, tmp, n):
        L = []
        for g in range(0, n, 8):
            for j in range(0, 8, 2):
                L.append("v_pk_mul_f32 %s, %s, s[56:57]" % (v(tmp + j, 2), v(src + g + j, 2)))
            for j in range(8):
                L.append("v_exp_f32_e64 v%d, v%d clamp" % (tmp + j, tmp + j))
                L.append("v_max_f32 v%d, s58, v%d" % (src + g + j, src + g + j))
            for j in range(0, 8, 2):
                L.append("v_pk_add_f32 %s, %s, %s" % (v(tmp + j, 2), v(tmp + j, 2), v(src + g + j, 2)))
            for j in range(0, 8, 2):
                L.append("v_cvt_pk_bf16_f32 v%d, v%d, v%d" % (dst + (g + j) // 2, tmp + j, tmp + j + 1))
        return L

    def compute(self):
        a = self.a
        ws = s(self.rWS, 4)
        a.label("COMPUTE")
        self.role = "K"
        if self.opt.get("walk", 0) & 1:
            a("""s_mov_b64 exec, 0
            s_cmp_ge_u32 s5, 16
            s_cbranch_scc1 WKQ
            s_cmp_eq_u32 s3, 0
            s_cbranch_scc1 WKA0
            s_cmp_eq_u32 s3, 1
            s_cbranch_scc1 WKA1
            s_cmp_eq_u32 s3, 2
            s_cbranch_scc1 WKA2
            s_branch WKL0""")
            a.label("WKQ")
            a("""s_cmp_eq_u32 s3, 0
            s_cbranch_scc1 WKQ0
            s_cmp_eq_u32 s3, 1
            s_cbranch_scc1 WKQ1
            s_cmp_eq_u32 s3, 2
            s_cbranch_scc1 WKR0
            s_branch WKC0""" if self.opt.get("walk", 0) & 2 else "s_cmp_eq_u32 s3, 0\ns_cbranch_scc1 WKQ0\ns_cmp_eq_u32 s3, 1\ns_cbranch_scc1 WKQ1\ns_branch WKR0")
            a.label("WRET_A")
            a("s_mov_b64 exec, -1\ns_waitcnt lgkmcnt(0)\ns_nop 15")
        ax = [[240, 241, 242, 243], [244, 245, 246, 247], [252, 253, 254, 255]]
        aw = [[248, 249], [250, 251], [146, 147]]
        a("""s_lshr_b32 s60, s4, 1
        s_and_b32 s68, s5, 3
        s_lshl2_add_u32 s60, s60, s68
        s_and_b32 s64, s4, 1
        s_bfe_u32 s65, s5, 0x20002
        s_lshl2_add_u32 s61, s64, s65
        s_lshl1_add_u32 s66, s64, s65
        s_lshr_b32 s63, s3, 1
        s_and_b32 s64, s3, 1
        s_lshr_b32 s67, s5, 4
        s_lshl_b32 s69, s64, s67
        s_movk_i32 s70, 128
        s_lshr_b32 s70, s70, s67
        s_cmp_ge_u32 s5, 16
        s_cselect_b32 s61, s66, s61
        s_mov_b32 s10, 0xffff0000
        s_mov_b32 s11, 0xffff0000""")
        a(self.KARG)
        a("""v_and_b32 v2, 31, v1
        v_lshlrev_b32 v2, 7, v2
        s_lshl_b32 s65, s63, 13
        v_add_u32 v2, s65, v2
        v_lshrrev_b32 v3, 5, v1
        v_bfe_u32 v16, v1, 1, 3
        v_xor_b32 v16, v16, v3
        v_lshl_add_u32 v240, v16, 4, v2
        v_xor_b32 v241, 32, v240
        v_xor_b32 v242, 64, v240
        v_xor_b32 v243, 96, v240""")
        a("""v_bfe_u32 v16, v1, 2, 2
        v_lshl_add_u32 v17, v3, 3, v16
        v_xor_b32 v16, s69, v16
        v_lshlrev_b32 v16, 6, v16
        v_lshl_add_u32 v16, v17, 8, v16
        v_bfe_u32 v17, v1, 4, 1
        v_lshl_add_u32 v16, v17, 5, v16
        v_and_b32 v17, 3, v1
        v_lshl_add_u32 v248, v17, 3, v16
        v_xor_b32 v249, s70, v248""")
        for k in range(4):
            a("v_add_u32 v%d, 0x10000, v%d" % (244 + k, 240 + k))
            a("v_add_u32 v%d, 0x20000, v%d" % (252 + k, 240 + k))
        a("v_add_u32 v250, 0x10000, v248\nv_add_u32 v251, 0x10000, v249\nv_add_u32 v146, 0x20000, v248\nv_add_u32 v147, 0x20000, v249")
        a("s_waitcnt lgkmcnt(0)")
        a("s_load_dwordx2 s[8:9], s[32:33], %d" % WS_EP)
        self.srd(self.rWS, self.pWS, WS_SIZE)
        self.srd(self.rOUT, self.pOUT, 2048 * 2048)
        a("s_mov_b32 s56, %s\ns_mov_b32 s57, %s\ns_mov_b32 s58, %s" % (fhex(1.4426950408889634), fhex(1.4426950408889634), fhex(1e-6)))
        a("v_lshlrev_b32 v2, 4, v1")
        acc = [[64, 96], [80, 112]]
        pool = list(range(16, 64, 4))
        Z = self.opt.get("z", 6)
        CN = 252
        a("s_cmp_ge_u32 s5, 16\ns_cbranch_scc1 QCOMPUTE")
        n0 = self.nst
        a("""s_lshl1_add_u32 s59, s61, s64
        s_lshl_b32 s59, s59, 5
        s_lshl1_add_u32 s66, s60, s63
        s_add_u32 s59, s59, s66
        s_mul_i32 s59, s59, %d
        s_add_u32 s59, s59, 0x%x""" % (PLINE, WS_PART))
        P0, P1, PZ, ONES, zaddr = 128, 132, 136, 140, 144
        pk, vv, tmp, D, D2 = 180, 196, 212, 148, 164
        for j in range(4):
            a("v_mov_b32 v%d, 0x3f803f80" % (ONES + j))

        def prewrite():
            a("buffer_store_dwordx4 %s, v2, %s, s59 offen sc1" % (v(ONES, 4), ws))
            a("s_mov_b64 exec, 0xff")
            a("buffer_store_dwordx4 %s, v2, %s, s59 offen offset:1024 sc1" % (v(ONES, 4), ws))
            a("s_mov_b64 exec, -1")

        pw = self.opt.get("prewrite", 1)
        if pw == 1:
            prewrite()
        a("""v_lshrrev_b32 v3, 4, v1
        v_and_b32 v145, 1, v1
        v_lshl_add_u32 v4, v3, 1, v145
        v_lshlrev_b32 v%d, 4, v4
        v_mov_b32 v145, 0xfffefffe
        s_mov_b32 s60, 0x00030003
        s_mov_b32 s61, 0x00030003""" % zaddr)
        self.tail_addr()
        a("s_waitcnt lgkmcnt(0)")
        self.tags()
        K0, K1, V0, V1 = acc[0][0], acc[1][0], acc[0][1], acc[1][1]
        fill = []
        for i, src in enumerate((K0, K0 + 8, K1, K1 + 8)):
            fill += self.phi(src, pk + 4 * i, tmp, 8) + ["MARK"]
        hooks = {100: lambda: a("s_waitcnt vmcnt(0)")}
        if pw > 1:
            hooks[pw] = prewrite
        big = list(range(148, 180, 4)) + list(range(220, 240, 4)) if self.opt.get("keepx", 1) else []
        hooks[128 - 2 * Z] = lambda: a.label("WA_0")
        rest = self.gemm_loop(acc, pool + big, ax, aw, True, fill, Z, hooks)
        self.stamp()
        ndone = 4 - rest.count("MARK")
        vsrc = (V0, V0 + 8, V1, V1 + 8)
        vcvt = lambda i: ["v_cvt_pk_bf16_f32 v%d, v%d, v%d" % (vv + 4 * i + j, vsrc[i] + 2 * j, vsrc[i] + 2 * j + 1) for j in range(4)]
        mD = lambda i: "%s %s, %s, %s, %s" % (M32, v(D, 16), v(pk + 4 * i, 4), v(vv + 4 * i, 4), v(D, 16) if i else "0")
        mZ = lambda i: "%s %s, %s, %s, %s" % (M32, v(D2, 16), v(pk + 4 * i, 4), v(ONES, 4), v(D2, 16) if i else "0")
        pend = [x for i in range(ndone) for x in ([mZ(i)], vcvt(i) + [mD(i)])]
        g, gap = ndone, 0
        for k, x in enumerate(rest):
            if x == "MARK":
                pend += [[mZ(g)], vcvt(g) + [mD(g)]]
                g += 1
                continue
            run = 0
            while k + run < len(rest) and rest[k + run].startswith(("v_exp", "v_max")):
                run += 1
            if pend and run >= 5 and gap <= 0:
                for y in pend.pop(0):
                    a(y)
                gap = 5
            a(x)
            gap -= 1
        cv = [y for it in pend for y in it if y.startswith("v_cvt")]
        zs = [y for it in pend for y in it if y.startswith("v_mfma") and v(ONES, 4) in y]
        ds = [y for it in pend for y in it if y.startswith("v_mfma") and v(ONES, 4) not in y]
        for y in cv[:4] + zs + cv[4:] + ds:
            a(y)
        for src, p in ((D2, PZ), (D, P0)):
            for j in range(4):
                self.cvt(p + j, v(src + 2 * j), v(src + 2 * j + 1))
            a("s_mov_b64 exec, s[10:11]")
            for j in range(4):
                self.cvt(p + j, v(src + 8 + 2 * j), v(src + 9 + 2 * j))
            a("s_mov_b64 exec, %s" % ("s[60:61]" if p == PZ else "-1"))
            for x in self.mark(p, 145):
                a(x)
            if p == PZ:
                a("buffer_store_dwordx4 %s, v%d, %s, s59 offen offset:1024 sc1" % (v(PZ, 4), zaddr, ws))
                a("s_mov_b64 exec, -1")
            else:
                a("buffer_store_dwordx4 %s, v2, %s, s59 offen sc1" % (v(p, 4), ws))
        self.stamp()
        a("s_barrier")
        if self.opt.get("wide"):
            self.wo_addr()
            if self.opt["wide"] == 1:
                a("s_waitcnt vmcnt(0)")
            a("s_barrier")
            self.stamp()
            if self.opt["wide"] == 1:
                self.w_pqload()
            self.read_wo(0, 1)
            assert self.nst == self.kv_tail_nst
            self.wide_tail()
        else:
            assert self.nst == self.kv_tail_nst
            self.kv_tail()
        a.label("WA_1")
        a("s_endpgm")
        self.nst = n0
        a.label("QCOMPUTE")
        a.unpk = False
        self.role = "Q"
        a("""s_lshl1_add_u32 s66, s60, s63
        s_lshl2_add_u32 s66, s66, s61
        s_lshl1_add_u32 s66, s66, s64
        s_lshl_b32 s65, s66, 13
        s_add_u32 s65, s65, 0x%x
        s_add_u32 s67, s65, 0x1000
        v_mov_b32 v4, 0xfffefffe
        s_lshl3_add_u32 s60, s4, s5
        s_sub_u32 s60, s60, 16""" % WS_PQ)
        self.ra_inv(1, 8)
        a("s_waitcnt lgkmcnt(0)")
        self.tags()

        def qpost(nb):
            L = []
            for mb in range(2):
                for h in range(2):
                    d = 128 + 16 * nb + 8 * mb + 4 * h
                    L += self.phi(acc[mb][nb] + 8 * h, d, 212, 8) + self.mark(d, 4)
                    L.append("buffer_store_dwordx4 %s, v2, %s, s%d offen offset:%d sc1" % (v(d, 4), ws, 67 if nb else 65, (h * 2 + mb) * 1024))
            return L

        big = list(range(160, 212, 4)) if self.opt.get("keepx", 1) else []
        rest = self.gemm_loop(acc, pool + big, ax, aw, False, qpost(0), self.opt.get("zq", 6), {100: lambda: a("s_waitcnt vmcnt(0)"), 128 - 2 * self.opt.get("zq", 6): lambda: a.label("WQ_0")})
        self.stamp()
        a("ds_write_b64 v14, v[12:13]")
        for x in rest + qpost(1):
            a(x)
        a.label("WQ_1")
        a("s_waitcnt vmcnt(%d) lgkmcnt(0)\ns_barrier" % self.opt.get("qdr", 0))
        self.stamp()
        self.pad_stamps(9)
        a.label("HELPER")
        a("s_lshl_b32 s62, s60, 7\ns_add_u32 s62, s62, 0x%x\ns_movk_i32 s34, 512" % WS_GO)
        self.flip_marks()
        a("s_branch B3_ENTRY")

    def wo_addr(self):
        a = self.a
        a("s_and_b32 s63, s3, 3")
        a("""v_bfe_u32 v14, v1, 2, 2
        v_lshrrev_b32 v15, 5, v1
        v_lshl_add_u32 v15, v15, 2, v14
        v_xor_b32 v14, s63, v14
        v_lshlrev_b32 v14, 6, v14
        v_lshl_add_u32 v14, v15, 8, v14
        v_and_b32 v15, 1, v1
        v_lshl_add_u32 v14, v15, 5, v14
        v_bfe_u32 v15, v1, 4, 1
        v_lshl_add_u32 v14, v15, 4, v14
        v_bfe_u32 v15, v1, 1, 1
        v_lshl_add_u32 v14, v15, 3, v14
        v_add_u32 v15, 0x10000, v14
        v_add_u32 v0, 0x20000, v14""")

    def tail_addr(self):
        a = self.a
        a("""v_lshlrev_b32 v2, 4, v1
        s_and_b32 s65, s5, 3
        s_lshl2_add_u32 s65, s4, s65
        s_lshl3_add_u32 s66, s65, s3
        s_lshl_b32 s67, s66, 13
        s_add_u32 s67, s67, 0x%x
        s_mul_i32 s70, s3, %d
        s_mul_i32 s71, s4, 0x%x
        s_add_u32 s70, s70, s71
        s_add_u32 s70, s70, 0x%x
        s_add_u32 s71, s70, %d
        v_lshrrev_b32 v8, 4, v1
        v_xor_b32 v8, 1, v8
        v_and_b32 v9, 1, v1
        v_lshl_add_u32 v8, v8, 1, v9
        v_lshlrev_b32 v8, 4, v8
        s_lshl_b32 s63, s3, 12
        v_add_u32 v13, s63, v2
        s_mov_b32 s10, 0xffff0000
        s_mov_b32 s11, 0xffff0000""" % (WS_PQ, 2 * PLINE, RED_STRIDE, WS_RED, PLINE))
        if self.opt.get("wide"):
            a("s_bfe_u32 s63, s5, 0x10002\ns_lshl_b32 s63, s63, 10\ns_add_u32 s67, s67, s63\ns_add_u32 s71, s67, 0x1000")

    def w_pqload(self):
        for i in range(4):
            self.a("buffer_load_dwordx4 %s, v2, %s, s%d offen offset:%d sc1" % (v(32 + 4 * i, 4), s(self.rWS, 4), 71 if i >= 2 else 67, (i & 1) * 2048))

    def wide_tail(self):
        a = self.a
        ws = s(self.rWS, 4)
        a.label("KV_TAIL")
        WO, PQ, RD, OP, AC = 128, 32, 48, 16, 64
        a("""s_mov_b32 s58, %s
        s_lshl_b32 s63, s5, 13
        s_and_b32 s64, s63, 0x6000
        s_add_u32 s64, s64, 0x8000
        v_add_u32 v4, s64, v2
        v_xor_b32 v5, 0x2000, v4
        v_xor_b32 v6, 0x4000, v4
        v_xor_b32 v7, 0x6000, v4
        s_lshl_b32 s63, s3, 11
        s_add_u32 s63, s63, 0x10000
        v_and_b32 v10, 31, v1
        v_bfe_u32 v11, v1, 1, 2
        v_lshrrev_b32 v9, 5, v1
        v_lshlrev_b32 v9, 1, v9
        v_xor_b32 v11, v11, v9
        v_lshlrev_b32 v11, 4, v11
        v_lshl_add_u32 v10, v10, 6, v11
        v_add_u32 v10, s63, v10
        v_bfe_u32 v9, v1, 3, 2
        v_lshlrev_b32 v9, 4, v9
        v_xor_b32 v9, v9, v2
        v_add_u32 v9, s63, v9
        v_lshrrev_b32 v3, 2, v1
        v_and_b32 v11, 3, v1
        v_lshlrev_b32 v11, 4, v11
        v_lshl_add_u32 v3, v3, 11, v11
        v_xor_b32 v11, 16, v10
        s_lshr_b32 s63, s5, 2
        s_and_b32 s64, s63, 1
        s_lshl1_add_u32 s65, s65, s64
        s_lshl_b32 s65, s65, 16
        s_lshl_b32 s63, s63, 2
        s_xor_b32 s63, s63, s3
        s_xor_b32 s63, s63, 4
        s_lshl_b32 s63, s63, 6
        s_add_u32 s64, s65, s63
        s_add_u32 s65, s64, 0x8000""" % fhex(1e-6))
        wd = self.opt["wide"]
        if wd == 1:
            self.poll(self.w_pqload, lambda: self.markcheck(PQ, 16, 12), 12, first_issued=True)
        a("s_waitcnt lgkmcnt(0)\ns_barrier")
        self.stamp()
        if wd == 2:
            self.w_pqload()
        if wd == 3:
            lab = a.newlabel("NOPQ")
            a("s_cmp_ge_u32 s3, 4\ns_cbranch_scc1 " + lab)
            self.w_pqload()
            a.label(lab)

        def issue():
            for pi in range(2):
                a("buffer_load_dwordx4 %s, v2, %s, s70 offen offset:%d sc1" % (v(RD + 8 * pi, 4), ws, pi * PLINE))
                a("buffer_load_dwordx4 %s, v8, %s, s70 offen offset:%d sc1" % (v(RD + 8 * pi + 4, 4), ws, pi * PLINE + 1024))

        self.diag_delay("d_red")
        issue()
        lab = a.newlabel("NOWO")
        a("s_cmp_ge_u32 s3, 4\ns_cbranch_scc1 " + lab)
        for n, sl in ((1, 3), (2, 4), (3, 0)):
            self.read_wo(n, sl)
        a.label(lab)
        if wd != 1:
            self.poll(self.w_pqload, lambda: self.markcheck(PQ, 16, 12), 12, first_issued=True)
        self.poll(issue, lambda: self.markcheck(RD, 16, 12), 12, first_issued=True)
        self.stamp()

        def sel(i):
            b = RD + 8 * (i >> 1)
            for j in range(4):
                x, y = (b + j, b + 4 + j) if i & 1 == 0 else (b + 4 + j, b + j)
                a("v_cndmask_b32 v%d, v%d, v%d, s[10:11]" % (OP + 4 * i + j, x, y))

        mf = lambda i: a("%s %s, %s, %s, 0" % (M32, v(AC + 16 * i, 16), v(OP + 4 * i, 4), v(PQ + 4 * i, 4)))
        sel(0)
        sel(1)
        mf(0)
        sel(2)
        mf(1)
        sel(3)
        mf(2)
        for i in range(4):
            d = AC + 16 * i
            num, den = (d, d + 8) if i & 1 == 0 else (d + 8, d)
            if i == 0:
                mf(3)
            a("v_add_f32 v%d, s58, v%d\nv_rcp_f32 v%d, v%d" % (den, den, den, den))
            for j in range(0, 8, 2):
                a("v_pk_mul_f32 %s, %s, %s op_sel_hi:[1,0]" % (v(num + j, 2), v(num + j, 2), v(den, 2)))
            for j in range(4):
                self.cvt(den + 4 + j, v(num + 2 * j), v(num + 2 * j + 1))
            a("ds_write_b128 v13, %s offset:%d" % (v(den + 4, 4), 32768 + i * 1024))
        a("s_waitcnt lgkmcnt(0)\ns_barrier")
        self.stamp()
        frags, mfl = {}, []
        d = v(AC, 16)
        for h in range(32):
            frags[h] = (["ds_read_b128 {r}, v%d offset:%d" % (4 + (h >> 3), (h & 7) * 1024)], None)
            mfl.append(("%s %s, %s, {0}, %s" % (M32, d, v(WO + 4 * h, 4), d if h else "0"), [h]))
        self.lds_reset()
        self.run_mfmas(mfl, frags, list(range(16, 48, 4)), {}, maxread=1)
        fl = self.opt.get("outflag", "sc1")
        t = AC + 16
        for j in range(8):
            self.cvt(t + j, v(AC + 2 * j), v(AC + 2 * j + 1))
        a("ds_write_b128 v10, %s\nds_write_b128 v11, %s" % (v(t, 4), v(t + 4, 4)))
        a("ds_read_b128 %s, v9\nds_read_b128 %s, v9 offset:1024" % (v(t + 8, 4), v(t + 12, 4)))
        for k in range(2):
            a("s_waitcnt lgkmcnt(%d)" % (1 - k))
            a("buffer_store_dwordx4 %s, v3, %s, s%d offen %s" % (v(t + 8 + 4 * k, 4), s(self.rOUT, 4), 64 + k, fl))
        lab = a.newlabel("NOEP")
        a("s_or_b32 s56, s4, s3\ns_or_b32 s56, s56, s5\ns_cbranch_scc1 " + lab)
        self.poll(lambda: a("buffer_load_dwordx2 v[6:7], off, %s, 0 offset:%d sc1" % (ws, WS_NOTE)),
                  lambda: a("v_xor_b32 v12, s6, v6\nv_bitop3_b32 v12, v12, v7, s7 bitop3:0xf6"), 12)
        a("v_mov_b32 v6, s8\nv_mov_b32 v7, s9\ns_mov_b64 exec, 1")
        a("buffer_store_dwordx2 v[6:7], off, %s, 0 offset:%d" % (ws, WS_EP))
        a("s_mov_b64 exec, -1")
        a.label(lab)
        self.end()

    def kv_tail(self):
        a = self.a
        ws = s(self.rWS, 4)
        a.label("KV_TAIL")
        a.unpk = bool(self.opt.get("unpk", 2) & 2)
        WO, PQ, RD, OP, AC = 128, 16, 48, 80, 96
        a("s_waitcnt vmcnt(0)")
        a("s_add_u32 s68, s67, 0x1000\ns_mov_b32 s58, %s" % fhex(1e-6))
        pqload = lambda: [a("buffer_load_dwordx4 %s, v2, %s, s%d offen offset:%d sc1" % (v(PQ + 4 * i, 4), ws, 68 if i >= 4 else 67, (i & 3) * 1024)) for i in range(8)]
        self.diag_delay("d_pq")
        pql = self.opt.get("pqlate", 1)
        if pql != 1:
            pqload()
        if pql == 2:
            self.stamp()
            self.poll(pqload, lambda: self.markcheck(PQ, 32, 12), 12, first_issued=True)
        a("s_waitcnt lgkmcnt(0)\ns_barrier")
        self.stamp()
        if pql == 1:
            pqload()
        lab = a.newlabel("NOWO")
        a("s_cmp_lt_u32 s3, 4\ns_cbranch_scc1 " + lab)
        if self.opt.get("w2late", 0):
            self.read_wo(2)
        self.read_wo(3)
        a.label(lab)
        if pql != 2:
            self.poll(pqload, lambda: self.markcheck(PQ, 32, 12), 12, first_issued=True)
            self.stamp()

        def issue():
            for pi in range(2):
                a("buffer_load_dwordx4 %s, v2, %s, s70 offen offset:%d sc1" % (v(RD + 8 * pi, 4), ws, pi * PLINE))
                a("buffer_load_dwordx4 %s, v8, %s, s70 offen offset:%d sc1" % (v(RD + 8 * pi + 4, 4), ws, pi * PLINE + 1024))

        a("""s_lshl_b32 s63, s5, 13
        s_and_b32 s64, s63, 0x6000
        s_add_u32 s64, s64, OBASE
        v_add_u32 v13, OBASE, v13
        v_add_u32 v4, s64, v2
        v_xor_b32 v5, 0x2000, v4
        v_xor_b32 v6, 0x4000, v4
        v_xor_b32 v7, 0x6000, v4
        s_lshl_b32 s69, s3, 12
        s_add_u32 s69, s69, STG
        v_and_b32 v10, 31, v1
        v_bfe_u32 v14, v1, 1, 2
        v_lshrrev_b32 v15, 5, v1
        v_lshlrev_b32 v15, 1, v15
        v_xor_b32 v14, v14, v15
        v_lshlrev_b32 v14, 4, v14
        v_lshl_add_u32 v10, v10, 6, v14
        v_add_u32 v10, s69, v10
        v_xor_b32 v14, 16, v10
        v_bfe_u32 v15, v1, 3, 2
        v_lshlrev_b32 v15, 4, v15
        v_xor_b32 v15, v15, v2
        v_add_u32 v15, s69, v15
        v_lshrrev_b32 v3, 2, v1
        v_and_b32 v11, 3, v1
        v_lshlrev_b32 v11, 4, v11
        v_lshl_add_u32 v3, v3, 11, v11
        s_lshl_b32 s65, s65, 17
        s_lshr_b32 s69, s5, 2
        s_and_b32 s64, s3, 3
        s_lshl2_add_u32 s69, s69, s64
        s_lshl_b32 s69, s69, 6
        s_add_u32 s64, s65, s69
        s_add_u32 s65, s64, 0x8000
        s_add_u32 s66, s64, 0x10000
        s_add_u32 s67, s64, 0x18000""".replace("OBASE", "0x18000" if self.opt.get("w2late", 0) else "0").replace("STG", "0" if self.opt.get("w2late", 0) else "0x14000"))
        if self.opt.get("rbar"):
            a("s_barrier")
        self.diag_delay("d_red")
        self.poll(issue, lambda: self.markcheck(RD, 16, 12), 12)
        self.stamp()
        accs = [AC, AC + 16, RD, RD + 16]

        def sel(i):
            pi, h = i >> 1, i & 1
            b = RD + 8 * pi
            for j in range(4):
                x, y = (b + j, b + 4 + j) if h == 0 else (b + 4 + j, b + j)
                a("v_cndmask_b32 v%d, v%d, v%d, s[10:11]" % (OP + 4 * i + j, x, y))

        def mf(i, mb, d):
            return "%s %s, %s, %s, 0" % (M32, v(d, 16), v(OP + 4 * i, 4), v(PQ + 4 * (i * 2 + mb), 4))

        def post(i, mb, d):
            pi, h = i >> 1, i & 1
            num, den = (d, d + 8) if h == 0 else (d + 8, d)
            L = ["v_add_f32 v%d, s58, v%d" % (den, den), "v_rcp_f32 v%d, v%d" % (den, den)]
            for j in range(0, 8, 2):
                L.append("v_pk_mul_f32 %s, %s, %s op_sel_hi:[1,0]" % (v(num + j, 2), v(num + j, 2), v(den, 2)))
            for j in range(4):
                L.append("v_cvt_pk_bf16_f32 v%d, v%d, v%d" % (den + 4 + j, num + 2 * j, num + 2 * j + 1))
            L.append("ds_write_b128 v13, %s offset:%d" % (v(den + 4, 4), mb * 32768 + i * 1024))
            return L

        sel(0)
        sel(1)
        a(mf(0, 0, accs[0]))
        sel(2)
        a(mf(1, 0, accs[1]))
        sel(3)
        a(mf(2, 0, accs[2]))
        for i in range(4):
            if i == 0:
                a(mf(3, 0, accs[3]))
            for x in post(i, 0, accs[i]):
                a(x)
        acc1 = [RD, RD + 16, AC + 16, RD]
        a(mf(0, 1, acc1[0]))
        a(mf(1, 1, acc1[1]))
        a("s_waitcnt lgkmcnt(0)\ns_barrier")
        self.stamp()
        a("s_cmp_ge_u32 s3, 4\ns_cbranch_scc1 OUT_GEMM")
        n0 = self.nst
        a(mf(2, 1, acc1[2]))
        a(mf(3, 1, AC))
        a.unpk = bool(self.opt.get("upf", 1))
        for i in range(4):
            for x in post(i, 1, acc1[i] if i < 3 else AC):
                a(x)
        a.unpk = False
        a("s_waitcnt lgkmcnt(0)\ns_barrier")
        lab = a.newlabel("NOEP")
        a("s_or_b32 s56, s4, s3\ns_or_b32 s56, s56, s5\ns_cbranch_scc1 " + lab)
        self.poll(lambda: a("buffer_load_dwordx2 v[6:7], off, %s, 0 offset:%d sc1" % (ws, WS_NOTE)),
                  lambda: a("v_xor_b32 v12, s6, v6\nv_bitop3_b32 v12, v12, v7, s7 bitop3:0xf6"), 12)
        a("v_mov_b32 v6, s8\nv_mov_b32 v7, s9\ns_mov_b64 exec, 1")
        a("buffer_store_dwordx2 v[6:7], off, %s, 0 offset:%d" % (ws, WS_EP))
        a("s_mov_b64 exec, -1")
        a.label(lab)
        self.end()
        self.nst = n0
        a.label("OUT_GEMM")
        fl = self.opt.get("outflag", "sc1")
        out = s(self.rOUT, 4)
        frags, mfl = {}, []
        pool = [PQ + 8 * i for i in range(4)] + [PQ + 4, PQ + 12]

        def b11b():
            assert not self.fq
            self.lds_wait(self.last_fill_lds)
            a("s_barrier")

        AC2 = OP
        for mb in range(2):
            d = v(AC2 if mb else AC, 16)
            for h in range(32):
                frags[(mb, h)] = (["ds_read_b128 {r}, v%d offset:%d" % (4 + (h >> 3), mb * 32768 + (h & 7) * 1024)],
                                  b11b if (mb, h) == (1, 0) else None)
                mfl.append(("%s %s, %s, {0}, %s" % (M32, d, v(WO + 4 * h, 4), d if h else "0"), [(mb, h)]))
                if mb == 0 and h == 0:
                    mfl.append((mf(2, 1, acc1[2]), []))
                if mb == 0 and h == 5:
                    mfl.append((mf(3, 1, acc1[3]), []))

        def epi(mb, d, t):
            L = ["v_cvt_pk_bf16_f32 v%d, v%d, v%d" % (t + j, d + 2 * j, d + 2 * j + 1) for j in range(8)]
            L += ["ds_write_b128 v10, %s offset:%d" % (v(t, 4), mb * 2048), "ds_write_b128 v14, %s offset:%d" % (v(t + 4, 4), mb * 2048),
                  "ds_read_b128 %s, v15 offset:%d" % (v(t + 8, 4), mb * 2048), "ds_read_b128 %s, v15 offset:%d" % (v(t + 12, 4), mb * 2048 + 1024)]
            L2 = ["WAITLDS 1", "buffer_store_dwordx4 %s, v3, %s, s%d offen %s" % (v(t + 8, 4), out, 64 + 2 * mb, fl),
                  "WAITLDS 0", "buffer_store_dwordx4 %s, v3, %s, s%d offen %s" % (v(t + 12, 4), out, 65 + 2 * mb, fl)]
            return L, L2

        e0, e0b = epi(0, AC, RD)
        fillers = {0: post(0, 1, acc1[0]) + post(1, 1, acc1[1]), 7: post(2, 1, acc1[2]), 11: post(3, 1, acc1[3]), 36: e0, 46: e0b}
        self.lds_reset()
        rest = self.run_mfmas(mfl, frags, pool, fillers, maxread=1)
        assert not rest
        e1, e1b = epi(1, AC2, RD + 16)
        for x in e1 + e1b:
            self.emit_filler(x)
        self.end()

    def role_b(self):
        a = self.a
        a.label("ROLE_B")
        a.unpk = bool(self.opt.get("unpk", 2) & 1)
        self.role = "B"
        ws = s(self.rWS, 4)
        XW, SW, XW3 = 0, 3, 1
        if self.opt.get("walk", 0) & 2:
            a("s_mov_b64 exec, 0")
            for w in range(1, 7):
                a("s_cmp_eq_u32 s3, %d\ns_cbranch_scc1 WKB%d" % (w, w - 1))
            a("s_cmp_eq_u32 s3, 7\ns_cbranch_scc1 WKC0")
            a.label("WRET_C")
            a("s_cmp_lt_u32 s5, 24\ns_cbranch_scc1 WRET_A" if self.opt.get("walk", 0) & 1 else "s_nop 0")
            a.label("WRET_B")
            a("s_mov_b64 exec, -1\ns_waitcnt lgkmcnt(0)\ns_nop 15")
        a(self.KARG)
        a("s_waitcnt lgkmcnt(0)")
        a("s_load_dwordx2 s[8:9], s[32:33], %d" % WS_EP)
        self.srd(self.rWS, self.pWS, WS_SIZE)
        a("""v_lshrrev_b32 v4, 5, v1
        v_and_b32 v5, 31, v1
        v_lshlrev_b32 v6, 4, v5
        v_lshl_add_u32 v3, s3, 3, v4
        v_xor_b32 v3, s60, v3
        v_lshl_add_u32 v3, v3, 9, v6
        v_lshl_add_u32 v11, v4, 3, s3
        v_xor_b32 v8, s60, v11
        v_lshl_add_u32 v11, v11, 15, v6
        v_lshl_add_u32 v11, v8, 9, v11
        s_lshl_b32 s66, s60, 15
        s_add_u32 s66, s66, 0x%x
        s_mov_b32 s13, 0x%x
        v_mov_b32 v14, 0xfffefffe""" % (WS_X1, WS_X1))
        a("""s_lshl_b32 s67, s4, 10
        s_add_u32 s67, s67, 0x%x
        v_and_b32 v12, 15, v1
        v_lshrrev_b32 v13, 4, v1
        s_xor_b32 s71, s61, 7
        s_xor_b32 s62, s3, %d
        s_or_b32 s71, s71, s62""" % (WS_X2S, SW))
        a("""s_bitcmp1_b32 s61, 0
        s_cselect_b64 s[48:49], s[26:27], s[24:25]
        s_cselect_b64 s[52:53], s[24:25], s[26:27]
        s_cselect_b32 s34, 0x8000, 0
        s_mov_b32 s50, 0x%x
        s_mov_b32 s51, 0x20000
        s_mov_b32 s54, 0x%x
        s_mov_b32 s55, 0x20000
        s_add_u32 s34, s34, s70
        s_add_u32 s34, s34, %d
        s_xor_b32 s35, s34, 0x8000""" % (2048 * 514, 2048 * 514, WB))
        self.srd(self.rOUT, self.pOUT, 2048 * 2048)

        CS, TW0, TWX, F16 = 16, 40, 48, 56
        RA = 64
        T = 144
        a("""v_cvt_f32_u32 v16, v5
        s_bfe_u32 s62, s3, 0x10001
        s_and_b32 s63, s3, 1
        s_lshl2_add_u32 s62, s62, s63
        s_lshl_b32 s62, s62, 7
        s_add_u32 s62, s62, s60
        v_lshl_add_u32 v17, v4, 8, s62
        v_cvt_f32_u32 v17, v17
        v_mul_f32 v17, v17, v16
        s_lshr_b32 s62, s3, 2
        v_xor_b32 v18, s62, v1
        v_lshlrev_b32 v18, 31, v18
        v_or_b32 v18, %s, v18
        v_fmamk_f32 v17, v17, %s, v18
        v_fmamk_f32 v18, v16, %s, v17
        s_lshl_b32 s62, s62, 31
        v_cos_f32 v20, v17
        v_sin_f32 v21, v17
        v_cos_f32 v22, v18
        v_sin_f32 v23, v18
        s_lshr_b32 s64, s3, 1
        s_lshl_b32 s64, s64, 10
        s_lshl3_add_u32 s64, s63, s64
        s_add_u32 s64, s64, %d
        v_add_u32 v15, s64, v2""" % (fhex(0.125), fhex(1 / 2048), fhex(1 / 32), RAB))
        a("""v_cvt_pk_bf16_f32 v24, v20, v21
        v_cvt_pk_bf16_f32 v25, v22, v23
        v_cvt_pk_bf16_f32 v26, -v21, v20
        v_cvt_pk_bf16_f32 v27, -v23, v22
        v_xor_b32 v24, s62, v24
        v_xor_b32 v25, s62, v25
        v_xor_b32 v26, s62, v26
        v_xor_b32 v27, s62, v27
        ds_write_b64 v15, v[24:25]
        ds_write_b64 v15, v[26:27] offset:4096""")
        self.ra_inv(0, 136)
        a("s_lshl_b32 s14, s60, 9\ns_add_u32 s14, s14, 0x%x\ns_and_b32 s63, s3, 1" % (WS_X1 + 64 * 32768))
        FA = 128
        a("""v_bfe_u32 v16, v1, 3, 2
        s_lshl_b32 s62, s4, 2
        v_add_u32 v17, s62, v16
        v_lshl_add_u32 v17, v4, 5, v17
        v_mul_u32_u24 v17, 514, v17
        v_and_b32 v17, -16, v17
        v_sub_u32 v16, v1, v16
        v_and_b32 v18, 7, v16
        v_xor_b32 v19, 4, v18
        v_cmp_gt_u32 s[68:69], 5, v18
        v_cmp_gt_u32 s[58:59], 5, v19
        v_lshl_add_u32 v128, v18, 4, v17
        v_lshl_add_u32 v129, v19, 4, v17""")
        a("""v_lshl_add_u32 v7, v1, 3, s70
        s_lshr_b32 s62, s3, 1
        s_lshl_b32 s62, s62, 13
        s_lshl3_add_u32 s62, s63, s62
        s_add_u32 s62, s62, %d
        v_lshlrev_b32 v8, 11, v13
        v_lshl_add_u32 v8, v12, 4, v8
        v_add_u32 v8, s62, v8
        v_lshl_add_u32 v10, s3, 5, v5
        v_lshlrev_b32 v130, 13, v4
        v_add_u32 v130, %d, v130
        v_lshl_add_u32 v9, v10, 4, v130
        v_sub_u32 v10, 0, v10
        v_and_b32 v10, 0x1ff, v10
        v_lshl_add_u32 v10, v10, 4, v130
        v_add_u32 v131, %d, v2
        s_mul_i32 s62, s3, %d
        s_lshl_b32 s63, s61, 6
        s_add_u32 s62, s62, s63
        s_add_u32 s63, s62, %d
        s_add_u32 s64, s62, %d
        s_add_u32 s65, s62, %d
        s_waitcnt lgkmcnt(0)""" % (ZB, ZB, TB, 8 * 32 * 514, 64 * 514 - 1024, 128 * 514 - 2048, 192 * 514 - 3072))
        self.tags()

        def tab(reg, q, n):
            for i in range(n):
                a("ds_read_b128 %s, v131 offset:%d" % (v(reg + 4 * i, 4), (q + i) * 1024))

        fdp = [int(x) for x in str(self.opt.get("fdp", "2402"))[-4:].rjust(4, "0")]
        fdn = [0]

        def fnext(n=1):
            for _ in range(n):
                fdma(fdn[0] >> 2, fdn[0] & 3)
                fdn[0] += 1

        def fdma(second, q):
            a("s_mov_b64 exec, %s\ns_mov_b32 m0, s%d\nbuffer_load_dwordx4 v%d, %s, s%d offen offset:%d nt lds\ns_mov_b64 exec, -1" % (
                "s[58:59]" if q >> 1 else "s[68:69]", 35 if second else 34, FA + (q >> 1), s(52 if second else 48, 4), 62 + q, q * 1024),
              at=60 + self.opt.get("fgap", 170) * (fdn[0] - fdp[0]))

        ls = self.opt.get("ls", 0)
        msc = self.opt.get("msc", 10) / 10.0
        a("s_waitcnt vmcnt(%d)\ns_barrier" % 4)
        XF, T1, U = T, T + 16, T + 48
        early = self.opt.get("cearly", 6)
        tab(CS, TQ_CS, early)
        nb = 0
        fnext(fdp[0])
        a("s_waitcnt vmcnt(%d)" % (fdp[0] + nb))
        self.stamp()
        a.label("WB_0")
        pre = ["ds_read_b128 %s, v131" % v(CS + 4 * i, 4) for i in range(early)]
        a.capture(ls & 1)
        for q in range(4):
            a("ds_read_b64_tr_b16 %s, v7 offset:%d" % (v(XF + 4 * q, 2), q * 1024))
            a("ds_read_b64_tr_b16 %s, v7 offset:%d" % (v(XF + 4 * q + 2, 2), q * 1024 + 512))
        tab(CS + 4 * early, TQ_CS + early, 12 - early)
        a("s_mov_b32 s22, 0x80000\ns_mov_b32 s23, 0x20000\ns_lshl3_add_u32 s15, s60, s3\ns_lshl_b32 s15, s15, 10\nbuffer_load_dwordx4 v[116:119], v2, s[20:23], s15 offen", at=56)
        sp1 = [(fdp[1] + 3 - i) // 4 for i in range(4)]
        fnext(sp1[0])

        def stage_cs(re, im, out, conj):
            S, N = (CS + 16, CS + 8) if conj else (CS + 8, CS + 16)
            for tau in range(2):
                a("%s %s, %s, %s, 0" % (M16, v(out + 4 * tau, 4), v(re, 4), v(CS + 4 * tau, 4)))
                a("%s %s, %s, %s, 0" % (M16, v(out + 8 + 4 * tau, 4), v(im, 4), v(CS + 4 * tau, 4)))
                a("%s %s, %s, %s, %s" % (M16, v(out + 4 * tau, 4), v(im, 4), v(S + 4 * tau, 4), v(out + 4 * tau, 4)))
                a("%s %s, %s, %s, %s" % (M16, v(out + 8 + 4 * tau, 4), v(re, 4), v(N + 4 * tau, 4), v(out + 8 + 4 * tau, 4)))

        def twiddle(t, tws, tmp, conj):
            for tau in range(2):
                for j in (0, 2):
                    re, im = t + 4 * tau + j, t + 8 + 4 * tau + j
                    sn_ = tws[tau] + 4 + j
                    k = tmp + 8 * tau + 2 * j
                    a("v_pk_mul_f32 %s, %s, %s" % (v(k, 2), v(im, 2), v(sn_, 2)))
                    a("v_pk_mul_f32 %s, %s, %s" % (v(k + 2, 2), v(re, 2), v(sn_, 2)))
            ng = " neg_lo:[0,0,1] neg_hi:[0,0,1]"
            for tau in range(2):
                for j in (0, 2):
                    re, im = t + 4 * tau + j, t + 8 + 4 * tau + j
                    c = tws[tau] + j
                    k = tmp + 8 * tau + 2 * j
                    a("v_pk_fma_f32 %s, %s, %s, %s%s" % (v(re, 2), v(re, 2), v(c, 2), v(k, 2), ng if conj else ""))
                    a("v_pk_fma_f32 %s, %s, %s, %s%s" % (v(im, 2), v(im, 2), v(c, 2), v(k + 2, 2), "" if conj else ng))

        a("s_waitcnt lgkmcnt(%d)" % (16 - early))
        stage_cs(XF, XF + 4, T1, False)
        a("s_waitcnt lgkmcnt(%d)" % (12 - early))
        stage_cs(XF + 8, XF + 12, T1 + 16, False)
        fnext(sp1[1])
        a("s_waitcnt lgkmcnt(0)")
        tab(RA, 24, 8)
        for m in range(2):
            t = T1 + 16 * m
            twiddle(t, [TW0, TWX], T + 64 + 16 * m, False)
            for tau in range(2):
                u = U + 8 * m + 4 * tau
                self.cvt(u, v(t + 4 * tau), v(t + 4 * tau + 1))
                self.cvt(u + 1, v(t + 4 * tau + 2), v(t + 4 * tau + 3))
                self.cvt(u + 2, v(t + 8 + 4 * tau), v(t + 8 + 4 * tau + 1))
                self.cvt(u + 3, v(t + 8 + 4 * tau + 2), v(t + 8 + 4 * tau + 3))
            for tau in range(2):
                u = U + 8 * m + 4 * tau
                a("%s %s, %s, %s, 0" % (M16, v(t + 4 * tau, 4), v(F16, 4), v(u, 4)))
                a("%s %s, %s, %s, 0" % (M16, v(t + 8 + 4 * tau, 4), v(F16 + 4, 4), v(u, 4)))
            fnext(sp1[2 + m])
        fd = 2 if fdp[3] == 0 else 1
        ZW = T + 96
        for i in range(8):
            self.cvt(ZW + 2 * i, v(T1 + i), v(T1 + 8 + i))
        for i in range(8):
            self.cvt(ZW + 2 * i + 1, v(T1 + 16 + i), v(T1 + 24 + i))
            a("ds_write_b64 v8, %s offset:%d" % (v(ZW + 2 * i, 2), (i >> 2) * 256 + (i & 3) * 512))
        print("B1", a.flush(pre, mf_scale=msc))
        a("s_waitcnt lgkmcnt(0)\ns_barrier")
        self.stamp()
        for f in range(4):
            a("ds_read_b128 %s, v%d offset:%d" % (v(XF + 4 * f, 4), 9 + (f >> 1), (f & 1) * 16384))
        fnext(fdp[2])
        PC = T + 48

        def pieces(src, j, dst, mark=True):
            for h in range(2):
                self.cvt(dst + h, v(src + 4 * j + 2 * h), v(src + 4 * j + 2 * h + 1))
                self.cvt(dst + 2 + h, v(src + 16 + 4 * j + 2 * h), v(src + 16 + 4 * j + 2 * h + 1))
            if mark:
                for x in self.mark(dst, 14):
                    a(x)

        for f in range(4):
            a("s_waitcnt lgkmcnt(%d)" % (3 - f))
            for ri in range(2):
                d = v(T1 + 16 * ri, 16)
                a("%s %s, %s, %s, %s" % (M32, d, v(RA + 16 * ri + 4 * f, 4), v(XF + 4 * f, 4), d if f else "0"))
        XE, TE = T + 64, T + 80
        a("ds_write_b64 v142, v[140:141]")
        a("ds_read_b128 %s, v130 offset:4096\nds_read_b128 %s, v130 offset:%d" % (v(XE, 4), v(XE + 4, 4), 4096 + 16384))
        a("v_lshlrev_b32 v16, 1, v6\nv_lshl_add_u32 v16, v4, 4, v16")
        if fd == 2:
            a("s_waitcnt vmcnt(0)")
        for j in range(4):
            pieces(T1, j, PC + 4 * j)
            a("buffer_store_dwordx4 %s, v11, %s, s13 offen sc1" % (v(PC + 4 * j, 4), ws))
            if j < 3:
                a("v_xor_b32 v11, 0x%x, v11" % ((j ^ (j + 1)) * 0x82000))
        a("s_waitcnt lgkmcnt(0)")
        lab = a.newlabel("NOX")
        a("s_cmp_lg_u32 s3, %d\ns_cbranch_scc1 %s" % (XW, lab))
        for f in range(4):
            for ri in range(2):
                d = v(TE + 16 * ri, 16)
                a("%s %s, %s, %s, %s" % (M32, d, v(RA + 16 * ri + 4 * f, 4), v(XE + 4 * (f & 1), 4), d if f else "0"))
        for j in range(4):
            a("s_mov_b32 exec_lo, %d\ns_mov_b32 exec_hi, %d" % (1 << j, 1 << j))
            pieces(TE, j, XE + 8, False)
        a("s_mov_b32 exec_lo, 15\ns_mov_b32 exec_hi, 15")
        for x in self.mark(XE + 8, 14):
            a(x)
        a("buffer_store_dwordx4 %s, v16, %s, s14 offen sc1" % (v(XE + 8, 4), ws))
        a("s_mov_b64 exec, -1")
        a.label(lab)
        self.stamp()
        fnext(fdp[3])
        assert fdn[0] == 8

        F32 = 16
        FL = 48
        LD, LD2 = 96, 112
        FL2 = T + 64
        DAT, FR, TM = T, T + 32, T + 48
        tab(F32, TQ_F32, 4)
        tab(FR, TQ_OM, 4)
        a("""v_lshrrev_b32 v11, 2, v1
        v_xor_b32 v11, v11, v4
        v_lshlrev_b32 v129, 9, v11
        v_and_b32 v11, 3, v1
        v_lshl_add_u32 v129, v11, 4, v129
        s_lshl_b32 s62, s4, 4
        v_xor_b32 v129, s62, v129
        v_bfe_u32 v6, v1, 2, 3
        v_lshlrev_b32 v6, 12, v6
        v_lshl_add_u32 v6, v11, 4, v6
        s_and_b32 s62, s3, 1
        v_xor_b32 v11, s62, v4
        v_lshl_add_u32 v6, v11, 6, v6
        s_lshl_b32 s62, s3, 9
        s_add_u32 s62, s62, %d
        v_add_u32 v6, s62, v6
        v_xor_b32 v11, 0x400, v3
        v_xor_b32 v134, 0x800, v3
        v_xor_b32 v135, 0xc00, v3
        s_add_u32 s70, s70, %d
        v_and_b32 v132, 1, v13
        v_lshl_add_u32 v132, v13, 3, v132
        v_bfe_u32 v133, v1, 3, 1
        v_lshl_add_u32 v132, v133, 1, v132
        v_lshlrev_b32 v132, 6, v132
        v_and_b32 v133, 3, v1
        v_lshl_add_u32 v132, v133, 4, v132
        v_bfe_u32 v133, v1, 2, 1
        v_lshl_add_u32 v132, v133, 3, v132
        v_add_u32 v132, s70, v132
        v_xor_b32 v133, 64, v132""" % (ZB, ZB))
        MB = [3, 11, 134, 135]

        def faddr(dst, kk, t1, t2):
            a("""v_and_b32 v{t2}, 3, v12
            s_lshl_b32 s15, s4, 2
            v_add_u32 v{t1}, s15, v{t2}
            v_and_b32 v{t1}, 7, v{t1}
            v_add_lshl_u32 v{t1}, v{t1}, v{kk}, 1
            v_lshl_add_u32 v{t1}, v{t2}, 4, v{t1}
            v_lshl_add_u32 v{t1}, v13, 6, v{t1}
            v_and_b32 v{t1}, 0x7f, v{t1}
            v_lshl_add_u32 v{t1}, v{t2}, 7, v{t1}
            v_lshl_add_u32 v{t1}, v13, 11, v{t1}
            v_add_u32 v{dst}, {wb}, v{t1}""".format(dst=dst, kk=kk, t1=t1, t2=t2, wb=WB))

        a("v_lshrrev_b32 v%d, 2, v12\nv_lshl_add_u32 v%d, s3, 2, v%d" % (LD, LD, LD))
        faddr(128, LD, LD + 1, LD + 2)
        a("""v_lshl_add_u32 v15, s3, 2, v13
        v_and_b32 v5, 7, v12
        v_xor_b32 v15, v15, v5
        v_lshlrev_b32 v15, 4, v15
        v_lshl_add_u32 v15, v12, 10, v15
        s_and_b32 s63, s3, 1
        s_lshl_b32 s64, s63, 6
        v_xor_b32 v7, s64, v2
        s_lshl_b32 s64, s3, 12
        v_add_u32 v7, s64, v7
        v_xor_b32 v136, 16, v7
        v_xor_b32 v137, 32, v7
        v_xor_b32 v138, 48, v7
        s_mov_b32 s64, 0x80008000
        s_waitcnt lgkmcnt(0)""")
        for i in range(16):
            a(("v_xor_b32 v%d, s64, v%d" if i & 1 else "v_mov_b32 v%d, v%d") % (F32 + 16 + i, F32 + i))
        if fd != 2:
            a("s_waitcnt vmcnt(0)")
        a("s_barrier")
        self.stamp()

        def fread(addr):
            for arr in range(2):
                for pm in range(2):
                    for t in range(8):
                        a("ds_read_u16_d16_hi v%d, v%d offset:%d" % (DAT + 16 * arr + 8 * pm + t, addr, arr * 32768 + pm * 16384 + (t >> 2) * 8192 + (t & 3) * 512))

        def filt(dst, raw, both=True):
            for j in range(0, 8, 2):
                a("v_pk_add_f32 %s, %s, %s" % (v(dst + j, 2), v(raw + j, 2), v(raw + 8 + j, 2)))
                a("v_pk_add_f32 %s, %s, %s" % (v(dst + 8 + j, 2), v(raw + 16 + j, 2), v(raw + 24 + j, 2)))
                a("v_pk_add_f32 %s, %s, %s neg_lo:[0,1] neg_hi:[0,1]" % (v(raw + j, 2), v(raw + j, 2), v(raw + 8 + j, 2)))
                a("v_pk_add_f32 %s, %s, %s neg_lo:[0,1] neg_hi:[0,1]" % (v(raw + 16 + j, 2), v(raw + 16 + j, 2), v(raw + 24 + j, 2)))
            ng = " neg_lo:[0,0,1] neg_hi:[0,0,1]"
            for j in range(0, 8, 2):
                dr, di, c, sn_ = v(raw + j, 2), v(raw + 16 + j, 2), v(FR + j, 2), v(FR + 8 + j, 2)
                t1, t2 = v(raw + 8 + j, 2), v(raw + 24 + j, 2)
                a("v_pk_mul_f32 %s, %s, %s" % (t1, di, sn_))
                a("v_pk_mul_f32 %s, %s, %s" % (t2, dr, sn_))
                a("v_pk_fma_f32 %s, %s, %s, %s" % (v(dst + 16 + j, 2), dr, c, t1))
                a("v_pk_fma_f32 %s, %s, %s, %s%s" % (v(dst + 24 + j, 2), di, c, t2, ng))
                if both:
                    a("v_pk_fma_f32 %s, %s, %s, %s%s" % (v(dst + 32 + j, 2), dr, c, t1, ng))
                    a("v_pk_fma_f32 %s, %s, %s, %s" % (v(dst + 40 + j, 2), di, c, t2))

        VS = 139

        sentinel = lambda base: self.markcheck(base, 16, VS)

        def x1load(special):
            for i in range(4):
                a("buffer_load_dwordx4 %s, v%d, %s, s%d offen sc1" % (v((LD2 if special else LD) + 4 * i, 4), 129 if special else MB[i], ws, 56 + i if special else 66))

        def x1first():
            lab = a.newlabel("NOSP")
            a("s_cmp_lg_u32 s71, 0\ns_cbranch_scc1 " + lab)
            for i in range(4):
                a("s_mov_b32 s%d, 0x%x" % (56 + i, WS_X1 + 64 * 32768 + 0x2000 * i))
            x1load(True)
            a.label(lab)
            x1load(False)

        x1l = self.opt.get("x1late", 1)
        if fd != 2 and x1l == 0:
            x1first()
        fread(128)
        a("s_waitcnt lgkmcnt(0)")
        if fd != 2 and x1l == 1:
            x1first()
        filt(FL, DAT)
        if fd != 2 and x1l == 2:
            x1first()
        if fd == 2:
            a("s_waitcnt vmcnt(0)")
            self.diag_delay("d_x1")
            x1first()
        self.stamp()

        def hintx(pos):
            if self.opt.get("go", 4) == pos:
                lab = a.newlabel("NOH")
                a("s_cmp_lg_u32 s3, 7\ns_cbranch_scc1 " + lab)
                a("""s_lshl_b32 s14, s60, 7
                s_add_u32 s14, s14, 0x%x
                v_mov_b32 v140, s6
                v_mov_b32 v141, s7
                v_lshlrev_b32 v142, 3, v12
                buffer_store_dwordx2 v[140:141], v142, %s, s14 offen sc1""" % (WS_GO, ws))
                a.label(lab)

        def b2(fl, special):
            FR2, OUT, PO = T + 64, LD, T + 96
            a.capture(ls & 2)
            for p in range(2):
                for f in range(2):
                    for h in range(2):
                        a("ds_read_b64_tr_b16 %s, v%d offset:%d" % (v(FR + 8 * p + 4 * f + 2 * h, 2), 132 + p, f * 2048 + h * 256))
            for tau in range(2):
                for p in range(2):
                    for f in range(2):
                        if tau == 0:
                            a("s_waitcnt lgkmcnt(%d)" % (6 - 4 * p - 2 * f))
                        for ri in range(2):
                            d = v(DAT + 16 * p + 8 * ri + 4 * tau, 4)
                            a("%s %s, %s, %s, %s" % (M16, d, v(F32 + ((tau * 2 + ri) * 2 + f) * 4, 4), v(FR + 8 * p + 4 * f, 4), d if f else "0"))
            n1_ = " neg_lo:[1,0,0] neg_hi:[1,0,0]"

            for j in range(0, 8, 2):
                Er, Ei, Or, Oi = [v(DAT + 8 * k + j, 2) for k in range(4)]
                Ar, Ai, B1r, B1i, B2r, B2i = [v(fl + 8 * k + j, 2) for k in range(6)]
                k = (TM, TM + 8, T + 80, T + 88)[j >> 1]
                Pr, Pi, Qr, Qi = [v(k + 2 * i, 2) for i in range(4)]
                a("v_pk_mul_f32 %s, %s, %s" % (Pr, Ar, Er))
                a("v_pk_mul_f32 %s, %s, %s" % (Pi, Ar, Ei))
                a("v_pk_mul_f32 %s, %s, %s" % (Qr, B2r, Er))
                a("v_pk_mul_f32 %s, %s, %s" % (Qi, B2r, Ei))
                a("v_pk_fma_f32 %s, %s, %s, %s%s" % (Pr, Ai, Ei, Pr, n1_))
                a("v_pk_fma_f32 %s, %s, %s, %s" % (Pi, Ai, Er, Pi))
                a("v_pk_fma_f32 %s, %s, %s, %s%s" % (Qr, B2i, Ei, Qr, n1_))
                a("v_pk_fma_f32 %s, %s, %s, %s" % (Qi, B2i, Er, Qi))
                a("v_pk_fma_f32 %s, %s, %s, %s" % (Pr, B1r, Or, Pr))
                a("v_pk_fma_f32 %s, %s, %s, %s" % (Pi, B1r, Oi, Pi))
                a("v_pk_fma_f32 %s, %s, %s, %s" % (Qr, Ar, Or, Qr))
                a("v_pk_fma_f32 %s, %s, %s, %s" % (Qi, Ar, Oi, Qi))
                a("v_pk_fma_f32 %s, %s, %s, %s%s" % (Pr, B1i, Oi, Pr, n1_))
                a("v_pk_fma_f32 %s, %s, %s, %s" % (Pi, B1i, Or, Pi))
                a("v_pk_fma_f32 %s, %s, %s, %s%s" % (Qr, Ai, Oi, Qr, n1_))
                a("v_pk_fma_f32 %s, %s, %s, %s" % (Qi, Ai, Or, Qi))
                for e in range(2):
                    self.cvt(FR2 + j + e, v(k + e), "-" + v(k + 2 + e))
                    self.cvt(FR2 + 8 + j + e, v(k + 4 + e), "-" + v(k + 6 + e))
            for f in range(2):
                for p in range(2):
                    for tau in range(2):
                        for ri in range(2):
                            d = v(OUT + 16 * p + 8 * ri + 4 * tau, 4)
                            a("%s %s, %s, %s, %s" % (M16, d, v(FR2 + 8 * p + 4 * f, 4), v(F32 + ((tau * 2 + ri) * 2 + f) * 4, 4), d if f else "0"))
            for p in range(2):
                for tau in range(2):
                    o = PO + 8 * p + 4 * tau
                    for r in range(4):
                        self.cvt(o + r, v(OUT + 16 * p + 4 * tau + r), "-" + v(OUT + 16 * p + 8 + 4 * tau + r))
                    for x in self.mark(o, 14):
                        a(x)
                    a("ds_write_b128 v15, %s offset:%d" % (v(o, 4), tau * 16384 + p * 512))
            print("B2", a.flush(mf_scale=msc))

        lab = a.newlabel("NOSP")
        a("s_cmp_lg_u32 s71, 0\ns_cbranch_scc1 " + lab)
        a("v_mov_b32 v%d, 32" % TM)
        faddr(128, TM, TM + 1, TM + 2)
        fread(128)
        a("""v_lshlrev_b32 v{t}, 29, v1
        v_and_b32 v{t}, 0x80000000, v{t}
        v_and_b32 v{u}, 3, v1
        v_lshlrev_b32 v{u}, 4, v{u}
        v_xor_b32 v128, v132, v{u}
        v_and_b32 v{u}, 1, v1
        v_lshlrev_b32 v{u}, 6, v{u}
        v_xor_b32 v128, v128, v{u}
        v_subrev_u32 v128, s70, v128
        v_add_u32 v128, {sp}, v128
        v_add_u32 v5, {sp}, v2""".format(t=TM, u=TM + 1, sp=RAB + 4096))
        for j in range(8):
            a("v_xor_b32 v%d, v%d, v%d" % (FR + 8 + j, TM, FR + 8 + j))
        a("s_waitcnt lgkmcnt(0)")
        filt(FL2, DAT, False)
        a.label(lab)
        self.poll(lambda: x1load(False), lambda: sentinel(LD), VS, first_issued=True)
        if not self.opt.get("st4"):
            self.stamp()
        for i in range(4):
            a("ds_write_b128 v6, %s offset:%d" % (v(LD + 4 * i, 4), i * 128))
        a("s_waitcnt lgkmcnt(0)\ns_barrier")
        if self.opt.get("st4"):
            self.stamp()
        lab = a.newlabel("NOSP")
        a("s_cmp_lg_u32 s71, 0\ns_cbranch_scc1 " + lab)
        self.poll(lambda: x1load(True), lambda: sentinel(LD2), VS, first_issued=True)
        self.flip_marks()
        for i in range(4):
            a("ds_write_b128 v5, %s offset:%d" % (v(LD2 + 4 * i, 4), i * 1024))
        for f in range(2):
            for h in range(2):
                a("ds_read_b64_tr_b16 %s, v128 offset:%d" % (v(FR + 4 * f + 2 * h, 2), f * 2048 + h * 256))
        for f in range(2):
            a("s_waitcnt lgkmcnt(%d)" % (2 - 2 * f))
            for tau in range(2):
                for ri in range(2):
                    d = v(DAT + 8 * ri + 4 * tau, 4)
                    a("%s %s, %s, %s, %s" % (M16, d, v(F32 + ((tau * 2 + ri) * 2 + f) * 4, 4), v(FR + 4 * f, 4), d if f else "0"))
        for j in range(0, 8, 2):
            Xr, Xi, Ar, Ai = v(DAT + j, 2), v(DAT + 8 + j, 2), v(FL2 + j, 2), v(FL2 + 8 + j, 2)
            a("v_pk_mul_f32 %s, %s, %s" % (v(TM + j, 2), Ar, Xr))
            a("v_pk_mul_f32 %s, %s, %s" % (v(TM + 8 + j, 2), Ar, Xi))
            a("v_pk_fma_f32 %s, %s, %s, %s neg_lo:[1,0,0] neg_hi:[1,0,0]" % (v(TM + j, 2), Ai, Xi, v(TM + j, 2)))
            a("v_pk_fma_f32 %s, %s, %s, %s" % (v(TM + 8 + j, 2), Ai, Xr, v(TM + 8 + j, 2)))
        dpp = " row_ror:4 row_mask:0xf bank_mask:0xf"
        for k in range(2):
            for j in range(8):
                a("v_fmac_f32_dpp v%d, %sv%d, v%d%s" % (TM + j, "-" if k else "", DAT + 8 * k + j, FL2 + 16 + 8 * k + j, dpp))
                a("v_fmac_f32_dpp v%d, v%d, v%d%s" % (TM + 8 + j, DAT + 8 * (1 - k) + j, FL2 + 16 + 8 * k + j, dpp))
        for j in range(8):
            self.cvt(FR + j, v(TM + j), "-" + v(TM + 8 + j))
        for f in range(2):
            for tau in range(2):
                for ri in range(2):
                    d = v(DAT + 8 * ri + 4 * tau, 4)
                    a("%s %s, %s, %s, %s" % (M16, d, v(FR + 4 * f, 4), v(F32 + ((tau * 2 + ri) * 2 + f) * 4, 4), d if f else "0"))
        a("s_mov_b32 exec_hi, 0")
        for tau in range(2):
            o = FL2 + 4 * tau
            for r in range(4):
                self.cvt(o + r, v(DAT + 4 * tau + r), "-" + v(DAT + 8 + 4 * tau + r))
            for x in self.mark(o, 14):
                a(x)
            a("buffer_store_dwordx4 %s, v2, %s, s67 offen offset:%d sc1" % (v(o, 4), ws, tau * 512))
        a("s_mov_b32 exec_hi, -1")
        skip = a.newlabel("B2GO")
        a("s_branch " + skip)
        a.label(lab)
        self.flip_marks()
        a.label(skip)
        b2(FL, False)
        a("s_waitcnt lgkmcnt(0)")
        if self.opt.get("st4"):
            self.stamp()
        a("s_barrier")
        if not self.opt.get("st4"):
            self.stamp()
        hintx(4)
        ST = LD
        for i in range(4):
            a("ds_read_b128 %s, v%d offset:%d" % (v(ST + 4 * i, 4), 135 + i if i else 7, i * 1024))
        for i in range(4):
            a("s_waitcnt lgkmcnt(%d)" % (3 - i))
            a("buffer_store_dwordx4 %s, v%d, %s, s66 offen sc1" % (v(ST + 4 * i, 4), MB[i], ws))
        self.stamp()
        lab = a.newlabel("NONOTE")
        a("s_or_b32 s56, s60, s3\ns_cbranch_scc1 " + lab)
        a("v_mov_b32 v140, s6\nv_mov_b32 v141, s7\nv_lshlrev_b32 v142, 3, v12")
        a("buffer_store_dwordx2 v[140:141], v142, %s, 0 offen offset:%d sc1" % (ws, WS_NOTE))
        a.label(lab)
        a.label("WB_1")
        a("s_mov_b32 s34, 0")
        self.pad_stamps(9)

        a.label("B3_ENTRY")
        G16 = F16
        a("v_lshlrev_b32 v2, 4, v1\nv_add_u32 v131, %d, v2" % TB)
        tab(RA, 24, 4)
        tab(CS, TQ_CS, 8)
        tab(TWX, TQ_TW3, 4)
        a("""v_lshrrev_b32 v4, 5, v1
        v_and_b32 v5, 31, v1
        v_and_b32 v12, 15, v1
        v_lshrrev_b32 v13, 4, v1
        v_lshl_add_u32 v132, v4, 3, s3
        v_xor_b32 v8, s60, v132
        v_lshlrev_b32 v132, 15, v132
        v_lshl_add_u32 v132, v5, 4, v132
        v_lshl_add_u32 v132, v8, 9, v132
        v_xor_b32 v133, 0x82000, v132
        v_xor_b32 v134, 0x104000, v132
        v_xor_b32 v135, 0x186000, v132
        v_lshl_add_u32 v10, s3, 5, v5
        v_lshlrev_b32 v130, 13, v4
        v_add_u32 v130, %d, v130
        v_lshl_add_u32 v9, v10, 4, v130
        v_sub_u32 v10, 0, v10
        v_and_b32 v10, 0x1ff, v10
        v_lshl_add_u32 v10, v10, 4, v130
        s_lshr_b32 s63, s3, 2
        s_lshl_b32 s63, s63, 13
        s_and_b32 s64, s3, 3
        s_lshl2_add_u32 s63, s64, s63
        s_add_u32 s63, s63, %d
        v_lshlrev_b32 v8, 11, v13
        v_lshl_add_u32 v8, v12, 4, v8
        v_add_u32 v8, s63, v8
        s_lshl_b32 s63, s3, 11
        s_add_u32 s63, s63, %d
        v_bfe_u32 v5, v1, 2, 1
        v_lshlrev_b32 v5, 1, v5
        v_xor_b32 v5, v5, v13
        v_lshlrev_b32 v5, 3, v5
        v_lshl_add_u32 v5, v12, 5, v5
        v_add_u32 v5, s63, v5
        v_bfe_u32 v6, v1, 3, 1
        v_lshlrev_b32 v6, 4, v6
        v_xor_b32 v6, v6, v2
        v_add_u32 v6, s63, v6
        s_lshl_b32 s64, s3, 6
        s_add_u32 s64, s64, s60
        s_add_u32 s64, s64, s34
        s_lshl_b32 s64, s64, 11
        s_add_u32 s66, s64, 0x200000
        s_mov_b32 s56, 0.5
        s_mov_b32 s57, 0.5
        s_cmp_eq_u32 s3, 0
        s_cselect_b32 s68, -2, -1
        s_mov_b32 s69, s68
        s_lshr_b32 s63, s60, 5
        s_and_b32 s65, s60, 1
        s_lshl1_add_u32 s63, s63, s65
        s_bfe_u32 s65, s60, 0x40001
        s_lshl4_add_u32 s63, s63, s65
        v_and_b32 v11, 7, v1
        v_xor_b32 v11, s63, v11
        v_lshlrev_b32 v11, 4, v11
        v_lshl_add_u32 v11, v4, 10, v11
        s_mov_b32 s63, 0x%x
        s_mov_b32 s65, 0x%x""" % (ZB, ZB, WB, WS_X2S, WS_X2S + 4096))
        lab = a.newlabel("NOGO")
        a("s_cmp_eq_u32 s34, 0\ns_cbranch_scc1 " + lab)
        self.poll(lambda: a("buffer_load_dwordx2 v[140:141], off, %s, s62 sc1" % ws),
                  lambda: a("v_xor_b32 v%d, s6, v140\nv_bitop3_b32 v%d, v%d, v141, s7 bitop3:0xf6" % (VS, VS, VS)), VS)
        a.label(lab)
        a("s_mov_b32 s62, 0x%x" % WS_X1)
        RE, ZP, XS = T + 16, T + 48, LD2

        def radix_inv(x):
            for f in range(4):
                d = v(RE, 16)
                a("%s %s, %s, %s, %s" % (M32, d, v(RA + 4 * f, 4), v(x + 4 * f, 4), d if f else "0"))

        def average():
            a("s_mov_b32 exec_lo, 1\ns_mov_b32 exec_hi, 1")
            for j in (0, 2):
                a("v_pk_add_f32 %s, %s, %s" % (v(RE + j, 2), v(RE + j, 2), v(RE + 8 + j, 2)))
                a("v_pk_add_f32 %s, %s, %s neg_lo:[0,1] neg_hi:[0,1]" % (v(RE + 4 + j, 2), v(RE + 4 + j, 2), v(RE + 12 + j, 2)))
            for j in range(0, 8, 2):
                a("v_pk_mul_f32 %s, %s, s[56:57]" % (v(RE + j, 2), v(RE + j, 2)))

        def extra_tile():
            radix_inv(XS)
            average()
            for r in range(4):
                self.cvt(ZP + 8 + r, v(RE + r), v(RE + 4 + r))
            a("ds_write_b128 v130, %s offset:4096" % v(ZP + 8, 4))
            a("s_mov_b64 exec, -1")

        xsload = lambda: [a("buffer_load_dwordx4 %s, v11, %s, s%d offen offset:%d sc1" % (v(XS + 4 * f, 4), ws, 65 if f >> 1 else 63, (f & 1) * 2048)) for f in range(4)]
        x2load = lambda: [a("buffer_load_dwordx4 %s, v%d, %s, s62 offen sc1" % (v(XF + 4 * f, 4), 132 + f, ws)) for f in range(4)]
        lab = a.newlabel("NODR")
        a("s_and_b32 s15, s60, 7\ns_cmp_eq_u32 s15, 7\ns_cbranch_scc1 " + lab)
        a("s_waitcnt vmcnt(0)")
        self.diag_delay("d_x2")
        a.label(lab)
        x2load()
        lab = a.newlabel("NOX")
        a("s_cmp_lg_u32 s3, %d\ns_cbranch_scc1 %s" % (XW3, lab))
        xsload()
        a.label(lab)
        a("s_waitcnt lgkmcnt(0)")
        self.stamp()
        a.label("WC_0")
        self.poll(x2load, lambda: sentinel(XF), VS, first_issued=True)
        self.stamp()
        radix_inv(XF)
        lab = a.newlabel("NOAVG")
        a("s_nop 9")
        a("s_cmp_lg_u32 s3, 0\ns_cbranch_scc1 " + lab)
        average()
        a("s_mov_b64 exec, -1")
        a.label(lab)
        for r in range(4):
            self.cvt(ZP + r, v(RE + r), v(RE + 4 + r))
        a("ds_write_b128 v9, %s" % v(ZP, 4))
        for r in range(4):
            self.cvt(ZP + 4 + r, v(RE + 8 + r), "-" + v(RE + 12 + r))
        a("s_mov_b64 exec, s[68:69]")
        a("ds_write_b128 v10, %s" % v(ZP + 4, 4))
        a("s_mov_b64 exec, -1")
        lab = a.newlabel("NOX")
        a("s_cmp_lg_u32 s3, %d\ns_cbranch_scc1 %s" % (XW3, lab))
        self.poll(xsload, lambda: sentinel(XS), VS, first_issued=True)
        extra_tile()
        a.label(lab)
        a("s_waitcnt lgkmcnt(0)\ns_barrier")
        self.stamp()
        a.capture(ls & 4)
        ZF = T
        for tau in range(2):
            for j in range(2):
                a("ds_read2st64_b32 %s, v8 offset0:%d offset1:%d" % (v(ZF + 4 * tau + 2 * j, 2), tau + 4 * j, tau + 4 * j + 2))
        for tau in range(2):
            a("s_waitcnt lgkmcnt(%d)" % (2 - 2 * tau))
            a("%s %s, %s, %s, 0" % (M16, v(T1 + 4 * tau, 4), v(ZF + 4 * tau, 4), v(G16, 4)))
            a("%s %s, %s, %s, 0" % (M16, v(T1 + 8 + 4 * tau, 4), v(ZF + 4 * tau, 4), v(G16 + 4, 4)))
        O4 = T + 80
        twiddle(T1, [TW0, TWX], T + 64, True)
        for j in range(8):
            self.cvt(U + j, v(T1 + 2 * j), v(T1 + 2 * j + 1))
        stage_cs(U, U + 4, O4, True)
        fl = self.opt.get("outflag", "sc1")
        for ri in range(2):
            for tau in range(2):
                o = O4 + 8 * ri + 4 * tau
                d = T + 8 + 4 * ri + 2 * tau
                self.cvt(d, v(o), v(o + 1))
                self.cvt(d + 1, v(o + 2), v(o + 3))
                a("ds_write_b64 v5, %s offset:%d" % (v(d, 2), ri * 1024 + tau * 512))
            a("ds_read_b128 %s, v6 offset:%d" % (v(T1 + 16 + 4 * ri, 4), ri * 1024))
        for ri in range(2):
            a("s_waitcnt lgkmcnt(%d)" % (3 - 3 * ri))
            a("buffer_store_dwordx4 %s, v2, %s, s%d offen offset:1024 %s" % (v(T1 + 16 + 4 * ri, 4), s(self.rOUT, 4), 64 + 2 * ri, fl))
        print("B3", a.flush(mf_scale=msc))
        self.end()


TQ_CS, TQ_TW0, TQ_TW1, TQ_TW3, TQ_F32, TQ_OM = 0, 6, 8, 12, 16, 20


def make_table():
    import numpy as np
    from emu import bf16_rne
    l = np.arange(64)
    c, g = l & 15, l >> 4
    pk = lambda x, y: (bf16_rne(np.float32(x)) | (bf16_rne(np.float32(y)) << 16)).astype(np.uint32)
    fl = lambda x: np.float32(x).view(np.uint32)
    cs = lambda a_: (np.cos(2 * np.pi * a_), np.sin(2 * np.pi * a_))
    idx2 = [16 * (t >> 2) + 4 * g + (t & 3) for t in range(8)]
    R = []
    C = [[cs((c + 16 * tau) * idx2[t] / 32.0) for t in range(8)] for tau in range(2)]
    for k, sg in ((0, 1), (1, 1), (1, -1)):
        for tau in range(2):
            for j in range(4):
                R.append(pk(sg * C[tau][2 * j][k], sg * C[tau][2 * j + 1][k]))

    def tw(angs):
        for k in range(2):
            for x in angs:
                R.append(fl(cs(x)[k]))
    tw([c * idx2[r] / 512.0 for r in range(4)])
    tw([(c + 16) * idx2[r] / 512.0 for r in range(4)])
    H = [cs(c * idx2[x] / 16.0) for x in range(4)]
    R += [pk(H[0][0], H[1][0]), pk(H[2][0], H[3][0]), pk(H[0][1], H[1][1]), pk(H[2][1], H[3][1])]
    R += [pk(-H[0][1], -H[1][1]), pk(-H[2][1], -H[3][1]), pk(H[0][0], H[1][0]), pk(H[2][0], H[3][0])]
    tw([c * idx2[4 + r] / 512.0 for r in range(4)])
    sc = 2.0 ** -20
    R += [pk(sc * H[x][0], -sc * H[x][1]) for x in range(4)] + [pk(sc * H[x][1], sc * H[x][0]) for x in range(4)]
    R += [pk(C[0][t][0], C[0][t][1]) for t in range(8)] + [pk(-C[0][t][1], C[0][t][0]) for t in range(8)]
    for k in range(2):
        for t in range(8):
            R.append(fl(cs(idx2[t] / 64.0)[k]))
    R = np.array(R, np.uint32)
    assert R.shape == (96, 64)
    return np.ascontiguousarray(R.reshape(24, 4, 64).transpose(0, 2, 1)).reshape(-1)


def _sym_add(line, emuval=0):
    ins = Ins(line.rsplit(",", 1)[0] + ", %d" % emuval)
    ins.line = line
    return ins


def generate(stamps=False, opt=None):
    g = G(stamps, opt)
    a = g.build()
    nv = a.maxreg("v") + 1
    ns = a.maxreg("s") + 1
    tb = make_table()
    tail = ".p2align 8\n.type TABLE,@object\nTABLE:\n"
    for i in range(0, len(tb), 8):
        tail += ".long " + ",".join("0x%08x" % x for x in tb[i:i + 8]) + "\n"
    tail += ".size TABLE, %d\n" % (4 * len(tb))
    render = lambda: wrap(a.render() + tail, 256, 512, LDS_SIZE, nv, ns)
    if g.opt.get("align", 1):
        from align import align
        print("align:", align(a, render, g.opt.get("minrun", 5)))
    return a, render()


if __name__ == "__main__":
    stamps = "--stamps" in sys.argv
    opt = {}
    for x in sys.argv[1:]:
        if x.startswith("--") and "=" in x:
            k, val = x[2:].split("=", 1)
            opt[k] = int(val) if val.lstrip("-").isdigit() else val
    a, txt = generate(stamps, opt)
    out = [x for x in sys.argv[1:] if not x.startswith("--")]
    open(out[0] if out else "k.s", "w").write(txt)
    print("instructions:", sum(1 for k, _ in a.items if k == "i"), "vgpr", a.maxreg("v") + 1, "sgpr", a.maxreg("s") + 1)
```

```python
import sys
from asmlib import *
from common import wrap

WS_EP = 0x0
WS_GO = 0x1000
WS_NOTE = 0x800
WS_RED = 0x10000
RED_STRIDE = 0x4800
WS_X2S = 0x60000
WS_PART = 0x80000
PLINE = 1152
WS_PQ = 0x200000
WS_X1 = 0x400000
WS_STAMP = 0x1000000
WS_SIZE = 0x10000000
LDS_SIZE = 160 * 1024
TAGC_LO, TAGC_HI = 0x1E3779B1, 0x05EBCA6B
POLL_LIMIT = 1 << 18
M16 = "v_mfma_f32_16x16x32_bf16"
M32 = "v_mfma_f32_32x32x16_bf16"
XB, ZB, WB, TB = 0, 32768, 65536, 131072
RAB = TB + 24576


class G:
    def __init__(self, stamps=False, opt=None):
        self.a = Asm()
        self.stamps = stamps
        self.opt = opt or {}
        self.nst = 0
        self.role = ""

    sW = 3
    sTL, sTH = 6, 7
    sCNT = 12
    pXA, pWQ, pWO, pXB, pWR, pWI, pOUT, pDBG, pWS = 16, 18, 20, 22, 24, 26, 28, 30, 32
    rWS, rOUT, rA, rB, rC = 36, 40, 44, 48, 52
    sST = 72
    LT = [16, 17, 0, 1]

    def stamp(self):
        pr = self.opt.get("probe")
        if pr:
            if "%s:%d" % (self.role, self.nst) in pr.split("+"):
                self.a("s_memrealtime s[76:77]\ns_waitcnt lgkmcnt(0)")
            self.nst += 1
            return
        if not self.stamps:
            return
        k = self.nst
        assert k < 15
        self.a("%s %s\ns_waitcnt lgkmcnt(0)" % ("s_memtime" if self.opt.get("cyc") else "s_memrealtime", s(self.sST + 2 * k, 2)))
        self.nst += 1

    def end(self):
        a = self.a
        if self.opt.get("probe"):
            self.stamp()
            lab = a.newlabel("SPIN")
            a("s_waitcnt lgkmcnt(0)\ns_sub_u32 s76, s76, s72\ns_lshl_b32 s76, s76, 2\ns_add_u32 s76, s76, 2000\ns_min_u32 s76, s76, 20000")
            a.label(lab)
            a("s_memrealtime s[74:75]\ns_waitcnt lgkmcnt(0)\ns_sub_u32 s74, s74, s72\ns_cmp_lt_u32 s74, s76\ns_cbranch_scc1 %s" % lab)
        if self.stamps:
            self.stamp()
            a("s_waitcnt vmcnt(0)")
            self.stamp()
            a("s_mov_b64 exec, 1")
            a("s_lshl3_add_u32 s56, s5, s4\ns_lshl_b32 s56, s56, 3\ns_add_u32 s56, s56, s3\ns_lshl_b32 s56, s56, 6\ns_add_u32 s56, s56, 0x%x" % WS_STAMP)
            a("v_mov_b32 v2, 0")
            for k in range(self.nst):
                a("v_mov_b32 v3, s%d\nbuffer_store_dword v3, v2, %s, s56 offen offset:%d" % (self.sST + 2 * k, s(self.rWS, 4), 4 * k))
            a("v_mov_b32 v3, %d\nbuffer_store_dword v3, v2, %s, s56 offen offset:60" % (self.nst, s(self.rWS, 4)))
        a("s_endpgm")

    def pad_stamps(self, n):
        while (self.stamps or self.opt.get("probe")) and self.nst < n:
            if self.stamps:
                self.a("s_mov_b32 s%d, s%d" % (self.sST + 2 * self.nst, self.sST + 2 * self.nst - 2))
            self.nst += 1

    def srd(self, r, p, size):
        self.a("s_mov_b32 s%d, s%d\ns_mov_b32 s%d, s%d\ns_mov_b32 s%d, 0x%x\ns_mov_b32 s%d, 0x20000" % (r, p, r + 1, p + 1, r + 2, size, r + 3))

    def tags(self):
        t = self.LT
        self.a("""s_add_u32 s8, s8, 0x%x
        s_addc_u32 s9, s9, 0x%x
        s_and_b32 s6, s8, 0xbfffbfff
        s_and_b32 s7, s9, 0xbfffbfff
        s_bitcmp1_b32 s8, 0
        s_cselect_b32 s%d, 0x10001, 0
        s_xor_b32 s%d, s%d, 0x10000
        s_xor_b32 s%d, s%d, 0x10001
        s_xor_b32 s%d, s%d, 1""" % (TAGC_LO, TAGC_HI, t[0], t[1], t[0], t[2], t[0], t[3], t[0]))

    def flip_marks(self):
        for r in self.LT:
            self.a("s_xor_b32 s%d, s%d, 1" % (r, r))

    def mark(self, base, vmask):
        return ["v_and_or_b32 v%d, v%d, v%d, s%d" % (base + e, base + e, vmask, self.LT[e]) for e in range(4)]

    def markcheck(self, base, n, vacc):
        a = self.a
        X = [self.LT[0], self.LT[3], self.LT[2], self.LT[1]]
        for i in range(0, n, 2):
            a("v_xor_b32 v%d, s%d, v%d" % (base + i, X[i & 3], base + i))
            a("v_xor_b32 v%d, s%d, v%d" % (base + i + 1, X[(i + 1) & 3], base + i + 1))
            if i:
                a("v_bitop3_b32 v%d, v%d, v%d, v%d bitop3:0xfd" % (vacc, vacc, base + i, base + i + 1))
            else:
                a("v_bitop3_b32 v%d, v%d, v%d, v%d bitop3:0xfd" % (vacc, base, base, base + 1))
        a("v_and_b32 v%d, 0x10001, v%d" % (vacc, vacc))

    def tagcheck(self, pieces, vacc):
        a = self.a
        for i, p in enumerate(pieces):
            if i == 0:
                a("v_xor_b32 v%d, s%d, v%d" % (vacc, self.sTL, p + 1))
            else:
                a("v_bitop3_b32 v%d, v%d, v%d, s%d bitop3:0xf6" % (vacc, vacc, p + 1, self.sTL))
            a("v_bitop3_b32 v%d, v%d, v%d, s%d bitop3:0xf6" % (vacc, vacc, p + 3, self.sTH))

    def poll(self, issue, check, vacc, first_issued=False):
        a = self.a
        top, done, chk = a.newlabel("POLL"), a.newlabel("DONE"), a.newlabel("CHK")
        a("s_mov_b32 s%d, 0x%x" % (self.sCNT, POLL_LIMIT))
        if first_issued:
            a("s_branch " + chk)
        a.label(top)
        issue()
        if first_issued:
            a.label(chk)
        a("s_waitcnt vmcnt(0)")
        check()
        a("v_cmp_ne_u32 vcc, 0, v%d" % vacc)
        a("s_cbranch_vccz " + done)
        a("s_sleep %d" % self.opt.get("sl", 2))
        a("s_sub_u32 s%d, s%d, 1" % (self.sCNT, self.sCNT))
        a("s_cbranch_scc0 " + top)
        a.label(done)

    def diag_delay(self, name):
        n = self.opt.get(name, 0)
        if n:
            self.a("s_sleep %d" % n)

    def cvt(self, d, x, y):
        self.a("v_cvt_pk_bf16_f32 v%d, %s, %s" % (d, x, y))

    def build(self):
        a = self.a
        a.label("CODE0")
        if self.opt.get("probe"):
            a("s_memrealtime s[72:73]\ns_memrealtime s[76:77]")
            self.nst = 1
        if self.stamps:
            a("%s %s" % ("s_memtime" if self.opt.get("cyc") else "s_memrealtime", s(self.sST, 2)))
            self.nst = 1
        a("""v_lshrrev_b32 v2, 6, v0
        v_and_b32 v1, 63, v0
        s_and_b32 s4, s2, 7
        v_readfirstlane_b32 s3, v2
        s_lshr_b32 s5, s2, 3
        s_cmp_ge_u32 s5, 32
        s_cbranch_scc1 EXIT
        ROT""".replace("ROT", "s_cmp_lt_u32 s5, 24\ns_cbranch_scc1 NOT_B" if self.opt.get("rot", 24) == 0 else "s_sub_u32 s5, s5, 8\ns_cbranch_scc0 NOT_B"))
        n0 = self.nst
        self.b_head()
        a.label("EXIT")
        a("s_endpgm")
        a.label("NOT_B")
        a("s_cmp_ge_u32 s3, 4\ns_cbranch_scc1 LOADER")
        pc = a.newlabel("PC")
        if self.opt.get("pfs", 1):
            a("s_cmp_lg_u32 s3, 0\ns_cbranch_scc1 COMPUTE\ns_getpc_b64 s[56:57]")
            a.label(pc)
            a.items.append(("i", _sym_add("s_mov_b32 s58, ROLE_B-4-%s" % pc)))
            a("v_and_b32 v3, 7, v1\nv_mul_u32_u24 v3, 24, v3\nv_add_lshl_u32 v3, v3, s5, 7\nv_min_u32 v3, s58, v3\nglobal_load_dword v0, v3, s[56:57]\ns_branch COMPUTE")
        else:
            a("s_cmp_eq_u32 s3, 3\ns_cbranch_scc1 COMPUTE\ns_getpc_b64 s[56:57]")
            a.label(pc)
            a.items.append(("i", _sym_add("s_mov_b32 s58, ROLE_B-4-%s" % pc)))
            a("v_lshlrev_b32 v3, 7, v0\nv_min_u32 v3, s58, v3\nglobal_load_dword v0, v3, s[56:57]\ns_branch COMPUTE")
        a.label("LOADER")
        self.loader()
        self.nst = n0
        self.compute()
        self.nst = n0
        self.role_b()
        a.label("CODE_END")
        prot = [0, 1, 3, 4, 5, 60, 61, 70] + list(range(72, 102))
        if self.opt.get("walk", 0) & 1:
            a.walkify("WA_0", "WA_1", 3, "WRET_A", prot, "WKA")
            a.walkify("WL_0", "WL_1", 1, "WRET_A", prot, "WKL")
            a.walkify("WQ_0", "WQ_1", 2, "WRET_A", prot, "WKQ")
            a.walkify("WR_0", "WR_1", 1, "WRET_A", prot, "WKR")
        if self.opt.get("walk", 0) & 2:
            a.walkify("WB_0", "WB_1", 6, "WRET_B", prot, "WKB")
            a.walkify("WC_0", "WC_1", 1, "WRET_C", prot, "WKC")
        bad = a.check_branches()
        assert not bad, bad
        return a

    KARG = "s_load_dwordx16 s[16:31], s[0:1], 0\ns_load_dwordx2 s[32:33], s[0:1], 64"

    def b_head(self):
        a = self.a
        lab = a.newlabel("PC")
        a("s_load_dwordx2 s[44:45], s[0:1], 24")
        a("s_getpc_b64 s[56:57]")
        a.label(lab)
        a.items.append(("i", _sym_add("s_add_u32 s58, s56, TABLE-%s" % lab, 0x8000)))
        a("""s_addc_u32 s59, s57, 0
        v_lshlrev_b32 v2, 4, v1
        s_mul_i32 s66, s3, 3072
        v_add_u32 v7, s66, v2
        s_add_u32 m0, s66, %d
        s_and_b32 s5, s5, 31""" % TB)
        for q in range(3):
            a("global_load_lds_dwordx4 v7, s[58:59] offset:%d" % (q * 1024))
        a("""s_and_b32 s61, s5, 7
        s_lshl3_add_u32 s60, s4, s61
        s_lshl_b32 s62, s3, 7
        s_add_u32 s62, s62, s60
        s_lshl_b32 s62, s62, 10
        s_add_u32 s63, s62, 0x%x
        s_add_u32 s64, s62, 0x%x
        s_add_u32 s65, s62, 0x%x
        s_lshl_b32 s70, s3, 12
        s_mov_b32 m0, s70
        s_mov_b32 s46, 0x200000
        s_mov_b32 s47, 0x20000
        s_waitcnt lgkmcnt(0)""" % (0x100000 - 1024, 0x10000 - 2048, 0x110000 - 3072))
        for q in range(4):
            a("buffer_load_dwordx4 v2, %s, s%d offen offset:%d nt lds" % (s(self.rA, 4), 62 + q, q * 1024))
        a("s_cmp_ge_u32 s3, %d\ns_cbranch_scc1 ROLE_B" % (1 if self.opt.get("pfb", 1) else 2))
        a.items.append(("i", _sym_add("s_add_u32 s56, s56, ROLE_B-%s" % lab)))
        a("s_addc_u32 s57, s57, 0")
        a.items.append(("i", _sym_add("s_mov_b32 s58, CODE_END-4-ROLE_B")))
        if self.opt.get("pfb", 1):
            a("v_and_b32 v3, 15, v1\nv_lshlrev_b32 v3, 3, v3\nv_add_lshl_u32 v3, v3, s61, 7")
        else:
            a("v_lshlrev_b32 v3, 7, v0")
        a("v_min_u32 v3, s58, v3\nglobal_load_dword v0, v3, s[56:57]")
        a("s_branch ROLE_B")

    def loader(self):
        a = self.a
        ws = s(self.rWS, 4)
        self.role = "L"
        vX, vW = 4, 8
        a("""s_load_dwordx4 s[44:47], s[0:1], 0
        s_lshr_b32 s60, s4, 1
        s_and_b32 s63, s5, 3
        s_lshl2_add_u32 s60, s60, s63
        s_bfe_u32 s65, s5, 0x20002
        s_lshr_b32 s66, s5, 4
        s_lshl_b32 s70, s65, s66
        s_add_u32 s70, s70, s63
        s_and_b32 s70, s70, 3
        s_and_b32 s71, s70, 1
        XROT
        s_xor_b32 s70, s70, s13
        s_xor_b32 s71, s71, s13
        s_sub_u32 s58, s3, 4
        s_lshl2_add_u32 s63, s60, s58
        s_lshl_b32 s63, s63, 15
        v_lshrrev_b32 v2, 3, v1
        v_lshrrev_b32 v3, 4, v1
        v_and_b32 v12, 7, v1
        v_xor_b32 v12, v12, v3
        v_lshl_add_u32 v12, v12, 4, s63
        v_lshl_add_u32 v4, v2, 10, v12
        v_xor_b32 v5, 64, v4
        v_add_u32 v5, 0x1c00, v5
        v_add_u32 v6, 0x3800, v4
        v_add_u32 v7, 0x3800, v5
        s_lshl_b32 s59, s58, 12""".replace("XROT", {0: "s_mov_b32 s13, 0",
            1: "s_lshl_b32 s13, s4, 2\ns_xor_b32 s13, s13, s4\ns_and_b32 s13, s13, 6",
            2: "s_lshl_b32 s13, s4, 2\ns_xor_b32 s13, s13, s4\ns_and_b32 s13, s13, 4",
            3: "s_lshl_b32 s13, s4, 1\ns_lshr_b32 s14, s4, 1\ns_xor_b32 s13, s13, s14\ns_and_b32 s13, s13, 3",
            4: "s_lshl_b32 s13, s66, 1"}[self.opt.get("xrot", 0)]))

        def kchunk(c):
            base = 0
            for r in [int(x) for x in str(self.opt.get("rounds", 1124))]:
                if c < base + r:
                    break
                base += r
            src = {4: "s70", 2: "s71", 1: "s13"}[r]
            assert base % r == 0
            a("s_xor_b32 s62, %s, %d" % (src, c))

        def issue_x(c):
            a("s_add_u32 m0, s59, %d" % ((c % 5) * 32768))
            kchunk(c)
            a("s_lshl_b32 s63, s62, 7")
            if c == 0:
                a("s_waitcnt lgkmcnt(0)\ns_mov_b64 s[48:49], s[46:47]\ns_mov_b32 s46, 0x200000\ns_mov_b32 s47, 0x20000")
            for j in range(4):
                a("buffer_load_dwordx4 v%d, %s, s63 offen offset:%d lds" % (vX + j, s(self.rA, 4), j * 1024))

        def issue_w(c):
            a("s_add_u32 m0, s59, %d" % ((c % 5) * 32768 + 16384))
            a("s_mul_i32 s64, s62, 0x30000")
            for j in range(4):
                a("buffer_load_dwordx4 v%d, %s, s64 offen offset:%d lds" % (vW + j, s(self.rB, 4), j * 1024))

        def issue(c):
            issue_x(c)
            issue_w(c)

        issue_x(0)
        a(self.KARG)
        a("""s_and_b32 s64, s4, 1
        s_lshl2_add_u32 s61, s64, s65
        s_lshl1_add_u32 s66, s64, s65
        s_lshl_b32 s63, s61, 7
        s_add_u32 s63, s63, 1024
        s_lshl_b32 s64, s66, 8
        s_cmp_ge_u32 s5, 16
        s_cselect_b32 s63, s64, s63
        s_cselect_b32 s64, 7, 10
        v_bfe_u32 v12, v1, 2, 2
        v_xor_b32 v12, v12, v3
        v_lshrrev_b32 v13, 1, v12
        v_lshlrev_b32 v13, s64, v13
        v_and_b32 v14, 1, v12
        v_lshl_add_u32 v13, v14, 6, v13
        v_and_b32 v14, 3, v1
        v_lshl_add_u32 v13, v14, 4, v13
        v_mul_u32_u24 v15, 0xc00, v3
        s_mul_i32 s65, s58, 0xc000
        s_add_u32 s65, s65, s63
        v_add3_u32 v8, v13, v15, s65
        v_add_u32 v9, 0x2c00, v8
        v_add_u32 v10, 0x5800, v8
        v_add_u32 v11, 0x8400, v8
        s_mov_b32 s50, 0x180000
        s_mov_b32 s51, 0x20000""")
        issue_w(0)
        H = ["x0", "w0"]
        if self.opt.get("w4e"):
            plan = [["w4", "x1"], ["w1", "x2", "w2"], ["x3", "w3"], ["x4", "x5"], ["w5", "x6"], ["w6", "x7"], ["w7"]]
            if self.opt["w4e"] == 2:
                plan = [["w4", "x1"], ["w1", "x2", "w2"], ["x3", "w3", "x4"], [], ["x5", "w5"], ["x6", "w6"], ["x7", "w7"]]
        else:
            plan = [["x1", "w1"]] + [["x%d" % k, "w%d" % k] for k in range(2, 8)]

        def half(h):
            c = int(h[1])
            if h[0] == "x":
                issue_x(c)
            else:
                if H[-1] != "x%d" % c:
                    kchunk(c)
                issue_w(c)
            H.append(h)

        half(plan[0][0])
        a("s_waitcnt lgkmcnt(0)")
        a("s_load_dwordx2 s[8:9], s[32:33], %d" % WS_EP)
        half(plan[0][1])
        self.srd(self.rWS, self.pWS, WS_SIZE)
        self.srd(self.rOUT, self.pOUT, 2048 * 2048)
        a("s_waitcnt lgkmcnt(0)")
        self.tags()
        groups = list(range(8))
        waitc = lambda c: a("s_waitcnt vmcnt(%d)\ns_barrier" % (4 * (len(H) - 1 - max(H.index("x%d" % c), H.index("w%d" % c))) + 8 * (len(groups) - 8)))
        for c in range(6):
            waitc(c)
            if c == 0:
                self.stamp()
            for h in plan[c + 1]:
                half(h)
        c = 6
        cq, gq = c, list(groups)
        a("s_cmp_ge_u32 s5, 16\ns_cbranch_scc1 QLOADER")
        n0 = self.nst
        WSLOT = [3, 4, 0, 2]
        self.srd(self.rC, self.pWO, 512 * 1024)
        a("""s_and_b32 s68, s5, 3
        s_lshl_b32 s69, s58, 13
        v_lshlrev_b32 v16, 6, v12
        v_lshl_add_u32 v16, v14, 4, v16
        v_lshl_add_u32 v16, v3, 10, v16
        s_lshl_b32 s65, s58, 15
        s_lshr_b32 s66, s5, 2
        s_lshl_b32 s66, s66, 8
        s_add_u32 s65, s65, s66
        v_add_u32 v16, s65, v16
        v_add_u32 v17, 0xc00, v16
        v_add_u32 v18, 0x1800, v16
        v_add_u32 v19, 0x2400, v16""")

        def issue_wo(n, sl=None):
            slot = (WSLOT[n] if sl is None else sl) * 32768
            a("s_add_u32 m0, s69, %d" % slot)
            a("s_xor_b32 s63, s68, %d\ns_lshl_b32 s63, s63, 17" % n)
            for j in range(4):
                a("buffer_load_dwordx4 v%d, %s, s63 offen offset:%d lds" % (16 + j, s(self.rC, 4), j * 1024))
            a("s_add_u32 m0, s69, %d" % (slot + 4096))
            a("s_add_u32 s63, s63, 0x4000")
            for j in range(4):
                a("buffer_load_dwordx4 v%d, %s, s63 offen offset:%d lds" % (16 + j, s(self.rC, 4), j * 1024))

        def read_wo(n, sl=None):
            ad, off = {4: (0, 0), 0: (14, 0), 1: (14, 32768), 3: (15, 32768), 2: (15, 0)}[WSLOT[n] if sl is None else sl]
            for h in range(8):
                r = 128 + 32 * n + 4 * h
                a("ds_read_b64_tr_b16 %s, v%d offset:%d" % (v(r, 2), ad, off + h * 4096))
                a("ds_read_b64_tr_b16 %s, v%d offset:%d" % (v(r + 2, 2), ad, off + h * 4096 + 2048))

        wsched = {self.opt.get("w0", 6): [0]}
        wsched.setdefault(self.opt.get("w1", 7), []).append(1)
        w2late = self.opt.get("w2late", 0)
        if not w2late:
            wsched.setdefault(7, []).append(2)
        for c in range(cq, 8):
            waitc(c)
            if c == 7:
                self.stamp()
            for n in wsched.get(c, []):
                issue_wo(n)
                groups.append("w%d" % n)
        assert len(groups) == 11 - w2late
        a.label("WL_0")
        self.wo_addr()
        self.tail_addr()
        a("s_waitcnt vmcnt(0)")
        self.stamp()
        a("s_barrier")
        if w2late:
            WSLOT[:] = [3, 4, 2, 1]
        if w2late:
            issue_wo(2)
        issue_wo(3)
        self.read_wo = read_wo
        if self.opt.get("wide"):
            for j in range(4):
                a("v_xor_b32 v%d, 0x100, v%d" % (16 + j, 16 + j))
            issue_wo(0, 1)
            for n in range(3):
                read_wo(n)
            a("s_waitcnt vmcnt(0) lgkmcnt(0)\ns_barrier")
            self.stamp()
            if self.opt["wide"] == 1:
                self.w_pqload()
            for n in range(1, 4):
                issue_wo(n, WSLOT[n - 1])
            read_wo(3)
            if self.opt["wide"] == 3:
                self.w_pqload()
                a("s_waitcnt vmcnt(4)")
            if self.opt["wide"] == 2:
                a("s_waitcnt vmcnt(0)")
        else:
            for n in range(3 - w2late):
                read_wo(n)
        a.label("WL_1")
        a("s_branch KV_TAIL")
        self.kv_tail_nst = self.nst
        self.nst = n0
        a.label("QLOADER")
        self.role = "R"
        self.reducer_setup()
        del groups[8:]
        for c in range(cq, 8):
            waitc(c)
        if self.opt.get("prewrite", 1):
            lab = a.newlabel("NOZ")
            a("s_cmp_gt_u32 s71, 8\ns_cbranch_scc1 " + lab)
            a("buffer_store_dwordx4 v[32:35], v21, %s, s67 offen sc1" % ws)
            a.label(lab)
        lab = a.newlabel("PC")
        a("s_getpc_b64 s[56:57]")
        a.label(lab)
        a.items.append(("i", _sym_add("s_add_u32 s56, s56, TABLE-%s" % lab, 0x8000)))
        a("s_addc_u32 s57, s57, 0\nv_lshlrev_b32 v2, 4, v1\nv_add_u32 v3, s59, v2\ns_add_u32 m0, s59, %d" % TB)
        for q in range(4):
            a("global_load_lds_dwordx4 v3, s[56:57] offset:%d" % (q * 1024))
        self.ra_inv(1, 84)
        a("ds_write_b64 v90, v[88:89]")
        a("s_waitcnt vmcnt(0) lgkmcnt(0)\ns_barrier")
        self.stamp()
        self.reducer()

    def ra_inv(self, half, t):
        self.a("""v_and_b32 v{0}, 7, v1
        v_lshlrev_b32 v{0}, 6, v{0}
        s_add_u32 s62, s60, {h}
        v_add_u32 v{0}, s62, v{0}
        v_cvt_f32_u32 v{0}, v{0}
        v_mul_f32 v{0}, {c1}, v{0}
        s_lshr_b32 s62, s3, 1
        s_and_b32 s15, s3, 1
        s_lshl2_add_u32 s14, s62, s15
        s_lshl_b32 s14, s14, 1
        v_lshrrev_b32 v{1}, 5, v1
        v_lshl_add_u32 v{1}, v{1}, 2, s14
        v_cvt_f32_u32 v{1}, v{1}
        v_bfe_u32 v{2}, v1, 3, 1
        v_cvt_f32_u32 v{2}, v{2}
        v_mul_f32 v{2}, {c2}, v{2}
        v_fma_f32 v{1}, v{1}, v{0}, v{2}
        v_lshlrev_b32 v{2}, 27, v1
        v_and_b32 v{2}, 0x80000000, v{2}
        v_or_b32 v{2}, {c3}, v{2}
        v_add_f32 v{3}, v{1}, v{2}
        v_sub_f32 v{2}, v{0}, v{2}
        v_add_f32 v{2}, v{1}, v{2}
        v_cos_f32 v{0}, v{3}
        v_sin_f32 v{3}, v{3}
        v_cos_f32 v{1}, v{2}
        v_sin_f32 v{2}, v{2}
        s_lshl_b32 s62, s62, 10
        s_lshl3_add_u32 s62, s15, s62
        s_add_u32 s62, s62, {rab}
        v_add_u32 v{6}, s62, v2
        v_cvt_pk_bf16_f32 v{4}, v{0}, -v{3}
        v_cvt_pk_bf16_f32 v{5}, v{1}, -v{2}""".format(*[t + i for i in range(7)], h=512 * half, c1=fhex(1 / 2048), c2=fhex(-0.25),
                                                      c3=fhex(0.125), rab=RAB))

    def reducer_setup(self):
        a = self.a
        a("""s_lshl3_add_u32 s60, s4, s5
        s_sub_u32 s60, s60, 16
        s_lshr_b32 s61, s60, 2
        s_and_b32 s71, s60, 3
        s_lshl2_add_u32 s71, s58, s71
        s_mul_i32 s63, s61, %d
        s_lshl_b32 s64, s71, 7
        s_add_u32 s63, s63, s64
        s_add_u32 s63, s63, 0x%x
        s_mul_i32 s67, s61, %d
        s_add_u32 s67, s67, s64
        s_add_u32 s67, s67, 0x%x
        s_add_u32 s64, s63, %d
        s_add_u32 s65, s63, %d
        s_add_u32 s66, s63, %d""" % (32 * PLINE, WS_PART, PLINE, WS_RED, 8 * PLINE, 16 * PLINE, 24 * PLINE))
        a("""v_lshrrev_b32 v2, 3, v1
        v_and_b32 v3, 7, v1
        v_lshlrev_b32 v3, 4, v3
        v_mov_b32 v22, %d
        v_mad_u32_u24 v20, v2, v22, v3
        v_mov_b32 v22, 0x%x
        v_mad_u32_u24 v21, v2, v22, v3""" % (PLINE, RED_STRIDE))
        a("""v_and_b32 v2, 1, v1
        v_lshlrev_b32 v2, 4, v2
        v_mov_b32 v3, 0x3f80
        v_lshlrev_b32 v3, v2, v3
        v_and_b32 v2, 2, v1
        v_cmp_eq_u32 vcc, 0, v2
        v_mov_b32 v24, 0
        v_mov_b32 v25, 0
        v_mov_b32 v28, 0
        v_mov_b32 v29, 0
        v_cndmask_b32 v26, 0, v3, vcc
        v_cndmask_b32 v27, v3, v25, vcc
        v_mov_b32 v32, 0xfffefffe
        v_mov_b32 v33, 0
        v_mov_b32 v34, 0
        v_mov_b32 v35, 0""")

    def reducer(self):
        a = self.a
        ws = s(self.rWS, 4)
        D, acc, vacc, o = 40, 72, 80, 36
        lab = a.newlabel("NORED")
        n0 = self.nst
        self.pad_stamps(9)
        self.nst = n0
        a("s_cmp_gt_u32 s71, 8\ns_cbranch_scc1 HELPER")
        a.label("WR_0")
        self.diag_delay("d_part")
        self.poll(lambda: [a("buffer_load_dwordx4 %s, v20, %s, s%d offen sc1" % (v(D + 4 * i, 4), ws, 63 + i)) for i in range(4)],
                  lambda: self.markcheck(D, 16, vacc), vacc)
        self.stamp()
        for i in range(4):
            for h in range(2):
                a("%s %s, %s, %s, %s" % (M16, v(acc + 4 * h, 4), v(26 - 2 * h, 4), v(D + 4 * i, 4), v(acc + 4 * h, 4) if i else "0"))
        for r in range(8):
            a("v_add_f32_dpp v%d, v%d, v%d row_ror:8 row_mask:0xf bank_mask:0xf" % (56 + r, acc + r, acc + r))
        for j in range(4):
            self.cvt(o + j, v(56 + 2 * j), v(57 + 2 * j))
        for x in self.mark(o, 32):
            a(x)
        a("buffer_store_dwordx4 %s, v21, %s, s67 offen sc1" % (v(o, 4), ws))
        a.label("WR_1")
        self.stamp()
        self.pad_stamps(9)
        a("s_branch HELPER")

    def lds_reset(self):
        self.lq_issued = 0
        self.lq_done = 0

    def lds(self, line):
        self.a(line)
        self.lq_issued += 1
        return self.lq_issued

    def lds_wait(self, seq):
        if seq > self.lq_done:
            n = min(self.lq_issued - seq, 15)
            self.a("s_waitcnt lgkmcnt(%d)" % n)
            self.lq_done = self.lq_issued - n

    @staticmethod
    def cost(line):
        m = line.split()[0]
        if m == "MARK":
            return 0
        if m.startswith(("v_exp", "v_rcp", "v_sin", "v_cos")):
            return 8
        return 4

    def run_mfmas(self, mf, frags, pool, fillers, budget=24, maxread=2, maxout=14, hooks=None):
        a = self.a
        order = []
        last = {}
        for j, (_, ids) in enumerate(mf):
            for i in ids:
                if i not in last:
                    order.append(i)
                last[i] = j
        pool = list(pool)
        reg, seq = {}, {}
        rp = [0, 0]
        q = []

        def one_read():
            i = order[rp[0]]
            reads, pre = frags[i]
            if rp[1] == 0:
                if not pool:
                    return False
                if pre:
                    pre()
                reg[i] = pool.pop(0)
            sq = self.lds(reads[rp[1]].format(r=v(reg[i], 4), lo=v(reg[i], 2), hi=v(reg[i] + 2, 2)))
            rp[1] += 1
            if rp[1] == len(reads):
                seq[i] = sq
                rp[0] += 1
                rp[1] = 0
            return True

        while rp[0] < len(order) and self.lq_issued - self.lq_done < maxout - 2 and pool and not (rp[0] and frags[order[rp[0]]][1]):
            one_read()
        for j, (fmt, ids) in enumerate(mf):
            for i in ids:
                while i not in seq:
                    assert one_read()
            if ids:
                self.lds_wait(max(seq[i] for i in ids))
            a(fmt.format(*[v(reg[i], 4) for i in ids]))
            for i in ids:
                if last[i] == j:
                    pool.append(reg[i])
            if hooks and j in hooks:
                hooks[j]()
            b = budget
            k = 0
            while k < maxread and rp[0] < len(order) and self.lq_issued - self.lq_done < maxout:
                gate = frags[order[rp[0]]]
                if rp[1] == 0 and len(gate) > 2 and gate[2]() is False:
                    break
                if not one_read():
                    break
                k += 1
                b -= 4
            q += fillers.get(j, [])
            while q and b >= self.cost(q[0]):
                if self.opt.get("upf", 1) and q[0].startswith("v_pk_"):
                    q[0:1] = unpack_pk(q[0])
                x = q.pop(0)
                b -= self.cost(x)
                self.emit_filler(x)
            self.fq = q
        return q

    def emit_filler(self, x):
        if x == "MARK":
            pass
        elif x.startswith("ds_"):
            self.last_fill_lds = self.lds(x)
        elif x.startswith("WAITLDS"):
            self.lds_wait(self.last_fill_lds - int(x.split()[1]))
        else:
            self.a(x)

    def gemm_loop(self, acc, pool, ax, aw, xfirst, fill, Z, hooks=None):
        a = self.a
        frags, mf = {}, []
        seen = set()

        def fx(n, mb, tag):
            c, ks = n >> 2, n & 3
            slot = c % 5
            hi, so = slot >> 1, (slot & 1) * 32768
            pre = None
            if ("x", n, mb, tag) in frags:
                return ("x", n, mb, tag)
            if c not in seen:
                seen.add(c)
                pre = (lambda: a("s_barrier")) if c else None
            frags[("x", n, mb, tag)] = (["ds_read_b128 {r}, v%d offset:%d" % (ax[hi][ks], so + 4096 * mb)], pre)
            return ("x", n, mb, tag)

        def fw(n, nb):
            c, ks = n >> 2, n & 3
            slot = c % 5
            hi, so = slot >> 1, (slot & 1) * 32768 + 16384 + ks * 4096
            frags[("w", n, nb)] = (["ds_read_b64_tr_b16 {lo}, v%d offset:%d" % (aw[hi][nb], so),
                                    "ds_read_b64_tr_b16 {hi}, v%d offset:%d" % (aw[hi][nb], so + 1024)], None)
            return ("w", n, nb)

        def add(n, nbs, tag):
            X = [fx(n, 0, tag), fx(n, 1, tag)]
            for nb in nbs:
                W = fw(n, nb)
                for mb in range(2):
                    d = v(acc[mb][nb], 16)
                    mf.append(("v_mfma_f32_32x32x16_bf16 %s, %s, %s" % (d, "{0}, {1}" if xfirst else "{1}, {0}", d if n else "0"), [X[mb], W]))

        for n in range(32 - Z):
            add(n, (0, 1), 0)
        for n in range(32 - Z, 32):
            add(n, (0,), 0)
        j0 = len(mf)
        for n in range(32 - Z, 32):
            add(n, (1,), 0 if self.opt.get("keepx", 1) else 1)
        a("s_barrier")
        self.stamp()
        self.lds_reset()
        return self.run_mfmas(mf, frags, pool, {j0 + 1: fill}, hooks=hooks)

    def phi(self, src, dst, tmp, n):
        L = []
        for g in range(0, n, 8):
            for j in range(0, 8, 2):
                L.append("v_pk_mul_f32 %s, %s, s[56:57]" % (v(tmp + j, 2), v(src + g + j, 2)))
            for j in range(8):
                L.append("v_exp_f32_e64 v%d, v%d clamp" % (tmp + j, tmp + j))
                L.append("v_max_f32 v%d, s58, v%d" % (src + g + j, src + g + j))
            for j in range(0, 8, 2):
                L.append("v_pk_add_f32 %s, %s, %s" % (v(tmp + j, 2), v(tmp + j, 2), v(src + g + j, 2)))
            for j in range(0, 8, 2):
                L.append("v_cvt_pk_bf16_f32 v%d, v%d, v%d" % (dst + (g + j) // 2, tmp + j, tmp + j + 1))
        return L

    def compute(self):
        a = self.a
        ws = s(self.rWS, 4)
        a.label("COMPUTE")
        self.role = "K"
        if self.opt.get("walk", 0) & 1:
            a("""s_mov_b64 exec, 0
            s_cmp_ge_u32 s5, 16
            s_cbranch_scc1 WKQ
            s_cmp_eq_u32 s3, 0
            s_cbranch_scc1 WKA0
            s_cmp_eq_u32 s3, 1
            s_cbranch_scc1 WKA1
            s_cmp_eq_u32 s3, 2
            s_cbranch_scc1 WKA2
            s_branch WKL0""")
            a.label("WKQ")
            a("""s_cmp_eq_u32 s3, 0
            s_cbranch_scc1 WKQ0
            s_cmp_eq_u32 s3, 1
            s_cbranch_scc1 WKQ1
            s_cmp_eq_u32 s3, 2
            s_cbranch_scc1 WKR0
            s_branch WKC0""" if self.opt.get("walk", 0) & 2 else "s_cmp_eq_u32 s3, 0\ns_cbranch_scc1 WKQ0\ns_cmp_eq_u32 s3, 1\ns_cbranch_scc1 WKQ1\ns_branch WKR0")
            a.label("WRET_A")
            a("s_mov_b64 exec, -1\ns_waitcnt lgkmcnt(0)\ns_nop 15")
        ax = [[240, 241, 242, 243], [244, 245, 246, 247], [252, 253, 254, 255]]
        aw = [[248, 249], [250, 251], [146, 147]]
        a("""s_lshr_b32 s60, s4, 1
        s_and_b32 s68, s5, 3
        s_lshl2_add_u32 s60, s60, s68
        s_and_b32 s64, s4, 1
        s_bfe_u32 s65, s5, 0x20002
        s_lshl2_add_u32 s61, s64, s65
        s_lshl1_add_u32 s66, s64, s65
        s_lshr_b32 s63, s3, 1
        s_and_b32 s64, s3, 1
        s_lshr_b32 s67, s5, 4
        s_lshl_b32 s69, s64, s67
        s_movk_i32 s70, 128
        s_lshr_b32 s70, s70, s67
        s_cmp_ge_u32 s5, 16
        s_cselect_b32 s61, s66, s61
        s_mov_b32 s10, 0xffff0000
        s_mov_b32 s11, 0xffff0000""")
        a(self.KARG)
        a("""v_and_b32 v2, 31, v1
        v_lshlrev_b32 v2, 7, v2
        s_lshl_b32 s65, s63, 13
        v_add_u32 v2, s65, v2
        v_lshrrev_b32 v3, 5, v1
        v_bfe_u32 v16, v1, 1, 3
        v_xor_b32 v16, v16, v3
        v_lshl_add_u32 v240, v16, 4, v2
        v_xor_b32 v241, 32, v240
        v_xor_b32 v242, 64, v240
        v_xor_b32 v243, 96, v240""")
        a("""v_bfe_u32 v16, v1, 2, 2
        v_lshl_add_u32 v17, v3, 3, v16
        v_xor_b32 v16, s69, v16
        v_lshlrev_b32 v16, 6, v16
        v_lshl_add_u32 v16, v17, 8, v16
        v_bfe_u32 v17, v1, 4, 1
        v_lshl_add_u32 v16, v17, 5, v16
        v_and_b32 v17, 3, v1
        v_lshl_add_u32 v248, v17, 3, v16
        v_xor_b32 v249, s70, v248""")
        for k in range(4):
            a("v_add_u32 v%d, 0x10000, v%d" % (244 + k, 240 + k))
            a("v_add_u32 v%d, 0x20000, v%d" % (252 + k, 240 + k))
        a("v_add_u32 v250, 0x10000, v248\nv_add_u32 v251, 0x10000, v249\nv_add_u32 v146, 0x20000, v248\nv_add_u32 v147, 0x20000, v249")
        a("s_waitcnt lgkmcnt(0)")
        a("s_load_dwordx2 s[8:9], s[32:33], %d" % WS_EP)
        self.srd(self.rWS, self.pWS, WS_SIZE)
        self.srd(self.rOUT, self.pOUT, 2048 * 2048)
        a("s_mov_b32 s56, %s\ns_mov_b32 s57, %s\ns_mov_b32 s58, %s" % (fhex(1.4426950408889634), fhex(1.4426950408889634), fhex(1e-6)))
        a("v_lshlrev_b32 v2, 4, v1")
        acc = [[64, 96], [80, 112]]
        pool = list(range(16, 64, 4))
        Z = self.opt.get("z", 6)
        CN = 252
        a("s_cmp_ge_u32 s5, 16\ns_cbranch_scc1 QCOMPUTE")
        n0 = self.nst
        a("""s_lshl1_add_u32 s59, s61, s64
        s_lshl_b32 s59, s59, 5
        s_lshl1_add_u32 s66, s60, s63
        s_add_u32 s59, s59, s66
        s_mul_i32 s59, s59, %d
        s_add_u32 s59, s59, 0x%x""" % (PLINE, WS_PART))
        P0, P1, PZ, ONES, zaddr = 128, 132, 136, 140, 144
        pk, vv, tmp, D, D2 = 180, 196, 212, 148, 164
        for j in range(4):
            a("v_mov_b32 v%d, 0x3f803f80" % (ONES + j))

        def prewrite():
            a("buffer_store_dwordx4 %s, v2, %s, s59 offen sc1" % (v(ONES, 4), ws))
            a("s_mov_b64 exec, 0xff")
            a("buffer_store_dwordx4 %s, v2, %s, s59 offen offset:1024 sc1" % (v(ONES, 4), ws))
            a("s_mov_b64 exec, -1")

        pw = self.opt.get("prewrite", 1)
        if pw == 1:
            prewrite()
        a("""v_lshrrev_b32 v3, 4, v1
        v_and_b32 v145, 1, v1
        v_lshl_add_u32 v4, v3, 1, v145
        v_lshlrev_b32 v%d, 4, v4
        v_mov_b32 v145, 0xfffefffe
        s_mov_b32 s60, 0x00030003
        s_mov_b32 s61, 0x00030003""" % zaddr)
        self.tail_addr()
        a("s_waitcnt lgkmcnt(0)")
        self.tags()
        K0, K1, V0, V1 = acc[0][0], acc[1][0], acc[0][1], acc[1][1]
        fill = []
        for i, src in enumerate((K0, K0 + 8, K1, K1 + 8)):
            fill += self.phi(src, pk + 4 * i, tmp, 8) + ["MARK"]
        hooks = {100: lambda: a("s_waitcnt vmcnt(0)")}
        if pw > 1:
            hooks[pw] = prewrite
        big = list(range(148, 180, 4)) + list(range(220, 240, 4)) if self.opt.get("keepx", 1) else []
        hooks[128 - 2 * Z] = lambda: a.label("WA_0")
        rest = self.gemm_loop(acc, pool + big, ax, aw, True, fill, Z, hooks)
        self.stamp()
        ndone = 4 - rest.count("MARK")
        vsrc = (V0, V0 + 8, V1, V1 + 8)
        vcvt = lambda i: ["v_cvt_pk_bf16_f32 v%d, v%d, v%d" % (vv + 4 * i + j, vsrc[i] + 2 * j, vsrc[i] + 2 * j + 1) for j in range(4)]
        mD = lambda i: "%s %s, %s, %s, %s" % (M32, v(D, 16), v(pk + 4 * i, 4), v(vv + 4 * i, 4), v(D, 16) if i else "0")
        mZ = lambda i: "%s %s, %s, %s, %s" % (M32, v(D2, 16), v(pk + 4 * i, 4), v(ONES, 4), v(D2, 16) if i else "0")
        pend = [x for i in range(ndone) for x in ([mZ(i)], vcvt(i) + [mD(i)])]
        g, gap = ndone, 0
        for k, x in enumerate(rest):
            if x == "MARK":
                pend += [[mZ(g)], vcvt(g) + [mD(g)]]
                g += 1
                continue
            run = 0
            while k + run < len(rest) and rest[k + run].startswith(("v_exp", "v_max")):
                run += 1
            if pend and run >= 5 and gap <= 0:
                for y in pend.pop(0):
                    a(y)
                gap = 5
            a(x)
            gap -= 1
        cv = [y for it in pend for y in it if y.startswith("v_cvt")]
        zs = [y for it in pend for y in it if y.startswith("v_mfma") and v(ONES, 4) in y]
        ds = [y for it in pend for y in it if y.startswith("v_mfma") and v(ONES, 4) not in y]
        for y in cv[:4] + zs + cv[4:] + ds:
            a(y)
        for src, p in ((D2, PZ), (D, P0)):
            for j in range(4):
                self.cvt(p + j, v(src + 2 * j), v(src + 2 * j + 1))
            a("s_mov_b64 exec, s[10:11]")
            for j in range(4):
                self.cvt(p + j, v(src + 8 + 2 * j), v(src + 9 + 2 * j))
            a("s_mov_b64 exec, %s" % ("s[60:61]" if p == PZ else "-1"))
            for x in self.mark(p, 145):
                a(x)
            if p == PZ:
                a("buffer_store_dwordx4 %s, v%d, %s, s59 offen offset:1024 sc1" % (v(PZ, 4), zaddr, ws))
                a("s_mov_b64 exec, -1")
            else:
                a("buffer_store_dwordx4 %s, v2, %s, s59 offen sc1" % (v(p, 4), ws))
        self.stamp()
        a("s_barrier")
        if self.opt.get("wide"):
            self.wo_addr()
            if self.opt["wide"] == 1:
                a("s_waitcnt vmcnt(0)")
            a("s_barrier")
            self.stamp()
            if self.opt["wide"] == 1:
                self.w_pqload()
            self.read_wo(0, 1)
            assert self.nst == self.kv_tail_nst
            self.wide_tail()
        else:
            assert self.nst == self.kv_tail_nst
            self.kv_tail()
        a.label("WA_1")
        a("s_endpgm")
        self.nst = n0
        a.label("QCOMPUTE")
        a.unpk = False
        self.role = "Q"
        a("""s_lshl1_add_u32 s66, s60, s63
        s_lshl2_add_u32 s66, s66, s61
        s_lshl1_add_u32 s66, s66, s64
        s_lshl_b32 s65, s66, 13
        s_add_u32 s65, s65, 0x%x
        s_add_u32 s67, s65, 0x1000
        v_mov_b32 v4, 0xfffefffe
        s_lshl3_add_u32 s60, s4, s5
        s_sub_u32 s60, s60, 16""" % WS_PQ)
        self.ra_inv(1, 8)
        a("s_waitcnt lgkmcnt(0)")
        self.tags()

        def qpost(nb):
            L = []
            for mb in range(2):
                for h in range(2):
                    d = 128 + 16 * nb + 8 * mb + 4 * h
                    L += self.phi(acc[mb][nb] + 8 * h, d, 212, 8) + self.mark(d, 4)
                    L.append("buffer_store_dwordx4 %s, v2, %s, s%d offen offset:%d sc1" % (v(d, 4), ws, 67 if nb else 65, (h * 2 + mb) * 1024))
            return L

        big = list(range(160, 212, 4)) if self.opt.get("keepx", 1) else []
        rest = self.gemm_loop(acc, pool + big, ax, aw, False, qpost(0), self.opt.get("zq", 6), {100: lambda: a("s_waitcnt vmcnt(0)"), 128 - 2 * self.opt.get("zq", 6): lambda: a.label("WQ_0")})
        self.stamp()
        a("ds_write_b64 v14, v[12:13]")
        for x in rest + qpost(1):
            a(x)
        a.label("WQ_1")
        a("s_waitcnt vmcnt(%d) lgkmcnt(0)\ns_barrier" % self.opt.get("qdr", 0))
        self.stamp()
        self.pad_stamps(9)
        a.label("HELPER")
        a("s_lshl_b32 s62, s60, 7\ns_add_u32 s62, s62, 0x%x\ns_movk_i32 s34, 512" % WS_GO)
        self.flip_marks()
        a("s_branch B3_ENTRY")

    def wo_addr(self):
        a = self.a
        a("s_and_b32 s63, s3, 3")
        a("""v_bfe_u32 v14, v1, 2, 2
        v_lshrrev_b32 v15, 5, v1
        v_lshl_add_u32 v15, v15, 2, v14
        v_xor_b32 v14, s63, v14
        v_lshlrev_b32 v14, 6, v14
        v_lshl_add_u32 v14, v15, 8, v14
        v_and_b32 v15, 1, v1
        v_lshl_add_u32 v14, v15, 5, v14
        v_bfe_u32 v15, v1, 4, 1
        v_lshl_add_u32 v14, v15, 4, v14
        v_bfe_u32 v15, v1, 1, 1
        v_lshl_add_u32 v14, v15, 3, v14
        v_add_u32 v15, 0x10000, v14
        v_add_u32 v0, 0x20000, v14""")

    def tail_addr(self):
        a = self.a
        a("""v_lshlrev_b32 v2, 4, v1
        s_and_b32 s65, s5, 3
        s_lshl2_add_u32 s65, s4, s65
        s_lshl3_add_u32 s66, s65, s3
        s_lshl_b32 s67, s66, 13
        s_add_u32 s67, s67, 0x%x
        s_mul_i32 s70, s3, %d
        s_mul_i32 s71, s4, 0x%x
        s_add_u32 s70, s70, s71
        s_add_u32 s70, s70, 0x%x
        s_add_u32 s71, s70, %d
        v_lshrrev_b32 v8, 4, v1
        v_xor_b32 v8, 1, v8
        v_and_b32 v9, 1, v1
        v_lshl_add_u32 v8, v8, 1, v9
        v_lshlrev_b32 v8, 4, v8
        s_lshl_b32 s63, s3, 12
        v_add_u32 v13, s63, v2
        s_mov_b32 s10, 0xffff0000
        s_mov_b32 s11, 0xffff0000""" % (WS_PQ, 2 * PLINE, RED_STRIDE, WS_RED, PLINE))
        if self.opt.get("wide"):
            a("s_bfe_u32 s63, s5, 0x10002\ns_lshl_b32 s63, s63, 10\ns_add_u32 s67, s67, s63\ns_add_u32 s71, s67, 0x1000")

    def w_pqload(self):
        for i in range(4):
            self.a("buffer_load_dwordx4 %s, v2, %s, s%d offen offset:%d sc1" % (v(32 + 4 * i, 4), s(self.rWS, 4), 71 if i >= 2 else 67, (i & 1) * 2048))

    def wide_tail(self):
        a = self.a
        ws = s(self.rWS, 4)
        a.label("KV_TAIL")
        WO, PQ, RD, OP, AC = 128, 32, 48, 16, 64
        a("""s_mov_b32 s58, %s
        s_lshl_b32 s63, s5, 13
        s_and_b32 s64, s63, 0x6000
        s_add_u32 s64, s64, 0x8000
        v_add_u32 v4, s64, v2
        v_xor_b32 v5, 0x2000, v4
        v_xor_b32 v6, 0x4000, v4
        v_xor_b32 v7, 0x6000, v4
        s_lshl_b32 s63, s3, 11
        s_add_u32 s63, s63, 0x10000
        v_and_b32 v10, 31, v1
        v_bfe_u32 v11, v1, 1, 2
        v_lshrrev_b32 v9, 5, v1
        v_lshlrev_b32 v9, 1, v9
        v_xor_b32 v11, v11, v9
        v_lshlrev_b32 v11, 4, v11
        v_lshl_add_u32 v10, v10, 6, v11
        v_add_u32 v10, s63, v10
        v_bfe_u32 v9, v1, 3, 2
        v_lshlrev_b32 v9, 4, v9
        v_xor_b32 v9, v9, v2
        v_add_u32 v9, s63, v9
        v_lshrrev_b32 v3, 2, v1
        v_and_b32 v11, 3, v1
        v_lshlrev_b32 v11, 4, v11
        v_lshl_add_u32 v3, v3, 11, v11
        v_xor_b32 v11, 16, v10
        s_lshr_b32 s63, s5, 2
        s_and_b32 s64, s63, 1
        s_lshl1_add_u32 s65, s65, s64
        s_lshl_b32 s65, s65, 16
        s_lshl_b32 s63, s63, 2
        s_xor_b32 s63, s63, s3
        s_xor_b32 s63, s63, 4
        s_lshl_b32 s63, s63, 6
        s_add_u32 s64, s65, s63
        s_add_u32 s65, s64, 0x8000""" % fhex(1e-6))
        wd = self.opt["wide"]
        if wd == 1:
            self.poll(self.w_pqload, lambda: self.markcheck(PQ, 16, 12), 12, first_issued=True)
        a("s_waitcnt lgkmcnt(0)\ns_barrier")
        self.stamp()
        if wd == 2:
            self.w_pqload()
        if wd == 3:
            lab = a.newlabel("NOPQ")
            a("s_cmp_ge_u32 s3, 4\ns_cbranch_scc1 " + lab)
            self.w_pqload()
            a.label(lab)

        def issue():
            for pi in range(2):
                a("buffer_load_dwordx4 %s, v2, %s, s70 offen offset:%d sc1" % (v(RD + 8 * pi, 4), ws, pi * PLINE))
                a("buffer_load_dwordx4 %s, v8, %s, s70 offen offset:%d sc1" % (v(RD + 8 * pi + 4, 4), ws, pi * PLINE + 1024))

        self.diag_delay("d_red")
        issue()
        lab = a.newlabel("NOWO")
        a("s_cmp_ge_u32 s3, 4\ns_cbranch_scc1 " + lab)
        for n, sl in ((1, 3), (2, 4), (3, 0)):
            self.read_wo(n, sl)
        a.label(lab)
        if wd != 1:
            self.poll(self.w_pqload, lambda: self.markcheck(PQ, 16, 12), 12, first_issued=True)
        self.poll(issue, lambda: self.markcheck(RD, 16, 12), 12, first_issued=True)
        self.stamp()

        def sel(i):
            b = RD + 8 * (i >> 1)
            for j in range(4):
                x, y = (b + j, b + 4 + j) if i & 1 == 0 else (b + 4 + j, b + j)
                a("v_cndmask_b32 v%d, v%d, v%d, s[10:11]" % (OP + 4 * i + j, x, y))

        mf = lambda i: a("%s %s, %s, %s, 0" % (M32, v(AC + 16 * i, 16), v(OP + 4 * i, 4), v(PQ + 4 * i, 4)))
        sel(0)
        sel(1)
        mf(0)
        sel(2)
        mf(1)
        sel(3)
        mf(2)
        for i in range(4):
            d = AC + 16 * i
            num, den = (d, d + 8) if i & 1 == 0 else (d + 8, d)
            if i == 0:
                mf(3)
            a("v_add_f32 v%d, s58, v%d\nv_rcp_f32 v%d, v%d" % (den, den, den, den))
            for j in range(0, 8, 2):
                a("v_pk_mul_f32 %s, %s, %s op_sel_hi:[1,0]" % (v(num + j, 2), v(num + j, 2), v(den, 2)))
            for j in range(4):
                self.cvt(den + 4 + j, v(num + 2 * j), v(num + 2 * j + 1))
            a("ds_write_b128 v13, %s offset:%d" % (v(den + 4, 4), 32768 + i * 1024))
        a("s_waitcnt lgkmcnt(0)\ns_barrier")
        self.stamp()
        frags, mfl = {}, []
        d = v(AC, 16)
        for h in range(32):
            frags[h] = (["ds_read_b128 {r}, v%d offset:%d" % (4 + (h >> 3), (h & 7) * 1024)], None)
            mfl.append(("%s %s, %s, {0}, %s" % (M32, d, v(WO + 4 * h, 4), d if h else "0"), [h]))
        self.lds_reset()
        self.run_mfmas(mfl, frags, list(range(16, 48, 4)), {}, maxread=1)
        fl = self.opt.get("outflag", "sc1")
        t = AC + 16
        for j in range(8):
            self.cvt(t + j, v(AC + 2 * j), v(AC + 2 * j + 1))
        a("ds_write_b128 v10, %s\nds_write_b128 v11, %s" % (v(t, 4), v(t + 4, 4)))
        a("ds_read_b128 %s, v9\nds_read_b128 %s, v9 offset:1024" % (v(t + 8, 4), v(t + 12, 4)))
        for k in range(2):
            a("s_waitcnt lgkmcnt(%d)" % (1 - k))
            a("buffer_store_dwordx4 %s, v3, %s, s%d offen %s" % (v(t + 8 + 4 * k, 4), s(self.rOUT, 4), 64 + k, fl))
        lab = a.newlabel("NOEP")
        a("s_or_b32 s56, s4, s3\ns_or_b32 s56, s56, s5\ns_cbranch_scc1 " + lab)
        self.poll(lambda: a("buffer_load_dwordx2 v[6:7], off, %s, 0 offset:%d sc1" % (ws, WS_NOTE)),
                  lambda: a("v_xor_b32 v12, s6, v6\nv_bitop3_b32 v12, v12, v7, s7 bitop3:0xf6"), 12)
        a("v_mov_b32 v6, s8\nv_mov_b32 v7, s9\ns_mov_b64 exec, 1")
        a("buffer_store_dwordx2 v[6:7], off, %s, 0 offset:%d" % (ws, WS_EP))
        a("s_mov_b64 exec, -1")
        a.label(lab)
        self.end()

    def kv_tail(self):
        a = self.a
        ws = s(self.rWS, 4)
        a.label("KV_TAIL")
        a.unpk = bool(self.opt.get("unpk", 2) & 2)
        WO, PQ, RD, OP, AC = 128, 16, 48, 80, 96
        a("s_waitcnt vmcnt(0)")
        a("s_add_u32 s68, s67, 0x1000\ns_mov_b32 s58, %s" % fhex(1e-6))
        pqload = lambda: [a("buffer_load_dwordx4 %s, v2, %s, s%d offen offset:%d sc1" % (v(PQ + 4 * i, 4), ws, 68 if i >= 4 else 67, (i & 3) * 1024)) for i in range(8)]
        self.diag_delay("d_pq")
        pql = self.opt.get("pqlate", 1)
        if pql != 1:
            pqload()
        if pql == 2:
            self.stamp()
            self.poll(pqload, lambda: self.markcheck(PQ, 32, 12), 12, first_issued=True)
        a("s_waitcnt lgkmcnt(0)\ns_barrier")
        self.stamp()
        if pql == 1:
            pqload()
        lab = a.newlabel("NOWO")
        a("s_cmp_lt_u32 s3, 4\ns_cbranch_scc1 " + lab)
        if self.opt.get("w2late", 0):
            self.read_wo(2)
        self.read_wo(3)
        a.label(lab)
        if pql != 2:
            self.poll(pqload, lambda: self.markcheck(PQ, 32, 12), 12, first_issued=True)
            self.stamp()

        def issue():
            for pi in range(2):
                a("buffer_load_dwordx4 %s, v2, %s, s70 offen offset:%d sc1" % (v(RD + 8 * pi, 4), ws, pi * PLINE))
                a("buffer_load_dwordx4 %s, v8, %s, s70 offen offset:%d sc1" % (v(RD + 8 * pi + 4, 4), ws, pi * PLINE + 1024))

        a("""s_lshl_b32 s63, s5, 13
        s_and_b32 s64, s63, 0x6000
        s_add_u32 s64, s64, OBASE
        v_add_u32 v13, OBASE, v13
        v_add_u32 v4, s64, v2
        v_xor_b32 v5, 0x2000, v4
        v_xor_b32 v6, 0x4000, v4
        v_xor_b32 v7, 0x6000, v4
        s_lshl_b32 s69, s3, 12
        s_add_u32 s69, s69, STG
        v_and_b32 v10, 31, v1
        v_bfe_u32 v14, v1, 1, 2
        v_lshrrev_b32 v15, 5, v1
        v_lshlrev_b32 v15, 1, v15
        v_xor_b32 v14, v14, v15
        v_lshlrev_b32 v14, 4, v14
        v_lshl_add_u32 v10, v10, 6, v14
        v_add_u32 v10, s69, v10
        v_xor_b32 v14, 16, v10
        v_bfe_u32 v15, v1, 3, 2
        v_lshlrev_b32 v15, 4, v15
        v_xor_b32 v15, v15, v2
        v_add_u32 v15, s69, v15
        v_lshrrev_b32 v3, 2, v1
        v_and_b32 v11, 3, v1
        v_lshlrev_b32 v11, 4, v11
        v_lshl_add_u32 v3, v3, 11, v11
        s_lshl_b32 s65, s65, 17
        s_lshr_b32 s69, s5, 2
        s_and_b32 s64, s3, 3
        s_lshl2_add_u32 s69, s69, s64
        s_lshl_b32 s69, s69, 6
        s_add_u32 s64, s65, s69
        s_add_u32 s65, s64, 0x8000
        s_add_u32 s66, s64, 0x10000
        s_add_u32 s67, s64, 0x18000""".replace("OBASE", "0x18000" if self.opt.get("w2late", 0) else "0").replace("STG", "0" if self.opt.get("w2late", 0) else "0x14000"))
        if self.opt.get("rbar"):
            a("s_barrier")
        self.diag_delay("d_red")
        self.poll(issue, lambda: self.markcheck(RD, 16, 12), 12)
        self.stamp()
        accs = [AC, AC + 16, RD, RD + 16]

        def sel(i):
            pi, h = i >> 1, i & 1
            b = RD + 8 * pi
            for j in range(4):
                x, y = (b + j, b + 4 + j) if h == 0 else (b + 4 + j, b + j)
                a("v_cndmask_b32 v%d, v%d, v%d, s[10:11]" % (OP + 4 * i + j, x, y))

        def mf(i, mb, d):
            return "%s %s, %s, %s, 0" % (M32, v(d, 16), v(OP + 4 * i, 4), v(PQ + 4 * (i * 2 + mb), 4))

        def post(i, mb, d):
            pi, h = i >> 1, i & 1
            num, den = (d, d + 8) if h == 0 else (d + 8, d)
            L = ["v_add_f32 v%d, s58, v%d" % (den, den), "v_rcp_f32 v%d, v%d" % (den, den)]
            for j in range(0, 8, 2):
                L.append("v_pk_mul_f32 %s, %s, %s op_sel_hi:[1,0]" % (v(num + j, 2), v(num + j, 2), v(den, 2)))
            for j in range(4):
                L.append("v_cvt_pk_bf16_f32 v%d, v%d, v%d" % (den + 4 + j, num + 2 * j, num + 2 * j + 1))
            L.append("ds_write_b128 v13, %s offset:%d" % (v(den + 4, 4), mb * 32768 + i * 1024))
            return L

        sel(0)
        sel(1)
        a(mf(0, 0, accs[0]))
        sel(2)
        a(mf(1, 0, accs[1]))
        sel(3)
        a(mf(2, 0, accs[2]))
        for i in range(4):
            if i == 0:
                a(mf(3, 0, accs[3]))
            for x in post(i, 0, accs[i]):
                a(x)
        acc1 = [RD, RD + 16, AC + 16, RD]
        a(mf(0, 1, acc1[0]))
        a(mf(1, 1, acc1[1]))
        a("s_waitcnt lgkmcnt(0)\ns_barrier")
        self.stamp()
        a("s_cmp_ge_u32 s3, 4\ns_cbranch_scc1 OUT_GEMM")
        n0 = self.nst
        a(mf(2, 1, acc1[2]))
        a(mf(3, 1, AC))
        a.unpk = bool(self.opt.get("upf", 1))
        for i in range(4):
            for x in post(i, 1, acc1[i] if i < 3 else AC):
                a(x)
        a.unpk = False
        a("s_waitcnt lgkmcnt(0)\ns_barrier")
        lab = a.newlabel("NOEP")
        a("s_or_b32 s56, s4, s3\ns_or_b32 s56, s56, s5\ns_cbranch_scc1 " + lab)
        self.poll(lambda: a("buffer_load_dwordx2 v[6:7], off, %s, 0 offset:%d sc1" % (ws, WS_NOTE)),
                  lambda: a("v_xor_b32 v12, s6, v6\nv_bitop3_b32 v12, v12, v7, s7 bitop3:0xf6"), 12)
        a("v_mov_b32 v6, s8\nv_mov_b32 v7, s9\ns_mov_b64 exec, 1")
        a("buffer_store_dwordx2 v[6:7], off, %s, 0 offset:%d" % (ws, WS_EP))
        a("s_mov_b64 exec, -1")
        a.label(lab)
        self.end()
        self.nst = n0
        a.label("OUT_GEMM")
        fl = self.opt.get("outflag", "sc1")
        out = s(self.rOUT, 4)
        frags, mfl = {}, []
        pool = [PQ + 8 * i for i in range(4)] + [PQ + 4, PQ + 12]

        def b11b():
            assert not self.fq
            self.lds_wait(self.last_fill_lds)
            a("s_barrier")

        AC2 = OP
        for mb in range(2):
            d = v(AC2 if mb else AC, 16)
            for h in range(32):
                frags[(mb, h)] = (["ds_read_b128 {r}, v%d offset:%d" % (4 + (h >> 3), mb * 32768 + (h & 7) * 1024)],
                                  b11b if (mb, h) == (1, 0) else None)
                mfl.append(("%s %s, %s, {0}, %s" % (M32, d, v(WO + 4 * h, 4), d if h else "0"), [(mb, h)]))
                if mb == 0 and h == 0:
                    mfl.append((mf(2, 1, acc1[2]), []))
                if mb == 0 and h == 5:
                    mfl.append((mf(3, 1, acc1[3]), []))

        def epi(mb, d, t):
            L = ["v_cvt_pk_bf16_f32 v%d, v%d, v%d" % (t + j, d + 2 * j, d + 2 * j + 1) for j in range(8)]
            L += ["ds_write_b128 v10, %s offset:%d" % (v(t, 4), mb * 2048), "ds_write_b128 v14, %s offset:%d" % (v(t + 4, 4), mb * 2048),
                  "ds_read_b128 %s, v15 offset:%d" % (v(t + 8, 4), mb * 2048), "ds_read_b128 %s, v15 offset:%d" % (v(t + 12, 4), mb * 2048 + 1024)]
            L2 = ["WAITLDS 1", "buffer_store_dwordx4 %s, v3, %s, s%d offen %s" % (v(t + 8, 4), out, 64 + 2 * mb, fl),
                  "WAITLDS 0", "buffer_store_dwordx4 %s, v3, %s, s%d offen %s" % (v(t + 12, 4), out, 65 + 2 * mb, fl)]
            return L, L2

        e0, e0b = epi(0, AC, RD)
        fillers = {0: post(0, 1, acc1[0]) + post(1, 1, acc1[1]), 7: post(2, 1, acc1[2]), 11: post(3, 1, acc1[3]), 36: e0, 46: e0b}
        self.lds_reset()
        rest = self.run_mfmas(mfl, frags, pool, fillers, maxread=1)
        assert not rest
        e1, e1b = epi(1, AC2, RD + 16)
        for x in e1 + e1b:
            self.emit_filler(x)
        self.end()

    def role_b(self):
        a = self.a
        a.label("ROLE_B")
        a.unpk = bool(self.opt.get("unpk", 2) & 1)
        self.role = "B"
        ws = s(self.rWS, 4)
        XW, SW, XW3 = 0, 3, 1
        if self.opt.get("walk", 0) & 2:
            a("s_mov_b64 exec, 0")
            for w in range(1, 7):
                a("s_cmp_eq_u32 s3, %d\ns_cbranch_scc1 WKB%d" % (w, w - 1))
            a("s_cmp_eq_u32 s3, 7\ns_cbranch_scc1 WKC0")
            a.label("WRET_C")
            a("s_cmp_lt_u32 s5, 24\ns_cbranch_scc1 WRET_A" if self.opt.get("walk", 0) & 1 else "s_nop 0")
            a.label("WRET_B")
            a("s_mov_b64 exec, -1\ns_waitcnt lgkmcnt(0)\ns_nop 15")
        a(self.KARG)
        a("s_waitcnt lgkmcnt(0)")
        a("s_load_dwordx2 s[8:9], s[32:33], %d" % WS_EP)
        self.srd(self.rWS, self.pWS, WS_SIZE)
        a("""v_lshrrev_b32 v4, 5, v1
        v_and_b32 v5, 31, v1
        v_lshlrev_b32 v6, 4, v5
        v_lshl_add_u32 v3, s3, 3, v4
        v_xor_b32 v3, s60, v3
        v_lshl_add_u32 v3, v3, 9, v6
        v_lshl_add_u32 v11, v4, 3, s3
        v_xor_b32 v8, s60, v11
        v_lshl_add_u32 v11, v11, 15, v6
        v_lshl_add_u32 v11, v8, 9, v11
        s_lshl_b32 s66, s60, 15
        s_add_u32 s66, s66, 0x%x
        s_mov_b32 s13, 0x%x
        v_mov_b32 v14, 0xfffefffe""" % (WS_X1, WS_X1))
        a("""s_lshl_b32 s67, s4, 10
        s_add_u32 s67, s67, 0x%x
        v_and_b32 v12, 15, v1
        v_lshrrev_b32 v13, 4, v1
        s_xor_b32 s71, s61, 7
        s_xor_b32 s62, s3, %d
        s_or_b32 s71, s71, s62""" % (WS_X2S, SW))
        a("""s_bitcmp1_b32 s61, 0
        s_cselect_b64 s[48:49], s[26:27], s[24:25]
        s_cselect_b64 s[52:53], s[24:25], s[26:27]
        s_cselect_b32 s34, 0x8000, 0
        s_mov_b32 s50, 0x%x
        s_mov_b32 s51, 0x20000
        s_mov_b32 s54, 0x%x
        s_mov_b32 s55, 0x20000
        s_add_u32 s34, s34, s70
        s_add_u32 s34, s34, %d
        s_xor_b32 s35, s34, 0x8000""" % (2048 * 514, 2048 * 514, WB))
        self.srd(self.rOUT, self.pOUT, 2048 * 2048)

        CS, TW0, TWX, F16 = 16, 40, 48, 56
        RA = 64
        T = 144
        a("""v_cvt_f32_u32 v16, v5
        s_bfe_u32 s62, s3, 0x10001
        s_and_b32 s63, s3, 1
        s_lshl2_add_u32 s62, s62, s63
        s_lshl_b32 s62, s62, 7
        s_add_u32 s62, s62, s60
        v_lshl_add_u32 v17, v4, 8, s62
        v_cvt_f32_u32 v17, v17
        v_mul_f32 v17, v17, v16
        s_lshr_b32 s62, s3, 2
        v_xor_b32 v18, s62, v1
        v_lshlrev_b32 v18, 31, v18
        v_or_b32 v18, %s, v18
        v_fmamk_f32 v17, v17, %s, v18
        v_fmamk_f32 v18, v16, %s, v17
        s_lshl_b32 s62, s62, 31
        v_cos_f32 v20, v17
        v_sin_f32 v21, v17
        v_cos_f32 v22, v18
        v_sin_f32 v23, v18
        s_lshr_b32 s64, s3, 1
        s_lshl_b32 s64, s64, 10
        s_lshl3_add_u32 s64, s63, s64
        s_add_u32 s64, s64, %d
        v_add_u32 v15, s64, v2""" % (fhex(0.125), fhex(1 / 2048), fhex(1 / 32), RAB))
        a("""v_cvt_pk_bf16_f32 v24, v20, v21
        v_cvt_pk_bf16_f32 v25, v22, v23
        v_cvt_pk_bf16_f32 v26, -v21, v20
        v_cvt_pk_bf16_f32 v27, -v23, v22
        v_xor_b32 v24, s62, v24
        v_xor_b32 v25, s62, v25
        v_xor_b32 v26, s62, v26
        v_xor_b32 v27, s62, v27
        ds_write_b64 v15, v[24:25]
        ds_write_b64 v15, v[26:27] offset:4096""")
        self.ra_inv(0, 136)
        a("s_lshl_b32 s14, s60, 9\ns_add_u32 s14, s14, 0x%x\ns_and_b32 s63, s3, 1" % (WS_X1 + 64 * 32768))
        FA = 128
        a("""v_bfe_u32 v16, v1, 3, 2
        s_lshl_b32 s62, s4, 2
        v_add_u32 v17, s62, v16
        v_lshl_add_u32 v17, v4, 5, v17
        v_mul_u32_u24 v17, 514, v17
        v_and_b32 v17, -16, v17
        v_sub_u32 v16, v1, v16
        v_and_b32 v18, 7, v16
        v_xor_b32 v19, 4, v18
        v_cmp_gt_u32 s[68:69], 5, v18
        v_cmp_gt_u32 s[58:59], 5, v19
        v_lshl_add_u32 v128, v18, 4, v17
        v_lshl_add_u32 v129, v19, 4, v17""")
        a("""v_lshl_add_u32 v7, v1, 3, s70
        s_lshr_b32 s62, s3, 1
        s_lshl_b32 s62, s62, 13
        s_lshl3_add_u32 s62, s63, s62
        s_add_u32 s62, s62, %d
        v_lshlrev_b32 v8, 11, v13
        v_lshl_add_u32 v8, v12, 4, v8
        v_add_u32 v8, s62, v8
        v_lshl_add_u32 v10, s3, 5, v5
        v_lshlrev_b32 v130, 13, v4
        v_add_u32 v130, %d, v130
        v_lshl_add_u32 v9, v10, 4, v130
        v_sub_u32 v10, 0, v10
        v_and_b32 v10, 0x1ff, v10
        v_lshl_add_u32 v10, v10, 4, v130
        v_add_u32 v131, %d, v2
        s_mul_i32 s62, s3, %d
        s_lshl_b32 s63, s61, 6
        s_add_u32 s62, s62, s63
        s_add_u32 s63, s62, %d
        s_add_u32 s64, s62, %d
        s_add_u32 s65, s62, %d
        s_waitcnt lgkmcnt(0)""" % (ZB, ZB, TB, 8 * 32 * 514, 64 * 514 - 1024, 128 * 514 - 2048, 192 * 514 - 3072))
        self.tags()

        def tab(reg, q, n):
            for i in range(n):
                a("ds_read_b128 %s, v131 offset:%d" % (v(reg + 4 * i, 4), (q + i) * 1024))

        fdp = [int(x) for x in str(self.opt.get("fdp", "2402"))[-4:].rjust(4, "0")]
        fdn = [0]

        def fnext(n=1):
            for _ in range(n):
                fdma(fdn[0] >> 2, fdn[0] & 3)
                fdn[0] += 1

        def fdma(second, q):
            a("s_mov_b64 exec, %s\ns_mov_b32 m0, s%d\nbuffer_load_dwordx4 v%d, %s, s%d offen offset:%d nt lds\ns_mov_b64 exec, -1" % (
                "s[58:59]" if q >> 1 else "s[68:69]", 35 if second else 34, FA + (q >> 1), s(52 if second else 48, 4), 62 + q, q * 1024),
              at=60 + self.opt.get("fgap", 170) * (fdn[0] - fdp[0]))

        ls = self.opt.get("ls", 0)
        msc = self.opt.get("msc", 10) / 10.0
        a("s_waitcnt vmcnt(%d)\ns_barrier" % 4)
        XF, T1, U = T, T + 16, T + 48
        early = self.opt.get("cearly", 6)
        tab(CS, TQ_CS, early)
        nb = 0
        fnext(fdp[0])
        a("s_waitcnt vmcnt(%d)" % (fdp[0] + nb))
        self.stamp()
        a.label("WB_0")
        pre = ["ds_read_b128 %s, v131" % v(CS + 4 * i, 4) for i in range(early)]
        a.capture(ls & 1)
        for q in range(4):
            a("ds_read_b64_tr_b16 %s, v7 offset:%d" % (v(XF + 4 * q, 2), q * 1024))
            a("ds_read_b64_tr_b16 %s, v7 offset:%d" % (v(XF + 4 * q + 2, 2), q * 1024 + 512))
        tab(CS + 4 * early, TQ_CS + early, 12 - early)
        a("s_mov_b32 s22, 0x80000\ns_mov_b32 s23, 0x20000\ns_lshl3_add_u32 s15, s60, s3\ns_lshl_b32 s15, s15, 10\nbuffer_load_dwordx4 v[116:119], v2, s[20:23], s15 offen", at=56)
        sp1 = [(fdp[1] + 3 - i) // 4 for i in range(4)]
        fnext(sp1[0])

        def stage_cs(re, im, out, conj):
            S, N = (CS + 16, CS + 8) if conj else (CS + 8, CS + 16)
            for tau in range(2):
                a("%s %s, %s, %s, 0" % (M16, v(out + 4 * tau, 4), v(re, 4), v(CS + 4 * tau, 4)))
                a("%s %s, %s, %s, 0" % (M16, v(out + 8 + 4 * tau, 4), v(im, 4), v(CS + 4 * tau, 4)))
                a("%s %s, %s, %s, %s" % (M16, v(out + 4 * tau, 4), v(im, 4), v(S + 4 * tau, 4), v(out + 4 * tau, 4)))
                a("%s %s, %s, %s, %s" % (M16, v(out + 8 + 4 * tau, 4), v(re, 4), v(N + 4 * tau, 4), v(out + 8 + 4 * tau, 4)))

        def twiddle(t, tws, tmp, conj):
            for tau in range(2):
                for j in (0, 2):
                    re, im = t + 4 * tau + j, t + 8 + 4 * tau + j
                    sn_ = tws[tau] + 4 + j
                    k = tmp + 8 * tau + 2 * j
                    a("v_pk_mul_f32 %s, %s, %s" % (v(k, 2), v(im, 2), v(sn_, 2)))
                    a("v_pk_mul_f32 %s, %s, %s" % (v(k + 2, 2), v(re, 2), v(sn_, 2)))
            ng = " neg_lo:[0,0,1] neg_hi:[0,0,1]"
            for tau in range(2):
                for j in (0, 2):
                    re, im = t + 4 * tau + j, t + 8 + 4 * tau + j
                    c = tws[tau] + j
                    k = tmp + 8 * tau + 2 * j
                    a("v_pk_fma_f32 %s, %s, %s, %s%s" % (v(re, 2), v(re, 2), v(c, 2), v(k, 2), ng if conj else ""))
                    a("v_pk_fma_f32 %s, %s, %s, %s%s" % (v(im, 2), v(im, 2), v(c, 2), v(k + 2, 2), "" if conj else ng))

        a("s_waitcnt lgkmcnt(%d)" % (16 - early))
        stage_cs(XF, XF + 4, T1, False)
        a("s_waitcnt lgkmcnt(%d)" % (12 - early))
        stage_cs(XF + 8, XF + 12, T1 + 16, False)
        fnext(sp1[1])
        a("s_waitcnt lgkmcnt(0)")
        tab(RA, 24, 8)
        for m in range(2):
            t = T1 + 16 * m
            twiddle(t, [TW0, TWX], T + 64 + 16 * m, False)
            for tau in range(2):
                u = U + 8 * m + 4 * tau
                self.cvt(u, v(t + 4 * tau), v(t + 4 * tau + 1))
                self.cvt(u + 1, v(t + 4 * tau + 2), v(t + 4 * tau + 3))
                self.cvt(u + 2, v(t + 8 + 4 * tau), v(t + 8 + 4 * tau + 1))
                self.cvt(u + 3, v(t + 8 + 4 * tau + 2), v(t + 8 + 4 * tau + 3))
            for tau in range(2):
                u = U + 8 * m + 4 * tau
                a("%s %s, %s, %s, 0" % (M16, v(t + 4 * tau, 4), v(F16, 4), v(u, 4)))
                a("%s %s, %s, %s, 0" % (M16, v(t + 8 + 4 * tau, 4), v(F16 + 4, 4), v(u, 4)))
            fnext(sp1[2 + m])
        fd = 2 if fdp[3] == 0 else 1
        ZW = T + 96
        for i in range(8):
            self.cvt(ZW + 2 * i, v(T1 + i), v(T1 + 8 + i))
        for i in range(8):
            self.cvt(ZW + 2 * i + 1, v(T1 + 16 + i), v(T1 + 24 + i))
            a("ds_write_b64 v8, %s offset:%d" % (v(ZW + 2 * i, 2), (i >> 2) * 256 + (i & 3) * 512))
        print("B1", a.flush(pre, mf_scale=msc))
        a("s_waitcnt lgkmcnt(0)\ns_barrier")
        self.stamp()
        for f in range(4):
            a("ds_read_b128 %s, v%d offset:%d" % (v(XF + 4 * f, 4), 9 + (f >> 1), (f & 1) * 16384))
        fnext(fdp[2])
        PC = T + 48

        def pieces(src, j, dst, mark=True):
            for h in range(2):
                self.cvt(dst + h, v(src + 4 * j + 2 * h), v(src + 4 * j + 2 * h + 1))
                self.cvt(dst + 2 + h, v(src + 16 + 4 * j + 2 * h), v(src + 16 + 4 * j + 2 * h + 1))
            if mark:
                for x in self.mark(dst, 14):
                    a(x)

        for f in range(4):
            a("s_waitcnt lgkmcnt(%d)" % (3 - f))
            for ri in range(2):
                d = v(T1 + 16 * ri, 16)
                a("%s %s, %s, %s, %s" % (M32, d, v(RA + 16 * ri + 4 * f, 4), v(XF + 4 * f, 4), d if f else "0"))
        XE, TE = T + 64, T + 80
        a("ds_write_b64 v142, v[140:141]")
        a("ds_read_b128 %s, v130 offset:4096\nds_read_b128 %s, v130 offset:%d" % (v(XE, 4), v(XE + 4, 4), 4096 + 16384))
        a("v_lshlrev_b32 v16, 1, v6\nv_lshl_add_u32 v16, v4, 4, v16")
        if fd == 2:
            a("s_waitcnt vmcnt(0)")
        for j in range(4):
            pieces(T1, j, PC + 4 * j)
            a("buffer_store_dwordx4 %s, v11, %s, s13 offen sc1" % (v(PC + 4 * j, 4), ws))
            if j < 3:
                a("v_xor_b32 v11, 0x%x, v11" % ((j ^ (j + 1)) * 0x82000))
        a("s_waitcnt lgkmcnt(0)")
        lab = a.newlabel("NOX")
        a("s_cmp_lg_u32 s3, %d\ns_cbranch_scc1 %s" % (XW, lab))
        for f in range(4):
            for ri in range(2):
                d = v(TE + 16 * ri, 16)
                a("%s %s, %s, %s, %s" % (M32, d, v(RA + 16 * ri + 4 * f, 4), v(XE + 4 * (f & 1), 4), d if f else "0"))
        for j in range(4):
            a("s_mov_b32 exec_lo, %d\ns_mov_b32 exec_hi, %d" % (1 << j, 1 << j))
            pieces(TE, j, XE + 8, False)
        a("s_mov_b32 exec_lo, 15\ns_mov_b32 exec_hi, 15")
        for x in self.mark(XE + 8, 14):
            a(x)
        a("buffer_store_dwordx4 %s, v16, %s, s14 offen sc1" % (v(XE + 8, 4), ws))
        a("s_mov_b64 exec, -1")
        a.label(lab)
        self.stamp()
        fnext(fdp[3])
        assert fdn[0] == 8

        F32 = 16
        FL = 48
        LD, LD2 = 96, 112
        FL2 = T + 64
        DAT, FR, TM = T, T + 32, T + 48
        tab(F32, TQ_F32, 4)
        tab(FR, TQ_OM, 4)
        a("""v_lshrrev_b32 v11, 2, v1
        v_xor_b32 v11, v11, v4
        v_lshlrev_b32 v129, 9, v11
        v_and_b32 v11, 3, v1
        v_lshl_add_u32 v129, v11, 4, v129
        s_lshl_b32 s62, s4, 4
        v_xor_b32 v129, s62, v129
        v_bfe_u32 v6, v1, 2, 3
        v_lshlrev_b32 v6, 12, v6
        v_lshl_add_u32 v6, v11, 4, v6
        s_and_b32 s62, s3, 1
        v_xor_b32 v11, s62, v4
        v_lshl_add_u32 v6, v11, 6, v6
        s_lshl_b32 s62, s3, 9
        s_add_u32 s62, s62, %d
        v_add_u32 v6, s62, v6
        v_xor_b32 v11, 0x400, v3
        v_xor_b32 v134, 0x800, v3
        v_xor_b32 v135, 0xc00, v3
        s_add_u32 s70, s70, %d
        v_and_b32 v132, 1, v13
        v_lshl_add_u32 v132, v13, 3, v132
        v_bfe_u32 v133, v1, 3, 1
        v_lshl_add_u32 v132, v133, 1, v132
        v_lshlrev_b32 v132, 6, v132
        v_and_b32 v133, 3, v1
        v_lshl_add_u32 v132, v133, 4, v132
        v_bfe_u32 v133, v1, 2, 1
        v_lshl_add_u32 v132, v133, 3, v132
        v_add_u32 v132, s70, v132
        v_xor_b32 v133, 64, v132""" % (ZB, ZB))
        MB = [3, 11, 134, 135]

        def faddr(dst, kk, t1, t2):
            a("""v_and_b32 v{t2}, 3, v12
            s_lshl_b32 s15, s4, 2
            v_add_u32 v{t1}, s15, v{t2}
            v_and_b32 v{t1}, 7, v{t1}
            v_add_lshl_u32 v{t1}, v{t1}, v{kk}, 1
            v_lshl_add_u32 v{t1}, v{t2}, 4, v{t1}
            v_lshl_add_u32 v{t1}, v13, 6, v{t1}
            v_and_b32 v{t1}, 0x7f, v{t1}
            v_lshl_add_u32 v{t1}, v{t2}, 7, v{t1}
            v_lshl_add_u32 v{t1}, v13, 11, v{t1}
            v_add_u32 v{dst}, {wb}, v{t1}""".format(dst=dst, kk=kk, t1=t1, t2=t2, wb=WB))

        a("v_lshrrev_b32 v%d, 2, v12\nv_lshl_add_u32 v%d, s3, 2, v%d" % (LD, LD, LD))
        faddr(128, LD, LD + 1, LD + 2)
        a("""v_lshl_add_u32 v15, s3, 2, v13
        v_and_b32 v5, 7, v12
        v_xor_b32 v15, v15, v5
        v_lshlrev_b32 v15, 4, v15
        v_lshl_add_u32 v15, v12, 10, v15
        s_and_b32 s63, s3, 1
        s_lshl_b32 s64, s63, 6
        v_xor_b32 v7, s64, v2
        s_lshl_b32 s64, s3, 12
        v_add_u32 v7, s64, v7
        v_xor_b32 v136, 16, v7
        v_xor_b32 v137, 32, v7
        v_xor_b32 v138, 48, v7
        s_mov_b32 s64, 0x80008000
        s_waitcnt lgkmcnt(0)""")
        for i in range(16):
            a(("v_xor_b32 v%d, s64, v%d" if i & 1 else "v_mov_b32 v%d, v%d") % (F32 + 16 + i, F32 + i))
        if fd != 2:
            a("s_waitcnt vmcnt(0)")
        a("s_barrier")
        self.stamp()

        def fread(addr):
            for arr in range(2):
                for pm in range(2):
                    for t in range(8):
                        a("ds_read_u16_d16_hi v%d, v%d offset:%d" % (DAT + 16 * arr + 8 * pm + t, addr, arr * 32768 + pm * 16384 + (t >> 2) * 8192 + (t & 3) * 512))

        def filt(dst, raw, both=True):
            for j in range(0, 8, 2):
                a("v_pk_add_f32 %s, %s, %s" % (v(dst + j, 2), v(raw + j, 2), v(raw + 8 + j, 2)))
                a("v_pk_add_f32 %s, %s, %s" % (v(dst + 8 + j, 2), v(raw + 16 + j, 2), v(raw + 24 + j, 2)))
                a("v_pk_add_f32 %s, %s, %s neg_lo:[0,1] neg_hi:[0,1]" % (v(raw + j, 2), v(raw + j, 2), v(raw + 8 + j, 2)))
                a("v_pk_add_f32 %s, %s, %s neg_lo:[0,1] neg_hi:[0,1]" % (v(raw + 16 + j, 2), v(raw + 16 + j, 2), v(raw + 24 + j, 2)))
            ng = " neg_lo:[0,0,1] neg_hi:[0,0,1]"
            for j in range(0, 8, 2):
                dr, di, c, sn_ = v(raw + j, 2), v(raw + 16 + j, 2), v(FR + j, 2), v(FR + 8 + j, 2)
                t1, t2 = v(raw + 8 + j, 2), v(raw + 24 + j, 2)
                a("v_pk_mul_f32 %s, %s, %s" % (t1, di, sn_))
                a("v_pk_mul_f32 %s, %s, %s" % (t2, dr, sn_))
                a("v_pk_fma_f32 %s, %s, %s, %s" % (v(dst + 16 + j, 2), dr, c, t1))
                a("v_pk_fma_f32 %s, %s, %s, %s%s" % (v(dst + 24 + j, 2), di, c, t2, ng))
                if both:
                    a("v_pk_fma_f32 %s, %s, %s, %s%s" % (v(dst + 32 + j, 2), dr, c, t1, ng))
                    a("v_pk_fma_f32 %s, %s, %s, %s" % (v(dst + 40 + j, 2), di, c, t2))

        VS = 139

        sentinel = lambda base: self.markcheck(base, 16, VS)

        def x1load(special):
            for i in range(4):
                a("buffer_load_dwordx4 %s, v%d, %s, s%d offen sc1" % (v((LD2 if special else LD) + 4 * i, 4), 129 if special else MB[i], ws, 56 + i if special else 66))

        def x1first():
            lab = a.newlabel("NOSP")
            a("s_cmp_lg_u32 s71, 0\ns_cbranch_scc1 " + lab)
            for i in range(4):
                a("s_mov_b32 s%d, 0x%x" % (56 + i, WS_X1 + 64 * 32768 + 0x2000 * i))
            x1load(True)
            a.label(lab)
            x1load(False)

        x1l = self.opt.get("x1late", 1)
        if fd != 2 and x1l == 0:
            x1first()
        fread(128)
        a("s_waitcnt lgkmcnt(0)")
        if fd != 2 and x1l == 1:
            x1first()
        filt(FL, DAT)
        if fd != 2 and x1l == 2:
            x1first()
        if fd == 2:
            a("s_waitcnt vmcnt(0)")
            self.diag_delay("d_x1")
            x1first()
        self.stamp()

        def hintx(pos):
            if self.opt.get("go", 4) == pos:
                lab = a.newlabel("NOH")
                a("s_cmp_lg_u32 s3, 7\ns_cbranch_scc1 " + lab)
                a("""s_lshl_b32 s14, s60, 7
                s_add_u32 s14, s14, 0x%x
                v_mov_b32 v140, s6
                v_mov_b32 v141, s7
                v_lshlrev_b32 v142, 3, v12
                buffer_store_dwordx2 v[140:141], v142, %s, s14 offen sc1""" % (WS_GO, ws))
                a.label(lab)

        def b2(fl, special):
            FR2, OUT, PO = T + 64, LD, T + 96
            a.capture(ls & 2)
            for p in range(2):
                for f in range(2):
                    for h in range(2):
                        a("ds_read_b64_tr_b16 %s, v%d offset:%d" % (v(FR + 8 * p + 4 * f + 2 * h, 2), 132 + p, f * 2048 + h * 256))
            for tau in range(2):
                for p in range(2):
                    for f in range(2):
                        if tau == 0:
                            a("s_waitcnt lgkmcnt(%d)" % (6 - 4 * p - 2 * f))
                        for ri in range(2):
                            d = v(DAT + 16 * p + 8 * ri + 4 * tau, 4)
                            a("%s %s, %s, %s, %s" % (M16, d, v(F32 + ((tau * 2 + ri) * 2 + f) * 4, 4), v(FR + 8 * p + 4 * f, 4), d if f else "0"))
            n1_ = " neg_lo:[1,0,0] neg_hi:[1,0,0]"

            for j in range(0, 8, 2):
                Er, Ei, Or, Oi = [v(DAT + 8 * k + j, 2) for k in range(4)]
                Ar, Ai, B1r, B1i, B2r, B2i = [v(fl + 8 * k + j, 2) for k in range(6)]
                k = (TM, TM + 8, T + 80, T + 88)[j >> 1]
                Pr, Pi, Qr, Qi = [v(k + 2 * i, 2) for i in range(4)]
                a("v_pk_mul_f32 %s, %s, %s" % (Pr, Ar, Er))
                a("v_pk_mul_f32 %s, %s, %s" % (Pi, Ar, Ei))
                a("v_pk_mul_f32 %s, %s, %s" % (Qr, B2r, Er))
                a("v_pk_mul_f32 %s, %s, %s" % (Qi, B2r, Ei))
                a("v_pk_fma_f32 %s, %s, %s, %s%s" % (Pr, Ai, Ei, Pr, n1_))
                a("v_pk_fma_f32 %s, %s, %s, %s" % (Pi, Ai, Er, Pi))
                a("v_pk_fma_f32 %s, %s, %s, %s%s" % (Qr, B2i, Ei, Qr, n1_))
                a("v_pk_fma_f32 %s, %s, %s, %s" % (Qi, B2i, Er, Qi))
                a("v_pk_fma_f32 %s, %s, %s, %s" % (Pr, B1r, Or, Pr))
                a("v_pk_fma_f32 %s, %s, %s, %s" % (Pi, B1r, Oi, Pi))
                a("v_pk_fma_f32 %s, %s, %s, %s" % (Qr, Ar, Or, Qr))
                a("v_pk_fma_f32 %s, %s, %s, %s" % (Qi, Ar, Oi, Qi))
                a("v_pk_fma_f32 %s, %s, %s, %s%s" % (Pr, B1i, Oi, Pr, n1_))
                a("v_pk_fma_f32 %s, %s, %s, %s" % (Pi, B1i, Or, Pi))
                a("v_pk_fma_f32 %s, %s, %s, %s%s" % (Qr, Ai, Oi, Qr, n1_))
                a("v_pk_fma_f32 %s, %s, %s, %s" % (Qi, Ai, Or, Qi))
                for e in range(2):
                    self.cvt(FR2 + j + e, v(k + e), "-" + v(k + 2 + e))
                    self.cvt(FR2 + 8 + j + e, v(k + 4 + e), "-" + v(k + 6 + e))
            for f in range(2):
                for p in range(2):
                    for tau in range(2):
                        for ri in range(2):
                            d = v(OUT + 16 * p + 8 * ri + 4 * tau, 4)
                            a("%s %s, %s, %s, %s" % (M16, d, v(FR2 + 8 * p + 4 * f, 4), v(F32 + ((tau * 2 + ri) * 2 + f) * 4, 4), d if f else "0"))
            for p in range(2):
                for tau in range(2):
                    o = PO + 8 * p + 4 * tau
                    for r in range(4):
                        self.cvt(o + r, v(OUT + 16 * p + 4 * tau + r), "-" + v(OUT + 16 * p + 8 + 4 * tau + r))
                    for x in self.mark(o, 14):
                        a(x)
                    a("ds_write_b128 v15, %s offset:%d" % (v(o, 4), tau * 16384 + p * 512))
            print("B2", a.flush(mf_scale=msc))

        lab = a.newlabel("NOSP")
        a("s_cmp_lg_u32 s71, 0\ns_cbranch_scc1 " + lab)
        a("v_mov_b32 v%d, 32" % TM)
        faddr(128, TM, TM + 1, TM + 2)
        fread(128)
        a("""v_lshlrev_b32 v{t}, 29, v1
        v_and_b32 v{t}, 0x80000000, v{t}
        v_and_b32 v{u}, 3, v1
        v_lshlrev_b32 v{u}, 4, v{u}
        v_xor_b32 v128, v132, v{u}
        v_and_b32 v{u}, 1, v1
        v_lshlrev_b32 v{u}, 6, v{u}
        v_xor_b32 v128, v128, v{u}
        v_subrev_u32 v128, s70, v128
        v_add_u32 v128, {sp}, v128
        v_add_u32 v5, {sp}, v2""".format(t=TM, u=TM + 1, sp=RAB + 4096))
        for j in range(8):
            a("v_xor_b32 v%d, v%d, v%d" % (FR + 8 + j, TM, FR + 8 + j))
        a("s_waitcnt lgkmcnt(0)")
        filt(FL2, DAT, False)
        a.label(lab)
        self.poll(lambda: x1load(False), lambda: sentinel(LD), VS, first_issued=True)
        if not self.opt.get("st4"):
            self.stamp()
        for i in range(4):
            a("ds_write_b128 v6, %s offset:%d" % (v(LD + 4 * i, 4), i * 128))
        a("s_waitcnt lgkmcnt(0)\ns_barrier")
        if self.opt.get("st4"):
            self.stamp()
        lab = a.newlabel("NOSP")
        a("s_cmp_lg_u32 s71, 0\ns_cbranch_scc1 " + lab)
        self.poll(lambda: x1load(True), lambda: sentinel(LD2), VS, first_issued=True)
        self.flip_marks()
        for i in range(4):
            a("ds_write_b128 v5, %s offset:%d" % (v(LD2 + 4 * i, 4), i * 1024))
        for f in range(2):
            for h in range(2):
                a("ds_read_b64_tr_b16 %s, v128 offset:%d" % (v(FR + 4 * f + 2 * h, 2), f * 2048 + h * 256))
        for f in range(2):
            a("s_waitcnt lgkmcnt(%d)" % (2 - 2 * f))
            for tau in range(2):
                for ri in range(2):
                    d = v(DAT + 8 * ri + 4 * tau, 4)
                    a("%s %s, %s, %s, %s" % (M16, d, v(F32 + ((tau * 2 + ri) * 2 + f) * 4, 4), v(FR + 4 * f, 4), d if f else "0"))
        for j in range(0, 8, 2):
            Xr, Xi, Ar, Ai = v(DAT + j, 2), v(DAT + 8 + j, 2), v(FL2 + j, 2), v(FL2 + 8 + j, 2)
            a("v_pk_mul_f32 %s, %s, %s" % (v(TM + j, 2), Ar, Xr))
            a("v_pk_mul_f32 %s, %s, %s" % (v(TM + 8 + j, 2), Ar, Xi))
            a("v_pk_fma_f32 %s, %s, %s, %s neg_lo:[1,0,0] neg_hi:[1,0,0]" % (v(TM + j, 2), Ai, Xi, v(TM + j, 2)))
            a("v_pk_fma_f32 %s, %s, %s, %s" % (v(TM + 8 + j, 2), Ai, Xr, v(TM + 8 + j, 2)))
        dpp = " row_ror:4 row_mask:0xf bank_mask:0xf"
        for k in range(2):
            for j in range(8):
                a("v_fmac_f32_dpp v%d, %sv%d, v%d%s" % (TM + j, "-" if k else "", DAT + 8 * k + j, FL2 + 16 + 8 * k + j, dpp))
                a("v_fmac_f32_dpp v%d, v%d, v%d%s" % (TM + 8 + j, DAT + 8 * (1 - k) + j, FL2 + 16 + 8 * k + j, dpp))
        for j in range(8):
            self.cvt(FR + j, v(TM + j), "-" + v(TM + 8 + j))
        for f in range(2):
            for tau in range(2):
                for ri in range(2):
                    d = v(DAT + 8 * ri + 4 * tau, 4)
                    a("%s %s, %s, %s, %s" % (M16, d, v(FR + 4 * f, 4), v(F32 + ((tau * 2 + ri) * 2 + f) * 4, 4), d if f else "0"))
        a("s_mov_b32 exec_hi, 0")
        for tau in range(2):
            o = FL2 + 4 * tau
            for r in range(4):
                self.cvt(o + r, v(DAT + 4 * tau + r), "-" + v(DAT + 8 + 4 * tau + r))
            for x in self.mark(o, 14):
                a(x)
            a("buffer_store_dwordx4 %s, v2, %s, s67 offen offset:%d sc1" % (v(o, 4), ws, tau * 512))
        a("s_mov_b32 exec_hi, -1")
        skip = a.newlabel("B2GO")
        a("s_branch " + skip)
        a.label(lab)
        self.flip_marks()
        a.label(skip)
        b2(FL, False)
        a("s_waitcnt lgkmcnt(0)")
        if self.opt.get("st4"):
            self.stamp()
        a("s_barrier")
        if not self.opt.get("st4"):
            self.stamp()
        hintx(4)
        ST = LD
        for i in range(4):
            a("ds_read_b128 %s, v%d offset:%d" % (v(ST + 4 * i, 4), 135 + i if i else 7, i * 1024))
        for i in range(4):
            a("s_waitcnt lgkmcnt(%d)" % (3 - i))
            a("buffer_store_dwordx4 %s, v%d, %s, s66 offen sc1" % (v(ST + 4 * i, 4), MB[i], ws))
        self.stamp()
        lab = a.newlabel("NONOTE")
        a("s_or_b32 s56, s60, s3\ns_cbranch_scc1 " + lab)
        a("v_mov_b32 v140, s6\nv_mov_b32 v141, s7\nv_lshlrev_b32 v142, 3, v12")
        a("buffer_store_dwordx2 v[140:141], v142, %s, 0 offen offset:%d sc1" % (ws, WS_NOTE))
        a.label(lab)
        a.label("WB_1")
        a("s_mov_b32 s34, 0")
        self.pad_stamps(9)

        a.label("B3_ENTRY")
        G16 = F16
        a("v_lshlrev_b32 v2, 4, v1\nv_add_u32 v131, %d, v2" % TB)
        tab(RA, 24, 4)
        tab(CS, TQ_CS, 8)
        tab(TWX, TQ_TW3, 4)
        a("""v_lshrrev_b32 v4, 5, v1
        v_and_b32 v5, 31, v1
        v_and_b32 v12, 15, v1
        v_lshrrev_b32 v13, 4, v1
        v_lshl_add_u32 v132, v4, 3, s3
        v_xor_b32 v8, s60, v132
        v_lshlrev_b32 v132, 15, v132
        v_lshl_add_u32 v132, v5, 4, v132
        v_lshl_add_u32 v132, v8, 9, v132
        v_xor_b32 v133, 0x82000, v132
        v_xor_b32 v134, 0x104000, v132
        v_xor_b32 v135, 0x186000, v132
        v_lshl_add_u32 v10, s3, 5, v5
        v_lshlrev_b32 v130, 13, v4
        v_add_u32 v130, %d, v130
        v_lshl_add_u32 v9, v10, 4, v130
        v_sub_u32 v10, 0, v10
        v_and_b32 v10, 0x1ff, v10
        v_lshl_add_u32 v10, v10, 4, v130
        s_lshr_b32 s63, s3, 2
        s_lshl_b32 s63, s63, 13
        s_and_b32 s64, s3, 3
        s_lshl2_add_u32 s63, s64, s63
        s_add_u32 s63, s63, %d
        v_lshlrev_b32 v8, 11, v13
        v_lshl_add_u32 v8, v12, 4, v8
        v_add_u32 v8, s63, v8
        s_lshl_b32 s63, s3, 11
        s_add_u32 s63, s63, %d
        v_bfe_u32 v5, v1, 2, 1
        v_lshlrev_b32 v5, 1, v5
        v_xor_b32 v5, v5, v13
        v_lshlrev_b32 v5, 3, v5
        v_lshl_add_u32 v5, v12, 5, v5
        v_add_u32 v5, s63, v5
        v_bfe_u32 v6, v1, 3, 1
        v_lshlrev_b32 v6, 4, v6
        v_xor_b32 v6, v6, v2
        v_add_u32 v6, s63, v6
        s_lshl_b32 s64, s3, 6
        s_add_u32 s64, s64, s60
        s_add_u32 s64, s64, s34
        s_lshl_b32 s64, s64, 11
        s_add_u32 s66, s64, 0x200000
        s_mov_b32 s56, 0.5
        s_mov_b32 s57, 0.5
        s_cmp_eq_u32 s3, 0
        s_cselect_b32 s68, -2, -1
        s_mov_b32 s69, s68
        s_lshr_b32 s63, s60, 5
        s_and_b32 s65, s60, 1
        s_lshl1_add_u32 s63, s63, s65
        s_bfe_u32 s65, s60, 0x40001
        s_lshl4_add_u32 s63, s63, s65
        v_and_b32 v11, 7, v1
        v_xor_b32 v11, s63, v11
        v_lshlrev_b32 v11, 4, v11
        v_lshl_add_u32 v11, v4, 10, v11
        s_mov_b32 s63, 0x%x
        s_mov_b32 s65, 0x%x""" % (ZB, ZB, WB, WS_X2S, WS_X2S + 4096))
        lab = a.newlabel("NOGO")
        a("s_cmp_eq_u32 s34, 0\ns_cbranch_scc1 " + lab)
        self.poll(lambda: a("buffer_load_dwordx2 v[140:141], off, %s, s62 sc1" % ws),
                  lambda: a("v_xor_b32 v%d, s6, v140\nv_bitop3_b32 v%d, v%d, v141, s7 bitop3:0xf6" % (VS, VS, VS)), VS)
        a.label(lab)
        a("s_mov_b32 s62, 0x%x" % WS_X1)
        RE, ZP, XS = T + 16, T + 48, LD2

        def radix_inv(x):
            for f in range(4):
                d = v(RE, 16)
                a("%s %s, %s, %s, %s" % (M32, d, v(RA + 4 * f, 4), v(x + 4 * f, 4), d if f else "0"))

        def average():
            a("s_mov_b32 exec_lo, 1\ns_mov_b32 exec_hi, 1")
            for j in (0, 2):
                a("v_pk_add_f32 %s, %s, %s" % (v(RE + j, 2), v(RE + j, 2), v(RE + 8 + j, 2)))
                a("v_pk_add_f32 %s, %s, %s neg_lo:[0,1] neg_hi:[0,1]" % (v(RE + 4 + j, 2), v(RE + 4 + j, 2), v(RE + 12 + j, 2)))
            for j in range(0, 8, 2):
                a("v_pk_mul_f32 %s, %s, s[56:57]" % (v(RE + j, 2), v(RE + j, 2)))

        def extra_tile():
            radix_inv(XS)
            average()
            for r in range(4):
                self.cvt(ZP + 8 + r, v(RE + r), v(RE + 4 + r))
            a("ds_write_b128 v130, %s offset:4096" % v(ZP + 8, 4))
            a("s_mov_b64 exec, -1")

        xsload = lambda: [a("buffer_load_dwordx4 %s, v11, %s, s%d offen offset:%d sc1" % (v(XS + 4 * f, 4), ws, 65 if f >> 1 else 63, (f & 1) * 2048)) for f in range(4)]
        x2load = lambda: [a("buffer_load_dwordx4 %s, v%d, %s, s62 offen sc1" % (v(XF + 4 * f, 4), 132 + f, ws)) for f in range(4)]
        lab = a.newlabel("NODR")
        a("s_and_b32 s15, s60, 7\ns_cmp_eq_u32 s15, 7\ns_cbranch_scc1 " + lab)
        a("s_waitcnt vmcnt(%d)" % self.opt.get("xdr", 0))
        self.diag_delay("d_x2")
        a.label(lab)
        x2load()
        lab = a.newlabel("NOX")
        a("s_cmp_lg_u32 s3, %d\ns_cbranch_scc1 %s" % (XW3, lab))
        xsload()
        a.label(lab)
        a("s_waitcnt lgkmcnt(0)")
        self.stamp()
        a.label("WC_0")
        self.poll(x2load, lambda: sentinel(XF), VS, first_issued=True)
        self.stamp()
        radix_inv(XF)
        lab = a.newlabel("NOAVG")
        a("s_nop 9")
        a("s_cmp_lg_u32 s3, 0\ns_cbranch_scc1 " + lab)
        average()
        a("s_mov_b64 exec, -1")
        a.label(lab)
        for r in range(4):
            self.cvt(ZP + r, v(RE + r), v(RE + 4 + r))
        a("ds_write_b128 v9, %s" % v(ZP, 4))
        for r in range(4):
            self.cvt(ZP + 4 + r, v(RE + 8 + r), "-" + v(RE + 12 + r))
        a("s_mov_b64 exec, s[68:69]")
        a("ds_write_b128 v10, %s" % v(ZP + 4, 4))
        a("s_mov_b64 exec, -1")
        lab = a.newlabel("NOX")
        a("s_cmp_lg_u32 s3, %d\ns_cbranch_scc1 %s" % (XW3, lab))
        self.poll(xsload, lambda: sentinel(XS), VS, first_issued=True)
        extra_tile()
        a.label(lab)
        a("s_waitcnt lgkmcnt(0)\ns_barrier")
        self.stamp()
        a.capture(ls & 4)
        ZF = T
        for tau in range(2):
            for j in range(2):
                a("ds_read2st64_b32 %s, v8 offset0:%d offset1:%d" % (v(ZF + 4 * tau + 2 * j, 2), tau + 4 * j, tau + 4 * j + 2))
        for tau in range(2):
            a("s_waitcnt lgkmcnt(%d)" % (2 - 2 * tau))
            a("%s %s, %s, %s, 0" % (M16, v(T1 + 4 * tau, 4), v(ZF + 4 * tau, 4), v(G16, 4)))
            a("%s %s, %s, %s, 0" % (M16, v(T1 + 8 + 4 * tau, 4), v(ZF + 4 * tau, 4), v(G16 + 4, 4)))
        O4 = T + 80
        twiddle(T1, [TW0, TWX], T + 64, True)
        for j in range(8):
            self.cvt(U + j, v(T1 + 2 * j), v(T1 + 2 * j + 1))
        stage_cs(U, U + 4, O4, True)
        fl = self.opt.get("outflag", "sc1")
        for ri in range(2):
            for tau in range(2):
                o = O4 + 8 * ri + 4 * tau
                d = T + 8 + 4 * ri + 2 * tau
                self.cvt(d, v(o), v(o + 1))
                self.cvt(d + 1, v(o + 2), v(o + 3))
                a("ds_write_b64 v5, %s offset:%d" % (v(d, 2), ri * 1024 + tau * 512))
            a("ds_read_b128 %s, v6 offset:%d" % (v(T1 + 16 + 4 * ri, 4), ri * 1024))
        for ri in range(2):
            a("s_waitcnt lgkmcnt(%d)" % (3 - 3 * ri))
            a("buffer_store_dwordx4 %s, v2, %s, s%d offen offset:1024 %s" % (v(T1 + 16 + 4 * ri, 4), s(self.rOUT, 4), 64 + 2 * ri, fl))
        print("B3", a.flush(mf_scale=msc))
        self.end()


TQ_CS, TQ_TW0, TQ_TW1, TQ_TW3, TQ_F32, TQ_OM = 0, 6, 8, 12, 16, 20


def make_table():
    import numpy as np
    from emu import bf16_rne
    l = np.arange(64)
    c, g = l & 15, l >> 4
    pk = lambda x, y: (bf16_rne(np.float32(x)) | (bf16_rne(np.float32(y)) << 16)).astype(np.uint32)
    fl = lambda x: np.float32(x).view(np.uint32)
    cs = lambda a_: (np.cos(2 * np.pi * a_), np.sin(2 * np.pi * a_))
    idx2 = [16 * (t >> 2) + 4 * g + (t & 3) for t in range(8)]
    R = []
    C = [[cs((c + 16 * tau) * idx2[t] / 32.0) for t in range(8)] for tau in range(2)]
    for k, sg in ((0, 1), (1, 1), (1, -1)):
        for tau in range(2):
            for j in range(4):
                R.append(pk(sg * C[tau][2 * j][k], sg * C[tau][2 * j + 1][k]))

    def tw(angs):
        for k in range(2):
            for x in angs:
                R.append(fl(cs(x)[k]))
    tw([c * idx2[r] / 512.0 for r in range(4)])
    tw([(c + 16) * idx2[r] / 512.0 for r in range(4)])
    H = [cs(c * idx2[x] / 16.0) for x in range(4)]
    R += [pk(H[0][0], H[1][0]), pk(H[2][0], H[3][0]), pk(H[0][1], H[1][1]), pk(H[2][1], H[3][1])]
    R += [pk(-H[0][1], -H[1][1]), pk(-H[2][1], -H[3][1]), pk(H[0][0], H[1][0]), pk(H[2][0], H[3][0])]
    tw([c * idx2[4 + r] / 512.0 for r in range(4)])
    sc = 2.0 ** -20
    R += [pk(sc * H[x][0], -sc * H[x][1]) for x in range(4)] + [pk(sc * H[x][1], sc * H[x][0]) for x in range(4)]
    R += [pk(C[0][t][0], C[0][t][1]) for t in range(8)] + [pk(-C[0][t][1], C[0][t][0]) for t in range(8)]
    for k in range(2):
        for t in range(8):
            R.append(fl(cs(idx2[t] / 64.0)[k]))
    R = np.array(R, np.uint32)
    assert R.shape == (96, 64)
    return np.ascontiguousarray(R.reshape(24, 4, 64).transpose(0, 2, 1)).reshape(-1)


def _sym_add(line, emuval=0):
    ins = Ins(line.rsplit(",", 1)[0] + ", %d" % emuval)
    ins.line = line
    return ins


NOTES = """;
"""


def generate(stamps=False, opt=None):
    g = G(stamps, opt)
    a = g.build()
    nv = a.maxreg("v") + 1
    ns = a.maxreg("s") + 1
    tb = make_table()
    tail = ".p2align 8\n.type TABLE,@object\nTABLE:\n"
    for i in range(0, len(tb), 8):
        tail += ".long " + ",".join("0x%08x" % x for x in tb[i:i + 8]) + "\n"
    tail += ".size TABLE, %d\n" % (4 * len(tb))
    render = lambda: wrap(a.render() + tail, 256, 512, LDS_SIZE, nv, ns, NOTES)
    if g.opt.get("align", 1):
        from align import align
        print("align:", align(a, render, g.opt.get("minrun", 5)))
    return a, render()


if __name__ == "__main__":
    stamps = "--stamps" in sys.argv
    opt = {}
    for x in sys.argv[1:]:
        if x.startswith("--") and "=" in x:
            k, val = x[2:].split("=", 1)
            opt[k] = int(val) if val.lstrip("-").isdigit() else val
    a, txt = generate(stamps, opt)
    out = [x for x in sys.argv[1:] if not x.startswith("--")]
    open(out[0] if out else "k.s", "w").write(txt)
    print("instructions:", sum(1 for k, _ in a.items if k == "i"), "vgpr", a.maxreg("v") + 1, "sgpr", a.maxreg("s") + 1)
```

```python
import sys
from asmlib import *
from common import wrap

WS_EP = 0x0
WS_GO = 0x1000
WS_NOTE = 0x800
WS_RED = 0x10000
RED_STRIDE = 0x4800
WS_X2S = 0x60000
WS_PART = 0x80000
PLINE = 1152
WS_PQ = 0x200000
WS_X1 = 0x400000
WS_STAMP = 0x1000000
WS_SIZE = 0x10000000
LDS_SIZE = 160 * 1024
TAGC_LO, TAGC_HI = 0x1E3779B1, 0x05EBCA6B
POLL_LIMIT = 1 << 18
M16 = "v_mfma_f32_16x16x32_bf16"
M32 = "v_mfma_f32_32x32x16_bf16"
XB, ZB, WB, TB = 0, 32768, 65536, 131072
RAB = TB + 24576


class G:
    def __init__(self, stamps=False, opt=None):
        self.a = Asm()
        self.stamps = stamps
        self.opt = opt or {}
        self.nst = 0
        self.role = ""

    sW = 3
    sTL, sTH = 6, 7
    sCNT = 12
    pXA, pWQ, pWO, pXB, pWR, pWI, pOUT, pDBG, pWS = 16, 18, 20, 22, 24, 26, 28, 30, 32
    rWS, rOUT, rA, rB, rC = 36, 40, 44, 48, 52
    sST = 72
    LT = [16, 17, 0, 1]

    def stamp(self):
        pr = self.opt.get("probe")
        if pr:
            if "%s:%d" % (self.role, self.nst) in pr.split("+"):
                self.a("s_memrealtime s[76:77]\ns_waitcnt lgkmcnt(0)")
            self.nst += 1
            return
        if not self.stamps:
            return
        k = self.nst
        assert k < 15
        self.a("%s %s\ns_waitcnt lgkmcnt(0)" % ("s_memtime" if self.opt.get("cyc") else "s_memrealtime", s(self.sST + 2 * k, 2)))
        self.nst += 1

    def end(self):
        a = self.a
        if self.opt.get("probe"):
            self.stamp()
            lab = a.newlabel("SPIN")
            a("s_waitcnt lgkmcnt(0)\ns_sub_u32 s76, s76, s72\ns_lshl_b32 s76, s76, 2\ns_add_u32 s76, s76, 2000\ns_min_u32 s76, s76, 20000")
            a.label(lab)
            a("s_memrealtime s[74:75]\ns_waitcnt lgkmcnt(0)\ns_sub_u32 s74, s74, s72\ns_cmp_lt_u32 s74, s76\ns_cbranch_scc1 %s" % lab)
        if self.stamps:
            self.stamp()
            a("s_waitcnt vmcnt(0)")
            self.stamp()
            a("s_mov_b64 exec, 1")
            a("s_lshl3_add_u32 s56, s5, s4\ns_lshl_b32 s56, s56, 3\ns_add_u32 s56, s56, s3\ns_lshl_b32 s56, s56, 6\ns_add_u32 s56, s56, 0x%x" % WS_STAMP)
            a("v_mov_b32 v2, 0")
            for k in range(self.nst):
                a("v_mov_b32 v3, s%d\nbuffer_store_dword v3, v2, %s, s56 offen offset:%d" % (self.sST + 2 * k, s(self.rWS, 4), 4 * k))
            a("v_mov_b32 v3, %d\nbuffer_store_dword v3, v2, %s, s56 offen offset:60" % (self.nst, s(self.rWS, 4)))
        a("s_endpgm")

    def pad_stamps(self, n):
        while (self.stamps or self.opt.get("probe")) and self.nst < n:
            if self.stamps:
                self.a("s_mov_b32 s%d, s%d" % (self.sST + 2 * self.nst, self.sST + 2 * self.nst - 2))
            self.nst += 1

    def srd(self, r, p, size):
        self.a("s_mov_b32 s%d, s%d\ns_mov_b32 s%d, s%d\ns_mov_b32 s%d, 0x%x\ns_mov_b32 s%d, 0x20000" % (r, p, r + 1, p + 1, r + 2, size, r + 3))

    def tags(self):
        t = self.LT
        self.a("""s_add_u32 s8, s8, 0x%x
        s_addc_u32 s9, s9, 0x%x
        s_and_b32 s6, s8, 0xbfffbfff
        s_and_b32 s7, s9, 0xbfffbfff
        s_bitcmp1_b32 s8, 0
        s_cselect_b32 s%d, 0x10001, 0
        s_xor_b32 s%d, s%d, 0x10000
        s_xor_b32 s%d, s%d, 0x10001
        s_xor_b32 s%d, s%d, 1""" % (TAGC_LO, TAGC_HI, t[0], t[1], t[0], t[2], t[0], t[3], t[0]))

    def flip_marks(self):
        for r in self.LT:
            self.a("s_xor_b32 s%d, s%d, 1" % (r, r))

    def mark(self, base, vmask):
        return ["v_and_or_b32 v%d, v%d, v%d, s%d" % (base + e, base + e, vmask, self.LT[e]) for e in range(4)]

    def markcheck(self, base, n, vacc):
        a = self.a
        X = [self.LT[0], self.LT[3], self.LT[2], self.LT[1]]
        for i in range(0, n, 2):
            a("v_xor_b32 v%d, s%d, v%d" % (base + i, X[i & 3], base + i))
            a("v_xor_b32 v%d, s%d, v%d" % (base + i + 1, X[(i + 1) & 3], base + i + 1))
            if i:
                a("v_bitop3_b32 v%d, v%d, v%d, v%d bitop3:0xfd" % (vacc, vacc, base + i, base + i + 1))
            else:
                a("v_bitop3_b32 v%d, v%d, v%d, v%d bitop3:0xfd" % (vacc, base, base, base + 1))
        a("v_and_b32 v%d, 0x10001, v%d" % (vacc, vacc))

    def tagcheck(self, pieces, vacc):
        a = self.a
        for i, p in enumerate(pieces):
            if i == 0:
                a("v_xor_b32 v%d, s%d, v%d" % (vacc, self.sTL, p + 1))
            else:
                a("v_bitop3_b32 v%d, v%d, v%d, s%d bitop3:0xf6" % (vacc, vacc, p + 1, self.sTL))
            a("v_bitop3_b32 v%d, v%d, v%d, s%d bitop3:0xf6" % (vacc, vacc, p + 3, self.sTH))

    def poll(self, issue, check, vacc, first_issued=False):
        a = self.a
        top, done, chk = a.newlabel("POLL"), a.newlabel("DONE"), a.newlabel("CHK")
        a("s_mov_b32 s%d, 0x%x" % (self.sCNT, POLL_LIMIT))
        if first_issued:
            a("s_branch " + chk)
        a.label(top)
        issue()
        if first_issued:
            a.label(chk)
        a("s_waitcnt vmcnt(0)")
        check()
        a("v_cmp_ne_u32 vcc, 0, v%d" % vacc)
        a("s_cbranch_vccz " + done)
        a("s_sleep %d" % self.opt.get("sl", 2))
        a("s_sub_u32 s%d, s%d, 1" % (self.sCNT, self.sCNT))
        a("s_cbranch_scc0 " + top)
        a.label(done)

    def diag_delay(self, name):
        n = self.opt.get(name, 0)
        if n:
            self.a("s_sleep %d" % n)

    def cvt(self, d, x, y):
        self.a("v_cvt_pk_bf16_f32 v%d, %s, %s" % (d, x, y))

    def build(self):
        a = self.a
        a.label("CODE0")
        if self.opt.get("probe"):
            a("s_memrealtime s[72:73]\ns_memrealtime s[76:77]")
            self.nst = 1
        if self.stamps:
            a("%s %s" % ("s_memtime" if self.opt.get("cyc") else "s_memrealtime", s(self.sST, 2)))
            self.nst = 1
        a("""v_lshrrev_b32 v2, 6, v0
        v_and_b32 v1, 63, v0
        s_and_b32 s4, s2, 7
        v_readfirstlane_b32 s3, v2
        s_lshr_b32 s5, s2, 3
        s_cmp_ge_u32 s5, 32
        s_cbranch_scc1 EXIT
        ROT""".replace("ROT", "s_cmp_lt_u32 s5, 24\ns_cbranch_scc1 NOT_B" if self.opt.get("rot", 24) == 0 else "s_sub_u32 s5, s5, 8\ns_cbranch_scc0 NOT_B"))
        n0 = self.nst
        self.b_head()
        a.label("EXIT")
        a("s_endpgm")
        a.label("NOT_B")
        a("s_cmp_ge_u32 s3, 4\ns_cbranch_scc1 LOADER")
        pc = a.newlabel("PC")
        if self.opt.get("pfs", 1):
            a("s_cmp_lg_u32 s3, 0\ns_cbranch_scc1 COMPUTE\ns_getpc_b64 s[56:57]")
            a.label(pc)
            a.items.append(("i", _sym_add("s_mov_b32 s58, ROLE_B-4-%s" % pc)))
            a("v_and_b32 v3, 7, v1\nv_mul_u32_u24 v3, 24, v3\nv_add_lshl_u32 v3, v3, s5, 7\nv_min_u32 v3, s58, v3\nglobal_load_dword v0, v3, s[56:57]\ns_branch COMPUTE")
        else:
            a("s_cmp_eq_u32 s3, 3\ns_cbranch_scc1 COMPUTE\ns_getpc_b64 s[56:57]")
            a.label(pc)
            a.items.append(("i", _sym_add("s_mov_b32 s58, ROLE_B-4-%s" % pc)))
            a("v_lshlrev_b32 v3, 7, v0\nv_min_u32 v3, s58, v3\nglobal_load_dword v0, v3, s[56:57]\ns_branch COMPUTE")
        a.label("LOADER")
        self.loader()
        self.nst = n0
        self.compute()
        self.nst = n0
        self.role_b()
        a.label("CODE_END")
        prot = [0, 1, 3, 4, 5, 60, 61, 70] + list(range(72, 102))
        if self.opt.get("walk", 0) & 1:
            a.walkify("WA_0", "WA_1", 3, "WRET_A", prot, "WKA")
            a.walkify("WL_0", "WL_1", 1, "WRET_A", prot, "WKL")
            a.walkify("WQ_0", "WQ_1", 2, "WRET_A", prot, "WKQ")
            a.walkify("WR_0", "WR_1", 1, "WRET_A", prot, "WKR")
        if self.opt.get("walk", 0) & 2:
            a.walkify("WB_0", "WB_1", 6, "WRET_B", prot, "WKB")
            a.walkify("WC_0", "WC_1", 1, "WRET_C", prot, "WKC")
        bad = a.check_branches()
        assert not bad, bad
        return a

    KARG = "s_load_dwordx16 s[16:31], s[0:1], 0\ns_load_dwordx2 s[32:33], s[0:1], 64"

    def b_head(self):
        a = self.a
        lab = a.newlabel("PC")
        a("s_load_dwordx2 s[44:45], s[0:1], 24")
        a("s_getpc_b64 s[56:57]")
        a.label(lab)
        a.items.append(("i", _sym_add("s_add_u32 s58, s56, TABLE-%s" % lab, 0x8000)))
        a("""s_addc_u32 s59, s57, 0
        v_lshlrev_b32 v2, 4, v1
        s_mul_i32 s66, s3, 3072
        v_add_u32 v7, s66, v2
        s_add_u32 m0, s66, %d
        s_and_b32 s5, s5, 31""" % TB)
        for q in range(3):
            a("global_load_lds_dwordx4 v7, s[58:59] offset:%d" % (q * 1024))
        a("""s_and_b32 s61, s5, 7
        s_lshl3_add_u32 s60, s4, s61
        s_lshl_b32 s62, s3, 7
        s_add_u32 s62, s62, s60
        s_lshl_b32 s62, s62, 10
        s_add_u32 s63, s62, 0x%x
        s_add_u32 s64, s62, 0x%x
        s_add_u32 s65, s62, 0x%x
        s_lshl_b32 s70, s3, 12
        s_mov_b32 m0, s70
        s_mov_b32 s46, 0x200000
        s_mov_b32 s47, 0x20000
        s_waitcnt lgkmcnt(0)""" % (0x100000 - 1024, 0x10000 - 2048, 0x110000 - 3072))
        for q in range(4):
            a("buffer_load_dwordx4 v2, %s, s%d offen offset:%d nt lds" % (s(self.rA, 4), 62 + q, q * 1024))
        a("s_cmp_ge_u32 s3, %d\ns_cbranch_scc1 ROLE_B" % (1 if self.opt.get("pfb", 1) else 2))
        a.items.append(("i", _sym_add("s_add_u32 s56, s56, ROLE_B-%s" % lab)))
        a("s_addc_u32 s57, s57, 0")
        a.items.append(("i", _sym_add("s_mov_b32 s58, CODE_END-4-ROLE_B")))
        if self.opt.get("pfb", 1):
            a("v_and_b32 v3, 15, v1\nv_lshlrev_b32 v3, 3, v3\nv_add_lshl_u32 v3, v3, s61, 7")
        else:
            a("v_lshlrev_b32 v3, 7, v0")
        a("v_min_u32 v3, s58, v3\nglobal_load_dword v0, v3, s[56:57]")
        a("s_branch ROLE_B")

    def loader(self):
        a = self.a
        ws = s(self.rWS, 4)
        self.role = "L"
        vX, vW = 4, 8
        a("""s_load_dwordx4 s[44:47], s[0:1], 0
        s_lshr_b32 s60, s4, 1
        s_and_b32 s63, s5, 3
        s_lshl2_add_u32 s60, s60, s63
        s_bfe_u32 s65, s5, 0x20002
        s_lshr_b32 s66, s5, 4
        s_lshl_b32 s70, s65, s66
        s_add_u32 s70, s70, s63
        s_and_b32 s70, s70, 3
        s_and_b32 s71, s70, 1
        XROT
        s_xor_b32 s70, s70, s13
        s_xor_b32 s71, s71, s13
        s_sub_u32 s58, s3, 4
        s_lshl2_add_u32 s63, s60, s58
        s_lshl_b32 s63, s63, 15
        v_lshrrev_b32 v2, 3, v1
        v_lshrrev_b32 v3, 4, v1
        v_and_b32 v12, 7, v1
        v_xor_b32 v12, v12, v3
        v_lshl_add_u32 v12, v12, 4, s63
        v_lshl_add_u32 v4, v2, 10, v12
        v_xor_b32 v5, 64, v4
        v_add_u32 v5, 0x1c00, v5
        v_add_u32 v6, 0x3800, v4
        v_add_u32 v7, 0x3800, v5
        s_lshl_b32 s59, s58, 12""".replace("XROT", {0: "s_mov_b32 s13, 0",
            1: "s_lshl_b32 s13, s4, 2\ns_xor_b32 s13, s13, s4\ns_and_b32 s13, s13, 6",
            2: "s_lshl_b32 s13, s4, 2\ns_xor_b32 s13, s13, s4\ns_and_b32 s13, s13, 4",
            3: "s_lshl_b32 s13, s4, 1\ns_lshr_b32 s14, s4, 1\ns_xor_b32 s13, s13, s14\ns_and_b32 s13, s13, 3",
            4: "s_lshl_b32 s13, s66, 1"}[self.opt.get("xrot", 2)]))

        def kchunk(c):
            base = 0
            for r in [int(x) for x in str(self.opt.get("rounds", 44))]:
                if c < base + r:
                    break
                base += r
            src = {4: "s70", 2: "s71", 1: "s13"}[r]
            assert base % r == 0
            a("s_xor_b32 s62, %s, %d" % (src, c))

        def issue_x(c):
            a("s_add_u32 m0, s59, %d" % ((c % 5) * 32768))
            kchunk(c)
            a("s_lshl_b32 s63, s62, 7")
            if c == 0:
                a("s_waitcnt lgkmcnt(0)\ns_mov_b64 s[48:49], s[46:47]\ns_mov_b32 s46, 0x200000\ns_mov_b32 s47, 0x20000")
            for j in range(4):
                a("buffer_load_dwordx4 v%d, %s, s63 offen offset:%d lds" % (vX + j, s(self.rA, 4), j * 1024))

        def issue_w(c):
            a("s_add_u32 m0, s59, %d" % ((c % 5) * 32768 + 16384))
            a("s_mul_i32 s64, s62, 0x30000")
            for j in range(4):
                a("buffer_load_dwordx4 v%d, %s, s64 offen offset:%d lds" % (vW + j, s(self.rB, 4), j * 1024))

        def issue(c):
            issue_x(c)
            issue_w(c)

        issue_x(0)
        a(self.KARG)
        a("""s_and_b32 s64, s4, 1
        s_lshl2_add_u32 s61, s64, s65
        s_lshl1_add_u32 s66, s64, s65
        s_lshl_b32 s63, s61, 7
        s_add_u32 s63, s63, 1024
        s_lshl_b32 s64, s66, 8
        s_cmp_ge_u32 s5, 16
        s_cselect_b32 s63, s64, s63
        s_cselect_b32 s64, 7, 10
        v_bfe_u32 v12, v1, 2, 2
        v_xor_b32 v12, v12, v3
        v_lshrrev_b32 v13, 1, v12
        v_lshlrev_b32 v13, s64, v13
        v_and_b32 v14, 1, v12
        v_lshl_add_u32 v13, v14, 6, v13
        v_and_b32 v14, 3, v1
        v_lshl_add_u32 v13, v14, 4, v13
        v_mul_u32_u24 v15, 0xc00, v3
        s_mul_i32 s65, s58, 0xc000
        s_add_u32 s65, s65, s63
        v_add3_u32 v8, v13, v15, s65
        v_add_u32 v9, 0x2c00, v8
        v_add_u32 v10, 0x5800, v8
        v_add_u32 v11, 0x8400, v8
        s_mov_b32 s50, 0x180000
        s_mov_b32 s51, 0x20000""")
        issue_w(0)
        H = ["x0", "w0"]
        if self.opt.get("w4e"):
            plan = [["w4", "x1"], ["w1", "x2", "w2"], ["x3", "w3"], ["x4", "x5"], ["w5", "x6"], ["w6", "x7"], ["w7"]]
            if self.opt["w4e"] == 2:
                plan = [["w4", "x1"], ["w1", "x2", "w2"], ["x3", "w3", "x4"], [], ["x5", "w5"], ["x6", "w6"], ["x7", "w7"]]
        else:
            plan = [["x1", "w1"]] + [["x%d" % k, "w%d" % k] for k in range(2, 8)]

        def half(h):
            c = int(h[1])
            if h[0] == "x":
                issue_x(c)
            else:
                if H[-1] != "x%d" % c:
                    kchunk(c)
                issue_w(c)
            H.append(h)

        half(plan[0][0])
        a("s_waitcnt lgkmcnt(0)")
        a("s_load_dwordx2 s[8:9], s[32:33], %d" % WS_EP)
        half(plan[0][1])
        self.srd(self.rWS, self.pWS, WS_SIZE)
        self.srd(self.rOUT, self.pOUT, 2048 * 2048)
        a("s_waitcnt lgkmcnt(0)")
        self.tags()
        groups = list(range(8))
        waitc = lambda c: a("s_waitcnt vmcnt(%d)\ns_barrier" % (4 * (len(H) - 1 - max(H.index("x%d" % c), H.index("w%d" % c))) + 8 * (len(groups) - 8)))
        for c in range(6):
            waitc(c)
            if c == 0:
                self.stamp()
            for h in plan[c + 1]:
                half(h)
        c = 6
        cq, gq = c, list(groups)
        a("s_cmp_ge_u32 s5, 16\ns_cbranch_scc1 QLOADER")
        n0 = self.nst
        WSLOT = [3, 4, 0, 2]
        self.srd(self.rC, self.pWO, 512 * 1024)
        a("""s_and_b32 s68, s5, 3
        s_lshl_b32 s69, s58, 13
        v_lshlrev_b32 v16, 6, v12
        v_lshl_add_u32 v16, v14, 4, v16
        v_lshl_add_u32 v16, v3, 10, v16
        s_lshl_b32 s65, s58, 15
        s_lshr_b32 s66, s5, 2
        s_lshl_b32 s66, s66, 8
        s_add_u32 s65, s65, s66
        v_add_u32 v16, s65, v16
        v_add_u32 v17, 0xc00, v16
        v_add_u32 v18, 0x1800, v16
        v_add_u32 v19, 0x2400, v16""")

        def issue_wo(n, sl=None):
            slot = (WSLOT[n] if sl is None else sl) * 32768
            a("s_add_u32 m0, s69, %d" % slot)
            a("s_xor_b32 s63, s68, %d\ns_lshl_b32 s63, s63, 17" % n)
            for j in range(4):
                a("buffer_load_dwordx4 v%d, %s, s63 offen offset:%d lds" % (16 + j, s(self.rC, 4), j * 1024))
            a("s_add_u32 m0, s69, %d" % (slot + 4096))
            a("s_add_u32 s63, s63, 0x4000")
            for j in range(4):
                a("buffer_load_dwordx4 v%d, %s, s63 offen offset:%d lds" % (16 + j, s(self.rC, 4), j * 1024))

        def read_wo(n, sl=None):
            ad, off = {4: (0, 0), 0: (14, 0), 1: (14, 32768), 3: (15, 32768), 2: (15, 0)}[WSLOT[n] if sl is None else sl]
            for h in range(8):
                r = 128 + 32 * n + 4 * h
                a("ds_read_b64_tr_b16 %s, v%d offset:%d" % (v(r, 2), ad, off + h * 4096))
                a("ds_read_b64_tr_b16 %s, v%d offset:%d" % (v(r + 2, 2), ad, off + h * 4096 + 2048))

        wsched = {self.opt.get("w0", 6): [0]}
        wsched.setdefault(self.opt.get("w1", 7), []).append(1)
        w2late = self.opt.get("w2late", 0)
        if not w2late:
            wsched.setdefault(7, []).append(2)
        for c in range(cq, 8):
            waitc(c)
            if c == 7:
                self.stamp()
            for n in wsched.get(c, []):
                issue_wo(n)
                groups.append("w%d" % n)
        assert len(groups) == 11 - w2late
        a.label("WL_0")
        self.wo_addr()
        self.tail_addr()
        a("s_waitcnt vmcnt(0)")
        self.stamp()
        a("s_barrier")
        if w2late:
            WSLOT[:] = [3, 4, 2, 1]
        if w2late:
            issue_wo(2)
        issue_wo(3)
        self.read_wo = read_wo
        if self.opt.get("wide"):
            for j in range(4):
                a("v_xor_b32 v%d, 0x100, v%d" % (16 + j, 16 + j))
            issue_wo(0, 1)
            for n in range(3):
                read_wo(n)
            a("s_waitcnt vmcnt(0) lgkmcnt(0)\ns_barrier")
            self.stamp()
            if self.opt["wide"] == 1:
                self.w_pqload()
            for n in range(1, 4):
                issue_wo(n, WSLOT[n - 1])
            read_wo(3)
            if self.opt["wide"] == 3:
                self.w_pqload()
                a("s_waitcnt vmcnt(4)")
            if self.opt["wide"] == 2:
                a("s_waitcnt vmcnt(0)")
        else:
            for n in range(3 - w2late):
                read_wo(n)
        a.label("WL_1")
        a("s_branch KV_TAIL")
        self.kv_tail_nst = self.nst
        self.nst = n0
        a.label("QLOADER")
        self.role = "R"
        self.reducer_setup()
        del groups[8:]
        for c in range(cq, 8):
            waitc(c)
        if self.opt.get("prewrite", 1):
            lab = a.newlabel("NOZ")
            a("s_cmp_gt_u32 s71, 8\ns_cbranch_scc1 " + lab)
            a("buffer_store_dwordx4 v[32:35], v21, %s, s67 offen sc1" % ws)
            a.label(lab)
        lab = a.newlabel("PC")
        a("s_getpc_b64 s[56:57]")
        a.label(lab)
        a.items.append(("i", _sym_add("s_add_u32 s56, s56, TABLE-%s" % lab, 0x8000)))
        a("s_addc_u32 s57, s57, 0\nv_lshlrev_b32 v2, 4, v1\nv_add_u32 v3, s59, v2\ns_add_u32 m0, s59, %d" % TB)
        for q in range(4):
            a("global_load_lds_dwordx4 v3, s[56:57] offset:%d" % (q * 1024))
        self.ra_inv(1, 84)
        a("ds_write_b64 v90, v[88:89]")
        a("s_waitcnt vmcnt(0) lgkmcnt(0)\ns_barrier")
        self.stamp()
        self.reducer()

    def ra_inv(self, half, t):
        self.a("""v_and_b32 v{0}, 7, v1
        v_lshlrev_b32 v{0}, 6, v{0}
        s_add_u32 s62, s60, {h}
        v_add_u32 v{0}, s62, v{0}
        v_cvt_f32_u32 v{0}, v{0}
        v_mul_f32 v{0}, {c1}, v{0}
        s_lshr_b32 s62, s3, 1
        s_and_b32 s15, s3, 1
        s_lshl2_add_u32 s14, s62, s15
        s_lshl_b32 s14, s14, 1
        v_lshrrev_b32 v{1}, 5, v1
        v_lshl_add_u32 v{1}, v{1}, 2, s14
        v_cvt_f32_u32 v{1}, v{1}
        v_bfe_u32 v{2}, v1, 3, 1
        v_cvt_f32_u32 v{2}, v{2}
        v_mul_f32 v{2}, {c2}, v{2}
        v_fma_f32 v{1}, v{1}, v{0}, v{2}
        v_lshlrev_b32 v{2}, 27, v1
        v_and_b32 v{2}, 0x80000000, v{2}
        v_or_b32 v{2}, {c3}, v{2}
        v_add_f32 v{3}, v{1}, v{2}
        v_sub_f32 v{2}, v{0}, v{2}
        v_add_f32 v{2}, v{1}, v{2}
        v_cos_f32 v{0}, v{3}
        v_sin_f32 v{3}, v{3}
        v_cos_f32 v{1}, v{2}
        v_sin_f32 v{2}, v{2}
        s_lshl_b32 s62, s62, 10
        s_lshl3_add_u32 s62, s15, s62
        s_add_u32 s62, s62, {rab}
        v_add_u32 v{6}, s62, v2
        v_cvt_pk_bf16_f32 v{4}, v{0}, -v{3}
        v_cvt_pk_bf16_f32 v{5}, v{1}, -v{2}""".format(*[t + i for i in range(7)], h=512 * half, c1=fhex(1 / 2048), c2=fhex(-0.25),
                                                      c3=fhex(0.125), rab=RAB))

    def reducer_setup(self):
        a = self.a
        a("""s_lshl3_add_u32 s60, s4, s5
        s_sub_u32 s60, s60, 16
        s_lshr_b32 s61, s60, 2
        s_and_b32 s71, s60, 3
        s_lshl2_add_u32 s71, s58, s71
        s_mul_i32 s63, s61, %d
        s_lshl_b32 s64, s71, 7
        s_add_u32 s63, s63, s64
        s_add_u32 s63, s63, 0x%x
        s_mul_i32 s67, s61, %d
        s_add_u32 s67, s67, s64
        s_add_u32 s67, s67, 0x%x
        s_add_u32 s64, s63, %d
        s_add_u32 s65, s63, %d
        s_add_u32 s66, s63, %d""" % (32 * PLINE, WS_PART, PLINE, WS_RED, 8 * PLINE, 16 * PLINE, 24 * PLINE))
        a("""v_lshrrev_b32 v2, 3, v1
        v_and_b32 v3, 7, v1
        v_lshlrev_b32 v3, 4, v3
        v_mov_b32 v22, %d
        v_mad_u32_u24 v20, v2, v22, v3
        v_mov_b32 v22, 0x%x
        v_mad_u32_u24 v21, v2, v22, v3""" % (PLINE, RED_STRIDE))
        a("""v_and_b32 v2, 1, v1
        v_lshlrev_b32 v2, 4, v2
        v_mov_b32 v3, 0x3f80
        v_lshlrev_b32 v3, v2, v3
        v_and_b32 v2, 2, v1
        v_cmp_eq_u32 vcc, 0, v2
        v_mov_b32 v24, 0
        v_mov_b32 v25, 0
        v_mov_b32 v28, 0
        v_mov_b32 v29, 0
        v_cndmask_b32 v26, 0, v3, vcc
        v_cndmask_b32 v27, v3, v25, vcc
        v_mov_b32 v32, 0xfffefffe
        v_mov_b32 v33, 0
        v_mov_b32 v34, 0
        v_mov_b32 v35, 0""")

    def reducer(self):
        a = self.a
        ws = s(self.rWS, 4)
        D, acc, vacc, o = 40, 72, 80, 36
        lab = a.newlabel("NORED")
        n0 = self.nst
        self.pad_stamps(9)
        self.nst = n0
        a("s_cmp_gt_u32 s71, 8\ns_cbranch_scc1 HELPER")
        a.label("WR_0")
        self.diag_delay("d_part")
        self.poll(lambda: [a("buffer_load_dwordx4 %s, v20, %s, s%d offen sc1" % (v(D + 4 * i, 4), ws, 63 + i)) for i in range(4)],
                  lambda: self.markcheck(D, 16, vacc), vacc)
        self.stamp()
        for i in range(4):
            for h in range(2):
                a("%s %s, %s, %s, %s" % (M16, v(acc + 4 * h, 4), v(26 - 2 * h, 4), v(D + 4 * i, 4), v(acc + 4 * h, 4) if i else "0"))
        for r in range(8):
            a("v_add_f32_dpp v%d, v%d, v%d row_ror:8 row_mask:0xf bank_mask:0xf" % (56 + r, acc + r, acc + r))
        for j in range(4):
            self.cvt(o + j, v(56 + 2 * j), v(57 + 2 * j))
        for x in self.mark(o, 32):
            a(x)
        a("buffer_store_dwordx4 %s, v21, %s, s67 offen sc1" % (v(o, 4), ws))
        a.label("WR_1")
        self.stamp()
        self.pad_stamps(9)
        a("s_branch HELPER")

    def lds_reset(self):
        self.lq_issued = 0
        self.lq_done = 0

    def lds(self, line):
        self.a(line)
        self.lq_issued += 1
        return self.lq_issued

    def lds_wait(self, seq):
        if seq > self.lq_done:
            n = min(self.lq_issued - seq, 15)
            self.a("s_waitcnt lgkmcnt(%d)" % n)
            self.lq_done = self.lq_issued - n

    @staticmethod
    def cost(line):
        m = line.split()[0]
        if m == "MARK":
            return 0
        if m.startswith(("v_exp", "v_rcp", "v_sin", "v_cos")):
            return 8
        return 4

    def run_mfmas(self, mf, frags, pool, fillers, budget=24, maxread=2, maxout=14, hooks=None):
        a = self.a
        order = []
        last = {}
        for j, (_, ids) in enumerate(mf):
            for i in ids:
                if i not in last:
                    order.append(i)
                last[i] = j
        pool = list(pool)
        reg, seq = {}, {}
        rp = [0, 0]
        q = []

        def one_read():
            i = order[rp[0]]
            reads, pre = frags[i]
            if rp[1] == 0:
                if not pool:
                    return False
                if pre:
                    pre()
                reg[i] = pool.pop(0)
            sq = self.lds(reads[rp[1]].format(r=v(reg[i], 4), lo=v(reg[i], 2), hi=v(reg[i] + 2, 2)))
            rp[1] += 1
            if rp[1] == len(reads):
                seq[i] = sq
                rp[0] += 1
                rp[1] = 0
            return True

        while rp[0] < len(order) and self.lq_issued - self.lq_done < maxout - 2 and pool and not (rp[0] and frags[order[rp[0]]][1]):
            one_read()
        for j, (fmt, ids) in enumerate(mf):
            for i in ids:
                while i not in seq:
                    assert one_read()
            if ids:
                self.lds_wait(max(seq[i] for i in ids))
            a(fmt.format(*[v(reg[i], 4) for i in ids]))
            for i in ids:
                if last[i] == j:
                    pool.append(reg[i])
            if hooks and j in hooks:
                hooks[j]()
            b = budget
            k = 0
            while k < maxread and rp[0] < len(order) and self.lq_issued - self.lq_done < maxout:
                gate = frags[order[rp[0]]]
                if rp[1] == 0 and len(gate) > 2 and gate[2]() is False:
                    break
                if not one_read():
                    break
                k += 1
                b -= 4
            q += fillers.get(j, [])
            while q and b >= self.cost(q[0]):
                if self.opt.get("upf", 1) and q[0].startswith("v_pk_"):
                    q[0:1] = unpack_pk(q[0])
                x = q.pop(0)
                b -= self.cost(x)
                self.emit_filler(x)
            self.fq = q
        return q

    def emit_filler(self, x):
        if x == "MARK":
            pass
        elif x.startswith("ds_"):
            self.last_fill_lds = self.lds(x)
        elif x.startswith("WAITLDS"):
            self.lds_wait(self.last_fill_lds - int(x.split()[1]))
        else:
            self.a(x)

    def gemm_loop(self, acc, pool, ax, aw, xfirst, fill, Z, hooks=None):
        a = self.a
        frags, mf = {}, []
        seen = set()

        def fx(n, mb, tag):
            c, ks = n >> 2, n & 3
            slot = c % 5
            hi, so = slot >> 1, (slot & 1) * 32768
            pre = None
            if ("x", n, mb, tag) in frags:
                return ("x", n, mb, tag)
            if c not in seen:
                seen.add(c)
                pre = (lambda: a("s_barrier")) if c else None
            frags[("x", n, mb, tag)] = (["ds_read_b128 {r}, v%d offset:%d" % (ax[hi][ks], so + 4096 * mb)], pre)
            return ("x", n, mb, tag)

        def fw(n, nb):
            c, ks = n >> 2, n & 3
            slot = c % 5
            hi, so = slot >> 1, (slot & 1) * 32768 + 16384 + ks * 4096
            frags[("w", n, nb)] = (["ds_read_b64_tr_b16 {lo}, v%d offset:%d" % (aw[hi][nb], so),
                                    "ds_read_b64_tr_b16 {hi}, v%d offset:%d" % (aw[hi][nb], so + 1024)], None)
            return ("w", n, nb)

        def add(n, nbs, tag):
            X = [fx(n, 0, tag), fx(n, 1, tag)]
            for nb in nbs:
                W = fw(n, nb)
                for mb in range(2):
                    d = v(acc[mb][nb], 16)
                    mf.append(("v_mfma_f32_32x32x16_bf16 %s, %s, %s" % (d, "{0}, {1}" if xfirst else "{1}, {0}", d if n else "0"), [X[mb], W]))

        for n in range(32 - Z):
            add(n, (0, 1), 0)
        for n in range(32 - Z, 32):
            add(n, (0,), 0)
        j0 = len(mf)
        for n in range(32 - Z, 32):
            add(n, (1,), 0 if self.opt.get("keepx", 1) else 1)
        a("s_barrier")
        self.stamp()
        self.lds_reset()
        return self.run_mfmas(mf, frags, pool, {j0 + 1: fill}, hooks=hooks)

    def phi(self, src, dst, tmp, n):
        L = []
        for g in range(0, n, 8):
            for j in range(0, 8, 2):
                L.append("v_pk_mul_f32 %s, %s, s[56:57]" % (v(tmp + j, 2), v(src + g + j, 2)))
            for j in range(8):
                L.append("v_exp_f32_e64 v%d, v%d clamp" % (tmp + j, tmp + j))
                L.append("v_max_f32 v%d, s58, v%d" % (src + g + j, src + g + j))
            for j in range(0, 8, 2):
                L.append("v_pk_add_f32 %s, %s, %s" % (v(tmp + j, 2), v(tmp + j, 2), v(src + g + j, 2)))
            for j in range(0, 8, 2):
                L.append("v_cvt_pk_bf16_f32 v%d, v%d, v%d" % (dst + (g + j) // 2, tmp + j, tmp + j + 1))
        return L

    def compute(self):
        a = self.a
        ws = s(self.rWS, 4)
        a.label("COMPUTE")
        self.role = "K"
        if self.opt.get("walk", 0) & 1:
            a("""s_mov_b64 exec, 0
            s_cmp_ge_u32 s5, 16
            s_cbranch_scc1 WKQ
            s_cmp_eq_u32 s3, 0
            s_cbranch_scc1 WKA0
            s_cmp_eq_u32 s3, 1
            s_cbranch_scc1 WKA1
            s_cmp_eq_u32 s3, 2
            s_cbranch_scc1 WKA2
            s_branch WKL0""")
            a.label("WKQ")
            a("""s_cmp_eq_u32 s3, 0
            s_cbranch_scc1 WKQ0
            s_cmp_eq_u32 s3, 1
            s_cbranch_scc1 WKQ1
            s_cmp_eq_u32 s3, 2
            s_cbranch_scc1 WKR0
            s_branch WKC0""" if self.opt.get("walk", 0) & 2 else "s_cmp_eq_u32 s3, 0\ns_cbranch_scc1 WKQ0\ns_cmp_eq_u32 s3, 1\ns_cbranch_scc1 WKQ1\ns_branch WKR0")
            a.label("WRET_A")
            a("s_mov_b64 exec, -1\ns_waitcnt lgkmcnt(0)\ns_nop 15")
        ax = [[240, 241, 242, 243], [244, 245, 246, 247], [252, 253, 254, 255]]
        aw = [[248, 249], [250, 251], [146, 147]]
        a("""s_lshr_b32 s60, s4, 1
        s_and_b32 s68, s5, 3
        s_lshl2_add_u32 s60, s60, s68
        s_and_b32 s64, s4, 1
        s_bfe_u32 s65, s5, 0x20002
        s_lshl2_add_u32 s61, s64, s65
        s_lshl1_add_u32 s66, s64, s65
        s_lshr_b32 s63, s3, 1
        s_and_b32 s64, s3, 1
        s_lshr_b32 s67, s5, 4
        s_lshl_b32 s69, s64, s67
        s_movk_i32 s70, 128
        s_lshr_b32 s70, s70, s67
        s_cmp_ge_u32 s5, 16
        s_cselect_b32 s61, s66, s61
        s_mov_b32 s10, 0xffff0000
        s_mov_b32 s11, 0xffff0000""")
        a(self.KARG)
        a("""v_and_b32 v2, 31, v1
        v_lshlrev_b32 v2, 7, v2
        s_lshl_b32 s65, s63, 13
        v_add_u32 v2, s65, v2
        v_lshrrev_b32 v3, 5, v1
        v_bfe_u32 v16, v1, 1, 3
        v_xor_b32 v16, v16, v3
        v_lshl_add_u32 v240, v16, 4, v2
        v_xor_b32 v241, 32, v240
        v_xor_b32 v242, 64, v240
        v_xor_b32 v243, 96, v240""")
        a("""v_bfe_u32 v16, v1, 2, 2
        v_lshl_add_u32 v17, v3, 3, v16
        v_xor_b32 v16, s69, v16
        v_lshlrev_b32 v16, 6, v16
        v_lshl_add_u32 v16, v17, 8, v16
        v_bfe_u32 v17, v1, 4, 1
        v_lshl_add_u32 v16, v17, 5, v16
        v_and_b32 v17, 3, v1
        v_lshl_add_u32 v248, v17, 3, v16
        v_xor_b32 v249, s70, v248""")
        for k in range(4):
            a("v_add_u32 v%d, 0x10000, v%d" % (244 + k, 240 + k))
            a("v_add_u32 v%d, 0x20000, v%d" % (252 + k, 240 + k))
        a("v_add_u32 v250, 0x10000, v248\nv_add_u32 v251, 0x10000, v249\nv_add_u32 v146, 0x20000, v248\nv_add_u32 v147, 0x20000, v249")
        a("s_waitcnt lgkmcnt(0)")
        a("s_load_dwordx2 s[8:9], s[32:33], %d" % WS_EP)
        self.srd(self.rWS, self.pWS, WS_SIZE)
        self.srd(self.rOUT, self.pOUT, 2048 * 2048)
        a("s_mov_b32 s56, %s\ns_mov_b32 s57, %s\ns_mov_b32 s58, %s" % (fhex(1.4426950408889634), fhex(1.4426950408889634), fhex(1e-6)))
        a("v_lshlrev_b32 v2, 4, v1")
        acc = [[64, 96], [80, 112]]
        pool = list(range(16, 64, 4))
        Z = self.opt.get("z", 6)
        CN = 252
        a("s_cmp_ge_u32 s5, 16\ns_cbranch_scc1 QCOMPUTE")
        n0 = self.nst
        a("""s_lshl1_add_u32 s59, s61, s64
        s_lshl_b32 s59, s59, 5
        s_lshl1_add_u32 s66, s60, s63
        s_add_u32 s59, s59, s66
        s_mul_i32 s59, s59, %d
        s_add_u32 s59, s59, 0x%x""" % (PLINE, WS_PART))
        P0, P1, PZ, ONES, zaddr = 128, 132, 136, 140, 144
        pk, vv, tmp, D, D2 = 180, 196, 212, 148, 164
        for j in range(4):
            a("v_mov_b32 v%d, 0x3f803f80" % (ONES + j))

        def prewrite():
            a("buffer_store_dwordx4 %s, v2, %s, s59 offen sc1" % (v(ONES, 4), ws))
            a("s_mov_b64 exec, 0xff")
            a("buffer_store_dwordx4 %s, v2, %s, s59 offen offset:1024 sc1" % (v(ONES, 4), ws))
            a("s_mov_b64 exec, -1")

        pw = self.opt.get("prewrite", 1)
        if pw == 1:
            prewrite()
        a("""v_lshrrev_b32 v3, 4, v1
        v_and_b32 v145, 1, v1
        v_lshl_add_u32 v4, v3, 1, v145
        v_lshlrev_b32 v%d, 4, v4
        v_mov_b32 v145, 0xfffefffe
        s_mov_b32 s60, 0x00030003
        s_mov_b32 s61, 0x00030003""" % zaddr)
        self.tail_addr()
        a("s_waitcnt lgkmcnt(0)")
        self.tags()
        K0, K1, V0, V1 = acc[0][0], acc[1][0], acc[0][1], acc[1][1]
        fill = []
        for i, src in enumerate((K0, K0 + 8, K1, K1 + 8)):
            fill += self.phi(src, pk + 4 * i, tmp, 8) + ["MARK"]
        hooks = {100: lambda: a("s_waitcnt vmcnt(0)")}
        if pw > 1:
            hooks[pw] = prewrite
        big = list(range(148, 180, 4)) + list(range(220, 240, 4)) if self.opt.get("keepx", 1) else []
        hooks[128 - 2 * Z] = lambda: a.label("WA_0")
        rest = self.gemm_loop(acc, pool + big, ax, aw, True, fill, Z, hooks)
        self.stamp()
        ndone = 4 - rest.count("MARK")
        vsrc = (V0, V0 + 8, V1, V1 + 8)
        vcvt = lambda i: ["v_cvt_pk_bf16_f32 v%d, v%d, v%d" % (vv + 4 * i + j, vsrc[i] + 2 * j, vsrc[i] + 2 * j + 1) for j in range(4)]
        mD = lambda i: "%s %s, %s, %s, %s" % (M32, v(D, 16), v(pk + 4 * i, 4), v(vv + 4 * i, 4), v(D, 16) if i else "0")
        mZ = lambda i: "%s %s, %s, %s, %s" % (M32, v(D2, 16), v(pk + 4 * i, 4), v(ONES, 4), v(D2, 16) if i else "0")
        pend = [x for i in range(ndone) for x in ([mZ(i)], vcvt(i) + [mD(i)])]
        g, gap = ndone, 0
        for k, x in enumerate(rest):
            if x == "MARK":
                pend += [[mZ(g)], vcvt(g) + [mD(g)]]
                g += 1
                continue
            run = 0
            while k + run < len(rest) and rest[k + run].startswith(("v_exp", "v_max")):
                run += 1
            if pend and run >= 5 and gap <= 0:
                for y in pend.pop(0):
                    a(y)
                gap = 5
            a(x)
            gap -= 1
        cv = [y for it in pend for y in it if y.startswith("v_cvt")]
        zs = [y for it in pend for y in it if y.startswith("v_mfma") and v(ONES, 4) in y]
        ds = [y for it in pend for y in it if y.startswith("v_mfma") and v(ONES, 4) not in y]
        for y in cv[:4] + zs + cv[4:] + ds:
            a(y)
        for src, p in ((D2, PZ), (D, P0)):
            for j in range(4):
                self.cvt(p + j, v(src + 2 * j), v(src + 2 * j + 1))
            a("s_mov_b64 exec, s[10:11]")
            for j in range(4):
                self.cvt(p + j, v(src + 8 + 2 * j), v(src + 9 + 2 * j))
            a("s_mov_b64 exec, %s" % ("s[60:61]" if p == PZ else "-1"))
            for x in self.mark(p, 145):
                a(x)
            if p == PZ:
                a("buffer_store_dwordx4 %s, v%d, %s, s59 offen offset:1024 sc1" % (v(PZ, 4), zaddr, ws))
                a("s_mov_b64 exec, -1")
            else:
                a("buffer_store_dwordx4 %s, v2, %s, s59 offen sc1" % (v(p, 4), ws))
        self.stamp()
        a("s_barrier")
        if self.opt.get("wide"):
            self.wo_addr()
            if self.opt["wide"] == 1:
                a("s_waitcnt vmcnt(0)")
            a("s_barrier")
            self.stamp()
            if self.opt["wide"] == 1:
                self.w_pqload()
            self.read_wo(0, 1)
            assert self.nst == self.kv_tail_nst
            self.wide_tail()
        else:
            assert self.nst == self.kv_tail_nst
            self.kv_tail()
        a.label("WA_1")
        a("s_endpgm")
        self.nst = n0
        a.label("QCOMPUTE")
        a.unpk = False
        self.role = "Q"
        a("""s_lshl1_add_u32 s66, s60, s63
        s_lshl2_add_u32 s66, s66, s61
        s_lshl1_add_u32 s66, s66, s64
        s_lshl_b32 s65, s66, 13
        s_add_u32 s65, s65, 0x%x
        s_add_u32 s67, s65, 0x1000
        v_mov_b32 v4, 0xfffefffe
        s_lshl3_add_u32 s60, s4, s5
        s_sub_u32 s60, s60, 16""" % WS_PQ)
        self.ra_inv(1, 8)
        a("s_waitcnt lgkmcnt(0)")
        self.tags()

        def qpost(nb):
            L = []
            for mb in range(2):
                for h in range(2):
                    d = 128 + 16 * nb + 8 * mb + 4 * h
                    L += self.phi(acc[mb][nb] + 8 * h, d, 212, 8) + self.mark(d, 4)
                    L.append("buffer_store_dwordx4 %s, v2, %s, s%d offen offset:%d sc1" % (v(d, 4), ws, 67 if nb else 65, (h * 2 + mb) * 1024))
            return L

        big = list(range(160, 212, 4)) if self.opt.get("keepx", 1) else []
        rest = self.gemm_loop(acc, pool + big, ax, aw, False, qpost(0), self.opt.get("zq", 6), {100: lambda: a("s_waitcnt vmcnt(0)"), 128 - 2 * self.opt.get("zq", 6): lambda: a.label("WQ_0")})
        self.stamp()
        a("ds_write_b64 v14, v[12:13]")
        for x in rest + qpost(1):
            a(x)
        a.label("WQ_1")
        a("s_waitcnt vmcnt(%d) lgkmcnt(0)\ns_barrier" % self.opt.get("qdr", 0))
        self.stamp()
        self.pad_stamps(9)
        a.label("HELPER")
        a("s_lshl_b32 s62, s60, 7\ns_add_u32 s62, s62, 0x%x\ns_movk_i32 s34, 512" % WS_GO)
        self.flip_marks()
        a("s_branch B3_ENTRY")

    def wo_addr(self):
        a = self.a
        a("s_and_b32 s63, s3, 3")
        a("""v_bfe_u32 v14, v1, 2, 2
        v_lshrrev_b32 v15, 5, v1
        v_lshl_add_u32 v15, v15, 2, v14
        v_xor_b32 v14, s63, v14
        v_lshlrev_b32 v14, 6, v14
        v_lshl_add_u32 v14, v15, 8, v14
        v_and_b32 v15, 1, v1
        v_lshl_add_u32 v14, v15, 5, v14
        v_bfe_u32 v15, v1, 4, 1
        v_lshl_add_u32 v14, v15, 4, v14
        v_bfe_u32 v15, v1, 1, 1
        v_lshl_add_u32 v14, v15, 3, v14
        v_add_u32 v15, 0x10000, v14
        v_add_u32 v0, 0x20000, v14""")

    def tail_addr(self):
        a = self.a
        a("""v_lshlrev_b32 v2, 4, v1
        s_and_b32 s65, s5, 3
        s_lshl2_add_u32 s65, s4, s65
        s_lshl3_add_u32 s66, s65, s3
        s_lshl_b32 s67, s66, 13
        s_add_u32 s67, s67, 0x%x
        s_mul_i32 s70, s3, %d
        s_mul_i32 s71, s4, 0x%x
        s_add_u32 s70, s70, s71
        s_add_u32 s70, s70, 0x%x
        s_add_u32 s71, s70, %d
        v_lshrrev_b32 v8, 4, v1
        v_xor_b32 v8, 1, v8
        v_and_b32 v9, 1, v1
        v_lshl_add_u32 v8, v8, 1, v9
        v_lshlrev_b32 v8, 4, v8
        s_lshl_b32 s63, s3, 12
        v_add_u32 v13, s63, v2
        s_mov_b32 s10, 0xffff0000
        s_mov_b32 s11, 0xffff0000""" % (WS_PQ, 2 * PLINE, RED_STRIDE, WS_RED, PLINE))
        if self.opt.get("wide"):
            a("s_bfe_u32 s63, s5, 0x10002\ns_lshl_b32 s63, s63, 10\ns_add_u32 s67, s67, s63\ns_add_u32 s71, s67, 0x1000")

    def w_pqload(self):
        for i in range(4):
            self.a("buffer_load_dwordx4 %s, v2, %s, s%d offen offset:%d sc1" % (v(32 + 4 * i, 4), s(self.rWS, 4), 71 if i >= 2 else 67, (i & 1) * 2048))

    def wide_tail(self):
        a = self.a
        ws = s(self.rWS, 4)
        a.label("KV_TAIL")
        WO, PQ, RD, OP, AC = 128, 32, 48, 16, 64
        a("""s_mov_b32 s58, %s
        s_lshl_b32 s63, s5, 13
        s_and_b32 s64, s63, 0x6000
        s_add_u32 s64, s64, 0x8000
        v_add_u32 v4, s64, v2
        v_xor_b32 v5, 0x2000, v4
        v_xor_b32 v6, 0x4000, v4
        v_xor_b32 v7, 0x6000, v4
        s_lshl_b32 s63, s3, 11
        s_add_u32 s63, s63, 0x10000
        v_and_b32 v10, 31, v1
        v_bfe_u32 v11, v1, 1, 2
        v_lshrrev_b32 v9, 5, v1
        v_lshlrev_b32 v9, 1, v9
        v_xor_b32 v11, v11, v9
        v_lshlrev_b32 v11, 4, v11
        v_lshl_add_u32 v10, v10, 6, v11
        v_add_u32 v10, s63, v10
        v_bfe_u32 v9, v1, 3, 2
        v_lshlrev_b32 v9, 4, v9
        v_xor_b32 v9, v9, v2
        v_add_u32 v9, s63, v9
        v_lshrrev_b32 v3, 2, v1
        v_and_b32 v11, 3, v1
        v_lshlrev_b32 v11, 4, v11
        v_lshl_add_u32 v3, v3, 11, v11
        v_xor_b32 v11, 16, v10
        s_lshr_b32 s63, s5, 2
        s_and_b32 s64, s63, 1
        s_lshl1_add_u32 s65, s65, s64
        s_lshl_b32 s65, s65, 16
        s_lshl_b32 s63, s63, 2
        s_xor_b32 s63, s63, s3
        s_xor_b32 s63, s63, 4
        s_lshl_b32 s63, s63, 6
        s_add_u32 s64, s65, s63
        s_add_u32 s65, s64, 0x8000""" % fhex(1e-6))
        wd = self.opt["wide"]
        if wd == 1:
            self.poll(self.w_pqload, lambda: self.markcheck(PQ, 16, 12), 12, first_issued=True)
        a("s_waitcnt lgkmcnt(0)\ns_barrier")
        self.stamp()
        if wd == 2:
            self.w_pqload()
        if wd == 3:
            lab = a.newlabel("NOPQ")
            a("s_cmp_ge_u32 s3, 4\ns_cbranch_scc1 " + lab)
            self.w_pqload()
            a.label(lab)

        def issue():
            for pi in range(2):
                a("buffer_load_dwordx4 %s, v2, %s, s70 offen offset:%d sc1" % (v(RD + 8 * pi, 4), ws, pi * PLINE))
                a("buffer_load_dwordx4 %s, v8, %s, s70 offen offset:%d sc1" % (v(RD + 8 * pi + 4, 4), ws, pi * PLINE + 1024))

        self.diag_delay("d_red")
        issue()
        lab = a.newlabel("NOWO")
        a("s_cmp_ge_u32 s3, 4\ns_cbranch_scc1 " + lab)
        for n, sl in ((1, 3), (2, 4), (3, 0)):
            self.read_wo(n, sl)
        a.label(lab)
        if wd != 1:
            self.poll(self.w_pqload, lambda: self.markcheck(PQ, 16, 12), 12, first_issued=True)
        self.poll(issue, lambda: self.markcheck(RD, 16, 12), 12, first_issued=True)
        self.stamp()

        def sel(i):
            b = RD + 8 * (i >> 1)
            for j in range(4):
                x, y = (b + j, b + 4 + j) if i & 1 == 0 else (b + 4 + j, b + j)
                a("v_cndmask_b32 v%d, v%d, v%d, s[10:11]" % (OP + 4 * i + j, x, y))

        mf = lambda i: a("%s %s, %s, %s, 0" % (M32, v(AC + 16 * i, 16), v(OP + 4 * i, 4), v(PQ + 4 * i, 4)))
        sel(0)
        sel(1)
        mf(0)
        sel(2)
        mf(1)
        sel(3)
        mf(2)
        for i in range(4):
            d = AC + 16 * i
            num, den = (d, d + 8) if i & 1 == 0 else (d + 8, d)
            if i == 0:
                mf(3)
            a("v_add_f32 v%d, s58, v%d\nv_rcp_f32 v%d, v%d" % (den, den, den, den))
            for j in range(0, 8, 2):
                a("v_pk_mul_f32 %s, %s, %s op_sel_hi:[1,0]" % (v(num + j, 2), v(num + j, 2), v(den, 2)))
            for j in range(4):
                self.cvt(den + 4 + j, v(num + 2 * j), v(num + 2 * j + 1))
            a("ds_write_b128 v13, %s offset:%d" % (v(den + 4, 4), 32768 + i * 1024))
        a("s_waitcnt lgkmcnt(0)\ns_barrier")
        self.stamp()
        frags, mfl = {}, []
        d = v(AC, 16)
        for h in range(32):
            frags[h] = (["ds_read_b128 {r}, v%d offset:%d" % (4 + (h >> 3), (h & 7) * 1024)], None)
            mfl.append(("%s %s, %s, {0}, %s" % (M32, d, v(WO + 4 * h, 4), d if h else "0"), [h]))
        self.lds_reset()
        self.run_mfmas(mfl, frags, list(range(16, 48, 4)), {}, maxread=1)
        fl = self.opt.get("outflag", "sc1")
        t = AC + 16
        for j in range(8):
            self.cvt(t + j, v(AC + 2 * j), v(AC + 2 * j + 1))
        a("ds_write_b128 v10, %s\nds_write_b128 v11, %s" % (v(t, 4), v(t + 4, 4)))
        a("ds_read_b128 %s, v9\nds_read_b128 %s, v9 offset:1024" % (v(t + 8, 4), v(t + 12, 4)))
        for k in range(2):
            a("s_waitcnt lgkmcnt(%d)" % (1 - k))
            a("buffer_store_dwordx4 %s, v3, %s, s%d offen %s" % (v(t + 8 + 4 * k, 4), s(self.rOUT, 4), 64 + k, fl))
        lab = a.newlabel("NOEP")
        a("s_or_b32 s56, s4, s3\ns_or_b32 s56, s56, s5\ns_cbranch_scc1 " + lab)
        self.poll(lambda: a("buffer_load_dwordx2 v[6:7], off, %s, 0 offset:%d sc1" % (ws, WS_NOTE)),
                  lambda: a("v_xor_b32 v12, s6, v6\nv_bitop3_b32 v12, v12, v7, s7 bitop3:0xf6"), 12)
        a("v_mov_b32 v6, s8\nv_mov_b32 v7, s9\ns_mov_b64 exec, 1")
        a("buffer_store_dwordx2 v[6:7], off, %s, 0 offset:%d" % (ws, WS_EP))
        a("s_mov_b64 exec, -1")
        a.label(lab)
        self.end()

    def kv_tail(self):
        a = self.a
        ws = s(self.rWS, 4)
        a.label("KV_TAIL")
        a.unpk = bool(self.opt.get("unpk", 2) & 2)
        WO, PQ, RD, OP, AC = 128, 16, 48, 80, 96
        a("s_waitcnt vmcnt(0)")
        a("s_add_u32 s68, s67, 0x1000\ns_mov_b32 s58, %s" % fhex(1e-6))
        pqload = lambda: [a("buffer_load_dwordx4 %s, v2, %s, s%d offen offset:%d sc1" % (v(PQ + 4 * i, 4), ws, 68 if i >= 4 else 67, (i & 3) * 1024)) for i in range(8)]
        self.diag_delay("d_pq")
        pql = self.opt.get("pqlate", 1)
        if pql != 1:
            pqload()
        if pql == 2:
            self.stamp()
            self.poll(pqload, lambda: self.markcheck(PQ, 32, 12), 12, first_issued=True)
        a("s_waitcnt lgkmcnt(0)\ns_barrier")
        self.stamp()
        if pql == 1:
            pqload()
        lab = a.newlabel("NOWO")
        a("s_cmp_lt_u32 s3, 4\ns_cbranch_scc1 " + lab)
        if self.opt.get("w2late", 0):
            self.read_wo(2)
        self.read_wo(3)
        a.label(lab)
        if pql != 2:
            self.poll(pqload, lambda: self.markcheck(PQ, 32, 12), 12, first_issued=True)
            self.stamp()

        def issue():
            for pi in range(2):
                a("buffer_load_dwordx4 %s, v2, %s, s70 offen offset:%d sc1" % (v(RD + 8 * pi, 4), ws, pi * PLINE))
                a("buffer_load_dwordx4 %s, v8, %s, s70 offen offset:%d sc1" % (v(RD + 8 * pi + 4, 4), ws, pi * PLINE + 1024))

        a("""s_lshl_b32 s63, s5, 13
        s_and_b32 s64, s63, 0x6000
        s_add_u32 s64, s64, OBASE
        v_add_u32 v13, OBASE, v13
        v_add_u32 v4, s64, v2
        v_xor_b32 v5, 0x2000, v4
        v_xor_b32 v6, 0x4000, v4
        v_xor_b32 v7, 0x6000, v4
        s_lshl_b32 s69, s3, 12
        s_add_u32 s69, s69, STG
        v_and_b32 v10, 31, v1
        v_bfe_u32 v14, v1, 1, 2
        v_lshrrev_b32 v15, 5, v1
        v_lshlrev_b32 v15, 1, v15
        v_xor_b32 v14, v14, v15
        v_lshlrev_b32 v14, 4, v14
        v_lshl_add_u32 v10, v10, 6, v14
        v_add_u32 v10, s69, v10
        v_xor_b32 v14, 16, v10
        v_bfe_u32 v15, v1, 3, 2
        v_lshlrev_b32 v15, 4, v15
        v_xor_b32 v15, v15, v2
        v_add_u32 v15, s69, v15
        v_lshrrev_b32 v3, 2, v1
        v_and_b32 v11, 3, v1
        v_lshlrev_b32 v11, 4, v11
        v_lshl_add_u32 v3, v3, 11, v11
        s_lshl_b32 s65, s65, 17
        s_lshr_b32 s69, s5, 2
        s_and_b32 s64, s3, 3
        s_lshl2_add_u32 s69, s69, s64
        s_lshl_b32 s69, s69, 6
        s_add_u32 s64, s65, s69
        s_add_u32 s65, s64, 0x8000
        s_add_u32 s66, s64, 0x10000
        s_add_u32 s67, s64, 0x18000""".replace("OBASE", "0x18000" if self.opt.get("w2late", 0) else "0").replace("STG", "0" if self.opt.get("w2late", 0) else "0x14000"))
        if self.opt.get("rbar"):
            a("s_barrier")
        self.diag_delay("d_red")
        self.poll(issue, lambda: self.markcheck(RD, 16, 12), 12)
        self.stamp()
        accs = [AC, AC + 16, RD, RD + 16]

        def sel(i):
            pi, h = i >> 1, i & 1
            b = RD + 8 * pi
            for j in range(4):
                x, y = (b + j, b + 4 + j) if h == 0 else (b + 4 + j, b + j)
                a("v_cndmask_b32 v%d, v%d, v%d, s[10:11]" % (OP + 4 * i + j, x, y))

        def mf(i, mb, d):
            return "%s %s, %s, %s, 0" % (M32, v(d, 16), v(OP + 4 * i, 4), v(PQ + 4 * (i * 2 + mb), 4))

        def post(i, mb, d):
            pi, h = i >> 1, i & 1
            num, den = (d, d + 8) if h == 0 else (d + 8, d)
            L = ["v_add_f32 v%d, s58, v%d" % (den, den), "v_rcp_f32 v%d, v%d" % (den, den)]
            for j in range(0, 8, 2):
                L.append("v_pk_mul_f32 %s, %s, %s op_sel_hi:[1,0]" % (v(num + j, 2), v(num + j, 2), v(den, 2)))
            for j in range(4):
                L.append("v_cvt_pk_bf16_f32 v%d, v%d, v%d" % (den + 4 + j, num + 2 * j, num + 2 * j + 1))
            L.append("ds_write_b128 v13, %s offset:%d" % (v(den + 4, 4), mb * 32768 + i * 1024))
            return L

        sel(0)
        sel(1)
        a(mf(0, 0, accs[0]))
        sel(2)
        a(mf(1, 0, accs[1]))
        sel(3)
        a(mf(2, 0, accs[2]))
        for i in range(4):
            if i == 0:
                a(mf(3, 0, accs[3]))
            for x in post(i, 0, accs[i]):
                a(x)
        acc1 = [RD, RD + 16, AC + 16, RD]
        a(mf(0, 1, acc1[0]))
        a(mf(1, 1, acc1[1]))
        a("s_waitcnt lgkmcnt(0)\ns_barrier")
        self.stamp()
        a("s_cmp_ge_u32 s3, 4\ns_cbranch_scc1 OUT_GEMM")
        n0 = self.nst
        a(mf(2, 1, acc1[2]))
        a(mf(3, 1, AC))
        a.unpk = bool(self.opt.get("upf", 1))
        for i in range(4):
            for x in post(i, 1, acc1[i] if i < 3 else AC):
                a(x)
        a.unpk = False
        a("s_waitcnt lgkmcnt(0)\ns_barrier")
        lab = a.newlabel("NOEP")
        a("s_or_b32 s56, s4, s3\ns_or_b32 s56, s56, s5\ns_cbranch_scc1 " + lab)
        self.poll(lambda: a("buffer_load_dwordx2 v[6:7], off, %s, 0 offset:%d sc1" % (ws, WS_NOTE)),
                  lambda: a("v_xor_b32 v12, s6, v6\nv_bitop3_b32 v12, v12, v7, s7 bitop3:0xf6"), 12)
        a("v_mov_b32 v6, s8\nv_mov_b32 v7, s9\ns_mov_b64 exec, 1")
        a("buffer_store_dwordx2 v[6:7], off, %s, 0 offset:%d" % (ws, WS_EP))
        a("s_mov_b64 exec, -1")
        a.label(lab)
        self.end()
        self.nst = n0
        a.label("OUT_GEMM")
        fl = self.opt.get("outflag", "sc1")
        out = s(self.rOUT, 4)
        frags, mfl = {}, []
        pool = [PQ + 8 * i for i in range(4)] + [PQ + 4, PQ + 12]

        def b11b():
            assert not self.fq
            self.lds_wait(self.last_fill_lds)
            a("s_barrier")

        AC2 = OP
        for mb in range(2):
            d = v(AC2 if mb else AC, 16)
            for h in range(32):
                frags[(mb, h)] = (["ds_read_b128 {r}, v%d offset:%d" % (4 + (h >> 3), mb * 32768 + (h & 7) * 1024)],
                                  b11b if (mb, h) == (1, 0) else None)
                mfl.append(("%s %s, %s, {0}, %s" % (M32, d, v(WO + 4 * h, 4), d if h else "0"), [(mb, h)]))
                if mb == 0 and h == 0:
                    mfl.append((mf(2, 1, acc1[2]), []))
                if mb == 0 and h == 5:
                    mfl.append((mf(3, 1, acc1[3]), []))

        def epi(mb, d, t):
            L = ["v_cvt_pk_bf16_f32 v%d, v%d, v%d" % (t + j, d + 2 * j, d + 2 * j + 1) for j in range(8)]
            L += ["ds_write_b128 v10, %s offset:%d" % (v(t, 4), mb * 2048), "ds_write_b128 v14, %s offset:%d" % (v(t + 4, 4), mb * 2048),
                  "ds_read_b128 %s, v15 offset:%d" % (v(t + 8, 4), mb * 2048), "ds_read_b128 %s, v15 offset:%d" % (v(t + 12, 4), mb * 2048 + 1024)]
            L2 = ["WAITLDS 1", "buffer_store_dwordx4 %s, v3, %s, s%d offen %s" % (v(t + 8, 4), out, 64 + 2 * mb, fl),
                  "WAITLDS 0", "buffer_store_dwordx4 %s, v3, %s, s%d offen %s" % (v(t + 12, 4), out, 65 + 2 * mb, fl)]
            return L, L2

        e0, e0b = epi(0, AC, RD)
        fillers = {0: post(0, 1, acc1[0]) + post(1, 1, acc1[1]), 7: post(2, 1, acc1[2]), 11: post(3, 1, acc1[3]), 36: e0, 46: e0b}
        self.lds_reset()
        rest = self.run_mfmas(mfl, frags, pool, fillers, maxread=1)
        assert not rest
        e1, e1b = epi(1, AC2, RD + 16)
        for x in e1 + e1b:
            self.emit_filler(x)
        self.end()

    def role_b(self):
        a = self.a
        a.label("ROLE_B")
        a.unpk = bool(self.opt.get("unpk", 2) & 1)
        self.role = "B"
        ws = s(self.rWS, 4)
        XW, SW, XW3 = 0, 3, 1
        if self.opt.get("walk", 0) & 2:
            a("s_mov_b64 exec, 0")
            for w in range(1, 7):
                a("s_cmp_eq_u32 s3, %d\ns_cbranch_scc1 WKB%d" % (w, w - 1))
            a("s_cmp_eq_u32 s3, 7\ns_cbranch_scc1 WKC0")
            a.label("WRET_C")
            a("s_cmp_lt_u32 s5, 24\ns_cbranch_scc1 WRET_A" if self.opt.get("walk", 0) & 1 else "s_nop 0")
            a.label("WRET_B")
            a("s_mov_b64 exec, -1\ns_waitcnt lgkmcnt(0)\ns_nop 15")
        a(self.KARG)
        a("s_waitcnt lgkmcnt(0)")
        a("s_load_dwordx2 s[8:9], s[32:33], %d" % WS_EP)
        self.srd(self.rWS, self.pWS, WS_SIZE)
        a("""v_lshrrev_b32 v4, 5, v1
        v_and_b32 v5, 31, v1
        v_lshlrev_b32 v6, 4, v5
        v_lshl_add_u32 v3, s3, 3, v4
        v_xor_b32 v3, s60, v3
        v_lshl_add_u32 v3, v3, 9, v6
        v_lshl_add_u32 v11, v4, 3, s3
        v_xor_b32 v8, s60, v11
        v_lshl_add_u32 v11, v11, 15, v6
        v_lshl_add_u32 v11, v8, 9, v11
        s_lshl_b32 s66, s60, 15
        s_add_u32 s66, s66, 0x%x
        s_mov_b32 s13, 0x%x
        v_mov_b32 v14, 0xfffefffe""" % (WS_X1, WS_X1))
        a("""s_lshl_b32 s67, s4, 10
        s_add_u32 s67, s67, 0x%x
        v_and_b32 v12, 15, v1
        v_lshrrev_b32 v13, 4, v1
        s_xor_b32 s71, s61, 7
        s_xor_b32 s62, s3, %d
        s_or_b32 s71, s71, s62""" % (WS_X2S, SW))
        a("""s_bitcmp1_b32 s61, 0
        s_cselect_b64 s[48:49], s[26:27], s[24:25]
        s_cselect_b64 s[52:53], s[24:25], s[26:27]
        s_cselect_b32 s34, 0x8000, 0
        s_mov_b32 s50, 0x%x
        s_mov_b32 s51, 0x20000
        s_mov_b32 s54, 0x%x
        s_mov_b32 s55, 0x20000
        s_add_u32 s34, s34, s70
        s_add_u32 s34, s34, %d
        s_xor_b32 s35, s34, 0x8000""" % (2048 * 514, 2048 * 514, WB))
        self.srd(self.rOUT, self.pOUT, 2048 * 2048)

        CS, TW0, TWX, F16 = 16, 40, 48, 56
        RA = 64
        T = 144
        a("""v_cvt_f32_u32 v16, v5
        s_bfe_u32 s62, s3, 0x10001
        s_and_b32 s63, s3, 1
        s_lshl2_add_u32 s62, s62, s63
        s_lshl_b32 s62, s62, 7
        s_add_u32 s62, s62, s60
        v_lshl_add_u32 v17, v4, 8, s62
        v_cvt_f32_u32 v17, v17
        v_mul_f32 v17, v17, v16
        s_lshr_b32 s62, s3, 2
        v_xor_b32 v18, s62, v1
        v_lshlrev_b32 v18, 31, v18
        v_or_b32 v18, %s, v18
        v_fmamk_f32 v17, v17, %s, v18
        v_fmamk_f32 v18, v16, %s, v17
        s_lshl_b32 s62, s62, 31
        v_cos_f32 v20, v17
        v_sin_f32 v21, v17
        v_cos_f32 v22, v18
        v_sin_f32 v23, v18
        s_lshr_b32 s64, s3, 1
        s_lshl_b32 s64, s64, 10
        s_lshl3_add_u32 s64, s63, s64
        s_add_u32 s64, s64, %d
        v_add_u32 v15, s64, v2""" % (fhex(0.125), fhex(1 / 2048), fhex(1 / 32), RAB))
        a("""v_cvt_pk_bf16_f32 v24, v20, v21
        v_cvt_pk_bf16_f32 v25, v22, v23
        v_cvt_pk_bf16_f32 v26, -v21, v20
        v_cvt_pk_bf16_f32 v27, -v23, v22
        v_xor_b32 v24, s62, v24
        v_xor_b32 v25, s62, v25
        v_xor_b32 v26, s62, v26
        v_xor_b32 v27, s62, v27
        ds_write_b64 v15, v[24:25]
        ds_write_b64 v15, v[26:27] offset:4096""")
        self.ra_inv(0, 136)
        a("s_lshl_b32 s14, s60, 9\ns_add_u32 s14, s14, 0x%x\ns_and_b32 s63, s3, 1" % (WS_X1 + 64 * 32768))
        FA = 128
        a("""v_bfe_u32 v16, v1, 3, 2
        s_lshl_b32 s62, s4, 2
        v_add_u32 v17, s62, v16
        v_lshl_add_u32 v17, v4, 5, v17
        v_mul_u32_u24 v17, 514, v17
        v_and_b32 v17, -16, v17
        v_sub_u32 v16, v1, v16
        v_and_b32 v18, 7, v16
        v_xor_b32 v19, 4, v18
        v_cmp_gt_u32 s[68:69], 5, v18
        v_cmp_gt_u32 s[58:59], 5, v19
        v_lshl_add_u32 v128, v18, 4, v17
        v_lshl_add_u32 v129, v19, 4, v17""")
        a("""v_lshl_add_u32 v7, v1, 3, s70
        s_lshr_b32 s62, s3, 1
        s_lshl_b32 s62, s62, 13
        s_lshl3_add_u32 s62, s63, s62
        s_add_u32 s62, s62, %d
        v_lshlrev_b32 v8, 11, v13
        v_lshl_add_u32 v8, v12, 4, v8
        v_add_u32 v8, s62, v8
        v_lshl_add_u32 v10, s3, 5, v5
        v_lshlrev_b32 v130, 13, v4
        v_add_u32 v130, %d, v130
        v_lshl_add_u32 v9, v10, 4, v130
        v_sub_u32 v10, 0, v10
        v_and_b32 v10, 0x1ff, v10
        v_lshl_add_u32 v10, v10, 4, v130
        v_add_u32 v131, %d, v2
        s_mul_i32 s62, s3, %d
        s_lshl_b32 s63, s61, 6
        s_add_u32 s62, s62, s63
        s_add_u32 s63, s62, %d
        s_add_u32 s64, s62, %d
        s_add_u32 s65, s62, %d
        s_waitcnt lgkmcnt(0)""" % (ZB, ZB, TB, 8 * 32 * 514, 64 * 514 - 1024, 128 * 514 - 2048, 192 * 514 - 3072))
        self.tags()

        def tab(reg, q, n):
            for i in range(n):
                a("ds_read_b128 %s, v131 offset:%d" % (v(reg + 4 * i, 4), (q + i) * 1024))

        fdp = [int(x) for x in str(self.opt.get("fdp", "2402"))[-4:].rjust(4, "0")]
        fdn = [0]

        def fnext(n=1):
            for _ in range(n):
                fdma(fdn[0] >> 2, fdn[0] & 3)
                fdn[0] += 1

        def fdma(second, q):
            a("s_mov_b64 exec, %s\ns_mov_b32 m0, s%d\nbuffer_load_dwordx4 v%d, %s, s%d offen offset:%d NT lds\ns_mov_b64 exec, -1".replace("NT", "nt" if self.opt.get("ntf", 3) >> second & 1 else "") % (
                "s[58:59]" if q >> 1 else "s[68:69]", 35 if second else 34, FA + (q >> 1), s(52 if second else 48, 4), 62 + q, q * 1024),
              at=60 + self.opt.get("fgap", 170) * (fdn[0] - fdp[0]))

        ls = self.opt.get("ls", 0)
        msc = self.opt.get("msc", 10) / 10.0
        a("s_waitcnt vmcnt(%d)\ns_barrier" % 4)
        XF, T1, U = T, T + 16, T + 48
        early = self.opt.get("cearly", 6)
        tab(CS, TQ_CS, early)
        nb = 0
        fnext(fdp[0])
        a("s_waitcnt vmcnt(%d)" % (fdp[0] + nb))
        self.stamp()
        a.label("WB_0")
        pre = ["ds_read_b128 %s, v131" % v(CS + 4 * i, 4) for i in range(early)]
        a.capture(ls & 1)
        for q in range(4):
            a("ds_read_b64_tr_b16 %s, v7 offset:%d" % (v(XF + 4 * q, 2), q * 1024))
            a("ds_read_b64_tr_b16 %s, v7 offset:%d" % (v(XF + 4 * q + 2, 2), q * 1024 + 512))
        tab(CS + 4 * early, TQ_CS + early, 12 - early)
        a("s_mov_b32 s22, 0x80000\ns_mov_b32 s23, 0x20000\ns_lshl3_add_u32 s15, s60, s3\ns_lshl_b32 s15, s15, 10\nbuffer_load_dwordx4 v[116:119], v2, s[20:23], s15 offen" if self.opt.get("wopf", 1) else "s_nop 0", at=56)
        sp1 = [(fdp[1] + 3 - i) // 4 for i in range(4)]
        fnext(sp1[0])

        def stage_cs(re, im, out, conj):
            S, N = (CS + 16, CS + 8) if conj else (CS + 8, CS + 16)
            for tau in range(2):
                a("%s %s, %s, %s, 0" % (M16, v(out + 4 * tau, 4), v(re, 4), v(CS + 4 * tau, 4)))
                a("%s %s, %s, %s, 0" % (M16, v(out + 8 + 4 * tau, 4), v(im, 4), v(CS + 4 * tau, 4)))
                a("%s %s, %s, %s, %s" % (M16, v(out + 4 * tau, 4), v(im, 4), v(S + 4 * tau, 4), v(out + 4 * tau, 4)))
                a("%s %s, %s, %s, %s" % (M16, v(out + 8 + 4 * tau, 4), v(re, 4), v(N + 4 * tau, 4), v(out + 8 + 4 * tau, 4)))

        def twiddle(t, tws, tmp, conj):
            for tau in range(2):
                for j in (0, 2):
                    re, im = t + 4 * tau + j, t + 8 + 4 * tau + j
                    sn_ = tws[tau] + 4 + j
                    k = tmp + 8 * tau + 2 * j
                    a("v_pk_mul_f32 %s, %s, %s" % (v(k, 2), v(im, 2), v(sn_, 2)))
                    a("v_pk_mul_f32 %s, %s, %s" % (v(k + 2, 2), v(re, 2), v(sn_, 2)))
            ng = " neg_lo:[0,0,1] neg_hi:[0,0,1]"
            for tau in range(2):
                for j in (0, 2):
                    re, im = t + 4 * tau + j, t + 8 + 4 * tau + j
                    c = tws[tau] + j
                    k = tmp + 8 * tau + 2 * j
                    a("v_pk_fma_f32 %s, %s, %s, %s%s" % (v(re, 2), v(re, 2), v(c, 2), v(k, 2), ng if conj else ""))
                    a("v_pk_fma_f32 %s, %s, %s, %s%s" % (v(im, 2), v(im, 2), v(c, 2), v(k + 2, 2), "" if conj else ng))

        a("s_waitcnt lgkmcnt(%d)" % (16 - early))
        stage_cs(XF, XF + 4, T1, False)
        a("s_waitcnt lgkmcnt(%d)" % (12 - early))
        stage_cs(XF + 8, XF + 12, T1 + 16, False)
        fnext(sp1[1])
        a("s_waitcnt lgkmcnt(0)")
        tab(RA, 24, 8)
        for m in range(2):
            t = T1 + 16 * m
            twiddle(t, [TW0, TWX], T + 64 + 16 * m, False)
            for tau in range(2):
                u = U + 8 * m + 4 * tau
                self.cvt(u, v(t + 4 * tau), v(t + 4 * tau + 1))
                self.cvt(u + 1, v(t + 4 * tau + 2), v(t + 4 * tau + 3))
                self.cvt(u + 2, v(t + 8 + 4 * tau), v(t + 8 + 4 * tau + 1))
                self.cvt(u + 3, v(t + 8 + 4 * tau + 2), v(t + 8 + 4 * tau + 3))
            for tau in range(2):
                u = U + 8 * m + 4 * tau
                a("%s %s, %s, %s, 0" % (M16, v(t + 4 * tau, 4), v(F16, 4), v(u, 4)))
                a("%s %s, %s, %s, 0" % (M16, v(t + 8 + 4 * tau, 4), v(F16 + 4, 4), v(u, 4)))
            fnext(sp1[2 + m])
        fd = 2 if fdp[3] == 0 else 1
        ZW = T + 96
        for i in range(8):
            self.cvt(ZW + 2 * i, v(T1 + i), v(T1 + 8 + i))
        for i in range(8):
            self.cvt(ZW + 2 * i + 1, v(T1 + 16 + i), v(T1 + 24 + i))
            a("ds_write_b64 v8, %s offset:%d" % (v(ZW + 2 * i, 2), (i >> 2) * 256 + (i & 3) * 512))
        print("B1", a.flush(pre, mf_scale=msc))
        a("s_waitcnt lgkmcnt(0)\ns_barrier")
        self.stamp()
        for f in range(4):
            a("ds_read_b128 %s, v%d offset:%d" % (v(XF + 4 * f, 4), 9 + (f >> 1), (f & 1) * 16384))
        fnext(fdp[2])
        PC = T + 48

        def pieces(src, j, dst, mark=True):
            for h in range(2):
                self.cvt(dst + h, v(src + 4 * j + 2 * h), v(src + 4 * j + 2 * h + 1))
                self.cvt(dst + 2 + h, v(src + 16 + 4 * j + 2 * h), v(src + 16 + 4 * j + 2 * h + 1))
            if mark:
                for x in self.mark(dst, 14):
                    a(x)

        for f in range(4):
            a("s_waitcnt lgkmcnt(%d)" % (3 - f))
            for ri in range(2):
                d = v(T1 + 16 * ri, 16)
                a("%s %s, %s, %s, %s" % (M32, d, v(RA + 16 * ri + 4 * f, 4), v(XF + 4 * f, 4), d if f else "0"))
        XE, TE = T + 64, T + 80
        a("ds_write_b64 v142, v[140:141]")
        a("ds_read_b128 %s, v130 offset:4096\nds_read_b128 %s, v130 offset:%d" % (v(XE, 4), v(XE + 4, 4), 4096 + 16384))
        a("v_lshlrev_b32 v16, 1, v6\nv_lshl_add_u32 v16, v4, 4, v16")
        if fd == 2:
            a("s_waitcnt vmcnt(0)")
        for j in range(4):
            pieces(T1, j, PC + 4 * j)
            a("buffer_store_dwordx4 %s, v11, %s, s13 offen sc1" % (v(PC + 4 * j, 4), ws))
            if j < 3:
                a("v_xor_b32 v11, 0x%x, v11" % ((j ^ (j + 1)) * 0x82000))
        a("s_waitcnt lgkmcnt(0)")
        lab = a.newlabel("NOX")
        a("s_cmp_lg_u32 s3, %d\ns_cbranch_scc1 %s" % (XW, lab))
        for f in range(4):
            for ri in range(2):
                d = v(TE + 16 * ri, 16)
                a("%s %s, %s, %s, %s" % (M32, d, v(RA + 16 * ri + 4 * f, 4), v(XE + 4 * (f & 1), 4), d if f else "0"))
        for j in range(4):
            a("s_mov_b32 exec_lo, %d\ns_mov_b32 exec_hi, %d" % (1 << j, 1 << j))
            pieces(TE, j, XE + 8, False)
        a("s_mov_b32 exec_lo, 15\ns_mov_b32 exec_hi, 15")
        for x in self.mark(XE + 8, 14):
            a(x)
        a("buffer_store_dwordx4 %s, v16, %s, s14 offen sc1" % (v(XE + 8, 4), ws))
        a("s_mov_b64 exec, -1")
        a.label(lab)
        self.stamp()
        fnext(fdp[3])
        assert fdn[0] == 8

        F32 = 16
        FL = 48
        LD, LD2 = 96, 112
        FL2 = T + 64
        DAT, FR, TM = T, T + 32, T + 48
        tab(F32, TQ_F32, 4)
        tab(FR, TQ_OM, 4)
        a("""v_lshrrev_b32 v11, 2, v1
        v_xor_b32 v11, v11, v4
        v_lshlrev_b32 v129, 9, v11
        v_and_b32 v11, 3, v1
        v_lshl_add_u32 v129, v11, 4, v129
        s_lshl_b32 s62, s4, 4
        v_xor_b32 v129, s62, v129
        v_bfe_u32 v6, v1, 2, 3
        v_lshlrev_b32 v6, 12, v6
        v_lshl_add_u32 v6, v11, 4, v6
        s_and_b32 s62, s3, 1
        v_xor_b32 v11, s62, v4
        v_lshl_add_u32 v6, v11, 6, v6
        s_lshl_b32 s62, s3, 9
        s_add_u32 s62, s62, %d
        v_add_u32 v6, s62, v6
        v_xor_b32 v11, 0x400, v3
        v_xor_b32 v134, 0x800, v3
        v_xor_b32 v135, 0xc00, v3
        s_add_u32 s70, s70, %d
        v_and_b32 v132, 1, v13
        v_lshl_add_u32 v132, v13, 3, v132
        v_bfe_u32 v133, v1, 3, 1
        v_lshl_add_u32 v132, v133, 1, v132
        v_lshlrev_b32 v132, 6, v132
        v_and_b32 v133, 3, v1
        v_lshl_add_u32 v132, v133, 4, v132
        v_bfe_u32 v133, v1, 2, 1
        v_lshl_add_u32 v132, v133, 3, v132
        v_add_u32 v132, s70, v132
        v_xor_b32 v133, 64, v132""" % (ZB, ZB))
        MB = [3, 11, 134, 135]

        def faddr(dst, kk, t1, t2):
            a("""v_and_b32 v{t2}, 3, v12
            s_lshl_b32 s15, s4, 2
            v_add_u32 v{t1}, s15, v{t2}
            v_and_b32 v{t1}, 7, v{t1}
            v_add_lshl_u32 v{t1}, v{t1}, v{kk}, 1
            v_lshl_add_u32 v{t1}, v{t2}, 4, v{t1}
            v_lshl_add_u32 v{t1}, v13, 6, v{t1}
            v_and_b32 v{t1}, 0x7f, v{t1}
            v_lshl_add_u32 v{t1}, v{t2}, 7, v{t1}
            v_lshl_add_u32 v{t1}, v13, 11, v{t1}
            v_add_u32 v{dst}, {wb}, v{t1}""".format(dst=dst, kk=kk, t1=t1, t2=t2, wb=WB))

        a("v_lshrrev_b32 v%d, 2, v12\nv_lshl_add_u32 v%d, s3, 2, v%d" % (LD, LD, LD))
        faddr(128, LD, LD + 1, LD + 2)
        a("""v_lshl_add_u32 v15, s3, 2, v13
        v_and_b32 v5, 7, v12
        v_xor_b32 v15, v15, v5
        v_lshlrev_b32 v15, 4, v15
        v_lshl_add_u32 v15, v12, 10, v15
        s_and_b32 s63, s3, 1
        s_lshl_b32 s64, s63, 6
        v_xor_b32 v7, s64, v2
        s_lshl_b32 s64, s3, 12
        v_add_u32 v7, s64, v7
        v_xor_b32 v136, 16, v7
        v_xor_b32 v137, 32, v7
        v_xor_b32 v138, 48, v7
        s_mov_b32 s64, 0x80008000
        s_waitcnt lgkmcnt(0)""")
        for i in range(16):
            a(("v_xor_b32 v%d, s64, v%d" if i & 1 else "v_mov_b32 v%d, v%d") % (F32 + 16 + i, F32 + i))
        if fd != 2:
            a("s_waitcnt vmcnt(0)")
        a("s_barrier")
        self.stamp()

        def fread(addr):
            for arr in range(2):
                for pm in range(2):
                    for t in range(8):
                        a("ds_read_u16_d16_hi v%d, v%d offset:%d" % (DAT + 16 * arr + 8 * pm + t, addr, arr * 32768 + pm * 16384 + (t >> 2) * 8192 + (t & 3) * 512))

        def filt(dst, raw, both=True):
            for j in range(0, 8, 2):
                a("v_pk_add_f32 %s, %s, %s" % (v(dst + j, 2), v(raw + j, 2), v(raw + 8 + j, 2)))
                a("v_pk_add_f32 %s, %s, %s" % (v(dst + 8 + j, 2), v(raw + 16 + j, 2), v(raw + 24 + j, 2)))
                a("v_pk_add_f32 %s, %s, %s neg_lo:[0,1] neg_hi:[0,1]" % (v(raw + j, 2), v(raw + j, 2), v(raw + 8 + j, 2)))
                a("v_pk_add_f32 %s, %s, %s neg_lo:[0,1] neg_hi:[0,1]" % (v(raw + 16 + j, 2), v(raw + 16 + j, 2), v(raw + 24 + j, 2)))
            ng = " neg_lo:[0,0,1] neg_hi:[0,0,1]"
            for j in range(0, 8, 2):
                dr, di, c, sn_ = v(raw + j, 2), v(raw + 16 + j, 2), v(FR + j, 2), v(FR + 8 + j, 2)
                t1, t2 = v(raw + 8 + j, 2), v(raw + 24 + j, 2)
                a("v_pk_mul_f32 %s, %s, %s" % (t1, di, sn_))
                a("v_pk_mul_f32 %s, %s, %s" % (t2, dr, sn_))
                a("v_pk_fma_f32 %s, %s, %s, %s" % (v(dst + 16 + j, 2), dr, c, t1))
                a("v_pk_fma_f32 %s, %s, %s, %s%s" % (v(dst + 24 + j, 2), di, c, t2, ng))
                if both:
                    a("v_pk_fma_f32 %s, %s, %s, %s%s" % (v(dst + 32 + j, 2), dr, c, t1, ng))
                    a("v_pk_fma_f32 %s, %s, %s, %s" % (v(dst + 40 + j, 2), di, c, t2))

        VS = 139

        sentinel = lambda base: self.markcheck(base, 16, VS)

        def x1load(special):
            for i in range(4):
                a("buffer_load_dwordx4 %s, v%d, %s, s%d offen sc1" % (v((LD2 if special else LD) + 4 * i, 4), 129 if special else MB[i], ws, 56 + i if special else 66))

        def x1first():
            lab = a.newlabel("NOSP")
            a("s_cmp_lg_u32 s71, 0\ns_cbranch_scc1 " + lab)
            for i in range(4):
                a("s_mov_b32 s%d, 0x%x" % (56 + i, WS_X1 + 64 * 32768 + 0x2000 * i))
            x1load(True)
            a.label(lab)
            x1load(False)

        x1l = self.opt.get("x1late", 0)
        if fd != 2 and x1l == 0:
            x1first()
        fread(128)
        a("s_waitcnt lgkmcnt(0)")
        if fd != 2 and x1l == 1:
            x1first()
        filt(FL, DAT)
        if fd != 2 and x1l == 2:
            x1first()
        if fd == 2:
            a("s_waitcnt vmcnt(0)")
            self.diag_delay("d_x1")
            x1first()
        self.stamp()

        def hintx(pos):
            if self.opt.get("go", 4) == pos:
                lab = a.newlabel("NOH")
                a("s_cmp_lg_u32 s3, 7\ns_cbranch_scc1 " + lab)
                a("""s_lshl_b32 s14, s60, 7
                s_add_u32 s14, s14, 0x%x
                v_mov_b32 v140, s6
                v_mov_b32 v141, s7
                v_lshlrev_b32 v142, 3, v12
                buffer_store_dwordx2 v[140:141], v142, %s, s14 offen sc1""" % (WS_GO, ws))
                a.label(lab)

        def b2(fl, special):
            FR2, OUT, PO = T + 64, LD, T + 96
            a.capture(ls & 2)
            for p in range(2):
                for f in range(2):
                    for h in range(2):
                        a("ds_read_b64_tr_b16 %s, v%d offset:%d" % (v(FR + 8 * p + 4 * f + 2 * h, 2), 132 + p, f * 2048 + h * 256))
            for tau in range(2):
                for p in range(2):
                    for f in range(2):
                        if tau == 0:
                            a("s_waitcnt lgkmcnt(%d)" % (6 - 4 * p - 2 * f))
                        for ri in range(2):
                            d = v(DAT + 16 * p + 8 * ri + 4 * tau, 4)
                            a("%s %s, %s, %s, %s" % (M16, d, v(F32 + ((tau * 2 + ri) * 2 + f) * 4, 4), v(FR + 8 * p + 4 * f, 4), d if f else "0"))
            n1_ = " neg_lo:[1,0,0] neg_hi:[1,0,0]"

            for j in range(0, 8, 2):
                Er, Ei, Or, Oi = [v(DAT + 8 * k + j, 2) for k in range(4)]
                Ar, Ai, B1r, B1i, B2r, B2i = [v(fl + 8 * k + j, 2) for k in range(6)]
                k = (TM, TM + 8, T + 80, T + 88)[j >> 1]
                Pr, Pi, Qr, Qi = [v(k + 2 * i, 2) for i in range(4)]
                a("v_pk_mul_f32 %s, %s, %s" % (Pr, Ar, Er))
                a("v_pk_mul_f32 %s, %s, %s" % (Pi, Ar, Ei))
                a("v_pk_mul_f32 %s, %s, %s" % (Qr, B2r, Er))
                a("v_pk_mul_f32 %s, %s, %s" % (Qi, B2r, Ei))
                a("v_pk_fma_f32 %s, %s, %s, %s%s" % (Pr, Ai, Ei, Pr, n1_))
                a("v_pk_fma_f32 %s, %s, %s, %s" % (Pi, Ai, Er, Pi))
                a("v_pk_fma_f32 %s, %s, %s, %s%s" % (Qr, B2i, Ei, Qr, n1_))
                a("v_pk_fma_f32 %s, %s, %s, %s" % (Qi, B2i, Er, Qi))
                a("v_pk_fma_f32 %s, %s, %s, %s" % (Pr, B1r, Or, Pr))
                a("v_pk_fma_f32 %s, %s, %s, %s" % (Pi, B1r, Oi, Pi))
                a("v_pk_fma_f32 %s, %s, %s, %s" % (Qr, Ar, Or, Qr))
                a("v_pk_fma_f32 %s, %s, %s, %s" % (Qi, Ar, Oi, Qi))
                a("v_pk_fma_f32 %s, %s, %s, %s%s" % (Pr, B1i, Oi, Pr, n1_))
                a("v_pk_fma_f32 %s, %s, %s, %s" % (Pi, B1i, Or, Pi))
                a("v_pk_fma_f32 %s, %s, %s, %s%s" % (Qr, Ai, Oi, Qr, n1_))
                a("v_pk_fma_f32 %s, %s, %s, %s" % (Qi, Ai, Or, Qi))
                for e in range(2):
                    self.cvt(FR2 + j + e, v(k + e), "-" + v(k + 2 + e))
                    self.cvt(FR2 + 8 + j + e, v(k + 4 + e), "-" + v(k + 6 + e))
            for f in range(2):
                for p in range(2):
                    for tau in range(2):
                        for ri in range(2):
                            d = v(OUT + 16 * p + 8 * ri + 4 * tau, 4)
                            a("%s %s, %s, %s, %s" % (M16, d, v(FR2 + 8 * p + 4 * f, 4), v(F32 + ((tau * 2 + ri) * 2 + f) * 4, 4), d if f else "0"))
            for p in range(2):
                for tau in range(2):
                    o = PO + 8 * p + 4 * tau
                    for r in range(4):
                        self.cvt(o + r, v(OUT + 16 * p + 4 * tau + r), "-" + v(OUT + 16 * p + 8 + 4 * tau + r))
                    for x in self.mark(o, 14):
                        a(x)
                    a("ds_write_b128 v15, %s offset:%d" % (v(o, 4), tau * 16384 + p * 512))
            print("B2", a.flush(mf_scale=msc))

        lab = a.newlabel("NOSP")
        a("s_cmp_lg_u32 s71, 0\ns_cbranch_scc1 " + lab)
        a("v_mov_b32 v%d, 32" % TM)
        faddr(128, TM, TM + 1, TM + 2)
        fread(128)
        a("""v_lshlrev_b32 v{t}, 29, v1
        v_and_b32 v{t}, 0x80000000, v{t}
        v_and_b32 v{u}, 3, v1
        v_lshlrev_b32 v{u}, 4, v{u}
        v_xor_b32 v128, v132, v{u}
        v_and_b32 v{u}, 1, v1
        v_lshlrev_b32 v{u}, 6, v{u}
        v_xor_b32 v128, v128, v{u}
        v_subrev_u32 v128, s70, v128
        v_add_u32 v128, {sp}, v128
        v_add_u32 v5, {sp}, v2""".format(t=TM, u=TM + 1, sp=RAB + 4096))
        for j in range(8):
            a("v_xor_b32 v%d, v%d, v%d" % (FR + 8 + j, TM, FR + 8 + j))
        a("s_waitcnt lgkmcnt(0)")
        filt(FL2, DAT, False)
        a.label(lab)
        self.poll(lambda: x1load(False), lambda: sentinel(LD), VS, first_issued=True)
        if not self.opt.get("st4"):
            self.stamp()
        for i in range(4):
            a("ds_write_b128 v6, %s offset:%d" % (v(LD + 4 * i, 4), i * 128))
        a("s_waitcnt lgkmcnt(0)\ns_barrier")
        if self.opt.get("st4"):
            self.stamp()
        lab = a.newlabel("NOSP")
        a("s_cmp_lg_u32 s71, 0\ns_cbranch_scc1 " + lab)
        self.poll(lambda: x1load(True), lambda: sentinel(LD2), VS, first_issued=True)
        self.flip_marks()
        for i in range(4):
            a("ds_write_b128 v5, %s offset:%d" % (v(LD2 + 4 * i, 4), i * 1024))
        for f in range(2):
            for h in range(2):
                a("ds_read_b64_tr_b16 %s, v128 offset:%d" % (v(FR + 4 * f + 2 * h, 2), f * 2048 + h * 256))
        for f in range(2):
            a("s_waitcnt lgkmcnt(%d)" % (2 - 2 * f))
            for tau in range(2):
                for ri in range(2):
                    d = v(DAT + 8 * ri + 4 * tau, 4)
                    a("%s %s, %s, %s, %s" % (M16, d, v(F32 + ((tau * 2 + ri) * 2 + f) * 4, 4), v(FR + 4 * f, 4), d if f else "0"))
        for j in range(0, 8, 2):
            Xr, Xi, Ar, Ai = v(DAT + j, 2), v(DAT + 8 + j, 2), v(FL2 + j, 2), v(FL2 + 8 + j, 2)
            a("v_pk_mul_f32 %s, %s, %s" % (v(TM + j, 2), Ar, Xr))
            a("v_pk_mul_f32 %s, %s, %s" % (v(TM + 8 + j, 2), Ar, Xi))
            a("v_pk_fma_f32 %s, %s, %s, %s neg_lo:[1,0,0] neg_hi:[1,0,0]" % (v(TM + j, 2), Ai, Xi, v(TM + j, 2)))
            a("v_pk_fma_f32 %s, %s, %s, %s" % (v(TM + 8 + j, 2), Ai, Xr, v(TM + 8 + j, 2)))
        dpp = " row_ror:4 row_mask:0xf bank_mask:0xf"
        for k in range(2):
            for j in range(8):
                a("v_fmac_f32_dpp v%d, %sv%d, v%d%s" % (TM + j, "-" if k else "", DAT + 8 * k + j, FL2 + 16 + 8 * k + j, dpp))
                a("v_fmac_f32_dpp v%d, v%d, v%d%s" % (TM + 8 + j, DAT + 8 * (1 - k) + j, FL2 + 16 + 8 * k + j, dpp))
        for j in range(8):
            self.cvt(FR + j, v(TM + j), "-" + v(TM + 8 + j))
        for f in range(2):
            for tau in range(2):
                for ri in range(2):
                    d = v(DAT + 8 * ri + 4 * tau, 4)
                    a("%s %s, %s, %s, %s" % (M16, d, v(FR + 4 * f, 4), v(F32 + ((tau * 2 + ri) * 2 + f) * 4, 4), d if f else "0"))
        a("s_mov_b32 exec_hi, 0")
        for tau in range(2):
            o = FL2 + 4 * tau
            for r in range(4):
                self.cvt(o + r, v(DAT + 4 * tau + r), "-" + v(DAT + 8 + 4 * tau + r))
            for x in self.mark(o, 14):
                a(x)
            a("buffer_store_dwordx4 %s, v2, %s, s67 offen offset:%d sc1" % (v(o, 4), ws, tau * 512))
        a("s_mov_b32 exec_hi, -1")
        skip = a.newlabel("B2GO")
        a("s_branch " + skip)
        a.label(lab)
        self.flip_marks()
        a.label(skip)
        b2(FL, False)
        a("s_waitcnt lgkmcnt(0)")
        if self.opt.get("st4"):
            self.stamp()
        a("s_barrier")
        if not self.opt.get("st4"):
            self.stamp()
        hintx(4)
        ST = LD
        for i in range(4):
            a("ds_read_b128 %s, v%d offset:%d" % (v(ST + 4 * i, 4), 135 + i if i else 7, i * 1024))
        for i in range(4):
            a("s_waitcnt lgkmcnt(%d)" % (3 - i))
            a("buffer_store_dwordx4 %s, v%d, %s, s66 offen sc1" % (v(ST + 4 * i, 4), MB[i], ws))
        self.stamp()
        lab = a.newlabel("NONOTE")
        a("s_or_b32 s56, s60, s3\ns_cbranch_scc1 " + lab)
        a("v_mov_b32 v140, s6\nv_mov_b32 v141, s7\nv_lshlrev_b32 v142, 3, v12")
        a("buffer_store_dwordx2 v[140:141], v142, %s, 0 offen offset:%d sc1" % (ws, WS_NOTE))
        a.label(lab)
        a.label("WB_1")
        a("s_mov_b32 s34, 0")
        self.pad_stamps(9)

        a.label("B3_ENTRY")
        G16 = F16
        a("v_lshlrev_b32 v2, 4, v1\nv_add_u32 v131, %d, v2" % TB)
        tab(RA, 24, 4)
        tab(CS, TQ_CS, 8)
        tab(TWX, TQ_TW3, 4)
        a("""v_lshrrev_b32 v4, 5, v1
        v_and_b32 v5, 31, v1
        v_and_b32 v12, 15, v1
        v_lshrrev_b32 v13, 4, v1
        v_lshl_add_u32 v132, v4, 3, s3
        v_xor_b32 v8, s60, v132
        v_lshlrev_b32 v132, 15, v132
        v_lshl_add_u32 v132, v5, 4, v132
        v_lshl_add_u32 v132, v8, 9, v132
        v_xor_b32 v133, 0x82000, v132
        v_xor_b32 v134, 0x104000, v132
        v_xor_b32 v135, 0x186000, v132
        v_lshl_add_u32 v10, s3, 5, v5
        v_lshlrev_b32 v130, 13, v4
        v_add_u32 v130, %d, v130
        v_lshl_add_u32 v9, v10, 4, v130
        v_sub_u32 v10, 0, v10
        v_and_b32 v10, 0x1ff, v10
        v_lshl_add_u32 v10, v10, 4, v130
        s_lshr_b32 s63, s3, 2
        s_lshl_b32 s63, s63, 13
        s_and_b32 s64, s3, 3
        s_lshl2_add_u32 s63, s64, s63
        s_add_u32 s63, s63, %d
        v_lshlrev_b32 v8, 11, v13
        v_lshl_add_u32 v8, v12, 4, v8
        v_add_u32 v8, s63, v8
        s_lshl_b32 s63, s3, 11
        s_add_u32 s63, s63, %d
        v_bfe_u32 v5, v1, 2, 1
        v_lshlrev_b32 v5, 1, v5
        v_xor_b32 v5, v5, v13
        v_lshlrev_b32 v5, 3, v5
        v_lshl_add_u32 v5, v12, 5, v5
        v_add_u32 v5, s63, v5
        v_bfe_u32 v6, v1, 3, 1
        v_lshlrev_b32 v6, 4, v6
        v_xor_b32 v6, v6, v2
        v_add_u32 v6, s63, v6
        s_lshl_b32 s64, s3, 6
        s_add_u32 s64, s64, s60
        s_add_u32 s64, s64, s34
        s_lshl_b32 s64, s64, 11
        s_add_u32 s66, s64, 0x200000
        s_mov_b32 s56, 0.5
        s_mov_b32 s57, 0.5
        s_cmp_eq_u32 s3, 0
        s_cselect_b32 s68, -2, -1
        s_mov_b32 s69, s68
        s_lshr_b32 s63, s60, 5
        s_and_b32 s65, s60, 1
        s_lshl1_add_u32 s63, s63, s65
        s_bfe_u32 s65, s60, 0x40001
        s_lshl4_add_u32 s63, s63, s65
        v_and_b32 v11, 7, v1
        v_xor_b32 v11, s63, v11
        v_lshlrev_b32 v11, 4, v11
        v_lshl_add_u32 v11, v4, 10, v11
        s_mov_b32 s63, 0x%x
        s_mov_b32 s65, 0x%x""" % (ZB, ZB, WB, WS_X2S, WS_X2S + 4096))
        lab = a.newlabel("NOGO")
        a("s_cmp_eq_u32 s34, 0\ns_cbranch_scc1 " + lab)
        self.poll(lambda: a("buffer_load_dwordx2 v[140:141], off, %s, s62 sc1" % ws),
                  lambda: a("v_xor_b32 v%d, s6, v140\nv_bitop3_b32 v%d, v%d, v141, s7 bitop3:0xf6" % (VS, VS, VS)), VS)
        a.label(lab)
        a("s_mov_b32 s62, 0x%x" % WS_X1)
        RE, ZP, XS = T + 16, T + 48, LD2

        def radix_inv(x):
            for f in range(4):
                d = v(RE, 16)
                a("%s %s, %s, %s, %s" % (M32, d, v(RA + 4 * f, 4), v(x + 4 * f, 4), d if f else "0"))

        def average():
            a("s_mov_b32 exec_lo, 1\ns_mov_b32 exec_hi, 1")
            for j in (0, 2):
                a("v_pk_add_f32 %s, %s, %s" % (v(RE + j, 2), v(RE + j, 2), v(RE + 8 + j, 2)))
                a("v_pk_add_f32 %s, %s, %s neg_lo:[0,1] neg_hi:[0,1]" % (v(RE + 4 + j, 2), v(RE + 4 + j, 2), v(RE + 12 + j, 2)))
            for j in range(0, 8, 2):
                a("v_pk_mul_f32 %s, %s, s[56:57]" % (v(RE + j, 2), v(RE + j, 2)))

        def extra_tile():
            radix_inv(XS)
            average()
            for r in range(4):
                self.cvt(ZP + 8 + r, v(RE + r), v(RE + 4 + r))
            a("ds_write_b128 v130, %s offset:4096" % v(ZP + 8, 4))
            a("s_mov_b64 exec, -1")

        xsload = lambda: [a("buffer_load_dwordx4 %s, v11, %s, s%d offen offset:%d sc1" % (v(XS + 4 * f, 4), ws, 65 if f >> 1 else 63, (f & 1) * 2048)) for f in range(4)]
        x2load = lambda: [a("buffer_load_dwordx4 %s, v%d, %s, s62 offen sc1" % (v(XF + 4 * f, 4), 132 + f, ws)) for f in range(4)]
        lab = a.newlabel("NODR")
        a("s_and_b32 s15, s60, 7\ns_cmp_eq_u32 s15, 7\ns_cbranch_scc1 " + lab)
        a("s_waitcnt vmcnt(%d)" % self.opt.get("xdr", 0))
        self.diag_delay("d_x2")
        a.label(lab)
        x2load()
        lab = a.newlabel("NOX")
        a("s_cmp_lg_u32 s3, %d\ns_cbranch_scc1 %s" % (XW3, lab))
        xsload()
        a.label(lab)
        a("s_waitcnt lgkmcnt(0)")
        self.stamp()
        a.label("WC_0")
        self.poll(x2load, lambda: sentinel(XF), VS, first_issued=True)
        self.stamp()
        radix_inv(XF)
        lab = a.newlabel("NOAVG")
        a("s_nop 9")
        a("s_cmp_lg_u32 s3, 0\ns_cbranch_scc1 " + lab)
        average()
        a("s_mov_b64 exec, -1")
        a.label(lab)
        for r in range(4):
            self.cvt(ZP + r, v(RE + r), v(RE + 4 + r))
        a("ds_write_b128 v9, %s" % v(ZP, 4))
        for r in range(4):
            self.cvt(ZP + 4 + r, v(RE + 8 + r), "-" + v(RE + 12 + r))
        a("s_mov_b64 exec, s[68:69]")
        a("ds_write_b128 v10, %s" % v(ZP + 4, 4))
        a("s_mov_b64 exec, -1")
        lab = a.newlabel("NOX")
        a("s_cmp_lg_u32 s3, %d\ns_cbranch_scc1 %s" % (XW3, lab))
        self.poll(xsload, lambda: sentinel(XS), VS, first_issued=True)
        extra_tile()
        a.label(lab)
        a("s_waitcnt lgkmcnt(0)\ns_barrier")
        self.stamp()
        a.capture(ls & 4)
        ZF = T
        for tau in range(2):
            for j in range(2):
                a("ds_read2st64_b32 %s, v8 offset0:%d offset1:%d" % (v(ZF + 4 * tau + 2 * j, 2), tau + 4 * j, tau + 4 * j + 2))
        for tau in range(2):
            a("s_waitcnt lgkmcnt(%d)" % (2 - 2 * tau))
            a("%s %s, %s, %s, 0" % (M16, v(T1 + 4 * tau, 4), v(ZF + 4 * tau, 4), v(G16, 4)))
            a("%s %s, %s, %s, 0" % (M16, v(T1 + 8 + 4 * tau, 4), v(ZF + 4 * tau, 4), v(G16 + 4, 4)))
        O4 = T + 80
        twiddle(T1, [TW0, TWX], T + 64, True)
        for j in range(8):
            self.cvt(U + j, v(T1 + 2 * j), v(T1 + 2 * j + 1))
        stage_cs(U, U + 4, O4, True)
        fl = self.opt.get("outflag", "sc1")
        for ri in range(2):
            for tau in range(2):
                o = O4 + 8 * ri + 4 * tau
                d = T + 8 + 4 * ri + 2 * tau
                self.cvt(d, v(o), v(o + 1))
                self.cvt(d + 1, v(o + 2), v(o + 3))
                a("ds_write_b64 v5, %s offset:%d" % (v(d, 2), ri * 1024 + tau * 512))
            a("ds_read_b128 %s, v6 offset:%d" % (v(T1 + 16 + 4 * ri, 4), ri * 1024))
        for ri in range(2):
            a("s_waitcnt lgkmcnt(%d)" % (3 - 3 * ri))
            a("buffer_store_dwordx4 %s, v2, %s, s%d offen offset:1024 %s" % (v(T1 + 16 + 4 * ri, 4), s(self.rOUT, 4), 64 + 2 * ri, fl))
        print("B3", a.flush(mf_scale=msc))
        self.end()


TQ_CS, TQ_TW0, TQ_TW1, TQ_TW3, TQ_F32, TQ_OM = 0, 6, 8, 12, 16, 20


def make_table():
    import numpy as np
    from emu import bf16_rne
    l = np.arange(64)
    c, g = l & 15, l >> 4
    pk = lambda x, y: (bf16_rne(np.float32(x)) | (bf16_rne(np.float32(y)) << 16)).astype(np.uint32)
    fl = lambda x: np.float32(x).view(np.uint32)
    cs = lambda a_: (np.cos(2 * np.pi * a_), np.sin(2 * np.pi * a_))
    idx2 = [16 * (t >> 2) + 4 * g + (t & 3) for t in range(8)]
    R = []
    C = [[cs((c + 16 * tau) * idx2[t] / 32.0) for t in range(8)] for tau in range(2)]
    for k, sg in ((0, 1), (1, 1), (1, -1)):
        for tau in range(2):
            for j in range(4):
                R.append(pk(sg * C[tau][2 * j][k], sg * C[tau][2 * j + 1][k]))

    def tw(angs):
        for k in range(2):
            for x in angs:
                R.append(fl(cs(x)[k]))
    tw([c * idx2[r] / 512.0 for r in range(4)])
    tw([(c + 16) * idx2[r] / 512.0 for r in range(4)])
    H = [cs(c * idx2[x] / 16.0) for x in range(4)]
    R += [pk(H[0][0], H[1][0]), pk(H[2][0], H[3][0]), pk(H[0][1], H[1][1]), pk(H[2][1], H[3][1])]
    R += [pk(-H[0][1], -H[1][1]), pk(-H[2][1], -H[3][1]), pk(H[0][0], H[1][0]), pk(H[2][0], H[3][0])]
    tw([c * idx2[4 + r] / 512.0 for r in range(4)])
    sc = 2.0 ** -20
    R += [pk(sc * H[x][0], -sc * H[x][1]) for x in range(4)] + [pk(sc * H[x][1], sc * H[x][0]) for x in range(4)]
    R += [pk(C[0][t][0], C[0][t][1]) for t in range(8)] + [pk(-C[0][t][1], C[0][t][0]) for t in range(8)]
    for k in range(2):
        for t in range(8):
            R.append(fl(cs(idx2[t] / 64.0)[k]))
    R = np.array(R, np.uint32)
    assert R.shape == (96, 64)
    return np.ascontiguousarray(R.reshape(24, 4, 64).transpose(0, 2, 1)).reshape(-1)


def _sym_add(line, emuval=0):
    ins = Ins(line.rsplit(",", 1)[0] + ", %d" % emuval)
    ins.line = line
    return ins


NOTES = """;
; One persistent launch, 256 workgroups x 8 waves (one per CU), generated by my own script. Roles by workgroup id:
; Hand-offs: write-through (sc1) stores, sc1 polling loads. Payload validates itself: the two bf16 mantissa LSBs of every
; All polls are bounded. TABLE (after the code) holds the constant DFT / twiddle fragments.
"""


def generate(stamps=False, opt=None):
    g = G(stamps, opt)
    a = g.build()
    nv = a.maxreg("v") + 1
    ns = a.maxreg("s") + 1
    tb = make_table()
    tail = ".p2align 8\n.type TABLE,@object\nTABLE:\n"
    for i in range(0, len(tb), 8):
        tail += ".long " + ",".join("0x%08x" % x for x in tb[i:i + 8]) + "\n"
    tail += ".size TABLE, %d\n" % (4 * len(tb))
    render = lambda: wrap(a.render() + tail, 256, 512, LDS_SIZE, nv, ns, NOTES)
    if g.opt.get("align", 1):
        from align import align
        print("align:", align(a, render, g.opt.get("minrun", 5)))
    return a, render()


if __name__ == "__main__":
    stamps = "--stamps" in sys.argv
    opt = {}
    for x in sys.argv[1:]:
        if x.startswith("--") and "=" in x:
            k, val = x[2:].split("=", 1)
            opt[k] = int(val) if val.lstrip("-").isdigit() else val
    a, txt = generate(stamps, opt)
    out = [x for x in sys.argv[1:] if not x.startswith("--")]
    open(out[0] if out else "k.s", "w").write(txt)
    print("instructions:", sum(1 for k, _ in a.items if k == "i"), "vgpr", a.maxreg("v") + 1, "sgpr", a.maxreg("s") + 1)
```

```python
import sys
from asmlib import *
from common import wrap

WS_EP = 0x0
WS_GO = 0x1000
WS_NOTE = 0x800
WS_RED = 0x10000
RED_STRIDE = 0x4800
WS_X2S = 0x60000
WS_PART = 0x80000
PLINE = 1152
WS_PQ = 0x200000
WS_X1 = 0x400000
WS_STAMP = 0x1000000
WS_SIZE = 0x10000000
LDS_SIZE = 160 * 1024
TAGC_LO, TAGC_HI = 0x1E3779B1, 0x05EBCA6B
POLL_LIMIT = 1 << 18
M16 = "v_mfma_f32_16x16x32_bf16"
M32 = "v_mfma_f32_32x32x16_bf16"
XB, ZB, WB, TB = 0, 32768, 65536, 131072
RAB = TB + 24576


class G:
    def __init__(self, stamps=False, opt=None):
        self.a = Asm()
        self.stamps = stamps
        self.opt = opt or {}
        self.nst = 0
        self.role = ""

    sW = 3
    sTL, sTH = 6, 7
    sCNT = 12
    pXA, pWQ, pWO, pXB, pWR, pWI, pOUT, pDBG, pWS = 16, 18, 20, 22, 24, 26, 28, 30, 32
    rWS, rOUT, rA, rB, rC = 36, 40, 44, 48, 52
    sST = 72
    LT = [16, 17, 0, 1]

    def stamp(self):
        pr = self.opt.get("probe")
        if pr:
            if "%s:%d" % (self.role, self.nst) in pr.split("+"):
                self.a("s_memrealtime s[76:77]\ns_waitcnt lgkmcnt(0)")
            self.nst += 1
            return
        if not self.stamps:
            return
        k = self.nst
        assert k < 15
        self.a("%s %s\ns_waitcnt lgkmcnt(0)" % ("s_memtime" if self.opt.get("cyc") else "s_memrealtime", s(self.sST + 2 * k, 2)))
        self.nst += 1

    def end(self):
        a = self.a
        if self.opt.get("probe"):
            self.stamp()
            lab = a.newlabel("SPIN")
            a("s_waitcnt lgkmcnt(0)\ns_sub_u32 s76, s76, s72\ns_lshl_b32 s76, s76, 2\ns_add_u32 s76, s76, 2000\ns_min_u32 s76, s76, 20000")
            a.label(lab)
            a("s_memrealtime s[74:75]\ns_waitcnt lgkmcnt(0)\ns_sub_u32 s74, s74, s72\ns_cmp_lt_u32 s74, s76\ns_cbranch_scc1 %s" % lab)
        if self.stamps:
            self.stamp()
            a("s_waitcnt vmcnt(0)")
            self.stamp()
            a("s_mov_b64 exec, 1")
            a("s_lshl3_add_u32 s56, s5, s4\ns_lshl_b32 s56, s56, 3\ns_add_u32 s56, s56, s3\ns_lshl_b32 s56, s56, 6\ns_add_u32 s56, s56, 0x%x" % WS_STAMP)
            a("v_mov_b32 v2, 0")
            for k in range(self.nst):
                a("v_mov_b32 v3, s%d\nbuffer_store_dword v3, v2, %s, s56 offen offset:%d" % (self.sST + 2 * k, s(self.rWS, 4), 4 * k))
            a("v_mov_b32 v3, %d\nbuffer_store_dword v3, v2, %s, s56 offen offset:60" % (self.nst, s(self.rWS, 4)))
        a("s_endpgm")

    def pad_stamps(self, n):
        while (self.stamps or self.opt.get("probe")) and self.nst < n:
            if self.stamps:
                self.a("s_mov_b32 s%d, s%d" % (self.sST + 2 * self.nst, self.sST + 2 * self.nst - 2))
            self.nst += 1

    def srd(self, r, p, size):
        self.a("s_mov_b32 s%d, s%d\ns_mov_b32 s%d, s%d\ns_mov_b32 s%d, 0x%x\ns_mov_b32 s%d, 0x20000" % (r, p, r + 1, p + 1, r + 2, size, r + 3))

    def tags(self):
        t = self.LT
        self.a("""s_add_u32 s8, s8, 0x%x
        s_addc_u32 s9, s9, 0x%x
        s_and_b32 s6, s8, 0xbfffbfff
        s_and_b32 s7, s9, 0xbfffbfff
        s_bitcmp1_b32 s8, 0
        s_cselect_b32 s%d, 0x10001, 0
        s_xor_b32 s%d, s%d, 0x10000
        s_xor_b32 s%d, s%d, 0x10001
        s_xor_b32 s%d, s%d, 1""" % (TAGC_LO, TAGC_HI, t[0], t[1], t[0], t[2], t[0], t[3], t[0]))

    def flip_marks(self):
        for r in self.LT:
            self.a("s_xor_b32 s%d, s%d, 1" % (r, r))

    def mark(self, base, vmask):
        return ["v_and_or_b32 v%d, v%d, v%d, s%d" % (base + e, base + e, vmask, self.LT[e]) for e in range(4)]

    def markcheck(self, base, n, vacc):
        a = self.a
        X = [self.LT[0], self.LT[3], self.LT[2], self.LT[1]]
        for i in range(0, n, 2):
            a("v_xor_b32 v%d, s%d, v%d" % (base + i, X[i & 3], base + i))
            a("v_xor_b32 v%d, s%d, v%d" % (base + i + 1, X[(i + 1) & 3], base + i + 1))
            if i:
                a("v_bitop3_b32 v%d, v%d, v%d, v%d bitop3:0xfd" % (vacc, vacc, base + i, base + i + 1))
            else:
                a("v_bitop3_b32 v%d, v%d, v%d, v%d bitop3:0xfd" % (vacc, base, base, base + 1))
        a("v_and_b32 v%d, 0x10001, v%d" % (vacc, vacc))

    def tagcheck(self, pieces, vacc):
        a = self.a
        for i, p in enumerate(pieces):
            if i == 0:
                a("v_xor_b32 v%d, s%d, v%d" % (vacc, self.sTL, p + 1))
            else:
                a("v_bitop3_b32 v%d, v%d, v%d, s%d bitop3:0xf6" % (vacc, vacc, p + 1, self.sTL))
            a("v_bitop3_b32 v%d, v%d, v%d, s%d bitop3:0xf6" % (vacc, vacc, p + 3, self.sTH))

    def poll(self, issue, check, vacc, first_issued=False):
        a = self.a
        top, done, chk = a.newlabel("POLL"), a.newlabel("DONE"), a.newlabel("CHK")
        a("s_mov_b32 s%d, 0x%x" % (self.sCNT, POLL_LIMIT))
        if first_issued:
            a("s_branch " + chk)
        a.label(top)
        issue()
        if first_issued:
            a.label(chk)
        a("s_waitcnt vmcnt(0)")
        check()
        a("v_cmp_ne_u32 vcc, 0, v%d" % vacc)
        a("s_cbranch_vccz " + done)
        a("s_sleep %d" % self.opt.get("sl", 2))
        a("s_sub_u32 s%d, s%d, 1" % (self.sCNT, self.sCNT))
        a("s_cbranch_scc0 " + top)
        a.label(done)

    def diag_delay(self, name):
        n = self.opt.get(name, 0)
        if n:
            self.a("s_sleep %d" % n)

    def cvt(self, d, x, y):
        self.a("v_cvt_pk_bf16_f32 v%d, %s, %s" % (d, x, y))

    def build(self):
        a = self.a
        a.label("CODE0")
        if self.opt.get("probe"):
            a("s_memrealtime s[72:73]\ns_memrealtime s[76:77]")
            self.nst = 1
        if self.stamps:
            a("%s %s" % ("s_memtime" if self.opt.get("cyc") else "s_memrealtime", s(self.sST, 2)))
            self.nst = 1
        a("""v_lshrrev_b32 v2, 6, v0
        v_and_b32 v1, 63, v0
        s_and_b32 s4, s2, 7
        v_readfirstlane_b32 s3, v2
        s_lshr_b32 s5, s2, 3
        s_cmp_ge_u32 s5, 32
        s_cbranch_scc1 EXIT
        ROT""".replace("ROT", "s_cmp_lt_u32 s5, 24\ns_cbranch_scc1 NOT_B" if self.opt.get("rot", 24) == 0 else "s_sub_u32 s5, s5, 8\ns_cbranch_scc0 NOT_B"))
        n0 = self.nst
        self.b_head()
        a.label("EXIT")
        a("s_endpgm")
        a.label("NOT_B")
        a("s_cmp_ge_u32 s3, 4\ns_cbranch_scc1 LOADER")
        pc = a.newlabel("PC")
        if self.opt.get("pfs", 1):
            a("s_cmp_lg_u32 s3, 0\ns_cbranch_scc1 COMPUTE\ns_getpc_b64 s[56:57]")
            a.label(pc)
            a.items.append(("i", _sym_add("s_mov_b32 s58, ROLE_B-4-%s" % pc)))
            a("v_and_b32 v3, 7, v1\nv_mul_u32_u24 v3, 24, v3\nv_add_lshl_u32 v3, v3, s5, 7\nv_min_u32 v3, s58, v3\nglobal_load_dword v0, v3, s[56:57]\ns_branch COMPUTE")
        else:
            a("s_cmp_eq_u32 s3, 3\ns_cbranch_scc1 COMPUTE\ns_getpc_b64 s[56:57]")
            a.label(pc)
            a.items.append(("i", _sym_add("s_mov_b32 s58, ROLE_B-4-%s" % pc)))
            a("v_lshlrev_b32 v3, 7, v0\nv_min_u32 v3, s58, v3\nglobal_load_dword v0, v3, s[56:57]\ns_branch COMPUTE")
        a.label("LOADER")
        self.loader()
        self.nst = n0
        self.compute()
        self.nst = n0
        self.role_b()
        a.label("CODE_END")
        prot = [0, 1, 3, 4, 5, 60, 61, 70] + list(range(72, 102))
        if self.opt.get("walk", 0) & 1:
            a.walkify("WA_0", "WA_1", 3, "WRET_A", prot, "WKA")
            a.walkify("WL_0", "WL_1", 1, "WRET_A", prot, "WKL")
            a.walkify("WQ_0", "WQ_1", 2, "WRET_A", prot, "WKQ")
            a.walkify("WR_0", "WR_1", 1, "WRET_A", prot, "WKR")
        if self.opt.get("walk", 0) & 2:
            a.walkify("WB_0", "WB_1", 6, "WRET_B", prot, "WKB")
            a.walkify("WC_0", "WC_1", 1, "WRET_C", prot, "WKC")
        bad = a.check_branches()
        assert not bad, bad
        return a

    KARG = "s_load_dwordx16 s[16:31], s[0:1], 0\ns_load_dwordx2 s[32:33], s[0:1], 64"

    def b_head(self):
        a = self.a
        lab = a.newlabel("PC")
        a("s_load_dwordx2 s[44:45], s[0:1], 24")
        a("s_getpc_b64 s[56:57]")
        a.label(lab)
        a.items.append(("i", _sym_add("s_add_u32 s58, s56, TABLE-%s" % lab, 0x8000)))
        a("""s_addc_u32 s59, s57, 0
        v_lshlrev_b32 v2, 4, v1
        s_mul_i32 s66, s3, 3072
        v_add_u32 v7, s66, v2
        s_add_u32 m0, s66, %d
        s_and_b32 s5, s5, 31""" % TB)
        for q in range(3):
            a("global_load_lds_dwordx4 v7, s[58:59] offset:%d" % (q * 1024))
        a("""s_and_b32 s61, s5, 7
        s_lshl3_add_u32 s60, s4, s61
        s_lshl_b32 s62, s3, 7
        s_add_u32 s62, s62, s60
        s_lshl_b32 s62, s62, 10
        s_add_u32 s63, s62, 0x%x
        s_add_u32 s64, s62, 0x%x
        s_add_u32 s65, s62, 0x%x
        s_lshl_b32 s70, s3, 12
        s_mov_b32 m0, s70
        s_mov_b32 s46, 0x200000
        s_mov_b32 s47, 0x20000
        s_waitcnt lgkmcnt(0)""" % (0x100000 - 1024, 0x10000 - 2048, 0x110000 - 3072))
        for q in range(4):
            a("buffer_load_dwordx4 v2, %s, s%d offen offset:%d nt lds" % (s(self.rA, 4), 62 + q, q * 1024))
        a("s_cmp_ge_u32 s3, %d\ns_cbranch_scc1 ROLE_B" % (1 if self.opt.get("pfb", 1) else 2))
        a.items.append(("i", _sym_add("s_add_u32 s56, s56, ROLE_B-%s" % lab)))
        a("s_addc_u32 s57, s57, 0")
        a.items.append(("i", _sym_add("s_mov_b32 s58, CODE_END-4-ROLE_B")))
        if self.opt.get("pfb", 1):
            a("v_and_b32 v3, 15, v1\nv_lshlrev_b32 v3, 3, v3\nv_add_lshl_u32 v3, v3, s61, 7")
        else:
            a("v_lshlrev_b32 v3, 7, v0")
        a("v_min_u32 v3, s58, v3\nglobal_load_dword v0, v3, s[56:57]")
        a("s_branch ROLE_B")

    def loader(self):
        a = self.a
        ws = s(self.rWS, 4)
        self.role = "L"
        vX, vW = 4, 8
        a("""s_load_dwordx4 s[44:47], s[0:1], 0
        s_lshr_b32 s60, s4, 1
        s_and_b32 s63, s5, 3
        s_lshl2_add_u32 s60, s60, s63
        s_bfe_u32 s65, s5, 0x20002
        s_lshr_b32 s66, s5, 4
        s_lshl_b32 s70, s65, s66
        s_add_u32 s70, s70, s63
        s_and_b32 s70, s70, 3
        s_and_b32 s71, s70, 1
        XROT
        s_xor_b32 s70, s70, s13
        s_xor_b32 s71, s71, s13
        s_sub_u32 s58, s3, 4
        s_lshl2_add_u32 s63, s60, s58
        s_lshl_b32 s63, s63, 15
        v_lshrrev_b32 v2, 3, v1
        v_lshrrev_b32 v3, 4, v1
        v_and_b32 v12, 7, v1
        v_xor_b32 v12, v12, v3
        v_lshl_add_u32 v12, v12, 4, s63
        v_lshl_add_u32 v4, v2, 10, v12
        v_xor_b32 v5, 64, v4
        v_add_u32 v5, 0x1c00, v5
        v_add_u32 v6, 0x3800, v4
        v_add_u32 v7, 0x3800, v5
        s_lshl_b32 s59, s58, 12""".replace("XROT", {0: "s_mov_b32 s13, 0",
            1: "s_lshl_b32 s13, s4, 2\ns_xor_b32 s13, s13, s4\ns_and_b32 s13, s13, 6",
            2: "s_lshl_b32 s13, s4, 2\ns_xor_b32 s13, s13, s4\ns_and_b32 s13, s13, 4",
            3: "s_lshl_b32 s13, s4, 1\ns_lshr_b32 s14, s4, 1\ns_xor_b32 s13, s13, s14\ns_and_b32 s13, s13, 3",
            4: "s_lshl_b32 s13, s66, 1"}[self.opt.get("xrot", 2)]))

        def kchunk(c):
            base = 0
            for r in [int(x) for x in str(self.opt.get("rounds", 44))]:
                if c < base + r:
                    break
                base += r
            src = {4: "s70", 2: "s71", 1: "s13"}[r]
            assert base % r == 0
            a("s_xor_b32 s62, %s, %d" % (src, c))

        def issue_x(c):
            a("s_add_u32 m0, s59, %d" % ((c % 5) * 32768))
            kchunk(c)
            a("s_lshl_b32 s63, s62, 7")
            if c == 0:
                a("s_waitcnt lgkmcnt(0)\ns_mov_b64 s[48:49], s[46:47]\ns_mov_b32 s46, 0x200000\ns_mov_b32 s47, 0x20000")
            for j in range(4):
                a("buffer_load_dwordx4 v%d, %s, s63 offen offset:%d lds" % (vX + j, s(self.rA, 4), j * 1024))

        def issue_w(c):
            a("s_add_u32 m0, s59, %d" % ((c % 5) * 32768 + 16384))
            a("s_mul_i32 s64, s62, 0x30000")
            for j in range(4):
                a("buffer_load_dwordx4 v%d, %s, s64 offen offset:%d lds" % (vW + j, s(self.rB, 4), j * 1024))

        def issue(c):
            issue_x(c)
            issue_w(c)

        issue_x(0)
        a(self.KARG)
        a("""s_and_b32 s64, s4, 1
        s_lshl2_add_u32 s61, s64, s65
        s_lshl1_add_u32 s66, s64, s65
        s_lshl_b32 s63, s61, 7
        s_add_u32 s63, s63, 1024
        s_lshl_b32 s64, s66, 8
        s_cmp_ge_u32 s5, 16
        s_cselect_b32 s63, s64, s63
        s_cselect_b32 s64, 7, 10
        v_bfe_u32 v12, v1, 2, 2
        v_xor_b32 v12, v12, v3
        v_lshrrev_b32 v13, 1, v12
        v_lshlrev_b32 v13, s64, v13
        v_and_b32 v14, 1, v12
        v_lshl_add_u32 v13, v14, 6, v13
        v_and_b32 v14, 3, v1
        v_lshl_add_u32 v13, v14, 4, v13
        v_mul_u32_u24 v15, 0xc00, v3
        s_mul_i32 s65, s58, 0xc000
        s_add_u32 s65, s65, s63
        v_add3_u32 v8, v13, v15, s65
        v_add_u32 v9, 0x2c00, v8
        v_add_u32 v10, 0x5800, v8
        v_add_u32 v11, 0x8400, v8
        s_mov_b32 s50, 0x180000
        s_mov_b32 s51, 0x20000""")
        issue_w(0)
        H = ["x0", "w0"]
        if self.opt.get("w4e"):
            plan = [["w4", "x1"], ["w1", "x2", "w2"], ["x3", "w3"], ["x4", "x5"], ["w5", "x6"], ["w6", "x7"], ["w7"]]
            if self.opt["w4e"] == 2:
                plan = [["w4", "x1"], ["w1", "x2", "w2"], ["x3", "w3", "x4"], [], ["x5", "w5"], ["x6", "w6"], ["x7", "w7"]]
        else:
            plan = [["x1", "w1"]] + [["x%d" % k, "w%d" % k] for k in range(2, 8)]

        def half(h):
            c = int(h[1])
            if h[0] == "x":
                issue_x(c)
            else:
                if H[-1] != "x%d" % c:
                    kchunk(c)
                issue_w(c)
            H.append(h)

        half(plan[0][0])
        a("s_waitcnt lgkmcnt(0)")
        a("s_load_dwordx2 s[8:9], s[32:33], %d" % WS_EP)
        half(plan[0][1])
        self.srd(self.rWS, self.pWS, WS_SIZE)
        self.srd(self.rOUT, self.pOUT, 2048 * 2048)
        a("s_waitcnt lgkmcnt(0)")
        self.tags()
        groups = list(range(8))
        waitc = lambda c: a("s_waitcnt vmcnt(%d)\ns_barrier" % (4 * (len(H) - 1 - max(H.index("x%d" % c), H.index("w%d" % c))) + 8 * (len(groups) - 8)))
        for c in range(6):
            waitc(c)
            if c == 0:
                self.stamp()
            for h in plan[c + 1]:
                half(h)
        c = 6
        cq, gq = c, list(groups)
        a("s_cmp_ge_u32 s5, 16\ns_cbranch_scc1 QLOADER")
        n0 = self.nst
        WSLOT = [3, 4, 0, 2]
        self.srd(self.rC, self.pWO, 512 * 1024)
        a("""s_and_b32 s68, s5, 3
        s_lshl_b32 s69, s58, 13
        v_lshlrev_b32 v16, 6, v12
        v_lshl_add_u32 v16, v14, 4, v16
        v_lshl_add_u32 v16, v3, 10, v16
        s_lshl_b32 s65, s58, 15
        OCCALC
        s_lshl_b32 s66, s14, 8
        s_add_u32 s65, s65, s66
        v_add_u32 v16, s65, v16
        v_add_u32 v17, 0xc00, v16
        v_add_u32 v18, 0x1800, v16
        v_add_u32 v19, 0x2400, v16""".replace("OCCALC", "s_and_b32 s14, s4, 1\ns_lshr_b32 s66, s5, 3\ns_lshl1_add_u32 s14, s14, s66" if self.opt.get("omap") else "s_lshr_b32 s14, s5, 2"))

        def issue_wo(n, sl=None):
            slot = (WSLOT[n] if sl is None else sl) * 32768
            a("s_add_u32 m0, s69, %d" % slot)
            a("s_xor_b32 s63, s68, %d\ns_lshl_b32 s63, s63, 17" % n)
            for j in range(4):
                a("buffer_load_dwordx4 v%d, %s, s63 offen offset:%d lds" % (16 + j, s(self.rC, 4), j * 1024))
            a("s_add_u32 m0, s69, %d" % (slot + 4096))
            a("s_add_u32 s63, s63, 0x4000")
            for j in range(4):
                a("buffer_load_dwordx4 v%d, %s, s63 offen offset:%d lds" % (16 + j, s(self.rC, 4), j * 1024))

        def read_wo(n, sl=None):
            ad, off = {4: (0, 0), 0: (14, 0), 1: (14, 32768), 3: (15, 32768), 2: (15, 0)}[WSLOT[n] if sl is None else sl]
            for h in range(8):
                r = 128 + 32 * n + 4 * h
                a("ds_read_b64_tr_b16 %s, v%d offset:%d" % (v(r, 2), ad, off + h * 4096))
                a("ds_read_b64_tr_b16 %s, v%d offset:%d" % (v(r + 2, 2), ad, off + h * 4096 + 2048))

        wsched = {self.opt.get("w0", 6): [0]}
        wsched.setdefault(self.opt.get("w1", 7), []).append(1)
        w2late = self.opt.get("w2late", 0)
        if not w2late:
            wsched.setdefault(7, []).append(2)
        for c in range(cq, 8):
            waitc(c)
            if c == 7:
                self.stamp()
            for n in wsched.get(c, []):
                issue_wo(n)
                groups.append("w%d" % n)
        assert len(groups) == 11 - w2late
        a.label("WL_0")
        self.wo_addr()
        self.tail_addr()
        a("s_waitcnt vmcnt(0)")
        self.stamp()
        a("s_barrier")
        if w2late:
            WSLOT[:] = [3, 4, 2, 1]
        if w2late:
            issue_wo(2)
        issue_wo(3)
        self.read_wo = read_wo
        if self.opt.get("wide"):
            for j in range(4):
                a("v_xor_b32 v%d, 0x100, v%d" % (16 + j, 16 + j))
            issue_wo(0, 1)
            for n in range(3):
                read_wo(n)
            a("s_waitcnt vmcnt(0) lgkmcnt(0)\ns_barrier")
            self.stamp()
            if self.opt["wide"] == 1:
                self.w_pqload()
            for n in range(1, 4):
                issue_wo(n, WSLOT[n - 1])
            read_wo(3)
            if self.opt["wide"] == 3:
                self.w_pqload()
                a("s_waitcnt vmcnt(4)")
            if self.opt["wide"] == 2:
                a("s_waitcnt vmcnt(0)")
        else:
            for n in range(3 - w2late):
                read_wo(n)
        a.label("WL_1")
        a("s_branch KV_TAIL")
        self.kv_tail_nst = self.nst
        self.nst = n0
        a.label("QLOADER")
        self.role = "R"
        self.reducer_setup()
        del groups[8:]
        for c in range(cq, 8):
            waitc(c)
        if self.opt.get("prewrite", 1):
            lab = a.newlabel("NOZ")
            a("s_cmp_gt_u32 s71, 8\ns_cbranch_scc1 " + lab)
            a("buffer_store_dwordx4 v[32:35], v21, %s, s67 offen sc1" % ws)
            a.label(lab)
        lab = a.newlabel("PC")
        a("s_getpc_b64 s[56:57]")
        a.label(lab)
        a.items.append(("i", _sym_add("s_add_u32 s56, s56, TABLE-%s" % lab, 0x8000)))
        a("s_addc_u32 s57, s57, 0\nv_lshlrev_b32 v2, 4, v1\nv_add_u32 v3, s59, v2\ns_add_u32 m0, s59, %d" % TB)
        for q in range(4):
            a("global_load_lds_dwordx4 v3, s[56:57] offset:%d" % (q * 1024))
        self.ra_inv(1, 84)
        a("ds_write_b64 v90, v[88:89]")
        a("s_waitcnt vmcnt(0) lgkmcnt(0)\ns_barrier")
        self.stamp()
        self.reducer()

    def ra_inv(self, half, t):
        self.a("""v_and_b32 v{0}, 7, v1
        v_lshlrev_b32 v{0}, 6, v{0}
        s_add_u32 s62, s60, {h}
        v_add_u32 v{0}, s62, v{0}
        v_cvt_f32_u32 v{0}, v{0}
        v_mul_f32 v{0}, {c1}, v{0}
        s_lshr_b32 s62, s3, 1
        s_and_b32 s15, s3, 1
        s_lshl2_add_u32 s14, s62, s15
        s_lshl_b32 s14, s14, 1
        v_lshrrev_b32 v{1}, 5, v1
        v_lshl_add_u32 v{1}, v{1}, 2, s14
        v_cvt_f32_u32 v{1}, v{1}
        v_bfe_u32 v{2}, v1, 3, 1
        v_cvt_f32_u32 v{2}, v{2}
        v_mul_f32 v{2}, {c2}, v{2}
        v_fma_f32 v{1}, v{1}, v{0}, v{2}
        v_lshlrev_b32 v{2}, 27, v1
        v_and_b32 v{2}, 0x80000000, v{2}
        v_or_b32 v{2}, {c3}, v{2}
        v_add_f32 v{3}, v{1}, v{2}
        v_sub_f32 v{2}, v{0}, v{2}
        v_add_f32 v{2}, v{1}, v{2}
        v_cos_f32 v{0}, v{3}
        v_sin_f32 v{3}, v{3}
        v_cos_f32 v{1}, v{2}
        v_sin_f32 v{2}, v{2}
        s_lshl_b32 s62, s62, 10
        s_lshl3_add_u32 s62, s15, s62
        s_add_u32 s62, s62, {rab}
        v_add_u32 v{6}, s62, v2
        v_cvt_pk_bf16_f32 v{4}, v{0}, -v{3}
        v_cvt_pk_bf16_f32 v{5}, v{1}, -v{2}""".format(*[t + i for i in range(7)], h=512 * half, c1=fhex(1 / 2048), c2=fhex(-0.25),
                                                      c3=fhex(0.125), rab=RAB))

    def reducer_setup(self):
        a = self.a
        a("""s_lshl3_add_u32 s60, s4, s5
        s_sub_u32 s60, s60, 16
        s_lshr_b32 s61, s60, 2
        s_and_b32 s71, s60, 3
        s_lshl2_add_u32 s71, s58, s71
        s_mul_i32 s63, s61, %d
        s_lshl_b32 s64, s71, 7
        s_add_u32 s63, s63, s64
        s_add_u32 s63, s63, 0x%x
        s_mul_i32 s67, s61, %d
        s_add_u32 s67, s67, s64
        s_add_u32 s67, s67, 0x%x
        s_add_u32 s64, s63, %d
        s_add_u32 s65, s63, %d
        s_add_u32 s66, s63, %d""" % (32 * PLINE, WS_PART, PLINE, WS_RED, 8 * PLINE, 16 * PLINE, 24 * PLINE))
        a("""v_lshrrev_b32 v2, 3, v1
        v_and_b32 v3, 7, v1
        v_lshlrev_b32 v3, 4, v3
        v_mov_b32 v22, %d
        v_mad_u32_u24 v20, v2, v22, v3
        v_mov_b32 v22, 0x%x
        v_mad_u32_u24 v21, v2, v22, v3""" % (PLINE, RED_STRIDE))
        a("""v_and_b32 v2, 1, v1
        v_lshlrev_b32 v2, 4, v2
        v_mov_b32 v3, 0x3f80
        v_lshlrev_b32 v3, v2, v3
        v_and_b32 v2, 2, v1
        v_cmp_eq_u32 vcc, 0, v2
        v_mov_b32 v24, 0
        v_mov_b32 v25, 0
        v_mov_b32 v28, 0
        v_mov_b32 v29, 0
        v_cndmask_b32 v26, 0, v3, vcc
        v_cndmask_b32 v27, v3, v25, vcc
        v_mov_b32 v32, 0xfffefffe
        v_mov_b32 v33, 0
        v_mov_b32 v34, 0
        v_mov_b32 v35, 0""")

    def reducer(self):
        a = self.a
        ws = s(self.rWS, 4)
        D, acc, vacc, o = 40, 72, 80, 36
        lab = a.newlabel("NORED")
        n0 = self.nst
        self.pad_stamps(9)
        self.nst = n0
        a("s_cmp_gt_u32 s71, 8\ns_cbranch_scc1 HELPER")
        a.label("WR_0")
        self.diag_delay("d_part")
        self.poll(lambda: [a("buffer_load_dwordx4 %s, v20, %s, s%d offen sc1" % (v(D + 4 * i, 4), ws, 63 + i)) for i in range(4)],
                  lambda: self.markcheck(D, 16, vacc), vacc)
        self.stamp()
        for i in range(4):
            for h in range(2):
                a("%s %s, %s, %s, %s" % (M16, v(acc + 4 * h, 4), v(26 - 2 * h, 4), v(D + 4 * i, 4), v(acc + 4 * h, 4) if i else "0"))
        for r in range(8):
            a("v_add_f32_dpp v%d, v%d, v%d row_ror:8 row_mask:0xf bank_mask:0xf" % (56 + r, acc + r, acc + r))
        for j in range(4):
            self.cvt(o + j, v(56 + 2 * j), v(57 + 2 * j))
        for x in self.mark(o, 32):
            a(x)
        a("buffer_store_dwordx4 %s, v21, %s, s67 offen sc1" % (v(o, 4), ws))
        a.label("WR_1")
        self.stamp()
        self.pad_stamps(9)
        a("s_branch HELPER")

    def lds_reset(self):
        self.lq_issued = 0
        self.lq_done = 0

    def lds(self, line):
        self.a(line)
        self.lq_issued += 1
        return self.lq_issued

    def lds_wait(self, seq):
        if seq > self.lq_done:
            n = min(self.lq_issued - seq, 15)
            self.a("s_waitcnt lgkmcnt(%d)" % n)
            self.lq_done = self.lq_issued - n

    @staticmethod
    def cost(line):
        m = line.split()[0]
        if m == "MARK":
            return 0
        if m.startswith(("v_exp", "v_rcp", "v_sin", "v_cos")):
            return 8
        return 4

    def run_mfmas(self, mf, frags, pool, fillers, budget=24, maxread=2, maxout=14, hooks=None):
        a = self.a
        order = []
        last = {}
        for j, (_, ids) in enumerate(mf):
            for i in ids:
                if i not in last:
                    order.append(i)
                last[i] = j
        pool = list(pool)
        reg, seq = {}, {}
        rp = [0, 0]
        q = []

        def one_read():
            i = order[rp[0]]
            reads, pre = frags[i]
            if rp[1] == 0:
                if not pool:
                    return False
                if pre:
                    pre()
                reg[i] = pool.pop(0)
            sq = self.lds(reads[rp[1]].format(r=v(reg[i], 4), lo=v(reg[i], 2), hi=v(reg[i] + 2, 2)))
            rp[1] += 1
            if rp[1] == len(reads):
                seq[i] = sq
                rp[0] += 1
                rp[1] = 0
            return True

        while rp[0] < len(order) and self.lq_issued - self.lq_done < maxout - 2 and pool and not (rp[0] and frags[order[rp[0]]][1]):
            one_read()
        for j, (fmt, ids) in enumerate(mf):
            for i in ids:
                while i not in seq:
                    assert one_read()
            if ids:
                self.lds_wait(max(seq[i] for i in ids))
            a(fmt.format(*[v(reg[i], 4) for i in ids]))
            for i in ids:
                if last[i] == j:
                    pool.append(reg[i])
            if hooks and j in hooks:
                hooks[j]()
            b = budget
            k = 0
            while k < maxread and rp[0] < len(order) and self.lq_issued - self.lq_done < maxout:
                gate = frags[order[rp[0]]]
                if rp[1] == 0 and len(gate) > 2 and gate[2]() is False:
                    break
                if not one_read():
                    break
                k += 1
                b -= 4
            q += fillers.get(j, [])
            while q and b >= self.cost(q[0]):
                if self.opt.get("upf", 1) and q[0].startswith("v_pk_"):
                    q[0:1] = unpack_pk(q[0])
                x = q.pop(0)
                b -= self.cost(x)
                self.emit_filler(x)
            self.fq = q
        return q

    def emit_filler(self, x):
        if x == "MARK":
            pass
        elif x.startswith("ds_"):
            self.last_fill_lds = self.lds(x)
        elif x.startswith("WAITLDS"):
            self.lds_wait(self.last_fill_lds - int(x.split()[1]))
        else:
            self.a(x)

    def gemm_loop(self, acc, pool, ax, aw, xfirst, fill, Z, hooks=None):
        a = self.a
        frags, mf = {}, []
        seen = set()

        def fx(n, mb, tag):
            c, ks = n >> 2, n & 3
            slot = c % 5
            hi, so = slot >> 1, (slot & 1) * 32768
            pre = None
            if ("x", n, mb, tag) in frags:
                return ("x", n, mb, tag)
            if c not in seen:
                seen.add(c)
                pre = (lambda: a("s_barrier")) if c else None
            frags[("x", n, mb, tag)] = (["ds_read_b128 {r}, v%d offset:%d" % (ax[hi][ks], so + 4096 * mb)], pre)
            return ("x", n, mb, tag)

        def fw(n, nb):
            c, ks = n >> 2, n & 3
            slot = c % 5
            hi, so = slot >> 1, (slot & 1) * 32768 + 16384 + ks * 4096
            frags[("w", n, nb)] = (["ds_read_b64_tr_b16 {lo}, v%d offset:%d" % (aw[hi][nb], so),
                                    "ds_read_b64_tr_b16 {hi}, v%d offset:%d" % (aw[hi][nb], so + 1024)], None)
            return ("w", n, nb)

        def add(n, nbs, tag):
            X = [fx(n, 0, tag), fx(n, 1, tag)]
            for nb in nbs:
                W = fw(n, nb)
                for mb in range(2):
                    d = v(acc[mb][nb], 16)
                    mf.append(("v_mfma_f32_32x32x16_bf16 %s, %s, %s" % (d, "{0}, {1}" if xfirst else "{1}, {0}", d if n else "0"), [X[mb], W]))

        for n in range(32 - Z):
            add(n, (0, 1), 0)
        for n in range(32 - Z, 32):
            add(n, (0,), 0)
        j0 = len(mf)
        for n in range(32 - Z, 32):
            add(n, (1,), 0 if self.opt.get("keepx", 1) else 1)
        a("s_barrier")
        self.stamp()
        self.lds_reset()
        return self.run_mfmas(mf, frags, pool, {j0 + 1: fill}, hooks=hooks)

    def phi(self, src, dst, tmp, n):
        L = []
        for g in range(0, n, 8):
            for j in range(0, 8, 2):
                L.append("v_pk_mul_f32 %s, %s, s[56:57]" % (v(tmp + j, 2), v(src + g + j, 2)))
            for j in range(8):
                L.append("v_exp_f32_e64 v%d, v%d clamp" % (tmp + j, tmp + j))
                L.append("v_max_f32 v%d, s58, v%d" % (src + g + j, src + g + j))
            for j in range(0, 8, 2):
                L.append("v_pk_add_f32 %s, %s, %s" % (v(tmp + j, 2), v(tmp + j, 2), v(src + g + j, 2)))
            for j in range(0, 8, 2):
                L.append("v_cvt_pk_bf16_f32 v%d, v%d, v%d" % (dst + (g + j) // 2, tmp + j, tmp + j + 1))
        return L

    def compute(self):
        a = self.a
        ws = s(self.rWS, 4)
        a.label("COMPUTE")
        self.role = "K"
        if self.opt.get("walk", 0) & 1:
            a("""s_mov_b64 exec, 0
            s_cmp_ge_u32 s5, 16
            s_cbranch_scc1 WKQ
            s_cmp_eq_u32 s3, 0
            s_cbranch_scc1 WKA0
            s_cmp_eq_u32 s3, 1
            s_cbranch_scc1 WKA1
            s_cmp_eq_u32 s3, 2
            s_cbranch_scc1 WKA2
            s_branch WKL0""")
            a.label("WKQ")
            a("""s_cmp_eq_u32 s3, 0
            s_cbranch_scc1 WKQ0
            s_cmp_eq_u32 s3, 1
            s_cbranch_scc1 WKQ1
            s_cmp_eq_u32 s3, 2
            s_cbranch_scc1 WKR0
            s_branch WKC0""" if self.opt.get("walk", 0) & 2 else "s_cmp_eq_u32 s3, 0\ns_cbranch_scc1 WKQ0\ns_cmp_eq_u32 s3, 1\ns_cbranch_scc1 WKQ1\ns_branch WKR0")
            a.label("WRET_A")
            a("s_mov_b64 exec, -1\ns_waitcnt lgkmcnt(0)\ns_nop 15")
        ax = [[240, 241, 242, 243], [244, 245, 246, 247], [252, 253, 254, 255]]
        aw = [[248, 249], [250, 251], [146, 147]]
        a("""s_lshr_b32 s60, s4, 1
        s_and_b32 s68, s5, 3
        s_lshl2_add_u32 s60, s60, s68
        s_and_b32 s64, s4, 1
        s_bfe_u32 s65, s5, 0x20002
        s_lshl2_add_u32 s61, s64, s65
        s_lshl1_add_u32 s66, s64, s65
        s_lshr_b32 s63, s3, 1
        s_and_b32 s64, s3, 1
        s_lshr_b32 s67, s5, 4
        s_lshl_b32 s69, s64, s67
        s_movk_i32 s70, 128
        s_lshr_b32 s70, s70, s67
        s_cmp_ge_u32 s5, 16
        s_cselect_b32 s61, s66, s61
        s_mov_b32 s10, 0xffff0000
        s_mov_b32 s11, 0xffff0000""")
        a(self.KARG)
        a("""v_and_b32 v2, 31, v1
        v_lshlrev_b32 v2, 7, v2
        s_lshl_b32 s65, s63, 13
        v_add_u32 v2, s65, v2
        v_lshrrev_b32 v3, 5, v1
        v_bfe_u32 v16, v1, 1, 3
        v_xor_b32 v16, v16, v3
        v_lshl_add_u32 v240, v16, 4, v2
        v_xor_b32 v241, 32, v240
        v_xor_b32 v242, 64, v240
        v_xor_b32 v243, 96, v240""")
        a("""v_bfe_u32 v16, v1, 2, 2
        v_lshl_add_u32 v17, v3, 3, v16
        v_xor_b32 v16, s69, v16
        v_lshlrev_b32 v16, 6, v16
        v_lshl_add_u32 v16, v17, 8, v16
        v_bfe_u32 v17, v1, 4, 1
        v_lshl_add_u32 v16, v17, 5, v16
        v_and_b32 v17, 3, v1
        v_lshl_add_u32 v248, v17, 3, v16
        v_xor_b32 v249, s70, v248""")
        for k in range(4):
            a("v_add_u32 v%d, 0x10000, v%d" % (244 + k, 240 + k))
            a("v_add_u32 v%d, 0x20000, v%d" % (252 + k, 240 + k))
        a("v_add_u32 v250, 0x10000, v248\nv_add_u32 v251, 0x10000, v249\nv_add_u32 v146, 0x20000, v248\nv_add_u32 v147, 0x20000, v249")
        a("s_waitcnt lgkmcnt(0)")
        a("s_load_dwordx2 s[8:9], s[32:33], %d" % WS_EP)
        self.srd(self.rWS, self.pWS, WS_SIZE)
        self.srd(self.rOUT, self.pOUT, 2048 * 2048)
        a("s_mov_b32 s56, %s\ns_mov_b32 s57, %s\ns_mov_b32 s58, %s" % (fhex(1.4426950408889634), fhex(1.4426950408889634), fhex(1e-6)))
        a("v_lshlrev_b32 v2, 4, v1")
        acc = [[64, 96], [80, 112]]
        pool = list(range(16, 64, 4))
        Z = self.opt.get("z", 6)
        CN = 252
        a("s_cmp_ge_u32 s5, 16\ns_cbranch_scc1 QCOMPUTE")
        n0 = self.nst
        a("""s_lshl1_add_u32 s59, s61, s64
        s_lshl_b32 s59, s59, 5
        s_lshl1_add_u32 s66, s60, s63
        s_add_u32 s59, s59, s66
        s_mul_i32 s59, s59, %d
        s_add_u32 s59, s59, 0x%x""" % (PLINE, WS_PART))
        P0, P1, PZ, ONES, zaddr = 128, 132, 136, 140, 144
        pk, vv, tmp, D, D2 = 180, 196, 212, 148, 164
        for j in range(4):
            a("v_mov_b32 v%d, 0x3f803f80" % (ONES + j))

        def prewrite():
            a("buffer_store_dwordx4 %s, v2, %s, s59 offen sc1" % (v(ONES, 4), ws))
            a("s_mov_b64 exec, 0xff")
            a("buffer_store_dwordx4 %s, v2, %s, s59 offen offset:1024 sc1" % (v(ONES, 4), ws))
            a("s_mov_b64 exec, -1")

        pw = self.opt.get("prewrite", 1)
        if pw == 1:
            prewrite()
        a("""v_lshrrev_b32 v3, 4, v1
        v_and_b32 v145, 1, v1
        v_lshl_add_u32 v4, v3, 1, v145
        v_lshlrev_b32 v%d, 4, v4
        v_mov_b32 v145, 0xfffefffe
        s_mov_b32 s60, 0x00030003
        s_mov_b32 s61, 0x00030003""" % zaddr)
        self.tail_addr()
        a("s_waitcnt lgkmcnt(0)")
        self.tags()
        K0, K1, V0, V1 = acc[0][0], acc[1][0], acc[0][1], acc[1][1]
        fill = []
        for i, src in enumerate((K0, K0 + 8, K1, K1 + 8)):
            fill += self.phi(src, pk + 4 * i, tmp, 8) + ["MARK"]
        hooks = {100: lambda: a("s_waitcnt vmcnt(0)")}
        if pw > 1:
            hooks[pw] = prewrite
        big = list(range(148, 180, 4)) + list(range(220, 240, 4)) if self.opt.get("keepx", 1) else []
        hooks[128 - 2 * Z] = lambda: a.label("WA_0")
        rest = self.gemm_loop(acc, pool + big, ax, aw, True, fill, Z, hooks)
        self.stamp()
        ndone = 4 - rest.count("MARK")
        vsrc = (V0, V0 + 8, V1, V1 + 8)
        vcvt = lambda i: ["v_cvt_pk_bf16_f32 v%d, v%d, v%d" % (vv + 4 * i + j, vsrc[i] + 2 * j, vsrc[i] + 2 * j + 1) for j in range(4)]
        mD = lambda i: "%s %s, %s, %s, %s" % (M32, v(D, 16), v(pk + 4 * i, 4), v(vv + 4 * i, 4), v(D, 16) if i else "0")
        mZ = lambda i: "%s %s, %s, %s, %s" % (M32, v(D2, 16), v(pk + 4 * i, 4), v(ONES, 4), v(D2, 16) if i else "0")
        pend = [x for i in range(ndone) for x in ([mZ(i)], vcvt(i) + [mD(i)])]
        g, gap = ndone, 0
        for k, x in enumerate(rest):
            if x == "MARK":
                pend += [[mZ(g)], vcvt(g) + [mD(g)]]
                g += 1
                continue
            run = 0
            while k + run < len(rest) and rest[k + run].startswith(("v_exp", "v_max")):
                run += 1
            if pend and run >= 5 and gap <= 0:
                for y in pend.pop(0):
                    a(y)
                gap = 5
            a(x)
            gap -= 1
        cv = [y for it in pend for y in it if y.startswith("v_cvt")]
        zs = [y for it in pend for y in it if y.startswith("v_mfma") and v(ONES, 4) in y]
        ds = [y for it in pend for y in it if y.startswith("v_mfma") and v(ONES, 4) not in y]
        for y in cv[:4] + zs + cv[4:] + ds:
            a(y)
        for src, p in ((D2, PZ), (D, P0)):
            for j in range(4):
                self.cvt(p + j, v(src + 2 * j), v(src + 2 * j + 1))
            a("s_mov_b64 exec, s[10:11]")
            for j in range(4):
                self.cvt(p + j, v(src + 8 + 2 * j), v(src + 9 + 2 * j))
            a("s_mov_b64 exec, %s" % ("s[60:61]" if p == PZ else "-1"))
            for x in self.mark(p, 145):
                a(x)
            if p == PZ:
                a("buffer_store_dwordx4 %s, v%d, %s, s59 offen offset:1024 sc1" % (v(PZ, 4), zaddr, ws))
                a("s_mov_b64 exec, -1")
            else:
                a("buffer_store_dwordx4 %s, v2, %s, s59 offen sc1" % (v(p, 4), ws))
        self.stamp()
        a("s_barrier")
        if self.opt.get("wide"):
            self.wo_addr()
            if self.opt["wide"] == 1:
                a("s_waitcnt vmcnt(0)")
            a("s_barrier")
            self.stamp()
            if self.opt["wide"] == 1:
                self.w_pqload()
            self.read_wo(0, 1)
            assert self.nst == self.kv_tail_nst
            self.wide_tail()
        else:
            assert self.nst == self.kv_tail_nst
            self.kv_tail()
        a.label("WA_1")
        a("s_endpgm")
        self.nst = n0
        a.label("QCOMPUTE")
        a.unpk = False
        self.role = "Q"
        a("""s_lshl1_add_u32 s66, s60, s63
        s_lshl2_add_u32 s66, s66, s61
        s_lshl1_add_u32 s66, s66, s64
        s_lshl_b32 s65, s66, 13
        s_add_u32 s65, s65, 0x%x
        s_add_u32 s67, s65, 0x1000
        v_mov_b32 v4, 0xfffefffe
        s_lshl3_add_u32 s60, s4, s5
        s_sub_u32 s60, s60, 16""" % WS_PQ)
        self.ra_inv(1, 8)
        a("s_waitcnt lgkmcnt(0)")
        self.tags()

        def qpost(nb):
            L = []
            for mb in range(2):
                for h in range(2):
                    d = 128 + 16 * nb + 8 * mb + 4 * h
                    L += self.phi(acc[mb][nb] + 8 * h, d, 212, 8) + self.mark(d, 4)
                    L.append("buffer_store_dwordx4 %s, v2, %s, s%d offen offset:%d sc1" % (v(d, 4), ws, 67 if nb else 65, (h * 2 + mb) * 1024))
            return L

        big = list(range(160, 212, 4)) if self.opt.get("keepx", 1) else []
        rest = self.gemm_loop(acc, pool + big, ax, aw, False, qpost(0), self.opt.get("zq", 6), {100: lambda: a("s_waitcnt vmcnt(0)"), 128 - 2 * self.opt.get("zq", 6): lambda: a.label("WQ_0")})
        self.stamp()
        a("ds_write_b64 v14, v[12:13]")
        for x in rest + qpost(1):
            a(x)
        a.label("WQ_1")
        a("s_waitcnt vmcnt(%d) lgkmcnt(0)\ns_barrier" % self.opt.get("qdr", 0))
        self.stamp()
        self.pad_stamps(9)
        a.label("HELPER")
        a("s_lshl_b32 s62, s60, 7\ns_add_u32 s62, s62, 0x%x\ns_movk_i32 s34, 512" % WS_GO)
        self.flip_marks()
        a("s_branch B3_ENTRY")

    def wo_addr(self):
        a = self.a
        a("s_and_b32 s63, s3, 3")
        a("""v_bfe_u32 v14, v1, 2, 2
        v_lshrrev_b32 v15, 5, v1
        v_lshl_add_u32 v15, v15, 2, v14
        v_xor_b32 v14, s63, v14
        v_lshlrev_b32 v14, 6, v14
        v_lshl_add_u32 v14, v15, 8, v14
        v_and_b32 v15, 1, v1
        v_lshl_add_u32 v14, v15, 5, v14
        v_bfe_u32 v15, v1, 4, 1
        v_lshl_add_u32 v14, v15, 4, v14
        v_bfe_u32 v15, v1, 1, 1
        v_lshl_add_u32 v14, v15, 3, v14
        v_add_u32 v15, 0x10000, v14
        v_add_u32 v0, 0x20000, v14""")

    def tail_addr(self):
        a = self.a
        a("""v_lshlrev_b32 v2, 4, v1
        ORB
        s_lshl3_add_u32 s66, s65, s3
        s_lshl_b32 s67, s66, 13
        s_add_u32 s67, s67, 0x%x
        s_mul_i32 s70, s3, %d
        s_mul_i32 s71, s4, 0x%x
        s_add_u32 s70, s70, s71
        s_add_u32 s70, s70, 0x%x
        s_add_u32 s71, s70, %d
        v_lshrrev_b32 v8, 4, v1
        v_xor_b32 v8, 1, v8
        v_and_b32 v9, 1, v1
        v_lshl_add_u32 v8, v8, 1, v9
        v_lshlrev_b32 v8, 4, v8
        s_lshl_b32 s63, s3, 12
        v_add_u32 v13, s63, v2
        s_mov_b32 s10, 0xffff0000
        s_mov_b32 s11, 0xffff0000""".replace("ORB", "s_and_b32 s65, s5, 7\ns_lshr_b32 s66, s4, 1\ns_lshl3_add_u32 s65, s66, s65" if self.opt.get("omap") else "s_and_b32 s65, s5, 3\ns_lshl2_add_u32 s65, s4, s65") % (WS_PQ, 2 * PLINE, RED_STRIDE, WS_RED, PLINE))
        if self.opt.get("wide"):
            a("s_bfe_u32 s63, s5, 0x10002\ns_lshl_b32 s63, s63, 10\ns_add_u32 s67, s67, s63\ns_add_u32 s71, s67, 0x1000")

    def w_pqload(self):
        for i in range(4):
            self.a("buffer_load_dwordx4 %s, v2, %s, s%d offen offset:%d sc1" % (v(32 + 4 * i, 4), s(self.rWS, 4), 71 if i >= 2 else 67, (i & 1) * 2048))

    def wide_tail(self):
        a = self.a
        ws = s(self.rWS, 4)
        a.label("KV_TAIL")
        WO, PQ, RD, OP, AC = 128, 32, 48, 16, 64
        a("""s_mov_b32 s58, %s
        s_lshl_b32 s63, s5, 13
        s_and_b32 s64, s63, 0x6000
        s_add_u32 s64, s64, 0x8000
        v_add_u32 v4, s64, v2
        v_xor_b32 v5, 0x2000, v4
        v_xor_b32 v6, 0x4000, v4
        v_xor_b32 v7, 0x6000, v4
        s_lshl_b32 s63, s3, 11
        s_add_u32 s63, s63, 0x10000
        v_and_b32 v10, 31, v1
        v_bfe_u32 v11, v1, 1, 2
        v_lshrrev_b32 v9, 5, v1
        v_lshlrev_b32 v9, 1, v9
        v_xor_b32 v11, v11, v9
        v_lshlrev_b32 v11, 4, v11
        v_lshl_add_u32 v10, v10, 6, v11
        v_add_u32 v10, s63, v10
        v_bfe_u32 v9, v1, 3, 2
        v_lshlrev_b32 v9, 4, v9
        v_xor_b32 v9, v9, v2
        v_add_u32 v9, s63, v9
        v_lshrrev_b32 v3, 2, v1
        v_and_b32 v11, 3, v1
        v_lshlrev_b32 v11, 4, v11
        v_lshl_add_u32 v3, v3, 11, v11
        v_xor_b32 v11, 16, v10
        s_lshr_b32 s63, s5, 2
        s_and_b32 s64, s63, 1
        s_lshl1_add_u32 s65, s65, s64
        s_lshl_b32 s65, s65, 16
        s_lshl_b32 s63, s63, 2
        s_xor_b32 s63, s63, s3
        s_xor_b32 s63, s63, 4
        s_lshl_b32 s63, s63, 6
        s_add_u32 s64, s65, s63
        s_add_u32 s65, s64, 0x8000""" % fhex(1e-6))
        wd = self.opt["wide"]
        if wd == 1:
            self.poll(self.w_pqload, lambda: self.markcheck(PQ, 16, 12), 12, first_issued=True)
        a("s_waitcnt lgkmcnt(0)\ns_barrier")
        self.stamp()
        if wd == 2:
            self.w_pqload()
        if wd == 3:
            lab = a.newlabel("NOPQ")
            a("s_cmp_ge_u32 s3, 4\ns_cbranch_scc1 " + lab)
            self.w_pqload()
            a.label(lab)

        def issue():
            for pi in range(2):
                a("buffer_load_dwordx4 %s, v2, %s, s70 offen offset:%d sc1" % (v(RD + 8 * pi, 4), ws, pi * PLINE))
                a("buffer_load_dwordx4 %s, v8, %s, s70 offen offset:%d sc1" % (v(RD + 8 * pi + 4, 4), ws, pi * PLINE + 1024))

        self.diag_delay("d_red")
        issue()
        lab = a.newlabel("NOWO")
        a("s_cmp_ge_u32 s3, 4\ns_cbranch_scc1 " + lab)
        for n, sl in ((1, 3), (2, 4), (3, 0)):
            self.read_wo(n, sl)
        a.label(lab)
        if wd != 1:
            self.poll(self.w_pqload, lambda: self.markcheck(PQ, 16, 12), 12, first_issued=True)
        self.poll(issue, lambda: self.markcheck(RD, 16, 12), 12, first_issued=True)
        self.stamp()

        def sel(i):
            b = RD + 8 * (i >> 1)
            for j in range(4):
                x, y = (b + j, b + 4 + j) if i & 1 == 0 else (b + 4 + j, b + j)
                a("v_cndmask_b32 v%d, v%d, v%d, s[10:11]" % (OP + 4 * i + j, x, y))

        mf = lambda i: a("%s %s, %s, %s, 0" % (M32, v(AC + 16 * i, 16), v(OP + 4 * i, 4), v(PQ + 4 * i, 4)))
        sel(0)
        sel(1)
        mf(0)
        sel(2)
        mf(1)
        sel(3)
        mf(2)
        for i in range(4):
            d = AC + 16 * i
            num, den = (d, d + 8) if i & 1 == 0 else (d + 8, d)
            if i == 0:
                mf(3)
            a("v_add_f32 v%d, s58, v%d\nv_rcp_f32 v%d, v%d" % (den, den, den, den))
            for j in range(0, 8, 2):
                a("v_pk_mul_f32 %s, %s, %s op_sel_hi:[1,0]" % (v(num + j, 2), v(num + j, 2), v(den, 2)))
            for j in range(4):
                self.cvt(den + 4 + j, v(num + 2 * j), v(num + 2 * j + 1))
            a("ds_write_b128 v13, %s offset:%d" % (v(den + 4, 4), 32768 + i * 1024))
        a("s_waitcnt lgkmcnt(0)\ns_barrier")
        self.stamp()
        frags, mfl = {}, []
        d = v(AC, 16)
        for h in range(32):
            frags[h] = (["ds_read_b128 {r}, v%d offset:%d" % (4 + (h >> 3), (h & 7) * 1024)], None)
            mfl.append(("%s %s, %s, {0}, %s" % (M32, d, v(WO + 4 * h, 4), d if h else "0"), [h]))
        self.lds_reset()
        self.run_mfmas(mfl, frags, list(range(16, 48, 4)), {}, maxread=1)
        fl = self.opt.get("outflag", "sc1")
        t = AC + 16
        for j in range(8):
            self.cvt(t + j, v(AC + 2 * j), v(AC + 2 * j + 1))
        a("ds_write_b128 v10, %s\nds_write_b128 v11, %s" % (v(t, 4), v(t + 4, 4)))
        a("ds_read_b128 %s, v9\nds_read_b128 %s, v9 offset:1024" % (v(t + 8, 4), v(t + 12, 4)))
        for k in range(2):
            a("s_waitcnt lgkmcnt(%d)" % (1 - k))
            a("buffer_store_dwordx4 %s, v3, %s, s%d offen %s" % (v(t + 8 + 4 * k, 4), s(self.rOUT, 4), 64 + k, fl))
        lab = a.newlabel("NOEP")
        a("s_or_b32 s56, s4, s3\ns_or_b32 s56, s56, s5\ns_cbranch_scc1 " + lab)
        self.poll(lambda: a("buffer_load_dwordx2 v[6:7], off, %s, 0 offset:%d sc1" % (ws, WS_NOTE)),
                  lambda: a("v_xor_b32 v12, s6, v6\nv_bitop3_b32 v12, v12, v7, s7 bitop3:0xf6"), 12)
        a("v_mov_b32 v6, s8\nv_mov_b32 v7, s9\ns_mov_b64 exec, 1")
        a("buffer_store_dwordx2 v[6:7], off, %s, 0 offset:%d" % (ws, WS_EP))
        a("s_mov_b64 exec, -1")
        a.label(lab)
        self.end()

    def kv_tail(self):
        a = self.a
        ws = s(self.rWS, 4)
        a.label("KV_TAIL")
        a.unpk = bool(self.opt.get("unpk", 2) & 2)
        WO, PQ, RD, OP, AC = 128, 16, 48, 80, 96
        a("s_waitcnt vmcnt(0)")
        a("s_add_u32 s68, s67, 0x1000\ns_mov_b32 s62, s67\ns_mov_b32 s58, %s" % fhex(1e-6))
        pqload = lambda: [a("buffer_load_dwordx4 %s, v2, %s, s%d offen offset:%d sc1" % (v(PQ + 4 * i, 4), ws, 68 if i >= 4 else 62, (i & 3) * 1024)) for i in range(8)]
        self.diag_delay("d_pq")
        pql = self.opt.get("pqlate", 1)
        if pql != 1:
            pqload()
        if pql == 2:
            self.stamp()
            self.poll(pqload, lambda: self.markcheck(PQ, 32, 12), 12, first_issued=True)
        a("s_waitcnt lgkmcnt(0)\ns_barrier")
        self.stamp()
        if pql == 1:
            pqload()
        lab = a.newlabel("NOWO")
        a("s_cmp_lt_u32 s3, 4\ns_cbranch_scc1 " + lab)
        if self.opt.get("w2late", 0):
            self.read_wo(2)
        self.read_wo(3)
        a.label(lab)
        redat = self.opt.get("redat", -1)
        if pql != 2 and redat < 0:
            self.poll(pqload, lambda: self.markcheck(PQ, 32, 12), 12, first_issued=True)
            self.stamp()

        def issue():
            for pi in range(2):
                a("buffer_load_dwordx4 %s, v2, %s, s70 offen offset:%d sc1" % (v(RD + 8 * pi, 4), ws, pi * PLINE))
                a("buffer_load_dwordx4 %s, v8, %s, s70 offen offset:%d sc1" % (v(RD + 8 * pi + 4, 4), ws, pi * PLINE + 1024))

        a("""s_lshl_b32 s63, s5, 13
        s_and_b32 s64, s63, 0x6000
        s_add_u32 s64, s64, OBASE
        v_add_u32 v13, OBASE, v13
        v_add_u32 v4, s64, v2
        v_xor_b32 v5, 0x2000, v4
        v_xor_b32 v6, 0x4000, v4
        v_xor_b32 v7, 0x6000, v4
        s_lshl_b32 s69, s3, 12
        s_add_u32 s69, s69, STG
        v_and_b32 v10, 31, v1
        v_bfe_u32 v14, v1, 1, 2
        v_lshrrev_b32 v15, 5, v1
        v_lshlrev_b32 v15, 1, v15
        v_xor_b32 v14, v14, v15
        v_lshlrev_b32 v14, 4, v14
        v_lshl_add_u32 v10, v10, 6, v14
        v_add_u32 v10, s69, v10
        v_xor_b32 v14, 16, v10
        v_bfe_u32 v15, v1, 3, 2
        v_lshlrev_b32 v15, 4, v15
        v_xor_b32 v15, v15, v2
        v_add_u32 v15, s69, v15
        v_lshrrev_b32 v3, 2, v1
        v_and_b32 v11, 3, v1
        v_lshlrev_b32 v11, 4, v11
        v_lshl_add_u32 v3, v3, 11, v11
        s_lshl_b32 s65, s65, 17
        s_and_b32 s64, s3, 3
        s_lshl2_add_u32 s69, s14, s64
        s_lshl_b32 s69, s69, 6
        s_add_u32 s64, s65, s69
        s_add_u32 s65, s64, 0x8000
        s_add_u32 s66, s64, 0x10000
        s_add_u32 s67, s64, 0x18000""".replace("OBASE", "0x18000" if self.opt.get("w2late", 0) else "0").replace("STG", "0" if self.opt.get("w2late", 0) else "0x14000"))
        if self.opt.get("rbar", 1):
            a("s_barrier")
        self.diag_delay("d_red")
        if redat >= 0:
            lab = a.newlabel("LATE")
            a("s_waitcnt vmcnt(%d)\ns_cmp_ge_u32 s3, 4\ns_cbranch_scc1 %s\ns_waitcnt vmcnt(0)" % (redat, lab))
            self.diag_delay("d_old")
            a.label(lab)
            issue()
            a("s_waitcnt vmcnt(4)")
            self.markcheck(PQ, 32, 12)
            ok = a.newlabel("PQOK")
            a("v_cmp_ne_u32 vcc, 0, v12\ns_cbranch_vccz " + ok)
            self.poll(pqload, lambda: self.markcheck(PQ, 32, 12), 12)
            a.label(ok)
            self.stamp()
        self.poll(issue, lambda: self.markcheck(RD, 16, 12), 12, first_issued=redat >= 0)
        self.stamp()
        accs = [AC, AC + 16, RD, RD + 16]

        def sel(i):
            pi, h = i >> 1, i & 1
            b = RD + 8 * pi
            for j in range(4):
                x, y = (b + j, b + 4 + j) if h == 0 else (b + 4 + j, b + j)
                a("v_cndmask_b32 v%d, v%d, v%d, s[10:11]" % (OP + 4 * i + j, x, y))

        def mf(i, mb, d):
            return "%s %s, %s, %s, 0" % (M32, v(d, 16), v(OP + 4 * i, 4), v(PQ + 4 * (i * 2 + mb), 4))

        def post(i, mb, d):
            pi, h = i >> 1, i & 1
            num, den = (d, d + 8) if h == 0 else (d + 8, d)
            L = ["v_add_f32 v%d, s58, v%d" % (den, den), "v_rcp_f32 v%d, v%d" % (den, den)]
            for j in range(0, 8, 2):
                L.append("v_pk_mul_f32 %s, %s, %s op_sel_hi:[1,0]" % (v(num + j, 2), v(num + j, 2), v(den, 2)))
            for j in range(4):
                L.append("v_cvt_pk_bf16_f32 v%d, v%d, v%d" % (den + 4 + j, num + 2 * j, num + 2 * j + 1))
            L.append("ds_write_b128 v13, %s offset:%d" % (v(den + 4, 4), mb * 32768 + i * 1024))
            return L

        sel(0)
        sel(1)
        a(mf(0, 0, accs[0]))
        sel(2)
        a(mf(1, 0, accs[1]))
        sel(3)
        a(mf(2, 0, accs[2]))
        a(mf(3, 0, accs[3]))
        P = [post(i, 0, accs[i]) for i in range(4)]
        for x in P[0][:2]:
            a(x)
        for i in range(4):
            if i < 3:
                for x in P[i + 1][:2]:
                    a(x)
            for x in P[i][2:]:
                a(x)
        acc1 = [RD, RD + 16, AC + 16, RD]
        a(mf(0, 1, acc1[0]))
        a(mf(1, 1, acc1[1]))
        a("s_waitcnt lgkmcnt(0)\ns_barrier")
        self.stamp()
        a("s_cmp_ge_u32 s3, 4\ns_cbranch_scc1 OUT_GEMM")
        n0 = self.nst
        a(mf(2, 1, acc1[2]))
        a(mf(3, 1, AC))
        a.unpk = bool(self.opt.get("upf", 1))
        P = [post(i, 1, acc1[i] if i < 3 else AC) for i in range(4)]
        for x in P[0][:2]:
            a(x)
        for i in range(4):
            if i < 3:
                for x in P[i + 1][:2]:
                    a(x)
            for x in P[i][2:]:
                a(x)
        a.unpk = False
        a("s_waitcnt lgkmcnt(0)\ns_barrier")
        lab = a.newlabel("NOEP")
        a("s_or_b32 s56, s4, s3\ns_or_b32 s56, s56, s5\ns_cbranch_scc1 " + lab)
        self.poll(lambda: a("buffer_load_dwordx2 v[6:7], off, %s, 0 offset:%d sc1" % (ws, WS_NOTE)),
                  lambda: a("v_xor_b32 v12, s6, v6\nv_bitop3_b32 v12, v12, v7, s7 bitop3:0xf6"), 12)
        a("v_mov_b32 v6, s8\nv_mov_b32 v7, s9\ns_mov_b64 exec, 1")
        a("buffer_store_dwordx2 v[6:7], off, %s, 0 offset:%d" % (ws, WS_EP))
        a("s_mov_b64 exec, -1")
        a.label(lab)
        self.end()
        self.nst = n0
        a.label("OUT_GEMM")
        if self.opt.get("oprio", 1):
            a("s_setprio %d" % self.opt.get("oprio", 1))
        fl = self.opt.get("outflag", "sc1")
        out = s(self.rOUT, 4)
        frags, mfl = {}, []
        pool = [PQ + 8 * i for i in range(4)] + [PQ + 4, PQ + 12]

        def b11b():
            assert not self.fq
            self.lds_wait(self.last_fill_lds)
            a("s_barrier")

        AC2 = OP
        for mb in range(2):
            d = v(AC2 if mb else AC, 16)
            for h in range(32):
                frags[(mb, h)] = (["ds_read_b128 {r}, v%d offset:%d" % (4 + (h >> 3), mb * 32768 + (h & 7) * 1024)],
                                  b11b if (mb, h) == (1, 0) else None)
                mfl.append(("%s %s, %s, {0}, %s" % (M32, d, v(WO + 4 * h, 4), d if h else "0"), [(mb, h)]))
                if mb == 0 and h == 0:
                    mfl.append((mf(2, 1, acc1[2]), []))
                if mb == 0 and h == self.opt.get("oh3", 8):
                    mfl.append((mf(3, 1, acc1[3]), []))

        def epi(mb, d, t):
            L = ["v_cvt_pk_bf16_f32 v%d, v%d, v%d" % (t + j, d + 2 * j, d + 2 * j + 1) for j in range(8)]
            L += ["ds_write_b128 v10, %s offset:%d" % (v(t, 4), mb * 2048), "ds_write_b128 v14, %s offset:%d" % (v(t + 4, 4), mb * 2048),
                  "ds_read_b128 %s, v15 offset:%d" % (v(t + 8, 4), mb * 2048), "ds_read_b128 %s, v15 offset:%d" % (v(t + 12, 4), mb * 2048 + 1024)]
            L2 = ["WAITLDS 1", "buffer_store_dwordx4 %s, v3, %s, s%d offen %s" % (v(t + 8, 4), out, 64 + 2 * mb, fl),
                  "WAITLDS 0", "buffer_store_dwordx4 %s, v3, %s, s%d offen %s" % (v(t + 12, 4), out, 65 + 2 * mb, fl)]
            return L, L2

        e0, e0b = epi(0, AC, RD)
        fillers = {0: post(0, 1, acc1[0]) + post(1, 1, acc1[1]), 7: post(2, 1, acc1[2]), self.opt.get("oh3", 8) + 6: post(3, 1, acc1[3]), 36: e0, 46: e0b}
        self.lds_reset()
        rest = self.run_mfmas(mfl, frags, pool, fillers, maxread=1, budget=self.opt.get("obud", 16))
        assert not rest
        e1, e1b = epi(1, AC2, RD + 16)
        for x in e1 + e1b:
            self.emit_filler(x)
        self.end()

    def role_b(self):
        a = self.a
        a.label("ROLE_B")
        a.unpk = bool(self.opt.get("unpk", 2) & 1)
        self.role = "B"
        ws = s(self.rWS, 4)
        XW, SW, XW3 = 0, 3, 1
        if self.opt.get("walk", 0) & 2:
            a("s_mov_b64 exec, 0")
            for w in range(1, 7):
                a("s_cmp_eq_u32 s3, %d\ns_cbranch_scc1 WKB%d" % (w, w - 1))
            a("s_cmp_eq_u32 s3, 7\ns_cbranch_scc1 WKC0")
            a.label("WRET_C")
            a("s_cmp_lt_u32 s5, 24\ns_cbranch_scc1 WRET_A" if self.opt.get("walk", 0) & 1 else "s_nop 0")
            a.label("WRET_B")
            a("s_mov_b64 exec, -1\ns_waitcnt lgkmcnt(0)\ns_nop 15")
        a(self.KARG)
        a("s_waitcnt lgkmcnt(0)")
        a("s_load_dwordx2 s[8:9], s[32:33], %d" % WS_EP)
        self.srd(self.rWS, self.pWS, WS_SIZE)
        a("""v_lshrrev_b32 v4, 5, v1
        v_and_b32 v5, 31, v1
        v_lshlrev_b32 v6, 4, v5
        v_lshl_add_u32 v3, s3, 3, v4
        v_xor_b32 v3, s60, v3
        v_lshl_add_u32 v3, v3, 9, v6
        v_lshl_add_u32 v11, v4, 3, s3
        v_xor_b32 v8, s60, v11
        v_lshl_add_u32 v11, v11, 15, v6
        v_lshl_add_u32 v11, v8, 9, v11
        s_lshl_b32 s66, s60, 15
        s_add_u32 s66, s66, 0x%x
        s_mov_b32 s13, 0x%x
        v_mov_b32 v14, 0xfffefffe""" % (WS_X1, WS_X1))
        a("""s_lshl_b32 s67, s4, 10
        s_add_u32 s67, s67, 0x%x
        v_and_b32 v12, 15, v1
        v_lshrrev_b32 v13, 4, v1
        s_xor_b32 s71, s61, 7
        s_xor_b32 s62, s3, %d
        s_or_b32 s71, s71, s62""" % (WS_X2S, SW))
        a("""s_bitcmp1_b32 s61, 0
        s_cselect_b64 s[48:49], s[26:27], s[24:25]
        s_cselect_b64 s[52:53], s[24:25], s[26:27]
        s_cselect_b32 s34, 0x8000, 0
        s_mov_b32 s50, 0x%x
        s_mov_b32 s51, 0x20000
        s_mov_b32 s54, 0x%x
        s_mov_b32 s55, 0x20000
        s_add_u32 s34, s34, s70
        s_add_u32 s34, s34, %d
        s_xor_b32 s35, s34, 0x8000""" % (2048 * 514, 2048 * 514, WB))
        self.srd(self.rOUT, self.pOUT, 2048 * 2048)

        CS, TW0, TWX, F16 = 16, 40, 48, 56
        RA = 64
        T = 144
        a("""v_cvt_f32_u32 v16, v5
        s_bfe_u32 s62, s3, 0x10001
        s_and_b32 s63, s3, 1
        s_lshl2_add_u32 s62, s62, s63
        s_lshl_b32 s62, s62, 7
        s_add_u32 s62, s62, s60
        v_lshl_add_u32 v17, v4, 8, s62
        v_cvt_f32_u32 v17, v17
        v_mul_f32 v17, v17, v16
        s_lshr_b32 s62, s3, 2
        v_xor_b32 v18, s62, v1
        v_lshlrev_b32 v18, 31, v18
        v_or_b32 v18, %s, v18
        v_fmamk_f32 v17, v17, %s, v18
        v_fmamk_f32 v18, v16, %s, v17
        s_lshl_b32 s62, s62, 31
        v_cos_f32 v20, v17
        v_sin_f32 v21, v17
        v_cos_f32 v22, v18
        v_sin_f32 v23, v18
        s_lshr_b32 s64, s3, 1
        s_lshl_b32 s64, s64, 10
        s_lshl3_add_u32 s64, s63, s64
        s_add_u32 s64, s64, %d
        v_add_u32 v15, s64, v2""" % (fhex(0.125), fhex(1 / 2048), fhex(1 / 32), RAB))
        a("""v_cvt_pk_bf16_f32 v24, v20, v21
        v_cvt_pk_bf16_f32 v25, v22, v23
        v_cvt_pk_bf16_f32 v26, -v21, v20
        v_cvt_pk_bf16_f32 v27, -v23, v22
        v_xor_b32 v24, s62, v24
        v_xor_b32 v25, s62, v25
        v_xor_b32 v26, s62, v26
        v_xor_b32 v27, s62, v27
        ds_write_b64 v15, v[24:25]
        ds_write_b64 v15, v[26:27] offset:4096""")
        self.ra_inv(0, 136)
        a("s_lshl_b32 s14, s60, 9\ns_add_u32 s14, s14, 0x%x\ns_and_b32 s63, s3, 1" % (WS_X1 + 64 * 32768))
        FA = 128
        a("""v_bfe_u32 v16, v1, 3, 2
        s_lshl_b32 s62, s4, 2
        v_add_u32 v17, s62, v16
        v_lshl_add_u32 v17, v4, 5, v17
        v_mul_u32_u24 v17, 514, v17
        v_and_b32 v17, -16, v17
        v_sub_u32 v16, v1, v16
        v_and_b32 v18, 7, v16
        v_xor_b32 v19, 4, v18
        v_cmp_gt_u32 s[68:69], 5, v18
        v_cmp_gt_u32 s[58:59], 5, v19
        v_lshl_add_u32 v128, v18, 4, v17
        v_lshl_add_u32 v129, v19, 4, v17""")
        a("""v_lshl_add_u32 v7, v1, 3, s70
        s_lshr_b32 s62, s3, 1
        s_lshl_b32 s62, s62, 13
        s_lshl3_add_u32 s62, s63, s62
        s_add_u32 s62, s62, %d
        v_lshlrev_b32 v8, 11, v13
        v_lshl_add_u32 v8, v12, 4, v8
        v_add_u32 v8, s62, v8
        v_lshl_add_u32 v10, s3, 5, v5
        v_lshlrev_b32 v130, 13, v4
        v_add_u32 v130, %d, v130
        v_lshl_add_u32 v9, v10, 4, v130
        v_sub_u32 v10, 0, v10
        v_and_b32 v10, 0x1ff, v10
        v_lshl_add_u32 v10, v10, 4, v130
        v_add_u32 v131, %d, v2
        s_mul_i32 s62, s3, %d
        s_lshl_b32 s63, s61, 6
        s_add_u32 s62, s62, s63
        s_add_u32 s63, s62, %d
        s_add_u32 s64, s62, %d
        s_add_u32 s65, s62, %d
        s_waitcnt lgkmcnt(0)""" % (ZB, ZB, TB, 8 * 32 * 514, 64 * 514 - 1024, 128 * 514 - 2048, 192 * 514 - 3072))
        self.tags()

        def tab(reg, q, n):
            for i in range(n):
                a("ds_read_b128 %s, v131 offset:%d" % (v(reg + 4 * i, 4), (q + i) * 1024))

        fdp = [int(x) for x in str(self.opt.get("fdp", "0404"))[-4:].rjust(4, "0")]
        fdn = [0]

        def fnext(n=1):
            for _ in range(n):
                fdma(fdn[0] >> 2, fdn[0] & 3)
                fdn[0] += 1

        def fdma(second, q):
            a("s_mov_b64 exec, %s\ns_mov_b32 m0, s%d\nbuffer_load_dwordx4 v%d, %s, s%d offen offset:%d NT lds\ns_mov_b64 exec, -1".replace("NT", "nt" if self.opt.get("ntf", 2) >> second & 1 else "") % (
                "s[58:59]" if q >> 1 else "s[68:69]", 35 if second else 34, FA + (q >> 1), s(52 if second else 48, 4), 62 + q, q * 1024),
              at=60 + self.opt.get("fgap", 170) * (fdn[0] - fdp[0]))

        ls = self.opt.get("ls", 0)
        msc = self.opt.get("msc", 10) / 10.0
        a("s_waitcnt vmcnt(%d)\ns_barrier" % 4)
        XF, T1, U = T, T + 16, T + 48
        early = self.opt.get("cearly", 6)
        tab(CS, TQ_CS, early)
        nb = 0
        bpf = self.opt.get("bpf", 0)
        if bpf:
            a("""s_lshl3_add_u32 s15, s61, s3
            s_lshl_b32 s15, s15, 2
            s_lshl_b32 s56, s4, 2
            s_xor_b32 s56, s56, s4
            s_andn2_b32 s56, 4, s56
            s_lshl_b32 s56, s56, 6
            s_add_u32 s15, s15, s56
            s_mul_i32 s15, s15, 3072
            s_and_b32 s56, s4, 1
            s_lshl_b32 s56, s56, 9
            s_add_u32 s15, s15, s56
            v_mul_u32_u24 v124, 0xc00, v13
            v_bfe_u32 v125, v1, 2, 2
            v_lshl_add_u32 v124, v125, 10, v124
            v_and_b32 v125, 3, v1
            v_lshl_add_u32 v124, v125, 7, v124
            s_mov_b64 s[44:45], s[18:19]
            s_mov_b32 s46, 0x180000""")

        def dobpf():
            a("""s_mov_b32 exec_lo, 0x0fff0fff
            s_mov_b32 exec_hi, 0x0fff0fff
            buffer_load_dword v126, v124, s[44:47], s15 offen
            s_mov_b64 exec, -1""")
        if bpf == 1:
            dobpf()
            nb = 1
        fnext(fdp[0])
        a("s_waitcnt vmcnt(%d)" % (fdp[0] + nb))
        self.stamp()
        a.label("WB_0")
        pre = ["ds_read_b128 %s, v131" % v(CS + 4 * i, 4) for i in range(early)]
        a.capture(ls & 1)
        for q in range(4):
            a("ds_read_b64_tr_b16 %s, v7 offset:%d" % (v(XF + 4 * q, 2), q * 1024))
            a("ds_read_b64_tr_b16 %s, v7 offset:%d" % (v(XF + 4 * q + 2, 2), q * 1024 + 512))
        tab(CS + 4 * early, TQ_CS + early, 12 - early)
        if bpf == 2:
            dobpf()
        a("s_mov_b32 s22, 0x80000\ns_mov_b32 s23, 0x20000\ns_lshl3_add_u32 s15, s60, s3\ns_lshl_b32 s15, s15, 10\nbuffer_load_dwordx4 v[116:119], v2, s[20:23], s15 offen" if self.opt.get("wopf", 1) else "s_nop 0", at=56)
        sp1 = [(fdp[1] + 3 - i) // 4 for i in range(4)]
        fnext(sp1[0])

        def stage_cs(re, im, out, conj):
            S, N = (CS + 16, CS + 8) if conj else (CS + 8, CS + 16)
            for tau in range(2):
                a("%s %s, %s, %s, 0" % (M16, v(out + 4 * tau, 4), v(re, 4), v(CS + 4 * tau, 4)))
                a("%s %s, %s, %s, 0" % (M16, v(out + 8 + 4 * tau, 4), v(im, 4), v(CS + 4 * tau, 4)))
                a("%s %s, %s, %s, %s" % (M16, v(out + 4 * tau, 4), v(im, 4), v(S + 4 * tau, 4), v(out + 4 * tau, 4)))
                a("%s %s, %s, %s, %s" % (M16, v(out + 8 + 4 * tau, 4), v(re, 4), v(N + 4 * tau, 4), v(out + 8 + 4 * tau, 4)))

        def twiddle(t, tws, tmp, conj):
            for tau in range(2):
                for j in (0, 2):
                    re, im = t + 4 * tau + j, t + 8 + 4 * tau + j
                    sn_ = tws[tau] + 4 + j
                    k = tmp + 8 * tau + 2 * j
                    a("v_pk_mul_f32 %s, %s, %s" % (v(k, 2), v(im, 2), v(sn_, 2)))
                    a("v_pk_mul_f32 %s, %s, %s" % (v(k + 2, 2), v(re, 2), v(sn_, 2)))
            ng = " neg_lo:[0,0,1] neg_hi:[0,0,1]"
            for tau in range(2):
                for j in (0, 2):
                    re, im = t + 4 * tau + j, t + 8 + 4 * tau + j
                    c = tws[tau] + j
                    k = tmp + 8 * tau + 2 * j
                    a("v_pk_fma_f32 %s, %s, %s, %s%s" % (v(re, 2), v(re, 2), v(c, 2), v(k, 2), ng if conj else ""))
                    a("v_pk_fma_f32 %s, %s, %s, %s%s" % (v(im, 2), v(im, 2), v(c, 2), v(k + 2, 2), "" if conj else ng))

        a("s_waitcnt lgkmcnt(%d)" % (16 - early))
        stage_cs(XF, XF + 4, T1, False)
        a("s_waitcnt lgkmcnt(%d)" % (12 - early))
        stage_cs(XF + 8, XF + 12, T1 + 16, False)
        fnext(sp1[1])
        a("s_waitcnt lgkmcnt(0)")
        tab(RA, 24, 8)
        for m in range(2):
            t = T1 + 16 * m
            twiddle(t, [TW0, TWX], T + 64 + 16 * m, False)
            for tau in range(2):
                u = U + 8 * m + 4 * tau
                self.cvt(u, v(t + 4 * tau), v(t + 4 * tau + 1))
                self.cvt(u + 1, v(t + 4 * tau + 2), v(t + 4 * tau + 3))
                self.cvt(u + 2, v(t + 8 + 4 * tau), v(t + 8 + 4 * tau + 1))
                self.cvt(u + 3, v(t + 8 + 4 * tau + 2), v(t + 8 + 4 * tau + 3))
            for tau in range(2):
                u = U + 8 * m + 4 * tau
                a("%s %s, %s, %s, 0" % (M16, v(t + 4 * tau, 4), v(F16, 4), v(u, 4)))
                a("%s %s, %s, %s, 0" % (M16, v(t + 8 + 4 * tau, 4), v(F16 + 4, 4), v(u, 4)))
            fnext(sp1[2 + m])
        fd = 2 if fdp[3] == 0 else 1
        ZW = T + 96
        for i in range(8):
            self.cvt(ZW + 2 * i, v(T1 + i), v(T1 + 8 + i))
        for i in range(8):
            self.cvt(ZW + 2 * i + 1, v(T1 + 16 + i), v(T1 + 24 + i))
            a("ds_write_b64 v8, %s offset:%d" % (v(ZW + 2 * i, 2), (i >> 2) * 256 + (i & 3) * 512))
        print("B1", a.flush(pre, mf_scale=msc))
        a("s_waitcnt lgkmcnt(0)\ns_barrier")
        self.stamp()
        for f in range(4):
            a("ds_read_b128 %s, v%d offset:%d" % (v(XF + 4 * f, 4), 9 + (f >> 1), (f & 1) * 16384))
        fnext(fdp[2])
        PC = T + 48

        def pieces(src, j, dst, mark=True):
            for h in range(2):
                self.cvt(dst + h, v(src + 4 * j + 2 * h), v(src + 4 * j + 2 * h + 1))
                self.cvt(dst + 2 + h, v(src + 16 + 4 * j + 2 * h), v(src + 16 + 4 * j + 2 * h + 1))
            if mark:
                for x in self.mark(dst, 14):
                    a(x)

        for f in range(4):
            a("s_waitcnt lgkmcnt(%d)" % (3 - f))
            for ri in range(2):
                d = v(T1 + 16 * ri, 16)
                a("%s %s, %s, %s, %s" % (M32, d, v(RA + 16 * ri + 4 * f, 4), v(XF + 4 * f, 4), d if f else "0"))
        XE, TE = T + 64, T + 80
        a("ds_write_b64 v142, v[140:141]")
        a("ds_read_b128 %s, v130 offset:4096\nds_read_b128 %s, v130 offset:%d" % (v(XE, 4), v(XE + 4, 4), 4096 + 16384))
        a("v_lshlrev_b32 v16, 1, v6\nv_lshl_add_u32 v16, v4, 4, v16")
        if fd == 2:
            a("s_waitcnt vmcnt(0)")
        for j in range(4):
            pieces(T1, j, PC + 4 * j)
            a("buffer_store_dwordx4 %s, v11, %s, s13 offen sc1" % (v(PC + 4 * j, 4), ws))
            if j < 3:
                a("v_xor_b32 v11, 0x%x, v11" % ((j ^ (j + 1)) * 0x82000))
        a("s_waitcnt lgkmcnt(0)")
        lab = a.newlabel("NOX")
        a("s_cmp_lg_u32 s3, %d\ns_cbranch_scc1 %s" % (XW, lab))
        for f in range(4):
            for ri in range(2):
                d = v(TE + 16 * ri, 16)
                a("%s %s, %s, %s, %s" % (M32, d, v(RA + 16 * ri + 4 * f, 4), v(XE + 4 * (f & 1), 4), d if f else "0"))
        for j in range(4):
            a("s_mov_b32 exec_lo, %d\ns_mov_b32 exec_hi, %d" % (1 << j, 1 << j))
            pieces(TE, j, XE + 8, False)
        a("s_mov_b32 exec_lo, 15\ns_mov_b32 exec_hi, 15")
        for x in self.mark(XE + 8, 14):
            a(x)
        a("buffer_store_dwordx4 %s, v16, %s, s14 offen sc1" % (v(XE + 8, 4), ws))
        a("s_mov_b64 exec, -1")
        a.label(lab)
        self.stamp()
        fnext(fdp[3])
        assert fdn[0] == 8

        F32 = 16
        FL = 48
        LD, LD2 = 96, 112
        FL2 = T + 64
        DAT, FR, TM = T, T + 32, T + 48
        tab(F32, TQ_F32, 4)
        tab(FR, TQ_OM, 4)
        a("""v_lshrrev_b32 v11, 2, v1
        v_xor_b32 v11, v11, v4
        v_lshlrev_b32 v129, 9, v11
        v_and_b32 v11, 3, v1
        v_lshl_add_u32 v129, v11, 4, v129
        s_lshl_b32 s62, s4, 4
        v_xor_b32 v129, s62, v129
        v_bfe_u32 v6, v1, 2, 3
        v_lshlrev_b32 v6, 12, v6
        v_lshl_add_u32 v6, v11, 4, v6
        s_and_b32 s62, s3, 1
        v_xor_b32 v11, s62, v4
        v_lshl_add_u32 v6, v11, 6, v6
        s_lshl_b32 s62, s3, 9
        s_add_u32 s62, s62, %d
        v_add_u32 v6, s62, v6
        v_xor_b32 v11, 0x400, v3
        v_xor_b32 v134, 0x800, v3
        v_xor_b32 v135, 0xc00, v3
        s_add_u32 s70, s70, %d
        v_and_b32 v132, 1, v13
        v_lshl_add_u32 v132, v13, 3, v132
        v_bfe_u32 v133, v1, 3, 1
        v_lshl_add_u32 v132, v133, 1, v132
        v_lshlrev_b32 v132, 6, v132
        v_and_b32 v133, 3, v1
        v_lshl_add_u32 v132, v133, 4, v132
        v_bfe_u32 v133, v1, 2, 1
        v_lshl_add_u32 v132, v133, 3, v132
        v_add_u32 v132, s70, v132
        v_xor_b32 v133, 64, v132""" % (ZB, ZB))
        MB = [3, 11, 134, 135]

        def faddr(dst, kk, t1, t2):
            a("""v_and_b32 v{t2}, 3, v12
            s_lshl_b32 s15, s4, 2
            v_add_u32 v{t1}, s15, v{t2}
            v_and_b32 v{t1}, 7, v{t1}
            v_add_lshl_u32 v{t1}, v{t1}, v{kk}, 1
            v_lshl_add_u32 v{t1}, v{t2}, 4, v{t1}
            v_lshl_add_u32 v{t1}, v13, 6, v{t1}
            v_and_b32 v{t1}, 0x7f, v{t1}
            v_lshl_add_u32 v{t1}, v{t2}, 7, v{t1}
            v_lshl_add_u32 v{t1}, v13, 11, v{t1}
            v_add_u32 v{dst}, {wb}, v{t1}""".format(dst=dst, kk=kk, t1=t1, t2=t2, wb=WB))

        a("v_lshrrev_b32 v%d, 2, v12\nv_lshl_add_u32 v%d, s3, 2, v%d" % (LD, LD, LD))
        faddr(128, LD, LD + 1, LD + 2)
        a("""v_lshl_add_u32 v15, s3, 2, v13
        v_and_b32 v5, 7, v12
        v_xor_b32 v15, v15, v5
        v_lshlrev_b32 v15, 4, v15
        v_lshl_add_u32 v15, v12, 10, v15
        s_and_b32 s63, s3, 1
        s_lshl_b32 s64, s63, 6
        v_xor_b32 v7, s64, v2
        s_lshl_b32 s64, s3, 12
        v_add_u32 v7, s64, v7
        v_xor_b32 v136, 16, v7
        v_xor_b32 v137, 32, v7
        v_xor_b32 v138, 48, v7
        s_mov_b32 s64, 0x80008000
        s_waitcnt lgkmcnt(0)""")
        for i in range(16):
            a(("v_xor_b32 v%d, s64, v%d" if i & 1 else "v_mov_b32 v%d, v%d") % (F32 + 16 + i, F32 + i))
        if fd != 2:
            a("s_waitcnt vmcnt(0)")
        a("s_barrier")
        self.stamp()

        def fread(addr):
            for arr in range(2):
                for pm in range(2):
                    for t in range(8):
                        a("ds_read_u16_d16_hi v%d, v%d offset:%d" % (DAT + 16 * arr + 8 * pm + t, addr, arr * 32768 + pm * 16384 + (t >> 2) * 8192 + (t & 3) * 512))

        def filt(dst, raw, both=True):
            for j in range(0, 8, 2):
                a("v_pk_add_f32 %s, %s, %s" % (v(dst + j, 2), v(raw + j, 2), v(raw + 8 + j, 2)))
                a("v_pk_add_f32 %s, %s, %s" % (v(dst + 8 + j, 2), v(raw + 16 + j, 2), v(raw + 24 + j, 2)))
                a("v_pk_add_f32 %s, %s, %s neg_lo:[0,1] neg_hi:[0,1]" % (v(raw + j, 2), v(raw + j, 2), v(raw + 8 + j, 2)))
                a("v_pk_add_f32 %s, %s, %s neg_lo:[0,1] neg_hi:[0,1]" % (v(raw + 16 + j, 2), v(raw + 16 + j, 2), v(raw + 24 + j, 2)))
            ng = " neg_lo:[0,0,1] neg_hi:[0,0,1]"
            for j in range(0, 8, 2):
                dr, di, c, sn_ = v(raw + j, 2), v(raw + 16 + j, 2), v(FR + j, 2), v(FR + 8 + j, 2)
                t1, t2 = v(raw + 8 + j, 2), v(raw + 24 + j, 2)
                a("v_pk_mul_f32 %s, %s, %s" % (t1, di, sn_))
                a("v_pk_mul_f32 %s, %s, %s" % (t2, dr, sn_))
                a("v_pk_fma_f32 %s, %s, %s, %s" % (v(dst + 16 + j, 2), dr, c, t1))
                a("v_pk_fma_f32 %s, %s, %s, %s%s" % (v(dst + 24 + j, 2), di, c, t2, ng))
                if both:
                    a("v_pk_fma_f32 %s, %s, %s, %s%s" % (v(dst + 32 + j, 2), dr, c, t1, ng))
                    a("v_pk_fma_f32 %s, %s, %s, %s" % (v(dst + 40 + j, 2), di, c, t2))

        VS = 139

        sentinel = lambda base: self.markcheck(base, 16, VS)

        def x1load(special):
            for i in range(4):
                a("buffer_load_dwordx4 %s, v%d, %s, s%d offen sc1" % (v((LD2 if special else LD) + 4 * i, 4), 129 if special else MB[i], ws, 56 + i if special else 66))

        def x1first():
            lab = a.newlabel("NOSP")
            a("s_cmp_lg_u32 s71, 0\ns_cbranch_scc1 " + lab)
            for i in range(4):
                a("s_mov_b32 s%d, 0x%x" % (56 + i, WS_X1 + 64 * 32768 + 0x2000 * i))
            x1load(True)
            a.label(lab)
            x1load(False)

        x1l = self.opt.get("x1late", 2)
        if fd != 2 and x1l == 0:
            x1first()
        fread(128)
        a("s_waitcnt lgkmcnt(0)")
        if fd != 2 and x1l == 1:
            x1first()
        filt(FL, DAT)
        if fd != 2 and x1l == 2:
            x1first()
        if fd == 2:
            a("s_waitcnt vmcnt(0)")
            self.diag_delay("d_x1")
            x1first()
        self.stamp()

        def hintx(pos):
            if self.opt.get("go", 4) == pos:
                lab = a.newlabel("NOH")
                a("s_cmp_lg_u32 s3, 7\ns_cbranch_scc1 " + lab)
                a("""s_lshl_b32 s14, s60, 7
                s_add_u32 s14, s14, 0x%x
                v_mov_b32 v140, s6
                v_mov_b32 v141, s7
                v_lshlrev_b32 v142, 3, v12
                buffer_store_dwordx2 v[140:141], v142, %s, s14 offen sc1""" % (WS_GO, ws))
                a.label(lab)

        def b2(fl, special):
            FR2, OUT, PO = T + 64, LD, T + 96
            a.capture(ls & 2)
            for p in range(2):
                for f in range(2):
                    for h in range(2):
                        a("ds_read_b64_tr_b16 %s, v%d offset:%d" % (v(FR + 8 * p + 4 * f + 2 * h, 2), 132 + p, f * 2048 + h * 256))
            for tau in range(2):
                for p in range(2):
                    for f in range(2):
                        if tau == 0:
                            a("s_waitcnt lgkmcnt(%d)" % (6 - 4 * p - 2 * f))
                        for ri in range(2):
                            d = v(DAT + 16 * p + 8 * ri + 4 * tau, 4)
                            a("%s %s, %s, %s, %s" % (M16, d, v(F32 + ((tau * 2 + ri) * 2 + f) * 4, 4), v(FR + 8 * p + 4 * f, 4), d if f else "0"))
            n1_ = " neg_lo:[1,0,0] neg_hi:[1,0,0]"

            for j in range(0, 8, 2):
                Er, Ei, Or, Oi = [v(DAT + 8 * k + j, 2) for k in range(4)]
                Ar, Ai, B1r, B1i, B2r, B2i = [v(fl + 8 * k + j, 2) for k in range(6)]
                k = (TM, TM + 8, T + 80, T + 88)[j >> 1]
                Pr, Pi, Qr, Qi = [v(k + 2 * i, 2) for i in range(4)]
                a("v_pk_mul_f32 %s, %s, %s" % (Pr, Ar, Er))
                a("v_pk_mul_f32 %s, %s, %s" % (Pi, Ar, Ei))
                a("v_pk_mul_f32 %s, %s, %s" % (Qr, B2r, Er))
                a("v_pk_mul_f32 %s, %s, %s" % (Qi, B2r, Ei))
                a("v_pk_fma_f32 %s, %s, %s, %s%s" % (Pr, Ai, Ei, Pr, n1_))
                a("v_pk_fma_f32 %s, %s, %s, %s" % (Pi, Ai, Er, Pi))
                a("v_pk_fma_f32 %s, %s, %s, %s%s" % (Qr, B2i, Ei, Qr, n1_))
                a("v_pk_fma_f32 %s, %s, %s, %s" % (Qi, B2i, Er, Qi))
                a("v_pk_fma_f32 %s, %s, %s, %s" % (Pr, B1r, Or, Pr))
                a("v_pk_fma_f32 %s, %s, %s, %s" % (Pi, B1r, Oi, Pi))
                a("v_pk_fma_f32 %s, %s, %s, %s" % (Qr, Ar, Or, Qr))
                a("v_pk_fma_f32 %s, %s, %s, %s" % (Qi, Ar, Oi, Qi))
                a("v_pk_fma_f32 %s, %s, %s, %s%s" % (Pr, B1i, Oi, Pr, n1_))
                a("v_pk_fma_f32 %s, %s, %s, %s" % (Pi, B1i, Or, Pi))
                a("v_pk_fma_f32 %s, %s, %s, %s%s" % (Qr, Ai, Oi, Qr, n1_))
                a("v_pk_fma_f32 %s, %s, %s, %s" % (Qi, Ai, Or, Qi))
                for e in range(2):
                    self.cvt(FR2 + j + e, v(k + e), "-" + v(k + 2 + e))
                    self.cvt(FR2 + 8 + j + e, v(k + 4 + e), "-" + v(k + 6 + e))
            for f in range(2):
                for p in range(2):
                    for tau in range(2):
                        for ri in range(2):
                            d = v(OUT + 16 * p + 8 * ri + 4 * tau, 4)
                            a("%s %s, %s, %s, %s" % (M16, d, v(FR2 + 8 * p + 4 * f, 4), v(F32 + ((tau * 2 + ri) * 2 + f) * 4, 4), d if f else "0"))
            for p in range(2):
                for tau in range(2):
                    o = PO + 8 * p + 4 * tau
                    for r in range(4):
                        self.cvt(o + r, v(OUT + 16 * p + 4 * tau + r), "-" + v(OUT + 16 * p + 8 + 4 * tau + r))
                    for x in self.mark(o, 14):
                        a(x)
                    a("ds_write_b128 v15, %s offset:%d" % (v(o, 4), tau * 16384 + p * 512))
            print("B2", a.flush(mf_scale=msc))

        lab = a.newlabel("NOSP")
        a("s_cmp_lg_u32 s71, 0\ns_cbranch_scc1 " + lab)
        a("v_mov_b32 v%d, 32" % TM)
        faddr(128, TM, TM + 1, TM + 2)
        fread(128)
        a("""v_lshlrev_b32 v{t}, 29, v1
        v_and_b32 v{t}, 0x80000000, v{t}
        v_and_b32 v{u}, 3, v1
        v_lshlrev_b32 v{u}, 4, v{u}
        v_xor_b32 v128, v132, v{u}
        v_and_b32 v{u}, 1, v1
        v_lshlrev_b32 v{u}, 6, v{u}
        v_xor_b32 v128, v128, v{u}
        v_subrev_u32 v128, s70, v128
        v_add_u32 v128, {sp}, v128
        v_add_u32 v5, {sp}, v2""".format(t=TM, u=TM + 1, sp=RAB + 4096))
        for j in range(8):
            a("v_xor_b32 v%d, v%d, v%d" % (FR + 8 + j, TM, FR + 8 + j))
        a("s_waitcnt lgkmcnt(0)")
        filt(FL2, DAT, False)
        a.label(lab)
        self.poll(lambda: x1load(False), lambda: sentinel(LD), VS, first_issued=True)
        if not self.opt.get("st4"):
            self.stamp()
        for i in range(4):
            a("ds_write_b128 v6, %s offset:%d" % (v(LD + 4 * i, 4), i * 128))
        a("s_waitcnt lgkmcnt(0)\ns_barrier")
        if self.opt.get("st4"):
            self.stamp()
        lab = a.newlabel("NOSP")
        a("s_cmp_lg_u32 s71, 0\ns_cbranch_scc1 " + lab)
        self.poll(lambda: x1load(True), lambda: sentinel(LD2), VS, first_issued=True)
        self.flip_marks()
        for i in range(4):
            a("ds_write_b128 v5, %s offset:%d" % (v(LD2 + 4 * i, 4), i * 1024))
        for f in range(2):
            for h in range(2):
                a("ds_read_b64_tr_b16 %s, v128 offset:%d" % (v(FR + 4 * f + 2 * h, 2), f * 2048 + h * 256))
        for f in range(2):
            a("s_waitcnt lgkmcnt(%d)" % (2 - 2 * f))
            for tau in range(2):
                for ri in range(2):
                    d = v(DAT + 8 * ri + 4 * tau, 4)
                    a("%s %s, %s, %s, %s" % (M16, d, v(F32 + ((tau * 2 + ri) * 2 + f) * 4, 4), v(FR + 4 * f, 4), d if f else "0"))
        for j in range(0, 8, 2):
            Xr, Xi, Ar, Ai = v(DAT + j, 2), v(DAT + 8 + j, 2), v(FL2 + j, 2), v(FL2 + 8 + j, 2)
            a("v_pk_mul_f32 %s, %s, %s" % (v(TM + j, 2), Ar, Xr))
            a("v_pk_mul_f32 %s, %s, %s" % (v(TM + 8 + j, 2), Ar, Xi))
            a("v_pk_fma_f32 %s, %s, %s, %s neg_lo:[1,0,0] neg_hi:[1,0,0]" % (v(TM + j, 2), Ai, Xi, v(TM + j, 2)))
            a("v_pk_fma_f32 %s, %s, %s, %s" % (v(TM + 8 + j, 2), Ai, Xr, v(TM + 8 + j, 2)))
        dpp = " row_ror:4 row_mask:0xf bank_mask:0xf"
        for k in range(2):
            for j in range(8):
                a("v_fmac_f32_dpp v%d, %sv%d, v%d%s" % (TM + j, "-" if k else "", DAT + 8 * k + j, FL2 + 16 + 8 * k + j, dpp))
                a("v_fmac_f32_dpp v%d, v%d, v%d%s" % (TM + 8 + j, DAT + 8 * (1 - k) + j, FL2 + 16 + 8 * k + j, dpp))
        for j in range(8):
            self.cvt(FR + j, v(TM + j), "-" + v(TM + 8 + j))
        for f in range(2):
            for tau in range(2):
                for ri in range(2):
                    d = v(DAT + 8 * ri + 4 * tau, 4)
                    a("%s %s, %s, %s, %s" % (M16, d, v(FR + 4 * f, 4), v(F32 + ((tau * 2 + ri) * 2 + f) * 4, 4), d if f else "0"))
        a("s_mov_b32 exec_hi, 0")
        for tau in range(2):
            o = FL2 + 4 * tau
            for r in range(4):
                self.cvt(o + r, v(DAT + 4 * tau + r), "-" + v(DAT + 8 + 4 * tau + r))
            for x in self.mark(o, 14):
                a(x)
            a("buffer_store_dwordx4 %s, v2, %s, s67 offen offset:%d sc1" % (v(o, 4), ws, tau * 512))
        a("s_mov_b32 exec_hi, -1")
        skip = a.newlabel("B2GO")
        a("s_branch " + skip)
        a.label(lab)
        self.flip_marks()
        a.label(skip)
        b2(FL, False)
        a("s_waitcnt lgkmcnt(0)")
        if self.opt.get("st4"):
            self.stamp()
        a("s_barrier")
        if not self.opt.get("st4"):
            self.stamp()
        hintx(4)
        ST = LD
        for i in range(4):
            a("ds_read_b128 %s, v%d offset:%d" % (v(ST + 4 * i, 4), 135 + i if i else 7, i * 1024))
        for i in range(4):
            a("s_waitcnt lgkmcnt(%d)" % (3 - i))
            a("buffer_store_dwordx4 %s, v%d, %s, s66 offen sc1" % (v(ST + 4 * i, 4), MB[i], ws))
        self.stamp()
        lab = a.newlabel("NONOTE")
        a("s_or_b32 s56, s60, s3\ns_cbranch_scc1 " + lab)
        a("v_mov_b32 v140, s6\nv_mov_b32 v141, s7\nv_lshlrev_b32 v142, 3, v12")
        a("buffer_store_dwordx2 v[140:141], v142, %s, 0 offen offset:%d sc1" % (ws, WS_NOTE))
        a.label(lab)
        a.label("WB_1")
        a("s_mov_b32 s34, 0")
        self.pad_stamps(9)

        a.label("B3_ENTRY")
        G16 = F16
        a("v_lshlrev_b32 v2, 4, v1\nv_add_u32 v131, %d, v2" % TB)
        tab(RA, 24, 4)
        tab(CS, TQ_CS, 8)
        tab(TWX, TQ_TW3, 4)
        a("""v_lshrrev_b32 v4, 5, v1
        v_and_b32 v5, 31, v1
        v_and_b32 v12, 15, v1
        v_lshrrev_b32 v13, 4, v1
        v_lshl_add_u32 v132, v4, 3, s3
        v_xor_b32 v8, s60, v132
        v_lshlrev_b32 v132, 15, v132
        v_lshl_add_u32 v132, v5, 4, v132
        v_lshl_add_u32 v132, v8, 9, v132
        v_xor_b32 v133, 0x82000, v132
        v_xor_b32 v134, 0x104000, v132
        v_xor_b32 v135, 0x186000, v132
        v_lshl_add_u32 v10, s3, 5, v5
        v_lshlrev_b32 v130, 13, v4
        v_add_u32 v130, %d, v130
        v_lshl_add_u32 v9, v10, 4, v130
        v_sub_u32 v10, 0, v10
        v_and_b32 v10, 0x1ff, v10
        v_lshl_add_u32 v10, v10, 4, v130
        s_lshr_b32 s63, s3, 2
        s_lshl_b32 s63, s63, 13
        s_and_b32 s64, s3, 3
        s_lshl2_add_u32 s63, s64, s63
        s_add_u32 s63, s63, %d
        v_lshlrev_b32 v8, 11, v13
        v_lshl_add_u32 v8, v12, 4, v8
        v_add_u32 v8, s63, v8
        s_lshl_b32 s63, s3, 11
        s_add_u32 s63, s63, %d
        v_bfe_u32 v5, v1, 2, 1
        v_lshlrev_b32 v5, 1, v5
        v_xor_b32 v5, v5, v13
        v_lshlrev_b32 v5, 3, v5
        v_lshl_add_u32 v5, v12, 5, v5
        v_add_u32 v5, s63, v5
        v_bfe_u32 v6, v1, 3, 1
        v_lshlrev_b32 v6, 4, v6
        v_xor_b32 v6, v6, v2
        v_add_u32 v6, s63, v6
        s_lshl_b32 s64, s3, 6
        s_add_u32 s64, s64, s60
        s_add_u32 s64, s64, s34
        s_lshl_b32 s64, s64, 11
        s_add_u32 s66, s64, 0x200000
        s_mov_b32 s56, 0.5
        s_mov_b32 s57, 0.5
        s_cmp_eq_u32 s3, 0
        s_cselect_b32 s68, -2, -1
        s_mov_b32 s69, s68
        s_lshr_b32 s63, s60, 5
        s_and_b32 s65, s60, 1
        s_lshl1_add_u32 s63, s63, s65
        s_bfe_u32 s65, s60, 0x40001
        s_lshl4_add_u32 s63, s63, s65
        v_and_b32 v11, 7, v1
        v_xor_b32 v11, s63, v11
        v_lshlrev_b32 v11, 4, v11
        v_lshl_add_u32 v11, v4, 10, v11
        s_mov_b32 s63, 0x%x
        s_mov_b32 s65, 0x%x""" % (ZB, ZB, WB, WS_X2S, WS_X2S + 4096))
        lab = a.newlabel("NOGO")
        a("s_cmp_eq_u32 s34, 0\ns_cbranch_scc1 " + lab)
        self.poll(lambda: a("buffer_load_dwordx2 v[140:141], off, %s, s62 sc1" % ws),
                  lambda: a("v_xor_b32 v%d, s6, v140\nv_bitop3_b32 v%d, v%d, v141, s7 bitop3:0xf6" % (VS, VS, VS)), VS)
        a.label(lab)
        a("s_mov_b32 s62, 0x%x" % WS_X1)
        RE, ZP, XS = T + 16, T + 48, LD2

        def radix_inv(x):
            for f in range(4):
                d = v(RE, 16)
                a("%s %s, %s, %s, %s" % (M32, d, v(RA + 4 * f, 4), v(x + 4 * f, 4), d if f else "0"))

        def average():
            a("s_mov_b32 exec_lo, 1\ns_mov_b32 exec_hi, 1")
            for j in (0, 2):
                a("v_pk_add_f32 %s, %s, %s" % (v(RE + j, 2), v(RE + j, 2), v(RE + 8 + j, 2)))
                a("v_pk_add_f32 %s, %s, %s neg_lo:[0,1] neg_hi:[0,1]" % (v(RE + 4 + j, 2), v(RE + 4 + j, 2), v(RE + 12 + j, 2)))
            for j in range(0, 8, 2):
                a("v_pk_mul_f32 %s, %s, s[56:57]" % (v(RE + j, 2), v(RE + j, 2)))

        def extra_tile():
            radix_inv(XS)
            average()
            for r in range(4):
                self.cvt(ZP + 8 + r, v(RE + r), v(RE + 4 + r))
            a("ds_write_b128 v130, %s offset:4096" % v(ZP + 8, 4))
            a("s_mov_b64 exec, -1")

        xsload = lambda: [a("buffer_load_dwordx4 %s, v11, %s, s%d offen offset:%d sc1" % (v(XS + 4 * f, 4), ws, 65 if f >> 1 else 63, (f & 1) * 2048)) for f in range(4)]
        x2load = lambda: [a("buffer_load_dwordx4 %s, v%d, %s, s62 offen sc1" % (v(XF + 4 * f, 4), 132 + f, ws)) for f in range(4)]
        lab = a.newlabel("NODR")
        a("s_and_b32 s15, s60, 7\ns_cmp_eq_u32 s15, 7\ns_cbranch_scc1 " + lab)
        a("s_waitcnt vmcnt(%d)" % self.opt.get("xdr", 0))
        self.diag_delay("d_x2")
        a.label(lab)
        x2load()
        lab = a.newlabel("NOX")
        a("s_cmp_lg_u32 s3, %d\ns_cbranch_scc1 %s" % (XW3, lab))
        xsload()
        a.label(lab)
        a("s_waitcnt lgkmcnt(0)")
        self.stamp()
        a.label("WC_0")
        self.poll(x2load, lambda: sentinel(XF), VS, first_issued=True)
        self.stamp()
        radix_inv(XF)
        lab = a.newlabel("NOAVG")
        a("s_nop 9")
        a("s_cmp_lg_u32 s3, 0\ns_cbranch_scc1 " + lab)
        average()
        a("s_mov_b64 exec, -1")
        a.label(lab)
        for r in range(4):
            self.cvt(ZP + r, v(RE + r), v(RE + 4 + r))
        a("ds_write_b128 v9, %s" % v(ZP, 4))
        for r in range(4):
            self.cvt(ZP + 4 + r, v(RE + 8 + r), "-" + v(RE + 12 + r))
        a("s_mov_b64 exec, s[68:69]")
        a("ds_write_b128 v10, %s" % v(ZP + 4, 4))
        a("s_mov_b64 exec, -1")
        lab = a.newlabel("NOX")
        a("s_cmp_lg_u32 s3, %d\ns_cbranch_scc1 %s" % (XW3, lab))
        self.poll(xsload, lambda: sentinel(XS), VS, first_issued=True)
        extra_tile()
        a.label(lab)
        a("s_waitcnt lgkmcnt(0)\ns_barrier")
        self.stamp()
        a.capture(ls & 4)
        ZF = T
        for tau in range(2):
            for j in range(2):
                a("ds_read2st64_b32 %s, v8 offset0:%d offset1:%d" % (v(ZF + 4 * tau + 2 * j, 2), tau + 4 * j, tau + 4 * j + 2))
        for tau in range(2):
            a("s_waitcnt lgkmcnt(%d)" % (2 - 2 * tau))
            a("%s %s, %s, %s, 0" % (M16, v(T1 + 4 * tau, 4), v(ZF + 4 * tau, 4), v(G16, 4)))
            a("%s %s, %s, %s, 0" % (M16, v(T1 + 8 + 4 * tau, 4), v(ZF + 4 * tau, 4), v(G16 + 4, 4)))
        O4 = T + 80
        twiddle(T1, [TW0, TWX], T + 64, True)
        for j in range(8):
            self.cvt(U + j, v(T1 + 2 * j), v(T1 + 2 * j + 1))
        stage_cs(U, U + 4, O4, True)
        fl = self.opt.get("outflag", "sc1")
        for ri in range(2):
            for tau in range(2):
                o = O4 + 8 * ri + 4 * tau
                d = T + 8 + 4 * ri + 2 * tau
                self.cvt(d, v(o), v(o + 1))
                self.cvt(d + 1, v(o + 2), v(o + 3))
                a("ds_write_b64 v5, %s offset:%d" % (v(d, 2), ri * 1024 + tau * 512))
            a("ds_read_b128 %s, v6 offset:%d" % (v(T1 + 16 + 4 * ri, 4), ri * 1024))
        for ri in range(2):
            a("s_waitcnt lgkmcnt(%d)" % (3 - 3 * ri))
            a("buffer_store_dwordx4 %s, v2, %s, s%d offen offset:1024 %s" % (v(T1 + 16 + 4 * ri, 4), s(self.rOUT, 4), 64 + 2 * ri, fl))
        print("B3", a.flush(mf_scale=msc))
        self.end()


TQ_CS, TQ_TW0, TQ_TW1, TQ_TW3, TQ_F32, TQ_OM = 0, 6, 8, 12, 16, 20


def make_table():
    import numpy as np
    from emu import bf16_rne
    l = np.arange(64)
    c, g = l & 15, l >> 4
    pk = lambda x, y: (bf16_rne(np.float32(x)) | (bf16_rne(np.float32(y)) << 16)).astype(np.uint32)
    fl = lambda x: np.float32(x).view(np.uint32)
    cs = lambda a_: (np.cos(2 * np.pi * a_), np.sin(2 * np.pi * a_))
    idx2 = [16 * (t >> 2) + 4 * g + (t & 3) for t in range(8)]
    R = []
    C = [[cs((c + 16 * tau) * idx2[t] / 32.0) for t in range(8)] for tau in range(2)]
    for k, sg in ((0, 1), (1, 1), (1, -1)):
        for tau in range(2):
            for j in range(4):
                R.append(pk(sg * C[tau][2 * j][k], sg * C[tau][2 * j + 1][k]))

    def tw(angs):
        for k in range(2):
            for x in angs:
                R.append(fl(cs(x)[k]))
    tw([c * idx2[r] / 512.0 for r in range(4)])
    tw([(c + 16) * idx2[r] / 512.0 for r in range(4)])
    H = [cs(c * idx2[x] / 16.0) for x in range(4)]
    R += [pk(H[0][0], H[1][0]), pk(H[2][0], H[3][0]), pk(H[0][1], H[1][1]), pk(H[2][1], H[3][1])]
    R += [pk(-H[0][1], -H[1][1]), pk(-H[2][1], -H[3][1]), pk(H[0][0], H[1][0]), pk(H[2][0], H[3][0])]
    tw([c * idx2[4 + r] / 512.0 for r in range(4)])
    sc = 2.0 ** -20
    R += [pk(sc * H[x][0], -sc * H[x][1]) for x in range(4)] + [pk(sc * H[x][1], sc * H[x][0]) for x in range(4)]
    R += [pk(C[0][t][0], C[0][t][1]) for t in range(8)] + [pk(-C[0][t][1], C[0][t][0]) for t in range(8)]
    for k in range(2):
        for t in range(8):
            R.append(fl(cs(idx2[t] / 64.0)[k]))
    R = np.array(R, np.uint32)
    assert R.shape == (96, 64)
    return np.ascontiguousarray(R.reshape(24, 4, 64).transpose(0, 2, 1)).reshape(-1)


def _sym_add(line, emuval=0):
    ins = Ins(line.rsplit(",", 1)[0] + ", %d" % emuval)
    ins.line = line
    return ins


NOTES = """;
; One persistent launch, 256 workgroups x 8 waves (one per CU), generated by my own script. Roles by workgroup id:
; Hand-offs: write-through (sc1) stores, sc1 polling loads. Payload validates itself: the two bf16 mantissa LSBs of every
; All polls are bounded. TABLE (after the code) holds the constant DFT / twiddle fragments.
"""


def generate(stamps=False, opt=None):
    g = G(stamps, opt)
    a = g.build()
    nv = a.maxreg("v") + 1
    ns = a.maxreg("s") + 1
    tb = make_table()
    tail = ".p2align 8\n.type TABLE,@object\nTABLE:\n"
    for i in range(0, len(tb), 8):
        tail += ".long " + ",".join("0x%08x" % x for x in tb[i:i + 8]) + "\n"
    tail += ".size TABLE, %d\n" % (4 * len(tb))
    render = lambda: wrap(a.render() + tail, 256, 512, LDS_SIZE, nv, ns, NOTES)
    if g.opt.get("align", 1):
        from align import align
        print("align:", align(a, render, g.opt.get("minrun", 6)))
    return a, render()


if __name__ == "__main__":
    stamps = "--stamps" in sys.argv
    opt = {}
    for x in sys.argv[1:]:
        if x.startswith("--") and "=" in x:
            k, val = x[2:].split("=", 1)
            opt[k] = int(val) if val.lstrip("-").isdigit() else val
    a, txt = generate(stamps, opt)
    out = [x for x in sys.argv[1:] if not x.startswith("--")]
    open(out[0] if out else "k.s", "w").write(txt)
    print("instructions:", sum(1 for k, _ in a.items if k == "i"), "vgpr", a.maxreg("v") + 1, "sgpr", a.maxreg("s") + 1)
```

```python
import sys
from asmlib import *
from common import wrap

WS_EP = 0x0
WS_GO = 0x1000
WS_NOTE = 0x800
WS_RED = 0x10000
RED_STRIDE = 0x4800
WS_X2S = 0x60000
WS_PART = 0x80000
PLINE = 1152
WS_PQ = 0x200000
WS_X1 = 0x400000
WS_STAMP = 0x1000000
WS_SIZE = 0x10000000
LDS_SIZE = 160 * 1024
TAGC_LO, TAGC_HI = 0x1E3779B1, 0x05EBCA6B
POLL_LIMIT = 1 << 18
M16 = "v_mfma_f32_16x16x32_bf16"
M32 = "v_mfma_f32_32x32x16_bf16"
XB, ZB, WB, TB = 0, 32768, 65536, 131072
RAB = TB + 24576


class G:
    def __init__(self, stamps=False, opt=None):
        self.a = Asm()
        self.stamps = stamps
        self.opt = opt or {}
        self.nst = 0
        self.role = ""

    sW = 3
    sTL, sTH = 6, 7
    sCNT = 12
    pXA, pWQ, pWO, pXB, pWR, pWI, pOUT, pDBG, pWS = 16, 18, 20, 22, 24, 26, 28, 30, 32
    rWS, rOUT, rA, rB, rC = 36, 40, 44, 48, 52
    sST = 72
    LT = [16, 17, 0, 1]

    def stamp(self):
        pr = self.opt.get("probe")
        if pr:
            if "%s:%d" % (self.role, self.nst) in pr.split("+"):
                self.a("s_memrealtime s[76:77]\ns_waitcnt lgkmcnt(0)")
            self.nst += 1
            return
        if not self.stamps:
            return
        k = self.nst
        assert k < 15
        self.a("%s %s\ns_waitcnt lgkmcnt(0)" % ("s_memtime" if self.opt.get("cyc") else "s_memrealtime", s(self.sST + 2 * k, 2)))
        self.nst += 1

    def end(self):
        a = self.a
        if self.opt.get("skew") is not None and self.role == "K":
            ws = s(self.rWS, 4)
            l1, l2 = a.newlabel("SK"), a.newlabel("SK")
            a("s_waitcnt lgkmcnt(0)\ns_cmp_lg_u32 s5, 0\ns_cbranch_scc1 %s\ns_cmp_lg_u32 s3, 4\ns_cbranch_scc1 %s\ns_cmp_lg_u32 s4, 0\ns_cbranch_scc1 %s" % (l2, l2, l1))
            a("v_mov_b32 v6, s72\nv_mov_b32 v7, s6\nbuffer_store_dwordx2 v[6:7], off, %s, 0 offset:0x400 sc1" % ws)
            a.label(l1)
            a("s_cmp_lg_u32 s4, %d\ns_cbranch_scc1 %s" % (self.opt["skew"], l2))
            self.poll(lambda: a("buffer_load_dwordx2 v[6:7], off, %s, 0 offset:0x400 sc1" % ws), lambda: a("v_xor_b32 v12, s6, v7"), 12)
            a("v_readfirstlane_b32 s76, v6\ns_sub_u32 s76, s72, s76\ns_add_u32 s76, s76, 200\ns_lshl_b32 s76, s76, 1\ns_add_u32 s76, s76, s72")
            a.label(l2)
        if self.opt.get("probe"):
            self.stamp()
            lab = a.newlabel("SPIN")
            a("s_waitcnt lgkmcnt(0)\ns_sub_u32 s76, s76, s72\ns_lshl_b32 s76, s76, 2\ns_add_u32 s76, s76, 2000\ns_min_u32 s76, s76, 20000")
            a.label(lab)
            a("s_memrealtime s[74:75]\ns_waitcnt lgkmcnt(0)\ns_sub_u32 s74, s74, s72\ns_cmp_lt_u32 s74, s76\ns_cbranch_scc1 %s" % lab)
        if self.stamps:
            self.stamp()
            a("s_waitcnt vmcnt(0)")
            self.stamp()
            a("s_mov_b64 exec, 1")
            a("s_lshl3_add_u32 s56, s5, s4\ns_lshl_b32 s56, s56, 3\ns_add_u32 s56, s56, s3\ns_lshl_b32 s56, s56, 6\ns_add_u32 s56, s56, 0x%x" % WS_STAMP)
            a("v_mov_b32 v2, 0")
            for k in range(self.nst):
                a("v_mov_b32 v3, s%d\nbuffer_store_dword v3, v2, %s, s56 offen offset:%d" % (self.sST + 2 * k, s(self.rWS, 4), 4 * k))
            a("v_mov_b32 v3, %d\nbuffer_store_dword v3, v2, %s, s56 offen offset:60" % (self.nst, s(self.rWS, 4)))
            if self.opt.get("xcc"):
                a("s_getreg_b32 s57, hwreg(HW_REG_XCC_ID)\ns_getreg_b32 s58, hwreg(HW_REG_HW_ID)\ns_lshl_b32 s57, s57, 24\ns_and_b32 s58, s58, 0xffffff\ns_or_b32 s57, s57, s58\nv_mov_b32 v3, s57\nbuffer_store_dword v3, v2, %s, s56 offen offset:56" % s(self.rWS, 4))
        a("s_endpgm")

    def pad_stamps(self, n):
        while (self.stamps or self.opt.get("probe")) and self.nst < n:
            if self.stamps:
                self.a("s_mov_b32 s%d, s%d" % (self.sST + 2 * self.nst, self.sST + 2 * self.nst - 2))
            self.nst += 1

    def srd(self, r, p, size):
        self.a("s_mov_b32 s%d, s%d\ns_mov_b32 s%d, s%d\ns_mov_b32 s%d, 0x%x\ns_mov_b32 s%d, 0x20000" % (r, p, r + 1, p + 1, r + 2, size, r + 3))

    def tags(self):
        t = self.LT
        self.a("""s_add_u32 s8, s8, 0x%x
        s_addc_u32 s9, s9, 0x%x
        s_and_b32 s6, s8, 0xbfffbfff
        s_and_b32 s7, s9, 0xbfffbfff
        s_bitcmp1_b32 s8, 0
        s_cselect_b32 s%d, 0x10001, 0
        s_xor_b32 s%d, s%d, 0x10000
        s_xor_b32 s%d, s%d, 0x10001
        s_xor_b32 s%d, s%d, 1""" % (TAGC_LO, TAGC_HI, t[0], t[1], t[0], t[2], t[0], t[3], t[0]))

    def flip_marks(self):
        for r in self.LT:
            self.a("s_xor_b32 s%d, s%d, 1" % (r, r))

    def mark(self, base, vmask):
        return ["v_and_or_b32 v%d, v%d, v%d, s%d" % (base + e, base + e, vmask, self.LT[e]) for e in range(4)]

    def markcheck(self, base, n, vacc):
        a = self.a
        X = [self.LT[0], self.LT[3], self.LT[2], self.LT[1]]
        for i in range(0, n, 2):
            a("v_xor_b32 v%d, s%d, v%d" % (base + i, X[i & 3], base + i))
            a("v_xor_b32 v%d, s%d, v%d" % (base + i + 1, X[(i + 1) & 3], base + i + 1))
            if i:
                a("v_bitop3_b32 v%d, v%d, v%d, v%d bitop3:0xfd" % (vacc, vacc, base + i, base + i + 1))
            else:
                a("v_bitop3_b32 v%d, v%d, v%d, v%d bitop3:0xfd" % (vacc, base, base, base + 1))
        a("v_and_b32 v%d, 0x10001, v%d" % (vacc, vacc))

    def tagcheck(self, pieces, vacc):
        a = self.a
        for i, p in enumerate(pieces):
            if i == 0:
                a("v_xor_b32 v%d, s%d, v%d" % (vacc, self.sTL, p + 1))
            else:
                a("v_bitop3_b32 v%d, v%d, v%d, s%d bitop3:0xf6" % (vacc, vacc, p + 1, self.sTL))
            a("v_bitop3_b32 v%d, v%d, v%d, s%d bitop3:0xf6" % (vacc, vacc, p + 3, self.sTH))

    def poll(self, issue, check, vacc, first_issued=False):
        a = self.a
        top, done, chk = a.newlabel("POLL"), a.newlabel("DONE"), a.newlabel("CHK")
        a("s_mov_b32 s%d, 0x%x" % (self.sCNT, POLL_LIMIT))
        if first_issued:
            a("s_branch " + chk)
        a.label(top)
        issue()
        if first_issued:
            a.label(chk)
        a("s_waitcnt vmcnt(0)")
        check()
        a("v_cmp_ne_u32 vcc, 0, v%d" % vacc)
        a("s_cbranch_vccz " + done)
        a("s_sleep %d" % self.opt.get("sl", 2))
        a("s_sub_u32 s%d, s%d, 1" % (self.sCNT, self.sCNT))
        a("s_cbranch_scc0 " + top)
        a.label(done)

    def diag_delay(self, name):
        n = self.opt.get(name, 0)
        if n:
            self.a("s_sleep %d" % n)

    def cvt(self, d, x, y):
        self.a("v_cvt_pk_bf16_f32 v%d, %s, %s" % (d, x, y))

    def build(self):
        a = self.a
        a.label("CODE0")
        if self.opt.get("probe"):
            a("s_memrealtime s[72:73]\ns_memrealtime s[76:77]")
            self.nst = 1
        if self.stamps:
            a("%s %s" % ("s_memtime" if self.opt.get("cyc") else "s_memrealtime", s(self.sST, 2)))
            self.nst = 1
        a("""v_lshrrev_b32 v2, 6, v0
        v_and_b32 v1, 63, v0
        s_and_b32 s4, s2, 7
        v_readfirstlane_b32 s3, v2
        s_lshr_b32 s5, s2, 3
        s_cmp_ge_u32 s5, 32
        s_cbranch_scc1 EXIT
        ROT""".replace("ROT", "s_cmp_lt_u32 s5, 24\ns_cbranch_scc1 NOT_B" if self.opt.get("rot", 24) == 0 else "s_sub_u32 s5, s5, 8\ns_cbranch_scc0 NOT_B"))
        n0 = self.nst
        self.b_head()
        a.label("EXIT")
        a("s_endpgm")
        a.label("NOT_B")
        a("s_cmp_ge_u32 s3, 4\ns_cbranch_scc1 LOADER")
        pc = a.newlabel("PC")
        if self.opt.get("pfs", 1):
            a("s_cmp_lg_u32 s3, 0\ns_cbranch_scc1 COMPUTE\ns_getpc_b64 s[56:57]")
            a.label(pc)
            a.items.append(("i", _sym_add("s_mov_b32 s58, ROLE_B-4-%s" % pc)))
            a("v_and_b32 v3, 7, v1\nv_mul_u32_u24 v3, 24, v3\nv_add_lshl_u32 v3, v3, s5, 7\nv_min_u32 v3, s58, v3\nglobal_load_dword v0, v3, s[56:57]\ns_branch COMPUTE")
        else:
            a("s_cmp_eq_u32 s3, 3\ns_cbranch_scc1 COMPUTE\ns_getpc_b64 s[56:57]")
            a.label(pc)
            a.items.append(("i", _sym_add("s_mov_b32 s58, ROLE_B-4-%s" % pc)))
            a("v_lshlrev_b32 v3, 7, v0\nv_min_u32 v3, s58, v3\nglobal_load_dword v0, v3, s[56:57]\ns_branch COMPUTE")
        a.label("LOADER")
        self.loader()
        self.nst = n0
        self.compute()
        self.nst = n0
        self.role_b()
        a.label("CODE_END")
        prot = [0, 1, 3, 4, 5, 60, 61, 70] + list(range(72, 102))
        if self.opt.get("walk", 0) & 1:
            a.walkify("WA_0", "WA_1", 3, "WRET_A", prot, "WKA")
            a.walkify("WL_0", "WL_1", 1, "WRET_A", prot, "WKL")
            a.walkify("WQ_0", "WQ_1", 2, "WRET_A", prot, "WKQ")
            a.walkify("WR_0", "WR_1", 1, "WRET_A", prot, "WKR")
        if self.opt.get("walk", 0) & 2:
            a.walkify("WB_0", "WB_1", 6, "WRET_B", prot, "WKB")
            a.walkify("WC_0", "WC_1", 1, "WRET_C", prot, "WKC")
        bad = a.check_branches()
        assert not bad, bad
        return a

    KARG = "s_load_dwordx16 s[16:31], s[0:1], 0\ns_load_dwordx2 s[32:33], s[0:1], 64"

    def b_head(self):
        a = self.a
        lab = a.newlabel("PC")
        a("s_load_dwordx2 s[44:45], s[0:1], 24")
        a("s_getpc_b64 s[56:57]")
        a.label(lab)
        a.items.append(("i", _sym_add("s_add_u32 s58, s56, TABLE-%s" % lab, 0x8000)))
        a("""s_addc_u32 s59, s57, 0
        v_lshlrev_b32 v2, 4, v1
        s_mul_i32 s66, s3, 3072
        v_add_u32 v7, s66, v2
        s_add_u32 m0, s66, %d
        s_and_b32 s5, s5, 31""" % TB)
        for q in range(3):
            a("global_load_lds_dwordx4 v7, s[58:59] offset:%d" % (q * 1024))
        a("""s_and_b32 s61, s5, 7
        s_lshl3_add_u32 s60, s4, s61
        s_lshl_b32 s62, s3, 7
        s_add_u32 s62, s62, s60
        s_lshl_b32 s62, s62, 10
        s_add_u32 s63, s62, 0x%x
        s_add_u32 s64, s62, 0x%x
        s_add_u32 s65, s62, 0x%x
        s_lshl_b32 s70, s3, 12
        s_mov_b32 m0, s70
        s_mov_b32 s46, 0x200000
        s_mov_b32 s47, 0x20000
        s_waitcnt lgkmcnt(0)""" % (0x100000 - 1024, 0x10000 - 2048, 0x110000 - 3072))
        for q in range(4):
            a("buffer_load_dwordx4 v2, %s, s%d offen offset:%d nt lds" % (s(self.rA, 4), 62 + q, q * 1024))
        a("s_cmp_ge_u32 s3, %d\ns_cbranch_scc1 ROLE_B" % (1 if self.opt.get("pfb", 1) else 2))
        a.items.append(("i", _sym_add("s_add_u32 s56, s56, ROLE_B-%s" % lab)))
        a("s_addc_u32 s57, s57, 0")
        a.items.append(("i", _sym_add("s_mov_b32 s58, CODE_END-4-ROLE_B")))
        if self.opt.get("pfb", 1):
            a("v_and_b32 v3, 15, v1\nv_lshlrev_b32 v3, 3, v3\nv_add_lshl_u32 v3, v3, s61, 7")
        else:
            a("v_lshlrev_b32 v3, 7, v0")
        a("v_min_u32 v3, s58, v3\nglobal_load_dword v0, v3, s[56:57]")
        a("s_branch ROLE_B")

    def loader(self):
        a = self.a
        ws = s(self.rWS, 4)
        self.role = "L"
        vX, vW = 4, 8
        a("""s_load_dwordx4 s[44:47], s[0:1], 0
        s_lshr_b32 s60, s4, 1
        s_and_b32 s63, s5, 3
        s_lshl2_add_u32 s60, s60, s63
        s_bfe_u32 s65, s5, 0x20002
        s_lshr_b32 s66, s5, 4
        s_lshl_b32 s70, s65, s66
        s_add_u32 s70, s70, s63
        s_and_b32 s70, s70, 3
        s_and_b32 s71, s70, 1
        XROT
        s_xor_b32 s70, s70, s13
        s_xor_b32 s71, s71, s13
        s_sub_u32 s58, s3, 4
        s_lshl2_add_u32 s63, s60, s58
        s_lshl_b32 s63, s63, 15
        v_lshrrev_b32 v2, 3, v1
        v_lshrrev_b32 v3, 4, v1
        v_and_b32 v12, 7, v1
        v_xor_b32 v12, v12, v3
        v_lshl_add_u32 v12, v12, 4, s63
        v_lshl_add_u32 v4, v2, 10, v12
        v_xor_b32 v5, 64, v4
        v_add_u32 v5, 0x1c00, v5
        v_add_u32 v6, 0x3800, v4
        v_add_u32 v7, 0x3800, v5
        s_lshl_b32 s59, s58, 12""".replace("XROT", {0: "s_mov_b32 s13, 0",
            1: "s_lshl_b32 s13, s4, 2\ns_xor_b32 s13, s13, s4\ns_and_b32 s13, s13, 6",
            2: "s_lshl_b32 s13, s4, 2\ns_xor_b32 s13, s13, s4\ns_and_b32 s13, s13, 4",
            3: "s_lshl_b32 s13, s4, 1\ns_lshr_b32 s14, s4, 1\ns_xor_b32 s13, s13, s14\ns_and_b32 s13, s13, 3",
            4: "s_lshl_b32 s13, s66, 1"}[self.opt.get("xrot", 2)]))

        def kchunk(c):
            base = 0
            for r in [int(x) for x in str(self.opt.get("rounds", 44))]:
                if c < base + r:
                    break
                base += r
            src = {4: "s70", 2: "s71", 1: "s13"}[r]
            assert base % r == 0
            a("s_xor_b32 s62, %s, %d" % (src, c))

        def issue_x(c):
            a("s_add_u32 m0, s59, %d" % ((c % 5) * 32768))
            kchunk(c)
            a("s_lshl_b32 s63, s62, 7")
            if c == 0:
                a("s_waitcnt lgkmcnt(0)\ns_mov_b64 s[48:49], s[46:47]\ns_mov_b32 s46, 0x200000\ns_mov_b32 s47, 0x20000")
            for j in range(4):
                a("buffer_load_dwordx4 v%d, %s, s63 offen offset:%d lds" % (vX + j, s(self.rA, 4), j * 1024))

        def issue_w(c):
            a("s_add_u32 m0, s59, %d" % ((c % 5) * 32768 + 16384))
            a("s_mul_i32 s64, s62, 0x30000")
            for j in range(4):
                a("buffer_load_dwordx4 v%d, %s, s64 offen offset:%d lds" % (vW + j, s(self.rB, 4), j * 1024))

        def issue(c):
            issue_x(c)
            issue_w(c)

        issue_x(0)
        a(self.KARG)
        a("""s_and_b32 s64, s4, 1
        s_lshl2_add_u32 s61, s64, s65
        s_lshl1_add_u32 s66, s64, s65
        s_lshl_b32 s63, s61, 7
        s_add_u32 s63, s63, 1024
        s_lshl_b32 s64, s66, 8
        s_cmp_ge_u32 s5, 16
        s_cselect_b32 s63, s64, s63
        s_cselect_b32 s64, 7, 10
        v_bfe_u32 v12, v1, 2, 2
        v_xor_b32 v12, v12, v3
        v_lshrrev_b32 v13, 1, v12
        v_lshlrev_b32 v13, s64, v13
        v_and_b32 v14, 1, v12
        v_lshl_add_u32 v13, v14, 6, v13
        v_and_b32 v14, 3, v1
        v_lshl_add_u32 v13, v14, 4, v13
        v_mul_u32_u24 v15, 0xc00, v3
        s_mul_i32 s65, s58, 0xc000
        s_add_u32 s65, s65, s63
        v_add3_u32 v8, v13, v15, s65
        v_add_u32 v9, 0x2c00, v8
        v_add_u32 v10, 0x5800, v8
        v_add_u32 v11, 0x8400, v8
        s_mov_b32 s50, 0x180000
        s_mov_b32 s51, 0x20000""")
        issue_w(0)
        H = ["x0", "w0"]
        if self.opt.get("w4e"):
            plan = [["w4", "x1"], ["w1", "x2", "w2"], ["x3", "w3"], ["x4", "x5"], ["w5", "x6"], ["w6", "x7"], ["w7"]]
            if self.opt["w4e"] == 2:
                plan = [["w4", "x1"], ["w1", "x2", "w2"], ["x3", "w3", "x4"], [], ["x5", "w5"], ["x6", "w6"], ["x7", "w7"]]
        else:
            plan = [["x1", "w1"]] + [["x%d" % k, "w%d" % k] for k in range(2, 8)]

        def half(h):
            c = int(h[1])
            if h[0] == "x":
                issue_x(c)
            else:
                if H[-1] != "x%d" % c:
                    kchunk(c)
                issue_w(c)
            H.append(h)

        half(plan[0][0])
        a("s_waitcnt lgkmcnt(0)")
        a("s_load_dwordx2 s[8:9], s[32:33], %d" % WS_EP)
        half(plan[0][1])
        self.srd(self.rWS, self.pWS, WS_SIZE)
        self.srd(self.rOUT, self.pOUT, 2048 * 2048)
        a("s_waitcnt lgkmcnt(0)")
        self.tags()
        groups = list(range(8))
        waitc = lambda c: a("s_waitcnt vmcnt(%d)\ns_barrier" % (4 * (len(H) - 1 - max(H.index("x%d" % c), H.index("w%d" % c))) + 8 * (len(groups) - 8)))
        for c in range(6):
            waitc(c)
            if c == 0:
                self.stamp()
            for h in plan[c + 1]:
                half(h)
        c = 6
        cq, gq = c, list(groups)
        a("s_cmp_ge_u32 s5, 16\ns_cbranch_scc1 QLOADER")
        n0 = self.nst
        WSLOT = [3, 4, 0, 2]
        self.srd(self.rC, self.pWO, 512 * 1024)
        a("""s_and_b32 s68, s5, 3
        s_lshl_b32 s69, s58, 13
        v_lshlrev_b32 v16, 6, v12
        v_lshl_add_u32 v16, v14, 4, v16
        v_lshl_add_u32 v16, v3, 10, v16
        s_lshl_b32 s65, s58, 15
        OCCALC
        s_lshl_b32 s66, s14, 8
        s_add_u32 s65, s65, s66
        v_add_u32 v16, s65, v16
        v_add_u32 v17, 0xc00, v16
        v_add_u32 v18, 0x1800, v16
        v_add_u32 v19, 0x2400, v16""".replace("OCCALC", "s_and_b32 s14, s4, 1\ns_lshr_b32 s66, s5, 3\ns_lshl1_add_u32 s14, s14, s66" if self.opt.get("omap") else "s_lshr_b32 s14, s5, 2"))

        def issue_wo(n, sl=None):
            slot = (WSLOT[n] if sl is None else sl) * 32768
            a("s_add_u32 m0, s69, %d" % slot)
            a("s_xor_b32 s63, s68, %d\ns_lshl_b32 s63, s63, 17" % n)
            for j in range(4):
                a("buffer_load_dwordx4 v%d, %s, s63 offen offset:%d lds" % (16 + j, s(self.rC, 4), j * 1024))
            a("s_add_u32 m0, s69, %d" % (slot + 4096))
            a("s_add_u32 s63, s63, 0x4000")
            for j in range(4):
                a("buffer_load_dwordx4 v%d, %s, s63 offen offset:%d lds" % (16 + j, s(self.rC, 4), j * 1024))

        def read_wo(n, sl=None):
            ad, off = {4: (0, 0), 0: (14, 0), 1: (14, 32768), 3: (15, 32768), 2: (15, 0)}[WSLOT[n] if sl is None else sl]
            for h in range(8):
                r = 128 + 32 * n + 4 * h
                a("ds_read_b64_tr_b16 %s, v%d offset:%d" % (v(r, 2), ad, off + h * 4096))
                a("ds_read_b64_tr_b16 %s, v%d offset:%d" % (v(r + 2, 2), ad, off + h * 4096 + 2048))

        wsched = {self.opt.get("w0", 6): [0]}
        wsched.setdefault(self.opt.get("w1", 7), []).append(1)
        w2late = self.opt.get("w2late", 0)
        if not w2late:
            wsched.setdefault(7, []).append(2)
        for c in range(cq, 8):
            waitc(c)
            if c == 7:
                self.stamp()
            for n in wsched.get(c, []):
                issue_wo(n)
                groups.append("w%d" % n)
        assert len(groups) == 11 - w2late
        a.label("WL_0")
        self.wo_addr()
        self.tail_addr()
        a("s_waitcnt vmcnt(0)")
        self.stamp()
        a("s_barrier")
        if w2late:
            WSLOT[:] = [3, 4, 2, 1]
        if w2late:
            issue_wo(2)
        issue_wo(3)
        self.read_wo = read_wo
        if self.opt.get("wide"):
            for j in range(4):
                a("v_xor_b32 v%d, 0x100, v%d" % (16 + j, 16 + j))
            issue_wo(0, 1)
            for n in range(3):
                read_wo(n)
            a("s_waitcnt vmcnt(0) lgkmcnt(0)\ns_barrier")
            self.stamp()
            if self.opt["wide"] == 1:
                self.w_pqload()
            for n in range(1, 4):
                issue_wo(n, WSLOT[n - 1])
            read_wo(3)
            if self.opt["wide"] == 3:
                self.w_pqload()
                a("s_waitcnt vmcnt(4)")
            if self.opt["wide"] == 2:
                a("s_waitcnt vmcnt(0)")
        else:
            for n in range(3 - w2late):
                read_wo(n)
        a.label("WL_1")
        a("s_branch KV_TAIL")
        self.kv_tail_nst = self.nst
        self.nst = n0
        a.label("QLOADER")
        self.role = "R"
        self.reducer_setup()
        del groups[8:]
        for c in range(cq, 8):
            waitc(c)
        if self.opt.get("prewrite", 1):
            lab = a.newlabel("NOZ")
            a("s_cmp_gt_u32 s71, 8\ns_cbranch_scc1 " + lab)
            a("buffer_store_dwordx4 v[32:35], v21, %s, s67 offen sc1" % ws)
            a.label(lab)
        lab = a.newlabel("PC")
        a("s_getpc_b64 s[56:57]")
        a.label(lab)
        a.items.append(("i", _sym_add("s_add_u32 s56, s56, TABLE-%s" % lab, 0x8000)))
        a("s_addc_u32 s57, s57, 0\nv_lshlrev_b32 v2, 4, v1\nv_add_u32 v3, s59, v2\ns_add_u32 m0, s59, %d" % TB)
        for q in range(4):
            a("global_load_lds_dwordx4 v3, s[56:57] offset:%d" % (q * 1024))
        self.ra_inv(1, 84)
        a("ds_write_b64 v90, v[88:89]")
        a("s_waitcnt vmcnt(0) lgkmcnt(0)\ns_barrier")
        self.stamp()
        self.reducer()

    def ra_inv(self, half, t):
        self.a("""v_and_b32 v{0}, 7, v1
        v_lshlrev_b32 v{0}, 6, v{0}
        s_add_u32 s62, s60, {h}
        v_add_u32 v{0}, s62, v{0}
        v_cvt_f32_u32 v{0}, v{0}
        v_mul_f32 v{0}, {c1}, v{0}
        s_lshr_b32 s62, s3, 1
        s_and_b32 s15, s3, 1
        s_lshl2_add_u32 s14, s62, s15
        s_lshl_b32 s14, s14, 1
        v_lshrrev_b32 v{1}, 5, v1
        v_lshl_add_u32 v{1}, v{1}, 2, s14
        v_cvt_f32_u32 v{1}, v{1}
        v_bfe_u32 v{2}, v1, 3, 1
        v_cvt_f32_u32 v{2}, v{2}
        v_mul_f32 v{2}, {c2}, v{2}
        v_fma_f32 v{1}, v{1}, v{0}, v{2}
        v_lshlrev_b32 v{2}, 27, v1
        v_and_b32 v{2}, 0x80000000, v{2}
        v_or_b32 v{2}, {c3}, v{2}
        v_add_f32 v{3}, v{1}, v{2}
        v_sub_f32 v{2}, v{0}, v{2}
        v_add_f32 v{2}, v{1}, v{2}
        v_cos_f32 v{0}, v{3}
        v_sin_f32 v{3}, v{3}
        v_cos_f32 v{1}, v{2}
        v_sin_f32 v{2}, v{2}
        s_lshl_b32 s62, s62, 10
        s_lshl3_add_u32 s62, s15, s62
        s_add_u32 s62, s62, {rab}
        v_add_u32 v{6}, s62, v2
        v_cvt_pk_bf16_f32 v{4}, v{0}, -v{3}
        v_cvt_pk_bf16_f32 v{5}, v{1}, -v{2}""".format(*[t + i for i in range(7)], h=512 * half, c1=fhex(1 / 2048), c2=fhex(-0.25),
                                                      c3=fhex(0.125), rab=RAB))

    def reducer_setup(self):
        a = self.a
        a("""s_lshl3_add_u32 s60, s4, s5
        s_sub_u32 s60, s60, 16
        s_lshr_b32 s61, s60, 2
        s_and_b32 s71, s60, 3
        s_lshl2_add_u32 s71, s58, s71
        s_mul_i32 s63, s61, %d
        s_lshl_b32 s64, s71, 7
        s_add_u32 s63, s63, s64
        s_add_u32 s63, s63, 0x%x
        s_mul_i32 s67, s61, %d
        s_add_u32 s67, s67, s64
        s_add_u32 s67, s67, 0x%x
        s_add_u32 s64, s63, %d
        s_add_u32 s65, s63, %d
        s_add_u32 s66, s63, %d""" % (32 * PLINE, WS_PART, PLINE, WS_RED, 8 * PLINE, 16 * PLINE, 24 * PLINE))
        a("""v_lshrrev_b32 v2, 3, v1
        v_and_b32 v3, 7, v1
        v_lshlrev_b32 v3, 4, v3
        v_mov_b32 v22, %d
        v_mad_u32_u24 v20, v2, v22, v3
        v_mov_b32 v22, 0x%x
        v_mad_u32_u24 v21, v2, v22, v3""" % (PLINE, RED_STRIDE))
        a("""v_and_b32 v2, 1, v1
        v_lshlrev_b32 v2, 4, v2
        v_mov_b32 v3, 0x3f80
        v_lshlrev_b32 v3, v2, v3
        v_and_b32 v2, 2, v1
        v_cmp_eq_u32 vcc, 0, v2
        v_mov_b32 v24, 0
        v_mov_b32 v25, 0
        v_mov_b32 v28, 0
        v_mov_b32 v29, 0
        v_cndmask_b32 v26, 0, v3, vcc
        v_cndmask_b32 v27, v3, v25, vcc
        v_mov_b32 v32, 0xfffefffe
        v_mov_b32 v33, 0
        v_mov_b32 v34, 0
        v_mov_b32 v35, 0""")

    def reducer(self):
        a = self.a
        ws = s(self.rWS, 4)
        D, acc, vacc, o = 40, 72, 80, 36
        lab = a.newlabel("NORED")
        n0 = self.nst
        self.pad_stamps(9)
        self.nst = n0
        a("s_cmp_gt_u32 s71, 8\ns_cbranch_scc1 HELPER")
        a.label("WR_0")
        self.diag_delay("d_part")
        self.poll(lambda: [a("buffer_load_dwordx4 %s, v20, %s, s%d offen sc1" % (v(D + 4 * i, 4), ws, 63 + i)) for i in range(4)],
                  lambda: self.markcheck(D, 16, vacc), vacc)
        self.stamp()
        for i in range(4):
            for h in range(2):
                a("%s %s, %s, %s, %s" % (M16, v(acc + 4 * h, 4), v(26 - 2 * h, 4), v(D + 4 * i, 4), v(acc + 4 * h, 4) if i else "0"))
        for r in range(8):
            a("v_add_f32_dpp v%d, v%d, v%d row_ror:8 row_mask:0xf bank_mask:0xf" % (56 + r, acc + r, acc + r))
        for j in range(4):
            self.cvt(o + j, v(56 + 2 * j), v(57 + 2 * j))
        for x in self.mark(o, 32):
            a(x)
        a("buffer_store_dwordx4 %s, v21, %s, s67 offen sc1" % (v(o, 4), ws))
        a.label("WR_1")
        self.stamp()
        self.pad_stamps(9)
        a("s_branch HELPER")

    def lds_reset(self):
        self.lq_issued = 0
        self.lq_done = 0

    def lds(self, line):
        self.a(line)
        self.lq_issued += 1
        return self.lq_issued

    def lds_wait(self, seq):
        if seq > self.lq_done:
            n = min(self.lq_issued - seq, 15)
            self.a("s_waitcnt lgkmcnt(%d)" % n)
            self.lq_done = self.lq_issued - n

    @staticmethod
    def cost(line):
        m = line.split()[0]
        if m == "MARK":
            return 0
        if m.startswith(("v_exp", "v_rcp", "v_sin", "v_cos")):
            return 8
        return 4

    def run_mfmas(self, mf, frags, pool, fillers, budget=24, maxread=2, maxout=14, hooks=None):
        a = self.a
        order = []
        last = {}
        for j, (_, ids) in enumerate(mf):
            for i in ids:
                if i not in last:
                    order.append(i)
                last[i] = j
        pool = list(pool)
        reg, seq = {}, {}
        rp = [0, 0]
        q = []

        def one_read():
            i = order[rp[0]]
            reads, pre = frags[i]
            if rp[1] == 0:
                if not pool:
                    return False
                if pre:
                    pre()
                reg[i] = pool.pop(0)
            sq = self.lds(reads[rp[1]].format(r=v(reg[i], 4), lo=v(reg[i], 2), hi=v(reg[i] + 2, 2)))
            rp[1] += 1
            if rp[1] == len(reads):
                seq[i] = sq
                rp[0] += 1
                rp[1] = 0
            return True

        while rp[0] < len(order) and self.lq_issued - self.lq_done < maxout - 2 and pool and not (rp[0] and frags[order[rp[0]]][1]):
            one_read()
        for j, (fmt, ids) in enumerate(mf):
            for i in ids:
                while i not in seq:
                    assert one_read()
            if ids:
                self.lds_wait(max(seq[i] for i in ids))
            a(fmt.format(*[v(reg[i], 4) for i in ids]))
            for i in ids:
                if last[i] == j:
                    pool.append(reg[i])
            if hooks and j in hooks:
                hooks[j]()
            b = budget
            k = 0
            while k < maxread and rp[0] < len(order) and self.lq_issued - self.lq_done < maxout:
                gate = frags[order[rp[0]]]
                if rp[1] == 0 and len(gate) > 2 and gate[2]() is False:
                    break
                if not one_read():
                    break
                k += 1
                b -= 4
            q += fillers.get(j, [])
            while q and b >= self.cost(q[0]):
                if self.opt.get("upf", 1) and q[0].startswith("v_pk_"):
                    q[0:1] = unpack_pk(q[0])
                x = q.pop(0)
                b -= self.cost(x)
                self.emit_filler(x)
            self.fq = q
        return q

    def emit_filler(self, x):
        if x == "MARK":
            pass
        elif x.startswith("ds_"):
            self.last_fill_lds = self.lds(x)
        elif x.startswith("WAITLDS"):
            self.lds_wait(self.last_fill_lds - int(x.split()[1]))
        else:
            self.a(x)

    def gemm_loop(self, acc, pool, ax, aw, xfirst, fill, Z, hooks=None):
        a = self.a
        frags, mf = {}, []
        seen = set()

        def fx(n, mb, tag):
            c, ks = n >> 2, n & 3
            slot = c % 5
            hi, so = slot >> 1, (slot & 1) * 32768
            pre = None
            if ("x", n, mb, tag) in frags:
                return ("x", n, mb, tag)
            if c not in seen:
                seen.add(c)
                pre = (lambda: a("s_barrier")) if c else None
            frags[("x", n, mb, tag)] = (["ds_read_b128 {r}, v%d offset:%d" % (ax[hi][ks], so + 4096 * mb)], pre)
            return ("x", n, mb, tag)

        def fw(n, nb):
            c, ks = n >> 2, n & 3
            slot = c % 5
            hi, so = slot >> 1, (slot & 1) * 32768 + 16384 + ks * 4096
            frags[("w", n, nb)] = (["ds_read_b64_tr_b16 {lo}, v%d offset:%d" % (aw[hi][nb], so),
                                    "ds_read_b64_tr_b16 {hi}, v%d offset:%d" % (aw[hi][nb], so + 1024)], None)
            return ("w", n, nb)

        def add(n, nbs, tag):
            X = [fx(n, 0, tag), fx(n, 1, tag)]
            for nb in nbs:
                W = fw(n, nb)
                for mb in range(2):
                    d = v(acc[mb][nb], 16)
                    mf.append(("v_mfma_f32_32x32x16_bf16 %s, %s, %s" % (d, "{0}, {1}" if xfirst else "{1}, {0}", d if n else "0"), [X[mb], W]))

        for n in range(32 - Z):
            add(n, (0, 1), 0)
        for n in range(32 - Z, 32):
            add(n, (0,), 0)
        j0 = len(mf)
        for n in range(32 - Z, 32):
            add(n, (1,), 0 if self.opt.get("keepx", 1) else 1)
        a("s_barrier")
        self.stamp()
        self.lds_reset()
        return self.run_mfmas(mf, frags, pool, {j0 + 1: fill}, hooks=hooks)

    def phi(self, src, dst, tmp, n):
        L = []
        for g in range(0, n, 8):
            for j in range(0, 8, 2):
                L.append("v_pk_mul_f32 %s, %s, s[56:57]" % (v(tmp + j, 2), v(src + g + j, 2)))
            for j in range(8):
                L.append("v_exp_f32_e64 v%d, v%d clamp" % (tmp + j, tmp + j))
                L.append("v_max_f32 v%d, s58, v%d" % (src + g + j, src + g + j))
            for j in range(0, 8, 2):
                L.append("v_pk_add_f32 %s, %s, %s" % (v(tmp + j, 2), v(tmp + j, 2), v(src + g + j, 2)))
            for j in range(0, 8, 2):
                L.append("v_cvt_pk_bf16_f32 v%d, v%d, v%d" % (dst + (g + j) // 2, tmp + j, tmp + j + 1))
        return L

    def compute(self):
        a = self.a
        ws = s(self.rWS, 4)
        a.label("COMPUTE")
        self.role = "K"
        if self.opt.get("walk", 0) & 1:
            a("""s_mov_b64 exec, 0
            s_cmp_ge_u32 s5, 16
            s_cbranch_scc1 WKQ
            s_cmp_eq_u32 s3, 0
            s_cbranch_scc1 WKA0
            s_cmp_eq_u32 s3, 1
            s_cbranch_scc1 WKA1
            s_cmp_eq_u32 s3, 2
            s_cbranch_scc1 WKA2
            s_branch WKL0""")
            a.label("WKQ")
            a("""s_cmp_eq_u32 s3, 0
            s_cbranch_scc1 WKQ0
            s_cmp_eq_u32 s3, 1
            s_cbranch_scc1 WKQ1
            s_cmp_eq_u32 s3, 2
            s_cbranch_scc1 WKR0
            s_branch WKC0""" if self.opt.get("walk", 0) & 2 else "s_cmp_eq_u32 s3, 0\ns_cbranch_scc1 WKQ0\ns_cmp_eq_u32 s3, 1\ns_cbranch_scc1 WKQ1\ns_branch WKR0")
            a.label("WRET_A")
            a("s_mov_b64 exec, -1\ns_waitcnt lgkmcnt(0)\ns_nop 15")
        ax = [[240, 241, 242, 243], [244, 245, 246, 247], [252, 253, 254, 255]]
        aw = [[248, 249], [250, 251], [146, 147]]
        a("""s_lshr_b32 s60, s4, 1
        s_and_b32 s68, s5, 3
        s_lshl2_add_u32 s60, s60, s68
        s_and_b32 s64, s4, 1
        s_bfe_u32 s65, s5, 0x20002
        s_lshl2_add_u32 s61, s64, s65
        s_lshl1_add_u32 s66, s64, s65
        s_lshr_b32 s63, s3, 1
        s_and_b32 s64, s3, 1
        s_lshr_b32 s67, s5, 4
        s_lshl_b32 s69, s64, s67
        s_movk_i32 s70, 128
        s_lshr_b32 s70, s70, s67
        s_cmp_ge_u32 s5, 16
        s_cselect_b32 s61, s66, s61
        s_mov_b32 s10, 0xffff0000
        s_mov_b32 s11, 0xffff0000""")
        a(self.KARG)
        a("""v_and_b32 v2, 31, v1
        v_lshlrev_b32 v2, 7, v2
        s_lshl_b32 s65, s63, 13
        v_add_u32 v2, s65, v2
        v_lshrrev_b32 v3, 5, v1
        v_bfe_u32 v16, v1, 1, 3
        v_xor_b32 v16, v16, v3
        v_lshl_add_u32 v240, v16, 4, v2
        v_xor_b32 v241, 32, v240
        v_xor_b32 v242, 64, v240
        v_xor_b32 v243, 96, v240""")
        a("""v_bfe_u32 v16, v1, 2, 2
        v_lshl_add_u32 v17, v3, 3, v16
        v_xor_b32 v16, s69, v16
        v_lshlrev_b32 v16, 6, v16
        v_lshl_add_u32 v16, v17, 8, v16
        v_bfe_u32 v17, v1, 4, 1
        v_lshl_add_u32 v16, v17, 5, v16
        v_and_b32 v17, 3, v1
        v_lshl_add_u32 v248, v17, 3, v16
        v_xor_b32 v249, s70, v248""")
        for k in range(4):
            a("v_add_u32 v%d, 0x10000, v%d" % (244 + k, 240 + k))
            a("v_add_u32 v%d, 0x20000, v%d" % (252 + k, 240 + k))
        a("v_add_u32 v250, 0x10000, v248\nv_add_u32 v251, 0x10000, v249\nv_add_u32 v146, 0x20000, v248\nv_add_u32 v147, 0x20000, v249")
        a("s_waitcnt lgkmcnt(0)")
        a("s_load_dwordx2 s[8:9], s[32:33], %d" % WS_EP)
        self.srd(self.rWS, self.pWS, WS_SIZE)
        self.srd(self.rOUT, self.pOUT, 2048 * 2048)
        a("s_mov_b32 s56, %s\ns_mov_b32 s57, %s\ns_mov_b32 s58, %s" % (fhex(1.4426950408889634), fhex(1.4426950408889634), fhex(1e-6)))
        a("v_lshlrev_b32 v2, 4, v1")
        acc = [[64, 96], [80, 112]]
        pool = list(range(16, 64, 4))
        Z = self.opt.get("z", 6)
        CN = 252
        a("s_cmp_ge_u32 s5, 16\ns_cbranch_scc1 QCOMPUTE")
        n0 = self.nst
        a("""s_lshl1_add_u32 s59, s61, s64
        s_lshl_b32 s59, s59, 5
        s_lshl1_add_u32 s66, s60, s63
        s_add_u32 s59, s59, s66
        s_mul_i32 s59, s59, %d
        s_add_u32 s59, s59, 0x%x""" % (PLINE, WS_PART))
        P0, P1, PZ, ONES, zaddr = 128, 132, 136, 140, 144
        pk, vv, tmp, D, D2 = 180, 196, 212, 148, 164
        for j in range(4):
            a("v_mov_b32 v%d, 0x3f803f80" % (ONES + j))

        def prewrite():
            a("buffer_store_dwordx4 %s, v2, %s, s59 offen sc1" % (v(ONES, 4), ws))
            a("s_mov_b64 exec, 0xff")
            a("buffer_store_dwordx4 %s, v2, %s, s59 offen offset:1024 sc1" % (v(ONES, 4), ws))
            a("s_mov_b64 exec, -1")

        pw = self.opt.get("prewrite", 1)
        if pw == 1:
            prewrite()
        a("""v_lshrrev_b32 v3, 4, v1
        v_and_b32 v145, 1, v1
        v_lshl_add_u32 v4, v3, 1, v145
        v_lshlrev_b32 v%d, 4, v4
        v_mov_b32 v145, 0xfffefffe
        s_mov_b32 s60, 0x00030003
        s_mov_b32 s61, 0x00030003""" % zaddr)
        self.tail_addr()
        a("s_waitcnt lgkmcnt(0)")
        self.tags()
        K0, K1, V0, V1 = acc[0][0], acc[1][0], acc[0][1], acc[1][1]
        fill = []
        for i, src in enumerate((K0, K0 + 8, K1, K1 + 8)):
            fill += self.phi(src, pk + 4 * i, tmp, 8) + ["MARK"]
        hooks = {100: lambda: a("s_waitcnt vmcnt(0)")}
        if pw > 1:
            hooks[pw] = prewrite
        big = list(range(148, 180, 4)) + list(range(220, 240, 4)) if self.opt.get("keepx", 1) else []
        hooks[128 - 2 * Z] = lambda: a.label("WA_0")
        rest = self.gemm_loop(acc, pool + big, ax, aw, True, fill, Z, hooks)
        self.stamp()
        ndone = 4 - rest.count("MARK")
        vsrc = (V0, V0 + 8, V1, V1 + 8)
        vcvt = lambda i: ["v_cvt_pk_bf16_f32 v%d, v%d, v%d" % (vv + 4 * i + j, vsrc[i] + 2 * j, vsrc[i] + 2 * j + 1) for j in range(4)]
        mD = lambda i: "%s %s, %s, %s, %s" % (M32, v(D, 16), v(pk + 4 * i, 4), v(vv + 4 * i, 4), v(D, 16) if i else "0")
        mZ = lambda i: "%s %s, %s, %s, %s" % (M32, v(D2, 16), v(pk + 4 * i, 4), v(ONES, 4), v(D2, 16) if i else "0")
        pend = [x for i in range(ndone) for x in ([mZ(i)], vcvt(i) + [mD(i)])]
        g, gap = ndone, 0
        for k, x in enumerate(rest):
            if x == "MARK":
                pend += [[mZ(g)], vcvt(g) + [mD(g)]]
                g += 1
                continue
            run = 0
            while k + run < len(rest) and rest[k + run].startswith(("v_exp", "v_max")):
                run += 1
            if pend and run >= 5 and gap <= 0:
                for y in pend.pop(0):
                    a(y)
                gap = 5
            a(x)
            gap -= 1
        cv = [y for it in pend for y in it if y.startswith("v_cvt")]
        zs = [y for it in pend for y in it if y.startswith("v_mfma") and v(ONES, 4) in y]
        ds = [y for it in pend for y in it if y.startswith("v_mfma") and v(ONES, 4) not in y]
        for y in cv[:4] + zs + cv[4:] + ds:
            a(y)
        for src, p in ((D2, PZ), (D, P0)):
            for j in range(4):
                self.cvt(p + j, v(src + 2 * j), v(src + 2 * j + 1))
            a("s_mov_b64 exec, s[10:11]")
            for j in range(4):
                self.cvt(p + j, v(src + 8 + 2 * j), v(src + 9 + 2 * j))
            a("s_mov_b64 exec, %s" % ("s[60:61]" if p == PZ else "-1"))
            for x in self.mark(p, 145):
                a(x)
            if p == PZ:
                a("buffer_store_dwordx4 %s, v%d, %s, s59 offen offset:1024 sc1" % (v(PZ, 4), zaddr, ws))
                a("s_mov_b64 exec, -1")
            else:
                a("buffer_store_dwordx4 %s, v2, %s, s59 offen sc1" % (v(p, 4), ws))
        self.stamp()
        a("s_barrier")
        if self.opt.get("wide"):
            self.wo_addr()
            if self.opt["wide"] == 1:
                a("s_waitcnt vmcnt(0)")
            a("s_barrier")
            self.stamp()
            if self.opt["wide"] == 1:
                self.w_pqload()
            self.read_wo(0, 1)
            assert self.nst == self.kv_tail_nst
            self.wide_tail()
        else:
            assert self.nst == self.kv_tail_nst
            self.kv_tail()
        a.label("WA_1")
        a("s_endpgm")
        self.nst = n0
        a.label("QCOMPUTE")
        a.unpk = False
        self.role = "Q"
        a("""s_lshl1_add_u32 s66, s60, s63
        s_lshl2_add_u32 s66, s66, s61
        s_lshl1_add_u32 s66, s66, s64
        s_lshl_b32 s65, s66, 13
        s_add_u32 s65, s65, 0x%x
        s_add_u32 s67, s65, 0x1000
        v_mov_b32 v4, 0xfffefffe
        s_lshl3_add_u32 s60, s4, s5
        s_sub_u32 s60, s60, 16""" % WS_PQ)
        self.ra_inv(1, 8)
        a("s_waitcnt lgkmcnt(0)")
        self.tags()

        def qpost(nb):
            L = []
            for mb in range(2):
                for h in range(2):
                    d = 128 + 16 * nb + 8 * mb + 4 * h
                    L += self.phi(acc[mb][nb] + 8 * h, d, 212, 8) + self.mark(d, 4)
                    L.append("buffer_store_dwordx4 %s, v2, %s, s%d offen offset:%d sc1" % (v(d, 4), ws, 67 if nb else 65, (h * 2 + mb) * 1024))
            return L

        big = list(range(160, 212, 4)) + list(range(220, 240, 4)) if self.opt.get("keepx", 1) else []
        rest = self.gemm_loop(acc, pool + big, ax, aw, False, qpost(0), self.opt.get("zq", 6), {100: lambda: a("s_waitcnt vmcnt(0)"), 128 - 2 * self.opt.get("zq", 6): lambda: a.label("WQ_0")})
        self.stamp()
        a("ds_write_b64 v14, v[12:13]")
        for x in rest + qpost(1):
            a(x)
        a.label("WQ_1")
        a("s_waitcnt vmcnt(%d) lgkmcnt(0)\ns_barrier" % self.opt.get("qdr", 0))
        self.stamp()
        self.pad_stamps(9)
        a.label("HELPER")
        a("s_lshl_b32 s62, s60, 7\ns_add_u32 s62, s62, 0x%x\ns_movk_i32 s34, 512" % WS_GO)
        self.flip_marks()
        a("s_branch B3_ENTRY")

    def wo_addr(self):
        a = self.a
        a("s_and_b32 s63, s3, 3")
        a("""v_bfe_u32 v14, v1, 2, 2
        v_lshrrev_b32 v15, 5, v1
        v_lshl_add_u32 v15, v15, 2, v14
        v_xor_b32 v14, s63, v14
        v_lshlrev_b32 v14, 6, v14
        v_lshl_add_u32 v14, v15, 8, v14
        v_and_b32 v15, 1, v1
        v_lshl_add_u32 v14, v15, 5, v14
        v_bfe_u32 v15, v1, 4, 1
        v_lshl_add_u32 v14, v15, 4, v14
        v_bfe_u32 v15, v1, 1, 1
        v_lshl_add_u32 v14, v15, 3, v14
        v_add_u32 v15, 0x10000, v14
        v_add_u32 v0, 0x20000, v14""")

    def tail_addr(self):
        a = self.a
        a("""v_lshlrev_b32 v2, 4, v1
        ORB
        s_lshl3_add_u32 s66, s65, s3
        s_lshl_b32 s67, s66, 13
        s_add_u32 s67, s67, 0x%x
        s_mul_i32 s70, s3, %d
        s_mul_i32 s71, s4, 0x%x
        s_add_u32 s70, s70, s71
        s_add_u32 s70, s70, 0x%x
        s_add_u32 s71, s70, %d
        v_lshrrev_b32 v8, 4, v1
        v_xor_b32 v8, 1, v8
        v_and_b32 v9, 1, v1
        v_lshl_add_u32 v8, v8, 1, v9
        v_lshlrev_b32 v8, 4, v8
        s_lshl_b32 s63, s3, 12
        v_add_u32 v13, s63, v2
        s_mov_b32 s10, 0xffff0000
        s_mov_b32 s11, 0xffff0000""".replace("ORB", "s_and_b32 s65, s5, 7\ns_lshr_b32 s66, s4, 1\ns_lshl3_add_u32 s65, s66, s65" if self.opt.get("omap") else "s_and_b32 s65, s5, 3\ns_lshl2_add_u32 s65, s4, s65") % (WS_PQ, 2 * PLINE, RED_STRIDE, WS_RED, PLINE))
        if self.opt.get("wide"):
            a("s_bfe_u32 s63, s5, 0x10002\ns_lshl_b32 s63, s63, 10\ns_add_u32 s67, s67, s63\ns_add_u32 s71, s67, 0x1000")

    def w_pqload(self):
        for i in range(4):
            self.a("buffer_load_dwordx4 %s, v2, %s, s%d offen offset:%d sc1" % (v(32 + 4 * i, 4), s(self.rWS, 4), 71 if i >= 2 else 67, (i & 1) * 2048))

    def wide_tail(self):
        a = self.a
        ws = s(self.rWS, 4)
        a.label("KV_TAIL")
        WO, PQ, RD, OP, AC = 128, 32, 48, 16, 64
        a("""s_mov_b32 s58, %s
        s_lshl_b32 s63, s5, 13
        s_and_b32 s64, s63, 0x6000
        s_add_u32 s64, s64, 0x8000
        v_add_u32 v4, s64, v2
        v_xor_b32 v5, 0x2000, v4
        v_xor_b32 v6, 0x4000, v4
        v_xor_b32 v7, 0x6000, v4
        s_lshl_b32 s63, s3, 11
        s_add_u32 s63, s63, 0x10000
        v_and_b32 v10, 31, v1
        v_bfe_u32 v11, v1, 1, 2
        v_lshrrev_b32 v9, 5, v1
        v_lshlrev_b32 v9, 1, v9
        v_xor_b32 v11, v11, v9
        v_lshlrev_b32 v11, 4, v11
        v_lshl_add_u32 v10, v10, 6, v11
        v_add_u32 v10, s63, v10
        v_bfe_u32 v9, v1, 3, 2
        v_lshlrev_b32 v9, 4, v9
        v_xor_b32 v9, v9, v2
        v_add_u32 v9, s63, v9
        v_lshrrev_b32 v3, 2, v1
        v_and_b32 v11, 3, v1
        v_lshlrev_b32 v11, 4, v11
        v_lshl_add_u32 v3, v3, 11, v11
        v_xor_b32 v11, 16, v10
        s_lshr_b32 s63, s5, 2
        s_and_b32 s64, s63, 1
        s_lshl1_add_u32 s65, s65, s64
        s_lshl_b32 s65, s65, 16
        s_lshl_b32 s63, s63, 2
        s_xor_b32 s63, s63, s3
        s_xor_b32 s63, s63, 4
        s_lshl_b32 s63, s63, 6
        s_add_u32 s64, s65, s63
        s_add_u32 s65, s64, 0x8000""" % fhex(1e-6))
        wd = self.opt["wide"]
        if wd == 1:
            self.poll(self.w_pqload, lambda: self.markcheck(PQ, 16, 12), 12, first_issued=True)
        a("s_waitcnt lgkmcnt(0)\ns_barrier")
        self.stamp()
        if wd == 2:
            self.w_pqload()
        if wd == 3:
            lab = a.newlabel("NOPQ")
            a("s_cmp_ge_u32 s3, 4\ns_cbranch_scc1 " + lab)
            self.w_pqload()
            a.label(lab)

        def issue():
            for pi in range(2):
                a("buffer_load_dwordx4 %s, v2, %s, s70 offen offset:%d sc1" % (v(RD + 8 * pi, 4), ws, pi * PLINE))
                a("buffer_load_dwordx4 %s, v8, %s, s70 offen offset:%d sc1" % (v(RD + 8 * pi + 4, 4), ws, pi * PLINE + 1024))

        self.diag_delay("d_red")
        issue()
        lab = a.newlabel("NOWO")
        a("s_cmp_ge_u32 s3, 4\ns_cbranch_scc1 " + lab)
        for n, sl in ((1, 3), (2, 4), (3, 0)):
            self.read_wo(n, sl)
        a.label(lab)
        if wd != 1:
            self.poll(self.w_pqload, lambda: self.markcheck(PQ, 16, 12), 12, first_issued=True)
        self.poll(issue, lambda: self.markcheck(RD, 16, 12), 12, first_issued=True)
        self.stamp()

        def sel(i):
            b = RD + 8 * (i >> 1)
            for j in range(4):
                x, y = (b + j, b + 4 + j) if i & 1 == 0 else (b + 4 + j, b + j)
                a("v_cndmask_b32 v%d, v%d, v%d, s[10:11]" % (OP + 4 * i + j, x, y))

        mf = lambda i: a("%s %s, %s, %s, 0" % (M32, v(AC + 16 * i, 16), v(OP + 4 * i, 4), v(PQ + 4 * i, 4)))
        sel(0)
        sel(1)
        mf(0)
        sel(2)
        mf(1)
        sel(3)
        mf(2)
        for i in range(4):
            d = AC + 16 * i
            num, den = (d, d + 8) if i & 1 == 0 else (d + 8, d)
            if i == 0:
                mf(3)
            a("v_add_f32 v%d, s58, v%d\nv_rcp_f32 v%d, v%d" % (den, den, den, den))
            for j in range(0, 8, 2):
                a("v_pk_mul_f32 %s, %s, %s op_sel_hi:[1,0]" % (v(num + j, 2), v(num + j, 2), v(den, 2)))
            for j in range(4):
                self.cvt(den + 4 + j, v(num + 2 * j), v(num + 2 * j + 1))
            a("ds_write_b128 v13, %s offset:%d" % (v(den + 4, 4), 32768 + i * 1024))
        a("s_waitcnt lgkmcnt(0)\ns_barrier")
        self.stamp()
        frags, mfl = {}, []
        d = v(AC, 16)
        for h in range(32):
            frags[h] = (["ds_read_b128 {r}, v%d offset:%d" % (4 + (h >> 3), (h & 7) * 1024)], None)
            mfl.append(("%s %s, %s, {0}, %s" % (M32, d, v(WO + 4 * h, 4), d if h else "0"), [h]))
        self.lds_reset()
        self.run_mfmas(mfl, frags, list(range(16, 48, 4)), {}, maxread=1)
        fl = self.opt.get("outflag", "sc1")
        t = AC + 16
        for j in range(8):
            self.cvt(t + j, v(AC + 2 * j), v(AC + 2 * j + 1))
        a("ds_write_b128 v10, %s\nds_write_b128 v11, %s" % (v(t, 4), v(t + 4, 4)))
        a("ds_read_b128 %s, v9\nds_read_b128 %s, v9 offset:1024" % (v(t + 8, 4), v(t + 12, 4)))
        for k in range(2):
            a("s_waitcnt lgkmcnt(%d)" % (1 - k))
            a("buffer_store_dwordx4 %s, v3, %s, s%d offen %s" % (v(t + 8 + 4 * k, 4), s(self.rOUT, 4), 64 + k, fl))
        lab = a.newlabel("NOEP")
        a("s_or_b32 s56, s4, s3\ns_or_b32 s56, s56, s5\ns_cbranch_scc1 " + lab)
        self.poll(lambda: a("buffer_load_dwordx2 v[6:7], off, %s, 0 offset:%d sc1" % (ws, WS_NOTE)),
                  lambda: a("v_xor_b32 v12, s6, v6\nv_bitop3_b32 v12, v12, v7, s7 bitop3:0xf6"), 12)
        a("v_mov_b32 v6, s8\nv_mov_b32 v7, s9\ns_mov_b64 exec, 1")
        a("buffer_store_dwordx2 v[6:7], off, %s, 0 offset:%d" % (ws, WS_EP))
        a("s_mov_b64 exec, -1")
        a.label(lab)
        self.end()

    def kv_tail(self):
        a = self.a
        ws = s(self.rWS, 4)
        a.label("KV_TAIL")
        a.unpk = bool(self.opt.get("unpk", 2) & 2)
        WO, PQ, RD, OP, AC = 128, 16, 48, 80, 96
        a("s_waitcnt vmcnt(0)")
        a("s_add_u32 s68, s67, 0x1000\ns_mov_b32 s62, s67\ns_mov_b32 s58, %s" % fhex(1e-6))
        pqload = lambda: [a("buffer_load_dwordx4 %s, v2, %s, s%d offen offset:%d sc1" % (v(PQ + 4 * i, 4), ws, 68 if i >= 4 else 62, (i & 3) * 1024)) for i in range(8)]
        self.diag_delay("d_pq")
        pql = self.opt.get("pqlate", 1)
        if pql != 1:
            pqload()
        if pql == 2:
            self.stamp()
            self.poll(pqload, lambda: self.markcheck(PQ, 32, 12), 12, first_issued=True)
        a("s_waitcnt lgkmcnt(0)\ns_barrier")
        self.stamp()
        if pql == 1:
            pqload()
        lab = a.newlabel("NOWO")
        a("s_cmp_lt_u32 s3, 4\ns_cbranch_scc1 " + lab)
        if self.opt.get("w2late", 0):
            self.read_wo(2)
        self.read_wo(3)
        a.label(lab)
        redat = self.opt.get("redat", -1)
        if pql != 2 and redat < 0:
            self.poll(pqload, lambda: self.markcheck(PQ, 32, 12), 12, first_issued=True)
            self.stamp()

        def issue():
            for pi in range(2):
                a("buffer_load_dwordx4 %s, v2, %s, s70 offen offset:%d sc1" % (v(RD + 8 * pi, 4), ws, pi * PLINE))
                a("buffer_load_dwordx4 %s, v8, %s, s70 offen offset:%d sc1" % (v(RD + 8 * pi + 4, 4), ws, pi * PLINE + 1024))

        a("""s_lshl_b32 s63, s5, 13
        s_and_b32 s64, s63, 0x6000
        s_add_u32 s64, s64, OBASE
        v_add_u32 v13, OBASE, v13
        v_add_u32 v4, s64, v2
        v_xor_b32 v5, 0x2000, v4
        v_xor_b32 v6, 0x4000, v4
        v_xor_b32 v7, 0x6000, v4
        s_lshl_b32 s69, s3, 12
        s_add_u32 s69, s69, STG
        v_and_b32 v10, 31, v1
        v_bfe_u32 v14, v1, 1, 2
        v_lshrrev_b32 v15, 5, v1
        v_lshlrev_b32 v15, 1, v15
        v_xor_b32 v14, v14, v15
        v_lshlrev_b32 v14, 4, v14
        v_lshl_add_u32 v10, v10, 6, v14
        v_add_u32 v10, s69, v10
        v_xor_b32 v14, 16, v10
        v_bfe_u32 v15, v1, 3, 2
        v_lshlrev_b32 v15, 4, v15
        v_xor_b32 v15, v15, v2
        v_add_u32 v15, s69, v15
        v_lshrrev_b32 v3, 2, v1
        v_and_b32 v11, 3, v1
        v_lshlrev_b32 v11, 4, v11
        v_lshl_add_u32 v3, v3, 11, v11
        s_lshl_b32 s65, s65, 17
        s_and_b32 s64, s3, 3
        s_lshl2_add_u32 s69, s14, s64
        s_lshl_b32 s69, s69, 6
        s_add_u32 s64, s65, s69
        s_add_u32 s65, s64, 0x8000
        s_add_u32 s66, s64, 0x10000
        s_add_u32 s67, s64, 0x18000""".replace("OBASE", "0x18000" if self.opt.get("w2late", 0) else "0").replace("STG", "0" if self.opt.get("w2late", 0) else "0x14000"))
        if self.opt.get("rbar", 1):
            a("s_barrier")
        self.diag_delay("d_red")
        if redat >= 0:
            lab = a.newlabel("LATE")
            a("s_waitcnt vmcnt(%d)\ns_cmp_ge_u32 s3, 4\ns_cbranch_scc1 %s\ns_waitcnt vmcnt(0)" % (redat, lab))
            self.diag_delay("d_old")
            a.label(lab)
            issue()
            a("s_waitcnt vmcnt(4)")
            self.markcheck(PQ, 32, 12)
            ok = a.newlabel("PQOK")
            a("v_cmp_ne_u32 vcc, 0, v12\ns_cbranch_vccz " + ok)
            self.poll(pqload, lambda: self.markcheck(PQ, 32, 12), 12)
            a.label(ok)
            self.stamp()
        self.poll(issue, lambda: self.markcheck(RD, 16, 12), 12, first_issued=redat >= 0)
        self.stamp()
        accs = [AC, AC + 16, RD, RD + 16]

        def sel(i):
            pi, h = i >> 1, i & 1
            b = RD + 8 * pi
            for j in range(4):
                x, y = (b + j, b + 4 + j) if h == 0 else (b + 4 + j, b + j)
                a("v_cndmask_b32 v%d, v%d, v%d, s[10:11]" % (OP + 4 * i + j, x, y))

        def mf(i, mb, d):
            return "%s %s, %s, %s, 0" % (M32, v(d, 16), v(OP + 4 * i, 4), v(PQ + 4 * (i * 2 + mb), 4))

        def post(i, mb, d):
            pi, h = i >> 1, i & 1
            num, den = (d, d + 8) if h == 0 else (d + 8, d)
            L = ["v_add_f32 v%d, s58, v%d" % (den, den), "v_rcp_f32 v%d, v%d" % (den, den)]
            for j in range(0, 8, 2):
                L.append("v_pk_mul_f32 %s, %s, %s op_sel_hi:[1,0]" % (v(num + j, 2), v(num + j, 2), v(den, 2)))
            for j in range(4):
                L.append("v_cvt_pk_bf16_f32 v%d, v%d, v%d" % (den + 4 + j, num + 2 * j, num + 2 * j + 1))
            L.append("ds_write_b128 v13, %s offset:%d" % (v(den + 4, 4), mb * 32768 + i * 1024))
            return L

        sel(0)
        sel(1)
        a(mf(0, 0, accs[0]))
        sel(2)
        a(mf(1, 0, accs[1]))
        sel(3)
        a(mf(2, 0, accs[2]))
        a(mf(3, 0, accs[3]))
        P = [post(i, 0, accs[i]) for i in range(4)]
        for x in P[0][:2]:
            a(x)
        for i in range(4):
            if i < 3:
                for x in P[i + 1][:2]:
                    a(x)
            for x in P[i][2:]:
                a(x)
        acc1 = [RD, RD + 16, AC + 16, RD]
        a(mf(0, 1, acc1[0]))
        a(mf(1, 1, acc1[1]))
        a("s_waitcnt lgkmcnt(0)\ns_barrier")
        self.stamp()
        a("s_cmp_ge_u32 s3, 4\ns_cbranch_scc1 OUT_GEMM")
        n0 = self.nst
        a(mf(2, 1, acc1[2]))
        a(mf(3, 1, AC))
        a.unpk = bool(self.opt.get("upf", 1))
        P = [post(i, 1, acc1[i] if i < 3 else AC) for i in range(4)]
        for x in P[0][:2]:
            a(x)
        for i in range(4):
            if i < 3:
                for x in P[i + 1][:2]:
                    a(x)
            for x in P[i][2:]:
                a(x)
        a.unpk = False
        a("s_waitcnt lgkmcnt(0)\ns_barrier")
        lab = a.newlabel("NOEP")
        a("s_or_b32 s56, s4, s3\ns_or_b32 s56, s56, s5\ns_cbranch_scc1 " + lab)
        self.poll(lambda: a("buffer_load_dwordx2 v[6:7], off, %s, 0 offset:%d sc1" % (ws, WS_NOTE)),
                  lambda: a("v_xor_b32 v12, s6, v6\nv_bitop3_b32 v12, v12, v7, s7 bitop3:0xf6"), 12)
        a("v_mov_b32 v6, s8\nv_mov_b32 v7, s9\ns_mov_b64 exec, 1")
        a("buffer_store_dwordx2 v[6:7], off, %s, 0 offset:%d" % (ws, WS_EP))
        a("s_mov_b64 exec, -1")
        a.label(lab)
        self.end()
        self.nst = n0
        a.label("OUT_GEMM")
        if self.opt.get("oprio", 1):
            a("s_setprio %d" % self.opt.get("oprio", 1))
        fl = self.opt.get("outflag", "sc1")
        out = s(self.rOUT, 4)
        frags, mfl = {}, []
        pool = [PQ + 8 * i for i in range(4)] + [PQ + 4, PQ + 12]

        def b11b():
            assert not self.fq
            self.lds_wait(self.last_fill_lds)
            a("s_barrier")

        AC2 = OP
        for mb in range(2):
            d = v(AC2 if mb else AC, 16)
            for h in range(32):
                frags[(mb, h)] = (["ds_read_b128 {r}, v%d offset:%d" % (4 + (h >> 3), mb * 32768 + (h & 7) * 1024)],
                                  b11b if (mb, h) == (1, 0) else None)
                mfl.append(("%s %s, %s, {0}, %s" % (M32, d, v(WO + 4 * h, 4), d if h else "0"), [(mb, h)]))
                if mb == 0 and h == 0:
                    mfl.append((mf(2, 1, acc1[2]), []))
                if mb == 0 and h == self.opt.get("oh3", 8):
                    mfl.append((mf(3, 1, acc1[3]), []))

        def epi(mb, d, t):
            L = ["v_cvt_pk_bf16_f32 v%d, v%d, v%d" % (t + j, d + 2 * j, d + 2 * j + 1) for j in range(8)]
            L += ["ds_write_b128 v10, %s offset:%d" % (v(t, 4), mb * 2048), "ds_write_b128 v14, %s offset:%d" % (v(t + 4, 4), mb * 2048),
                  "ds_read_b128 %s, v15 offset:%d" % (v(t + 8, 4), mb * 2048), "ds_read_b128 %s, v15 offset:%d" % (v(t + 12, 4), mb * 2048 + 1024)]
            L2 = ["WAITLDS 1", "buffer_store_dwordx4 %s, v3, %s, s%d offen %s" % (v(t + 8, 4), out, 64 + 2 * mb, fl),
                  "WAITLDS 0", "buffer_store_dwordx4 %s, v3, %s, s%d offen %s" % (v(t + 12, 4), out, 65 + 2 * mb, fl)]
            return L, L2

        e0, e0b = epi(0, AC, RD)
        fillers = {0: post(0, 1, acc1[0]) + post(1, 1, acc1[1]), 7: post(2, 1, acc1[2]), self.opt.get("oh3", 8) + 6: post(3, 1, acc1[3]), 36: e0, 46: e0b}
        self.lds_reset()
        rest = self.run_mfmas(mfl, frags, pool, fillers, maxread=1, budget=self.opt.get("obud", 16))
        assert not rest
        e1, e1b = epi(1, AC2, RD + 16)
        for x in e1 + e1b:
            self.emit_filler(x)
        self.end()

    def role_b(self):
        a = self.a
        a.label("ROLE_B")
        a.unpk = bool(self.opt.get("unpk", 2) & 1)
        self.role = "B"
        ws = s(self.rWS, 4)
        XW, SW, XW3 = 0, 3, 1
        if self.opt.get("walk", 0) & 2:
            a("s_mov_b64 exec, 0")
            for w in range(1, 7):
                a("s_cmp_eq_u32 s3, %d\ns_cbranch_scc1 WKB%d" % (w, w - 1))
            a("s_cmp_eq_u32 s3, 7\ns_cbranch_scc1 WKC0")
            a.label("WRET_C")
            a("s_cmp_lt_u32 s5, 24\ns_cbranch_scc1 WRET_A" if self.opt.get("walk", 0) & 1 else "s_nop 0")
            a.label("WRET_B")
            a("s_mov_b64 exec, -1\ns_waitcnt lgkmcnt(0)\ns_nop 15")
        a(self.KARG)
        a("s_waitcnt lgkmcnt(0)")
        a("s_load_dwordx2 s[8:9], s[32:33], %d" % WS_EP)
        self.srd(self.rWS, self.pWS, WS_SIZE)
        a("""v_lshrrev_b32 v4, 5, v1
        v_and_b32 v5, 31, v1
        v_lshlrev_b32 v6, 4, v5
        v_lshl_add_u32 v3, s3, 3, v4
        v_xor_b32 v3, s60, v3
        v_lshl_add_u32 v3, v3, 9, v6
        v_lshl_add_u32 v11, v4, 3, s3
        v_xor_b32 v8, s60, v11
        v_lshl_add_u32 v11, v11, 15, v6
        v_lshl_add_u32 v11, v8, 9, v11
        s_lshl_b32 s66, s60, 15
        s_add_u32 s66, s66, 0x%x
        s_mov_b32 s13, 0x%x
        v_mov_b32 v14, 0xfffefffe""" % (WS_X1, WS_X1))
        a("""s_lshl_b32 s67, s4, 10
        s_add_u32 s67, s67, 0x%x
        v_and_b32 v12, 15, v1
        v_lshrrev_b32 v13, 4, v1
        s_xor_b32 s71, s61, 7
        s_xor_b32 s62, s3, %d
        s_or_b32 s71, s71, s62""" % (WS_X2S, SW))
        a("""s_bitcmp1_b32 s61, 0
        s_cselect_b64 s[48:49], s[26:27], s[24:25]
        s_cselect_b64 s[52:53], s[24:25], s[26:27]
        s_cselect_b32 s34, 0x8000, 0
        s_mov_b32 s50, 0x%x
        s_mov_b32 s51, 0x20000
        s_mov_b32 s54, 0x%x
        s_mov_b32 s55, 0x20000
        s_add_u32 s34, s34, s70
        s_add_u32 s34, s34, %d
        s_xor_b32 s35, s34, 0x8000""" % (2048 * 514, 2048 * 514, WB))
        self.srd(self.rOUT, self.pOUT, 2048 * 2048)

        CS, TW0, TWX, F16 = 16, 40, 48, 56
        RA = 64
        T = 144
        a("""v_cvt_f32_u32 v16, v5
        s_bfe_u32 s62, s3, 0x10001
        s_and_b32 s63, s3, 1
        s_lshl2_add_u32 s62, s62, s63
        s_lshl_b32 s62, s62, 7
        s_add_u32 s62, s62, s60
        v_lshl_add_u32 v17, v4, 8, s62
        v_cvt_f32_u32 v17, v17
        v_mul_f32 v17, v17, v16
        s_lshr_b32 s62, s3, 2
        v_xor_b32 v18, s62, v1
        v_lshlrev_b32 v18, 31, v18
        v_or_b32 v18, %s, v18
        v_fmamk_f32 v17, v17, %s, v18
        v_fmamk_f32 v18, v16, %s, v17
        s_lshl_b32 s62, s62, 31
        v_cos_f32 v20, v17
        v_sin_f32 v21, v17
        v_cos_f32 v22, v18
        v_sin_f32 v23, v18
        s_lshr_b32 s64, s3, 1
        s_lshl_b32 s64, s64, 10
        s_lshl3_add_u32 s64, s63, s64
        s_add_u32 s64, s64, %d
        v_add_u32 v15, s64, v2""" % (fhex(0.125), fhex(1 / 2048), fhex(1 / 32), RAB))
        a("""v_cvt_pk_bf16_f32 v24, v20, v21
        v_cvt_pk_bf16_f32 v25, v22, v23
        v_cvt_pk_bf16_f32 v26, -v21, v20
        v_cvt_pk_bf16_f32 v27, -v23, v22
        v_xor_b32 v24, s62, v24
        v_xor_b32 v25, s62, v25
        v_xor_b32 v26, s62, v26
        v_xor_b32 v27, s62, v27
        ds_write_b64 v15, v[24:25]
        ds_write_b64 v15, v[26:27] offset:4096""")
        self.ra_inv(0, 136)
        a("s_lshl_b32 s14, s60, 9\ns_add_u32 s14, s14, 0x%x\ns_and_b32 s63, s3, 1" % (WS_X1 + 64 * 32768))
        FA = 128
        a("""v_bfe_u32 v16, v1, 3, 2
        s_lshl_b32 s62, s4, 2
        v_add_u32 v17, s62, v16
        v_lshl_add_u32 v17, v4, 5, v17
        v_mul_u32_u24 v17, 514, v17
        v_and_b32 v17, -16, v17
        v_sub_u32 v16, v1, v16
        v_and_b32 v18, 7, v16
        v_xor_b32 v19, 4, v18
        v_cmp_gt_u32 s[68:69], 5, v18
        v_cmp_gt_u32 s[58:59], 5, v19
        v_lshl_add_u32 v128, v18, 4, v17
        v_lshl_add_u32 v129, v19, 4, v17""")
        a("""v_lshl_add_u32 v7, v1, 3, s70
        s_lshr_b32 s62, s3, 1
        s_lshl_b32 s62, s62, 13
        s_lshl3_add_u32 s62, s63, s62
        s_add_u32 s62, s62, %d
        v_lshlrev_b32 v8, 11, v13
        v_lshl_add_u32 v8, v12, 4, v8
        v_add_u32 v8, s62, v8
        v_lshl_add_u32 v10, s3, 5, v5
        v_lshlrev_b32 v130, 13, v4
        v_add_u32 v130, %d, v130
        v_lshl_add_u32 v9, v10, 4, v130
        v_sub_u32 v10, 0, v10
        v_and_b32 v10, 0x1ff, v10
        v_lshl_add_u32 v10, v10, 4, v130
        v_add_u32 v131, %d, v2
        s_mul_i32 s62, s3, %d
        s_lshl_b32 s63, s61, 6
        s_add_u32 s62, s62, s63
        s_add_u32 s63, s62, %d
        s_add_u32 s64, s62, %d
        s_add_u32 s65, s62, %d
        s_waitcnt lgkmcnt(0)""" % (ZB, ZB, TB, 8 * 32 * 514, 64 * 514 - 1024, 128 * 514 - 2048, 192 * 514 - 3072))
        self.tags()

        def tab(reg, q, n):
            for i in range(n):
                a("ds_read_b128 %s, v131 offset:%d" % (v(reg + 4 * i, 4), (q + i) * 1024))

        fdp = [int(x) for x in str(self.opt.get("fdp", "0404"))[-4:].rjust(4, "0")]
        fdn = [0]

        def fnext(n=1):
            for _ in range(n):
                fdma(fdn[0] >> 2, fdn[0] & 3)
                fdn[0] += 1

        def fdma(second, q):
            a("s_mov_b64 exec, %s\ns_mov_b32 m0, s%d\nbuffer_load_dwordx4 v%d, %s, s%d offen offset:%d NT lds\ns_mov_b64 exec, -1".replace("NT", "nt" if self.opt.get("ntf", 2) >> second & 1 else "") % (
                "s[58:59]" if q >> 1 else "s[68:69]", 35 if second else 34, FA + (q >> 1), s(52 if second else 48, 4), 62 + q, q * 1024),
              at=60 + self.opt.get("fgap", 170) * (fdn[0] - fdp[0]))

        ls = self.opt.get("ls", 0)
        msc = self.opt.get("msc", 10) / 10.0
        a("s_waitcnt vmcnt(%d)\ns_barrier" % 4)
        XF, T1, U = T, T + 16, T + 48
        early = self.opt.get("cearly", 6)
        tab(CS, TQ_CS, early)
        nb = 0
        bpf = self.opt.get("bpf", 0)
        if bpf:
            a("""s_lshl3_add_u32 s15, s61, s3
            s_lshl_b32 s15, s15, 2
            s_lshl_b32 s56, s4, 2
            s_xor_b32 s56, s56, s4
            s_andn2_b32 s56, 4, s56
            s_lshl_b32 s56, s56, 6
            s_add_u32 s15, s15, s56
            s_mul_i32 s15, s15, 3072
            s_and_b32 s56, s4, 1
            s_lshl_b32 s56, s56, 9
            s_add_u32 s15, s15, s56
            v_mul_u32_u24 v124, 0xc00, v13
            v_bfe_u32 v125, v1, 2, 2
            v_lshl_add_u32 v124, v125, 10, v124
            v_and_b32 v125, 3, v1
            v_lshl_add_u32 v124, v125, 7, v124
            s_mov_b64 s[44:45], s[18:19]
            s_mov_b32 s46, 0x180000""")

        def dobpf():
            a("""s_mov_b32 exec_lo, 0x0fff0fff
            s_mov_b32 exec_hi, 0x0fff0fff
            buffer_load_dword v126, v124, s[44:47], s15 offen
            s_mov_b64 exec, -1""")
        if bpf == 1:
            dobpf()
            nb = 1
        fnext(fdp[0])
        a("s_waitcnt vmcnt(%d)" % (fdp[0] + nb))
        self.stamp()
        a.label("WB_0")
        pre = ["ds_read_b128 %s, v131" % v(CS + 4 * i, 4) for i in range(early)]
        a.capture(ls & 1)
        for q in range(4):
            a("ds_read_b64_tr_b16 %s, v7 offset:%d" % (v(XF + 4 * q, 2), q * 1024))
            a("ds_read_b64_tr_b16 %s, v7 offset:%d" % (v(XF + 4 * q + 2, 2), q * 1024 + 512))
        tab(CS + 4 * early, TQ_CS + early, 12 - early)
        if bpf == 2:
            dobpf()
        a("s_mov_b32 s22, 0x80000\ns_mov_b32 s23, 0x20000\ns_lshl3_add_u32 s15, s60, s3\ns_lshl_b32 s15, s15, 10\nbuffer_load_dwordx4 v[116:119], v2, s[20:23], s15 offen" if self.opt.get("wopf", 1) else "s_nop 0", at=56)
        sp1 = [(fdp[1] + 3 - i) // 4 for i in range(4)]
        fnext(sp1[0])

        def stage_cs(re, im, out, conj):
            S, N = (CS + 16, CS + 8) if conj else (CS + 8, CS + 16)
            for tau in range(2):
                a("%s %s, %s, %s, 0" % (M16, v(out + 4 * tau, 4), v(re, 4), v(CS + 4 * tau, 4)))
                a("%s %s, %s, %s, 0" % (M16, v(out + 8 + 4 * tau, 4), v(im, 4), v(CS + 4 * tau, 4)))
                a("%s %s, %s, %s, %s" % (M16, v(out + 4 * tau, 4), v(im, 4), v(S + 4 * tau, 4), v(out + 4 * tau, 4)))
                a("%s %s, %s, %s, %s" % (M16, v(out + 8 + 4 * tau, 4), v(re, 4), v(N + 4 * tau, 4), v(out + 8 + 4 * tau, 4)))

        def twiddle(t, tws, tmp, conj):
            for tau in range(2):
                for j in (0, 2):
                    re, im = t + 4 * tau + j, t + 8 + 4 * tau + j
                    sn_ = tws[tau] + 4 + j
                    k = tmp + 8 * tau + 2 * j
                    a("v_pk_mul_f32 %s, %s, %s" % (v(k, 2), v(im, 2), v(sn_, 2)))
                    a("v_pk_mul_f32 %s, %s, %s" % (v(k + 2, 2), v(re, 2), v(sn_, 2)))
            ng = " neg_lo:[0,0,1] neg_hi:[0,0,1]"
            for tau in range(2):
                for j in (0, 2):
                    re, im = t + 4 * tau + j, t + 8 + 4 * tau + j
                    c = tws[tau] + j
                    k = tmp + 8 * tau + 2 * j
                    a("v_pk_fma_f32 %s, %s, %s, %s%s" % (v(re, 2), v(re, 2), v(c, 2), v(k, 2), ng if conj else ""))
                    a("v_pk_fma_f32 %s, %s, %s, %s%s" % (v(im, 2), v(im, 2), v(c, 2), v(k + 2, 2), "" if conj else ng))

        a("s_waitcnt lgkmcnt(%d)" % (16 - early))
        stage_cs(XF, XF + 4, T1, False)
        a("s_waitcnt lgkmcnt(%d)" % (12 - early))
        stage_cs(XF + 8, XF + 12, T1 + 16, False)
        fnext(sp1[1])
        a("s_waitcnt lgkmcnt(0)")
        tab(RA, 24, 8)
        for m in range(2):
            t = T1 + 16 * m
            twiddle(t, [TW0, TWX], T + 64 + 16 * m, False)
            for tau in range(2):
                u = U + 8 * m + 4 * tau
                self.cvt(u, v(t + 4 * tau), v(t + 4 * tau + 1))
                self.cvt(u + 1, v(t + 4 * tau + 2), v(t + 4 * tau + 3))
                self.cvt(u + 2, v(t + 8 + 4 * tau), v(t + 8 + 4 * tau + 1))
                self.cvt(u + 3, v(t + 8 + 4 * tau + 2), v(t + 8 + 4 * tau + 3))
            for tau in range(2):
                u = U + 8 * m + 4 * tau
                a("%s %s, %s, %s, 0" % (M16, v(t + 4 * tau, 4), v(F16, 4), v(u, 4)))
                a("%s %s, %s, %s, 0" % (M16, v(t + 8 + 4 * tau, 4), v(F16 + 4, 4), v(u, 4)))
            fnext(sp1[2 + m])
        fd = 2 if fdp[3] == 0 else 1
        ZW = T + 96
        for i in range(8):
            self.cvt(ZW + 2 * i, v(T1 + i), v(T1 + 8 + i))
        for i in range(8):
            self.cvt(ZW + 2 * i + 1, v(T1 + 16 + i), v(T1 + 24 + i))
            a("ds_write_b64 v8, %s offset:%d" % (v(ZW + 2 * i, 2), (i >> 2) * 256 + (i & 3) * 512))
        print("B1", a.flush(pre, mf_scale=msc))
        a("s_waitcnt lgkmcnt(0)\ns_barrier")
        self.stamp()
        for f in range(4):
            a("ds_read_b128 %s, v%d offset:%d" % (v(XF + 4 * f, 4), 9 + (f >> 1), (f & 1) * 16384))
        fnext(fdp[2])
        PC = T + 48

        def pieces(src, j, dst, mark=True):
            for h in range(2):
                self.cvt(dst + h, v(src + 4 * j + 2 * h), v(src + 4 * j + 2 * h + 1))
                self.cvt(dst + 2 + h, v(src + 16 + 4 * j + 2 * h), v(src + 16 + 4 * j + 2 * h + 1))
            if mark:
                for x in self.mark(dst, 14):
                    a(x)

        for f in range(4):
            a("s_waitcnt lgkmcnt(%d)" % (3 - f))
            for ri in range(2):
                d = v(T1 + 16 * ri, 16)
                a("%s %s, %s, %s, %s" % (M32, d, v(RA + 16 * ri + 4 * f, 4), v(XF + 4 * f, 4), d if f else "0"))
        XE, TE = T + 64, T + 80
        a("ds_write_b64 v142, v[140:141]")
        a("ds_read_b128 %s, v130 offset:4096\nds_read_b128 %s, v130 offset:%d" % (v(XE, 4), v(XE + 4, 4), 4096 + 16384))
        a("v_lshlrev_b32 v16, 1, v6\nv_lshl_add_u32 v16, v4, 4, v16")
        if fd == 2:
            a("s_waitcnt vmcnt(0)")
        for j in range(4):
            pieces(T1, j, PC + 4 * j)
            a("buffer_store_dwordx4 %s, v11, %s, s13 offen sc1" % (v(PC + 4 * j, 4), ws))
            if j < 3:
                a("v_xor_b32 v11, 0x%x, v11" % ((j ^ (j + 1)) * 0x82000))
        a("s_waitcnt lgkmcnt(0)")
        lab = a.newlabel("NOX")
        a("s_cmp_lg_u32 s3, %d\ns_cbranch_scc1 %s" % (XW, lab))
        for f in range(4):
            for ri in range(2):
                d = v(TE + 16 * ri, 16)
                a("%s %s, %s, %s, %s" % (M32, d, v(RA + 16 * ri + 4 * f, 4), v(XE + 4 * (f & 1), 4), d if f else "0"))
        for j in range(4):
            a("s_mov_b32 exec_lo, %d\ns_mov_b32 exec_hi, %d" % (1 << j, 1 << j))
            pieces(TE, j, XE + 8, False)
        a("s_mov_b32 exec_lo, 15\ns_mov_b32 exec_hi, 15")
        for x in self.mark(XE + 8, 14):
            a(x)
        a("buffer_store_dwordx4 %s, v16, %s, s14 offen sc1" % (v(XE + 8, 4), ws))
        a("s_mov_b64 exec, -1")
        a.label(lab)
        self.stamp()
        fnext(fdp[3])
        assert fdn[0] == 8

        F32 = 16
        FL = 48
        LD, LD2 = 96, 112
        FL2 = T + 64
        DAT, FR, TM = T, T + 32, T + 48
        tab(F32, TQ_F32, 4)
        tab(FR, TQ_OM, 4)
        a("""v_lshrrev_b32 v11, 2, v1
        v_xor_b32 v11, v11, v4
        v_lshlrev_b32 v129, 9, v11
        v_and_b32 v11, 3, v1
        v_lshl_add_u32 v129, v11, 4, v129
        s_lshl_b32 s62, s4, 4
        v_xor_b32 v129, s62, v129
        v_bfe_u32 v6, v1, 2, 3
        v_lshlrev_b32 v6, 12, v6
        v_lshl_add_u32 v6, v11, 4, v6
        s_and_b32 s62, s3, 1
        v_xor_b32 v11, s62, v4
        v_lshl_add_u32 v6, v11, 6, v6
        s_lshl_b32 s62, s3, 9
        s_add_u32 s62, s62, %d
        v_add_u32 v6, s62, v6
        v_xor_b32 v11, 0x400, v3
        v_xor_b32 v134, 0x800, v3
        v_xor_b32 v135, 0xc00, v3
        s_add_u32 s70, s70, %d
        v_and_b32 v132, 1, v13
        v_lshl_add_u32 v132, v13, 3, v132
        v_bfe_u32 v133, v1, 3, 1
        v_lshl_add_u32 v132, v133, 1, v132
        v_lshlrev_b32 v132, 6, v132
        v_and_b32 v133, 3, v1
        v_lshl_add_u32 v132, v133, 4, v132
        v_bfe_u32 v133, v1, 2, 1
        v_lshl_add_u32 v132, v133, 3, v132
        v_add_u32 v132, s70, v132
        v_xor_b32 v133, 64, v132""" % (ZB, ZB))
        MB = [3, 11, 134, 135]

        def faddr(dst, kk, t1, t2):
            a("""v_and_b32 v{t2}, 3, v12
            s_lshl_b32 s15, s4, 2
            v_add_u32 v{t1}, s15, v{t2}
            v_and_b32 v{t1}, 7, v{t1}
            v_add_lshl_u32 v{t1}, v{t1}, v{kk}, 1
            v_lshl_add_u32 v{t1}, v{t2}, 4, v{t1}
            v_lshl_add_u32 v{t1}, v13, 6, v{t1}
            v_and_b32 v{t1}, 0x7f, v{t1}
            v_lshl_add_u32 v{t1}, v{t2}, 7, v{t1}
            v_lshl_add_u32 v{t1}, v13, 11, v{t1}
            v_add_u32 v{dst}, {wb}, v{t1}""".format(dst=dst, kk=kk, t1=t1, t2=t2, wb=WB))

        a("v_lshrrev_b32 v%d, 2, v12\nv_lshl_add_u32 v%d, s3, 2, v%d" % (LD, LD, LD))
        faddr(128, LD, LD + 1, LD + 2)
        a("""v_lshl_add_u32 v15, s3, 2, v13
        v_and_b32 v5, 7, v12
        v_xor_b32 v15, v15, v5
        v_lshlrev_b32 v15, 4, v15
        v_lshl_add_u32 v15, v12, 10, v15
        s_and_b32 s63, s3, 1
        s_lshl_b32 s64, s63, 6
        v_xor_b32 v7, s64, v2
        s_lshl_b32 s64, s3, 12
        v_add_u32 v7, s64, v7
        v_xor_b32 v136, 16, v7
        v_xor_b32 v137, 32, v7
        v_xor_b32 v138, 48, v7
        s_mov_b32 s64, 0x80008000
        s_waitcnt lgkmcnt(0)""")
        for i in range(16):
            a(("v_xor_b32 v%d, s64, v%d" if i & 1 else "v_mov_b32 v%d, v%d") % (F32 + 16 + i, F32 + i))
        if fd != 2:
            a("s_waitcnt vmcnt(0)")
        a("s_barrier")
        self.stamp()

        def fread(addr):
            for arr in range(2):
                for pm in range(2):
                    for t in range(8):
                        a("ds_read_u16_d16_hi v%d, v%d offset:%d" % (DAT + 16 * arr + 8 * pm + t, addr, arr * 32768 + pm * 16384 + (t >> 2) * 8192 + (t & 3) * 512))

        def filt(dst, raw, both=True):
            for j in range(0, 8, 2):
                a("v_pk_add_f32 %s, %s, %s" % (v(dst + j, 2), v(raw + j, 2), v(raw + 8 + j, 2)))
                a("v_pk_add_f32 %s, %s, %s" % (v(dst + 8 + j, 2), v(raw + 16 + j, 2), v(raw + 24 + j, 2)))
                a("v_pk_add_f32 %s, %s, %s neg_lo:[0,1] neg_hi:[0,1]" % (v(raw + j, 2), v(raw + j, 2), v(raw + 8 + j, 2)))
                a("v_pk_add_f32 %s, %s, %s neg_lo:[0,1] neg_hi:[0,1]" % (v(raw + 16 + j, 2), v(raw + 16 + j, 2), v(raw + 24 + j, 2)))
            ng = " neg_lo:[0,0,1] neg_hi:[0,0,1]"
            for j in range(0, 8, 2):
                dr, di, c, sn_ = v(raw + j, 2), v(raw + 16 + j, 2), v(FR + j, 2), v(FR + 8 + j, 2)
                t1, t2 = v(raw + 8 + j, 2), v(raw + 24 + j, 2)
                a("v_pk_mul_f32 %s, %s, %s" % (t1, di, sn_))
                a("v_pk_mul_f32 %s, %s, %s" % (t2, dr, sn_))
                a("v_pk_fma_f32 %s, %s, %s, %s" % (v(dst + 16 + j, 2), dr, c, t1))
                a("v_pk_fma_f32 %s, %s, %s, %s%s" % (v(dst + 24 + j, 2), di, c, t2, ng))
                if both:
                    a("v_pk_fma_f32 %s, %s, %s, %s%s" % (v(dst + 32 + j, 2), dr, c, t1, ng))
                    a("v_pk_fma_f32 %s, %s, %s, %s" % (v(dst + 40 + j, 2), di, c, t2))

        VS = 139

        sentinel = lambda base: self.markcheck(base, 16, VS)

        def x1load(special):
            for i in range(4):
                a("buffer_load_dwordx4 %s, v%d, %s, s%d offen sc1" % (v((LD2 if special else LD) + 4 * i, 4), 129 if special else MB[i], ws, 56 + i if special else 66))

        def x1first():
            lab = a.newlabel("NOSP")
            a("s_cmp_lg_u32 s71, 0\ns_cbranch_scc1 " + lab)
            for i in range(4):
                a("s_mov_b32 s%d, 0x%x" % (56 + i, WS_X1 + 64 * 32768 + 0x2000 * i))
            x1load(True)
            a.label(lab)
            x1load(False)

        x1l = self.opt.get("x1late", 2)
        if fd != 2 and x1l == 0:
            x1first()
        fread(128)
        a("s_waitcnt lgkmcnt(0)")
        if fd != 2 and x1l == 1:
            x1first()
        filt(FL, DAT)
        if fd != 2 and x1l == 2:
            x1first()
        if fd == 2:
            a("s_waitcnt vmcnt(0)")
            self.diag_delay("d_x1")
            x1first()
        self.stamp()

        def hintx(pos):
            if self.opt.get("go", 4) == pos:
                lab = a.newlabel("NOH")
                a("s_cmp_lg_u32 s3, 7\ns_cbranch_scc1 " + lab)
                a("""s_lshl_b32 s14, s60, 7
                s_add_u32 s14, s14, 0x%x
                v_mov_b32 v140, s6
                v_mov_b32 v141, s7
                v_lshlrev_b32 v142, 3, v12
                buffer_store_dwordx2 v[140:141], v142, %s, s14 offen sc1""" % (WS_GO, ws))
                a.label(lab)

        def b2(fl, special):
            FR2, OUT, PO = T + 64, LD, T + 96
            a.capture(ls & 2)
            for p in range(2):
                for f in range(2):
                    for h in range(2):
                        a("ds_read_b64_tr_b16 %s, v%d offset:%d" % (v(FR + 8 * p + 4 * f + 2 * h, 2), 132 + p, f * 2048 + h * 256))
            for tau in range(2):
                for p in range(2):
                    for f in range(2):
                        if tau == 0:
                            a("s_waitcnt lgkmcnt(%d)" % (6 - 4 * p - 2 * f))
                        for ri in range(2):
                            d = v(DAT + 16 * p + 8 * ri + 4 * tau, 4)
                            a("%s %s, %s, %s, %s" % (M16, d, v(F32 + ((tau * 2 + ri) * 2 + f) * 4, 4), v(FR + 8 * p + 4 * f, 4), d if f else "0"))
            n1_ = " neg_lo:[1,0,0] neg_hi:[1,0,0]"

            for j in range(0, 8, 2):
                Er, Ei, Or, Oi = [v(DAT + 8 * k + j, 2) for k in range(4)]
                Ar, Ai, B1r, B1i, B2r, B2i = [v(fl + 8 * k + j, 2) for k in range(6)]
                k = (TM, TM + 8, T + 80, T + 88)[j >> 1]
                Pr, Pi, Qr, Qi = [v(k + 2 * i, 2) for i in range(4)]
                a("v_pk_mul_f32 %s, %s, %s" % (Pr, Ar, Er))
                a("v_pk_mul_f32 %s, %s, %s" % (Pi, Ar, Ei))
                a("v_pk_mul_f32 %s, %s, %s" % (Qr, B2r, Er))
                a("v_pk_mul_f32 %s, %s, %s" % (Qi, B2r, Ei))
                a("v_pk_fma_f32 %s, %s, %s, %s%s" % (Pr, Ai, Ei, Pr, n1_))
                a("v_pk_fma_f32 %s, %s, %s, %s" % (Pi, Ai, Er, Pi))
                a("v_pk_fma_f32 %s, %s, %s, %s%s" % (Qr, B2i, Ei, Qr, n1_))
                a("v_pk_fma_f32 %s, %s, %s, %s" % (Qi, B2i, Er, Qi))
                a("v_pk_fma_f32 %s, %s, %s, %s" % (Pr, B1r, Or, Pr))
                a("v_pk_fma_f32 %s, %s, %s, %s" % (Pi, B1r, Oi, Pi))
                a("v_pk_fma_f32 %s, %s, %s, %s" % (Qr, Ar, Or, Qr))
                a("v_pk_fma_f32 %s, %s, %s, %s" % (Qi, Ar, Oi, Qi))
                a("v_pk_fma_f32 %s, %s, %s, %s%s" % (Pr, B1i, Oi, Pr, n1_))
                a("v_pk_fma_f32 %s, %s, %s, %s" % (Pi, B1i, Or, Pi))
                a("v_pk_fma_f32 %s, %s, %s, %s%s" % (Qr, Ai, Oi, Qr, n1_))
                a("v_pk_fma_f32 %s, %s, %s, %s" % (Qi, Ai, Or, Qi))
                for e in range(2):
                    self.cvt(FR2 + j + e, v(k + e), "-" + v(k + 2 + e))
                    self.cvt(FR2 + 8 + j + e, v(k + 4 + e), "-" + v(k + 6 + e))
            for f in range(2):
                for p in range(2):
                    for tau in range(2):
                        for ri in range(2):
                            d = v(OUT + 16 * p + 8 * ri + 4 * tau, 4)
                            a("%s %s, %s, %s, %s" % (M16, d, v(FR2 + 8 * p + 4 * f, 4), v(F32 + ((tau * 2 + ri) * 2 + f) * 4, 4), d if f else "0"))
            for p in range(2):
                for tau in range(2):
                    o = PO + 8 * p + 4 * tau
                    for r in range(4):
                        self.cvt(o + r, v(OUT + 16 * p + 4 * tau + r), "-" + v(OUT + 16 * p + 8 + 4 * tau + r))
                    for x in self.mark(o, 14):
                        a(x)
                    a("ds_write_b128 v15, %s offset:%d" % (v(o, 4), tau * 16384 + p * 512))
            print("B2", a.flush(mf_scale=msc))

        lab = a.newlabel("NOSP")
        a("s_cmp_lg_u32 s71, 0\ns_cbranch_scc1 " + lab)
        a("v_mov_b32 v%d, 32" % TM)
        faddr(128, TM, TM + 1, TM + 2)
        fread(128)
        a("""v_lshlrev_b32 v{t}, 29, v1
        v_and_b32 v{t}, 0x80000000, v{t}
        v_and_b32 v{u}, 3, v1
        v_lshlrev_b32 v{u}, 4, v{u}
        v_xor_b32 v128, v132, v{u}
        v_and_b32 v{u}, 1, v1
        v_lshlrev_b32 v{u}, 6, v{u}
        v_xor_b32 v128, v128, v{u}
        v_subrev_u32 v128, s70, v128
        v_add_u32 v128, {sp}, v128
        v_add_u32 v5, {sp}, v2""".format(t=TM, u=TM + 1, sp=RAB + 4096))
        for j in range(8):
            a("v_xor_b32 v%d, v%d, v%d" % (FR + 8 + j, TM, FR + 8 + j))
        a("s_waitcnt lgkmcnt(0)")
        filt(FL2, DAT, False)
        a.label(lab)
        self.poll(lambda: x1load(False), lambda: sentinel(LD), VS, first_issued=True)
        if not self.opt.get("st4"):
            self.stamp()
        for i in range(4):
            a("ds_write_b128 v6, %s offset:%d" % (v(LD + 4 * i, 4), i * 128))
        a("s_waitcnt lgkmcnt(0)\ns_barrier")
        if self.opt.get("st4"):
            self.stamp()
        lab = a.newlabel("NOSP")
        a("s_cmp_lg_u32 s71, 0\ns_cbranch_scc1 " + lab)
        self.poll(lambda: x1load(True), lambda: sentinel(LD2), VS, first_issued=True)
        self.flip_marks()
        for i in range(4):
            a("ds_write_b128 v5, %s offset:%d" % (v(LD2 + 4 * i, 4), i * 1024))
        for f in range(2):
            for h in range(2):
                a("ds_read_b64_tr_b16 %s, v128 offset:%d" % (v(FR + 4 * f + 2 * h, 2), f * 2048 + h * 256))
        for f in range(2):
            a("s_waitcnt lgkmcnt(%d)" % (2 - 2 * f))
            for tau in range(2):
                for ri in range(2):
                    d = v(DAT + 8 * ri + 4 * tau, 4)
                    a("%s %s, %s, %s, %s" % (M16, d, v(F32 + ((tau * 2 + ri) * 2 + f) * 4, 4), v(FR + 4 * f, 4), d if f else "0"))
        for j in range(0, 8, 2):
            Xr, Xi, Ar, Ai = v(DAT + j, 2), v(DAT + 8 + j, 2), v(FL2 + j, 2), v(FL2 + 8 + j, 2)
            a("v_pk_mul_f32 %s, %s, %s" % (v(TM + j, 2), Ar, Xr))
            a("v_pk_mul_f32 %s, %s, %s" % (v(TM + 8 + j, 2), Ar, Xi))
            a("v_pk_fma_f32 %s, %s, %s, %s neg_lo:[1,0,0] neg_hi:[1,0,0]" % (v(TM + j, 2), Ai, Xi, v(TM + j, 2)))
            a("v_pk_fma_f32 %s, %s, %s, %s" % (v(TM + 8 + j, 2), Ai, Xr, v(TM + 8 + j, 2)))
        dpp = " row_ror:4 row_mask:0xf bank_mask:0xf"
        for k in range(2):
            for j in range(8):
                a("v_fmac_f32_dpp v%d, %sv%d, v%d%s" % (TM + j, "-" if k else "", DAT + 8 * k + j, FL2 + 16 + 8 * k + j, dpp))
                a("v_fmac_f32_dpp v%d, v%d, v%d%s" % (TM + 8 + j, DAT + 8 * (1 - k) + j, FL2 + 16 + 8 * k + j, dpp))
        for j in range(8):
            self.cvt(FR + j, v(TM + j), "-" + v(TM + 8 + j))
        for f in range(2):
            for tau in range(2):
                for ri in range(2):
                    d = v(DAT + 8 * ri + 4 * tau, 4)
                    a("%s %s, %s, %s, %s" % (M16, d, v(FR + 4 * f, 4), v(F32 + ((tau * 2 + ri) * 2 + f) * 4, 4), d if f else "0"))
        a("s_mov_b32 exec_hi, 0")
        for tau in range(2):
            o = FL2 + 4 * tau
            for r in range(4):
                self.cvt(o + r, v(DAT + 4 * tau + r), "-" + v(DAT + 8 + 4 * tau + r))
            for x in self.mark(o, 14):
                a(x)
            a("buffer_store_dwordx4 %s, v2, %s, s67 offen offset:%d sc1" % (v(o, 4), ws, tau * 512))
        a("s_mov_b32 exec_hi, -1")
        skip = a.newlabel("B2GO")
        a("s_branch " + skip)
        a.label(lab)
        self.flip_marks()
        a.label(skip)
        b2(FL, False)
        a("s_waitcnt lgkmcnt(0)")
        if self.opt.get("st4"):
            self.stamp()
        a("s_barrier")
        if not self.opt.get("st4"):
            self.stamp()
        hintx(4)
        ST = LD
        for i in range(4):
            a("ds_read_b128 %s, v%d offset:%d" % (v(ST + 4 * i, 4), 135 + i if i else 7, i * 1024))
        for i in range(4):
            a("s_waitcnt lgkmcnt(%d)" % (3 - i))
            a("buffer_store_dwordx4 %s, v%d, %s, s66 offen sc1" % (v(ST + 4 * i, 4), MB[i], ws))
        self.stamp()
        lab = a.newlabel("NONOTE")
        a("s_or_b32 s56, s60, s3\ns_cbranch_scc1 " + lab)
        a("v_mov_b32 v140, s6\nv_mov_b32 v141, s7\nv_lshlrev_b32 v142, 3, v12")
        a("buffer_store_dwordx2 v[140:141], v142, %s, 0 offen offset:%d sc1" % (ws, WS_NOTE))
        a.label(lab)
        a.label("WB_1")
        a("s_mov_b32 s34, 0")
        self.pad_stamps(9)

        a.label("B3_ENTRY")
        G16 = F16
        a("v_lshlrev_b32 v2, 4, v1\nv_add_u32 v131, %d, v2" % TB)
        tab(RA, 24, 4)
        tab(CS, TQ_CS, 8)
        tab(TWX, TQ_TW3, 4)
        a("""v_lshrrev_b32 v4, 5, v1
        v_and_b32 v5, 31, v1
        v_and_b32 v12, 15, v1
        v_lshrrev_b32 v13, 4, v1
        v_lshl_add_u32 v132, v4, 3, s3
        v_xor_b32 v8, s60, v132
        v_lshlrev_b32 v132, 15, v132
        v_lshl_add_u32 v132, v5, 4, v132
        v_lshl_add_u32 v132, v8, 9, v132
        v_xor_b32 v133, 0x82000, v132
        v_xor_b32 v134, 0x104000, v132
        v_xor_b32 v135, 0x186000, v132
        v_lshl_add_u32 v10, s3, 5, v5
        v_lshlrev_b32 v130, 13, v4
        v_add_u32 v130, %d, v130
        v_lshl_add_u32 v9, v10, 4, v130
        v_sub_u32 v10, 0, v10
        v_and_b32 v10, 0x1ff, v10
        v_lshl_add_u32 v10, v10, 4, v130
        s_lshr_b32 s63, s3, 2
        s_lshl_b32 s63, s63, 13
        s_and_b32 s64, s3, 3
        s_lshl2_add_u32 s63, s64, s63
        s_add_u32 s63, s63, %d
        v_lshlrev_b32 v8, 11, v13
        v_lshl_add_u32 v8, v12, 4, v8
        v_add_u32 v8, s63, v8
        s_lshl_b32 s63, s3, 11
        s_add_u32 s63, s63, %d
        v_bfe_u32 v5, v1, 2, 1
        v_lshlrev_b32 v5, 1, v5
        v_xor_b32 v5, v5, v13
        v_lshlrev_b32 v5, 3, v5
        v_lshl_add_u32 v5, v12, 5, v5
        v_add_u32 v5, s63, v5
        v_bfe_u32 v6, v1, 3, 1
        v_lshlrev_b32 v6, 4, v6
        v_xor_b32 v6, v6, v2
        v_add_u32 v6, s63, v6
        s_lshl_b32 s64, s3, 6
        s_add_u32 s64, s64, s60
        s_add_u32 s64, s64, s34
        s_lshl_b32 s64, s64, 11
        s_add_u32 s66, s64, 0x200000
        s_mov_b32 s56, 0.5
        s_mov_b32 s57, 0.5
        s_cmp_eq_u32 s3, 0
        s_cselect_b32 s68, -2, -1
        s_mov_b32 s69, s68
        s_lshr_b32 s63, s60, 5
        s_and_b32 s65, s60, 1
        s_lshl1_add_u32 s63, s63, s65
        s_bfe_u32 s65, s60, 0x40001
        s_lshl4_add_u32 s63, s63, s65
        v_and_b32 v11, 7, v1
        v_xor_b32 v11, s63, v11
        v_lshlrev_b32 v11, 4, v11
        v_lshl_add_u32 v11, v4, 10, v11
        s_mov_b32 s63, 0x%x
        s_mov_b32 s65, 0x%x""" % (ZB, ZB, WB, WS_X2S, WS_X2S + 4096))
        lab = a.newlabel("NOGO")
        a("s_cmp_eq_u32 s34, 0\ns_cbranch_scc1 " + lab)
        self.poll(lambda: a("buffer_load_dwordx2 v[140:141], off, %s, s62 sc1" % ws),
                  lambda: a("v_xor_b32 v%d, s6, v140\nv_bitop3_b32 v%d, v%d, v141, s7 bitop3:0xf6" % (VS, VS, VS)), VS)
        a.label(lab)
        a("s_mov_b32 s62, 0x%x" % WS_X1)
        RE, ZP, XS = T + 16, T + 48, LD2

        def radix_inv(x):
            for f in range(4):
                d = v(RE, 16)
                a("%s %s, %s, %s, %s" % (M32, d, v(RA + 4 * f, 4), v(x + 4 * f, 4), d if f else "0"))

        def average():
            a("s_mov_b32 exec_lo, 1\ns_mov_b32 exec_hi, 1")
            for j in (0, 2):
                a("v_pk_add_f32 %s, %s, %s" % (v(RE + j, 2), v(RE + j, 2), v(RE + 8 + j, 2)))
                a("v_pk_add_f32 %s, %s, %s neg_lo:[0,1] neg_hi:[0,1]" % (v(RE + 4 + j, 2), v(RE + 4 + j, 2), v(RE + 12 + j, 2)))
            for j in range(0, 8, 2):
                a("v_pk_mul_f32 %s, %s, s[56:57]" % (v(RE + j, 2), v(RE + j, 2)))

        def extra_tile():
            radix_inv(XS)
            average()
            for r in range(4):
                self.cvt(ZP + 8 + r, v(RE + r), v(RE + 4 + r))
            a("ds_write_b128 v130, %s offset:4096" % v(ZP + 8, 4))
            a("s_mov_b64 exec, -1")

        xsload = lambda: [a("buffer_load_dwordx4 %s, v11, %s, s%d offen offset:%d sc1" % (v(XS + 4 * f, 4), ws, 65 if f >> 1 else 63, (f & 1) * 2048)) for f in range(4)]
        x2load = lambda: [a("buffer_load_dwordx4 %s, v%d, %s, s62 offen sc1" % (v(XF + 4 * f, 4), 132 + f, ws)) for f in range(4)]
        lab = a.newlabel("NODR")
        a("s_and_b32 s15, s60, 7\ns_cmp_eq_u32 s15, 7\ns_cbranch_scc1 " + lab)
        a("s_waitcnt vmcnt(%d)" % self.opt.get("xdr", 0))
        self.diag_delay("d_x2")
        a.label(lab)
        x2load()
        lab = a.newlabel("NOX")
        a("s_cmp_lg_u32 s3, %d\ns_cbranch_scc1 %s" % (XW3, lab))
        xsload()
        a.label(lab)
        a("s_waitcnt lgkmcnt(0)")
        self.stamp()
        a.label("WC_0")
        self.poll(x2load, lambda: sentinel(XF), VS, first_issued=True)
        self.stamp()
        radix_inv(XF)
        lab = a.newlabel("NOAVG")
        a("s_nop 9")
        a("s_cmp_lg_u32 s3, 0\ns_cbranch_scc1 " + lab)
        average()
        a("s_mov_b64 exec, -1")
        a.label(lab)
        for r in range(4):
            self.cvt(ZP + r, v(RE + r), v(RE + 4 + r))
        a("ds_write_b128 v9, %s" % v(ZP, 4))
        for r in range(4):
            self.cvt(ZP + 4 + r, v(RE + 8 + r), "-" + v(RE + 12 + r))
        a("s_mov_b64 exec, s[68:69]")
        a("ds_write_b128 v10, %s" % v(ZP + 4, 4))
        a("s_mov_b64 exec, -1")
        lab = a.newlabel("NOX")
        a("s_cmp_lg_u32 s3, %d\ns_cbranch_scc1 %s" % (XW3, lab))
        self.poll(xsload, lambda: sentinel(XS), VS, first_issued=True)
        extra_tile()
        a.label(lab)
        a("s_waitcnt lgkmcnt(0)\ns_barrier")
        self.stamp()
        a.capture(ls & 4)
        ZF = T
        for tau in range(2):
            for j in range(2):
                a("ds_read2st64_b32 %s, v8 offset0:%d offset1:%d" % (v(ZF + 4 * tau + 2 * j, 2), tau + 4 * j, tau + 4 * j + 2))
        for tau in range(2):
            a("s_waitcnt lgkmcnt(%d)" % (2 - 2 * tau))
            a("%s %s, %s, %s, 0" % (M16, v(T1 + 4 * tau, 4), v(ZF + 4 * tau, 4), v(G16, 4)))
            a("%s %s, %s, %s, 0" % (M16, v(T1 + 8 + 4 * tau, 4), v(ZF + 4 * tau, 4), v(G16 + 4, 4)))
        O4 = T + 80
        twiddle(T1, [TW0, TWX], T + 64, True)
        for j in range(8):
            self.cvt(U + j, v(T1 + 2 * j), v(T1 + 2 * j + 1))
        stage_cs(U, U + 4, O4, True)
        fl = self.opt.get("outflag", "sc1")
        for ri in range(2):
            for tau in range(2):
                o = O4 + 8 * ri + 4 * tau
                d = T + 8 + 4 * ri + 2 * tau
                self.cvt(d, v(o), v(o + 1))
                self.cvt(d + 1, v(o + 2), v(o + 3))
                a("ds_write_b64 v5, %s offset:%d" % (v(d, 2), ri * 1024 + tau * 512))
            a("ds_read_b128 %s, v6 offset:%d" % (v(T1 + 16 + 4 * ri, 4), ri * 1024))
        for ri in range(2):
            a("s_waitcnt lgkmcnt(%d)" % (3 - 3 * ri))
            a("buffer_store_dwordx4 %s, v2, %s, s%d offen offset:1024 %s" % (v(T1 + 16 + 4 * ri, 4), s(self.rOUT, 4), 64 + 2 * ri, fl))
        print("B3", a.flush(mf_scale=msc))
        self.end()


TQ_CS, TQ_TW0, TQ_TW1, TQ_TW3, TQ_F32, TQ_OM = 0, 6, 8, 12, 16, 20


def make_table():
    import numpy as np
    from emu import bf16_rne
    l = np.arange(64)
    c, g = l & 15, l >> 4
    pk = lambda x, y: (bf16_rne(np.float32(x)) | (bf16_rne(np.float32(y)) << 16)).astype(np.uint32)
    fl = lambda x: np.float32(x).view(np.uint32)
    cs = lambda a_: (np.cos(2 * np.pi * a_), np.sin(2 * np.pi * a_))
    idx2 = [16 * (t >> 2) + 4 * g + (t & 3) for t in range(8)]
    R = []
    C = [[cs((c + 16 * tau) * idx2[t] / 32.0) for t in range(8)] for tau in range(2)]
    for k, sg in ((0, 1), (1, 1), (1, -1)):
        for tau in range(2):
            for j in range(4):
                R.append(pk(sg * C[tau][2 * j][k], sg * C[tau][2 * j + 1][k]))

    def tw(angs):
        for k in range(2):
            for x in angs:
                R.append(fl(cs(x)[k]))
    tw([c * idx2[r] / 512.0 for r in range(4)])
    tw([(c + 16) * idx2[r] / 512.0 for r in range(4)])
    H = [cs(c * idx2[x] / 16.0) for x in range(4)]
    R += [pk(H[0][0], H[1][0]), pk(H[2][0], H[3][0]), pk(H[0][1], H[1][1]), pk(H[2][1], H[3][1])]
    R += [pk(-H[0][1], -H[1][1]), pk(-H[2][1], -H[3][1]), pk(H[0][0], H[1][0]), pk(H[2][0], H[3][0])]
    tw([c * idx2[4 + r] / 512.0 for r in range(4)])
    sc = 2.0 ** -20
    R += [pk(sc * H[x][0], -sc * H[x][1]) for x in range(4)] + [pk(sc * H[x][1], sc * H[x][0]) for x in range(4)]
    R += [pk(C[0][t][0], C[0][t][1]) for t in range(8)] + [pk(-C[0][t][1], C[0][t][0]) for t in range(8)]
    for k in range(2):
        for t in range(8):
            R.append(fl(cs(idx2[t] / 64.0)[k]))
    R = np.array(R, np.uint32)
    assert R.shape == (96, 64)
    return np.ascontiguousarray(R.reshape(24, 4, 64).transpose(0, 2, 1)).reshape(-1)


def _sym_add(line, emuval=0):
    ins = Ins(line.rsplit(",", 1)[0] + ", %d" % emuval)
    ins.line = line
    return ins


NOTES = """;
; One persistent launch, 256 workgroups x 8 waves (one per CU), generated by my own script. Roles by workgroup id:
; Hand-offs: write-through (sc1) stores, sc1 polling loads. Payload validates itself: the two bf16 mantissa LSBs of every
; All polls are bounded. TABLE (after the code) holds the constant DFT / twiddle fragments.
"""


def generate(stamps=False, opt=None):
    g = G(stamps, opt)
    a = g.build()
    nv = a.maxreg("v") + 1
    ns = a.maxreg("s") + 1
    tb = make_table()
    tail = ".p2align 8\n.type TABLE,@object\nTABLE:\n"
    for i in range(0, len(tb), 8):
        tail += ".long " + ",".join("0x%08x" % x for x in tb[i:i + 8]) + "\n"
    tail += ".size TABLE, %d\n" % (4 * len(tb))
    render = lambda: wrap(a.render() + tail, 256, 512, LDS_SIZE, nv, ns, NOTES)
    if g.opt.get("align", 1):
        from align import align
        print("align:", align(a, render, g.opt.get("minrun", 6)))
    return a, render()


if __name__ == "__main__":
    stamps = "--stamps" in sys.argv
    opt = {}
    for x in sys.argv[1:]:
        if x.startswith("--") and "=" in x:
            k, val = x[2:].split("=", 1)
            opt[k] = int(val) if val.lstrip("-").isdigit() else val
    a, txt = generate(stamps, opt)
    out = [x for x in sys.argv[1:] if not x.startswith("--")]
    open(out[0] if out else "k.s", "w").write(txt)
    print("instructions:", sum(1 for k, _ in a.items if k == "i"), "vgpr", a.maxreg("v") + 1, "sgpr", a.maxreg("s") + 1)
```

```python
import sys
from asmlib import *
from common import wrap

WS_EP = 0x0
WS_GO = 0x1000
WS_NOTE = 0x800
WS_RED = 0x10000
RED_STRIDE = 0x4800
WS_X2S = 0x60000
WS_PART = 0x80000
PLINE = 1152
WS_PQ = 0x200000
WS_X1 = 0x400000
WS_STAMP = 0x1000000
WS_SIZE = 0x10000000
LDS_SIZE = 160 * 1024
TAGC_LO, TAGC_HI = 0x1E3779B1, 0x05EBCA6B
POLL_LIMIT = 1 << 18
M16 = "v_mfma_f32_16x16x32_bf16"
M32 = "v_mfma_f32_32x32x16_bf16"
XB, ZB, WB, TB = 0, 32768, 65536, 131072
RAB = TB + 24576


class G:
    def __init__(self, stamps=False, opt=None):
        self.a = Asm()
        self.stamps = stamps
        self.opt = opt or {}
        self.nst = 0
        self.role = ""

    sW = 3
    sTL, sTH = 6, 7
    sCNT = 12
    pXA, pWQ, pWO, pXB, pWR, pWI, pOUT, pDBG, pWS = 16, 18, 20, 22, 24, 26, 28, 30, 32
    rWS, rOUT, rA, rB, rC = 36, 40, 44, 48, 52
    sST = 72
    LT = [16, 17, 0, 1]

    def stamp(self):
        pr = self.opt.get("probe")
        if pr:
            if "%s:%d" % (self.role, self.nst) in pr.split("+"):
                self.a("s_memrealtime s[76:77]\ns_waitcnt lgkmcnt(0)")
            self.nst += 1
            return
        if not self.stamps:
            return
        k = self.nst
        assert k < 15
        self.a("%s %s\ns_waitcnt lgkmcnt(0)" % ("s_memtime" if self.opt.get("cyc") else "s_memrealtime", s(self.sST + 2 * k, 2)))
        self.nst += 1

    def end(self):
        a = self.a
        if self.opt.get("skew") is not None and self.role == "K":
            ws = s(self.rWS, 4)
            l1, l2 = a.newlabel("SK"), a.newlabel("SK")
            a("s_waitcnt lgkmcnt(0)\ns_cmp_lg_u32 s5, 0\ns_cbranch_scc1 %s\ns_cmp_lg_u32 s3, 4\ns_cbranch_scc1 %s\ns_cmp_lg_u32 s4, 0\ns_cbranch_scc1 %s" % (l2, l2, l1))
            a("v_mov_b32 v6, s72\nv_mov_b32 v7, s6\nbuffer_store_dwordx2 v[6:7], off, %s, 0 offset:0x400 sc1" % ws)
            a.label(l1)
            a("s_cmp_lg_u32 s4, %d\ns_cbranch_scc1 %s" % (self.opt["skew"], l2))
            self.poll(lambda: a("buffer_load_dwordx2 v[6:7], off, %s, 0 offset:0x400 sc1" % ws), lambda: a("v_xor_b32 v12, s6, v7"), 12)
            a("v_readfirstlane_b32 s76, v6\ns_sub_u32 s76, s72, s76\ns_add_u32 s76, s76, 200\ns_lshl_b32 s76, s76, 1\ns_add_u32 s76, s76, s72")
            a.label(l2)
        if self.opt.get("probe"):
            self.stamp()
            lab = a.newlabel("SPIN")
            a("s_waitcnt lgkmcnt(0)\ns_sub_u32 s76, s76, s72\ns_lshl_b32 s76, s76, 2\ns_add_u32 s76, s76, 2000\ns_min_u32 s76, s76, 20000")
            a.label(lab)
            a("s_memrealtime s[74:75]\ns_waitcnt lgkmcnt(0)\ns_sub_u32 s74, s74, s72\ns_cmp_lt_u32 s74, s76\ns_cbranch_scc1 %s" % lab)
        if self.stamps:
            self.stamp()
            a("s_waitcnt vmcnt(0)")
            self.stamp()
            a("s_mov_b64 exec, 1")
            a("s_lshl3_add_u32 s56, s5, s4\ns_lshl_b32 s56, s56, 3\ns_add_u32 s56, s56, s3\ns_lshl_b32 s56, s56, 6\ns_add_u32 s56, s56, 0x%x" % WS_STAMP)
            a("v_mov_b32 v2, 0")
            for k in range(self.nst):
                a("v_mov_b32 v3, s%d\nbuffer_store_dword v3, v2, %s, s56 offen offset:%d" % (self.sST + 2 * k, s(self.rWS, 4), 4 * k))
            a("v_mov_b32 v3, %d\nbuffer_store_dword v3, v2, %s, s56 offen offset:60" % (self.nst, s(self.rWS, 4)))
            if self.opt.get("xcc"):
                a("s_getreg_b32 s57, hwreg(HW_REG_XCC_ID)\ns_getreg_b32 s58, hwreg(HW_REG_HW_ID)\ns_lshl_b32 s57, s57, 24\ns_and_b32 s58, s58, 0xffffff\ns_or_b32 s57, s57, s58\nv_mov_b32 v3, s57\nbuffer_store_dword v3, v2, %s, s56 offen offset:56" % s(self.rWS, 4))
        a("s_endpgm")

    def pad_stamps(self, n):
        while (self.stamps or self.opt.get("probe")) and self.nst < n:
            if self.stamps:
                self.a("s_mov_b32 s%d, s%d" % (self.sST + 2 * self.nst, self.sST + 2 * self.nst - 2))
            self.nst += 1

    def srd(self, r, p, size):
        self.a("s_mov_b32 s%d, s%d\ns_mov_b32 s%d, s%d\ns_mov_b32 s%d, 0x%x\ns_mov_b32 s%d, 0x20000" % (r, p, r + 1, p + 1, r + 2, size, r + 3))

    def tags(self):
        t = self.LT
        self.a("""s_add_u32 s8, s8, 0x%x
        s_addc_u32 s9, s9, 0x%x
        s_and_b32 s6, s8, 0xbfffbfff
        s_and_b32 s7, s9, 0xbfffbfff
        s_bitcmp1_b32 s8, 0
        s_cselect_b32 s%d, 0x10001, 0
        s_xor_b32 s%d, s%d, 0x10000
        s_xor_b32 s%d, s%d, 0x10001
        s_xor_b32 s%d, s%d, 1""" % (TAGC_LO, TAGC_HI, t[0], t[1], t[0], t[2], t[0], t[3], t[0]))

    def flip_marks(self):
        for r in self.LT:
            self.a("s_xor_b32 s%d, s%d, 1" % (r, r))

    def mark(self, base, vmask):
        return ["v_and_or_b32 v%d, v%d, v%d, s%d" % (base + e, base + e, vmask, self.LT[e]) for e in range(4)]

    def markcheck(self, base, n, vacc):
        a = self.a
        X = [self.LT[0], self.LT[3], self.LT[2], self.LT[1]]
        for i in range(0, n, 2):
            a("v_xor_b32 v%d, s%d, v%d" % (base + i, X[i & 3], base + i))
            a("v_xor_b32 v%d, s%d, v%d" % (base + i + 1, X[(i + 1) & 3], base + i + 1))
            if i:
                a("v_bitop3_b32 v%d, v%d, v%d, v%d bitop3:0xfd" % (vacc, vacc, base + i, base + i + 1))
            else:
                a("v_bitop3_b32 v%d, v%d, v%d, v%d bitop3:0xfd" % (vacc, base, base, base + 1))
        a("v_and_b32 v%d, 0x10001, v%d" % (vacc, vacc))

    def tagcheck(self, pieces, vacc):
        a = self.a
        for i, p in enumerate(pieces):
            if i == 0:
                a("v_xor_b32 v%d, s%d, v%d" % (vacc, self.sTL, p + 1))
            else:
                a("v_bitop3_b32 v%d, v%d, v%d, s%d bitop3:0xf6" % (vacc, vacc, p + 1, self.sTL))
            a("v_bitop3_b32 v%d, v%d, v%d, s%d bitop3:0xf6" % (vacc, vacc, p + 3, self.sTH))

    def poll(self, issue, check, vacc, first_issued=False):
        a = self.a
        top, done, chk = a.newlabel("POLL"), a.newlabel("DONE"), a.newlabel("CHK")
        a("s_mov_b32 s%d, 0x%x" % (self.sCNT, POLL_LIMIT))
        if first_issued:
            a("s_branch " + chk)
        a.label(top)
        issue()
        if first_issued:
            a.label(chk)
        a("s_waitcnt vmcnt(0)")
        check()
        a("v_cmp_ne_u32 vcc, 0, v%d" % vacc)
        a("s_cbranch_vccz " + done)
        a("s_sleep %d" % self.opt.get("sl", 2))
        a("s_sub_u32 s%d, s%d, 1" % (self.sCNT, self.sCNT))
        a("s_cbranch_scc0 " + top)
        a.label(done)

    def diag_delay(self, name):
        n = self.opt.get(name, 0)
        if n:
            self.a("s_sleep %d" % n)

    def cvt(self, d, x, y):
        self.a("v_cvt_pk_bf16_f32 v%d, %s, %s" % (d, x, y))

    def build(self):
        a = self.a
        a.label("CODE0")
        if self.opt.get("probe"):
            a("s_memrealtime s[72:73]\ns_memrealtime s[76:77]")
            self.nst = 1
        if self.stamps:
            a("%s %s" % ("s_memtime" if self.opt.get("cyc") else "s_memrealtime", s(self.sST, 2)))
            self.nst = 1
        a("""v_lshrrev_b32 v2, 6, v0
        v_and_b32 v1, 63, v0
        s_and_b32 s4, s2, 7
        v_readfirstlane_b32 s3, v2
        s_lshr_b32 s5, s2, 3
        s_cmp_ge_u32 s5, 32
        s_cbranch_scc1 EXIT
        ROT""".replace("ROT", "s_cmp_lt_u32 s5, 24\ns_cbranch_scc1 NOT_B" if self.opt.get("rot", 24) == 0 else "s_sub_u32 s5, s5, 8\ns_cbranch_scc0 NOT_B"))
        n0 = self.nst
        self.b_head()
        a.label("EXIT")
        a("s_endpgm")
        a.label("NOT_B")
        a("s_cmp_ge_u32 s3, 4\ns_cbranch_scc1 LOADER")
        pc = a.newlabel("PC")
        if self.opt.get("pfs", 1):
            a("s_cmp_lg_u32 s3, 0\ns_cbranch_scc1 COMPUTE\ns_getpc_b64 s[56:57]")
            a.label(pc)
            a.items.append(("i", _sym_add("s_mov_b32 s58, ROLE_B-4-%s" % pc)))
            a("v_and_b32 v3, 7, v1\nv_mul_u32_u24 v3, 24, v3\nv_add_lshl_u32 v3, v3, s5, 7\nv_min_u32 v3, s58, v3\nglobal_load_dword v0, v3, s[56:57]\ns_branch COMPUTE")
        else:
            a("s_cmp_eq_u32 s3, 3\ns_cbranch_scc1 COMPUTE\ns_getpc_b64 s[56:57]")
            a.label(pc)
            a.items.append(("i", _sym_add("s_mov_b32 s58, ROLE_B-4-%s" % pc)))
            a("v_lshlrev_b32 v3, 7, v0\nv_min_u32 v3, s58, v3\nglobal_load_dword v0, v3, s[56:57]\ns_branch COMPUTE")
        a.label("LOADER")
        self.loader()
        self.nst = n0
        self.compute()
        self.nst = n0
        self.role_b()
        a.label("CODE_END")
        prot = [0, 1, 3, 4, 5, 60, 61, 70] + list(range(72, 102))
        if self.opt.get("walk", 0) & 1:
            a.walkify("WA_0", "WA_1", 3, "WRET_A", prot, "WKA")
            a.walkify("WL_0", "WL_1", 1, "WRET_A", prot, "WKL")
            a.walkify("WQ_0", "WQ_1", 2, "WRET_A", prot, "WKQ")
            a.walkify("WR_0", "WR_1", 1, "WRET_A", prot, "WKR")
        if self.opt.get("walk", 0) & 2:
            a.walkify("WB_0", "WB_1", 6, "WRET_B", prot, "WKB")
            a.walkify("WC_0", "WC_1", 1, "WRET_C", prot, "WKC")
        bad = a.check_branches()
        assert not bad, bad
        return a

    KARG = "s_load_dwordx16 s[16:31], s[0:1], 0\ns_load_dwordx2 s[32:33], s[0:1], 64"

    def b_head(self):
        a = self.a
        lab = a.newlabel("PC")
        a("s_load_dwordx2 s[44:45], s[0:1], 24")
        a("s_getpc_b64 s[56:57]")
        a.label(lab)
        a.items.append(("i", _sym_add("s_add_u32 s58, s56, TABLE-%s" % lab, 0x8000)))
        a("""s_addc_u32 s59, s57, 0
        v_lshlrev_b32 v2, 4, v1
        s_mul_i32 s66, s3, 3072
        v_add_u32 v7, s66, v2
        s_add_u32 m0, s66, %d
        s_and_b32 s5, s5, 31""" % TB)
        for q in range(3):
            a("global_load_lds_dwordx4 v7, s[58:59] offset:%d" % (q * 1024))
        a("""s_and_b32 s61, s5, 7
        s_lshl3_add_u32 s60, s4, s61
        s_lshl_b32 s62, s3, 7
        s_add_u32 s62, s62, s60
        s_lshl_b32 s62, s62, 10
        s_add_u32 s63, s62, 0x%x
        s_add_u32 s64, s62, 0x%x
        s_add_u32 s65, s62, 0x%x
        s_lshl_b32 s70, s3, 12
        s_mov_b32 m0, s70
        s_mov_b32 s46, 0x200000
        s_mov_b32 s47, 0x20000
        s_waitcnt lgkmcnt(0)""" % (0x100000 - 1024, 0x10000 - 2048, 0x110000 - 3072))
        for q in range(4):
            a("buffer_load_dwordx4 v2, %s, s%d offen offset:%d nt lds" % (s(self.rA, 4), 62 + q, q * 1024))
        a("s_cmp_ge_u32 s3, %d\ns_cbranch_scc1 ROLE_B" % (1 if self.opt.get("pfb", 1) else 2))
        a.items.append(("i", _sym_add("s_add_u32 s56, s56, ROLE_B-%s" % lab)))
        a("s_addc_u32 s57, s57, 0")
        a.items.append(("i", _sym_add("s_mov_b32 s58, CODE_END-4-ROLE_B")))
        if self.opt.get("pfb", 1):
            a("v_and_b32 v3, 15, v1\nv_lshlrev_b32 v3, 3, v3\nv_add_lshl_u32 v3, v3, s61, 7")
        else:
            a("v_lshlrev_b32 v3, 7, v0")
        a("v_min_u32 v3, s58, v3\nglobal_load_dword v0, v3, s[56:57]")
        a("s_branch ROLE_B")

    def loader(self):
        a = self.a
        ws = s(self.rWS, 4)
        self.role = "L"
        vX, vW = 4, 8
        a("""s_load_dwordx4 s[44:47], s[0:1], 0
        s_lshr_b32 s60, s4, 1
        s_and_b32 s63, s5, 3
        s_lshl2_add_u32 s60, s60, s63
        s_bfe_u32 s65, s5, 0x20002
        s_lshr_b32 s66, s5, 4
        s_lshl_b32 s70, s65, s66
        s_add_u32 s70, s70, s63
        s_and_b32 s70, s70, 3
        s_and_b32 s71, s70, 1
        XROT
        s_xor_b32 s70, s70, s13
        s_xor_b32 s71, s71, s13
        s_sub_u32 s58, s3, 4
        s_lshl2_add_u32 s63, s60, s58
        s_lshl_b32 s63, s63, 15
        v_lshrrev_b32 v2, 3, v1
        v_lshrrev_b32 v3, 4, v1
        v_and_b32 v12, 7, v1
        v_xor_b32 v12, v12, v3
        v_lshl_add_u32 v12, v12, 4, s63
        v_lshl_add_u32 v4, v2, 10, v12
        v_xor_b32 v5, 64, v4
        v_add_u32 v5, 0x1c00, v5
        v_add_u32 v6, 0x3800, v4
        v_add_u32 v7, 0x3800, v5
        s_lshl_b32 s59, s58, 12""".replace("XROT", {0: "s_mov_b32 s13, 0",
            1: "s_lshl_b32 s13, s4, 2\ns_xor_b32 s13, s13, s4\ns_and_b32 s13, s13, 6",
            2: "s_lshl_b32 s13, s4, 2\ns_xor_b32 s13, s13, s4\ns_and_b32 s13, s13, 4",
            3: "s_lshl_b32 s13, s4, 1\ns_lshr_b32 s14, s4, 1\ns_xor_b32 s13, s13, s14\ns_and_b32 s13, s13, 3",
            4: "s_lshl_b32 s13, s66, 1"}[self.opt.get("xrot", 2)]))

        def kchunk(c):
            base = 0
            for r in [int(x) for x in str(self.opt.get("rounds", 44))]:
                if c < base + r:
                    break
                base += r
            src = {4: "s70", 2: "s71", 1: "s13"}[r]
            assert base % r == 0
            a("s_xor_b32 s62, %s, %d" % (src, c))

        def issue_x(c):
            a("s_add_u32 m0, s59, %d" % ((c % 5) * 32768))
            kchunk(c)
            a("s_lshl_b32 s63, s62, 7")
            if c == 0:
                a("s_waitcnt lgkmcnt(0)\ns_mov_b64 s[48:49], s[46:47]\ns_mov_b32 s46, 0x200000\ns_mov_b32 s47, 0x20000")
            for j in range(4):
                a("buffer_load_dwordx4 v%d, %s, s63 offen offset:%d lds" % (vX + j, s(self.rA, 4), j * 1024))

        def issue_w(c):
            a("s_add_u32 m0, s59, %d" % ((c % 5) * 32768 + 16384))
            a("s_mul_i32 s64, s62, 0x30000")
            for j in range(4):
                a("buffer_load_dwordx4 v%d, %s, s64 offen offset:%d lds" % (vW + j, s(self.rB, 4), j * 1024))

        def issue(c):
            issue_x(c)
            issue_w(c)

        issue_x(0)
        a(self.KARG)
        a("""s_and_b32 s64, s4, 1
        s_lshl2_add_u32 s61, s64, s65
        s_lshl1_add_u32 s66, s64, s65
        s_lshl_b32 s63, s61, 7
        s_add_u32 s63, s63, 1024
        s_lshl_b32 s64, s66, 8
        s_cmp_ge_u32 s5, 16
        s_cselect_b32 s63, s64, s63
        s_cselect_b32 s64, 7, 10
        v_bfe_u32 v12, v1, 2, 2
        v_xor_b32 v12, v12, v3
        v_lshrrev_b32 v13, 1, v12
        v_lshlrev_b32 v13, s64, v13
        v_and_b32 v14, 1, v12
        v_lshl_add_u32 v13, v14, 6, v13
        v_and_b32 v14, 3, v1
        v_lshl_add_u32 v13, v14, 4, v13
        v_mul_u32_u24 v15, 0xc00, v3
        s_mul_i32 s65, s58, 0xc000
        s_add_u32 s65, s65, s63
        v_add3_u32 v8, v13, v15, s65
        v_add_u32 v9, 0x2c00, v8
        v_add_u32 v10, 0x5800, v8
        v_add_u32 v11, 0x8400, v8
        s_mov_b32 s50, 0x180000
        s_mov_b32 s51, 0x20000""")
        issue_w(0)
        H = ["x0", "w0"]
        if self.opt.get("w4e"):
            plan = [["w4", "x1"], ["w1", "x2", "w2"], ["x3", "w3"], ["x4", "x5"], ["w5", "x6"], ["w6", "x7"], ["w7"]]
            if self.opt["w4e"] == 2:
                plan = [["w4", "x1"], ["w1", "x2", "w2"], ["x3", "w3", "x4"], [], ["x5", "w5"], ["x6", "w6"], ["x7", "w7"]]
        else:
            plan = [["x1", "w1"]] + [["x%d" % k, "w%d" % k] for k in range(2, 8)]

        def half(h):
            c = int(h[1])
            if h[0] == "x":
                issue_x(c)
            else:
                if H[-1] != "x%d" % c:
                    kchunk(c)
                issue_w(c)
            H.append(h)

        half(plan[0][0])
        a("s_waitcnt lgkmcnt(0)")
        a("s_load_dwordx2 s[8:9], s[32:33], %d" % WS_EP)
        half(plan[0][1])
        self.srd(self.rWS, self.pWS, WS_SIZE)
        self.srd(self.rOUT, self.pOUT, 2048 * 2048)
        a("s_waitcnt lgkmcnt(0)")
        self.tags()
        groups = list(range(8))
        waitc = lambda c: a("s_waitcnt vmcnt(%d)\ns_barrier" % (4 * (len(H) - 1 - max(H.index("x%d" % c), H.index("w%d" % c))) + 8 * (len(groups) - 8)))
        for c in range(6):
            waitc(c)
            if c == 0:
                self.stamp()
            for h in plan[c + 1]:
                half(h)
        c = 6
        cq, gq = c, list(groups)
        a("s_cmp_ge_u32 s5, 16\ns_cbranch_scc1 QLOADER")
        n0 = self.nst
        WSLOT = [3, 4, 0, 2]
        self.srd(self.rC, self.pWO, 512 * 1024)
        a("""s_and_b32 s68, s5, 3
        s_lshl_b32 s69, s58, 13
        v_lshlrev_b32 v16, 6, v12
        v_lshl_add_u32 v16, v14, 4, v16
        v_lshl_add_u32 v16, v3, 10, v16
        s_lshl_b32 s65, s58, 15
        OCCALC
        s_lshl_b32 s66, s14, 8
        s_add_u32 s65, s65, s66
        v_add_u32 v16, s65, v16
        v_add_u32 v17, 0xc00, v16
        v_add_u32 v18, 0x1800, v16
        v_add_u32 v19, 0x2400, v16""".replace("OCCALC", "s_and_b32 s14, s4, 1\ns_lshr_b32 s66, s5, 3\ns_lshl1_add_u32 s14, s14, s66" if self.opt.get("omap") else "s_lshr_b32 s14, s5, 2"))

        def issue_wo(n, sl=None):
            slot = (WSLOT[n] if sl is None else sl) * 32768
            a("s_add_u32 m0, s69, %d" % slot)
            a("s_xor_b32 s63, s68, %d\ns_lshl_b32 s63, s63, 17" % n)
            for j in range(4):
                a("buffer_load_dwordx4 v%d, %s, s63 offen offset:%d lds" % (16 + j, s(self.rC, 4), j * 1024))
            a("s_add_u32 m0, s69, %d" % (slot + 4096))
            a("s_add_u32 s63, s63, 0x4000")
            for j in range(4):
                a("buffer_load_dwordx4 v%d, %s, s63 offen offset:%d lds" % (16 + j, s(self.rC, 4), j * 1024))

        def read_wo(n, sl=None):
            ad, off = {4: (0, 0), 0: (14, 0), 1: (14, 32768), 3: (15, 32768), 2: (15, 0)}[WSLOT[n] if sl is None else sl]
            for h in range(8):
                r = 128 + 32 * n + 4 * h
                a("ds_read_b64_tr_b16 %s, v%d offset:%d" % (v(r, 2), ad, off + h * 4096))
                a("ds_read_b64_tr_b16 %s, v%d offset:%d" % (v(r + 2, 2), ad, off + h * 4096 + 2048))

        wsched = {self.opt.get("w0", 6): [0]}
        wsched.setdefault(self.opt.get("w1", 7), []).append(1)
        w2late = self.opt.get("w2late", 0)
        if not w2late:
            wsched.setdefault(7, []).append(2)
        for c in range(cq, 8):
            waitc(c)
            if c == 7:
                self.stamp()
            for n in wsched.get(c, []):
                issue_wo(n)
                groups.append("w%d" % n)
        assert len(groups) == 11 - w2late
        a.label("WL_0")
        self.wo_addr()
        self.tail_addr()
        a("s_waitcnt vmcnt(0)")
        self.stamp()
        a("s_barrier")
        if w2late:
            WSLOT[:] = [3, 4, 2, 1]
        if w2late:
            issue_wo(2)
        issue_wo(3)
        self.read_wo = read_wo
        if self.opt.get("wide"):
            for j in range(4):
                a("v_xor_b32 v%d, 0x100, v%d" % (16 + j, 16 + j))
            issue_wo(0, 1)
            for n in range(3):
                read_wo(n)
            a("s_waitcnt vmcnt(0) lgkmcnt(0)\ns_barrier")
            self.stamp()
            if self.opt["wide"] == 1:
                self.w_pqload()
            for n in range(1, 4):
                issue_wo(n, WSLOT[n - 1])
            read_wo(3)
            if self.opt["wide"] == 3:
                self.w_pqload()
                a("s_waitcnt vmcnt(4)")
            if self.opt["wide"] == 2:
                a("s_waitcnt vmcnt(0)")
        else:
            for n in range(3 - w2late):
                read_wo(n)
        a.label("WL_1")
        a("s_branch KV_TAIL")
        self.kv_tail_nst = self.nst
        self.nst = n0
        a.label("QLOADER")
        self.role = "R"
        self.reducer_setup()
        del groups[8:]
        for c in range(cq, 8):
            waitc(c)
        if self.opt.get("prewrite", 1):
            lab = a.newlabel("NOZ")
            a("s_cmp_gt_u32 s71, 8\ns_cbranch_scc1 " + lab)
            a("buffer_store_dwordx4 v[32:35], v21, %s, s67 offen sc1" % ws)
            a.label(lab)
        lab = a.newlabel("PC")
        a("s_getpc_b64 s[56:57]")
        a.label(lab)
        a.items.append(("i", _sym_add("s_add_u32 s56, s56, TABLE-%s" % lab, 0x8000)))
        a("s_addc_u32 s57, s57, 0\nv_lshlrev_b32 v2, 4, v1\nv_add_u32 v3, s59, v2\ns_add_u32 m0, s59, %d" % TB)
        for q in range(4):
            a("global_load_lds_dwordx4 v3, s[56:57] offset:%d" % (q * 1024))
        self.ra_inv(1, 84)
        a("ds_write_b64 v90, v[88:89]")
        a("s_waitcnt vmcnt(0) lgkmcnt(0)\ns_barrier")
        self.stamp()
        self.reducer()

    def ra_inv(self, half, t):
        self.a("""v_and_b32 v{0}, 7, v1
        v_lshlrev_b32 v{0}, 6, v{0}
        s_add_u32 s62, s60, {h}
        v_add_u32 v{0}, s62, v{0}
        v_cvt_f32_u32 v{0}, v{0}
        v_mul_f32 v{0}, {c1}, v{0}
        s_lshr_b32 s62, s3, 1
        s_and_b32 s15, s3, 1
        s_lshl2_add_u32 s14, s62, s15
        s_lshl_b32 s14, s14, 1
        v_lshrrev_b32 v{1}, 5, v1
        v_lshl_add_u32 v{1}, v{1}, 2, s14
        v_cvt_f32_u32 v{1}, v{1}
        v_bfe_u32 v{2}, v1, 3, 1
        v_cvt_f32_u32 v{2}, v{2}
        v_mul_f32 v{2}, {c2}, v{2}
        v_fma_f32 v{1}, v{1}, v{0}, v{2}
        v_lshlrev_b32 v{2}, 27, v1
        v_and_b32 v{2}, 0x80000000, v{2}
        v_or_b32 v{2}, {c3}, v{2}
        v_add_f32 v{3}, v{1}, v{2}
        v_sub_f32 v{2}, v{0}, v{2}
        v_add_f32 v{2}, v{1}, v{2}
        v_cos_f32 v{0}, v{3}
        v_sin_f32 v{3}, v{3}
        v_cos_f32 v{1}, v{2}
        v_sin_f32 v{2}, v{2}
        s_lshl_b32 s62, s62, 10
        s_lshl3_add_u32 s62, s15, s62
        s_add_u32 s62, s62, {rab}
        v_add_u32 v{6}, s62, v2
        v_cvt_pk_bf16_f32 v{4}, v{0}, -v{3}
        v_cvt_pk_bf16_f32 v{5}, v{1}, -v{2}""".format(*[t + i for i in range(7)], h=512 * half, c1=fhex(1 / 2048), c2=fhex(-0.25),
                                                      c3=fhex(0.125), rab=RAB))

    def reducer_setup(self):
        a = self.a
        a("""s_lshl3_add_u32 s60, s4, s5
        s_sub_u32 s60, s60, 16
        s_lshr_b32 s61, s60, 2
        s_and_b32 s71, s60, 3
        s_lshl2_add_u32 s71, s58, s71
        s_mul_i32 s63, s61, %d
        s_lshl_b32 s64, s71, 7
        s_add_u32 s63, s63, s64
        s_add_u32 s63, s63, 0x%x
        s_mul_i32 s67, s61, %d
        s_add_u32 s67, s67, s64
        s_add_u32 s67, s67, 0x%x
        s_add_u32 s64, s63, %d
        s_add_u32 s65, s63, %d
        s_add_u32 s66, s63, %d""" % (32 * PLINE, WS_PART, PLINE, WS_RED, 8 * PLINE, 16 * PLINE, 24 * PLINE))
        a("""v_lshrrev_b32 v2, 3, v1
        v_and_b32 v3, 7, v1
        v_lshlrev_b32 v3, 4, v3
        v_mov_b32 v22, %d
        v_mad_u32_u24 v20, v2, v22, v3
        v_mov_b32 v22, 0x%x
        v_mad_u32_u24 v21, v2, v22, v3""" % (PLINE, RED_STRIDE))
        a("""v_and_b32 v2, 1, v1
        v_lshlrev_b32 v2, 4, v2
        v_mov_b32 v3, 0x3f80
        v_lshlrev_b32 v3, v2, v3
        v_and_b32 v2, 2, v1
        v_cmp_eq_u32 vcc, 0, v2
        v_mov_b32 v24, 0
        v_mov_b32 v25, 0
        v_mov_b32 v28, 0
        v_mov_b32 v29, 0
        v_cndmask_b32 v26, 0, v3, vcc
        v_cndmask_b32 v27, v3, v25, vcc
        v_mov_b32 v32, 0xfffefffe
        v_mov_b32 v33, 0
        v_mov_b32 v34, 0
        v_mov_b32 v35, 0""")

    def reducer(self):
        a = self.a
        ws = s(self.rWS, 4)
        D, acc, vacc, o = 40, 72, 80, 36
        lab = a.newlabel("NORED")
        n0 = self.nst
        self.pad_stamps(9)
        self.nst = n0
        a("s_cmp_gt_u32 s71, 8\ns_cbranch_scc1 HELPER")
        a.label("WR_0")
        self.diag_delay("d_part")
        self.poll(lambda: [a("buffer_load_dwordx4 %s, v20, %s, s%d offen sc1" % (v(D + 4 * i, 4), ws, 63 + i)) for i in range(4)],
                  lambda: self.markcheck(D, 16, vacc), vacc)
        self.stamp()
        for i in range(4):
            for h in range(2):
                a("%s %s, %s, %s, %s" % (M16, v(acc + 4 * h, 4), v(26 - 2 * h, 4), v(D + 4 * i, 4), v(acc + 4 * h, 4) if i else "0"))
        for r in range(8):
            a("v_add_f32_dpp v%d, v%d, v%d row_ror:8 row_mask:0xf bank_mask:0xf" % (56 + r, acc + r, acc + r))
        for j in range(4):
            self.cvt(o + j, v(56 + 2 * j), v(57 + 2 * j))
        for x in self.mark(o, 32):
            a(x)
        a("buffer_store_dwordx4 %s, v21, %s, s67 offen sc1" % (v(o, 4), ws))
        a.label("WR_1")
        self.stamp()
        self.pad_stamps(9)
        a("s_branch HELPER")

    def lds_reset(self):
        self.lq_issued = 0
        self.lq_done = 0

    def lds(self, line):
        self.a(line)
        self.lq_issued += 1
        return self.lq_issued

    def lds_wait(self, seq):
        if seq > self.lq_done:
            n = min(self.lq_issued - seq, 15)
            self.a("s_waitcnt lgkmcnt(%d)" % n)
            self.lq_done = self.lq_issued - n

    @staticmethod
    def cost(line):
        m = line.split()[0]
        if m == "MARK":
            return 0
        if m.startswith(("v_exp", "v_rcp", "v_sin", "v_cos")):
            return 8
        return 4

    def run_mfmas(self, mf, frags, pool, fillers, budget=24, maxread=2, maxout=14, hooks=None):
        a = self.a
        order = []
        last = {}
        for j, (_, ids) in enumerate(mf):
            for i in ids:
                if i not in last:
                    order.append(i)
                last[i] = j
        pool = list(pool)
        reg, seq = {}, {}
        rp = [0, 0]
        q = []

        def one_read():
            i = order[rp[0]]
            reads, pre = frags[i]
            if rp[1] == 0:
                if not pool:
                    return False
                if pre:
                    pre()
                reg[i] = pool.pop(0)
            sq = self.lds(reads[rp[1]].format(r=v(reg[i], 4), lo=v(reg[i], 2), hi=v(reg[i] + 2, 2)))
            rp[1] += 1
            if rp[1] == len(reads):
                seq[i] = sq
                rp[0] += 1
                rp[1] = 0
            return True

        while rp[0] < len(order) and self.lq_issued - self.lq_done < maxout - 2 and pool and not (rp[0] and frags[order[rp[0]]][1]):
            one_read()
        for j, (fmt, ids) in enumerate(mf):
            for i in ids:
                while i not in seq:
                    assert one_read()
            if ids:
                self.lds_wait(max(seq[i] for i in ids))
            a(fmt.format(*[v(reg[i], 4) for i in ids]))
            for i in ids:
                if last[i] == j:
                    pool.append(reg[i])
            if hooks and j in hooks:
                hooks[j]()
            b = budget
            k = 0
            while k < maxread and rp[0] < len(order) and self.lq_issued - self.lq_done < maxout:
                gate = frags[order[rp[0]]]
                if rp[1] == 0 and len(gate) > 2 and gate[2]() is False:
                    break
                if not one_read():
                    break
                k += 1
                b -= 4
            q += fillers.get(j, [])
            while q and b >= self.cost(q[0]):
                if self.opt.get("upf", 1) and q[0].startswith("v_pk_"):
                    q[0:1] = unpack_pk(q[0])
                x = q.pop(0)
                b -= self.cost(x)
                self.emit_filler(x)
            self.fq = q
        return q

    def emit_filler(self, x):
        if x == "MARK":
            pass
        elif x.startswith("ds_"):
            self.last_fill_lds = self.lds(x)
        elif x.startswith("WAITLDS"):
            self.lds_wait(self.last_fill_lds - int(x.split()[1]))
        else:
            self.a(x)

    def gemm_loop(self, acc, pool, ax, aw, xfirst, fill, Z, hooks=None):
        a = self.a
        frags, mf = {}, []
        seen = set()

        def fx(n, mb, tag):
            c, ks = n >> 2, n & 3
            slot = c % 5
            hi, so = slot >> 1, (slot & 1) * 32768
            pre = None
            if ("x", n, mb, tag) in frags:
                return ("x", n, mb, tag)
            if c not in seen:
                seen.add(c)
                pre = (lambda: a("s_barrier")) if c else None
            frags[("x", n, mb, tag)] = (["ds_read_b128 {r}, v%d offset:%d" % (ax[hi][ks], so + 4096 * mb)], pre)
            return ("x", n, mb, tag)

        def fw(n, nb):
            c, ks = n >> 2, n & 3
            slot = c % 5
            hi, so = slot >> 1, (slot & 1) * 32768 + 16384 + ks * 4096
            frags[("w", n, nb)] = (["ds_read_b64_tr_b16 {lo}, v%d offset:%d" % (aw[hi][nb], so),
                                    "ds_read_b64_tr_b16 {hi}, v%d offset:%d" % (aw[hi][nb], so + 1024)], None)
            return ("w", n, nb)

        def add(n, nbs, tag):
            X = [fx(n, 0, tag), fx(n, 1, tag)]
            for nb in nbs:
                W = fw(n, nb)
                for mb in range(2):
                    d = v(acc[mb][nb], 16)
                    mf.append(("v_mfma_f32_32x32x16_bf16 %s, %s, %s" % (d, "{0}, {1}" if xfirst else "{1}, {0}", d if n else "0"), [X[mb], W]))

        for n in range(32 - Z):
            add(n, (0, 1), 0)
        for n in range(32 - Z, 32):
            add(n, (0,), 0)
        j0 = len(mf)
        for n in range(32 - Z, 32):
            add(n, (1,), 0 if self.opt.get("keepx", 1) else 1)
        a("s_barrier")
        self.stamp()
        self.lds_reset()
        return self.run_mfmas(mf, frags, pool, {j0 + 1: fill}, hooks=hooks)

    def phi(self, src, dst, tmp, n):
        L = []
        for g in range(0, n, 8):
            for j in range(0, 8, 2):
                L.append("v_pk_mul_f32 %s, %s, s[56:57]" % (v(tmp + j, 2), v(src + g + j, 2)))
            for j in range(8):
                L.append("v_exp_f32_e64 v%d, v%d clamp" % (tmp + j, tmp + j))
                L.append("v_max_f32 v%d, s58, v%d" % (src + g + j, src + g + j))
            for j in range(0, 8, 2):
                L.append("v_pk_add_f32 %s, %s, %s" % (v(tmp + j, 2), v(tmp + j, 2), v(src + g + j, 2)))
            for j in range(0, 8, 2):
                L.append("v_cvt_pk_bf16_f32 v%d, v%d, v%d" % (dst + (g + j) // 2, tmp + j, tmp + j + 1))
        return L

    def compute(self):
        a = self.a
        ws = s(self.rWS, 4)
        a.label("COMPUTE")
        self.role = "K"
        if self.opt.get("walk", 0) & 1:
            a("""s_mov_b64 exec, 0
            s_cmp_ge_u32 s5, 16
            s_cbranch_scc1 WKQ
            s_cmp_eq_u32 s3, 0
            s_cbranch_scc1 WKA0
            s_cmp_eq_u32 s3, 1
            s_cbranch_scc1 WKA1
            s_cmp_eq_u32 s3, 2
            s_cbranch_scc1 WKA2
            s_branch WKL0""")
            a.label("WKQ")
            a("""s_cmp_eq_u32 s3, 0
            s_cbranch_scc1 WKQ0
            s_cmp_eq_u32 s3, 1
            s_cbranch_scc1 WKQ1
            s_cmp_eq_u32 s3, 2
            s_cbranch_scc1 WKR0
            s_branch WKC0""" if self.opt.get("walk", 0) & 2 else "s_cmp_eq_u32 s3, 0\ns_cbranch_scc1 WKQ0\ns_cmp_eq_u32 s3, 1\ns_cbranch_scc1 WKQ1\ns_branch WKR0")
            a.label("WRET_A")
            a("s_mov_b64 exec, -1\ns_waitcnt lgkmcnt(0)\ns_nop 15")
        ax = [[240, 241, 242, 243], [244, 245, 246, 247], [252, 253, 254, 255]]
        aw = [[248, 249], [250, 251], [146, 147]]
        a("""s_lshr_b32 s60, s4, 1
        s_and_b32 s68, s5, 3
        s_lshl2_add_u32 s60, s60, s68
        s_and_b32 s64, s4, 1
        s_bfe_u32 s65, s5, 0x20002
        s_lshl2_add_u32 s61, s64, s65
        s_lshl1_add_u32 s66, s64, s65
        s_lshr_b32 s63, s3, 1
        s_and_b32 s64, s3, 1
        s_lshr_b32 s67, s5, 4
        s_lshl_b32 s69, s64, s67
        s_movk_i32 s70, 128
        s_lshr_b32 s70, s70, s67
        s_cmp_ge_u32 s5, 16
        s_cselect_b32 s61, s66, s61
        s_mov_b32 s10, 0xffff0000
        s_mov_b32 s11, 0xffff0000""")
        a(self.KARG)
        a("""v_and_b32 v2, 31, v1
        v_lshlrev_b32 v2, 7, v2
        s_lshl_b32 s65, s63, 13
        v_add_u32 v2, s65, v2
        v_lshrrev_b32 v3, 5, v1
        v_bfe_u32 v16, v1, 1, 3
        v_xor_b32 v16, v16, v3
        v_lshl_add_u32 v240, v16, 4, v2
        v_xor_b32 v241, 32, v240
        v_xor_b32 v242, 64, v240
        v_xor_b32 v243, 96, v240""")
        a("""v_bfe_u32 v16, v1, 2, 2
        v_lshl_add_u32 v17, v3, 3, v16
        v_xor_b32 v16, s69, v16
        v_lshlrev_b32 v16, 6, v16
        v_lshl_add_u32 v16, v17, 8, v16
        v_bfe_u32 v17, v1, 4, 1
        v_lshl_add_u32 v16, v17, 5, v16
        v_and_b32 v17, 3, v1
        v_lshl_add_u32 v248, v17, 3, v16
        v_xor_b32 v249, s70, v248""")
        for k in range(4):
            a("v_add_u32 v%d, 0x10000, v%d" % (244 + k, 240 + k))
            a("v_add_u32 v%d, 0x20000, v%d" % (252 + k, 240 + k))
        a("v_add_u32 v250, 0x10000, v248\nv_add_u32 v251, 0x10000, v249\nv_add_u32 v146, 0x20000, v248\nv_add_u32 v147, 0x20000, v249")
        a("s_waitcnt lgkmcnt(0)")
        a("s_load_dwordx2 s[8:9], s[32:33], %d" % WS_EP)
        self.srd(self.rWS, self.pWS, WS_SIZE)
        self.srd(self.rOUT, self.pOUT, 2048 * 2048)
        a("s_mov_b32 s56, %s\ns_mov_b32 s57, %s\ns_mov_b32 s58, %s" % (fhex(1.4426950408889634), fhex(1.4426950408889634), fhex(1e-6)))
        a("v_lshlrev_b32 v2, 4, v1")
        acc = [[64, 96], [80, 112]]
        pool = list(range(16, 64, 4))
        Z = self.opt.get("z", 6)
        CN = 252
        a("s_cmp_ge_u32 s5, 16\ns_cbranch_scc1 QCOMPUTE")
        n0 = self.nst
        a("""s_lshl1_add_u32 s59, s61, s64
        s_lshl_b32 s59, s59, 5
        s_lshl1_add_u32 s66, s60, s63
        s_add_u32 s59, s59, s66
        s_mul_i32 s59, s59, %d
        s_add_u32 s59, s59, 0x%x""" % (PLINE, WS_PART))
        P0, P1, PZ, ONES, zaddr = 128, 132, 136, 140, 144
        pk, vv, tmp, D, D2 = 180, 196, 212, 148, 164
        for j in range(4):
            a("v_mov_b32 v%d, 0x3f803f80" % (ONES + j))

        def prewrite():
            a("buffer_store_dwordx4 %s, v2, %s, s59 offen sc1" % (v(ONES, 4), ws))
            a("s_mov_b64 exec, 0xff")
            a("buffer_store_dwordx4 %s, v2, %s, s59 offen offset:1024 sc1" % (v(ONES, 4), ws))
            a("s_mov_b64 exec, -1")

        pw = self.opt.get("prewrite", 1)
        if pw == 1:
            prewrite()
        a("""v_lshrrev_b32 v3, 4, v1
        v_and_b32 v145, 1, v1
        v_lshl_add_u32 v4, v3, 1, v145
        v_lshlrev_b32 v%d, 4, v4
        v_mov_b32 v145, 0xfffefffe
        s_mov_b32 s60, 0x00030003
        s_mov_b32 s61, 0x00030003""" % zaddr)
        self.tail_addr()
        a("s_waitcnt lgkmcnt(0)")
        self.tags()
        K0, K1, V0, V1 = acc[0][0], acc[1][0], acc[0][1], acc[1][1]
        fill = []
        for i, src in enumerate((K0, K0 + 8, K1, K1 + 8)):
            fill += self.phi(src, pk + 4 * i, tmp, 8) + ["MARK"]
        hooks = {100: lambda: a("s_waitcnt vmcnt(0)")}
        if pw > 1:
            hooks[pw] = prewrite
        big = list(range(148, 180, 4)) + list(range(220, 240, 4)) if self.opt.get("keepx", 1) else []
        hooks[128 - 2 * Z] = lambda: a.label("WA_0")
        rest = self.gemm_loop(acc, pool + big, ax, aw, True, fill, Z, hooks)
        self.stamp()
        ndone = 4 - rest.count("MARK")
        vsrc = (V0, V0 + 8, V1, V1 + 8)
        vcvt = lambda i: ["v_cvt_pk_bf16_f32 v%d, v%d, v%d" % (vv + 4 * i + j, vsrc[i] + 2 * j, vsrc[i] + 2 * j + 1) for j in range(4)]
        mD = lambda i: "%s %s, %s, %s, %s" % (M32, v(D, 16), v(pk + 4 * i, 4), v(vv + 4 * i, 4), v(D, 16) if i else "0")
        mZ = lambda i: "%s %s, %s, %s, %s" % (M32, v(D2, 16), v(pk + 4 * i, 4), v(ONES, 4), v(D2, 16) if i else "0")
        pend = [x for i in range(ndone) for x in ([mZ(i)], vcvt(i) + [mD(i)])]
        g, gap = ndone, 0
        for k, x in enumerate(rest):
            if x == "MARK":
                pend += [[mZ(g)], vcvt(g) + [mD(g)]]
                g += 1
                continue
            run = 0
            while k + run < len(rest) and rest[k + run].startswith(("v_exp", "v_max")):
                run += 1
            if pend and run >= 5 and gap <= 0:
                for y in pend.pop(0):
                    a(y)
                gap = 5
            a(x)
            gap -= 1
        cv = [y for it in pend for y in it if y.startswith("v_cvt")]
        zs = [y for it in pend for y in it if y.startswith("v_mfma") and v(ONES, 4) in y]
        ds = [y for it in pend for y in it if y.startswith("v_mfma") and v(ONES, 4) not in y]
        for y in cv[:4] + zs + cv[4:] + ds:
            a(y)
        for src, p in ((D2, PZ), (D, P0)):
            for j in range(4):
                self.cvt(p + j, v(src + 2 * j), v(src + 2 * j + 1))
            a("s_mov_b64 exec, s[10:11]")
            for j in range(4):
                self.cvt(p + j, v(src + 8 + 2 * j), v(src + 9 + 2 * j))
            a("s_mov_b64 exec, %s" % ("s[60:61]" if p == PZ else "-1"))
            for x in self.mark(p, 145):
                a(x)
            if p == PZ:
                a("buffer_store_dwordx4 %s, v%d, %s, s59 offen offset:1024 sc1" % (v(PZ, 4), zaddr, ws))
                a("s_mov_b64 exec, -1")
            else:
                a("buffer_store_dwordx4 %s, v2, %s, s59 offen sc1" % (v(p, 4), ws))
        self.stamp()
        a("s_barrier")
        if self.opt.get("wide"):
            self.wo_addr()
            if self.opt["wide"] == 1:
                a("s_waitcnt vmcnt(0)")
            a("s_barrier")
            self.stamp()
            if self.opt["wide"] == 1:
                self.w_pqload()
            self.read_wo(0, 1)
            assert self.nst == self.kv_tail_nst
            self.wide_tail()
        else:
            assert self.nst == self.kv_tail_nst
            self.kv_tail()
        a.label("WA_1")
        a("s_endpgm")
        self.nst = n0
        a.label("QCOMPUTE")
        a.unpk = False
        self.role = "Q"
        a("""s_lshl1_add_u32 s66, s60, s63
        s_lshl2_add_u32 s66, s66, s61
        s_lshl1_add_u32 s66, s66, s64
        s_lshl_b32 s65, s66, 13
        s_add_u32 s65, s65, 0x%x
        s_add_u32 s67, s65, 0x1000
        v_mov_b32 v4, 0xfffefffe
        s_lshl3_add_u32 s60, s4, s5
        s_sub_u32 s60, s60, 16""" % WS_PQ)
        self.ra_inv(1, 8)
        a("s_waitcnt lgkmcnt(0)")
        self.tags()

        def qpost(nb):
            L = []
            for mb in range(2):
                for h in range(2):
                    d = 128 + 16 * nb + 8 * mb + 4 * h
                    L += self.phi(acc[mb][nb] + 8 * h, d, 212, 8) + self.mark(d, 4)
                    L.append("buffer_store_dwordx4 %s, v2, %s, s%d offen offset:%d sc1" % (v(d, 4), ws, 67 if nb else 65, (h * 2 + mb) * 1024))
            return L

        big = list(range(160, 212, 4)) + list(range(220, 240, 4)) if self.opt.get("keepx", 1) else []
        rest = self.gemm_loop(acc, pool + big, ax, aw, False, qpost(0), self.opt.get("zq", 8), {100: lambda: a("s_waitcnt vmcnt(0)"), 128 - 2 * self.opt.get("zq", 8): lambda: a.label("WQ_0")})
        self.stamp()
        a("ds_write_b64 v14, v[12:13]")
        for x in rest + qpost(1):
            a(x)
        a.label("WQ_1")
        a("s_waitcnt vmcnt(%d) lgkmcnt(0)\ns_barrier" % self.opt.get("qdr", 2))
        self.stamp()
        self.pad_stamps(9)
        a.label("HELPER")
        a("s_lshl_b32 s62, s60, 7\ns_add_u32 s62, s62, 0x%x\ns_movk_i32 s34, 512" % WS_GO)
        self.flip_marks()
        a("s_branch B3_ENTRY")

    def wo_addr(self):
        a = self.a
        a("s_and_b32 s63, s3, 3")
        a("""v_bfe_u32 v14, v1, 2, 2
        v_lshrrev_b32 v15, 5, v1
        v_lshl_add_u32 v15, v15, 2, v14
        v_xor_b32 v14, s63, v14
        v_lshlrev_b32 v14, 6, v14
        v_lshl_add_u32 v14, v15, 8, v14
        v_and_b32 v15, 1, v1
        v_lshl_add_u32 v14, v15, 5, v14
        v_bfe_u32 v15, v1, 4, 1
        v_lshl_add_u32 v14, v15, 4, v14
        v_bfe_u32 v15, v1, 1, 1
        v_lshl_add_u32 v14, v15, 3, v14
        v_add_u32 v15, 0x10000, v14
        v_add_u32 v0, 0x20000, v14""")

    def tail_addr(self):
        a = self.a
        a("""v_lshlrev_b32 v2, 4, v1
        ORB
        s_lshl3_add_u32 s66, s65, s3
        s_lshl_b32 s67, s66, 13
        s_add_u32 s67, s67, 0x%x
        s_mul_i32 s70, s3, %d
        s_mul_i32 s71, s4, 0x%x
        s_add_u32 s70, s70, s71
        s_add_u32 s70, s70, 0x%x
        s_add_u32 s71, s70, %d
        v_lshrrev_b32 v8, 4, v1
        v_xor_b32 v8, 1, v8
        v_and_b32 v9, 1, v1
        v_lshl_add_u32 v8, v8, 1, v9
        v_lshlrev_b32 v8, 4, v8
        s_lshl_b32 s63, s3, 12
        v_add_u32 v13, s63, v2
        s_mov_b32 s10, 0xffff0000
        s_mov_b32 s11, 0xffff0000""".replace("ORB", "s_and_b32 s65, s5, 7\ns_lshr_b32 s66, s4, 1\ns_lshl3_add_u32 s65, s66, s65" if self.opt.get("omap") else "s_and_b32 s65, s5, 3\ns_lshl2_add_u32 s65, s4, s65") % (WS_PQ, 2 * PLINE, RED_STRIDE, WS_RED, PLINE))
        if self.opt.get("wide"):
            a("s_bfe_u32 s63, s5, 0x10002\ns_lshl_b32 s63, s63, 10\ns_add_u32 s67, s67, s63\ns_add_u32 s71, s67, 0x1000")

    def w_pqload(self):
        for i in range(4):
            self.a("buffer_load_dwordx4 %s, v2, %s, s%d offen offset:%d sc1" % (v(32 + 4 * i, 4), s(self.rWS, 4), 71 if i >= 2 else 67, (i & 1) * 2048))

    def wide_tail(self):
        a = self.a
        ws = s(self.rWS, 4)
        a.label("KV_TAIL")
        WO, PQ, RD, OP, AC = 128, 32, 48, 16, 64
        a("""s_mov_b32 s58, %s
        s_lshl_b32 s63, s5, 13
        s_and_b32 s64, s63, 0x6000
        s_add_u32 s64, s64, 0x8000
        v_add_u32 v4, s64, v2
        v_xor_b32 v5, 0x2000, v4
        v_xor_b32 v6, 0x4000, v4
        v_xor_b32 v7, 0x6000, v4
        s_lshl_b32 s63, s3, 11
        s_add_u32 s63, s63, 0x10000
        v_and_b32 v10, 31, v1
        v_bfe_u32 v11, v1, 1, 2
        v_lshrrev_b32 v9, 5, v1
        v_lshlrev_b32 v9, 1, v9
        v_xor_b32 v11, v11, v9
        v_lshlrev_b32 v11, 4, v11
        v_lshl_add_u32 v10, v10, 6, v11
        v_add_u32 v10, s63, v10
        v_bfe_u32 v9, v1, 3, 2
        v_lshlrev_b32 v9, 4, v9
        v_xor_b32 v9, v9, v2
        v_add_u32 v9, s63, v9
        v_lshrrev_b32 v3, 2, v1
        v_and_b32 v11, 3, v1
        v_lshlrev_b32 v11, 4, v11
        v_lshl_add_u32 v3, v3, 11, v11
        v_xor_b32 v11, 16, v10
        s_lshr_b32 s63, s5, 2
        s_and_b32 s64, s63, 1
        s_lshl1_add_u32 s65, s65, s64
        s_lshl_b32 s65, s65, 16
        s_lshl_b32 s63, s63, 2
        s_xor_b32 s63, s63, s3
        s_xor_b32 s63, s63, 4
        s_lshl_b32 s63, s63, 6
        s_add_u32 s64, s65, s63
        s_add_u32 s65, s64, 0x8000""" % fhex(1e-6))
        wd = self.opt["wide"]
        if wd == 1:
            self.poll(self.w_pqload, lambda: self.markcheck(PQ, 16, 12), 12, first_issued=True)
        a("s_waitcnt lgkmcnt(0)\ns_barrier")
        self.stamp()
        if wd == 2:
            self.w_pqload()
        if wd == 3:
            lab = a.newlabel("NOPQ")
            a("s_cmp_ge_u32 s3, 4\ns_cbranch_scc1 " + lab)
            self.w_pqload()
            a.label(lab)

        def issue():
            for pi in range(2):
                a("buffer_load_dwordx4 %s, v2, %s, s70 offen offset:%d sc1" % (v(RD + 8 * pi, 4), ws, pi * PLINE))
                a("buffer_load_dwordx4 %s, v8, %s, s70 offen offset:%d sc1" % (v(RD + 8 * pi + 4, 4), ws, pi * PLINE + 1024))

        self.diag_delay("d_red")
        issue()
        lab = a.newlabel("NOWO")
        a("s_cmp_ge_u32 s3, 4\ns_cbranch_scc1 " + lab)
        for n, sl in ((1, 3), (2, 4), (3, 0)):
            self.read_wo(n, sl)
        a.label(lab)
        if wd != 1:
            self.poll(self.w_pqload, lambda: self.markcheck(PQ, 16, 12), 12, first_issued=True)
        self.poll(issue, lambda: self.markcheck(RD, 16, 12), 12, first_issued=True)
        self.stamp()

        def sel(i):
            b = RD + 8 * (i >> 1)
            for j in range(4):
                x, y = (b + j, b + 4 + j) if i & 1 == 0 else (b + 4 + j, b + j)
                a("v_cndmask_b32 v%d, v%d, v%d, s[10:11]" % (OP + 4 * i + j, x, y))

        mf = lambda i: a("%s %s, %s, %s, 0" % (M32, v(AC + 16 * i, 16), v(OP + 4 * i, 4), v(PQ + 4 * i, 4)))
        sel(0)
        sel(1)
        mf(0)
        sel(2)
        mf(1)
        sel(3)
        mf(2)
        for i in range(4):
            d = AC + 16 * i
            num, den = (d, d + 8) if i & 1 == 0 else (d + 8, d)
            if i == 0:
                mf(3)
            a("v_add_f32 v%d, s58, v%d\nv_rcp_f32 v%d, v%d" % (den, den, den, den))
            for j in range(0, 8, 2):
                a("v_pk_mul_f32 %s, %s, %s op_sel_hi:[1,0]" % (v(num + j, 2), v(num + j, 2), v(den, 2)))
            for j in range(4):
                self.cvt(den + 4 + j, v(num + 2 * j), v(num + 2 * j + 1))
            a("ds_write_b128 v13, %s offset:%d" % (v(den + 4, 4), 32768 + i * 1024))
        a("s_waitcnt lgkmcnt(0)\ns_barrier")
        self.stamp()
        frags, mfl = {}, []
        d = v(AC, 16)
        for h in range(32):
            frags[h] = (["ds_read_b128 {r}, v%d offset:%d" % (4 + (h >> 3), (h & 7) * 1024)], None)
            mfl.append(("%s %s, %s, {0}, %s" % (M32, d, v(WO + 4 * h, 4), d if h else "0"), [h]))
        self.lds_reset()
        self.run_mfmas(mfl, frags, list(range(16, 48, 4)), {}, maxread=1)
        fl = self.opt.get("outflag", "sc1")
        t = AC + 16
        for j in range(8):
            self.cvt(t + j, v(AC + 2 * j), v(AC + 2 * j + 1))
        a("ds_write_b128 v10, %s\nds_write_b128 v11, %s" % (v(t, 4), v(t + 4, 4)))
        a("ds_read_b128 %s, v9\nds_read_b128 %s, v9 offset:1024" % (v(t + 8, 4), v(t + 12, 4)))
        for k in range(2):
            a("s_waitcnt lgkmcnt(%d)" % (1 - k))
            a("buffer_store_dwordx4 %s, v3, %s, s%d offen %s" % (v(t + 8 + 4 * k, 4), s(self.rOUT, 4), 64 + k, fl))
        lab = a.newlabel("NOEP")
        a("s_or_b32 s56, s4, s3\ns_or_b32 s56, s56, s5\ns_cbranch_scc1 " + lab)
        self.poll(lambda: a("buffer_load_dwordx2 v[6:7], off, %s, 0 offset:%d sc1" % (ws, WS_NOTE)),
                  lambda: a("v_xor_b32 v12, s6, v6\nv_bitop3_b32 v12, v12, v7, s7 bitop3:0xf6"), 12)
        a("v_mov_b32 v6, s8\nv_mov_b32 v7, s9\ns_mov_b64 exec, 1")
        a("buffer_store_dwordx2 v[6:7], off, %s, 0 offset:%d" % (ws, WS_EP))
        a("s_mov_b64 exec, -1")
        a.label(lab)
        self.end()

    def kv_tail(self):
        a = self.a
        ws = s(self.rWS, 4)
        a.label("KV_TAIL")
        a.unpk = bool(self.opt.get("unpk", 2) & 2)
        WO, PQ, RD, OP, AC = 128, 16, 48, 80, 96
        a("s_waitcnt vmcnt(0)")
        a("s_add_u32 s68, s67, 0x1000\ns_mov_b32 s62, s67\ns_mov_b32 s58, %s" % fhex(1e-6))
        pqload = lambda R=range(8): [a("buffer_load_dwordx4 %s, v2, %s, s%d offen offset:%d sc1" % (v(PQ + 4 * i, 4), ws, 68 if i >= 4 else 62, (i & 3) * 1024)) for i in R]
        self.diag_delay("d_pq")
        pql = self.opt.get("pqlate", 3)
        if pql == 3:
            pqload(range(4))
        elif pql != 1:
            pqload()
        if pql == 2:
            self.stamp()
            self.poll(pqload, lambda: self.markcheck(PQ, 32, 12), 12, first_issued=True)
        a("s_waitcnt lgkmcnt(0)\ns_barrier")
        self.stamp()
        if pql == 1:
            pqload()
        if pql == 3:
            pqload(range(4, 8))
        lab = a.newlabel("NOWO")
        a("s_cmp_lt_u32 s3, 4\ns_cbranch_scc1 " + lab)
        if self.opt.get("w2late", 0):
            self.read_wo(2)
        self.read_wo(3)
        a.label(lab)
        redat = self.opt.get("redat", -1)
        if pql != 2 and redat < 0:
            self.poll(pqload, lambda: self.markcheck(PQ, 32, 12), 12, first_issued=True)
            self.stamp()

        def issue():
            for pi in range(2):
                a("buffer_load_dwordx4 %s, v2, %s, s70 offen offset:%d sc1" % (v(RD + 8 * pi, 4), ws, pi * PLINE))
                a("buffer_load_dwordx4 %s, v8, %s, s70 offen offset:%d sc1" % (v(RD + 8 * pi + 4, 4), ws, pi * PLINE + 1024))

        a("""s_lshl_b32 s63, s5, 13
        s_and_b32 s64, s63, 0x6000
        s_add_u32 s64, s64, OBASE
        v_add_u32 v13, OBASE, v13
        v_add_u32 v4, s64, v2
        v_xor_b32 v5, 0x2000, v4
        v_xor_b32 v6, 0x4000, v4
        v_xor_b32 v7, 0x6000, v4
        s_lshl_b32 s69, s3, 12
        s_add_u32 s69, s69, STG
        v_and_b32 v10, 31, v1
        v_bfe_u32 v14, v1, 1, 2
        v_lshrrev_b32 v15, 5, v1
        v_lshlrev_b32 v15, 1, v15
        v_xor_b32 v14, v14, v15
        v_lshlrev_b32 v14, 4, v14
        v_lshl_add_u32 v10, v10, 6, v14
        v_add_u32 v10, s69, v10
        v_xor_b32 v14, 16, v10
        v_bfe_u32 v15, v1, 3, 2
        v_lshlrev_b32 v15, 4, v15
        v_xor_b32 v15, v15, v2
        v_add_u32 v15, s69, v15
        v_lshrrev_b32 v3, 2, v1
        v_and_b32 v11, 3, v1
        v_lshlrev_b32 v11, 4, v11
        v_lshl_add_u32 v3, v3, 11, v11
        s_lshl_b32 s65, s65, 17
        s_and_b32 s64, s3, 3
        s_lshl2_add_u32 s69, s14, s64
        s_lshl_b32 s69, s69, 6
        s_add_u32 s64, s65, s69
        s_add_u32 s65, s64, 0x8000
        s_add_u32 s66, s64, 0x10000
        s_add_u32 s67, s64, 0x18000""".replace("OBASE", "0x18000" if self.opt.get("w2late", 0) else "0").replace("STG", "0" if self.opt.get("w2late", 0) else "0x14000"))
        if self.opt.get("rbar", 1):
            a("s_barrier")
        self.diag_delay("d_red")
        if redat >= 0:
            lab = a.newlabel("LATE")
            a("s_waitcnt vmcnt(%d)\ns_cmp_ge_u32 s3, 4\ns_cbranch_scc1 %s\ns_waitcnt vmcnt(0)" % (redat, lab))
            self.diag_delay("d_old")
            a.label(lab)
            issue()
            a("s_waitcnt vmcnt(4)")
            self.markcheck(PQ, 32, 12)
            ok = a.newlabel("PQOK")
            a("v_cmp_ne_u32 vcc, 0, v12\ns_cbranch_vccz " + ok)
            self.poll(pqload, lambda: self.markcheck(PQ, 32, 12), 12)
            a.label(ok)
            self.stamp()
        self.poll(issue, lambda: self.markcheck(RD, 16, 12), 12, first_issued=redat >= 0)
        self.stamp()
        accs = [AC, AC + 16, RD, RD + 16]

        def sel(i):
            pi, h = i >> 1, i & 1
            b = RD + 8 * pi
            for j in range(4):
                x, y = (b + j, b + 4 + j) if h == 0 else (b + 4 + j, b + j)
                a("v_cndmask_b32 v%d, v%d, v%d, s[10:11]" % (OP + 4 * i + j, x, y))

        def mf(i, mb, d):
            return "%s %s, %s, %s, 0" % (M32, v(d, 16), v(OP + 4 * i, 4), v(PQ + 4 * (i * 2 + mb), 4))

        def post(i, mb, d):
            pi, h = i >> 1, i & 1
            num, den = (d, d + 8) if h == 0 else (d + 8, d)
            L = ["v_add_f32 v%d, s58, v%d" % (den, den), "v_rcp_f32 v%d, v%d" % (den, den)]
            for j in range(0, 8, 2):
                L.append("v_pk_mul_f32 %s, %s, %s op_sel_hi:[1,0]" % (v(num + j, 2), v(num + j, 2), v(den, 2)))
            for j in range(4):
                L.append("v_cvt_pk_bf16_f32 v%d, v%d, v%d" % (den + 4 + j, num + 2 * j, num + 2 * j + 1))
            L.append("ds_write_b128 v13, %s offset:%d" % (v(den + 4, 4), mb * 32768 + i * 1024))
            return L

        sel(0)
        sel(1)
        a(mf(0, 0, accs[0]))
        sel(2)
        a(mf(1, 0, accs[1]))
        sel(3)
        a(mf(2, 0, accs[2]))
        a(mf(3, 0, accs[3]))
        P = [post(i, 0, accs[i]) for i in range(4)]
        for x in P[0][:2]:
            a(x)
        for i in range(4):
            if i < 3:
                for x in P[i + 1][:2]:
                    a(x)
            for x in P[i][2:]:
                a(x)
        acc1 = [RD, RD + 16, AC + 16, RD]
        a(mf(0, 1, acc1[0]))
        a(mf(1, 1, acc1[1]))
        a("s_waitcnt lgkmcnt(0)\ns_barrier")
        self.stamp()
        a("s_cmp_ge_u32 s3, 4\ns_cbranch_scc1 OUT_GEMM")
        n0 = self.nst
        a(mf(2, 1, acc1[2]))
        a(mf(3, 1, AC))
        a.unpk = bool(self.opt.get("upf", 1))
        P = [post(i, 1, acc1[i] if i < 3 else AC) for i in range(4)]
        for x in P[0][:2]:
            a(x)
        for i in range(4):
            if i < 3:
                for x in P[i + 1][:2]:
                    a(x)
            for x in P[i][2:]:
                a(x)
        a.unpk = False
        a("s_waitcnt lgkmcnt(0)\ns_barrier")
        lab = a.newlabel("NOEP")
        a("s_or_b32 s56, s4, s3\ns_or_b32 s56, s56, s5\ns_cbranch_scc1 " + lab)
        self.poll(lambda: a("buffer_load_dwordx2 v[6:7], off, %s, 0 offset:%d sc1" % (ws, WS_NOTE)),
                  lambda: a("v_xor_b32 v12, s6, v6\nv_bitop3_b32 v12, v12, v7, s7 bitop3:0xf6"), 12)
        a("v_mov_b32 v6, s8\nv_mov_b32 v7, s9\ns_mov_b64 exec, 1")
        a("buffer_store_dwordx2 v[6:7], off, %s, 0 offset:%d" % (ws, WS_EP))
        a("s_mov_b64 exec, -1")
        a.label(lab)
        self.end()
        self.nst = n0
        a.label("OUT_GEMM")
        if self.opt.get("oprio", 1):
            a("s_setprio %d" % self.opt.get("oprio", 1))
        fl = self.opt.get("outflag", "sc1")
        out = s(self.rOUT, 4)
        frags, mfl = {}, []
        pool = [PQ + 8 * i for i in range(4)] + [PQ + 4, PQ + 12]

        def b11b():
            assert not self.fq
            self.lds_wait(self.last_fill_lds)
            a("s_barrier")

        AC2 = OP
        for mb in range(2):
            d = v(AC2 if mb else AC, 16)
            for h in range(32):
                frags[(mb, h)] = (["ds_read_b128 {r}, v%d offset:%d" % (4 + (h >> 3), mb * 32768 + (h & 7) * 1024)],
                                  b11b if (mb, h) == (1, 0) else None)
                mfl.append(("%s %s, %s, {0}, %s" % (M32, d, v(WO + 4 * h, 4), d if h else "0"), [(mb, h)]))
                if mb == 0 and h == 0:
                    mfl.append((mf(2, 1, acc1[2]), []))
                if mb == 0 and h == self.opt.get("oh3", 8):
                    mfl.append((mf(3, 1, acc1[3]), []))

        def epi(mb, d, t):
            L = ["v_cvt_pk_bf16_f32 v%d, v%d, v%d" % (t + j, d + 2 * j, d + 2 * j + 1) for j in range(8)]
            L += ["ds_write_b128 v10, %s offset:%d" % (v(t, 4), mb * 2048), "ds_write_b128 v14, %s offset:%d" % (v(t + 4, 4), mb * 2048),
                  "ds_read_b128 %s, v15 offset:%d" % (v(t + 8, 4), mb * 2048), "ds_read_b128 %s, v15 offset:%d" % (v(t + 12, 4), mb * 2048 + 1024)]
            L2 = ["WAITLDS 1", "buffer_store_dwordx4 %s, v3, %s, s%d offen %s" % (v(t + 8, 4), out, 64 + 2 * mb, fl),
                  "WAITLDS 0", "buffer_store_dwordx4 %s, v3, %s, s%d offen %s" % (v(t + 12, 4), out, 65 + 2 * mb, fl)]
            return L, L2

        e0, e0b = epi(0, AC, RD)
        fillers = {0: post(0, 1, acc1[0]) + post(1, 1, acc1[1]), 7: post(2, 1, acc1[2]), self.opt.get("oh3", 8) + 6: post(3, 1, acc1[3]), 36: e0, 46: e0b}
        self.lds_reset()
        rest = self.run_mfmas(mfl, frags, pool, fillers, maxread=1, budget=self.opt.get("obud", 16))
        assert not rest
        e1, e1b = epi(1, AC2, RD + 16)
        for x in e1 + e1b:
            self.emit_filler(x)
        self.end()

    def role_b(self):
        a = self.a
        a.label("ROLE_B")
        a.unpk = bool(self.opt.get("unpk", 2) & 1)
        self.role = "B"
        ws = s(self.rWS, 4)
        XW, SW, XW3 = 0, 3, 1
        if self.opt.get("walk", 0) & 2:
            a("s_mov_b64 exec, 0")
            for w in range(1, 7):
                a("s_cmp_eq_u32 s3, %d\ns_cbranch_scc1 WKB%d" % (w, w - 1))
            a("s_cmp_eq_u32 s3, 7\ns_cbranch_scc1 WKC0")
            a.label("WRET_C")
            a("s_cmp_lt_u32 s5, 24\ns_cbranch_scc1 WRET_A" if self.opt.get("walk", 0) & 1 else "s_nop 0")
            a.label("WRET_B")
            a("s_mov_b64 exec, -1\ns_waitcnt lgkmcnt(0)\ns_nop 15")
        a(self.KARG)
        a("s_waitcnt lgkmcnt(0)")
        a("s_load_dwordx2 s[8:9], s[32:33], %d" % WS_EP)
        self.srd(self.rWS, self.pWS, WS_SIZE)
        a("""v_lshrrev_b32 v4, 5, v1
        v_and_b32 v5, 31, v1
        v_lshlrev_b32 v6, 4, v5
        v_lshl_add_u32 v3, s3, 3, v4
        v_xor_b32 v3, s60, v3
        v_lshl_add_u32 v3, v3, 9, v6
        v_lshl_add_u32 v11, v4, 3, s3
        v_xor_b32 v8, s60, v11
        v_lshl_add_u32 v11, v11, 15, v6
        v_lshl_add_u32 v11, v8, 9, v11
        s_lshl_b32 s66, s60, 15
        s_add_u32 s66, s66, 0x%x
        s_mov_b32 s13, 0x%x
        v_mov_b32 v14, 0xfffefffe""" % (WS_X1, WS_X1))
        a("""s_lshl_b32 s67, s4, 10
        s_add_u32 s67, s67, 0x%x
        v_and_b32 v12, 15, v1
        v_lshrrev_b32 v13, 4, v1
        s_xor_b32 s71, s61, 7
        s_xor_b32 s62, s3, %d
        s_or_b32 s71, s71, s62""" % (WS_X2S, SW))
        a("""s_bitcmp1_b32 s61, 0
        s_cselect_b64 s[48:49], s[26:27], s[24:25]
        s_cselect_b64 s[52:53], s[24:25], s[26:27]
        s_cselect_b32 s34, 0x8000, 0
        s_mov_b32 s50, 0x%x
        s_mov_b32 s51, 0x20000
        s_mov_b32 s54, 0x%x
        s_mov_b32 s55, 0x20000
        s_add_u32 s34, s34, s70
        s_add_u32 s34, s34, %d
        s_xor_b32 s35, s34, 0x8000""" % (2048 * 514, 2048 * 514, WB))
        self.srd(self.rOUT, self.pOUT, 2048 * 2048)

        CS, TW0, TWX, F16 = 16, 40, 48, 56
        RA = 64
        T = 144
        a("""v_cvt_f32_u32 v16, v5
        s_bfe_u32 s62, s3, 0x10001
        s_and_b32 s63, s3, 1
        s_lshl2_add_u32 s62, s62, s63
        s_lshl_b32 s62, s62, 7
        s_add_u32 s62, s62, s60
        v_lshl_add_u32 v17, v4, 8, s62
        v_cvt_f32_u32 v17, v17
        v_mul_f32 v17, v17, v16
        s_lshr_b32 s62, s3, 2
        v_xor_b32 v18, s62, v1
        v_lshlrev_b32 v18, 31, v18
        v_or_b32 v18, %s, v18
        v_fmamk_f32 v17, v17, %s, v18
        v_fmamk_f32 v18, v16, %s, v17
        s_lshl_b32 s62, s62, 31
        v_cos_f32 v20, v17
        v_sin_f32 v21, v17
        v_cos_f32 v22, v18
        v_sin_f32 v23, v18
        s_lshr_b32 s64, s3, 1
        s_lshl_b32 s64, s64, 10
        s_lshl3_add_u32 s64, s63, s64
        s_add_u32 s64, s64, %d
        v_add_u32 v15, s64, v2""" % (fhex(0.125), fhex(1 / 2048), fhex(1 / 32), RAB))
        a("""v_cvt_pk_bf16_f32 v24, v20, v21
        v_cvt_pk_bf16_f32 v25, v22, v23
        v_cvt_pk_bf16_f32 v26, -v21, v20
        v_cvt_pk_bf16_f32 v27, -v23, v22
        v_xor_b32 v24, s62, v24
        v_xor_b32 v25, s62, v25
        v_xor_b32 v26, s62, v26
        v_xor_b32 v27, s62, v27
        ds_write_b64 v15, v[24:25]
        ds_write_b64 v15, v[26:27] offset:4096""")
        self.ra_inv(0, 136)
        a("s_lshl_b32 s14, s60, 9\ns_add_u32 s14, s14, 0x%x\ns_and_b32 s63, s3, 1" % (WS_X1 + 64 * 32768))
        FA = 128
        a("""v_bfe_u32 v16, v1, 3, 2
        s_lshl_b32 s62, s4, 2
        v_add_u32 v17, s62, v16
        v_lshl_add_u32 v17, v4, 5, v17
        v_mul_u32_u24 v17, 514, v17
        v_and_b32 v17, -16, v17
        v_sub_u32 v16, v1, v16
        v_and_b32 v18, 7, v16
        v_xor_b32 v19, 4, v18
        v_cmp_gt_u32 s[68:69], 5, v18
        v_cmp_gt_u32 s[58:59], 5, v19
        v_lshl_add_u32 v128, v18, 4, v17
        v_lshl_add_u32 v129, v19, 4, v17""")
        a("""v_lshl_add_u32 v7, v1, 3, s70
        s_lshr_b32 s62, s3, 1
        s_lshl_b32 s62, s62, 13
        s_lshl3_add_u32 s62, s63, s62
        s_add_u32 s62, s62, %d
        v_lshlrev_b32 v8, 11, v13
        v_lshl_add_u32 v8, v12, 4, v8
        v_add_u32 v8, s62, v8
        v_lshl_add_u32 v10, s3, 5, v5
        v_lshlrev_b32 v130, 13, v4
        v_add_u32 v130, %d, v130
        v_lshl_add_u32 v9, v10, 4, v130
        v_sub_u32 v10, 0, v10
        v_and_b32 v10, 0x1ff, v10
        v_lshl_add_u32 v10, v10, 4, v130
        v_add_u32 v131, %d, v2
        s_mul_i32 s62, s3, %d
        s_lshl_b32 s63, s61, 6
        s_add_u32 s62, s62, s63
        s_add_u32 s63, s62, %d
        s_add_u32 s64, s62, %d
        s_add_u32 s65, s62, %d
        s_waitcnt lgkmcnt(0)""" % (ZB, ZB, TB, 8 * 32 * 514, 64 * 514 - 1024, 128 * 514 - 2048, 192 * 514 - 3072))
        self.tags()

        def tab(reg, q, n):
            for i in range(n):
                a("ds_read_b128 %s, v131 offset:%d" % (v(reg + 4 * i, 4), (q + i) * 1024))

        fdp = [int(x) for x in str(self.opt.get("fdp", "0404"))[-4:].rjust(4, "0")]
        fdn = [0]

        def fnext(n=1):
            for _ in range(n):
                fdma(fdn[0] >> 2, fdn[0] & 3)
                fdn[0] += 1

        def fdma(second, q):
            a("s_mov_b64 exec, %s\ns_mov_b32 m0, s%d\nbuffer_load_dwordx4 v%d, %s, s%d offen offset:%d NT lds\ns_mov_b64 exec, -1".replace("NT", "nt" if self.opt.get("ntf", 2) >> second & 1 else "") % (
                "s[58:59]" if q >> 1 else "s[68:69]", 35 if second else 34, FA + (q >> 1), s(52 if second else 48, 4), 62 + q, q * 1024),
              at=60 + self.opt.get("fgap", 170) * (fdn[0] - fdp[0]))

        ls = self.opt.get("ls", 0)
        msc = self.opt.get("msc", 10) / 10.0
        a("s_waitcnt vmcnt(%d)\ns_barrier" % 4)
        XF, T1, U = T, T + 16, T + 48
        early = self.opt.get("cearly", 6)
        tab(CS, TQ_CS, early)
        nb = 0
        bpf = self.opt.get("bpf", 0)
        if bpf:
            a("""s_lshl3_add_u32 s15, s61, s3
            s_lshl_b32 s15, s15, 2
            s_lshl_b32 s56, s4, 2
            s_xor_b32 s56, s56, s4
            s_andn2_b32 s56, 4, s56
            s_lshl_b32 s56, s56, 6
            s_add_u32 s15, s15, s56
            s_mul_i32 s15, s15, 3072
            s_and_b32 s56, s4, 1
            s_lshl_b32 s56, s56, 9
            s_add_u32 s15, s15, s56
            v_mul_u32_u24 v124, 0xc00, v13
            v_bfe_u32 v125, v1, 2, 2
            v_lshl_add_u32 v124, v125, 10, v124
            v_and_b32 v125, 3, v1
            v_lshl_add_u32 v124, v125, 7, v124
            s_mov_b64 s[44:45], s[18:19]
            s_mov_b32 s46, 0x180000""")

        def dobpf():
            a("""s_mov_b32 exec_lo, 0x0fff0fff
            s_mov_b32 exec_hi, 0x0fff0fff
            buffer_load_dword v126, v124, s[44:47], s15 offen
            s_mov_b64 exec, -1""")
        if bpf == 1:
            dobpf()
            nb = 1
        fnext(fdp[0])
        a("s_waitcnt vmcnt(%d)" % (fdp[0] + nb))
        self.stamp()
        a.label("WB_0")
        pre = ["ds_read_b128 %s, v131" % v(CS + 4 * i, 4) for i in range(early)]
        a.capture(ls & 1)
        for q in range(4):
            a("ds_read_b64_tr_b16 %s, v7 offset:%d" % (v(XF + 4 * q, 2), q * 1024))
            a("ds_read_b64_tr_b16 %s, v7 offset:%d" % (v(XF + 4 * q + 2, 2), q * 1024 + 512))
        tab(CS + 4 * early, TQ_CS + early, 12 - early)
        if bpf == 2:
            dobpf()
        a("s_mov_b32 s22, 0x80000\ns_mov_b32 s23, 0x20000\ns_lshl3_add_u32 s15, s60, s3\ns_lshl_b32 s15, s15, 10\nbuffer_load_dwordx4 v[116:119], v2, s[20:23], s15 offen" if self.opt.get("wopf", 1) else "s_nop 0", at=56)
        sp1 = [(fdp[1] + 3 - i) // 4 for i in range(4)]
        fnext(sp1[0])

        def stage_cs(re, im, out, conj):
            S, N = (CS + 16, CS + 8) if conj else (CS + 8, CS + 16)
            for tau in range(2):
                a("%s %s, %s, %s, 0" % (M16, v(out + 4 * tau, 4), v(re, 4), v(CS + 4 * tau, 4)))
                a("%s %s, %s, %s, 0" % (M16, v(out + 8 + 4 * tau, 4), v(im, 4), v(CS + 4 * tau, 4)))
                a("%s %s, %s, %s, %s" % (M16, v(out + 4 * tau, 4), v(im, 4), v(S + 4 * tau, 4), v(out + 4 * tau, 4)))
                a("%s %s, %s, %s, %s" % (M16, v(out + 8 + 4 * tau, 4), v(re, 4), v(N + 4 * tau, 4), v(out + 8 + 4 * tau, 4)))

        def twiddle(t, tws, tmp, conj):
            for tau in range(2):
                for j in (0, 2):
                    re, im = t + 4 * tau + j, t + 8 + 4 * tau + j
                    sn_ = tws[tau] + 4 + j
                    k = tmp + 8 * tau + 2 * j
                    a("v_pk_mul_f32 %s, %s, %s" % (v(k, 2), v(im, 2), v(sn_, 2)))
                    a("v_pk_mul_f32 %s, %s, %s" % (v(k + 2, 2), v(re, 2), v(sn_, 2)))
            ng = " neg_lo:[0,0,1] neg_hi:[0,0,1]"
            for tau in range(2):
                for j in (0, 2):
                    re, im = t + 4 * tau + j, t + 8 + 4 * tau + j
                    c = tws[tau] + j
                    k = tmp + 8 * tau + 2 * j
                    a("v_pk_fma_f32 %s, %s, %s, %s%s" % (v(re, 2), v(re, 2), v(c, 2), v(k, 2), ng if conj else ""))
                    a("v_pk_fma_f32 %s, %s, %s, %s%s" % (v(im, 2), v(im, 2), v(c, 2), v(k + 2, 2), "" if conj else ng))

        a("s_waitcnt lgkmcnt(%d)" % (16 - early))
        stage_cs(XF, XF + 4, T1, False)
        a("s_waitcnt lgkmcnt(%d)" % (12 - early))
        stage_cs(XF + 8, XF + 12, T1 + 16, False)
        fnext(sp1[1])
        a("s_waitcnt lgkmcnt(0)")
        tab(RA, 24, 8)
        for m in range(2):
            t = T1 + 16 * m
            twiddle(t, [TW0, TWX], T + 64 + 16 * m, False)
            for tau in range(2):
                u = U + 8 * m + 4 * tau
                self.cvt(u, v(t + 4 * tau), v(t + 4 * tau + 1))
                self.cvt(u + 1, v(t + 4 * tau + 2), v(t + 4 * tau + 3))
                self.cvt(u + 2, v(t + 8 + 4 * tau), v(t + 8 + 4 * tau + 1))
                self.cvt(u + 3, v(t + 8 + 4 * tau + 2), v(t + 8 + 4 * tau + 3))
            for tau in range(2):
                u = U + 8 * m + 4 * tau
                a("%s %s, %s, %s, 0" % (M16, v(t + 4 * tau, 4), v(F16, 4), v(u, 4)))
                a("%s %s, %s, %s, 0" % (M16, v(t + 8 + 4 * tau, 4), v(F16 + 4, 4), v(u, 4)))
            fnext(sp1[2 + m])
        fd = 2 if fdp[3] == 0 else 1
        ZW = T + 96
        for i in range(8):
            self.cvt(ZW + 2 * i, v(T1 + i), v(T1 + 8 + i))
        for i in range(8):
            self.cvt(ZW + 2 * i + 1, v(T1 + 16 + i), v(T1 + 24 + i))
            a("ds_write_b64 v8, %s offset:%d" % (v(ZW + 2 * i, 2), (i >> 2) * 256 + (i & 3) * 512))
        print("B1", a.flush(pre, mf_scale=msc))
        a("s_waitcnt lgkmcnt(0)\ns_barrier")
        self.stamp()
        for f in range(4):
            a("ds_read_b128 %s, v%d offset:%d" % (v(XF + 4 * f, 4), 9 + (f >> 1), (f & 1) * 16384))
        fnext(fdp[2])
        PC = T + 48

        def pieces(src, j, dst, mark=True):
            for h in range(2):
                self.cvt(dst + h, v(src + 4 * j + 2 * h), v(src + 4 * j + 2 * h + 1))
                self.cvt(dst + 2 + h, v(src + 16 + 4 * j + 2 * h), v(src + 16 + 4 * j + 2 * h + 1))
            if mark:
                for x in self.mark(dst, 14):
                    a(x)

        for f in range(4):
            a("s_waitcnt lgkmcnt(%d)" % (3 - f))
            for ri in range(2):
                d = v(T1 + 16 * ri, 16)
                a("%s %s, %s, %s, %s" % (M32, d, v(RA + 16 * ri + 4 * f, 4), v(XF + 4 * f, 4), d if f else "0"))
        XE, TE = T + 64, T + 80
        a("ds_write_b64 v142, v[140:141]")
        a("ds_read_b128 %s, v130 offset:4096\nds_read_b128 %s, v130 offset:%d" % (v(XE, 4), v(XE + 4, 4), 4096 + 16384))
        a("v_lshlrev_b32 v16, 1, v6\nv_lshl_add_u32 v16, v4, 4, v16")
        if fd == 2:
            a("s_waitcnt vmcnt(0)")
        for j in range(4):
            pieces(T1, j, PC + 4 * j)
            a("buffer_store_dwordx4 %s, v11, %s, s13 offen sc1" % (v(PC + 4 * j, 4), ws))
            if j < 3:
                a("v_xor_b32 v11, 0x%x, v11" % ((j ^ (j + 1)) * 0x82000))
        a("s_waitcnt lgkmcnt(0)")
        lab = a.newlabel("NOX")
        a("s_cmp_lg_u32 s3, %d\ns_cbranch_scc1 %s" % (XW, lab))
        for f in range(4):
            for ri in range(2):
                d = v(TE + 16 * ri, 16)
                a("%s %s, %s, %s, %s" % (M32, d, v(RA + 16 * ri + 4 * f, 4), v(XE + 4 * (f & 1), 4), d if f else "0"))
        for j in range(4):
            a("s_mov_b32 exec_lo, %d\ns_mov_b32 exec_hi, %d" % (1 << j, 1 << j))
            pieces(TE, j, XE + 8, False)
        a("s_mov_b32 exec_lo, 15\ns_mov_b32 exec_hi, 15")
        for x in self.mark(XE + 8, 14):
            a(x)
        a("buffer_store_dwordx4 %s, v16, %s, s14 offen sc1" % (v(XE + 8, 4), ws))
        a("s_mov_b64 exec, -1")
        a.label(lab)
        self.stamp()
        fnext(fdp[3])
        assert fdn[0] == 8

        F32 = 16
        FL = 48
        LD, LD2 = 96, 112
        FL2 = T + 64
        DAT, FR, TM = T, T + 32, T + 48
        tab(F32, TQ_F32, 4)
        tab(FR, TQ_OM, 4)
        a("""v_lshrrev_b32 v11, 2, v1
        v_xor_b32 v11, v11, v4
        v_lshlrev_b32 v129, 9, v11
        v_and_b32 v11, 3, v1
        v_lshl_add_u32 v129, v11, 4, v129
        s_lshl_b32 s62, s4, 4
        v_xor_b32 v129, s62, v129
        v_bfe_u32 v6, v1, 2, 3
        v_lshlrev_b32 v6, 12, v6
        v_lshl_add_u32 v6, v11, 4, v6
        s_and_b32 s62, s3, 1
        v_xor_b32 v11, s62, v4
        v_lshl_add_u32 v6, v11, 6, v6
        s_lshl_b32 s62, s3, 9
        s_add_u32 s62, s62, %d
        v_add_u32 v6, s62, v6
        v_xor_b32 v11, 0x400, v3
        v_xor_b32 v134, 0x800, v3
        v_xor_b32 v135, 0xc00, v3
        s_add_u32 s70, s70, %d
        v_and_b32 v132, 1, v13
        v_lshl_add_u32 v132, v13, 3, v132
        v_bfe_u32 v133, v1, 3, 1
        v_lshl_add_u32 v132, v133, 1, v132
        v_lshlrev_b32 v132, 6, v132
        v_and_b32 v133, 3, v1
        v_lshl_add_u32 v132, v133, 4, v132
        v_bfe_u32 v133, v1, 2, 1
        v_lshl_add_u32 v132, v133, 3, v132
        v_add_u32 v132, s70, v132
        v_xor_b32 v133, 64, v132""" % (ZB, ZB))
        MB = [3, 11, 134, 135]

        def faddr(dst, kk, t1, t2):
            a("""v_and_b32 v{t2}, 3, v12
            s_lshl_b32 s15, s4, 2
            v_add_u32 v{t1}, s15, v{t2}
            v_and_b32 v{t1}, 7, v{t1}
            v_add_lshl_u32 v{t1}, v{t1}, v{kk}, 1
            v_lshl_add_u32 v{t1}, v{t2}, 4, v{t1}
            v_lshl_add_u32 v{t1}, v13, 6, v{t1}
            v_and_b32 v{t1}, 0x7f, v{t1}
            v_lshl_add_u32 v{t1}, v{t2}, 7, v{t1}
            v_lshl_add_u32 v{t1}, v13, 11, v{t1}
            v_add_u32 v{dst}, {wb}, v{t1}""".format(dst=dst, kk=kk, t1=t1, t2=t2, wb=WB))

        a("v_lshrrev_b32 v%d, 2, v12\nv_lshl_add_u32 v%d, s3, 2, v%d" % (LD, LD, LD))
        faddr(128, LD, LD + 1, LD + 2)
        a("""v_lshl_add_u32 v15, s3, 2, v13
        v_and_b32 v5, 7, v12
        v_xor_b32 v15, v15, v5
        v_lshlrev_b32 v15, 4, v15
        v_lshl_add_u32 v15, v12, 10, v15
        s_and_b32 s63, s3, 1
        s_lshl_b32 s64, s63, 6
        v_xor_b32 v7, s64, v2
        s_lshl_b32 s64, s3, 12
        v_add_u32 v7, s64, v7
        v_xor_b32 v136, 16, v7
        v_xor_b32 v137, 32, v7
        v_xor_b32 v138, 48, v7
        s_mov_b32 s64, 0x80008000
        s_waitcnt lgkmcnt(0)""")
        for i in range(16):
            a(("v_xor_b32 v%d, s64, v%d" if i & 1 else "v_mov_b32 v%d, v%d") % (F32 + 16 + i, F32 + i))
        if fd != 2:
            a("s_waitcnt vmcnt(0)")
        a("s_barrier")
        self.stamp()

        def fread(addr):
            for arr in range(2):
                for pm in range(2):
                    for t in range(8):
                        a("ds_read_u16_d16_hi v%d, v%d offset:%d" % (DAT + 16 * arr + 8 * pm + t, addr, arr * 32768 + pm * 16384 + (t >> 2) * 8192 + (t & 3) * 512))

        def filt(dst, raw, both=True):
            for j in range(0, 8, 2):
                a("v_pk_add_f32 %s, %s, %s" % (v(dst + j, 2), v(raw + j, 2), v(raw + 8 + j, 2)))
                a("v_pk_add_f32 %s, %s, %s" % (v(dst + 8 + j, 2), v(raw + 16 + j, 2), v(raw + 24 + j, 2)))
                a("v_pk_add_f32 %s, %s, %s neg_lo:[0,1] neg_hi:[0,1]" % (v(raw + j, 2), v(raw + j, 2), v(raw + 8 + j, 2)))
                a("v_pk_add_f32 %s, %s, %s neg_lo:[0,1] neg_hi:[0,1]" % (v(raw + 16 + j, 2), v(raw + 16 + j, 2), v(raw + 24 + j, 2)))
            ng = " neg_lo:[0,0,1] neg_hi:[0,0,1]"
            for j in range(0, 8, 2):
                dr, di, c, sn_ = v(raw + j, 2), v(raw + 16 + j, 2), v(FR + j, 2), v(FR + 8 + j, 2)
                t1, t2 = v(raw + 8 + j, 2), v(raw + 24 + j, 2)
                a("v_pk_mul_f32 %s, %s, %s" % (t1, di, sn_))
                a("v_pk_mul_f32 %s, %s, %s" % (t2, dr, sn_))
                a("v_pk_fma_f32 %s, %s, %s, %s" % (v(dst + 16 + j, 2), dr, c, t1))
                a("v_pk_fma_f32 %s, %s, %s, %s%s" % (v(dst + 24 + j, 2), di, c, t2, ng))
                if both:
                    a("v_pk_fma_f32 %s, %s, %s, %s%s" % (v(dst + 32 + j, 2), dr, c, t1, ng))
                    a("v_pk_fma_f32 %s, %s, %s, %s" % (v(dst + 40 + j, 2), di, c, t2))

        VS = 139

        sentinel = lambda base: self.markcheck(base, 16, VS)

        def x1load(special):
            for i in range(4):
                a("buffer_load_dwordx4 %s, v%d, %s, s%d offen sc1" % (v((LD2 if special else LD) + 4 * i, 4), 129 if special else MB[i], ws, 56 + i if special else 66))

        def x1first():
            lab = a.newlabel("NOSP")
            a("s_cmp_lg_u32 s71, 0\ns_cbranch_scc1 " + lab)
            for i in range(4):
                a("s_mov_b32 s%d, 0x%x" % (56 + i, WS_X1 + 64 * 32768 + 0x2000 * i))
            x1load(True)
            a.label(lab)
            x1load(False)

        x1l = self.opt.get("x1late", 2)
        if fd != 2 and x1l == 0:
            x1first()
        fread(128)
        a("s_waitcnt lgkmcnt(0)")
        if fd != 2 and x1l == 1:
            x1first()
        filt(FL, DAT)
        if fd != 2 and x1l == 2:
            self.diag_delay("d_x1")
            x1first()
        if fd == 2:
            a("s_waitcnt vmcnt(0)")
            self.diag_delay("d_x1")
            x1first()
        self.stamp()

        def hintx(pos):
            if self.opt.get("go", 4) == pos:
                lab = a.newlabel("NOH")
                a("s_cmp_lg_u32 s3, 7\ns_cbranch_scc1 " + lab)
                a("""s_lshl_b32 s14, s60, 7
                s_add_u32 s14, s14, 0x%x
                v_mov_b32 v140, s6
                v_mov_b32 v141, s7
                v_lshlrev_b32 v142, 3, v12
                buffer_store_dwordx2 v[140:141], v142, %s, s14 offen sc1""" % (WS_GO, ws))
                a.label(lab)

        def b2(fl, special):
            FR2, OUT, PO = T + 64, LD, T + 96
            a.capture(ls & 2)
            for p in range(2):
                for f in range(2):
                    for h in range(2):
                        a("ds_read_b64_tr_b16 %s, v%d offset:%d" % (v(FR + 8 * p + 4 * f + 2 * h, 2), 132 + p, f * 2048 + h * 256))
            for tau in range(2):
                for p in range(2):
                    for f in range(2):
                        if tau == 0:
                            a("s_waitcnt lgkmcnt(%d)" % (6 - 4 * p - 2 * f))
                        for ri in range(2):
                            d = v(DAT + 16 * p + 8 * ri + 4 * tau, 4)
                            a("%s %s, %s, %s, %s" % (M16, d, v(F32 + ((tau * 2 + ri) * 2 + f) * 4, 4), v(FR + 8 * p + 4 * f, 4), d if f else "0"))
            n1_ = " neg_lo:[1,0,0] neg_hi:[1,0,0]"

            for j in range(0, 8, 2):
                Er, Ei, Or, Oi = [v(DAT + 8 * k + j, 2) for k in range(4)]
                Ar, Ai, B1r, B1i, B2r, B2i = [v(fl + 8 * k + j, 2) for k in range(6)]
                k = (TM, TM + 8, T + 80, T + 88)[j >> 1]
                Pr, Pi, Qr, Qi = [v(k + 2 * i, 2) for i in range(4)]
                a("v_pk_mul_f32 %s, %s, %s" % (Pr, Ar, Er))
                a("v_pk_mul_f32 %s, %s, %s" % (Pi, Ar, Ei))
                a("v_pk_mul_f32 %s, %s, %s" % (Qr, B2r, Er))
                a("v_pk_mul_f32 %s, %s, %s" % (Qi, B2r, Ei))
                a("v_pk_fma_f32 %s, %s, %s, %s%s" % (Pr, Ai, Ei, Pr, n1_))
                a("v_pk_fma_f32 %s, %s, %s, %s" % (Pi, Ai, Er, Pi))
                a("v_pk_fma_f32 %s, %s, %s, %s%s" % (Qr, B2i, Ei, Qr, n1_))
                a("v_pk_fma_f32 %s, %s, %s, %s" % (Qi, B2i, Er, Qi))
                a("v_pk_fma_f32 %s, %s, %s, %s" % (Pr, B1r, Or, Pr))
                a("v_pk_fma_f32 %s, %s, %s, %s" % (Pi, B1r, Oi, Pi))
                a("v_pk_fma_f32 %s, %s, %s, %s" % (Qr, Ar, Or, Qr))
                a("v_pk_fma_f32 %s, %s, %s, %s" % (Qi, Ar, Oi, Qi))
                a("v_pk_fma_f32 %s, %s, %s, %s%s" % (Pr, B1i, Oi, Pr, n1_))
                a("v_pk_fma_f32 %s, %s, %s, %s" % (Pi, B1i, Or, Pi))
                a("v_pk_fma_f32 %s, %s, %s, %s%s" % (Qr, Ai, Oi, Qr, n1_))
                a("v_pk_fma_f32 %s, %s, %s, %s" % (Qi, Ai, Or, Qi))
                for e in range(2):
                    self.cvt(FR2 + j + e, v(k + e), "-" + v(k + 2 + e))
                    self.cvt(FR2 + 8 + j + e, v(k + 4 + e), "-" + v(k + 6 + e))
            for f in range(2):
                for p in range(2):
                    for tau in range(2):
                        for ri in range(2):
                            d = v(OUT + 16 * p + 8 * ri + 4 * tau, 4)
                            a("%s %s, %s, %s, %s" % (M16, d, v(FR2 + 8 * p + 4 * f, 4), v(F32 + ((tau * 2 + ri) * 2 + f) * 4, 4), d if f else "0"))
            for p in range(2):
                for tau in range(2):
                    o = PO + 8 * p + 4 * tau
                    for r in range(4):
                        self.cvt(o + r, v(OUT + 16 * p + 4 * tau + r), "-" + v(OUT + 16 * p + 8 + 4 * tau + r))
                    for x in self.mark(o, 14):
                        a(x)
                    a("ds_write_b128 v15, %s offset:%d" % (v(o, 4), tau * 16384 + p * 512))
            print("B2", a.flush(mf_scale=msc))

        lab = a.newlabel("NOSP")
        a("s_cmp_lg_u32 s71, 0\ns_cbranch_scc1 " + lab)
        a("v_mov_b32 v%d, 32" % TM)
        faddr(128, TM, TM + 1, TM + 2)
        fread(128)
        a("""v_lshlrev_b32 v{t}, 29, v1
        v_and_b32 v{t}, 0x80000000, v{t}
        v_and_b32 v{u}, 3, v1
        v_lshlrev_b32 v{u}, 4, v{u}
        v_xor_b32 v128, v132, v{u}
        v_and_b32 v{u}, 1, v1
        v_lshlrev_b32 v{u}, 6, v{u}
        v_xor_b32 v128, v128, v{u}
        v_subrev_u32 v128, s70, v128
        v_add_u32 v128, {sp}, v128
        v_add_u32 v5, {sp}, v2""".format(t=TM, u=TM + 1, sp=RAB + 4096))
        for j in range(8):
            a("v_xor_b32 v%d, v%d, v%d" % (FR + 8 + j, TM, FR + 8 + j))
        a("s_waitcnt lgkmcnt(0)")
        filt(FL2, DAT, False)
        a.label(lab)
        self.poll(lambda: x1load(False), lambda: sentinel(LD), VS, first_issued=True)
        if not self.opt.get("st4"):
            self.stamp()
        for i in range(4):
            a("ds_write_b128 v6, %s offset:%d" % (v(LD + 4 * i, 4), i * 128))
        a("s_waitcnt lgkmcnt(0)\ns_barrier")
        if self.opt.get("st4"):
            self.stamp()
        lab = a.newlabel("NOSP")
        a("s_cmp_lg_u32 s71, 0\ns_cbranch_scc1 " + lab)
        self.poll(lambda: x1load(True), lambda: sentinel(LD2), VS, first_issued=True)
        self.flip_marks()
        for i in range(4):
            a("ds_write_b128 v5, %s offset:%d" % (v(LD2 + 4 * i, 4), i * 1024))
        for f in range(2):
            for h in range(2):
                a("ds_read_b64_tr_b16 %s, v128 offset:%d" % (v(FR + 4 * f + 2 * h, 2), f * 2048 + h * 256))
        for f in range(2):
            a("s_waitcnt lgkmcnt(%d)" % (2 - 2 * f))
            for tau in range(2):
                for ri in range(2):
                    d = v(DAT + 8 * ri + 4 * tau, 4)
                    a("%s %s, %s, %s, %s" % (M16, d, v(F32 + ((tau * 2 + ri) * 2 + f) * 4, 4), v(FR + 4 * f, 4), d if f else "0"))
        for j in range(0, 8, 2):
            Xr, Xi, Ar, Ai = v(DAT + j, 2), v(DAT + 8 + j, 2), v(FL2 + j, 2), v(FL2 + 8 + j, 2)
            a("v_pk_mul_f32 %s, %s, %s" % (v(TM + j, 2), Ar, Xr))
            a("v_pk_mul_f32 %s, %s, %s" % (v(TM + 8 + j, 2), Ar, Xi))
            a("v_pk_fma_f32 %s, %s, %s, %s neg_lo:[1,0,0] neg_hi:[1,0,0]" % (v(TM + j, 2), Ai, Xi, v(TM + j, 2)))
            a("v_pk_fma_f32 %s, %s, %s, %s" % (v(TM + 8 + j, 2), Ai, Xr, v(TM + 8 + j, 2)))
        dpp = " row_ror:4 row_mask:0xf bank_mask:0xf"
        for k in range(2):
            for j in range(8):
                a("v_fmac_f32_dpp v%d, %sv%d, v%d%s" % (TM + j, "-" if k else "", DAT + 8 * k + j, FL2 + 16 + 8 * k + j, dpp))
                a("v_fmac_f32_dpp v%d, v%d, v%d%s" % (TM + 8 + j, DAT + 8 * (1 - k) + j, FL2 + 16 + 8 * k + j, dpp))
        for j in range(8):
            self.cvt(FR + j, v(TM + j), "-" + v(TM + 8 + j))
        for f in range(2):
            for tau in range(2):
                for ri in range(2):
                    d = v(DAT + 8 * ri + 4 * tau, 4)
                    a("%s %s, %s, %s, %s" % (M16, d, v(FR + 4 * f, 4), v(F32 + ((tau * 2 + ri) * 2 + f) * 4, 4), d if f else "0"))
        a("s_mov_b32 exec_hi, 0")
        for tau in range(2):
            o = FL2 + 4 * tau
            for r in range(4):
                self.cvt(o + r, v(DAT + 4 * tau + r), "-" + v(DAT + 8 + 4 * tau + r))
            for x in self.mark(o, 14):
                a(x)
            a("buffer_store_dwordx4 %s, v2, %s, s67 offen offset:%d sc1" % (v(o, 4), ws, tau * 512))
        a("s_mov_b32 exec_hi, -1")
        skip = a.newlabel("B2GO")
        a("s_branch " + skip)
        a.label(lab)
        self.flip_marks()
        a.label(skip)
        b2(FL, False)
        a("s_waitcnt lgkmcnt(0)")
        if self.opt.get("st4"):
            self.stamp()
        a("s_barrier")
        if not self.opt.get("st4"):
            self.stamp()
        hintx(4)
        ST = LD
        for i in range(4):
            a("ds_read_b128 %s, v%d offset:%d" % (v(ST + 4 * i, 4), 135 + i if i else 7, i * 1024))
        for i in range(4):
            a("s_waitcnt lgkmcnt(%d)" % (3 - i))
            a("buffer_store_dwordx4 %s, v%d, %s, s66 offen sc1" % (v(ST + 4 * i, 4), MB[i], ws))
        self.stamp()
        lab = a.newlabel("NONOTE")
        a("s_or_b32 s56, s60, s3\ns_cbranch_scc1 " + lab)
        a("v_mov_b32 v140, s6\nv_mov_b32 v141, s7\nv_lshlrev_b32 v142, 3, v12")
        a("buffer_store_dwordx2 v[140:141], v142, %s, 0 offen offset:%d sc1" % (ws, WS_NOTE))
        a.label(lab)
        a.label("WB_1")
        a("s_mov_b32 s34, 0")
        self.pad_stamps(9)

        a.label("B3_ENTRY")
        G16 = F16
        a("v_lshlrev_b32 v2, 4, v1\nv_add_u32 v131, %d, v2" % TB)
        tab(RA, 24, 4)
        tab(CS, TQ_CS, 8)
        tab(TWX, TQ_TW3, 4)
        a("""v_lshrrev_b32 v4, 5, v1
        v_and_b32 v5, 31, v1
        v_and_b32 v12, 15, v1
        v_lshrrev_b32 v13, 4, v1
        v_lshl_add_u32 v132, v4, 3, s3
        v_xor_b32 v8, s60, v132
        v_lshlrev_b32 v132, 15, v132
        v_lshl_add_u32 v132, v5, 4, v132
        v_lshl_add_u32 v132, v8, 9, v132
        v_xor_b32 v133, 0x82000, v132
        v_xor_b32 v134, 0x104000, v132
        v_xor_b32 v135, 0x186000, v132
        v_lshl_add_u32 v10, s3, 5, v5
        v_lshlrev_b32 v130, 13, v4
        v_add_u32 v130, %d, v130
        v_lshl_add_u32 v9, v10, 4, v130
        v_sub_u32 v10, 0, v10
        v_and_b32 v10, 0x1ff, v10
        v_lshl_add_u32 v10, v10, 4, v130
        s_lshr_b32 s63, s3, 2
        s_lshl_b32 s63, s63, 13
        s_and_b32 s64, s3, 3
        s_lshl2_add_u32 s63, s64, s63
        s_add_u32 s63, s63, %d
        v_lshlrev_b32 v8, 11, v13
        v_lshl_add_u32 v8, v12, 4, v8
        v_add_u32 v8, s63, v8
        s_lshl_b32 s63, s3, 11
        s_add_u32 s63, s63, %d
        v_bfe_u32 v5, v1, 2, 1
        v_lshlrev_b32 v5, 1, v5
        v_xor_b32 v5, v5, v13
        v_lshlrev_b32 v5, 3, v5
        v_lshl_add_u32 v5, v12, 5, v5
        v_add_u32 v5, s63, v5
        v_bfe_u32 v6, v1, 3, 1
        v_lshlrev_b32 v6, 4, v6
        v_xor_b32 v6, v6, v2
        v_add_u32 v6, s63, v6
        s_lshl_b32 s64, s3, 6
        s_add_u32 s64, s64, s60
        s_add_u32 s64, s64, s34
        s_lshl_b32 s64, s64, 11
        s_add_u32 s66, s64, 0x200000
        s_mov_b32 s56, 0.5
        s_mov_b32 s57, 0.5
        s_cmp_eq_u32 s3, 0
        s_cselect_b32 s68, -2, -1
        s_mov_b32 s69, s68
        s_lshr_b32 s63, s60, 5
        s_and_b32 s65, s60, 1
        s_lshl1_add_u32 s63, s63, s65
        s_bfe_u32 s65, s60, 0x40001
        s_lshl4_add_u32 s63, s63, s65
        v_and_b32 v11, 7, v1
        v_xor_b32 v11, s63, v11
        v_lshlrev_b32 v11, 4, v11
        v_lshl_add_u32 v11, v4, 10, v11
        s_mov_b32 s63, 0x%x
        s_mov_b32 s65, 0x%x""" % (ZB, ZB, WB, WS_X2S, WS_X2S + 4096))
        lab = a.newlabel("NOGO")
        a("s_cmp_eq_u32 s34, 0\ns_cbranch_scc1 " + lab)
        self.poll(lambda: a("buffer_load_dwordx2 v[140:141], off, %s, s62 sc1" % ws),
                  lambda: a("v_xor_b32 v%d, s6, v140\nv_bitop3_b32 v%d, v%d, v141, s7 bitop3:0xf6" % (VS, VS, VS)), VS)
        a.label(lab)
        a("s_mov_b32 s62, 0x%x" % WS_X1)
        RE, ZP, XS = T + 16, T + 48, LD2

        def radix_inv(x):
            for f in range(4):
                d = v(RE, 16)
                a("%s %s, %s, %s, %s" % (M32, d, v(RA + 4 * f, 4), v(x + 4 * f, 4), d if f else "0"))

        def average():
            a("s_mov_b32 exec_lo, 1\ns_mov_b32 exec_hi, 1")
            for j in (0, 2):
                a("v_pk_add_f32 %s, %s, %s" % (v(RE + j, 2), v(RE + j, 2), v(RE + 8 + j, 2)))
                a("v_pk_add_f32 %s, %s, %s neg_lo:[0,1] neg_hi:[0,1]" % (v(RE + 4 + j, 2), v(RE + 4 + j, 2), v(RE + 12 + j, 2)))
            for j in range(0, 8, 2):
                a("v_pk_mul_f32 %s, %s, s[56:57]" % (v(RE + j, 2), v(RE + j, 2)))

        def extra_tile():
            radix_inv(XS)
            average()
            for r in range(4):
                self.cvt(ZP + 8 + r, v(RE + r), v(RE + 4 + r))
            a("ds_write_b128 v130, %s offset:4096" % v(ZP + 8, 4))
            a("s_mov_b64 exec, -1")

        xsload = lambda: [a("buffer_load_dwordx4 %s, v11, %s, s%d offen offset:%d sc1" % (v(XS + 4 * f, 4), ws, 65 if f >> 1 else 63, (f & 1) * 2048)) for f in range(4)]
        x2load = lambda: [a("buffer_load_dwordx4 %s, v%d, %s, s62 offen sc1" % (v(XF + 4 * f, 4), 132 + f, ws)) for f in range(4)]
        lab = a.newlabel("NODR")
        a("s_and_b32 s15, s60, 7\ns_cmp_eq_u32 s15, 7\ns_cbranch_scc1 " + lab)
        a("s_waitcnt vmcnt(%d)" % self.opt.get("xdr", 0))
        self.diag_delay("d_x2")
        a.label(lab)
        x2load()
        lab = a.newlabel("NOX")
        a("s_cmp_lg_u32 s3, %d\ns_cbranch_scc1 %s" % (XW3, lab))
        xsload()
        a.label(lab)
        a("s_waitcnt lgkmcnt(0)")
        self.stamp()
        a.label("WC_0")
        self.poll(x2load, lambda: sentinel(XF), VS, first_issued=True)
        self.stamp()
        radix_inv(XF)
        lab = a.newlabel("NOAVG")
        a("s_nop 9")
        a("s_cmp_lg_u32 s3, 0\ns_cbranch_scc1 " + lab)
        average()
        a("s_mov_b64 exec, -1")
        a.label(lab)
        for r in range(4):
            self.cvt(ZP + r, v(RE + r), v(RE + 4 + r))
        a("ds_write_b128 v9, %s" % v(ZP, 4))
        for r in range(4):
            self.cvt(ZP + 4 + r, v(RE + 8 + r), "-" + v(RE + 12 + r))
        a("s_mov_b64 exec, s[68:69]")
        a("ds_write_b128 v10, %s" % v(ZP + 4, 4))
        a("s_mov_b64 exec, -1")
        lab = a.newlabel("NOX")
        a("s_cmp_lg_u32 s3, %d\ns_cbranch_scc1 %s" % (XW3, lab))
        self.poll(xsload, lambda: sentinel(XS), VS, first_issued=True)
        extra_tile()
        a.label(lab)
        a("s_waitcnt lgkmcnt(0)\ns_barrier")
        self.stamp()
        a.capture(ls & 4)
        ZF = T
        for tau in range(2):
            for j in range(2):
                a("ds_read2st64_b32 %s, v8 offset0:%d offset1:%d" % (v(ZF + 4 * tau + 2 * j, 2), tau + 4 * j, tau + 4 * j + 2))
        for tau in range(2):
            a("s_waitcnt lgkmcnt(%d)" % (2 - 2 * tau))
            a("%s %s, %s, %s, 0" % (M16, v(T1 + 4 * tau, 4), v(ZF + 4 * tau, 4), v(G16, 4)))
            a("%s %s, %s, %s, 0" % (M16, v(T1 + 8 + 4 * tau, 4), v(ZF + 4 * tau, 4), v(G16 + 4, 4)))
        O4 = T + 80
        twiddle(T1, [TW0, TWX], T + 64, True)
        for j in range(8):
            self.cvt(U + j, v(T1 + 2 * j), v(T1 + 2 * j + 1))
        stage_cs(U, U + 4, O4, True)
        fl = self.opt.get("outflag", "sc1")
        for ri in range(2):
            for tau in range(2):
                o = O4 + 8 * ri + 4 * tau
                d = T + 8 + 4 * ri + 2 * tau
                self.cvt(d, v(o), v(o + 1))
                self.cvt(d + 1, v(o + 2), v(o + 3))
                a("ds_write_b64 v5, %s offset:%d" % (v(d, 2), ri * 1024 + tau * 512))
            a("ds_read_b128 %s, v6 offset:%d" % (v(T1 + 16 + 4 * ri, 4), ri * 1024))
        for ri in range(2):
            a("s_waitcnt lgkmcnt(%d)" % (3 - 3 * ri))
            a("buffer_store_dwordx4 %s, v2, %s, s%d offen offset:1024 %s" % (v(T1 + 16 + 4 * ri, 4), s(self.rOUT, 4), 64 + 2 * ri, fl))
        print("B3", a.flush(mf_scale=msc))
        self.end()


TQ_CS, TQ_TW0, TQ_TW1, TQ_TW3, TQ_F32, TQ_OM = 0, 6, 8, 12, 16, 20


def make_table():
    import numpy as np
    from emu import bf16_rne
    l = np.arange(64)
    c, g = l & 15, l >> 4
    pk = lambda x, y: (bf16_rne(np.float32(x)) | (bf16_rne(np.float32(y)) << 16)).astype(np.uint32)
    fl = lambda x: np.float32(x).view(np.uint32)
    cs = lambda a_: (np.cos(2 * np.pi * a_), np.sin(2 * np.pi * a_))
    idx2 = [16 * (t >> 2) + 4 * g + (t & 3) for t in range(8)]
    R = []
    C = [[cs((c + 16 * tau) * idx2[t] / 32.0) for t in range(8)] for tau in range(2)]
    for k, sg in ((0, 1), (1, 1), (1, -1)):
        for tau in range(2):
            for j in range(4):
                R.append(pk(sg * C[tau][2 * j][k], sg * C[tau][2 * j + 1][k]))

    def tw(angs):
        for k in range(2):
            for x in angs:
                R.append(fl(cs(x)[k]))
    tw([c * idx2[r] / 512.0 for r in range(4)])
    tw([(c + 16) * idx2[r] / 512.0 for r in range(4)])
    H = [cs(c * idx2[x] / 16.0) for x in range(4)]
    R += [pk(H[0][0], H[1][0]), pk(H[2][0], H[3][0]), pk(H[0][1], H[1][1]), pk(H[2][1], H[3][1])]
    R += [pk(-H[0][1], -H[1][1]), pk(-H[2][1], -H[3][1]), pk(H[0][0], H[1][0]), pk(H[2][0], H[3][0])]
    tw([c * idx2[4 + r] / 512.0 for r in range(4)])
    sc = 2.0 ** -20
    R += [pk(sc * H[x][0], -sc * H[x][1]) for x in range(4)] + [pk(sc * H[x][1], sc * H[x][0]) for x in range(4)]
    R += [pk(C[0][t][0], C[0][t][1]) for t in range(8)] + [pk(-C[0][t][1], C[0][t][0]) for t in range(8)]
    for k in range(2):
        for t in range(8):
            R.append(fl(cs(idx2[t] / 64.0)[k]))
    R = np.array(R, np.uint32)
    assert R.shape == (96, 64)
    return np.ascontiguousarray(R.reshape(24, 4, 64).transpose(0, 2, 1)).reshape(-1)


def _sym_add(line, emuval=0):
    ins = Ins(line.rsplit(",", 1)[0] + ", %d" % emuval)
    ins.line = line
    return ins


NOTES = """;
; One persistent launch, 256 workgroups x 8 waves (one per CU), generated by my own script. Roles by workgroup id:
; Hand-offs: write-through (sc1) stores, sc1 polling loads. Payload validates itself: the two bf16 mantissa LSBs of every
; All polls are bounded. TABLE (after the code) holds the constant DFT / twiddle fragments.
"""


def generate(stamps=False, opt=None):
    g = G(stamps, opt)
    a = g.build()
    nv = a.maxreg("v") + 1
    ns = a.maxreg("s") + 1
    tb = make_table()
    tail = ".p2align 8\n.type TABLE,@object\nTABLE:\n"
    for i in range(0, len(tb), 8):
        tail += ".long " + ",".join("0x%08x" % x for x in tb[i:i + 8]) + "\n"
    tail += ".size TABLE, %d\n" % (4 * len(tb))
    render = lambda: wrap(a.render() + tail, 256, 512, LDS_SIZE, nv, ns, NOTES)
    if g.opt.get("align", 1):
        from align import align
        print("align:", align(a, render, g.opt.get("minrun", 6)))
    return a, render()


if __name__ == "__main__":
    stamps = "--stamps" in sys.argv
    opt = {}
    for x in sys.argv[1:]:
        if x.startswith("--") and "=" in x:
            k, val = x[2:].split("=", 1)
            opt[k] = int(val) if val.lstrip("-").isdigit() else val
    a, txt = generate(stamps, opt)
    out = [x for x in sys.argv[1:] if not x.startswith("--")]
    open(out[0] if out else "k.s", "w").write(txt)
    print("instructions:", sum(1 for k, _ in a.items if k == "i"), "vgpr", a.maxreg("v") + 1, "sgpr", a.maxreg("s") + 1)
```

```python
import numpy as np
from asmlib import Ins, f2u

U32 = np.uint32
M32 = 0xFFFFFFFF
LANE = np.arange(64, dtype=np.int64)
np.seterr(all="ignore")


def bf16_rne(f):
    u = f.astype(np.float32).view(U32)
    r = ((u.astype(np.uint64) + 0x7FFF + ((u >> 16) & 1)) >> 16).astype(U32) & 0xFFFF
    nan = np.isnan(f)
    r = np.where(nan, ((u >> 16) | 0x40) & 0xFFFF, r).astype(U32)
    return r


def unpack_bf16(regs):
    lo = (regs << 16).view(np.float32)
    hi = (regs & U32(0xFFFF0000)).view(np.float32)
    out = np.empty((regs.shape[0] * 2, 64), np.float32)
    out[0::2] = lo
    out[1::2] = hi
    return out.T


class Mem:
    def __init__(self):
        self.bufs = []
        self.next = 0x7F0000000000

    def alloc(self, name, arr):
        arr = np.ascontiguousarray(arr).view(np.uint8).reshape(-1)
        base = self.next
        self.next += (len(arr) + (4 << 20)) // (2 << 20) * (2 << 20) + (2 << 20)
        self.bufs.append((base, arr, name))
        return base

    def find(self, addr_lo, addr_hi):
        for base, arr, name in self.bufs:
            if base <= addr_lo and addr_hi <= base + len(arr):
                return base, arr, name
        raise RuntimeError("global access out of any allocation: %x..%x" % (addr_lo, addr_hi))

    def read(self, addrs, nbytes):
        base, arr, _ = self.find(int(addrs.min()), int(addrs.max()) + nbytes)
        idx = (addrs - base)[:, None] + np.arange(nbytes)[None, :]
        return arr[idx]

    def write(self, addrs, data):
        nbytes = data.shape[1]
        base, arr, name = self.find(int(addrs.min()), int(addrs.max()) + nbytes)
        assert not name.startswith("in"), "store into input " + name
        idx = (addrs - base)[:, None] + np.arange(nbytes)[None, :]
        arr[idx] = data


class Yield(Exception):
    pass


class Wave:
    def __init__(self, prog, wg, wid, kernarg, wgid):
        self.p = prog
        self.wg = wg
        self.v = np.random.randint(0, 2**32, size=(512, 64), dtype=np.uint64).astype(U32)
        self.s = [int(x) for x in np.random.randint(0, 2**32, size=128, dtype=np.uint64)]
        self.s[0] = kernarg & M32
        self.s[1] = kernarg >> 32
        self.s[2] = wgid
        self.s[126] = M32
        self.s[127] = M32
        self.v[0] = (LANE + wid * 64).astype(U32)
        self.scc = 0
        self.pc = 0
        self.done = False
        self.at_barrier = False
        self.vmq = []
        self.lgq = []
        self.pend = {}
        self.n_ins = 0
        self.wid = wid
        self._em = None
        self._emk = None

    def execmask(self):
        k = (self.s[126], self.s[127])
        if k != self._emk:
            e = self.s[126] | (self.s[127] << 32)
            self._em = ((e >> LANE.astype(object)) & 1).astype(bool) if e != (1 << 64) - 1 else None
            self._emk = k
        return self._em

    def commit(self, q, n):
        while len(q) > n:
            fn, regs, _ = q.pop(0)
            if fn:
                fn()
            for r in regs:
                self.pend[r] -= 1
                if self.pend[r] == 0:
                    del self.pend[r]

    def push(self, q, fn, regs, kind):
        for r in regs:
            self.pend[r] = self.pend.get(r, 0) + 1
        q.append((fn, regs, kind))


class WG:
    def __init__(self, lds_size):
        self.lds = np.random.randint(0, 256, size=lds_size, dtype=np.uint8)
        self.waves = []


class Prog:
    def __init__(self, items, mem, late=True, table=None):
        self.mem = mem
        self.late = late
        self.ins = []
        self.labels = {}
        for k, x in items:
            if k == "l":
                self.labels[x] = len(self.ins)
            elif k == "i":
                self.ins.append(x)
        self.fn = [self.compile(i) for i in self.ins]
        self.clock = 0
        code = np.zeros(1 << 16, np.uint8)
        if table is not None:
            code[0x8000:0x8000 + table.nbytes] = table.view(np.uint8)
        self.code_base = mem.alloc("in_code", code)

    def su(self, o):
        if o.kind == "s":
            lo = o.lo
            return lambda w: w.s[lo]
        if o.kind == "imm":
            val = o.val & M32
            return lambda w: val
        if o.kind == "fimm":
            val = f2u(o.val)
            return lambda w: val
        raise ValueError(o.txt)

    def su64(self, o):
        if o.kind == "s":
            lo = o.lo
            return lambda w: w.s[lo] | (w.s[lo + 1] << 32)
        val = o.val & ((1 << 64) - 1)
        return lambda w: val

    def vu(self, o, k=0):
        if o.kind == "v":
            lo = o.lo + k
            return lambda w: w.v[lo]
        if o.kind == "s":
            lo = o.lo + k
            return lambda w: np.full(64, w.s[lo], U32)
        g = self.su(o)
        arr = np.full(64, g(None), U32)
        return lambda w: arr

    def vf(self, o, k=0):
        g = self.vu(o, k)
        neg, ab = o.neg, o.abs
        if not neg and not ab:
            return lambda w: g(w).view(np.float32)

        def f(w):
            x = g(w).view(np.float32)
            if ab:
                x = np.abs(x)
            return -x if neg else x

        return f

    @staticmethod
    def setv(w, r, val):
        em = w.execmask()
        val = val.view(U32) if val.dtype == np.float32 else val.astype(U32)
        if em is None:
            w.v[r] = val
        else:
            w.v[r] = np.where(em, val, w.v[r])

    def compile(self, I):
        b, o, mods = I.base, I.ops, I.mods
        setv = self.setv
        mem = self.mem
        F = np.float32
        if b == "s_endpgm":
            def f(w):
                w.commit(w.vmq, 0)
                w.commit(w.lgq, 0)
                w.done = True
                raise Yield
            return f
        if b in ("s_nop", "s_setprio"):
            return lambda w: None
        if b == "s_sleep":
            def f(w):
                self.flush_stores(w)
                w.pc += 1
                raise Yield
            return f
        if b == "s_waitcnt":
            vm, lg = mods.get("vmcnt"), mods.get("lgkmcnt")
            def f(w):
                if vm is not None:
                    if vm > 0 and len(w.vmq) > vm:
                        kinds = {k == "store" for _, _, k in w.vmq}
                        assert len(kinds) == 1, "counted vmcnt with loads and stores mixed"
                    w.commit(w.vmq, vm)
                if lg is not None:
                    if lg > 0:
                        assert all(k != "smem" for _, _, k in w.lgq), "counted lgkmcnt with SMEM outstanding"
                    w.commit(w.lgq, lg)
            return f
        if b == "s_barrier":
            def f(w):
                assert all(k != "dsw" for _, _, k in w.lgq), "barrier with ds_write outstanding at %d" % w.pc
                w.at_barrier = True
                w.pc += 1
                raise Yield
            return f
        if b == "s_branch" or b.startswith("s_cbranch"):
            name = o[0].txt
            cond = {
                "s_branch": lambda w: True,
                "s_cbranch_scc0": lambda w: w.scc == 0,
                "s_cbranch_scc1": lambda w: w.scc == 1,
                "s_cbranch_vccz": lambda w: (w.s[106] | w.s[107]) == 0,
                "s_cbranch_vccnz": lambda w: (w.s[106] | w.s[107]) != 0,
                "s_cbranch_execz": lambda w: (w.s[126] | w.s[127]) == 0,
                "s_cbranch_execnz": lambda w: (w.s[126] | w.s[127]) != 0,
            }[b]
            def f(w):
                if cond(w):
                    t = self.labels[name]
                    back = t <= w.pc
                    w.pc = t - 1
                    if back and name.startswith("POLL"):
                        self.flush_stores(w)
                        w.pc += 1
                        raise Yield
            return f
        if b.startswith("s_load_dword"):
            n = {"s_load_dword": 1, "s_load_dwordx2": 2, "s_load_dwordx4": 4, "s_load_dwordx8": 8, "s_load_dwordx16": 16}[b]
            base, off, d = self.su64(o[1]), self.su(o[2]), o[0].lo
            regs = list(I.w)
            def f(w):
                data = mem.read(np.array([base(w) + off(w)], np.int64), 4 * n)[0].view(U32)
                def c():
                    for i in range(n):
                        w.s[d + i] = int(data[i])
                w.push(w.lgq, c, regs, "smem")
            return f
        if b in ("s_memrealtime", "s_memtime"):
            d = o[0].lo
            regs = list(I.w)
            def f(w):
                self.clock += 1
                t = self.clock
                def c():
                    w.s[d] = t
                    w.s[d + 1] = 0
                w.push(w.lgq, c, regs, "smem")
            return f
        if b == "s_getpc_b64":
            d = o[0].lo
            def f(w):
                w.s[d] = self.code_base & M32
                w.s[d + 1] = self.code_base >> 32
            return f
        if b.startswith("s_cmp_") or b.startswith("s_bitcmp"):
            if b.endswith("u64"):
                a, c = self.su64(o[0]), self.su64(o[1])
            else:
                a, c = self.su(o[0]), self.su(o[1])
            sg = (lambda x: x - (1 << 32) if x >> 31 else x) if b.endswith("i32") else (lambda x: x)
            op = {"eq": lambda x, y: x == y, "lg": lambda x, y: x != y, "lt": lambda x, y: x < y, "le": lambda x, y: x <= y,
                  "gt": lambda x, y: x > y, "ge": lambda x, y: x >= y}.get(b.split("_")[2])
            if b == "s_bitcmp1_b32":
                op = lambda x, y: (x >> y) & 1 == 1
            if b == "s_bitcmp0_b32":
                op = lambda x, y: (x >> y) & 1 == 0
            def f(w):
                w.scc = int(op(sg(a(w)), sg(c(w))))
            return f
        if b in ("s_mov_b32", "s_movk_i32"):
            a, d = self.su(o[1]), o[0].lo
            def f(w):
                w.s[d] = a(w)
            return f
        if b == "s_mov_b64":
            a, d = self.su64(o[1]), o[0].lo
            def f(w):
                x = a(w)
                w.s[d] = x & M32
                w.s[d + 1] = x >> 32
            return f
        if b in ("s_and_saveexec_b64",):
            a, d = self.su64(o[1]), o[0].lo
            def f(w):
                e = w.s[126] | (w.s[127] << 32)
                x = a(w) & e
                w.s[d], w.s[d + 1] = e & M32, e >> 32
                w.s[126], w.s[127] = x & M32, x >> 32
                w.scc = int(x != 0)
            return f
        if b in ("s_and_b64", "s_or_b64", "s_xor_b64", "s_andn2_b64", "s_not_b64"):
            a = self.su64(o[1])
            c = self.su64(o[2]) if len(o) > 2 else None
            d = o[0].lo
            M64 = (1 << 64) - 1
            op = {"s_and_b64": lambda x, y: x & y, "s_or_b64": lambda x, y: x | y, "s_xor_b64": lambda x, y: x ^ y,
                  "s_andn2_b64": lambda x, y: x & ~y & M64, "s_not_b64": lambda x, y: ~x & M64}[b]
            def f(w):
                x = op(a(w), c(w) if c else 0)
                w.s[d], w.s[d + 1] = x & M32, x >> 32
                w.scc = int(x != 0)
            return f
        if b == "s_cselect_b32":
            a, c, d = self.su(o[1]), self.su(o[2]), o[0].lo
            def f(w):
                w.s[d] = a(w) if w.scc else c(w)
            return f
        if b == "s_cselect_b64":
            a, c, d = self.su64(o[1]), self.su64(o[2]), o[0].lo
            def f(w):
                x = a(w) if w.scc else c(w)
                w.s[d], w.s[d + 1] = x & M32, x >> 32
            return f
        if b == "s_atomic_add":
            d, base = o[0].lo, self.su64(o[1])
            def f(w):
                ad = np.array([base(w)], np.int64)
                old = mem.read(ad, 4).copy().view(U32)
                mem.write(ad, (old + U32(w.s[d])).view(np.uint8).reshape(1, 4))
                def c():
                    w.s[d] = int(old[0, 0])
                w.push(w.lgq, c, [("s", d)], "smem")
            return f
        if b == "s_ff1_i32_b32":
            a, d = self.su(o[1]), o[0].lo
            def f(w):
                x = a(w)
                w.s[d] = ((x & -x).bit_length() - 1) & M32
            return f
        if b == "s_bitset0_b32":
            a, d = self.su(o[1]), o[0].lo
            def f(w):
                w.s[d] &= ~(1 << (a(w) & 31)) & M32
            return f
        if b == "buffer_atomic_add":
            d, srd = o[0].lo, o[2].lo
            def f(w):
                assert (w.s[126], w.s[127]) == (1, 0)
                ad = np.array([w.s[srd] | ((w.s[srd + 1] & 0xFFFF) << 32)], np.int64)
                old = mem.read(ad, 4).copy().view(U32)
                mem.write(ad, (old + w.v[d][0]).view(np.uint8).reshape(1, 4))
                def c():
                    w.v[d][0] = old[0, 0]
                w.push(w.vmq, c, [("v", d)], "load")
            return f
        if b == "s_addk_i32":
            d, k = o[0].lo, o[1].val
            def f(w):
                w.s[d] = (w.s[d] + k) & M32
            return f
        if b.startswith("s_") and len(o) == 3:
            a, c, d = self.su(o[1]), self.su(o[2]), o[0].lo
            def mk(fn, setscc):
                def f(w):
                    x, sc = fn(a(w), c(w), w.scc)
                    w.s[d] = x & M32
                    if setscc:
                        w.scc = int(sc)
                return f
            nz = lambda x: (x & M32, (x & M32) != 0)
            T = {
                "s_add_u32": (lambda x, y, c_: (x + y, (x + y) >> 32), 1),
                "s_add_i32": (lambda x, y, c_: (x + y, 0), 1),
                "s_addc_u32": (lambda x, y, c_: (x + y + c_, (x + y + c_) >> 32), 1),
                "s_sub_u32": (lambda x, y, c_: (x - y, x < y), 1),
                "s_subb_u32": (lambda x, y, c_: (x - y - c_, x < y + c_), 1),
                "s_sub_i32": (lambda x, y, c_: (x - y, 0), 1),
                "s_mul_i32": (lambda x, y, c_: (x * y, 0), 0),
                "s_and_b32": (lambda x, y, c_: nz(x & y), 1),
                "s_or_b32": (lambda x, y, c_: nz(x | y), 1),
                "s_xor_b32": (lambda x, y, c_: nz(x ^ y), 1),
                "s_andn2_b32": (lambda x, y, c_: nz(x & ~y), 1),
                "s_lshl_b32": (lambda x, y, c_: nz(x << (y & 31)), 1),
                "s_lshr_b32": (lambda x, y, c_: nz(x >> (y & 31)), 1),
                "s_bfe_u32": (lambda x, y, c_: nz((x >> (y & 31)) & ((1 << ((y >> 16) & 127)) - 1)), 1),
                "s_lshl1_add_u32": (lambda x, y, c_: ((x << 1) + y, 0), 1),
                "s_lshl2_add_u32": (lambda x, y, c_: ((x << 2) + y, 0), 1),
                "s_lshl3_add_u32": (lambda x, y, c_: ((x << 3) + y, 0), 1),
                "s_lshl4_add_u32": (lambda x, y, c_: ((x << 4) + y, 0), 1),
            }
            return mk(*T[b])
        if b.startswith("v_mfma"):
            big = "32x32" in b
            d, a, bb = o[0].lo, o[1].lo, o[2].lo
            c = o[3].lo if o[3].kind == "v" else None
            if big:
                n, nr = 32, 16
                rows = (8 * (np.arange(16)[:, None] >> 2) + 4 * (LANE[None, :] >> 5) + (np.arange(16)[:, None] & 3))
                cols = np.broadcast_to(LANE[None, :] & 31, (16, 64))
            else:
                n, nr = 16, 4
                rows = 4 * (LANE[None, :] >> 4) + np.arange(4)[:, None]
                cols = np.broadcast_to(LANE[None, :] & 15, (4, 64))
            g = 64 // n
            def f(w):
                if (w.s[126] | w.s[127]) == 0:
                    w.v[d:d + nr] = 0xDEADBEEF
                    return
                assert w.execmask() is None, "mfma with partial exec"
                A = unpack_bf16(w.v[a:a + 4]).reshape(g, n, 8).transpose(1, 0, 2).reshape(n, g * 8)
                B = unpack_bf16(w.v[bb:bb + 4]).reshape(g, n, 8).transpose(1, 0, 2).reshape(n, g * 8)
                D = (A @ B.T)[rows, cols]
                if c is not None:
                    D = D + w.v[c:c + nr].view(F)
                w.v[d:d + nr] = D.astype(F).view(U32)
            return f
        if b.startswith("v_cmp_"):
            ty = b.split("_")[3]
            if ty == "f32":
                a, c = self.vf(o[1]), self.vf(o[2])
            elif ty == "i32":
                a0, c0 = self.vu(o[1]), self.vu(o[2])
                a, c = (lambda w: a0(w).view(np.int32)), (lambda w: c0(w).view(np.int32))
            else:
                a, c = self.vu(o[1]), self.vu(o[2])
            op = {"eq": np.equal, "ne": np.not_equal, "lt": np.less, "le": np.less_equal, "gt": np.greater,
                  "ge": np.greater_equal}[b.split("_")[2]]
            d = o[0].lo
            def f(w):
                m = op(a(w), c(w))
                em = w.execmask()
                if em is not None:
                    m = m & em
                x = np.packbits(m, bitorder="little").view(U32)
                w.s[d], w.s[d + 1] = int(x[0]), int(x[1])
            return f
        if b == "v_readfirstlane_b32":
            a, d = self.vu(o[1]), o[0].lo
            def f(w):
                em = w.execmask()
                i = 0 if em is None or not em.any() else int(np.argmax(em))
                w.s[d] = int(a(w)[i])
            return f
        if b == "v_cndmask_b32":
            a, c, d = self.vu(o[1]), self.vu(o[2]), o[0].lo
            ml = o[3].lo if len(o) > 3 else 106
            def f(w):
                m = np.unpackbits(np.array([w.s[ml], w.s[ml + 1]], U32).view(np.uint8), bitorder="little").astype(bool)
                setv(w, d, np.where(m, c(w), a(w)))
            return f
        if b == "v_cvt_pk_bf16_f32":
            a, c, d = self.vf(o[1]), self.vf(o[2]), o[0].lo
            return lambda w: setv(w, d, bf16_rne(a(w)) | (bf16_rne(c(w)) << 16))
        if b == "v_pk_mov_b32":
            sel = mods.get("op_sel", [0, 0])
            a, c, d = self.vu(o[1], sel[0]), self.vu(o[2], sel[1]), o[0].lo
            def f(w):
                x, y = a(w).copy(), c(w).copy()
                setv(w, d, x)
                setv(w, d + 1, y)
            return f
        if b in ("v_pk_fma_f32", "v_pk_mul_f32", "v_pk_add_f32"):
            ns = 3 if b == "v_pk_fma_f32" else 2
            sl = mods.get("op_sel", [0] * ns)
            sh = mods.get("op_sel_hi", [1] * ns)
            nl = mods.get("neg_lo", [0] * ns)
            nh = mods.get("neg_hi", [0] * ns)
            def comp(i, k):
                return self.vf(o[1 + i], k if o[1 + i].kind in ("v", "s") else 0)
            lo = [comp(i, sl[i]) for i in range(ns)]
            hi = [comp(i, sh[i]) for i in range(ns)]
            d = o[0].lo
            def ev(w, g, ng):
                x = [(-g[i](w) if ng[i] else g[i](w)) for i in range(ns)]
                if ns == 3:
                    return (x[0].astype(np.float64) * x[1] + x[2]).astype(F)
                return x[0] * x[1] if b == "v_pk_mul_f32" else x[0] + x[1]
            def f(w):
                x, y = ev(w, lo, nl), ev(w, hi, nh)
                setv(w, d, x)
                setv(w, d + 1, y)
            return f
        if b in ("v_permlane16_swap_b32", "v_permlane32_swap_b32"):
            d, c = o[0].lo, o[1].lo
            h = 16 if "16" in b else 32
            def f(w):
                x, y = w.v[d].copy(), w.v[c].copy()
                for base in range(0, 64, 2 * h):
                    t = y[base:base + h].copy()
                    y[base:base + h] = x[base + h:base + 2 * h]
                    x[base + h:base + 2 * h] = t
                w.v[d], w.v[c] = x, y
            return f
        fl1 = {
            "v_exp_f32": lambda x: np.exp2(x), "v_rcp_f32": lambda x: F(1) / x,
            "v_sin_f32": lambda x: np.sin(2 * np.pi * x.astype(np.float64)).astype(F),
            "v_cos_f32": lambda x: np.cos(2 * np.pi * x.astype(np.float64)).astype(F),
            "v_fract_f32": lambda x: x - np.floor(x),
        }
        clamp = mods.get("clamp")
        cl = (lambda x: np.nan_to_num(np.clip(x, 0, 1), nan=0.0).astype(F)) if clamp else (lambda x: x)
        if b in fl1:
            a, d, fn = self.vf(o[1]), o[0].lo, fl1[b]
            if b in ("v_sin_f32", "v_cos_f32"):
                def f(w):
                    x = a(w)
                    em = w.execmask()
                    assert np.all(np.abs(x if em is None else x[em]) <= 256), "sin/cos range"
                    setv(w, d, cl(fn(x).astype(F)))
                return f
            return lambda w: setv(w, d, cl(fn(a(w)).astype(F)))
        if b == "v_cvt_f32_u32":
            a, d = self.vu(o[1]), o[0].lo
            return lambda w: setv(w, d, a(w).astype(F))
        if b == "v_cvt_f32_i32":
            a, d = self.vu(o[1]), o[0].lo
            return lambda w: setv(w, d, a(w).view(np.int32).astype(F))
        fl2 = {
            "v_add_f32": lambda x, y: x + y, "v_sub_f32": lambda x, y: x - y, "v_subrev_f32": lambda x, y: y - x,
            "v_mul_f32": lambda x, y: x * y, "v_max_f32": np.fmax, "v_min_f32": np.fmin,
        }
        if b in fl2:
            a, c, d, fn = self.vf(o[1]), self.vf(o[2]), o[0].lo, fl2[b]
            if I.dpp:
                k = mods["row_ror"]
                idx = (LANE & ~15) | ((LANE - k) & 15)
                return lambda w: setv(w, d, fn(a(w)[idx], c(w)))
            return lambda w: setv(w, d, cl(fn(a(w), c(w))))
        if b in ("v_fma_f32", "v_fmaak_f32", "v_fmamk_f32"):
            a, c, e, d = self.vf(o[1]), self.vf(o[2]), self.vf(o[3]), o[0].lo
            return lambda w: setv(w, d, (a(w).astype(np.float64) * c(w) + e(w)).astype(F))
        if b == "v_fmac_f32":
            a, c, d = self.vf(o[1]), self.vf(o[2]), o[0].lo
            idx = ((LANE & ~15) | ((LANE - mods["row_ror"]) & 15)) if I.dpp else LANE
            return lambda w: setv(w, d, (a(w)[idx].astype(np.float64) * c(w) + w.v[d].view(F)).astype(F))
        if b == "v_mov_b32":
            a, d = self.vu(o[1]), o[0].lo
            return lambda w: setv(w, d, a(w).copy())
        i2 = {
            "v_add_u32": lambda x, y: x + y, "v_sub_u32": lambda x, y: x - y, "v_subrev_u32": lambda x, y: y - x,
            "v_and_b32": lambda x, y: x & y, "v_or_b32": lambda x, y: x | y, "v_xor_b32": lambda x, y: x ^ y,
            "v_lshlrev_b32": lambda x, y: y << (x & 31), "v_lshrrev_b32": lambda x, y: y >> (x & 31),
            "v_mul_u32_u24": lambda x, y: (x & 0xFFFFFF) * (y & 0xFFFFFF), "v_mul_lo_u32": lambda x, y: x * y,
            "v_min_u32": np.minimum, "v_max_u32": np.maximum,
        }
        if b in i2:
            a, c, d, fn = self.vu(o[1]), self.vu(o[2]), o[0].lo, i2[b]
            return lambda w: setv(w, d, fn(a(w), c(w)))
        i3 = {
            "v_mad_u32_u24": lambda x, y, z: (x & 0xFFFFFF) * (y & 0xFFFFFF) + z,
            "v_lshl_add_u32": lambda x, y, z: (x << (y & 31)) + z, "v_add_lshl_u32": lambda x, y, z: (x + y) << (z & 31),
            "v_lshl_or_b32": lambda x, y, z: (x << (y & 31)) | z, "v_and_or_b32": lambda x, y, z: (x & y) | z,
            "v_or3_b32": lambda x, y, z: x | y | z, "v_add3_u32": lambda x, y, z: x + y + z,
            "v_bfe_u32": lambda x, y, z: (x >> (y & 31)) & ((U32(1) << (z & 31)) - U32(1)),
            "v_xad_u32": lambda x, y, z: (x ^ y) + z,
            "v_max3_u32": lambda x, y, z: np.maximum(np.maximum(x, y), z),
            "v_bfi_b32": lambda x, y, z: (x & y) | (~x & z),
        }
        if b in i3:
            a, c, e, d, fn = self.vu(o[1]), self.vu(o[2]), self.vu(o[3]), o[0].lo, i3[b]
            return lambda w: setv(w, d, fn(a(w), c(w), e(w)))
        if b == "v_lshl_add_u64":
            d, x, sh, c = o[0].lo, o[1].lo, o[2].val, self.su64(o[3])
            def f(w):
                r = ((w.v[x].astype(np.uint64) | (w.v[x + 1].astype(np.uint64) << np.uint64(32))) << np.uint64(sh)) + np.uint64(c(w))
                lo, hi = (r & np.uint64(M32)).astype(U32), (r >> np.uint64(32)).astype(U32)
                setv(w, d, lo)
                setv(w, d + 1, hi)
            return f
        if b == "v_bitop3_b32":
            a, c, e, d, tt = self.vu(o[1]), self.vu(o[2]), self.vu(o[3]), o[0].lo, mods["bitop3"]
            def f(w):
                x, y, z = a(w), c(w), e(w)
                r = np.zeros(64, U32)
                for i in range(8):
                    if (tt >> i) & 1:
                        r |= (x if i & 4 else ~x) & (y if i & 2 else ~y) & (z if i & 1 else ~z)
                setv(w, d, r)
            return f
        if b.startswith("ds_"):
            g = self.compile_ds(I)
            def f(w):
                if (w.s[126] | w.s[127]) == 0:
                    w.push(w.lgq, None, [], "dsr")
                else:
                    g(w)
            return f
        if b.startswith("buffer_") or b.startswith("global_"):
            return self.compile_vmem(I)
        raise ValueError("emu: unsupported " + I.line)

    def flush_stores(self, w):
        for i, (fn, regs, kind) in enumerate(w.vmq):
            if kind == "store" and fn:
                fn()
                w.vmq[i] = (None, regs, kind)

    def compile_ds(self, I):
        b, o, mods = I.base, I.ops, I.mods
        regs = list(I.w)

        def rd(w, addr, n):
            lds = w.wg.lds
            assert addr.min() >= 0 and addr.max() + n <= len(lds), "LDS read OOB %d" % addr.max()
            assert np.all(addr % min(n, 16) == 0), "LDS read misaligned: " + I.line
            return lds[addr[:, None] + np.arange(n)[None, :]]

        if b.startswith("ds_read"):
            d, a = o[0].lo, o[1].lo
            if b == "ds_read_b64_tr_b16":
                off = mods.get("offset", 0)
                def f(w):
                    assert w.execmask() is None
                    x = rd(w, w.v[a].astype(np.int64) + off, 8).copy().view(np.uint16).reshape(4, 4, 4, 4)
                    y = np.ascontiguousarray(x.transpose(0, 2, 3, 1)).reshape(64, 4)
                    y = y.view(U32)
                    def c():
                        w.v[d] = y[:, 0]
                        w.v[d + 1] = y[:, 1]
                    w.push(w.lgq, c, regs, "dsr")
                return f
            if b in ("ds_read_u16_d16_hi", "ds_read_u16"):
                off = mods.get("offset", 0)
                hi = b.endswith("hi")
                def f(w):
                    assert w.execmask() is None
                    x = rd(w, w.v[a].astype(np.int64) + off, 2).copy().view(np.uint16)[:, 0].astype(U32)
                    def c():
                        w.v[d] = ((w.v[d] & 0xFFFF) | (x << 16)) if hi else x
                    w.push(w.lgq, c, regs, "dsr")
                return f
            if b.startswith("ds_read2"):
                es = 8 if b.endswith("b64") else 4
                st = es * (64 if "st64" in b else 1)
                offs = [mods.get("offset0", 0) * st, mods.get("offset1", 0) * st]
            else:
                es = {"ds_read_b32": 4, "ds_read_b64": 8, "ds_read_b128": 16}[b]
                offs = [mods.get("offset", 0)]
            def f(w):
                em = w.execmask()
                ad = w.v[a].astype(np.int64)
                if em is not None:
                    ad = np.where(em, ad, 0)
                xs = [rd(w, ad + of, es).copy().view(U32) for of in offs]
                def c():
                    k = d
                    for x in xs:
                        for j in range(x.shape[1]):
                            w.v[k] = x[:, j] if em is None else np.where(em, x[:, j], w.v[k])
                            k += 1
                w.push(w.lgq, c, regs, "dsr")
            return f
        if b.startswith("ds_write"):
            a = o[0].lo
            if b.startswith("ds_write2"):
                es = 8 if b.endswith("b64") else 4
                st = es * (64 if "st64" in b else 1)
                parts = [(o[1].lo, mods.get("offset0", 0) * st), (o[2].lo, mods.get("offset1", 0) * st)]
            else:
                es = {"ds_write_b32": 4, "ds_write_b64": 8, "ds_write_b128": 16}[b]
                parts = [(o[1].lo, mods.get("offset", 0))]
            def f(w):
                em = w.execmask()
                lds = w.wg.lds
                for r, of in parts:
                    ad = w.v[a].astype(np.int64) + of
                    data = np.ascontiguousarray(w.v[r:r + es // 4].T).view(np.uint8)
                    if em is not None:
                        ad, data = ad[em], data[em]
                    if len(ad) == 0:
                        continue
                    assert ad.max() + es <= len(lds), "LDS write OOB"
                    assert np.all(ad % es == 0), "LDS write misaligned: " + I.line
                    lds[ad[:, None] + np.arange(es)[None, :]] = data
                w.push(w.lgq, None, [], "dsw")
            return f
        raise ValueError(I.line)

    def compile_vmem(self, I):
        b, o, mods = I.base, I.ops, I.mods
        mem = self.mem
        isbuf = b.startswith("buffer_")
        load = "load" in b
        lds = getattr(I, "ldsdma", False)
        nb = 16 if b.endswith("x4") else 8 if b.endswith("x2") else 2 if "short" in b else 4
        off = mods.get("offset", 0)
        regs = list(I.w)
        if isbuf:
            k = 0 if lds else 1
            va, srd, so = o[k], o[k + 1].lo, self.su(o[k + 2])
            data = None if lds else o[0].lo
            assert mods.get("offen") or va.kind == "off"
            def addr(w):
                base = w.s[srd] | ((w.s[srd + 1] & 0xFFFF) << 32)
                assert w.s[srd + 3] == 0x20000 and (w.s[srd + 1] >> 16) == 0, "bad SRD"
                vo = w.v[va.lo].astype(np.int64) if va.kind == "v" else np.zeros(64, np.int64)
                o_ = vo + so(w) + off
                return base + o_, (o_ + nb) <= w.s[srd + 2], o_ < w.s[srd + 2]
        else:
            if load:
                k = 0 if lds else 1
                va, sa = o[k], o[k + 1]
                data = None if lds else o[0].lo
            else:
                va, sa, data = o[0], o[2], o[1].lo
            def addr(w):
                if sa.kind == "off":
                    x = w.v[va.lo].astype(np.int64) | (w.v[va.lo + 1].astype(np.int64) << 32)
                else:
                    x = w.v[va.lo].astype(np.int64) + (w.s[sa.lo] | (w.s[sa.lo + 1] << 32))
                t = np.ones(64, bool)
                return x + off, t, t

        def f(w):
            em = w.execmask()
            act = np.ones(64, bool) if em is None else em
            assert act.any(), "memory instruction with EXEC=0: " + I.line
            ad, inr, part = addr(w)
            assert np.all(ad[act] % min(nb, 4) == 0), "misaligned global access: " + I.line
            if load:
                x = np.zeros((64, nb), np.uint8)
                m = act & inr
                if m.any():
                    x[m] = mem.read(ad[m], nb)
                pm = act & part & ~inr
                for i in np.nonzero(pm)[0]:
                    base = w.s[srd] | ((w.s[srd + 1] & 0xFFFF) << 32)
                    for j in range(0, nb, 4):
                        if ad[i] + j + 4 - base <= w.s[srd + 2]:
                            x[i, j:j + 4] = mem.read(np.array([ad[i] + j]), 4)[0]
                if lds:
                    la = (w.s[124] & 0x3FFFC) + off + LANE * nb
                    assert la[act].max() + nb <= len(w.wg.lds), "LDS-DMA OOB"
                    def c():
                        w.wg.lds[la[act][:, None] + np.arange(nb)[None, :]] = x[act]
                    if self.late:
                        w.push(w.vmq, c, [], "dma")
                    else:
                        c()
                        w.push(w.vmq, None, [], "dma")
                elif nb == 2:
                    y = x.view(np.uint16)[:, 0].astype(U32)
                    hi = b.endswith("hi")
                    def c():
                        val = (y << 16) if hi else y
                        w.v[data] = np.where(act, val, w.v[data])
                    w.push(w.vmq, c, regs, "load")
                else:
                    y = x.view(U32)
                    def c():
                        for j in range(nb // 4):
                            w.v[data + j] = np.where(act, y[:, j], w.v[data + j])
                    w.push(w.vmq, c, regs, "load")
            else:
                assert np.all(inr[act]), "store out of SRD range: " + I.line
                x = np.ascontiguousarray(w.v[data:data + max(nb // 4, 1)].T).view(np.uint8)[:, :nb]
                a2, x2 = ad[act].copy(), x[act].copy()
                c = lambda: mem.write(a2, x2)
                if self.late:
                    w.push(w.vmq, c, [], "store")
                else:
                    c()
                    w.push(w.vmq, None, [], "store")
        return f

    def run_wave(self, w):
        ins, fn = self.ins, self.fn
        try:
            while True:
                I = ins[w.pc]
                if w.pend and I.base != "s_waitcnt":
                    bad = (I.r | I.w) & w.pend.keys()
                    if bad:
                        raise RuntimeError("use of register with outstanding load %s at: %s" % (sorted(bad)[:4], I.line))
                fn[w.pc](w)
                w.pc += 1
                w.n_ins += 1
        except Yield:
            pass
        except Exception:
            print("EMU ERROR wg", w.s[2] if False else "", "wave", w.wid, "pc", w.pc, ins[w.pc].line)
            raise


def run(items, mem, kernarg, wgids, nwaves, lds_size, late=True, reverse=False, max_rounds=300, table=None):
    prog = Prog(items, mem, late, table)
    wgs = []
    for g in wgids:
        wg = WG(lds_size)
        wg.waves = [Wave(prog, wg, i, kernarg, g) for i in range(nwaves)]
        wg.id = g
        wgs.append(wg)
    live = list(wgs)
    rounds = 0
    while live:
        rounds += 1
        if rounds >= max_rounds:
            from collections import Counter
            inv = {v_: k for k, v_ in prog.labels.items()}
            c = Counter((w.wid, w.pc, w.at_barrier) for wg in live for w in wg.waves if not w.done)
            for k, n in sorted(c.items()):
                print(k, n, prog.ins[k[1]].line, [prog.ins[k[1] + d].line for d in (-12, -8)])
            raise RuntimeError("emu: deadlock?")
        for wg in (reversed(live) if reverse else live):
            while True:
                ws = [w for w in wg.waves if not w.done]
                if not ws:
                    break
                for w in (reversed(ws) if reverse else ws):
                    if not w.at_barrier:
                        prog.run_wave(w)
                ws = [w for w in wg.waves if not w.done]
                if ws and all(w.at_barrier for w in ws):
                    for w in ws:
                        w.at_barrier = False
                    continue
                break
        live = [wg for wg in live if any(not w.done for w in wg.waves)]
    return wgs
```

```python
import sys
from asmlib import *
from common import wrap

WS_EP = 0x0
WS_GO = 0x1000
WS_NOTE = 0x800
WS_RED = 0x10000
RED_STRIDE = 0x4800
WS_X2S = 0x60000
WS_PART = 0x80000
PLINE = 1152
WS_PQ = 0x200000
WS_X1 = 0x400000
WS_STAMP = 0x1000000
WS_SIZE = 0x10000000
LDS_SIZE = 160 * 1024
TAGC_LO, TAGC_HI = 0x1E3779B1, 0x05EBCA6B
POLL_LIMIT = 1 << 18
M16 = "v_mfma_f32_16x16x32_bf16"
M32 = "v_mfma_f32_32x32x16_bf16"
XB, ZB, WB, TB = 0, 32768, 65536, 131072
RAB = TB + 24576


class G:
    def __init__(self, stamps=False, opt=None):
        self.a = Asm()
        self.stamps = stamps
        self.opt = opt or {}
        self.nst = 0
        self.role = ""

    sW = 3
    sTL, sTH = 6, 7
    sCNT = 12
    pXA, pWQ, pWO, pXB, pWR, pWI, pOUT, pDBG, pWS = 16, 18, 20, 22, 24, 26, 28, 30, 32
    rWS, rOUT, rA, rB, rC = 36, 40, 44, 48, 52
    sST = 72
    LT = [16, 17, 0, 1]

    def stamp(self):
        if self.opt.get("jit"):
            a = self.a
            self.jn = getattr(self, "jn", 0) + 1
            lab, done = a.newlabel("JL"), a.newlabel("JD")
            a("s_memrealtime s[72:73]\ns_waitcnt lgkmcnt(0)\ns_lshr_b32 s72, s72, 9\ns_lshl3_add_u32 s73, s2, s3\ns_add_u32 s73, s73, %d\ns_xor_b32 s72, s72, s73\ns_mul_i32 s72, s72, 0x9e3779b1\ns_lshr_b32 s72, s72, 26" % (self.jn * 977))
            a("s_cmp_lt_u32 s72, %d\ns_cbranch_scc1 %s\ns_sub_u32 s72, s72, %d" % (64 - self.opt["jit"], done, 63 - self.opt["jit"]))
            a.label(lab)
            a("s_sleep 40\ns_sub_u32 s72, s72, 1\ns_cmp_lg_u32 s72, 0\ns_cbranch_scc1 " + lab)
            a.label(done)
            return
        pr = self.opt.get("probe")
        if pr:
            if "%s:%d" % (self.role, self.nst) in pr.split("+"):
                self.a("s_memrealtime s[76:77]\ns_waitcnt lgkmcnt(0)")
            self.nst += 1
            return
        if not self.stamps:
            return
        k = self.nst
        assert k < 15
        self.a("%s %s\ns_waitcnt lgkmcnt(0)" % ("s_memtime" if self.opt.get("cyc") else "s_memrealtime", s(self.sST + 2 * k, 2)))
        self.nst += 1

    def end(self):
        a = self.a
        if self.opt.get("skew") is not None and self.role == "K":
            ws = s(self.rWS, 4)
            l1, l2 = a.newlabel("SK"), a.newlabel("SK")
            a("s_waitcnt lgkmcnt(0)\ns_cmp_lg_u32 s5, 0\ns_cbranch_scc1 %s\ns_cmp_lg_u32 s3, 4\ns_cbranch_scc1 %s\ns_cmp_lg_u32 s4, 0\ns_cbranch_scc1 %s" % (l2, l2, l1))
            a("v_mov_b32 v6, s72\nv_mov_b32 v7, s6\nbuffer_store_dwordx2 v[6:7], off, %s, 0 offset:0x400 sc1" % ws)
            a.label(l1)
            a("s_cmp_lg_u32 s4, %d\ns_cbranch_scc1 %s" % (self.opt["skew"], l2))
            self.poll(lambda: a("buffer_load_dwordx2 v[6:7], off, %s, 0 offset:0x400 sc1" % ws), lambda: a("v_xor_b32 v12, s6, v7"), 12)
            a("v_readfirstlane_b32 s76, v6\ns_sub_u32 s76, s72, s76\ns_add_u32 s76, s76, 200\ns_lshl_b32 s76, s76, 1\ns_add_u32 s76, s76, s72")
            a.label(l2)
        if self.opt.get("probe"):
            self.stamp()
            lab = a.newlabel("SPIN")
            a("s_waitcnt lgkmcnt(0)\ns_sub_u32 s76, s76, s72\ns_lshl_b32 s76, s76, 2\ns_add_u32 s76, s76, 2000\ns_min_u32 s76, s76, 20000")
            a.label(lab)
            a("s_memrealtime s[74:75]\ns_waitcnt lgkmcnt(0)\ns_sub_u32 s74, s74, s72\ns_cmp_lt_u32 s74, s76\ns_cbranch_scc1 %s" % lab)
        if self.stamps:
            self.stamp()
            a("s_waitcnt vmcnt(0)")
            self.stamp()
            a("s_mov_b64 exec, 1")
            a("s_lshl3_add_u32 s56, s5, s4\ns_lshl_b32 s56, s56, 3\ns_add_u32 s56, s56, s3\ns_lshl_b32 s56, s56, 6\ns_add_u32 s56, s56, 0x%x" % WS_STAMP)
            a("v_mov_b32 v2, 0")
            for k in range(self.nst):
                a("v_mov_b32 v3, s%d\nbuffer_store_dword v3, v2, %s, s56 offen offset:%d" % (self.sST + 2 * k, s(self.rWS, 4), 4 * k))
            a("v_mov_b32 v3, %d\nbuffer_store_dword v3, v2, %s, s56 offen offset:60" % (self.nst, s(self.rWS, 4)))
            if self.opt.get("xcc"):
                a("s_getreg_b32 s57, hwreg(HW_REG_XCC_ID)\ns_getreg_b32 s58, hwreg(HW_REG_HW_ID)\ns_lshl_b32 s57, s57, 24\ns_and_b32 s58, s58, 0xffffff\ns_or_b32 s57, s57, s58\nv_mov_b32 v3, s57\nbuffer_store_dword v3, v2, %s, s56 offen offset:56" % s(self.rWS, 4))
        a("s_endpgm")

    def pad_stamps(self, n):
        while (self.stamps or self.opt.get("probe")) and self.nst < n:
            if self.stamps:
                self.a("s_mov_b32 s%d, s%d" % (self.sST + 2 * self.nst, self.sST + 2 * self.nst - 2))
            self.nst += 1

    def srd(self, r, p, size):
        self.a("s_mov_b32 s%d, s%d\ns_mov_b32 s%d, s%d\ns_mov_b32 s%d, 0x%x\ns_mov_b32 s%d, 0x20000" % (r, p, r + 1, p + 1, r + 2, size, r + 3))

    def tags(self):
        t = self.LT
        self.a("""s_add_u32 s8, s8, 0x%x
        s_addc_u32 s9, s9, 0x%x
        s_and_b32 s6, s8, 0xbfffbfff
        s_and_b32 s7, s9, 0xbfffbfff
        s_bitcmp1_b32 s8, 0
        s_cselect_b32 s%d, 0x10001, 0
        s_xor_b32 s%d, s%d, 0x10000
        s_xor_b32 s%d, s%d, 0x10001
        s_xor_b32 s%d, s%d, 1""" % (TAGC_LO, TAGC_HI, t[0], t[1], t[0], t[2], t[0], t[3], t[0]))

    def flip_marks(self):
        for r in self.LT:
            self.a("s_xor_b32 s%d, s%d, 1" % (r, r))

    def mark(self, base, vmask):
        return ["v_and_or_b32 v%d, v%d, v%d, s%d" % (base + e, base + e, vmask, self.LT[e]) for e in range(4)]

    def markcheck(self, base, n, vacc):
        a = self.a
        X = [self.LT[0], self.LT[3], self.LT[2], self.LT[1]]
        for i in range(0, n, 2):
            a("v_xor_b32 v%d, s%d, v%d" % (base + i, X[i & 3], base + i))
            a("v_xor_b32 v%d, s%d, v%d" % (base + i + 1, X[(i + 1) & 3], base + i + 1))
            if i:
                a("v_bitop3_b32 v%d, v%d, v%d, v%d bitop3:0xfd" % (vacc, vacc, base + i, base + i + 1))
            else:
                a("v_bitop3_b32 v%d, v%d, v%d, v%d bitop3:0xfd" % (vacc, base, base, base + 1))
        a("v_and_b32 v%d, 0x10001, v%d" % (vacc, vacc))

    def tagcheck(self, pieces, vacc):
        a = self.a
        for i, p in enumerate(pieces):
            if i == 0:
                a("v_xor_b32 v%d, s%d, v%d" % (vacc, self.sTL, p + 1))
            else:
                a("v_bitop3_b32 v%d, v%d, v%d, s%d bitop3:0xf6" % (vacc, vacc, p + 1, self.sTL))
            a("v_bitop3_b32 v%d, v%d, v%d, s%d bitop3:0xf6" % (vacc, vacc, p + 3, self.sTH))

    def poll(self, issue, check, vacc, first_issued=False):
        a = self.a
        top, done, chk = a.newlabel("POLL"), a.newlabel("DONE"), a.newlabel("CHK")
        a("s_mov_b32 s%d, 0x%x" % (self.sCNT, POLL_LIMIT))
        if first_issued:
            a("s_branch " + chk)
        a.label(top)
        issue()
        if first_issued:
            a.label(chk)
        a("s_waitcnt vmcnt(0)")
        check()
        a("v_cmp_ne_u32 vcc, 0, v%d" % vacc)
        a("s_cbranch_vccz " + done)
        a("s_sleep %d" % self.opt.get("sl", 2))
        a("s_sub_u32 s%d, s%d, 1" % (self.sCNT, self.sCNT))
        a("s_cbranch_scc0 " + top)
        a.label(done)

    def diag_delay(self, name):
        n = self.opt.get(name, 0)
        if n:
            self.a("s_sleep %d" % n)

    def cvt(self, d, x, y):
        self.a("v_cvt_pk_bf16_f32 v%d, %s, %s" % (d, x, y))

    def build(self):
        a = self.a
        a.label("CODE0")
        if self.opt.get("probe"):
            a("s_memrealtime s[72:73]\ns_memrealtime s[76:77]")
            self.nst = 1
        if self.stamps:
            a("%s %s" % ("s_memtime" if self.opt.get("cyc") else "s_memrealtime", s(self.sST, 2)))
            self.nst = 1
        a("""v_lshrrev_b32 v2, 6, v0
        v_and_b32 v1, 63, v0
        s_and_b32 s4, s2, 7
        v_readfirstlane_b32 s3, v2
        s_lshr_b32 s5, s2, 3
        s_cmp_ge_u32 s5, 32
        s_cbranch_scc1 EXIT
        ROT""".replace("ROT", "s_cmp_lt_u32 s5, 24\ns_cbranch_scc1 NOT_B" if self.opt.get("rot", 24) == 0 else "s_sub_u32 s5, s5, 8\ns_cbranch_scc0 NOT_B"))
        n0 = self.nst
        self.b_head()
        a.label("EXIT")
        a("s_endpgm")
        a.label("NOT_B")
        a("s_cmp_ge_u32 s3, 4\ns_cbranch_scc1 LOADER")
        pc = a.newlabel("PC")
        if self.opt.get("pfs", 1):
            a("s_cmp_lg_u32 s3, 0\ns_cbranch_scc1 COMPUTE\ns_getpc_b64 s[56:57]")
            a.label(pc)
            a.items.append(("i", _sym_add("s_mov_b32 s58, ROLE_B-4-%s" % pc)))
            a("v_and_b32 v3, 7, v1\nv_mul_u32_u24 v3, 24, v3\nv_add_lshl_u32 v3, v3, s5, 7\nv_min_u32 v4, s58, v3\nv_mov_b32 v5, 0\nv_lshl_add_u64 v[4:5], v[4:5], 0, s[56:57]\nglobal_load_dword v0, v[4:5], off\ns_branch COMPUTE")
        else:
            a("s_cmp_eq_u32 s3, 3\ns_cbranch_scc1 COMPUTE\ns_getpc_b64 s[56:57]")
            a.label(pc)
            a.items.append(("i", _sym_add("s_mov_b32 s58, ROLE_B-4-%s" % pc)))
            a("v_lshlrev_b32 v3, 7, v0\nv_min_u32 v4, s58, v3\nv_mov_b32 v5, 0\nv_lshl_add_u64 v[4:5], v[4:5], 0, s[56:57]\nglobal_load_dword v0, v[4:5], off\ns_branch COMPUTE")
        a.label("LOADER")
        self.loader()
        self.nst = n0
        self.compute()
        self.nst = n0
        self.role_b()
        a.label("CODE_END")
        prot = [0, 1, 3, 4, 5, 60, 61, 70] + list(range(72, 102))
        if self.opt.get("walk", 0) & 1:
            a.walkify("WA_0", "WA_1", 3, "WRET_A", prot, "WKA")
            a.walkify("WL_0", "WL_1", 1, "WRET_A", prot, "WKL")
            a.walkify("WQ_0", "WQ_1", 2, "WRET_A", prot, "WKQ")
            a.walkify("WR_0", "WR_1", 1, "WRET_A", prot, "WKR")
        if self.opt.get("walk", 0) & 2:
            a.walkify("WB_0", "WB_1", 6, "WRET_B", prot, "WKB")
            a.walkify("WC_0", "WC_1", 1, "WRET_C", prot, "WKC")
        bad = a.check_branches()
        assert not bad, bad
        return a

    KARG = "s_load_dwordx16 s[16:31], s[0:1], 0\ns_load_dwordx2 s[32:33], s[0:1], 64"

    def b_head(self):
        a = self.a
        lab = a.newlabel("PC")
        a("s_load_dwordx2 s[44:45], s[0:1], 24")
        a("s_getpc_b64 s[56:57]")
        a.label(lab)
        a.items.append(("i", _sym_add("s_add_u32 s58, s56, TABLE-%s" % lab, 0x8000)))
        a("""s_addc_u32 s59, s57, 0
        v_lshlrev_b32 v2, 4, v1
        s_mul_i32 s66, s3, 3072
        v_add_u32 v6, s66, v2
        v_mov_b32 v7, 0
        v_lshl_add_u64 v[6:7], v[6:7], 0, s[58:59]
        s_add_u32 m0, s66, %d
        s_and_b32 s5, s5, 31""" % TB)
        for q in range(3):
            a("global_load_lds_dwordx4 v[6:7], off offset:%d" % (q * 1024))
        a("""s_and_b32 s61, s5, 7
        s_lshl3_add_u32 s60, s4, s61
        s_lshl_b32 s62, s3, 7
        s_add_u32 s62, s62, s60
        s_lshl_b32 s62, s62, 10
        s_add_u32 s63, s62, 0x%x
        s_add_u32 s64, s62, 0x%x
        s_add_u32 s65, s62, 0x%x
        s_lshl_b32 s70, s3, 12
        s_mov_b32 m0, s70
        s_mov_b32 s46, 0x200000
        s_mov_b32 s47, 0x20000
        s_waitcnt lgkmcnt(0)""" % (0x100000 - 1024, 0x10000 - 2048, 0x110000 - 3072))
        for q in range(4):
            a("buffer_load_dwordx4 v2, %s, s%d offen offset:%d nt lds" % (s(self.rA, 4), 62 + q, q * 1024))
        a("s_cmp_ge_u32 s3, %d\ns_cbranch_scc1 ROLE_B" % (1 if self.opt.get("pfb", 1) else 2))
        a.items.append(("i", _sym_add("s_add_u32 s56, s56, ROLE_B-%s" % lab)))
        a("s_addc_u32 s57, s57, 0")
        a.items.append(("i", _sym_add("s_mov_b32 s58, CODE_END-4-ROLE_B")))
        if self.opt.get("pfb", 1):
            a("v_and_b32 v3, 15, v1\nv_lshlrev_b32 v3, 3, v3\nv_add_lshl_u32 v3, v3, s61, 7")
        else:
            a("v_lshlrev_b32 v3, 7, v0")
        a("v_min_u32 v4, s58, v3\nv_mov_b32 v5, 0\nv_lshl_add_u64 v[4:5], v[4:5], 0, s[56:57]\nglobal_load_dword v0, v[4:5], off")
        a("s_branch ROLE_B")

    def loader(self):
        a = self.a
        ws = s(self.rWS, 4)
        self.role = "L"
        vX, vW = 4, 8
        a("""s_load_dwordx4 s[44:47], s[0:1], 0
        s_lshr_b32 s60, s4, 1
        s_and_b32 s63, s5, 3
        s_lshl2_add_u32 s60, s60, s63
        s_bfe_u32 s65, s5, 0x20002
        s_lshr_b32 s66, s5, 4
        s_lshl_b32 s70, s65, s66
        s_add_u32 s70, s70, s63
        s_and_b32 s70, s70, 3
        s_and_b32 s71, s70, 1
        XROT
        s_xor_b32 s70, s70, s13
        s_xor_b32 s71, s71, s13
        s_sub_u32 s58, s3, 4
        s_lshl2_add_u32 s63, s60, s58
        s_lshl_b32 s63, s63, 15
        v_lshrrev_b32 v2, 3, v1
        v_lshrrev_b32 v3, 4, v1
        v_and_b32 v12, 7, v1
        v_xor_b32 v12, v12, v3
        v_lshl_add_u32 v12, v12, 4, s63
        v_lshl_add_u32 v4, v2, 10, v12
        v_xor_b32 v5, 64, v4
        v_add_u32 v5, 0x1c00, v5
        v_add_u32 v6, 0x3800, v4
        v_add_u32 v7, 0x3800, v5
        s_lshl_b32 s59, s58, 12""".replace("XROT", {0: "s_mov_b32 s13, 0",
            1: "s_lshl_b32 s13, s4, 2\ns_xor_b32 s13, s13, s4\ns_and_b32 s13, s13, 6",
            2: "s_lshl_b32 s13, s4, 2\ns_xor_b32 s13, s13, s4\ns_and_b32 s13, s13, 4",
            3: "s_lshl_b32 s13, s4, 1\ns_lshr_b32 s14, s4, 1\ns_xor_b32 s13, s13, s14\ns_and_b32 s13, s13, 3",
            4: "s_lshl_b32 s13, s66, 1"}[self.opt.get("xrot", 2)]))

        def kchunk(c):
            base = 0
            for r in [int(x) for x in str(self.opt.get("rounds", 44))]:
                if c < base + r:
                    break
                base += r
            src = {4: "s70", 2: "s71", 1: "s13"}[r]
            assert base % r == 0
            a("s_xor_b32 s62, %s, %d" % (src, c))

        def issue_x(c):
            a("s_add_u32 m0, s59, %d" % ((c % 5) * 32768))
            kchunk(c)
            a("s_lshl_b32 s63, s62, 7")
            if c == 0:
                a("s_waitcnt lgkmcnt(0)\ns_mov_b64 s[48:49], s[46:47]\ns_mov_b32 s46, 0x200000\ns_mov_b32 s47, 0x20000")
            for j in range(4):
                a("buffer_load_dwordx4 v%d, %s, s63 offen offset:%d lds" % (vX + j, s(self.rA, 4), j * 1024))

        def issue_w(c):
            a("s_add_u32 m0, s59, %d" % ((c % 5) * 32768 + 16384))
            a("s_mul_i32 s64, s62, 0x30000")
            for j in range(4):
                a("buffer_load_dwordx4 v%d, %s, s64 offen offset:%d lds" % (vW + j, s(self.rB, 4), j * 1024))

        def issue(c):
            issue_x(c)
            issue_w(c)

        issue_x(0)
        a(self.KARG)
        a("""s_and_b32 s64, s4, 1
        s_lshl2_add_u32 s61, s64, s65
        s_lshl1_add_u32 s66, s64, s65
        s_lshl_b32 s63, s61, 7
        s_add_u32 s63, s63, 1024
        s_lshl_b32 s64, s66, 8
        s_cmp_ge_u32 s5, 16
        s_cselect_b32 s63, s64, s63
        s_cselect_b32 s64, 7, 10
        v_bfe_u32 v12, v1, 2, 2
        v_xor_b32 v12, v12, v3
        v_lshrrev_b32 v13, 1, v12
        v_lshlrev_b32 v13, s64, v13
        v_and_b32 v14, 1, v12
        v_lshl_add_u32 v13, v14, 6, v13
        v_and_b32 v14, 3, v1
        v_lshl_add_u32 v13, v14, 4, v13
        v_mul_u32_u24 v15, 0xc00, v3
        s_mul_i32 s65, s58, 0xc000
        s_add_u32 s65, s65, s63
        v_add3_u32 v8, v13, v15, s65
        v_add_u32 v9, 0x2c00, v8
        v_add_u32 v10, 0x5800, v8
        v_add_u32 v11, 0x8400, v8
        s_mov_b32 s50, 0x180000
        s_mov_b32 s51, 0x20000""")
        issue_w(0)
        H = ["x0", "w0"]
        if self.opt.get("w4e"):
            plan = [["w4", "x1"], ["w1", "x2", "w2"], ["x3", "w3"], ["x4", "x5"], ["w5", "x6"], ["w6", "x7"], ["w7"]]
            if self.opt["w4e"] == 2:
                plan = [["w4", "x1"], ["w1", "x2", "w2"], ["x3", "w3", "x4"], [], ["x5", "w5"], ["x6", "w6"], ["x7", "w7"]]
        else:
            plan = [["x1", "w1"]] + [["x%d" % k, "w%d" % k] for k in range(2, 8)]

        def half(h):
            c = int(h[1])
            if h[0] == "x":
                issue_x(c)
            else:
                if H[-1] != "x%d" % c:
                    kchunk(c)
                issue_w(c)
            H.append(h)

        half(plan[0][0])
        a("s_waitcnt lgkmcnt(0)")
        a("s_load_dwordx2 s[8:9], s[32:33], %d" % WS_EP)
        half(plan[0][1])
        self.srd(self.rWS, self.pWS, WS_SIZE)
        self.srd(self.rOUT, self.pOUT, 2048 * 2048)
        a("s_waitcnt lgkmcnt(0)")
        self.tags()
        groups = list(range(8))
        waitc = lambda c: a("s_waitcnt vmcnt(%d)\ns_barrier" % (4 * (len(H) - 1 - max(H.index("x%d" % c), H.index("w%d" % c))) + 8 * (len(groups) - 8)))
        for c in range(6):
            waitc(c)
            if c == 0:
                self.stamp()
            for h in plan[c + 1]:
                half(h)
        c = 6
        cq, gq = c, list(groups)
        a("s_cmp_ge_u32 s5, 16\ns_cbranch_scc1 QLOADER")
        n0 = self.nst
        WSLOT = [3, 4, 0, 2]
        self.srd(self.rC, self.pWO, 512 * 1024)
        a("""s_and_b32 s68, s5, 3
        s_lshl_b32 s69, s58, 13
        v_lshlrev_b32 v16, 6, v12
        v_lshl_add_u32 v16, v14, 4, v16
        v_lshl_add_u32 v16, v3, 10, v16
        s_lshl_b32 s65, s58, 15
        OCCALC
        s_lshl_b32 s66, s14, 8
        s_add_u32 s65, s65, s66
        v_add_u32 v16, s65, v16
        v_add_u32 v17, 0xc00, v16
        v_add_u32 v18, 0x1800, v16
        v_add_u32 v19, 0x2400, v16""".replace("OCCALC", "s_and_b32 s14, s4, 1\ns_lshr_b32 s66, s5, 3\ns_lshl1_add_u32 s14, s14, s66" if self.opt.get("omap") else "s_lshr_b32 s14, s5, 2"))

        def issue_wo(n, sl=None):
            slot = (WSLOT[n] if sl is None else sl) * 32768
            a("s_add_u32 m0, s69, %d" % slot)
            a("s_xor_b32 s63, s68, %d\ns_lshl_b32 s63, s63, 17" % n)
            for j in range(4):
                a("buffer_load_dwordx4 v%d, %s, s63 offen offset:%d lds" % (16 + j, s(self.rC, 4), j * 1024))
            a("s_add_u32 m0, s69, %d" % (slot + 4096))
            a("s_add_u32 s63, s63, 0x4000")
            for j in range(4):
                a("buffer_load_dwordx4 v%d, %s, s63 offen offset:%d lds" % (16 + j, s(self.rC, 4), j * 1024))

        def read_wo(n, sl=None):
            ad, off = {4: (0, 0), 0: (14, 0), 1: (14, 32768), 3: (15, 32768), 2: (15, 0)}[WSLOT[n] if sl is None else sl]
            for h in range(8):
                r = 128 + 32 * n + 4 * h
                a("ds_read_b64_tr_b16 %s, v%d offset:%d" % (v(r, 2), ad, off + h * 4096))
                a("ds_read_b64_tr_b16 %s, v%d offset:%d" % (v(r + 2, 2), ad, off + h * 4096 + 2048))

        wsched = {self.opt.get("w0", 6): [0]}
        wsched.setdefault(self.opt.get("w1", 7), []).append(1)
        w2late = self.opt.get("w2late", 0)
        if not w2late:
            wsched.setdefault(7, []).append(2)
        for c in range(cq, 8):
            waitc(c)
            if c == 7:
                self.stamp()
            for n in wsched.get(c, []):
                issue_wo(n)
                groups.append("w%d" % n)
        assert len(groups) == 11 - w2late
        a.label("WL_0")
        self.wo_addr()
        self.tail_addr()
        a("s_waitcnt vmcnt(0)")
        self.stamp()
        a("s_barrier")
        if w2late:
            WSLOT[:] = [3, 4, 2, 1]
        if w2late:
            issue_wo(2)
        issue_wo(3)
        self.read_wo = read_wo
        if self.opt.get("wide"):
            for j in range(4):
                a("v_xor_b32 v%d, 0x100, v%d" % (16 + j, 16 + j))
            issue_wo(0, 1)
            for n in range(3):
                read_wo(n)
            a("s_waitcnt vmcnt(0) lgkmcnt(0)\ns_barrier")
            self.stamp()
            if self.opt["wide"] == 1:
                self.w_pqload()
            for n in range(1, 4):
                issue_wo(n, WSLOT[n - 1])
            read_wo(3)
            if self.opt["wide"] == 3:
                self.w_pqload()
                a("s_waitcnt vmcnt(4)")
            if self.opt["wide"] == 2:
                a("s_waitcnt vmcnt(0)")
        else:
            for n in range(3 - w2late):
                read_wo(n)
        a.label("WL_1")
        a("s_branch KV_TAIL")
        self.kv_tail_nst = self.nst
        self.nst = n0
        a.label("QLOADER")
        self.role = "R"
        self.reducer_setup()
        del groups[8:]
        for c in range(cq, 8):
            waitc(c)
        if self.opt.get("prewrite", 1):
            lab = a.newlabel("NOZ")
            a("s_cmp_gt_u32 s71, 8\ns_cbranch_scc1 " + lab)
            a("buffer_store_dwordx4 v[32:35], v21, %s, s67 offen sc1" % ws)
            a.label(lab)
        lab = a.newlabel("PC")
        a("s_getpc_b64 s[56:57]")
        a.label(lab)
        a.items.append(("i", _sym_add("s_add_u32 s56, s56, TABLE-%s" % lab, 0x8000)))
        a("s_addc_u32 s57, s57, 0\nv_lshlrev_b32 v2, 4, v1\nv_add_u32 v4, s59, v2\nv_mov_b32 v5, 0\nv_lshl_add_u64 v[4:5], v[4:5], 0, s[56:57]\ns_add_u32 m0, s59, %d" % TB)
        for q in range(4):
            a("global_load_lds_dwordx4 v[4:5], off offset:%d" % (q * 1024))
        self.ra_inv(1, 84)
        a("ds_write_b64 v90, v[88:89]")
        a("s_waitcnt vmcnt(0) lgkmcnt(0)\ns_barrier")
        self.stamp()
        self.reducer()

    def ra_inv(self, half, t):
        self.a("""v_and_b32 v{0}, 7, v1
        v_lshlrev_b32 v{0}, 6, v{0}
        s_add_u32 s62, s60, {h}
        v_add_u32 v{0}, s62, v{0}
        v_cvt_f32_u32 v{0}, v{0}
        v_mul_f32 v{0}, {c1}, v{0}
        s_lshr_b32 s62, s3, 1
        s_and_b32 s15, s3, 1
        s_lshl2_add_u32 s14, s62, s15
        s_lshl_b32 s14, s14, 1
        v_lshrrev_b32 v{1}, 5, v1
        v_lshl_add_u32 v{1}, v{1}, 2, s14
        v_cvt_f32_u32 v{1}, v{1}
        v_bfe_u32 v{2}, v1, 3, 1
        v_cvt_f32_u32 v{2}, v{2}
        v_mul_f32 v{2}, {c2}, v{2}
        v_fma_f32 v{1}, v{1}, v{0}, v{2}
        v_lshlrev_b32 v{2}, 27, v1
        v_and_b32 v{2}, 0x80000000, v{2}
        v_or_b32 v{2}, {c3}, v{2}
        v_add_f32 v{3}, v{1}, v{2}
        v_sub_f32 v{2}, v{0}, v{2}
        v_add_f32 v{2}, v{1}, v{2}
        v_cos_f32 v{0}, v{3}
        v_sin_f32 v{3}, v{3}
        v_cos_f32 v{1}, v{2}
        v_sin_f32 v{2}, v{2}
        s_lshl_b32 s62, s62, 10
        s_lshl3_add_u32 s62, s15, s62
        s_add_u32 s62, s62, {rab}
        v_add_u32 v{6}, s62, v2
        v_cvt_pk_bf16_f32 v{4}, v{0}, -v{3}
        v_cvt_pk_bf16_f32 v{5}, v{1}, -v{2}""".format(*[t + i for i in range(7)], h=512 * half, c1=fhex(1 / 2048), c2=fhex(-0.25),
                                                      c3=fhex(0.125), rab=RAB))

    def reducer_setup(self):
        a = self.a
        a("""s_lshl3_add_u32 s60, s4, s5
        s_sub_u32 s60, s60, 16
        s_lshr_b32 s61, s60, 2
        s_and_b32 s71, s60, 3
        s_lshl2_add_u32 s71, s58, s71
        s_mul_i32 s63, s61, %d
        s_lshl_b32 s64, s71, 7
        s_add_u32 s63, s63, s64
        s_add_u32 s63, s63, 0x%x
        s_mul_i32 s67, s61, %d
        s_add_u32 s67, s67, s64
        s_add_u32 s67, s67, 0x%x
        s_add_u32 s64, s63, %d
        s_add_u32 s65, s63, %d
        s_add_u32 s66, s63, %d""" % (32 * PLINE, WS_PART, PLINE, WS_RED, 8 * PLINE, 16 * PLINE, 24 * PLINE))
        a("""v_lshrrev_b32 v2, 3, v1
        v_and_b32 v3, 7, v1
        v_lshlrev_b32 v3, 4, v3
        v_mov_b32 v22, %d
        v_mad_u32_u24 v20, v2, v22, v3
        v_mov_b32 v22, 0x%x
        v_mad_u32_u24 v21, v2, v22, v3""" % (PLINE, RED_STRIDE))
        a("""v_and_b32 v2, 1, v1
        v_lshlrev_b32 v2, 4, v2
        v_mov_b32 v3, 0x3f80
        v_lshlrev_b32 v3, v2, v3
        v_and_b32 v2, 2, v1
        v_cmp_eq_u32 vcc, 0, v2
        v_mov_b32 v24, 0
        v_mov_b32 v25, 0
        v_mov_b32 v28, 0
        v_mov_b32 v29, 0
        v_cndmask_b32 v26, 0, v3, vcc
        v_cndmask_b32 v27, v3, v25, vcc
        v_mov_b32 v32, 0xfffefffe
        v_mov_b32 v33, 0
        v_mov_b32 v34, 0
        v_mov_b32 v35, 0""")

    def reducer(self):
        a = self.a
        ws = s(self.rWS, 4)
        D, acc, vacc, o = 40, 72, 80, 36
        lab = a.newlabel("NORED")
        n0 = self.nst
        self.pad_stamps(9)
        self.nst = n0
        a("s_cmp_gt_u32 s71, 8\ns_cbranch_scc1 HELPER")
        a.label("WR_0")
        self.diag_delay("d_part")
        self.poll(lambda: [a("buffer_load_dwordx4 %s, v20, %s, s%d offen sc1" % (v(D + 4 * i, 4), ws, 63 + i)) for i in range(4)],
                  lambda: self.markcheck(D, 16, vacc), vacc)
        self.stamp()
        for i in range(4):
            for h in range(2):
                a("%s %s, %s, %s, %s" % (M16, v(acc + 4 * h, 4), v(26 - 2 * h, 4), v(D + 4 * i, 4), v(acc + 4 * h, 4) if i else "0"))
        for r in range(8):
            a("v_add_f32_dpp v%d, v%d, v%d row_ror:8 row_mask:0xf bank_mask:0xf" % (56 + r, acc + r, acc + r))
        for j in range(4):
            self.cvt(o + j, v(56 + 2 * j), v(57 + 2 * j))
        for x in self.mark(o, 32):
            a(x)
        a("buffer_store_dwordx4 %s, v21, %s, s67 offen sc1" % (v(o, 4), ws))
        a.label("WR_1")
        self.stamp()
        self.pad_stamps(9)
        a("s_branch HELPER")

    def lds_reset(self):
        self.lq_issued = 0
        self.lq_done = 0

    def lds(self, line):
        self.a(line)
        self.lq_issued += 1
        return self.lq_issued

    def lds_wait(self, seq):
        if seq > self.lq_done:
            n = min(self.lq_issued - seq, 15)
            self.a("s_waitcnt lgkmcnt(%d)" % n)
            self.lq_done = self.lq_issued - n

    @staticmethod
    def cost(line):
        m = line.split()[0]
        if m == "MARK":
            return 0
        if m.startswith(("v_exp", "v_rcp", "v_sin", "v_cos")):
            return 8
        return 4

    def run_mfmas(self, mf, frags, pool, fillers, budget=24, maxread=2, maxout=14, hooks=None):
        a = self.a
        order = []
        last = {}
        for j, (_, ids) in enumerate(mf):
            for i in ids:
                if i not in last:
                    order.append(i)
                last[i] = j
        pool = list(pool)
        reg, seq = {}, {}
        rp = [0, 0]
        q = []

        def one_read():
            i = order[rp[0]]
            reads, pre = frags[i]
            if rp[1] == 0:
                if not pool:
                    return False
                if pre:
                    pre()
                reg[i] = pool.pop(0)
            sq = self.lds(reads[rp[1]].format(r=v(reg[i], 4), lo=v(reg[i], 2), hi=v(reg[i] + 2, 2)))
            rp[1] += 1
            if rp[1] == len(reads):
                seq[i] = sq
                rp[0] += 1
                rp[1] = 0
            return True

        while rp[0] < len(order) and self.lq_issued - self.lq_done < maxout - 2 and pool and not (rp[0] and frags[order[rp[0]]][1]):
            one_read()
        for j, (fmt, ids) in enumerate(mf):
            for i in ids:
                while i not in seq:
                    assert one_read()
            if ids:
                self.lds_wait(max(seq[i] for i in ids))
            a(fmt.format(*[v(reg[i], 4) for i in ids]))
            for i in ids:
                if last[i] == j:
                    pool.append(reg[i])
            if hooks and j in hooks:
                hooks[j]()
            b = budget
            k = 0
            while k < maxread and rp[0] < len(order) and self.lq_issued - self.lq_done < maxout:
                gate = frags[order[rp[0]]]
                if rp[1] == 0 and len(gate) > 2 and gate[2]() is False:
                    break
                if not one_read():
                    break
                k += 1
                b -= 4
            q += fillers.get(j, [])
            while q and b >= self.cost(q[0]):
                if self.opt.get("upf", 1) and q[0].startswith("v_pk_"):
                    q[0:1] = unpack_pk(q[0])
                x = q.pop(0)
                b -= self.cost(x)
                self.emit_filler(x)
            self.fq = q
        return q

    def emit_filler(self, x):
        if x == "MARK":
            pass
        elif x.startswith("ds_"):
            self.last_fill_lds = self.lds(x)
        elif x.startswith("WAITLDS"):
            self.lds_wait(self.last_fill_lds - int(x.split()[1]))
        else:
            self.a(x)

    def gemm_loop(self, acc, pool, ax, aw, xfirst, fill, Z, hooks=None):
        a = self.a
        frags, mf = {}, []
        seen = set()

        def fx(n, mb, tag):
            c, ks = n >> 2, n & 3
            slot = c % 5
            hi, so = slot >> 1, (slot & 1) * 32768
            pre = None
            if ("x", n, mb, tag) in frags:
                return ("x", n, mb, tag)
            if c not in seen:
                seen.add(c)
                pre = (lambda: a("s_barrier")) if c else None
            frags[("x", n, mb, tag)] = (["ds_read_b128 {r}, v%d offset:%d" % (ax[hi][ks], so + 4096 * mb)], pre)
            return ("x", n, mb, tag)

        def fw(n, nb):
            c, ks = n >> 2, n & 3
            slot = c % 5
            hi, so = slot >> 1, (slot & 1) * 32768 + 16384 + ks * 4096
            frags[("w", n, nb)] = (["ds_read_b64_tr_b16 {lo}, v%d offset:%d" % (aw[hi][nb], so),
                                    "ds_read_b64_tr_b16 {hi}, v%d offset:%d" % (aw[hi][nb], so + 1024)], None)
            return ("w", n, nb)

        def add(n, nbs, tag):
            X = [fx(n, 0, tag), fx(n, 1, tag)]
            for nb in nbs:
                W = fw(n, nb)
                for mb in range(2):
                    d = v(acc[mb][nb], 16)
                    mf.append(("v_mfma_f32_32x32x16_bf16 %s, %s, %s" % (d, "{0}, {1}" if xfirst else "{1}, {0}", d if n else "0"), [X[mb], W]))

        for n in range(32 - Z):
            add(n, (0, 1), 0)
        for n in range(32 - Z, 32):
            add(n, (0,), 0)
        j0 = len(mf)
        for n in range(32 - Z, 32):
            add(n, (1,), 0 if self.opt.get("keepx", 1) else 1)
        a("s_barrier")
        self.stamp()
        self.lds_reset()
        return self.run_mfmas(mf, frags, pool, {j0 + 1: fill}, hooks=hooks)

    def phi(self, src, dst, tmp, n):
        L = []
        for g in range(0, n, 8):
            for j in range(0, 8, 2):
                L.append("v_pk_mul_f32 %s, %s, s[56:57]" % (v(tmp + j, 2), v(src + g + j, 2)))
            for j in range(8):
                L.append("v_exp_f32_e64 v%d, v%d clamp" % (tmp + j, tmp + j))
                L.append("v_max_f32 v%d, s58, v%d" % (src + g + j, src + g + j))
            for j in range(0, 8, 2):
                L.append("v_pk_add_f32 %s, %s, %s" % (v(tmp + j, 2), v(tmp + j, 2), v(src + g + j, 2)))
            for j in range(0, 8, 2):
                L.append("v_cvt_pk_bf16_f32 v%d, v%d, v%d" % (dst + (g + j) // 2, tmp + j, tmp + j + 1))
        return L

    def compute(self):
        a = self.a
        ws = s(self.rWS, 4)
        a.label("COMPUTE")
        self.role = "K"
        if self.opt.get("walk", 0) & 1:
            a("""s_mov_b64 exec, 0
            s_cmp_ge_u32 s5, 16
            s_cbranch_scc1 WKQ
            s_cmp_eq_u32 s3, 0
            s_cbranch_scc1 WKA0
            s_cmp_eq_u32 s3, 1
            s_cbranch_scc1 WKA1
            s_cmp_eq_u32 s3, 2
            s_cbranch_scc1 WKA2
            s_branch WKL0""")
            a.label("WKQ")
            a("""s_cmp_eq_u32 s3, 0
            s_cbranch_scc1 WKQ0
            s_cmp_eq_u32 s3, 1
            s_cbranch_scc1 WKQ1
            s_cmp_eq_u32 s3, 2
            s_cbranch_scc1 WKR0
            s_branch WKC0""" if self.opt.get("walk", 0) & 2 else "s_cmp_eq_u32 s3, 0\ns_cbranch_scc1 WKQ0\ns_cmp_eq_u32 s3, 1\ns_cbranch_scc1 WKQ1\ns_branch WKR0")
            a.label("WRET_A")
            a("s_mov_b64 exec, -1\ns_waitcnt lgkmcnt(0)\ns_nop 15")
        ax = [[240, 241, 242, 243], [244, 245, 246, 247], [252, 253, 254, 255]]
        aw = [[248, 249], [250, 251], [146, 147]]
        a("""s_lshr_b32 s60, s4, 1
        s_and_b32 s68, s5, 3
        s_lshl2_add_u32 s60, s60, s68
        s_and_b32 s64, s4, 1
        s_bfe_u32 s65, s5, 0x20002
        s_lshl2_add_u32 s61, s64, s65
        s_lshl1_add_u32 s66, s64, s65
        s_lshr_b32 s63, s3, 1
        s_and_b32 s64, s3, 1
        s_lshr_b32 s67, s5, 4
        s_lshl_b32 s69, s64, s67
        s_movk_i32 s70, 128
        s_lshr_b32 s70, s70, s67
        s_cmp_ge_u32 s5, 16
        s_cselect_b32 s61, s66, s61
        s_mov_b32 s10, 0xffff0000
        s_mov_b32 s11, 0xffff0000""")
        a(self.KARG)
        a("""v_and_b32 v2, 31, v1
        v_lshlrev_b32 v2, 7, v2
        s_lshl_b32 s65, s63, 13
        v_add_u32 v2, s65, v2
        v_lshrrev_b32 v3, 5, v1
        v_bfe_u32 v16, v1, 1, 3
        v_xor_b32 v16, v16, v3
        v_lshl_add_u32 v240, v16, 4, v2
        v_xor_b32 v241, 32, v240
        v_xor_b32 v242, 64, v240
        v_xor_b32 v243, 96, v240""")
        a("""v_bfe_u32 v16, v1, 2, 2
        v_lshl_add_u32 v17, v3, 3, v16
        v_xor_b32 v16, s69, v16
        v_lshlrev_b32 v16, 6, v16
        v_lshl_add_u32 v16, v17, 8, v16
        v_bfe_u32 v17, v1, 4, 1
        v_lshl_add_u32 v16, v17, 5, v16
        v_and_b32 v17, 3, v1
        v_lshl_add_u32 v248, v17, 3, v16
        v_xor_b32 v249, s70, v248""")
        for k in range(4):
            a("v_add_u32 v%d, 0x10000, v%d" % (244 + k, 240 + k))
            a("v_add_u32 v%d, 0x20000, v%d" % (252 + k, 240 + k))
        a("v_add_u32 v250, 0x10000, v248\nv_add_u32 v251, 0x10000, v249\nv_add_u32 v146, 0x20000, v248\nv_add_u32 v147, 0x20000, v249")
        a("s_waitcnt lgkmcnt(0)")
        a("s_load_dwordx2 s[8:9], s[32:33], %d" % WS_EP)
        self.srd(self.rWS, self.pWS, WS_SIZE)
        self.srd(self.rOUT, self.pOUT, 2048 * 2048)
        a("s_mov_b32 s56, %s\ns_mov_b32 s57, %s\ns_mov_b32 s58, %s" % (fhex(1.4426950408889634), fhex(1.4426950408889634), fhex(1e-6)))
        a("v_lshlrev_b32 v2, 4, v1")
        acc = [[64, 96], [80, 112]]
        pool = list(range(16, 64, 4))
        Z = self.opt.get("z", 6)
        CN = 252
        a("s_cmp_ge_u32 s5, 16\ns_cbranch_scc1 QCOMPUTE")
        n0 = self.nst
        a("""s_lshl1_add_u32 s59, s61, s64
        s_lshl_b32 s59, s59, 5
        s_lshl1_add_u32 s66, s60, s63
        s_add_u32 s59, s59, s66
        s_mul_i32 s59, s59, %d
        s_add_u32 s59, s59, 0x%x""" % (PLINE, WS_PART))
        P0, P1, PZ, ONES, zaddr = 128, 132, 136, 140, 144
        pk, vv, tmp, D, D2 = 180, 196, 212, 148, 164
        for j in range(4):
            a("v_mov_b32 v%d, 0x3f803f80" % (ONES + j))

        def prewrite():
            a("buffer_store_dwordx4 %s, v2, %s, s59 offen sc1" % (v(ONES, 4), ws))
            a("s_mov_b64 exec, 0xff")
            a("buffer_store_dwordx4 %s, v2, %s, s59 offen offset:1024 sc1" % (v(ONES, 4), ws))
            a("s_mov_b64 exec, -1")

        pw = self.opt.get("prewrite", 1)
        if pw == 1:
            prewrite()
        a("""v_lshrrev_b32 v3, 4, v1
        v_and_b32 v145, 1, v1
        v_lshl_add_u32 v4, v3, 1, v145
        v_lshlrev_b32 v%d, 4, v4
        v_mov_b32 v145, 0xfffefffe
        s_mov_b32 s60, 0x00030003
        s_mov_b32 s61, 0x00030003""" % zaddr)
        self.tail_addr()
        a("s_waitcnt lgkmcnt(0)")
        self.tags()
        K0, K1, V0, V1 = acc[0][0], acc[1][0], acc[0][1], acc[1][1]
        fill = []
        for i, src in enumerate((K0, K0 + 8, K1, K1 + 8)):
            fill += self.phi(src, pk + 4 * i, tmp, 8) + ["MARK"]
        hooks = {100: lambda: a("s_waitcnt vmcnt(0)")}
        if pw > 1:
            hooks[pw] = prewrite
        big = list(range(148, 180, 4)) + list(range(220, 240, 4)) if self.opt.get("keepx", 1) else []
        hooks[128 - 2 * Z] = lambda: a.label("WA_0")
        rest = self.gemm_loop(acc, pool + big, ax, aw, True, fill, Z, hooks)
        self.stamp()
        ndone = 4 - rest.count("MARK")
        vsrc = (V0, V0 + 8, V1, V1 + 8)
        vcvt = lambda i: ["v_cvt_pk_bf16_f32 v%d, v%d, v%d" % (vv + 4 * i + j, vsrc[i] + 2 * j, vsrc[i] + 2 * j + 1) for j in range(4)]
        mD = lambda i: "%s %s, %s, %s, %s" % (M32, v(D, 16), v(pk + 4 * i, 4), v(vv + 4 * i, 4), v(D, 16) if i else "0")
        mZ = lambda i: "%s %s, %s, %s, %s" % (M32, v(D2, 16), v(pk + 4 * i, 4), v(ONES, 4), v(D2, 16) if i else "0")
        pend = [x for i in range(ndone) for x in ([mZ(i)], vcvt(i) + [mD(i)])]
        g, gap = ndone, 0
        for k, x in enumerate(rest):
            if x == "MARK":
                pend += [[mZ(g)], vcvt(g) + [mD(g)]]
                g += 1
                continue
            run = 0
            while k + run < len(rest) and rest[k + run].startswith(("v_exp", "v_max")):
                run += 1
            if pend and run >= 5 and gap <= 0:
                for y in pend.pop(0):
                    a(y)
                gap = 5
            a(x)
            gap -= 1
        cv = [y for it in pend for y in it if y.startswith("v_cvt")]
        zs = [y for it in pend for y in it if y.startswith("v_mfma") and v(ONES, 4) in y]
        ds = [y for it in pend for y in it if y.startswith("v_mfma") and v(ONES, 4) not in y]
        for y in cv[:4] + zs + cv[4:] + ds:
            a(y)
        for src, p in ((D2, PZ), (D, P0)):
            for j in range(4):
                self.cvt(p + j, v(src + 2 * j), v(src + 2 * j + 1))
            a("s_mov_b64 exec, s[10:11]")
            for j in range(4):
                self.cvt(p + j, v(src + 8 + 2 * j), v(src + 9 + 2 * j))
            a("s_mov_b64 exec, %s" % ("s[60:61]" if p == PZ else "-1"))
            for x in self.mark(p, 145):
                a(x)
            if p == PZ:
                a("buffer_store_dwordx4 %s, v%d, %s, s59 offen offset:1024 sc1" % (v(PZ, 4), zaddr, ws))
                a("s_mov_b64 exec, -1")
            else:
                a("buffer_store_dwordx4 %s, v2, %s, s59 offen sc1" % (v(p, 4), ws))
        self.stamp()
        a("s_barrier")
        if self.opt.get("wide"):
            self.wo_addr()
            if self.opt["wide"] == 1:
                a("s_waitcnt vmcnt(0)")
            a("s_barrier")
            self.stamp()
            if self.opt["wide"] == 1:
                self.w_pqload()
            self.read_wo(0, 1)
            assert self.nst == self.kv_tail_nst
            self.wide_tail()
        else:
            assert self.nst == self.kv_tail_nst
            self.kv_tail()
        a.label("WA_1")
        a("s_endpgm")
        self.nst = n0
        a.label("QCOMPUTE")
        a.unpk = False
        self.role = "Q"
        a("""s_lshl1_add_u32 s66, s60, s63
        s_lshl2_add_u32 s66, s66, s61
        s_lshl1_add_u32 s66, s66, s64
        s_lshl_b32 s65, s66, 13
        s_add_u32 s65, s65, 0x%x
        s_add_u32 s67, s65, 0x1000
        v_mov_b32 v4, 0xfffefffe
        s_lshl3_add_u32 s60, s4, s5
        s_sub_u32 s60, s60, 16""" % WS_PQ)
        self.ra_inv(1, 8)
        a("s_waitcnt lgkmcnt(0)")
        self.tags()

        def qpost(nb):
            L = []
            for mb in range(2):
                for h in range(2):
                    d = 128 + 16 * nb + 8 * mb + 4 * h
                    L += self.phi(acc[mb][nb] + 8 * h, d, 212, 8) + self.mark(d, 4)
                    L.append("buffer_store_dwordx4 %s, v2, %s, s%d offen offset:%d sc1" % (v(d, 4), ws, 67 if nb else 65, (h * 2 + mb) * 1024))
            return L

        big = list(range(160, 212, 4)) + list(range(220, 240, 4)) if self.opt.get("keepx", 1) else []
        rest = self.gemm_loop(acc, pool + big, ax, aw, False, qpost(0), self.opt.get("zq", 8), {100: lambda: a("s_waitcnt vmcnt(0)"), 128 - 2 * self.opt.get("zq", 8): lambda: a.label("WQ_0")})
        self.stamp()
        a("ds_write_b64 v14, v[12:13]")
        for x in rest + qpost(1):
            a(x)
        a.label("WQ_1")
        a("s_waitcnt vmcnt(%d) lgkmcnt(0)\ns_barrier" % self.opt.get("qdr", 2))
        self.stamp()
        self.pad_stamps(9)
        a.label("HELPER")
        a("s_lshl_b32 s62, s60, 7\ns_add_u32 s62, s62, 0x%x\ns_movk_i32 s34, 512" % WS_GO)
        self.flip_marks()
        a("s_branch B3_ENTRY")

    def wo_addr(self):
        a = self.a
        a("s_and_b32 s63, s3, 3")
        a("""v_bfe_u32 v14, v1, 2, 2
        v_lshrrev_b32 v15, 5, v1
        v_lshl_add_u32 v15, v15, 2, v14
        v_xor_b32 v14, s63, v14
        v_lshlrev_b32 v14, 6, v14
        v_lshl_add_u32 v14, v15, 8, v14
        v_and_b32 v15, 1, v1
        v_lshl_add_u32 v14, v15, 5, v14
        v_bfe_u32 v15, v1, 4, 1
        v_lshl_add_u32 v14, v15, 4, v14
        v_bfe_u32 v15, v1, 1, 1
        v_lshl_add_u32 v14, v15, 3, v14
        v_add_u32 v15, 0x10000, v14
        v_add_u32 v0, 0x20000, v14""")

    def tail_addr(self):
        a = self.a
        a("""v_lshlrev_b32 v2, 4, v1
        ORB
        s_lshl3_add_u32 s66, s65, s3
        s_lshl_b32 s67, s66, 13
        s_add_u32 s67, s67, 0x%x
        s_mul_i32 s70, s3, %d
        s_mul_i32 s71, s4, 0x%x
        s_add_u32 s70, s70, s71
        s_add_u32 s70, s70, 0x%x
        s_add_u32 s71, s70, %d
        v_lshrrev_b32 v8, 4, v1
        v_xor_b32 v8, 1, v8
        v_and_b32 v9, 1, v1
        v_lshl_add_u32 v8, v8, 1, v9
        v_lshlrev_b32 v8, 4, v8
        s_lshl_b32 s63, s3, 12
        v_add_u32 v13, s63, v2
        s_mov_b32 s10, 0xffff0000
        s_mov_b32 s11, 0xffff0000""".replace("ORB", "s_and_b32 s65, s5, 7\ns_lshr_b32 s66, s4, 1\ns_lshl3_add_u32 s65, s66, s65" if self.opt.get("omap") else "s_and_b32 s65, s5, 3\ns_lshl2_add_u32 s65, s4, s65") % (WS_PQ, 2 * PLINE, RED_STRIDE, WS_RED, PLINE))
        if self.opt.get("wide"):
            a("s_bfe_u32 s63, s5, 0x10002\ns_lshl_b32 s63, s63, 10\ns_add_u32 s67, s67, s63\ns_add_u32 s71, s67, 0x1000")

    def w_pqload(self):
        for i in range(4):
            self.a("buffer_load_dwordx4 %s, v2, %s, s%d offen offset:%d sc1" % (v(32 + 4 * i, 4), s(self.rWS, 4), 71 if i >= 2 else 67, (i & 1) * 2048))

    def wide_tail(self):
        a = self.a
        ws = s(self.rWS, 4)
        a.label("KV_TAIL")
        WO, PQ, RD, OP, AC = 128, 32, 48, 16, 64
        a("""s_mov_b32 s58, %s
        s_lshl_b32 s63, s5, 13
        s_and_b32 s64, s63, 0x6000
        s_add_u32 s64, s64, 0x8000
        v_add_u32 v4, s64, v2
        v_xor_b32 v5, 0x2000, v4
        v_xor_b32 v6, 0x4000, v4
        v_xor_b32 v7, 0x6000, v4
        s_lshl_b32 s63, s3, 11
        s_add_u32 s63, s63, 0x10000
        v_and_b32 v10, 31, v1
        v_bfe_u32 v11, v1, 1, 2
        v_lshrrev_b32 v9, 5, v1
        v_lshlrev_b32 v9, 1, v9
        v_xor_b32 v11, v11, v9
        v_lshlrev_b32 v11, 4, v11
        v_lshl_add_u32 v10, v10, 6, v11
        v_add_u32 v10, s63, v10
        v_bfe_u32 v9, v1, 3, 2
        v_lshlrev_b32 v9, 4, v9
        v_xor_b32 v9, v9, v2
        v_add_u32 v9, s63, v9
        v_lshrrev_b32 v3, 2, v1
        v_and_b32 v11, 3, v1
        v_lshlrev_b32 v11, 4, v11
        v_lshl_add_u32 v3, v3, 11, v11
        v_xor_b32 v11, 16, v10
        s_lshr_b32 s63, s5, 2
        s_and_b32 s64, s63, 1
        s_lshl1_add_u32 s65, s65, s64
        s_lshl_b32 s65, s65, 16
        s_lshl_b32 s63, s63, 2
        s_xor_b32 s63, s63, s3
        s_xor_b32 s63, s63, 4
        s_lshl_b32 s63, s63, 6
        s_add_u32 s64, s65, s63
        s_add_u32 s65, s64, 0x8000""" % fhex(1e-6))
        wd = self.opt["wide"]
        if wd == 1:
            self.poll(self.w_pqload, lambda: self.markcheck(PQ, 16, 12), 12, first_issued=True)
        a("s_waitcnt lgkmcnt(0)\ns_barrier")
        self.stamp()
        if wd == 2:
            self.w_pqload()
        if wd == 3:
            lab = a.newlabel("NOPQ")
            a("s_cmp_ge_u32 s3, 4\ns_cbranch_scc1 " + lab)
            self.w_pqload()
            a.label(lab)

        def issue():
            for pi in range(2):
                a("buffer_load_dwordx4 %s, v2, %s, s70 offen offset:%d sc1" % (v(RD + 8 * pi, 4), ws, pi * PLINE))
                a("buffer_load_dwordx4 %s, v8, %s, s70 offen offset:%d sc1" % (v(RD + 8 * pi + 4, 4), ws, pi * PLINE + 1024))

        self.diag_delay("d_red")
        issue()
        lab = a.newlabel("NOWO")
        a("s_cmp_ge_u32 s3, 4\ns_cbranch_scc1 " + lab)
        for n, sl in ((1, 3), (2, 4), (3, 0)):
            self.read_wo(n, sl)
        a.label(lab)
        if wd != 1:
            self.poll(self.w_pqload, lambda: self.markcheck(PQ, 16, 12), 12, first_issued=True)
        self.poll(issue, lambda: self.markcheck(RD, 16, 12), 12, first_issued=True)
        self.stamp()

        def sel(i):
            b = RD + 8 * (i >> 1)
            for j in range(4):
                x, y = (b + j, b + 4 + j) if i & 1 == 0 else (b + 4 + j, b + j)
                a("v_cndmask_b32 v%d, v%d, v%d, s[10:11]" % (OP + 4 * i + j, x, y))

        mf = lambda i: a("%s %s, %s, %s, 0" % (M32, v(AC + 16 * i, 16), v(OP + 4 * i, 4), v(PQ + 4 * i, 4)))
        sel(0)
        sel(1)
        mf(0)
        sel(2)
        mf(1)
        sel(3)
        mf(2)
        for i in range(4):
            d = AC + 16 * i
            num, den = (d, d + 8) if i & 1 == 0 else (d + 8, d)
            if i == 0:
                mf(3)
            a("v_add_f32 v%d, s58, v%d\nv_rcp_f32 v%d, v%d" % (den, den, den, den))
            for j in range(0, 8, 2):
                a("v_pk_mul_f32 %s, %s, %s op_sel_hi:[1,0]" % (v(num + j, 2), v(num + j, 2), v(den, 2)))
            for j in range(4):
                self.cvt(den + 4 + j, v(num + 2 * j), v(num + 2 * j + 1))
            a("ds_write_b128 v13, %s offset:%d" % (v(den + 4, 4), 32768 + i * 1024))
        a("s_waitcnt lgkmcnt(0)\ns_barrier")
        self.stamp()
        frags, mfl = {}, []
        d = v(AC, 16)
        for h in range(32):
            frags[h] = (["ds_read_b128 {r}, v%d offset:%d" % (4 + (h >> 3), (h & 7) * 1024)], None)
            mfl.append(("%s %s, %s, {0}, %s" % (M32, d, v(WO + 4 * h, 4), d if h else "0"), [h]))
        self.lds_reset()
        self.run_mfmas(mfl, frags, list(range(16, 48, 4)), {}, maxread=1)
        fl = self.opt.get("outflag", "sc1")
        t = AC + 16
        for j in range(8):
            self.cvt(t + j, v(AC + 2 * j), v(AC + 2 * j + 1))
        a("ds_write_b128 v10, %s\nds_write_b128 v11, %s" % (v(t, 4), v(t + 4, 4)))
        a("ds_read_b128 %s, v9\nds_read_b128 %s, v9 offset:1024" % (v(t + 8, 4), v(t + 12, 4)))
        for k in range(2):
            a("s_waitcnt lgkmcnt(%d)" % (1 - k))
            a("buffer_store_dwordx4 %s, v3, %s, s%d offen %s" % (v(t + 8 + 4 * k, 4), s(self.rOUT, 4), 64 + k, fl))
        lab = a.newlabel("NOEP")
        a("s_or_b32 s56, s4, s3\ns_or_b32 s56, s56, s5\ns_cbranch_scc1 " + lab)
        self.poll(lambda: a("buffer_load_dwordx2 v[6:7], off, %s, 0 offset:%d sc1" % (ws, WS_NOTE)),
                  lambda: a("v_xor_b32 v12, s6, v6\nv_bitop3_b32 v12, v12, v7, s7 bitop3:0xf6"), 12)
        a("v_mov_b32 v6, s8\nv_mov_b32 v7, s9\ns_mov_b64 exec, 1")
        a("buffer_store_dwordx2 v[6:7], off, %s, 0 offset:%d sc1" % (ws, WS_EP))
        a("s_mov_b64 exec, -1")
        a.label(lab)
        self.end()

    def kv_tail(self):
        a = self.a
        ws = s(self.rWS, 4)
        a.label("KV_TAIL")
        a.unpk = bool(self.opt.get("unpk", 2) & 2)
        WO, PQ, RD, OP, AC = 128, 16, 48, 80, 96
        a("s_waitcnt vmcnt(0)")
        a("s_add_u32 s68, s67, 0x1000\ns_mov_b32 s62, s67\ns_mov_b32 s58, %s" % fhex(1e-6))
        pqload = lambda R=range(8): [a("buffer_load_dwordx4 %s, v2, %s, s%d offen offset:%d sc1" % (v(PQ + 4 * i, 4), ws, 68 if i >= 4 else 62, (i & 3) * 1024)) for i in R]
        self.diag_delay("d_pq")
        pql = self.opt.get("pqlate", 3)
        if pql == 3:
            pqload(range(4))
        elif pql != 1:
            pqload()
        if pql == 2:
            self.stamp()
            self.poll(pqload, lambda: self.markcheck(PQ, 32, 12), 12, first_issued=True)
        a("s_waitcnt lgkmcnt(0)\ns_barrier")
        self.stamp()
        if pql == 1:
            pqload()
        if pql == 3:
            pqload(range(4, 8))
        lab = a.newlabel("NOWO")
        a("s_cmp_lt_u32 s3, 4\ns_cbranch_scc1 " + lab)
        if self.opt.get("w2late", 0):
            self.read_wo(2)
        self.read_wo(3)
        a.label(lab)
        redat = self.opt.get("redat", -1)
        if pql != 2 and redat < 0:
            self.poll(pqload, lambda: self.markcheck(PQ, 32, 12), 12, first_issued=True)
            self.stamp()

        def issue():
            for pi in range(2):
                a("buffer_load_dwordx4 %s, v2, %s, s70 offen offset:%d sc1" % (v(RD + 8 * pi, 4), ws, pi * PLINE))
                a("buffer_load_dwordx4 %s, v8, %s, s70 offen offset:%d sc1" % (v(RD + 8 * pi + 4, 4), ws, pi * PLINE + 1024))

        a("""s_lshl_b32 s63, s5, 13
        s_and_b32 s64, s63, 0x6000
        s_add_u32 s64, s64, OBASE
        v_add_u32 v13, OBASE, v13
        v_add_u32 v4, s64, v2
        v_xor_b32 v5, 0x2000, v4
        v_xor_b32 v6, 0x4000, v4
        v_xor_b32 v7, 0x6000, v4
        s_lshl_b32 s69, s3, 12
        s_add_u32 s69, s69, STG
        v_and_b32 v10, 31, v1
        v_bfe_u32 v14, v1, 1, 2
        v_lshrrev_b32 v15, 5, v1
        v_lshlrev_b32 v15, 1, v15
        v_xor_b32 v14, v14, v15
        v_lshlrev_b32 v14, 4, v14
        v_lshl_add_u32 v10, v10, 6, v14
        v_add_u32 v10, s69, v10
        v_xor_b32 v14, 16, v10
        v_bfe_u32 v15, v1, 3, 2
        v_lshlrev_b32 v15, 4, v15
        v_xor_b32 v15, v15, v2
        v_add_u32 v15, s69, v15
        v_lshrrev_b32 v3, 2, v1
        v_and_b32 v11, 3, v1
        v_lshlrev_b32 v11, 4, v11
        v_lshl_add_u32 v3, v3, 11, v11
        s_lshl_b32 s65, s65, 17
        s_and_b32 s64, s3, 3
        s_lshl2_add_u32 s69, s14, s64
        s_lshl_b32 s69, s69, 6
        s_add_u32 s64, s65, s69
        s_add_u32 s65, s64, 0x8000
        s_add_u32 s66, s64, 0x10000
        s_add_u32 s67, s64, 0x18000""".replace("OBASE", "0x18000" if self.opt.get("w2late", 0) else "0").replace("STG", "0" if self.opt.get("w2late", 0) else "0x14000"))
        if self.opt.get("rbar", 1):
            a("s_barrier")
        self.diag_delay("d_red")
        if redat >= 0:
            lab = a.newlabel("LATE")
            a("s_waitcnt vmcnt(%d)\ns_cmp_ge_u32 s3, 4\ns_cbranch_scc1 %s\ns_waitcnt vmcnt(0)" % (redat, lab))
            self.diag_delay("d_old")
            a.label(lab)
            issue()
            a("s_waitcnt vmcnt(4)")
            self.markcheck(PQ, 32, 12)
            ok = a.newlabel("PQOK")
            a("v_cmp_ne_u32 vcc, 0, v12\ns_cbranch_vccz " + ok)
            self.poll(pqload, lambda: self.markcheck(PQ, 32, 12), 12)
            a.label(ok)
            self.stamp()
        self.poll(issue, lambda: self.markcheck(RD, 16, 12), 12, first_issued=redat >= 0)
        self.stamp()
        accs = [AC, AC + 16, RD, RD + 16]

        def sel(i):
            pi, h = i >> 1, i & 1
            b = RD + 8 * pi
            for j in range(4):
                x, y = (b + j, b + 4 + j) if h == 0 else (b + 4 + j, b + j)
                a("v_cndmask_b32 v%d, v%d, v%d, s[10:11]" % (OP + 4 * i + j, x, y))

        def mf(i, mb, d):
            return "%s %s, %s, %s, 0" % (M32, v(d, 16), v(OP + 4 * i, 4), v(PQ + 4 * (i * 2 + mb), 4))

        def post(i, mb, d):
            pi, h = i >> 1, i & 1
            num, den = (d, d + 8) if h == 0 else (d + 8, d)
            L = ["v_add_f32 v%d, s58, v%d" % (den, den), "v_rcp_f32 v%d, v%d" % (den, den)]
            for j in range(0, 8, 2):
                L.append("v_pk_mul_f32 %s, %s, %s op_sel_hi:[1,0]" % (v(num + j, 2), v(num + j, 2), v(den, 2)))
            for j in range(4):
                L.append("v_cvt_pk_bf16_f32 v%d, v%d, v%d" % (den + 4 + j, num + 2 * j, num + 2 * j + 1))
            L.append("ds_write_b128 v13, %s offset:%d" % (v(den + 4, 4), mb * 32768 + i * 1024))
            return L

        sel(0)
        sel(1)
        a(mf(0, 0, accs[0]))
        sel(2)
        a(mf(1, 0, accs[1]))
        sel(3)
        a(mf(2, 0, accs[2]))
        a(mf(3, 0, accs[3]))
        P = [post(i, 0, accs[i]) for i in range(4)]
        for x in P[0][:2]:
            a(x)
        for i in range(4):
            if i < 3:
                for x in P[i + 1][:2]:
                    a(x)
            for x in P[i][2:]:
                a(x)
        acc1 = [RD, RD + 16, AC + 16, RD]
        a(mf(0, 1, acc1[0]))
        a(mf(1, 1, acc1[1]))
        a("s_waitcnt lgkmcnt(0)\ns_barrier")
        self.stamp()
        a("s_cmp_ge_u32 s3, 4\ns_cbranch_scc1 OUT_GEMM")
        n0 = self.nst
        a(mf(2, 1, acc1[2]))
        a(mf(3, 1, AC))
        a.unpk = bool(self.opt.get("upf", 1))
        P = [post(i, 1, acc1[i] if i < 3 else AC) for i in range(4)]
        for x in P[0][:2]:
            a(x)
        for i in range(4):
            if i < 3:
                for x in P[i + 1][:2]:
                    a(x)
            for x in P[i][2:]:
                a(x)
        a.unpk = False
        a("s_waitcnt lgkmcnt(0)\ns_barrier")
        lab = a.newlabel("NOEP")
        a("s_or_b32 s56, s4, s3\ns_or_b32 s56, s56, s5\ns_cbranch_scc1 " + lab)
        self.poll(lambda: a("buffer_load_dwordx2 v[6:7], off, %s, 0 offset:%d sc1" % (ws, WS_NOTE)),
                  lambda: a("v_xor_b32 v12, s6, v6\nv_bitop3_b32 v12, v12, v7, s7 bitop3:0xf6"), 12)
        a("v_mov_b32 v6, s8\nv_mov_b32 v7, s9\ns_mov_b64 exec, 1")
        a("buffer_store_dwordx2 v[6:7], off, %s, 0 offset:%d sc1" % (ws, WS_EP))
        a("s_mov_b64 exec, -1")
        a.label(lab)
        self.end()
        self.nst = n0
        a.label("OUT_GEMM")
        if self.opt.get("oprio", 1):
            a("s_setprio %d" % self.opt.get("oprio", 1))
        fl = self.opt.get("outflag", "sc1")
        out = s(self.rOUT, 4)
        frags, mfl = {}, []
        pool = [PQ + 8 * i for i in range(4)] + [PQ + 4, PQ + 12]

        def b11b():
            assert not self.fq
            self.lds_wait(self.last_fill_lds)
            a("s_barrier")

        AC2 = OP
        for mb in range(2):
            d = v(AC2 if mb else AC, 16)
            for h in range(32):
                frags[(mb, h)] = (["ds_read_b128 {r}, v%d offset:%d" % (4 + (h >> 3), mb * 32768 + (h & 7) * 1024)],
                                  b11b if (mb, h) == (1, 0) else None)
                mfl.append(("%s %s, %s, {0}, %s" % (M32, d, v(WO + 4 * h, 4), d if h else "0"), [(mb, h)]))
                if mb == 0 and h == 0:
                    mfl.append((mf(2, 1, acc1[2]), []))
                if mb == 0 and h == self.opt.get("oh3", 8):
                    mfl.append((mf(3, 1, acc1[3]), []))

        def epi(mb, d, t):
            L = ["v_cvt_pk_bf16_f32 v%d, v%d, v%d" % (t + j, d + 2 * j, d + 2 * j + 1) for j in range(8)]
            L += ["ds_write_b128 v10, %s offset:%d" % (v(t, 4), mb * 2048), "ds_write_b128 v14, %s offset:%d" % (v(t + 4, 4), mb * 2048),
                  "ds_read_b128 %s, v15 offset:%d" % (v(t + 8, 4), mb * 2048), "ds_read_b128 %s, v15 offset:%d" % (v(t + 12, 4), mb * 2048 + 1024)]
            L2 = ["WAITLDS 1", "buffer_store_dwordx4 %s, v3, %s, s%d offen %s" % (v(t + 8, 4), out, 64 + 2 * mb, fl),
                  "WAITLDS 0", "buffer_store_dwordx4 %s, v3, %s, s%d offen %s" % (v(t + 12, 4), out, 65 + 2 * mb, fl)]
            return L, L2

        e0, e0b = epi(0, AC, RD)
        fillers = {0: post(0, 1, acc1[0]) + post(1, 1, acc1[1]), 7: post(2, 1, acc1[2]), self.opt.get("oh3", 8) + 6: post(3, 1, acc1[3]), 36: e0, 46: e0b}
        self.lds_reset()
        rest = self.run_mfmas(mfl, frags, pool, fillers, maxread=1, budget=self.opt.get("obud", 16))
        assert not rest
        e1, e1b = epi(1, AC2, RD + 16)
        for x in e1 + e1b:
            self.emit_filler(x)
        self.end()

    def role_b(self):
        a = self.a
        a.label("ROLE_B")
        a.unpk = bool(self.opt.get("unpk", 2) & 1)
        self.role = "B"
        ws = s(self.rWS, 4)
        XW, SW, XW3 = 0, 3, 1
        if self.opt.get("walk", 0) & 2:
            a("s_mov_b64 exec, 0")
            for w in range(1, 7):
                a("s_cmp_eq_u32 s3, %d\ns_cbranch_scc1 WKB%d" % (w, w - 1))
            a("s_cmp_eq_u32 s3, 7\ns_cbranch_scc1 WKC0")
            a.label("WRET_C")
            a("s_cmp_lt_u32 s5, 24\ns_cbranch_scc1 WRET_A" if self.opt.get("walk", 0) & 1 else "s_nop 0")
            a.label("WRET_B")
            a("s_mov_b64 exec, -1\ns_waitcnt lgkmcnt(0)\ns_nop 15")
        a(self.KARG)
        a("s_waitcnt lgkmcnt(0)")
        a("s_load_dwordx2 s[8:9], s[32:33], %d" % WS_EP)
        self.srd(self.rWS, self.pWS, WS_SIZE)
        a("""v_lshrrev_b32 v4, 5, v1
        v_and_b32 v5, 31, v1
        v_lshlrev_b32 v6, 4, v5
        v_lshl_add_u32 v3, s3, 3, v4
        v_xor_b32 v3, s60, v3
        v_lshl_add_u32 v3, v3, 9, v6
        v_lshl_add_u32 v11, v4, 3, s3
        v_xor_b32 v8, s60, v11
        v_lshl_add_u32 v11, v11, 15, v6
        v_lshl_add_u32 v11, v8, 9, v11
        s_lshl_b32 s66, s60, 15
        s_add_u32 s66, s66, 0x%x
        s_mov_b32 s13, 0x%x
        v_mov_b32 v14, 0xfffefffe""" % (WS_X1, WS_X1))
        a("""s_lshl_b32 s67, s4, 10
        s_add_u32 s67, s67, 0x%x
        v_and_b32 v12, 15, v1
        v_lshrrev_b32 v13, 4, v1
        s_xor_b32 s71, s61, 7
        s_xor_b32 s62, s3, %d
        s_or_b32 s71, s71, s62""" % (WS_X2S, SW))
        a("""s_bitcmp1_b32 s61, 0
        s_cselect_b64 s[48:49], s[26:27], s[24:25]
        s_cselect_b64 s[52:53], s[24:25], s[26:27]
        s_cselect_b32 s34, 0x8000, 0
        s_mov_b32 s50, 0x%x
        s_mov_b32 s51, 0x20000
        s_mov_b32 s54, 0x%x
        s_mov_b32 s55, 0x20000
        s_add_u32 s34, s34, s70
        s_add_u32 s34, s34, %d
        s_xor_b32 s35, s34, 0x8000""" % (2048 * 514, 2048 * 514, WB))
        self.srd(self.rOUT, self.pOUT, 2048 * 2048)

        CS, TW0, TWX, F16 = 16, 40, 48, 56
        RA = 64
        T = 144
        a("""v_cvt_f32_u32 v16, v5
        s_bfe_u32 s62, s3, 0x10001
        s_and_b32 s63, s3, 1
        s_lshl2_add_u32 s62, s62, s63
        s_lshl_b32 s62, s62, 7
        s_add_u32 s62, s62, s60
        v_lshl_add_u32 v17, v4, 8, s62
        v_cvt_f32_u32 v17, v17
        v_mul_f32 v17, v17, v16
        s_lshr_b32 s62, s3, 2
        v_xor_b32 v18, s62, v1
        v_lshlrev_b32 v18, 31, v18
        v_or_b32 v18, %s, v18
        v_fmamk_f32 v17, v17, %s, v18
        v_fmamk_f32 v18, v16, %s, v17
        s_lshl_b32 s62, s62, 31
        v_cos_f32 v20, v17
        v_sin_f32 v21, v17
        v_cos_f32 v22, v18
        v_sin_f32 v23, v18
        s_lshr_b32 s64, s3, 1
        s_lshl_b32 s64, s64, 10
        s_lshl3_add_u32 s64, s63, s64
        s_add_u32 s64, s64, %d
        v_add_u32 v15, s64, v2""" % (fhex(0.125), fhex(1 / 2048), fhex(1 / 32), RAB))
        a("""v_cvt_pk_bf16_f32 v24, v20, v21
        v_cvt_pk_bf16_f32 v25, v22, v23
        v_cvt_pk_bf16_f32 v26, -v21, v20
        v_cvt_pk_bf16_f32 v27, -v23, v22
        v_xor_b32 v24, s62, v24
        v_xor_b32 v25, s62, v25
        v_xor_b32 v26, s62, v26
        v_xor_b32 v27, s62, v27
        ds_write_b64 v15, v[24:25]
        ds_write_b64 v15, v[26:27] offset:4096""")
        self.ra_inv(0, 136)
        a("s_lshl_b32 s14, s60, 9\ns_add_u32 s14, s14, 0x%x\ns_and_b32 s63, s3, 1" % (WS_X1 + 64 * 32768))
        FA = 128
        a("""v_bfe_u32 v16, v1, 3, 2
        s_lshl_b32 s62, s4, 2
        v_add_u32 v17, s62, v16
        v_lshl_add_u32 v17, v4, 5, v17
        v_mul_u32_u24 v17, 514, v17
        v_and_b32 v17, -16, v17
        v_sub_u32 v16, v1, v16
        v_and_b32 v18, 7, v16
        v_xor_b32 v19, 4, v18
        v_cmp_gt_u32 s[68:69], 5, v18
        v_cmp_gt_u32 s[58:59], 5, v19
        v_lshl_add_u32 v128, v18, 4, v17
        v_lshl_add_u32 v129, v19, 4, v17""")
        a("""v_lshl_add_u32 v7, v1, 3, s70
        s_lshr_b32 s62, s3, 1
        s_lshl_b32 s62, s62, 13
        s_lshl3_add_u32 s62, s63, s62
        s_add_u32 s62, s62, %d
        v_lshlrev_b32 v8, 11, v13
        v_lshl_add_u32 v8, v12, 4, v8
        v_add_u32 v8, s62, v8
        v_lshl_add_u32 v10, s3, 5, v5
        v_lshlrev_b32 v130, 13, v4
        v_add_u32 v130, %d, v130
        v_lshl_add_u32 v9, v10, 4, v130
        v_sub_u32 v10, 0, v10
        v_and_b32 v10, 0x1ff, v10
        v_lshl_add_u32 v10, v10, 4, v130
        v_add_u32 v131, %d, v2
        s_mul_i32 s62, s3, %d
        s_lshl_b32 s63, s61, 6
        s_add_u32 s62, s62, s63
        s_add_u32 s63, s62, %d
        s_add_u32 s64, s62, %d
        s_add_u32 s65, s62, %d
        s_waitcnt lgkmcnt(0)""" % (ZB, ZB, TB, 8 * 32 * 514, 64 * 514 - 1024, 128 * 514 - 2048, 192 * 514 - 3072))
        self.tags()

        def tab(reg, q, n):
            for i in range(n):
                a("ds_read_b128 %s, v131 offset:%d" % (v(reg + 4 * i, 4), (q + i) * 1024))

        fdp = [int(x) for x in str(self.opt.get("fdp", "0404"))[-4:].rjust(4, "0")]
        fdn = [0]

        def fnext(n=1):
            for _ in range(n):
                fdma(fdn[0] >> 2, fdn[0] & 3)
                fdn[0] += 1

        def fdma(second, q):
            a("s_mov_b64 exec, %s\ns_mov_b32 m0, s%d\nbuffer_load_dwordx4 v%d, %s, s%d offen offset:%d NT lds\ns_mov_b64 exec, -1".replace("NT", "nt" if self.opt.get("ntf", 2) >> second & 1 else "") % (
                "s[58:59]" if q >> 1 else "s[68:69]", 35 if second else 34, FA + (q >> 1), s(52 if second else 48, 4), 62 + q, q * 1024),
              at=60 + self.opt.get("fgap", 170) * (fdn[0] - fdp[0]))

        ls = self.opt.get("ls", 0)
        msc = self.opt.get("msc", 10) / 10.0
        a("s_waitcnt vmcnt(%d)\ns_barrier" % 4)
        XF, T1, U = T, T + 16, T + 48
        early = self.opt.get("cearly", 6)
        tab(CS, TQ_CS, early)
        nb = 0
        bpf = self.opt.get("bpf", 0)
        if bpf:
            a("""s_lshl3_add_u32 s15, s61, s3
            s_lshl_b32 s15, s15, 2
            s_lshl_b32 s56, s4, 2
            s_xor_b32 s56, s56, s4
            s_andn2_b32 s56, 4, s56
            s_lshl_b32 s56, s56, 6
            s_add_u32 s15, s15, s56
            s_mul_i32 s15, s15, 3072
            s_and_b32 s56, s4, 1
            s_lshl_b32 s56, s56, 9
            s_add_u32 s15, s15, s56
            v_mul_u32_u24 v124, 0xc00, v13
            v_bfe_u32 v125, v1, 2, 2
            v_lshl_add_u32 v124, v125, 10, v124
            v_and_b32 v125, 3, v1
            v_lshl_add_u32 v124, v125, 7, v124
            s_mov_b64 s[44:45], s[18:19]
            s_mov_b32 s46, 0x180000""")

        def dobpf():
            a("""s_mov_b32 exec_lo, 0x0fff0fff
            s_mov_b32 exec_hi, 0x0fff0fff
            buffer_load_dword v126, v124, s[44:47], s15 offen
            s_mov_b64 exec, -1""")
        if bpf == 1:
            dobpf()
            nb = 1
        fnext(fdp[0])
        a("s_waitcnt vmcnt(%d)" % (fdp[0] + nb))
        self.stamp()
        a.label("WB_0")
        pre = ["ds_read_b128 %s, v131" % v(CS + 4 * i, 4) for i in range(early)]
        a.capture(ls & 1)
        for q in range(4):
            a("ds_read_b64_tr_b16 %s, v7 offset:%d" % (v(XF + 4 * q, 2), q * 1024))
            a("ds_read_b64_tr_b16 %s, v7 offset:%d" % (v(XF + 4 * q + 2, 2), q * 1024 + 512))
        tab(CS + 4 * early, TQ_CS + early, 12 - early)
        if bpf == 2:
            dobpf()
        a("s_mov_b32 s22, 0x80000\ns_mov_b32 s23, 0x20000\ns_lshl3_add_u32 s15, s60, s3\ns_lshl_b32 s15, s15, 10\nbuffer_load_dwordx4 v[116:119], v2, s[20:23], s15 offen" if self.opt.get("wopf", 1) else "s_nop 0", at=56)
        sp1 = [(fdp[1] + 3 - i) // 4 for i in range(4)]
        fnext(sp1[0])

        def stage_cs(re, im, out, conj):
            S, N = (CS + 16, CS + 8) if conj else (CS + 8, CS + 16)
            for tau in range(2):
                a("%s %s, %s, %s, 0" % (M16, v(out + 4 * tau, 4), v(re, 4), v(CS + 4 * tau, 4)))
                a("%s %s, %s, %s, 0" % (M16, v(out + 8 + 4 * tau, 4), v(im, 4), v(CS + 4 * tau, 4)))
                a("%s %s, %s, %s, %s" % (M16, v(out + 4 * tau, 4), v(im, 4), v(S + 4 * tau, 4), v(out + 4 * tau, 4)))
                a("%s %s, %s, %s, %s" % (M16, v(out + 8 + 4 * tau, 4), v(re, 4), v(N + 4 * tau, 4), v(out + 8 + 4 * tau, 4)))

        def twiddle(t, tws, tmp, conj):
            for tau in range(2):
                for j in (0, 2):
                    re, im = t + 4 * tau + j, t + 8 + 4 * tau + j
                    sn_ = tws[tau] + 4 + j
                    k = tmp + 8 * tau + 2 * j
                    a("v_pk_mul_f32 %s, %s, %s" % (v(k, 2), v(im, 2), v(sn_, 2)))
                    a("v_pk_mul_f32 %s, %s, %s" % (v(k + 2, 2), v(re, 2), v(sn_, 2)))
            ng = " neg_lo:[0,0,1] neg_hi:[0,0,1]"
            for tau in range(2):
                for j in (0, 2):
                    re, im = t + 4 * tau + j, t + 8 + 4 * tau + j
                    c = tws[tau] + j
                    k = tmp + 8 * tau + 2 * j
                    a("v_pk_fma_f32 %s, %s, %s, %s%s" % (v(re, 2), v(re, 2), v(c, 2), v(k, 2), ng if conj else ""))
                    a("v_pk_fma_f32 %s, %s, %s, %s%s" % (v(im, 2), v(im, 2), v(c, 2), v(k + 2, 2), "" if conj else ng))

        a("s_waitcnt lgkmcnt(%d)" % (16 - early))
        stage_cs(XF, XF + 4, T1, False)
        a("s_waitcnt lgkmcnt(%d)" % (12 - early))
        stage_cs(XF + 8, XF + 12, T1 + 16, False)
        fnext(sp1[1])
        a("s_waitcnt lgkmcnt(0)")
        tab(RA, 24, 8)
        for m in range(2):
            t = T1 + 16 * m
            twiddle(t, [TW0, TWX], T + 64 + 16 * m, False)
            for tau in range(2):
                u = U + 8 * m + 4 * tau
                self.cvt(u, v(t + 4 * tau), v(t + 4 * tau + 1))
                self.cvt(u + 1, v(t + 4 * tau + 2), v(t + 4 * tau + 3))
                self.cvt(u + 2, v(t + 8 + 4 * tau), v(t + 8 + 4 * tau + 1))
                self.cvt(u + 3, v(t + 8 + 4 * tau + 2), v(t + 8 + 4 * tau + 3))
            for tau in range(2):
                u = U + 8 * m + 4 * tau
                a("%s %s, %s, %s, 0" % (M16, v(t + 4 * tau, 4), v(F16, 4), v(u, 4)))
                a("%s %s, %s, %s, 0" % (M16, v(t + 8 + 4 * tau, 4), v(F16 + 4, 4), v(u, 4)))
            fnext(sp1[2 + m])
        fd = 2 if fdp[3] == 0 else 1
        ZW = T + 96
        for i in range(8):
            self.cvt(ZW + 2 * i, v(T1 + i), v(T1 + 8 + i))
        for i in range(8):
            self.cvt(ZW + 2 * i + 1, v(T1 + 16 + i), v(T1 + 24 + i))
            a("ds_write_b64 v8, %s offset:%d" % (v(ZW + 2 * i, 2), (i >> 2) * 256 + (i & 3) * 512))
        print("B1", a.flush(pre, mf_scale=msc))
        a("s_waitcnt lgkmcnt(0)\ns_barrier")
        self.stamp()
        for f in range(4):
            a("ds_read_b128 %s, v%d offset:%d" % (v(XF + 4 * f, 4), 9 + (f >> 1), (f & 1) * 16384))
        fnext(fdp[2])
        PC = T + 48

        def pieces(src, j, dst, mark=True):
            for h in range(2):
                self.cvt(dst + h, v(src + 4 * j + 2 * h), v(src + 4 * j + 2 * h + 1))
                self.cvt(dst + 2 + h, v(src + 16 + 4 * j + 2 * h), v(src + 16 + 4 * j + 2 * h + 1))
            if mark:
                for x in self.mark(dst, 14):
                    a(x)

        for f in range(4):
            a("s_waitcnt lgkmcnt(%d)" % (3 - f))
            for ri in range(2):
                d = v(T1 + 16 * ri, 16)
                a("%s %s, %s, %s, %s" % (M32, d, v(RA + 16 * ri + 4 * f, 4), v(XF + 4 * f, 4), d if f else "0"))
        XE, TE = T + 64, T + 80
        a("ds_write_b64 v142, v[140:141]")
        a("ds_read_b128 %s, v130 offset:4096\nds_read_b128 %s, v130 offset:%d" % (v(XE, 4), v(XE + 4, 4), 4096 + 16384))
        a("v_lshlrev_b32 v16, 1, v6\nv_lshl_add_u32 v16, v4, 4, v16")
        if fd == 2:
            a("s_waitcnt vmcnt(0)")
        for j in range(4):
            pieces(T1, j, PC + 4 * j)
            a("buffer_store_dwordx4 %s, v11, %s, s13 offen sc1" % (v(PC + 4 * j, 4), ws))
            if j < 3:
                a("v_xor_b32 v11, 0x%x, v11" % ((j ^ (j + 1)) * 0x82000))
        a("s_waitcnt lgkmcnt(0)")
        lab = a.newlabel("NOX")
        a("s_cmp_lg_u32 s3, %d\ns_cbranch_scc1 %s" % (XW, lab))
        for f in range(4):
            for ri in range(2):
                d = v(TE + 16 * ri, 16)
                a("%s %s, %s, %s, %s" % (M32, d, v(RA + 16 * ri + 4 * f, 4), v(XE + 4 * (f & 1), 4), d if f else "0"))
        for j in range(4):
            a("s_mov_b32 exec_lo, %d\ns_mov_b32 exec_hi, %d" % (1 << j, 1 << j))
            pieces(TE, j, XE + 8, False)
        a("s_mov_b32 exec_lo, 15\ns_mov_b32 exec_hi, 15")
        for x in self.mark(XE + 8, 14):
            a(x)
        a("buffer_store_dwordx4 %s, v16, %s, s14 offen sc1" % (v(XE + 8, 4), ws))
        a("s_mov_b64 exec, -1")
        a.label(lab)
        self.stamp()
        fnext(fdp[3])
        assert fdn[0] == 8

        F32 = 16
        FL = 48
        LD, LD2 = 96, 112
        FL2 = T + 64
        DAT, FR, TM = T, T + 32, T + 48
        tab(F32, TQ_F32, 4)
        tab(FR, TQ_OM, 4)
        a("""v_lshrrev_b32 v11, 2, v1
        v_xor_b32 v11, v11, v4
        v_lshlrev_b32 v129, 9, v11
        v_and_b32 v11, 3, v1
        v_lshl_add_u32 v129, v11, 4, v129
        s_lshl_b32 s62, s4, 4
        v_xor_b32 v129, s62, v129
        v_bfe_u32 v6, v1, 2, 3
        v_lshlrev_b32 v6, 12, v6
        v_lshl_add_u32 v6, v11, 4, v6
        s_and_b32 s62, s3, 1
        v_xor_b32 v11, s62, v4
        v_lshl_add_u32 v6, v11, 6, v6
        s_lshl_b32 s62, s3, 9
        s_add_u32 s62, s62, %d
        v_add_u32 v6, s62, v6
        v_xor_b32 v11, 0x400, v3
        v_xor_b32 v134, 0x800, v3
        v_xor_b32 v135, 0xc00, v3
        s_add_u32 s70, s70, %d
        v_and_b32 v132, 1, v13
        v_lshl_add_u32 v132, v13, 3, v132
        v_bfe_u32 v133, v1, 3, 1
        v_lshl_add_u32 v132, v133, 1, v132
        v_lshlrev_b32 v132, 6, v132
        v_and_b32 v133, 3, v1
        v_lshl_add_u32 v132, v133, 4, v132
        v_bfe_u32 v133, v1, 2, 1
        v_lshl_add_u32 v132, v133, 3, v132
        v_add_u32 v132, s70, v132
        v_xor_b32 v133, 64, v132""" % (ZB, ZB))
        MB = [3, 11, 134, 135]

        def faddr(dst, kk, t1, t2):
            a("""v_and_b32 v{t2}, 3, v12
            s_lshl_b32 s15, s4, 2
            v_add_u32 v{t1}, s15, v{t2}
            v_and_b32 v{t1}, 7, v{t1}
            v_add_lshl_u32 v{t1}, v{t1}, v{kk}, 1
            v_lshl_add_u32 v{t1}, v{t2}, 4, v{t1}
            v_lshl_add_u32 v{t1}, v13, 6, v{t1}
            v_and_b32 v{t1}, 0x7f, v{t1}
            v_lshl_add_u32 v{t1}, v{t2}, 7, v{t1}
            v_lshl_add_u32 v{t1}, v13, 11, v{t1}
            v_add_u32 v{dst}, {wb}, v{t1}""".format(dst=dst, kk=kk, t1=t1, t2=t2, wb=WB))

        a("v_lshrrev_b32 v%d, 2, v12\nv_lshl_add_u32 v%d, s3, 2, v%d" % (LD, LD, LD))
        faddr(128, LD, LD + 1, LD + 2)
        a("""v_lshl_add_u32 v15, s3, 2, v13
        v_and_b32 v5, 7, v12
        v_xor_b32 v15, v15, v5
        v_lshlrev_b32 v15, 4, v15
        v_lshl_add_u32 v15, v12, 10, v15
        s_and_b32 s63, s3, 1
        s_lshl_b32 s64, s63, 6
        v_xor_b32 v7, s64, v2
        s_lshl_b32 s64, s3, 12
        v_add_u32 v7, s64, v7
        v_xor_b32 v136, 16, v7
        v_xor_b32 v137, 32, v7
        v_xor_b32 v138, 48, v7
        s_mov_b32 s64, 0x80008000
        s_waitcnt lgkmcnt(0)""")
        for i in range(16):
            a(("v_xor_b32 v%d, s64, v%d" if i & 1 else "v_mov_b32 v%d, v%d") % (F32 + 16 + i, F32 + i))
        if fd != 2:
            a("s_waitcnt vmcnt(0)")
        a("s_barrier")
        self.stamp()

        def fread(addr):
            for arr in range(2):
                for pm in range(2):
                    for t in range(8):
                        a("ds_read_u16_d16_hi v%d, v%d offset:%d" % (DAT + 16 * arr + 8 * pm + t, addr, arr * 32768 + pm * 16384 + (t >> 2) * 8192 + (t & 3) * 512))

        def filt(dst, raw, both=True):
            for j in range(0, 8, 2):
                a("v_pk_add_f32 %s, %s, %s" % (v(dst + j, 2), v(raw + j, 2), v(raw + 8 + j, 2)))
                a("v_pk_add_f32 %s, %s, %s" % (v(dst + 8 + j, 2), v(raw + 16 + j, 2), v(raw + 24 + j, 2)))
                a("v_pk_add_f32 %s, %s, %s neg_lo:[0,1] neg_hi:[0,1]" % (v(raw + j, 2), v(raw + j, 2), v(raw + 8 + j, 2)))
                a("v_pk_add_f32 %s, %s, %s neg_lo:[0,1] neg_hi:[0,1]" % (v(raw + 16 + j, 2), v(raw + 16 + j, 2), v(raw + 24 + j, 2)))
            ng = " neg_lo:[0,0,1] neg_hi:[0,0,1]"
            for j in range(0, 8, 2):
                dr, di, c, sn_ = v(raw + j, 2), v(raw + 16 + j, 2), v(FR + j, 2), v(FR + 8 + j, 2)
                t1, t2 = v(raw + 8 + j, 2), v(raw + 24 + j, 2)
                a("v_pk_mul_f32 %s, %s, %s" % (t1, di, sn_))
                a("v_pk_mul_f32 %s, %s, %s" % (t2, dr, sn_))
                a("v_pk_fma_f32 %s, %s, %s, %s" % (v(dst + 16 + j, 2), dr, c, t1))
                a("v_pk_fma_f32 %s, %s, %s, %s%s" % (v(dst + 24 + j, 2), di, c, t2, ng))
                if both:
                    a("v_pk_fma_f32 %s, %s, %s, %s%s" % (v(dst + 32 + j, 2), dr, c, t1, ng))
                    a("v_pk_fma_f32 %s, %s, %s, %s" % (v(dst + 40 + j, 2), di, c, t2))

        VS = 139

        sentinel = lambda base: self.markcheck(base, 16, VS)

        def x1load(special):
            for i in range(4):
                a("buffer_load_dwordx4 %s, v%d, %s, s%d offen sc1" % (v((LD2 if special else LD) + 4 * i, 4), 129 if special else MB[i], ws, 56 + i if special else 66))

        def x1first():
            lab = a.newlabel("NOSP")
            a("s_cmp_lg_u32 s71, 0\ns_cbranch_scc1 " + lab)
            for i in range(4):
                a("s_mov_b32 s%d, 0x%x" % (56 + i, WS_X1 + 64 * 32768 + 0x2000 * i))
            x1load(True)
            a.label(lab)
            x1load(False)

        x1l = self.opt.get("x1late", 2)
        if fd != 2 and x1l == 0:
            x1first()
        fread(128)
        a("s_waitcnt lgkmcnt(0)")
        if fd != 2 and x1l == 1:
            x1first()
        filt(FL, DAT)
        if fd != 2 and x1l == 2:
            self.diag_delay("d_x1")
            x1first()
        if fd == 2:
            a("s_waitcnt vmcnt(0)")
            self.diag_delay("d_x1")
            x1first()
        self.stamp()

        def hintx(pos):
            if self.opt.get("go", 4) == pos:
                lab = a.newlabel("NOH")
                a("s_cmp_lg_u32 s3, 7\ns_cbranch_scc1 " + lab)
                a("""s_lshl_b32 s14, s60, 7
                s_add_u32 s14, s14, 0x%x
                v_mov_b32 v140, s6
                v_mov_b32 v141, s7
                v_lshlrev_b32 v142, 3, v12
                buffer_store_dwordx2 v[140:141], v142, %s, s14 offen sc1""" % (WS_GO, ws))
                a.label(lab)

        def b2(fl, special):
            FR2, OUT, PO = T + 64, LD, T + 96
            a.capture(ls & 2)
            for p in range(2):
                for f in range(2):
                    for h in range(2):
                        a("ds_read_b64_tr_b16 %s, v%d offset:%d" % (v(FR + 8 * p + 4 * f + 2 * h, 2), 132 + p, f * 2048 + h * 256))
            for tau in range(2):
                for p in range(2):
                    for f in range(2):
                        if tau == 0:
                            a("s_waitcnt lgkmcnt(%d)" % (6 - 4 * p - 2 * f))
                        for ri in range(2):
                            d = v(DAT + 16 * p + 8 * ri + 4 * tau, 4)
                            a("%s %s, %s, %s, %s" % (M16, d, v(F32 + ((tau * 2 + ri) * 2 + f) * 4, 4), v(FR + 8 * p + 4 * f, 4), d if f else "0"))
            n1_ = " neg_lo:[1,0,0] neg_hi:[1,0,0]"

            for j in range(0, 8, 2):
                Er, Ei, Or, Oi = [v(DAT + 8 * k + j, 2) for k in range(4)]
                Ar, Ai, B1r, B1i, B2r, B2i = [v(fl + 8 * k + j, 2) for k in range(6)]
                k = (TM, TM + 8, T + 80, T + 88)[j >> 1]
                Pr, Pi, Qr, Qi = [v(k + 2 * i, 2) for i in range(4)]
                a("v_pk_mul_f32 %s, %s, %s" % (Pr, Ar, Er))
                a("v_pk_mul_f32 %s, %s, %s" % (Pi, Ar, Ei))
                a("v_pk_mul_f32 %s, %s, %s" % (Qr, B2r, Er))
                a("v_pk_mul_f32 %s, %s, %s" % (Qi, B2r, Ei))
                a("v_pk_fma_f32 %s, %s, %s, %s%s" % (Pr, Ai, Ei, Pr, n1_))
                a("v_pk_fma_f32 %s, %s, %s, %s" % (Pi, Ai, Er, Pi))
                a("v_pk_fma_f32 %s, %s, %s, %s%s" % (Qr, B2i, Ei, Qr, n1_))
                a("v_pk_fma_f32 %s, %s, %s, %s" % (Qi, B2i, Er, Qi))
                a("v_pk_fma_f32 %s, %s, %s, %s" % (Pr, B1r, Or, Pr))
                a("v_pk_fma_f32 %s, %s, %s, %s" % (Pi, B1r, Oi, Pi))
                a("v_pk_fma_f32 %s, %s, %s, %s" % (Qr, Ar, Or, Qr))
                a("v_pk_fma_f32 %s, %s, %s, %s" % (Qi, Ar, Oi, Qi))
                a("v_pk_fma_f32 %s, %s, %s, %s%s" % (Pr, B1i, Oi, Pr, n1_))
                a("v_pk_fma_f32 %s, %s, %s, %s" % (Pi, B1i, Or, Pi))
                a("v_pk_fma_f32 %s, %s, %s, %s%s" % (Qr, Ai, Oi, Qr, n1_))
                a("v_pk_fma_f32 %s, %s, %s, %s" % (Qi, Ai, Or, Qi))
                for e in range(2):
                    self.cvt(FR2 + j + e, v(k + e), "-" + v(k + 2 + e))
                    self.cvt(FR2 + 8 + j + e, v(k + 4 + e), "-" + v(k + 6 + e))
            for f in range(2):
                for p in range(2):
                    for tau in range(2):
                        for ri in range(2):
                            d = v(OUT + 16 * p + 8 * ri + 4 * tau, 4)
                            a("%s %s, %s, %s, %s" % (M16, d, v(FR2 + 8 * p + 4 * f, 4), v(F32 + ((tau * 2 + ri) * 2 + f) * 4, 4), d if f else "0"))
            for p in range(2):
                for tau in range(2):
                    o = PO + 8 * p + 4 * tau
                    for r in range(4):
                        self.cvt(o + r, v(OUT + 16 * p + 4 * tau + r), "-" + v(OUT + 16 * p + 8 + 4 * tau + r))
                    for x in self.mark(o, 14):
                        a(x)
                    a("ds_write_b128 v15, %s offset:%d" % (v(o, 4), tau * 16384 + p * 512))
            print("B2", a.flush(mf_scale=msc))

        lab = a.newlabel("NOSP")
        a("s_cmp_lg_u32 s71, 0\ns_cbranch_scc1 " + lab)
        a("v_mov_b32 v%d, 32" % TM)
        faddr(128, TM, TM + 1, TM + 2)
        fread(128)
        a("""v_lshlrev_b32 v{t}, 29, v1
        v_and_b32 v{t}, 0x80000000, v{t}
        v_and_b32 v{u}, 3, v1
        v_lshlrev_b32 v{u}, 4, v{u}
        v_xor_b32 v128, v132, v{u}
        v_and_b32 v{u}, 1, v1
        v_lshlrev_b32 v{u}, 6, v{u}
        v_xor_b32 v128, v128, v{u}
        v_subrev_u32 v128, s70, v128
        v_add_u32 v128, {sp}, v128
        v_add_u32 v5, {sp}, v2""".format(t=TM, u=TM + 1, sp=RAB + 4096))
        for j in range(8):
            a("v_xor_b32 v%d, v%d, v%d" % (FR + 8 + j, TM, FR + 8 + j))
        a("s_waitcnt lgkmcnt(0)")
        filt(FL2, DAT, False)
        a.label(lab)
        self.poll(lambda: x1load(False), lambda: sentinel(LD), VS, first_issued=True)
        if not self.opt.get("st4"):
            self.stamp()
        for i in range(4):
            a("ds_write_b128 v6, %s offset:%d" % (v(LD + 4 * i, 4), i * 128))
        a("s_waitcnt lgkmcnt(0)\ns_barrier")
        if self.opt.get("st4"):
            self.stamp()
        lab = a.newlabel("NOSP")
        a("s_cmp_lg_u32 s71, 0\ns_cbranch_scc1 " + lab)
        self.poll(lambda: x1load(True), lambda: sentinel(LD2), VS, first_issued=True)
        self.flip_marks()
        for i in range(4):
            a("ds_write_b128 v5, %s offset:%d" % (v(LD2 + 4 * i, 4), i * 1024))
        for f in range(2):
            for h in range(2):
                a("ds_read_b64_tr_b16 %s, v128 offset:%d" % (v(FR + 4 * f + 2 * h, 2), f * 2048 + h * 256))
        for f in range(2):
            a("s_waitcnt lgkmcnt(%d)" % (2 - 2 * f))
            for tau in range(2):
                for ri in range(2):
                    d = v(DAT + 8 * ri + 4 * tau, 4)
                    a("%s %s, %s, %s, %s" % (M16, d, v(F32 + ((tau * 2 + ri) * 2 + f) * 4, 4), v(FR + 4 * f, 4), d if f else "0"))
        for j in range(0, 8, 2):
            Xr, Xi, Ar, Ai = v(DAT + j, 2), v(DAT + 8 + j, 2), v(FL2 + j, 2), v(FL2 + 8 + j, 2)
            a("v_pk_mul_f32 %s, %s, %s" % (v(TM + j, 2), Ar, Xr))
            a("v_pk_mul_f32 %s, %s, %s" % (v(TM + 8 + j, 2), Ar, Xi))
            a("v_pk_fma_f32 %s, %s, %s, %s neg_lo:[1,0,0] neg_hi:[1,0,0]" % (v(TM + j, 2), Ai, Xi, v(TM + j, 2)))
            a("v_pk_fma_f32 %s, %s, %s, %s" % (v(TM + 8 + j, 2), Ai, Xr, v(TM + 8 + j, 2)))
        dpp = " row_ror:4 row_mask:0xf bank_mask:0xf"
        for k in range(2):
            for j in range(8):
                a("v_fmac_f32_dpp v%d, %sv%d, v%d%s" % (TM + j, "-" if k else "", DAT + 8 * k + j, FL2 + 16 + 8 * k + j, dpp))
                a("v_fmac_f32_dpp v%d, v%d, v%d%s" % (TM + 8 + j, DAT + 8 * (1 - k) + j, FL2 + 16 + 8 * k + j, dpp))
        for j in range(8):
            self.cvt(FR + j, v(TM + j), "-" + v(TM + 8 + j))
        for f in range(2):
            for tau in range(2):
                for ri in range(2):
                    d = v(DAT + 8 * ri + 4 * tau, 4)
                    a("%s %s, %s, %s, %s" % (M16, d, v(FR + 4 * f, 4), v(F32 + ((tau * 2 + ri) * 2 + f) * 4, 4), d if f else "0"))
        a("s_mov_b32 exec_hi, 0")
        for tau in range(2):
            o = FL2 + 4 * tau
            for r in range(4):
                self.cvt(o + r, v(DAT + 4 * tau + r), "-" + v(DAT + 8 + 4 * tau + r))
            for x in self.mark(o, 14):
                a(x)
            a("buffer_store_dwordx4 %s, v2, %s, s67 offen offset:%d sc1" % (v(o, 4), ws, tau * 512))
        a("s_mov_b32 exec_hi, -1")
        skip = a.newlabel("B2GO")
        a("s_branch " + skip)
        a.label(lab)
        self.flip_marks()
        a.label(skip)
        b2(FL, False)
        a("s_waitcnt lgkmcnt(0)")
        if self.opt.get("st4"):
            self.stamp()
        a("s_barrier")
        if not self.opt.get("st4"):
            self.stamp()
        hintx(4)
        ST = LD
        for i in range(4):
            a("ds_read_b128 %s, v%d offset:%d" % (v(ST + 4 * i, 4), 135 + i if i else 7, i * 1024))
        for i in range(4):
            a("s_waitcnt lgkmcnt(%d)" % (3 - i))
            a("buffer_store_dwordx4 %s, v%d, %s, s66 offen sc1" % (v(ST + 4 * i, 4), MB[i], ws))
        self.stamp()
        lab = a.newlabel("NONOTE")
        a("s_or_b32 s56, s60, s3\ns_cbranch_scc1 " + lab)
        a("v_mov_b32 v140, s6\nv_mov_b32 v141, s7\nv_lshlrev_b32 v142, 3, v12")
        a("buffer_store_dwordx2 v[140:141], v142, %s, 0 offen offset:%d sc1" % (ws, WS_NOTE))
        a.label(lab)
        a.label("WB_1")
        a("s_mov_b32 s34, 0")
        self.pad_stamps(9)

        a.label("B3_ENTRY")
        G16 = F16
        a("v_lshlrev_b32 v2, 4, v1\nv_add_u32 v131, %d, v2" % TB)
        tab(RA, 24, 4)
        tab(CS, TQ_CS, 8)
        tab(TWX, TQ_TW3, 4)
        a("""v_lshrrev_b32 v4, 5, v1
        v_and_b32 v5, 31, v1
        v_and_b32 v12, 15, v1
        v_lshrrev_b32 v13, 4, v1
        v_lshl_add_u32 v132, v4, 3, s3
        v_xor_b32 v8, s60, v132
        v_lshlrev_b32 v132, 15, v132
        v_lshl_add_u32 v132, v5, 4, v132
        v_lshl_add_u32 v132, v8, 9, v132
        v_xor_b32 v133, 0x82000, v132
        v_xor_b32 v134, 0x104000, v132
        v_xor_b32 v135, 0x186000, v132
        v_lshl_add_u32 v10, s3, 5, v5
        v_lshlrev_b32 v130, 13, v4
        v_add_u32 v130, %d, v130
        v_lshl_add_u32 v9, v10, 4, v130
        v_sub_u32 v10, 0, v10
        v_and_b32 v10, 0x1ff, v10
        v_lshl_add_u32 v10, v10, 4, v130
        s_lshr_b32 s63, s3, 2
        s_lshl_b32 s63, s63, 13
        s_and_b32 s64, s3, 3
        s_lshl2_add_u32 s63, s64, s63
        s_add_u32 s63, s63, %d
        v_lshlrev_b32 v8, 11, v13
        v_lshl_add_u32 v8, v12, 4, v8
        v_add_u32 v8, s63, v8
        s_lshl_b32 s63, s3, 11
        s_add_u32 s63, s63, %d
        v_bfe_u32 v5, v1, 2, 1
        v_lshlrev_b32 v5, 1, v5
        v_xor_b32 v5, v5, v13
        v_lshlrev_b32 v5, 3, v5
        v_lshl_add_u32 v5, v12, 5, v5
        v_add_u32 v5, s63, v5
        v_bfe_u32 v6, v1, 3, 1
        v_lshlrev_b32 v6, 4, v6
        v_xor_b32 v6, v6, v2
        v_add_u32 v6, s63, v6
        s_lshl_b32 s64, s3, 6
        s_add_u32 s64, s64, s60
        s_add_u32 s64, s64, s34
        s_lshl_b32 s64, s64, 11
        s_add_u32 s66, s64, 0x200000
        s_mov_b32 s56, 0.5
        s_mov_b32 s57, 0.5
        s_cmp_eq_u32 s3, 0
        s_cselect_b32 s68, -2, -1
        s_mov_b32 s69, s68
        s_lshr_b32 s63, s60, 5
        s_and_b32 s65, s60, 1
        s_lshl1_add_u32 s63, s63, s65
        s_bfe_u32 s65, s60, 0x40001
        s_lshl4_add_u32 s63, s63, s65
        v_and_b32 v11, 7, v1
        v_xor_b32 v11, s63, v11
        v_lshlrev_b32 v11, 4, v11
        v_lshl_add_u32 v11, v4, 10, v11
        s_mov_b32 s63, 0x%x
        s_mov_b32 s65, 0x%x""" % (ZB, ZB, WB, WS_X2S, WS_X2S + 4096))
        lab = a.newlabel("NOGO")
        a("s_cmp_eq_u32 s34, 0\ns_cbranch_scc1 " + lab)
        self.poll(lambda: a("buffer_load_dwordx2 v[140:141], off, %s, s62 sc1" % ws),
                  lambda: a("v_xor_b32 v%d, s6, v140\nv_bitop3_b32 v%d, v%d, v141, s7 bitop3:0xf6" % (VS, VS, VS)), VS)
        a.label(lab)
        a("s_mov_b32 s62, 0x%x" % WS_X1)
        RE, ZP, XS = T + 16, T + 48, LD2

        def radix_inv(x):
            for f in range(4):
                d = v(RE, 16)
                a("%s %s, %s, %s, %s" % (M32, d, v(RA + 4 * f, 4), v(x + 4 * f, 4), d if f else "0"))

        def average():
            a("s_mov_b32 exec_lo, 1\ns_mov_b32 exec_hi, 1")
            for j in (0, 2):
                a("v_pk_add_f32 %s, %s, %s" % (v(RE + j, 2), v(RE + j, 2), v(RE + 8 + j, 2)))
                a("v_pk_add_f32 %s, %s, %s neg_lo:[0,1] neg_hi:[0,1]" % (v(RE + 4 + j, 2), v(RE + 4 + j, 2), v(RE + 12 + j, 2)))
            for j in range(0, 8, 2):
                a("v_pk_mul_f32 %s, %s, s[56:57]" % (v(RE + j, 2), v(RE + j, 2)))

        def extra_tile():
            radix_inv(XS)
            average()
            for r in range(4):
                self.cvt(ZP + 8 + r, v(RE + r), v(RE + 4 + r))
            a("ds_write_b128 v130, %s offset:4096" % v(ZP + 8, 4))
            a("s_mov_b64 exec, -1")

        xsload = lambda: [a("buffer_load_dwordx4 %s, v11, %s, s%d offen offset:%d sc1" % (v(XS + 4 * f, 4), ws, 65 if f >> 1 else 63, (f & 1) * 2048)) for f in range(4)]
        x2load = lambda: [a("buffer_load_dwordx4 %s, v%d, %s, s62 offen sc1" % (v(XF + 4 * f, 4), 132 + f, ws)) for f in range(4)]
        lab = a.newlabel("NODR")
        a("s_and_b32 s15, s60, 7\ns_cmp_eq_u32 s15, 7\ns_cbranch_scc1 " + lab)
        a("s_waitcnt vmcnt(%d)" % self.opt.get("xdr", 0))
        self.diag_delay("d_x2")
        a.label(lab)
        x2load()
        lab = a.newlabel("NOX")
        a("s_cmp_lg_u32 s3, %d\ns_cbranch_scc1 %s" % (XW3, lab))
        xsload()
        a.label(lab)
        a("s_waitcnt lgkmcnt(0)")
        self.stamp()
        a.label("WC_0")
        self.poll(x2load, lambda: sentinel(XF), VS, first_issued=True)
        self.stamp()
        radix_inv(XF)
        lab = a.newlabel("NOAVG")
        a("s_nop 9")
        a("s_cmp_lg_u32 s3, 0\ns_cbranch_scc1 " + lab)
        average()
        a("s_mov_b64 exec, -1")
        a.label(lab)
        for r in range(4):
            self.cvt(ZP + r, v(RE + r), v(RE + 4 + r))
        a("ds_write_b128 v9, %s" % v(ZP, 4))
        for r in range(4):
            self.cvt(ZP + 4 + r, v(RE + 8 + r), "-" + v(RE + 12 + r))
        a("s_mov_b64 exec, s[68:69]")
        a("ds_write_b128 v10, %s" % v(ZP + 4, 4))
        a("s_mov_b64 exec, -1")
        lab = a.newlabel("NOX")
        a("s_cmp_lg_u32 s3, %d\ns_cbranch_scc1 %s" % (XW3, lab))
        self.poll(xsload, lambda: sentinel(XS), VS, first_issued=True)
        extra_tile()
        a.label(lab)
        a("s_waitcnt lgkmcnt(0)\ns_barrier")
        self.stamp()
        a.capture(ls & 4)
        ZF = T
        for tau in range(2):
            for j in range(2):
                a("ds_read2st64_b32 %s, v8 offset0:%d offset1:%d" % (v(ZF + 4 * tau + 2 * j, 2), tau + 4 * j, tau + 4 * j + 2))
        for tau in range(2):
            a("s_waitcnt lgkmcnt(%d)" % (2 - 2 * tau))
            a("%s %s, %s, %s, 0" % (M16, v(T1 + 4 * tau, 4), v(ZF + 4 * tau, 4), v(G16, 4)))
            a("%s %s, %s, %s, 0" % (M16, v(T1 + 8 + 4 * tau, 4), v(ZF + 4 * tau, 4), v(G16 + 4, 4)))
        O4 = T + 80
        twiddle(T1, [TW0, TWX], T + 64, True)
        for j in range(8):
            self.cvt(U + j, v(T1 + 2 * j), v(T1 + 2 * j + 1))
        stage_cs(U, U + 4, O4, True)
        fl = self.opt.get("outflag", "sc1")
        for ri in range(2):
            for tau in range(2):
                o = O4 + 8 * ri + 4 * tau
                d = T + 8 + 4 * ri + 2 * tau
                self.cvt(d, v(o), v(o + 1))
                self.cvt(d + 1, v(o + 2), v(o + 3))
                a("ds_write_b64 v5, %s offset:%d" % (v(d, 2), ri * 1024 + tau * 512))
            a("ds_read_b128 %s, v6 offset:%d" % (v(T1 + 16 + 4 * ri, 4), ri * 1024))
        for ri in range(2):
            a("s_waitcnt lgkmcnt(%d)" % (3 - 3 * ri))
            a("buffer_store_dwordx4 %s, v2, %s, s%d offen offset:1024 %s" % (v(T1 + 16 + 4 * ri, 4), s(self.rOUT, 4), 64 + 2 * ri, fl))
        print("B3", a.flush(mf_scale=msc))
        self.end()


TQ_CS, TQ_TW0, TQ_TW1, TQ_TW3, TQ_F32, TQ_OM = 0, 6, 8, 12, 16, 20


def make_table():
    import numpy as np
    from emu import bf16_rne
    l = np.arange(64)
    c, g = l & 15, l >> 4
    pk = lambda x, y: (bf16_rne(np.float32(x)) | (bf16_rne(np.float32(y)) << 16)).astype(np.uint32)
    fl = lambda x: np.float32(x).view(np.uint32)
    cs = lambda a_: (np.cos(2 * np.pi * a_), np.sin(2 * np.pi * a_))
    idx2 = [16 * (t >> 2) + 4 * g + (t & 3) for t in range(8)]
    R = []
    C = [[cs((c + 16 * tau) * idx2[t] / 32.0) for t in range(8)] for tau in range(2)]
    for k, sg in ((0, 1), (1, 1), (1, -1)):
        for tau in range(2):
            for j in range(4):
                R.append(pk(sg * C[tau][2 * j][k], sg * C[tau][2 * j + 1][k]))

    def tw(angs):
        for k in range(2):
            for x in angs:
                R.append(fl(cs(x)[k]))
    tw([c * idx2[r] / 512.0 for r in range(4)])
    tw([(c + 16) * idx2[r] / 512.0 for r in range(4)])
    H = [cs(c * idx2[x] / 16.0) for x in range(4)]
    R += [pk(H[0][0], H[1][0]), pk(H[2][0], H[3][0]), pk(H[0][1], H[1][1]), pk(H[2][1], H[3][1])]
    R += [pk(-H[0][1], -H[1][1]), pk(-H[2][1], -H[3][1]), pk(H[0][0], H[1][0]), pk(H[2][0], H[3][0])]
    tw([c * idx2[4 + r] / 512.0 for r in range(4)])
    sc = 2.0 ** -20
    R += [pk(sc * H[x][0], -sc * H[x][1]) for x in range(4)] + [pk(sc * H[x][1], sc * H[x][0]) for x in range(4)]
    R += [pk(C[0][t][0], C[0][t][1]) for t in range(8)] + [pk(-C[0][t][1], C[0][t][0]) for t in range(8)]
    for k in range(2):
        for t in range(8):
            R.append(fl(cs(idx2[t] / 64.0)[k]))
    R = np.array(R, np.uint32)
    assert R.shape == (96, 64)
    return np.ascontiguousarray(R.reshape(24, 4, 64).transpose(0, 2, 1)).reshape(-1)


def _sym_add(line, emuval=0):
    ins = Ins(line.rsplit(",", 1)[0] + ", %d" % emuval)
    ins.line = line
    return ins


NOTES = """;
; One persistent launch, 256 workgroups x 8 waves (one per CU), generated by my own script. Roles by workgroup id:
; Hand-offs: write-through (sc1) stores, sc1 polling loads. Payload validates itself: the two bf16 mantissa LSBs of every
; All polls are bounded. TABLE (after the code) holds the constant DFT / twiddle fragments.
"""


def generate(stamps=False, opt=None):
    g = G(stamps, opt)
    a = g.build()
    nv = a.maxreg("v") + 1
    ns = a.maxreg("s") + 1
    tb = make_table()
    tail = ".p2align 8\n.type TABLE,@object\nTABLE:\n"
    for i in range(0, len(tb), 8):
        tail += ".long " + ",".join("0x%08x" % x for x in tb[i:i + 8]) + "\n"
    tail += ".size TABLE, %d\n" % (4 * len(tb))
    render = lambda: wrap(a.render() + tail, 256, 512, LDS_SIZE, nv, ns, NOTES)
    if g.opt.get("align", 1):
        from align import align
        print("align:", align(a, render, g.opt.get("minrun", 6)))
    return a, render()


if __name__ == "__main__":
    stamps = "--stamps" in sys.argv
    opt = {}
    for x in sys.argv[1:]:
        if x.startswith("--") and "=" in x:
            k, val = x[2:].split("=", 1)
            opt[k] = int(val) if val.lstrip("-").isdigit() else val
    a, txt = generate(stamps, opt)
    out = [x for x in sys.argv[1:] if not x.startswith("--")]
    open(out[0] if out else "k.s", "w").write(txt)
    print("instructions:", sum(1 for k, _ in a.items if k == "i"), "vgpr", a.maxreg("v") + 1, "sgpr", a.maxreg("s") + 1)
```

```python
import sys
from asmlib import *
from common import wrap

WS_EP = 0x0
WS_GO = 0x1000
WS_NOTE = 0x800
WS_RED = 0x10000
RED_STRIDE = 0x4800
WS_X2S = 0x60000
WS_PART = 0x80000
PLINE = 1152
WS_PQ = 0x200000
WS_X1 = 0x400000
WS_STAMP = 0x1000000
WS_SIZE = 0x10000000
LDS_SIZE = 160 * 1024
TAGC_LO, TAGC_HI = 0x1E3779B1, 0x05EBCA6B
POLL_LIMIT = 1 << 18
M16 = "v_mfma_f32_16x16x32_bf16"
M32 = "v_mfma_f32_32x32x16_bf16"
XB, ZB, WB, TB = 0, 32768, 65536, 131072
RAB = TB + 24576


class G:
    def __init__(self, stamps=False, opt=None):
        self.a = Asm()
        self.stamps = stamps
        self.opt = opt or {}
        self.nst = 0
        self.role = ""

    sW = 3
    sTL, sTH = 6, 7
    sCNT = 12
    pXA, pWQ, pWO, pXB, pWR, pWI, pOUT, pDBG, pWS = 16, 18, 20, 22, 24, 26, 28, 30, 32
    rWS, rOUT, rA, rB, rC = 36, 40, 44, 48, 52
    sST = 72
    LT = [16, 17, 0, 1]

    def stamp(self):
        if self.opt.get("jit"):
            a = self.a
            self.jn = getattr(self, "jn", 0) + 1
            lab, done = a.newlabel("JL"), a.newlabel("JD")
            a("s_memrealtime s[72:73]\ns_waitcnt lgkmcnt(0)\ns_lshr_b32 s72, s72, 9\ns_lshl3_add_u32 s73, s2, s3\ns_add_u32 s73, s73, %d\ns_xor_b32 s72, s72, s73\ns_mul_i32 s72, s72, 0x9e3779b1\ns_lshr_b32 s72, s72, 26" % (self.jn * 977))
            a("s_cmp_lt_u32 s72, %d\ns_cbranch_scc1 %s\ns_sub_u32 s72, s72, %d" % (64 - self.opt["jit"], done, 63 - self.opt["jit"]))
            a.label(lab)
            a("s_sleep 40\ns_sub_u32 s72, s72, 1\ns_cmp_lg_u32 s72, 0\ns_cbranch_scc1 " + lab)
            a.label(done)
            return
        pr = self.opt.get("probe")
        if pr:
            if "%s:%d" % (self.role, self.nst) in pr.split("+"):
                self.a("s_memrealtime s[76:77]\ns_waitcnt lgkmcnt(0)")
            self.nst += 1
            return
        if not self.stamps:
            return
        k = self.nst
        assert k < 15
        self.a("%s %s\ns_waitcnt lgkmcnt(0)" % ("s_memtime" if self.opt.get("cyc") else "s_memrealtime", s(self.sST + 2 * k, 2)))
        self.nst += 1

    def end(self):
        a = self.a
        if self.opt.get("skew") is not None and self.role == "K":
            ws = s(self.rWS, 4)
            l1, l2 = a.newlabel("SK"), a.newlabel("SK")
            a("s_waitcnt lgkmcnt(0)\ns_cmp_lg_u32 s5, 0\ns_cbranch_scc1 %s\ns_cmp_lg_u32 s3, 4\ns_cbranch_scc1 %s\ns_cmp_lg_u32 s4, 0\ns_cbranch_scc1 %s" % (l2, l2, l1))
            a("v_mov_b32 v6, s72\nv_mov_b32 v7, s6\nbuffer_store_dwordx2 v[6:7], off, %s, 0 offset:0x400 sc1" % ws)
            a.label(l1)
            a("s_cmp_lg_u32 s4, %d\ns_cbranch_scc1 %s" % (self.opt["skew"], l2))
            self.poll(lambda: a("buffer_load_dwordx2 v[6:7], off, %s, 0 offset:0x400 sc1" % ws), lambda: a("v_xor_b32 v12, s6, v7"), 12)
            a("v_readfirstlane_b32 s76, v6\ns_sub_u32 s76, s72, s76\ns_add_u32 s76, s76, 200\ns_lshl_b32 s76, s76, 1\ns_add_u32 s76, s76, s72")
            a.label(l2)
        if self.opt.get("probe"):
            self.stamp()
            lab = a.newlabel("SPIN")
            a("s_waitcnt lgkmcnt(0)\ns_sub_u32 s76, s76, s72\ns_lshl_b32 s76, s76, 2\ns_add_u32 s76, s76, 2000\ns_min_u32 s76, s76, 20000")
            a.label(lab)
            a("s_memrealtime s[74:75]\ns_waitcnt lgkmcnt(0)\ns_sub_u32 s74, s74, s72\ns_cmp_lt_u32 s74, s76\ns_cbranch_scc1 %s" % lab)
        if self.stamps:
            self.stamp()
            a("s_waitcnt vmcnt(0)")
            self.stamp()
            a("s_mov_b64 exec, 1")
            a("s_lshl3_add_u32 s56, s5, s4\ns_lshl_b32 s56, s56, 3\ns_add_u32 s56, s56, s3\ns_lshl_b32 s56, s56, 6\ns_add_u32 s56, s56, 0x%x" % WS_STAMP)
            a("v_mov_b32 v2, 0")
            for k in range(self.nst):
                a("v_mov_b32 v3, s%d\nbuffer_store_dword v3, v2, %s, s56 offen offset:%d" % (self.sST + 2 * k, s(self.rWS, 4), 4 * k))
            a("v_mov_b32 v3, %d\nbuffer_store_dword v3, v2, %s, s56 offen offset:60" % (self.nst, s(self.rWS, 4)))
            if self.opt.get("fine") and self.role == "K":
                for k in range(1, 6):
                    a("v_mov_b32 v3, s%d\nbuffer_store_dword v3, v2, %s, s56 offen offset:%d" % (88 + 2 * k + (2 if False else 0), s(self.rWS, 4), 36 + 4 * k))
            if self.opt.get("cnt"):
                a("v_mov_b32 v3, s100\nbuffer_store_dword v3, v2, %s, s56 offen offset:56" % s(self.rWS, 4))
            if self.opt.get("xcc"):
                a("s_getreg_b32 s57, hwreg(HW_REG_XCC_ID)\ns_getreg_b32 s58, hwreg(HW_REG_HW_ID)\ns_lshl_b32 s57, s57, 24\ns_and_b32 s58, s58, 0xffffff\ns_or_b32 s57, s57, s58\nv_mov_b32 v3, s57\nbuffer_store_dword v3, v2, %s, s56 offen offset:56" % s(self.rWS, 4))
        a("s_endpgm")

    def pad_stamps(self, n):
        while (self.stamps or self.opt.get("probe")) and self.nst < n:
            if self.stamps:
                self.a("s_mov_b32 s%d, s%d" % (self.sST + 2 * self.nst, self.sST + 2 * self.nst - 2))
            self.nst += 1

    def srd(self, r, p, size):
        self.a("s_mov_b32 s%d, s%d\ns_mov_b32 s%d, s%d\ns_mov_b32 s%d, 0x%x\ns_mov_b32 s%d, 0x20000" % (r, p, r + 1, p + 1, r + 2, size, r + 3))

    def tags(self):
        t = self.LT
        self.a("""s_add_u32 s8, s8, 0x%x
        s_addc_u32 s9, s9, 0x%x
        s_and_b32 s6, s8, 0xbfffbfff
        s_and_b32 s7, s9, 0xbfffbfff
        s_bitcmp1_b32 s8, 0
        s_cselect_b32 s%d, 0x10001, 0
        s_xor_b32 s%d, s%d, 0x10000
        s_xor_b32 s%d, s%d, 0x10001
        s_xor_b32 s%d, s%d, 1""" % (TAGC_LO, TAGC_HI, t[0], t[1], t[0], t[2], t[0], t[3], t[0]))

    def flip_marks(self):
        for r in self.LT:
            self.a("s_xor_b32 s%d, s%d, 1" % (r, r))

    def mark(self, base, vmask):
        return ["v_and_or_b32 v%d, v%d, v%d, s%d" % (base + e, base + e, vmask, self.LT[e]) for e in range(4)]

    def markcheck(self, base, n, vacc):
        a = self.a
        X = [self.LT[0], self.LT[3], self.LT[2], self.LT[1]]
        for i in range(0, n, 2):
            a("v_xor_b32 v%d, s%d, v%d" % (base + i, X[i & 3], base + i))
            a("v_xor_b32 v%d, s%d, v%d" % (base + i + 1, X[(i + 1) & 3], base + i + 1))
            if i:
                a("v_bitop3_b32 v%d, v%d, v%d, v%d bitop3:0xfd" % (vacc, vacc, base + i, base + i + 1))
            else:
                a("v_bitop3_b32 v%d, v%d, v%d, v%d bitop3:0xfd" % (vacc, base, base, base + 1))
        a("v_and_b32 v%d, 0x10001, v%d" % (vacc, vacc))

    def tagcheck(self, pieces, vacc):
        a = self.a
        for i, p in enumerate(pieces):
            if i == 0:
                a("v_xor_b32 v%d, s%d, v%d" % (vacc, self.sTL, p + 1))
            else:
                a("v_bitop3_b32 v%d, v%d, v%d, s%d bitop3:0xf6" % (vacc, vacc, p + 1, self.sTL))
            a("v_bitop3_b32 v%d, v%d, v%d, s%d bitop3:0xf6" % (vacc, vacc, p + 3, self.sTH))

    def poll(self, issue, check, vacc, first_issued=False):
        a = self.a
        top, done, chk = a.newlabel("POLL"), a.newlabel("DONE"), a.newlabel("CHK")
        a("s_mov_b32 s%d, 0x%x" % (self.sCNT, POLL_LIMIT))
        if first_issued:
            a("s_branch " + chk)
        a.label(top)
        issue()
        if first_issued:
            a.label(chk)
        a("s_waitcnt vmcnt(0)")
        check()
        a("v_cmp_ne_u32 vcc, 0, v%d" % vacc)
        a("s_cbranch_vccz " + done)
        a("s_sleep %d" % self.opt.get("sl", 2))
        a("s_sub_u32 s%d, s%d, 1" % (self.sCNT, self.sCNT))
        a("s_cbranch_scc0 " + top)
        a.label(done)
        if self.opt.get("cnt"):
            a("s_sub_u32 s101, 0x%x, s12\ns_min_u32 s101, s101, 15\ns_lshl_b32 s100, s100, 4\ns_or_b32 s100, s100, s101" % POLL_LIMIT)

    def diag_delay(self, name):
        n = self.opt.get(name, 0)
        if n:
            self.a("s_sleep %d" % n)

    def cvt(self, d, x, y):
        self.a("v_cvt_pk_bf16_f32 v%d, %s, %s" % (d, x, y))

    def build(self):
        a = self.a
        a.label("CODE0")
        if self.opt.get("probe"):
            a("s_memrealtime s[72:73]\ns_memrealtime s[76:77]")
            self.nst = 1
        if self.stamps:
            a("%s %s" % ("s_memtime" if self.opt.get("cyc") else "s_memrealtime", s(self.sST, 2)))
            self.nst = 1
        if self.opt.get("cnt"):
            a("s_mov_b32 s100, 0")
        a("""v_lshrrev_b32 v2, 6, v0
        v_and_b32 v1, 63, v0
        s_and_b32 s4, s2, 7
        v_readfirstlane_b32 s3, v2
        s_lshr_b32 s5, s2, 3
        s_cmp_ge_u32 s5, 32
        s_cbranch_scc1 EXIT
        ROT""".replace("ROT", "s_cmp_lt_u32 s5, 24\ns_cbranch_scc1 NOT_B" if self.opt.get("rot", 24) == 0 else "s_sub_u32 s5, s5, 8\ns_cbranch_scc0 NOT_B"))
        n0 = self.nst
        self.b_head()
        a.label("EXIT")
        a("s_endpgm")
        a.label("NOT_B")
        a("s_cmp_ge_u32 s3, 4\ns_cbranch_scc1 LOADER")
        pc = a.newlabel("PC")
        if self.opt.get("pfs", 1):
            a("s_cmp_lg_u32 s3, 0\ns_cbranch_scc1 COMPUTE\ns_getpc_b64 s[56:57]")
            a.label(pc)
            a.items.append(("i", _sym_add("s_mov_b32 s58, ROLE_B-4-%s" % pc)))
            a("v_and_b32 v3, 7, v1\nv_mul_u32_u24 v3, 24, v3\nv_add_lshl_u32 v3, v3, s5, 7\nv_min_u32 v4, s58, v3\nv_mov_b32 v5, 0\nv_lshl_add_u64 v[4:5], v[4:5], 0, s[56:57]\nglobal_load_dword v0, v[4:5], off\ns_branch COMPUTE")
        else:
            a("s_cmp_eq_u32 s3, 3\ns_cbranch_scc1 COMPUTE\ns_getpc_b64 s[56:57]")
            a.label(pc)
            a.items.append(("i", _sym_add("s_mov_b32 s58, ROLE_B-4-%s" % pc)))
            a("v_lshlrev_b32 v3, 7, v0\nv_min_u32 v4, s58, v3\nv_mov_b32 v5, 0\nv_lshl_add_u64 v[4:5], v[4:5], 0, s[56:57]\nglobal_load_dword v0, v[4:5], off\ns_branch COMPUTE")
        a.label("LOADER")
        self.loader()
        self.nst = n0
        self.compute()
        self.nst = n0
        self.role_b()
        a.label("CODE_END")
        prot = [0, 1, 3, 4, 5, 60, 61, 70] + list(range(72, 102))
        if self.opt.get("walk", 0) & 1:
            a.walkify("WA_0", "WA_1", 3, "WRET_A", prot, "WKA")
            a.walkify("WL_0", "WL_1", 1, "WRET_A", prot, "WKL")
            a.walkify("WQ_0", "WQ_1", 2, "WRET_A", prot, "WKQ")
            a.walkify("WR_0", "WR_1", 1, "WRET_A", prot, "WKR")
        if self.opt.get("walk", 0) & 2:
            a.walkify("WB_0", "WB_1", 6, "WRET_B", prot, "WKB")
            a.walkify("WC_0", "WC_1", 1, "WRET_C", prot, "WKC")
        bad = a.check_branches()
        assert not bad, bad
        return a

    KARG = "s_load_dwordx16 s[16:31], s[0:1], 0\ns_load_dwordx2 s[32:33], s[0:1], 64"

    def b_head(self):
        a = self.a
        lab = a.newlabel("PC")
        a("s_load_dwordx2 s[44:45], s[0:1], 24")
        a("s_getpc_b64 s[56:57]")
        a.label(lab)
        a.items.append(("i", _sym_add("s_add_u32 s58, s56, TABLE-%s" % lab, 0x8000)))
        a("""s_addc_u32 s59, s57, 0
        v_lshlrev_b32 v2, 4, v1
        s_mul_i32 s66, s3, 3072
        v_add_u32 v6, s66, v2
        v_mov_b32 v7, 0
        v_lshl_add_u64 v[6:7], v[6:7], 0, s[58:59]
        s_add_u32 m0, s66, %d
        s_and_b32 s5, s5, 31""" % TB)
        for q in range(3):
            a("global_load_lds_dwordx4 v[6:7], off offset:%d" % (q * 1024))
        a("""s_and_b32 s61, s5, 7
        s_lshl3_add_u32 s60, s4, s61
        s_lshl_b32 s62, s3, 7
        s_add_u32 s62, s62, s60
        s_lshl_b32 s62, s62, 10
        s_add_u32 s63, s62, 0x%x
        s_add_u32 s64, s62, 0x%x
        s_add_u32 s65, s62, 0x%x
        s_lshl_b32 s70, s3, 12
        s_mov_b32 m0, s70
        s_mov_b32 s46, 0x200000
        s_mov_b32 s47, 0x20000
        s_waitcnt lgkmcnt(0)""" % (0x100000 - 1024, 0x10000 - 2048, 0x110000 - 3072))
        for q in range(4):
            a("buffer_load_dwordx4 v2, %s, s%d offen offset:%d nt lds" % (s(self.rA, 4), 62 + q, q * 1024))
        a("s_cmp_ge_u32 s3, %d\ns_cbranch_scc1 ROLE_B" % (1 if self.opt.get("pfb", 1) else 2))
        a.items.append(("i", _sym_add("s_add_u32 s56, s56, ROLE_B-%s" % lab)))
        a("s_addc_u32 s57, s57, 0")
        a.items.append(("i", _sym_add("s_mov_b32 s58, CODE_END-4-ROLE_B")))
        if self.opt.get("pfb", 1):
            a("v_and_b32 v3, 15, v1\nv_lshlrev_b32 v3, 3, v3\nv_add_lshl_u32 v3, v3, s61, 7")
        else:
            a("v_lshlrev_b32 v3, 7, v0")
        a("v_min_u32 v4, s58, v3\nv_mov_b32 v5, 0\nv_lshl_add_u64 v[4:5], v[4:5], 0, s[56:57]\nglobal_load_dword v0, v[4:5], off")
        a("s_branch ROLE_B")

    def loader(self):
        a = self.a
        ws = s(self.rWS, 4)
        self.role = "L"
        vX, vW = 4, 8
        a("""s_load_dwordx4 s[44:47], s[0:1], 0
        s_lshr_b32 s60, s4, 1
        s_and_b32 s63, s5, 3
        s_lshl2_add_u32 s60, s60, s63
        s_bfe_u32 s65, s5, 0x20002
        s_lshr_b32 s66, s5, 4
        s_lshl_b32 s70, s65, s66
        s_add_u32 s70, s70, s63
        s_and_b32 s70, s70, 3
        s_and_b32 s71, s70, 1
        XROT
        s_xor_b32 s70, s70, s13
        s_xor_b32 s71, s71, s13
        s_sub_u32 s58, s3, 4
        s_lshl2_add_u32 s63, s60, s58
        s_lshl_b32 s63, s63, 15
        v_lshrrev_b32 v2, 3, v1
        v_lshrrev_b32 v3, 4, v1
        v_and_b32 v12, 7, v1
        v_xor_b32 v12, v12, v3
        v_lshl_add_u32 v12, v12, 4, s63
        v_lshl_add_u32 v4, v2, 10, v12
        v_xor_b32 v5, 64, v4
        v_add_u32 v5, 0x1c00, v5
        v_add_u32 v6, 0x3800, v4
        v_add_u32 v7, 0x3800, v5
        s_lshl_b32 s59, s58, 12""".replace("XROT", {0: "s_mov_b32 s13, 0",
            1: "s_lshl_b32 s13, s4, 2\ns_xor_b32 s13, s13, s4\ns_and_b32 s13, s13, 6",
            2: "s_lshl_b32 s13, s4, 2\ns_xor_b32 s13, s13, s4\ns_and_b32 s13, s13, 4",
            3: "s_lshl_b32 s13, s4, 1\ns_lshr_b32 s14, s4, 1\ns_xor_b32 s13, s13, s14\ns_and_b32 s13, s13, 3",
            4: "s_lshl_b32 s13, s66, 1"}[self.opt.get("xrot", 2)]))

        def kchunk(c):
            base = 0
            for r in [int(x) for x in str(self.opt.get("rounds", 44))]:
                if c < base + r:
                    break
                base += r
            src = {4: "s70", 2: "s71", 1: "s13"}[r]
            assert base % r == 0
            a("s_xor_b32 s62, %s, %d" % (src, c))

        def issue_x(c):
            a("s_add_u32 m0, s59, %d" % ((c % 5) * 32768))
            kchunk(c)
            a("s_lshl_b32 s63, s62, 7")
            if c == 0:
                a("s_waitcnt lgkmcnt(0)\ns_mov_b64 s[48:49], s[46:47]\ns_mov_b32 s46, 0x200000\ns_mov_b32 s47, 0x20000")
            for j in range(4):
                a("buffer_load_dwordx4 v%d, %s, s63 offen offset:%d lds" % (vX + j, s(self.rA, 4), j * 1024))

        def issue_w(c):
            a("s_add_u32 m0, s59, %d" % ((c % 5) * 32768 + 16384))
            a("s_mul_i32 s64, s62, 0x30000")
            for j in range(4):
                a("buffer_load_dwordx4 v%d, %s, s64 offen offset:%d lds" % (vW + j, s(self.rB, 4), j * 1024))

        def issue(c):
            issue_x(c)
            issue_w(c)

        issue_x(0)
        a(self.KARG)
        a("""s_and_b32 s64, s4, 1
        s_lshl2_add_u32 s61, s64, s65
        s_lshl1_add_u32 s66, s64, s65
        s_lshl_b32 s63, s61, 7
        s_add_u32 s63, s63, 1024
        s_lshl_b32 s64, s66, 8
        s_cmp_ge_u32 s5, 16
        s_cselect_b32 s63, s64, s63
        s_cselect_b32 s64, 7, 10
        v_bfe_u32 v12, v1, 2, 2
        v_xor_b32 v12, v12, v3
        v_lshrrev_b32 v13, 1, v12
        v_lshlrev_b32 v13, s64, v13
        v_and_b32 v14, 1, v12
        v_lshl_add_u32 v13, v14, 6, v13
        v_and_b32 v14, 3, v1
        v_lshl_add_u32 v13, v14, 4, v13
        v_mul_u32_u24 v15, 0xc00, v3
        s_mul_i32 s65, s58, 0xc000
        s_add_u32 s65, s65, s63
        v_add3_u32 v8, v13, v15, s65
        v_add_u32 v9, 0x2c00, v8
        v_add_u32 v10, 0x5800, v8
        v_add_u32 v11, 0x8400, v8
        s_mov_b32 s50, 0x180000
        s_mov_b32 s51, 0x20000""")
        issue_w(0)
        H = ["x0", "w0"]
        if self.opt.get("w4e"):
            plan = [["w4", "x1"], ["w1", "x2", "w2"], ["x3", "w3"], ["x4", "x5"], ["w5", "x6"], ["w6", "x7"], ["w7"]]
            if self.opt["w4e"] == 2:
                plan = [["w4", "x1"], ["w1", "x2", "w2"], ["x3", "w3", "x4"], [], ["x5", "w5"], ["x6", "w6"], ["x7", "w7"]]
        else:
            plan = [["x1", "w1"]] + [["x%d" % k, "w%d" % k] for k in range(2, 8)]

        def half(h):
            c = int(h[1])
            if h[0] == "x":
                issue_x(c)
            else:
                if H[-1] != "x%d" % c:
                    kchunk(c)
                issue_w(c)
            H.append(h)

        half(plan[0][0])
        a("s_waitcnt lgkmcnt(0)")
        a("s_load_dwordx2 s[8:9], s[32:33], %d" % WS_EP)
        half(plan[0][1])
        self.srd(self.rWS, self.pWS, WS_SIZE)
        self.srd(self.rOUT, self.pOUT, 2048 * 2048)
        a("s_waitcnt lgkmcnt(0)")
        self.tags()
        groups = list(range(8))
        waitc = lambda c: a("s_waitcnt vmcnt(%d)\ns_barrier" % (4 * (len(H) - 1 - max(H.index("x%d" % c), H.index("w%d" % c))) + 8 * (len(groups) - 8)))
        for c in range(6):
            waitc(c)
            if c == 0:
                self.stamp()
            if self.opt.get("fine") and c:
                a("s_memtime s[%d:%d]" % (88 + 2 * c, 89 + 2 * c))
            for h in plan[c + 1]:
                half(h)
        c = 6
        cq, gq = c, list(groups)
        a("s_cmp_ge_u32 s5, 16\ns_cbranch_scc1 QLOADER")
        n0 = self.nst
        WSLOT = [3, 4, 0, 2]
        self.srd(self.rC, self.pWO, 512 * 1024)
        a("""s_and_b32 s68, s5, 3
        s_lshl_b32 s69, s58, 13
        v_lshlrev_b32 v16, 6, v12
        v_lshl_add_u32 v16, v14, 4, v16
        v_lshl_add_u32 v16, v3, 10, v16
        s_lshl_b32 s65, s58, 15
        OCCALC
        s_lshl_b32 s66, s14, 8
        s_add_u32 s65, s65, s66
        v_add_u32 v16, s65, v16
        v_add_u32 v17, 0xc00, v16
        v_add_u32 v18, 0x1800, v16
        v_add_u32 v19, 0x2400, v16""".replace("OCCALC", "s_and_b32 s14, s4, 1\ns_lshr_b32 s66, s5, 3\ns_lshl1_add_u32 s14, s14, s66" if self.opt.get("omap") else "s_lshr_b32 s14, s5, 2"))

        def issue_wo(n, sl=None):
            slot = (WSLOT[n] if sl is None else sl) * 32768
            a("s_add_u32 m0, s69, %d" % slot)
            a("s_xor_b32 s63, s68, %d\ns_lshl_b32 s63, s63, 17" % n)
            for j in range(4):
                a("buffer_load_dwordx4 v%d, %s, s63 offen offset:%d lds" % (16 + j, s(self.rC, 4), j * 1024))
            a("s_add_u32 m0, s69, %d" % (slot + 4096))
            a("s_add_u32 s63, s63, 0x4000")
            for j in range(4):
                a("buffer_load_dwordx4 v%d, %s, s63 offen offset:%d lds" % (16 + j, s(self.rC, 4), j * 1024))

        def read_wo(n, sl=None):
            ad, off = {4: (0, 0), 0: (14, 0), 1: (14, 32768), 3: (15, 32768), 2: (15, 0)}[WSLOT[n] if sl is None else sl]
            for h in range(8):
                r = 128 + 32 * n + 4 * h
                a("ds_read_b64_tr_b16 %s, v%d offset:%d" % (v(r, 2), ad, off + h * 4096))
                a("ds_read_b64_tr_b16 %s, v%d offset:%d" % (v(r + 2, 2), ad, off + h * 4096 + 2048))

        wsched = {self.opt.get("w0", 6): [0]}
        wsched.setdefault(self.opt.get("w1", 7), []).append(1)
        w2late = self.opt.get("w2late", 0)
        if not w2late:
            wsched.setdefault(7, []).append(2)
        for c in range(cq, 8):
            waitc(c)
            if c == 7:
                self.stamp()
            for n in wsched.get(c, []):
                issue_wo(n)
                groups.append("w%d" % n)
        assert len(groups) == 11 - w2late
        a.label("WL_0")
        self.wo_addr()
        self.tail_addr()
        a("s_waitcnt vmcnt(0)")
        self.stamp()
        a("s_barrier")
        if w2late:
            WSLOT[:] = [3, 4, 2, 1]
        if w2late:
            issue_wo(2)
        issue_wo(3)
        self.read_wo = read_wo
        if self.opt.get("wide"):
            for j in range(4):
                a("v_xor_b32 v%d, 0x100, v%d" % (16 + j, 16 + j))
            issue_wo(0, 1)
            for n in range(3):
                read_wo(n)
            a("s_waitcnt vmcnt(0) lgkmcnt(0)\ns_barrier")
            self.stamp()
            if self.opt["wide"] == 1:
                self.w_pqload()
            for n in range(1, 4):
                issue_wo(n, WSLOT[n - 1])
            read_wo(3)
            if self.opt["wide"] == 3:
                self.w_pqload()
                a("s_waitcnt vmcnt(4)")
            if self.opt["wide"] == 2:
                a("s_waitcnt vmcnt(0)")
        else:
            for n in range(3 - w2late):
                read_wo(n)
        a.label("WL_1")
        a("s_branch KV_TAIL")
        self.kv_tail_nst = self.nst
        self.nst = n0
        a.label("QLOADER")
        self.role = "R"
        self.reducer_setup()
        del groups[8:]
        for c in range(cq, 8):
            waitc(c)
        if self.opt.get("prewrite", 1):
            lab = a.newlabel("NOZ")
            a("s_cmp_gt_u32 s71, 8\ns_cbranch_scc1 " + lab)
            a("buffer_store_dwordx4 v[32:35], v21, %s, s67 offen sc1" % ws)
            a.label(lab)
        lab = a.newlabel("PC")
        a("s_getpc_b64 s[56:57]")
        a.label(lab)
        a.items.append(("i", _sym_add("s_add_u32 s56, s56, TABLE-%s" % lab, 0x8000)))
        a("s_addc_u32 s57, s57, 0\nv_lshlrev_b32 v2, 4, v1\nv_add_u32 v4, s59, v2\nv_mov_b32 v5, 0\nv_lshl_add_u64 v[4:5], v[4:5], 0, s[56:57]\ns_add_u32 m0, s59, %d" % TB)
        for q in range(4):
            a("global_load_lds_dwordx4 v[4:5], off offset:%d" % (q * 1024))
        self.ra_inv(1, 84)
        a("ds_write_b64 v90, v[88:89]")
        a("s_waitcnt vmcnt(0) lgkmcnt(0)\ns_barrier")
        self.stamp()
        self.reducer()

    def ra_inv(self, half, t):
        self.a("""v_and_b32 v{0}, 7, v1
        v_lshlrev_b32 v{0}, 6, v{0}
        s_add_u32 s62, s60, {h}
        v_add_u32 v{0}, s62, v{0}
        v_cvt_f32_u32 v{0}, v{0}
        v_mul_f32 v{0}, {c1}, v{0}
        s_lshr_b32 s62, s3, 1
        s_and_b32 s15, s3, 1
        s_lshl2_add_u32 s14, s62, s15
        s_lshl_b32 s14, s14, 1
        v_lshrrev_b32 v{1}, 5, v1
        v_lshl_add_u32 v{1}, v{1}, 2, s14
        v_cvt_f32_u32 v{1}, v{1}
        v_bfe_u32 v{2}, v1, 3, 1
        v_cvt_f32_u32 v{2}, v{2}
        v_mul_f32 v{2}, {c2}, v{2}
        v_fma_f32 v{1}, v{1}, v{0}, v{2}
        v_lshlrev_b32 v{2}, 27, v1
        v_and_b32 v{2}, 0x80000000, v{2}
        v_or_b32 v{2}, {c3}, v{2}
        v_add_f32 v{3}, v{1}, v{2}
        v_sub_f32 v{2}, v{0}, v{2}
        v_add_f32 v{2}, v{1}, v{2}
        v_cos_f32 v{0}, v{3}
        v_sin_f32 v{3}, v{3}
        v_cos_f32 v{1}, v{2}
        v_sin_f32 v{2}, v{2}
        s_lshl_b32 s62, s62, 10
        s_lshl3_add_u32 s62, s15, s62
        s_add_u32 s62, s62, {rab}
        v_add_u32 v{6}, s62, v2
        v_cvt_pk_bf16_f32 v{4}, v{0}, -v{3}
        v_cvt_pk_bf16_f32 v{5}, v{1}, -v{2}""".format(*[t + i for i in range(7)], h=512 * half, c1=fhex(1 / 2048), c2=fhex(-0.25),
                                                      c3=fhex(0.125), rab=RAB))

    def reducer_setup(self):
        a = self.a
        a("""s_lshl3_add_u32 s60, s4, s5
        s_sub_u32 s60, s60, 16
        s_lshr_b32 s61, s60, 2
        s_and_b32 s71, s60, 3
        s_lshl2_add_u32 s71, s58, s71
        s_mul_i32 s63, s61, %d
        s_lshl_b32 s64, s71, 7
        s_add_u32 s63, s63, s64
        s_add_u32 s63, s63, 0x%x
        s_mul_i32 s67, s61, %d
        s_add_u32 s67, s67, s64
        s_add_u32 s67, s67, 0x%x
        s_add_u32 s64, s63, %d
        s_add_u32 s65, s63, %d
        s_add_u32 s66, s63, %d""" % (32 * PLINE, WS_PART, PLINE, WS_RED, 8 * PLINE, 16 * PLINE, 24 * PLINE))
        a("""v_lshrrev_b32 v2, 3, v1
        v_and_b32 v3, 7, v1
        v_lshlrev_b32 v3, 4, v3
        v_mov_b32 v22, %d
        v_mad_u32_u24 v20, v2, v22, v3
        v_mov_b32 v22, 0x%x
        v_mad_u32_u24 v21, v2, v22, v3""" % (PLINE, RED_STRIDE))
        a("""v_and_b32 v2, 1, v1
        v_lshlrev_b32 v2, 4, v2
        v_mov_b32 v3, 0x3f80
        v_lshlrev_b32 v3, v2, v3
        v_and_b32 v2, 2, v1
        v_cmp_eq_u32 vcc, 0, v2
        v_mov_b32 v24, 0
        v_mov_b32 v25, 0
        v_mov_b32 v28, 0
        v_mov_b32 v29, 0
        v_cndmask_b32 v26, 0, v3, vcc
        v_cndmask_b32 v27, v3, v25, vcc
        v_mov_b32 v32, 0xfffefffe
        v_mov_b32 v33, 0
        v_mov_b32 v34, 0
        v_mov_b32 v35, 0""")

    def reducer(self):
        a = self.a
        ws = s(self.rWS, 4)
        D, acc, vacc, o = 40, 72, 80, 36
        lab = a.newlabel("NORED")
        n0 = self.nst
        self.pad_stamps(9)
        self.nst = n0
        a("s_cmp_gt_u32 s71, 8\ns_cbranch_scc1 HELPER")
        a.label("WR_0")
        self.diag_delay("d_part")
        self.poll(lambda: [a("buffer_load_dwordx4 %s, v20, %s, s%d offen sc1" % (v(D + 4 * i, 4), ws, 63 + i)) for i in range(4)],
                  lambda: self.markcheck(D, 16, vacc), vacc)
        self.stamp()
        for i in range(4):
            for h in range(2):
                a("%s %s, %s, %s, %s" % (M16, v(acc + 4 * h, 4), v(26 - 2 * h, 4), v(D + 4 * i, 4), v(acc + 4 * h, 4) if i else "0"))
        for r in range(8):
            a("v_add_f32_dpp v%d, v%d, v%d row_ror:8 row_mask:0xf bank_mask:0xf" % (56 + r, acc + r, acc + r))
        for j in range(4):
            self.cvt(o + j, v(56 + 2 * j), v(57 + 2 * j))
        for x in self.mark(o, 32):
            a(x)
        a("buffer_store_dwordx4 %s, v21, %s, s67 offen sc1" % (v(o, 4), ws))
        a.label("WR_1")
        self.stamp()
        self.pad_stamps(9)
        a("s_branch HELPER")

    def lds_reset(self):
        self.lq_issued = 0
        self.lq_done = 0

    def lds(self, line):
        self.a(line)
        self.lq_issued += 1
        return self.lq_issued

    def lds_wait(self, seq):
        if seq > self.lq_done:
            n = min(self.lq_issued - seq, 15)
            self.a("s_waitcnt lgkmcnt(%d)" % n)
            self.lq_done = self.lq_issued - n

    @staticmethod
    def cost(line):
        m = line.split()[0]
        if m == "MARK":
            return 0
        if m.startswith(("v_exp", "v_rcp", "v_sin", "v_cos")):
            return 8
        return 4

    def run_mfmas(self, mf, frags, pool, fillers, budget=24, maxread=2, maxout=14, hooks=None):
        a = self.a
        order = []
        last = {}
        for j, (_, ids) in enumerate(mf):
            for i in ids:
                if i not in last:
                    order.append(i)
                last[i] = j
        pool = list(pool)
        reg, seq = {}, {}
        rp = [0, 0]
        q = []

        def one_read():
            i = order[rp[0]]
            reads, pre = frags[i]
            if rp[1] == 0:
                if not pool:
                    return False
                if pre:
                    pre()
                reg[i] = pool.pop(0)
            sq = self.lds(reads[rp[1]].format(r=v(reg[i], 4), lo=v(reg[i], 2), hi=v(reg[i] + 2, 2)))
            rp[1] += 1
            if rp[1] == len(reads):
                seq[i] = sq
                rp[0] += 1
                rp[1] = 0
            return True

        while rp[0] < len(order) and self.lq_issued - self.lq_done < maxout - 2 and pool and not (rp[0] and frags[order[rp[0]]][1]):
            one_read()
        for j, (fmt, ids) in enumerate(mf):
            for i in ids:
                while i not in seq:
                    assert one_read()
            if ids:
                self.lds_wait(max(seq[i] for i in ids))
            a(fmt.format(*[v(reg[i], 4) for i in ids]))
            for i in ids:
                if last[i] == j:
                    pool.append(reg[i])
            if hooks and j in hooks:
                hooks[j]()
            b = budget
            k = 0
            while k < maxread and rp[0] < len(order) and self.lq_issued - self.lq_done < maxout:
                gate = frags[order[rp[0]]]
                if rp[1] == 0 and len(gate) > 2 and gate[2]() is False:
                    break
                if not one_read():
                    break
                k += 1
                b -= 4
            q += fillers.get(j, [])
            while q and b >= self.cost(q[0]):
                if self.opt.get("upf", 1) and q[0].startswith("v_pk_"):
                    q[0:1] = unpack_pk(q[0])
                x = q.pop(0)
                b -= self.cost(x)
                self.emit_filler(x)
            self.fq = q
        return q

    def emit_filler(self, x):
        if x == "MARK":
            pass
        elif x.startswith("ds_"):
            self.last_fill_lds = self.lds(x)
        elif x.startswith("WAITLDS"):
            self.lds_wait(self.last_fill_lds - int(x.split()[1]))
        else:
            self.a(x)

    def gemm_loop(self, acc, pool, ax, aw, xfirst, fill, Z, hooks=None):
        a = self.a
        frags, mf = {}, []
        seen = set()

        def fx(n, mb, tag):
            c, ks = n >> 2, n & 3
            slot = c % 5
            hi, so = slot >> 1, (slot & 1) * 32768
            pre = None
            if ("x", n, mb, tag) in frags:
                return ("x", n, mb, tag)
            if c not in seen:
                seen.add(c)
                pre = (lambda: a("s_barrier")) if c else None
            frags[("x", n, mb, tag)] = (["ds_read_b128 {r}, v%d offset:%d" % (ax[hi][ks], so + 4096 * mb)], pre)
            return ("x", n, mb, tag)

        def fw(n, nb):
            c, ks = n >> 2, n & 3
            slot = c % 5
            hi, so = slot >> 1, (slot & 1) * 32768 + 16384 + ks * 4096
            frags[("w", n, nb)] = (["ds_read_b64_tr_b16 {lo}, v%d offset:%d" % (aw[hi][nb], so),
                                    "ds_read_b64_tr_b16 {hi}, v%d offset:%d" % (aw[hi][nb], so + 1024)], None)
            return ("w", n, nb)

        def add(n, nbs, tag):
            X = [fx(n, 0, tag), fx(n, 1, tag)]
            for nb in nbs:
                W = fw(n, nb)
                for mb in range(2):
                    d = v(acc[mb][nb], 16)
                    mf.append(("v_mfma_f32_32x32x16_bf16 %s, %s, %s" % (d, "{0}, {1}" if xfirst else "{1}, {0}", d if n else "0"), [X[mb], W]))

        for n in range(32 - Z):
            add(n, (0, 1), 0)
        for n in range(32 - Z, 32):
            add(n, (0,), 0)
        j0 = len(mf)
        for n in range(32 - Z, 32):
            add(n, (1,), 0 if self.opt.get("keepx", 1) else 1)
        a("s_barrier")
        self.stamp()
        self.lds_reset()
        return self.run_mfmas(mf, frags, pool, {j0 + 1: fill}, hooks=hooks)

    def phi(self, src, dst, tmp, n):
        L = []
        for g in range(0, n, 8):
            for j in range(0, 8, 2):
                L.append("v_pk_mul_f32 %s, %s, s[56:57]" % (v(tmp + j, 2), v(src + g + j, 2)))
            for j in range(8):
                L.append("v_exp_f32_e64 v%d, v%d clamp" % (tmp + j, tmp + j))
                L.append("v_max_f32 v%d, s58, v%d" % (src + g + j, src + g + j))
            for j in range(0, 8, 2):
                L.append("v_pk_add_f32 %s, %s, %s" % (v(tmp + j, 2), v(tmp + j, 2), v(src + g + j, 2)))
            for j in range(0, 8, 2):
                L.append("v_cvt_pk_bf16_f32 v%d, v%d, v%d" % (dst + (g + j) // 2, tmp + j, tmp + j + 1))
        return L

    def compute(self):
        a = self.a
        ws = s(self.rWS, 4)
        a.label("COMPUTE")
        self.role = "K"
        if self.opt.get("walk", 0) & 1:
            a("""s_mov_b64 exec, 0
            s_cmp_ge_u32 s5, 16
            s_cbranch_scc1 WKQ
            s_cmp_eq_u32 s3, 0
            s_cbranch_scc1 WKA0
            s_cmp_eq_u32 s3, 1
            s_cbranch_scc1 WKA1
            s_cmp_eq_u32 s3, 2
            s_cbranch_scc1 WKA2
            s_branch WKL0""")
            a.label("WKQ")
            a("""s_cmp_eq_u32 s3, 0
            s_cbranch_scc1 WKQ0
            s_cmp_eq_u32 s3, 1
            s_cbranch_scc1 WKQ1
            s_cmp_eq_u32 s3, 2
            s_cbranch_scc1 WKR0
            s_branch WKC0""" if self.opt.get("walk", 0) & 2 else "s_cmp_eq_u32 s3, 0\ns_cbranch_scc1 WKQ0\ns_cmp_eq_u32 s3, 1\ns_cbranch_scc1 WKQ1\ns_branch WKR0")
            a.label("WRET_A")
            a("s_mov_b64 exec, -1\ns_waitcnt lgkmcnt(0)\ns_nop 15")
        ax = [[240, 241, 242, 243], [244, 245, 246, 247], [252, 253, 254, 255]]
        aw = [[248, 249], [250, 251], [146, 147]]
        a("""s_lshr_b32 s60, s4, 1
        s_and_b32 s68, s5, 3
        s_lshl2_add_u32 s60, s60, s68
        s_and_b32 s64, s4, 1
        s_bfe_u32 s65, s5, 0x20002
        s_lshl2_add_u32 s61, s64, s65
        s_lshl1_add_u32 s66, s64, s65
        s_lshr_b32 s63, s3, 1
        s_and_b32 s64, s3, 1
        s_lshr_b32 s67, s5, 4
        s_lshl_b32 s69, s64, s67
        s_movk_i32 s70, 128
        s_lshr_b32 s70, s70, s67
        s_cmp_ge_u32 s5, 16
        s_cselect_b32 s61, s66, s61
        s_mov_b32 s10, 0xffff0000
        s_mov_b32 s11, 0xffff0000""")
        a(self.KARG)
        a("""v_and_b32 v2, 31, v1
        v_lshlrev_b32 v2, 7, v2
        s_lshl_b32 s65, s63, 13
        v_add_u32 v2, s65, v2
        v_lshrrev_b32 v3, 5, v1
        v_bfe_u32 v16, v1, 1, 3
        v_xor_b32 v16, v16, v3
        v_lshl_add_u32 v240, v16, 4, v2
        v_xor_b32 v241, 32, v240
        v_xor_b32 v242, 64, v240
        v_xor_b32 v243, 96, v240""")
        a("""v_bfe_u32 v16, v1, 2, 2
        v_lshl_add_u32 v17, v3, 3, v16
        v_xor_b32 v16, s69, v16
        v_lshlrev_b32 v16, 6, v16
        v_lshl_add_u32 v16, v17, 8, v16
        v_bfe_u32 v17, v1, 4, 1
        v_lshl_add_u32 v16, v17, 5, v16
        v_and_b32 v17, 3, v1
        v_lshl_add_u32 v248, v17, 3, v16
        v_xor_b32 v249, s70, v248""")
        for k in range(4):
            a("v_add_u32 v%d, 0x10000, v%d" % (244 + k, 240 + k))
            a("v_add_u32 v%d, 0x20000, v%d" % (252 + k, 240 + k))
        a("v_add_u32 v250, 0x10000, v248\nv_add_u32 v251, 0x10000, v249\nv_add_u32 v146, 0x20000, v248\nv_add_u32 v147, 0x20000, v249")
        a("s_waitcnt lgkmcnt(0)")
        a("s_load_dwordx2 s[8:9], s[32:33], %d" % WS_EP)
        self.srd(self.rWS, self.pWS, WS_SIZE)
        self.srd(self.rOUT, self.pOUT, 2048 * 2048)
        a("s_mov_b32 s56, %s\ns_mov_b32 s57, %s\ns_mov_b32 s58, %s" % (fhex(1.4426950408889634), fhex(1.4426950408889634), fhex(1e-6)))
        a("v_lshlrev_b32 v2, 4, v1")
        acc = [[64, 96], [80, 112]]
        pool = list(range(16, 64, 4))
        Z = self.opt.get("z", 6)
        CN = 252
        a("s_cmp_ge_u32 s5, 16\ns_cbranch_scc1 QCOMPUTE")
        n0 = self.nst
        a("""s_lshl1_add_u32 s59, s61, s64
        s_lshl_b32 s59, s59, 5
        s_lshl1_add_u32 s66, s60, s63
        s_add_u32 s59, s59, s66
        s_mul_i32 s59, s59, %d
        s_add_u32 s59, s59, 0x%x""" % (PLINE, WS_PART))
        P0, P1, PZ, ONES, zaddr = 128, 132, 136, 140, 144
        pk, vv, tmp, D, D2 = 180, 196, 212, 148, 164
        for j in range(4):
            a("v_mov_b32 v%d, 0x3f803f80" % (ONES + j))

        def prewrite():
            a("buffer_store_dwordx4 %s, v2, %s, s59 offen sc1" % (v(ONES, 4), ws))
            a("s_mov_b64 exec, 0xff")
            a("buffer_store_dwordx4 %s, v2, %s, s59 offen offset:1024 sc1" % (v(ONES, 4), ws))
            a("s_mov_b64 exec, -1")

        pw = self.opt.get("prewrite", 1)
        if pw == 1:
            prewrite()
        a("""v_lshrrev_b32 v3, 4, v1
        v_and_b32 v145, 1, v1
        v_lshl_add_u32 v4, v3, 1, v145
        v_lshlrev_b32 v%d, 4, v4
        v_mov_b32 v145, 0xfffefffe
        s_mov_b32 s60, 0x00030003
        s_mov_b32 s61, 0x00030003""" % zaddr)
        self.tail_addr()
        a("s_waitcnt lgkmcnt(0)")
        self.tags()
        K0, K1, V0, V1 = acc[0][0], acc[1][0], acc[0][1], acc[1][1]
        fill = []
        for i, src in enumerate((K0, K0 + 8, K1, K1 + 8)):
            fill += self.phi(src, pk + 4 * i, tmp, 8) + ["MARK"]
        hooks = {100: lambda: a("s_waitcnt vmcnt(0)")}
        if pw > 1:
            hooks[pw] = prewrite
        big = list(range(148, 180, 4)) + list(range(220, 240, 4)) if self.opt.get("keepx", 1) else []
        hooks[128 - 2 * Z] = lambda: a.label("WA_0")
        rest = self.gemm_loop(acc, pool + big, ax, aw, True, fill, Z, hooks)
        self.stamp()
        ndone = 4 - rest.count("MARK")
        vsrc = (V0, V0 + 8, V1, V1 + 8)
        vcvt = lambda i: ["v_cvt_pk_bf16_f32 v%d, v%d, v%d" % (vv + 4 * i + j, vsrc[i] + 2 * j, vsrc[i] + 2 * j + 1) for j in range(4)]
        mD = lambda i: "%s %s, %s, %s, %s" % (M32, v(D, 16), v(pk + 4 * i, 4), v(vv + 4 * i, 4), v(D, 16) if i else "0")
        mZ = lambda i: "%s %s, %s, %s, %s" % (M32, v(D2, 16), v(pk + 4 * i, 4), v(ONES, 4), v(D2, 16) if i else "0")
        pend = [x for i in range(ndone) for x in ([mZ(i)], vcvt(i) + [mD(i)])]
        g, gap = ndone, 0
        for k, x in enumerate(rest):
            if x == "MARK":
                pend += [[mZ(g)], vcvt(g) + [mD(g)]]
                g += 1
                continue
            run = 0
            while k + run < len(rest) and rest[k + run].startswith(("v_exp", "v_max")):
                run += 1
            if pend and run >= 5 and gap <= 0:
                for y in pend.pop(0):
                    a(y)
                gap = 5
            a(x)
            gap -= 1
        cv = [y for it in pend for y in it if y.startswith("v_cvt")]
        zs = [y for it in pend for y in it if y.startswith("v_mfma") and v(ONES, 4) in y]
        ds = [y for it in pend for y in it if y.startswith("v_mfma") and v(ONES, 4) not in y]
        for y in cv[:4] + zs + cv[4:] + ds:
            a(y)
        for src, p in ((D2, PZ), (D, P0)):
            for j in range(4):
                self.cvt(p + j, v(src + 2 * j), v(src + 2 * j + 1))
            a("s_mov_b64 exec, s[10:11]")
            for j in range(4):
                self.cvt(p + j, v(src + 8 + 2 * j), v(src + 9 + 2 * j))
            a("s_mov_b64 exec, %s" % ("s[60:61]" if p == PZ else "-1"))
            for x in self.mark(p, 145):
                a(x)
            if p == PZ:
                a("buffer_store_dwordx4 %s, v%d, %s, s59 offen offset:1024 sc1" % (v(PZ, 4), zaddr, ws))
                a("s_mov_b64 exec, -1")
            else:
                a("buffer_store_dwordx4 %s, v2, %s, s59 offen sc1" % (v(p, 4), ws))
        self.stamp()
        a("s_barrier")
        if self.opt.get("wide"):
            self.wo_addr()
            if self.opt["wide"] == 1:
                a("s_waitcnt vmcnt(0)")
            a("s_barrier")
            self.stamp()
            if self.opt["wide"] == 1:
                self.w_pqload()
            self.read_wo(0, 1)
            assert self.nst == self.kv_tail_nst
            self.wide_tail()
        else:
            assert self.nst == self.kv_tail_nst
            self.kv_tail()
        a.label("WA_1")
        a("s_endpgm")
        self.nst = n0
        a.label("QCOMPUTE")
        a.unpk = False
        self.role = "Q"
        a("""s_lshl1_add_u32 s66, s60, s63
        s_lshl2_add_u32 s66, s66, s61
        s_lshl1_add_u32 s66, s66, s64
        s_lshl_b32 s65, s66, 13
        s_add_u32 s65, s65, 0x%x
        s_add_u32 s67, s65, 0x1000
        v_mov_b32 v4, 0xfffefffe
        s_lshl3_add_u32 s60, s4, s5
        s_sub_u32 s60, s60, 16""" % WS_PQ)
        self.ra_inv(1, 8)
        a("s_waitcnt lgkmcnt(0)")
        self.tags()

        def qpost(nb):
            L = []
            for mb in range(2):
                for h in range(2):
                    d = 128 + 16 * nb + 8 * mb + 4 * h
                    L += self.phi(acc[mb][nb] + 8 * h, d, 212, 8) + self.mark(d, 4)
                    L.append("buffer_store_dwordx4 %s, v2, %s, s%d offen offset:%d sc1" % (v(d, 4), ws, 67 if nb else 65, (h * 2 + mb) * 1024))
            return L

        big = list(range(160, 212, 4)) + list(range(220, 240, 4)) if self.opt.get("keepx", 1) else []
        rest = self.gemm_loop(acc, pool + big, ax, aw, False, qpost(0), self.opt.get("zq", 8), {100: lambda: a("s_waitcnt vmcnt(0)"), 128 - 2 * self.opt.get("zq", 8): lambda: a.label("WQ_0")})
        self.stamp()
        a("ds_write_b64 v14, v[12:13]")
        for x in rest + qpost(1):
            a(x)
        a.label("WQ_1")
        a("s_waitcnt vmcnt(%d) lgkmcnt(0)\ns_barrier" % self.opt.get("qdr", 2))
        self.stamp()
        self.pad_stamps(9)
        a.label("HELPER")
        a("s_lshl_b32 s62, s60, 7\ns_add_u32 s62, s62, 0x%x\ns_movk_i32 s34, 512" % WS_GO)
        self.flip_marks()
        a("s_branch B3_ENTRY")

    def wo_addr(self):
        a = self.a
        a("s_and_b32 s63, s3, 3")
        a("""v_bfe_u32 v14, v1, 2, 2
        v_lshrrev_b32 v15, 5, v1
        v_lshl_add_u32 v15, v15, 2, v14
        v_xor_b32 v14, s63, v14
        v_lshlrev_b32 v14, 6, v14
        v_lshl_add_u32 v14, v15, 8, v14
        v_and_b32 v15, 1, v1
        v_lshl_add_u32 v14, v15, 5, v14
        v_bfe_u32 v15, v1, 4, 1
        v_lshl_add_u32 v14, v15, 4, v14
        v_bfe_u32 v15, v1, 1, 1
        v_lshl_add_u32 v14, v15, 3, v14
        v_add_u32 v15, 0x10000, v14
        v_add_u32 v0, 0x20000, v14""")

    def tail_addr(self):
        a = self.a
        a("""v_lshlrev_b32 v2, 4, v1
        ORB
        s_lshl3_add_u32 s66, s65, s3
        s_lshl_b32 s67, s66, 13
        s_add_u32 s67, s67, 0x%x
        s_mul_i32 s70, s3, %d
        s_mul_i32 s71, s4, 0x%x
        s_add_u32 s70, s70, s71
        s_add_u32 s70, s70, 0x%x
        s_add_u32 s71, s70, %d
        v_lshrrev_b32 v8, 4, v1
        v_xor_b32 v8, 1, v8
        v_and_b32 v9, 1, v1
        v_lshl_add_u32 v8, v8, 1, v9
        v_lshlrev_b32 v8, 4, v8
        s_lshl_b32 s63, s3, 12
        v_add_u32 v13, s63, v2
        s_mov_b32 s10, 0xffff0000
        s_mov_b32 s11, 0xffff0000""".replace("ORB", "s_and_b32 s65, s5, 7\ns_lshr_b32 s66, s4, 1\ns_lshl3_add_u32 s65, s66, s65" if self.opt.get("omap") else "s_and_b32 s65, s5, 3\ns_lshl2_add_u32 s65, s4, s65") % (WS_PQ, 2 * PLINE, RED_STRIDE, WS_RED, PLINE))
        if self.opt.get("wide"):
            a("s_bfe_u32 s63, s5, 0x10002\ns_lshl_b32 s63, s63, 10\ns_add_u32 s67, s67, s63\ns_add_u32 s71, s67, 0x1000")

    def w_pqload(self):
        for i in range(4):
            self.a("buffer_load_dwordx4 %s, v2, %s, s%d offen offset:%d sc1" % (v(32 + 4 * i, 4), s(self.rWS, 4), 71 if i >= 2 else 67, (i & 1) * 2048))

    def wide_tail(self):
        a = self.a
        ws = s(self.rWS, 4)
        a.label("KV_TAIL")
        WO, PQ, RD, OP, AC = 128, 32, 48, 16, 64
        a("""s_mov_b32 s58, %s
        s_lshl_b32 s63, s5, 13
        s_and_b32 s64, s63, 0x6000
        s_add_u32 s64, s64, 0x8000
        v_add_u32 v4, s64, v2
        v_xor_b32 v5, 0x2000, v4
        v_xor_b32 v6, 0x4000, v4
        v_xor_b32 v7, 0x6000, v4
        s_lshl_b32 s63, s3, 11
        s_add_u32 s63, s63, 0x10000
        v_and_b32 v10, 31, v1
        v_bfe_u32 v11, v1, 1, 2
        v_lshrrev_b32 v9, 5, v1
        v_lshlrev_b32 v9, 1, v9
        v_xor_b32 v11, v11, v9
        v_lshlrev_b32 v11, 4, v11
        v_lshl_add_u32 v10, v10, 6, v11
        v_add_u32 v10, s63, v10
        v_bfe_u32 v9, v1, 3, 2
        v_lshlrev_b32 v9, 4, v9
        v_xor_b32 v9, v9, v2
        v_add_u32 v9, s63, v9
        v_lshrrev_b32 v3, 2, v1
        v_and_b32 v11, 3, v1
        v_lshlrev_b32 v11, 4, v11
        v_lshl_add_u32 v3, v3, 11, v11
        v_xor_b32 v11, 16, v10
        s_lshr_b32 s63, s5, 2
        s_and_b32 s64, s63, 1
        s_lshl1_add_u32 s65, s65, s64
        s_lshl_b32 s65, s65, 16
        s_lshl_b32 s63, s63, 2
        s_xor_b32 s63, s63, s3
        s_xor_b32 s63, s63, 4
        s_lshl_b32 s63, s63, 6
        s_add_u32 s64, s65, s63
        s_add_u32 s65, s64, 0x8000""" % fhex(1e-6))
        wd = self.opt["wide"]
        if wd == 1:
            self.poll(self.w_pqload, lambda: self.markcheck(PQ, 16, 12), 12, first_issued=True)
        a("s_waitcnt lgkmcnt(0)\ns_barrier")
        self.stamp()
        if wd == 2:
            self.w_pqload()
        if wd == 3:
            lab = a.newlabel("NOPQ")
            a("s_cmp_ge_u32 s3, 4\ns_cbranch_scc1 " + lab)
            self.w_pqload()
            a.label(lab)

        def issue():
            for pi in range(2):
                a("buffer_load_dwordx4 %s, v2, %s, s70 offen offset:%d sc1" % (v(RD + 8 * pi, 4), ws, pi * PLINE))
                a("buffer_load_dwordx4 %s, v8, %s, s70 offen offset:%d sc1" % (v(RD + 8 * pi + 4, 4), ws, pi * PLINE + 1024))

        self.diag_delay("d_red")
        issue()
        lab = a.newlabel("NOWO")
        a("s_cmp_ge_u32 s3, 4\ns_cbranch_scc1 " + lab)
        for n, sl in ((1, 3), (2, 4), (3, 0)):
            self.read_wo(n, sl)
        a.label(lab)
        if wd != 1:
            self.poll(self.w_pqload, lambda: self.markcheck(PQ, 16, 12), 12, first_issued=True)
        self.poll(issue, lambda: self.markcheck(RD, 16, 12), 12, first_issued=True)
        self.stamp()

        def sel(i):
            b = RD + 8 * (i >> 1)
            for j in range(4):
                x, y = (b + j, b + 4 + j) if i & 1 == 0 else (b + 4 + j, b + j)
                a("v_cndmask_b32 v%d, v%d, v%d, s[10:11]" % (OP + 4 * i + j, x, y))

        mf = lambda i: a("%s %s, %s, %s, 0" % (M32, v(AC + 16 * i, 16), v(OP + 4 * i, 4), v(PQ + 4 * i, 4)))
        sel(0)
        sel(1)
        mf(0)
        sel(2)
        mf(1)
        sel(3)
        mf(2)
        for i in range(4):
            d = AC + 16 * i
            num, den = (d, d + 8) if i & 1 == 0 else (d + 8, d)
            if i == 0:
                mf(3)
            a("v_add_f32 v%d, s58, v%d\nv_rcp_f32 v%d, v%d" % (den, den, den, den))
            for j in range(0, 8, 2):
                a("v_pk_mul_f32 %s, %s, %s op_sel_hi:[1,0]" % (v(num + j, 2), v(num + j, 2), v(den, 2)))
            for j in range(4):
                self.cvt(den + 4 + j, v(num + 2 * j), v(num + 2 * j + 1))
            a("ds_write_b128 v13, %s offset:%d" % (v(den + 4, 4), 32768 + i * 1024))
        a("s_waitcnt lgkmcnt(0)\ns_barrier")
        self.stamp()
        frags, mfl = {}, []
        d = v(AC, 16)
        for h in range(32):
            frags[h] = (["ds_read_b128 {r}, v%d offset:%d" % (4 + (h >> 3), (h & 7) * 1024)], None)
            mfl.append(("%s %s, %s, {0}, %s" % (M32, d, v(WO + 4 * h, 4), d if h else "0"), [h]))
        self.lds_reset()
        self.run_mfmas(mfl, frags, list(range(16, 48, 4)), {}, maxread=1)
        fl = self.opt.get("outflag", "sc1")
        t = AC + 16
        for j in range(8):
            self.cvt(t + j, v(AC + 2 * j), v(AC + 2 * j + 1))
        a("ds_write_b128 v10, %s\nds_write_b128 v11, %s" % (v(t, 4), v(t + 4, 4)))
        a("ds_read_b128 %s, v9\nds_read_b128 %s, v9 offset:1024" % (v(t + 8, 4), v(t + 12, 4)))
        for k in range(2):
            a("s_waitcnt lgkmcnt(%d)" % (1 - k))
            a("buffer_store_dwordx4 %s, v3, %s, s%d offen %s" % (v(t + 8 + 4 * k, 4), s(self.rOUT, 4), 64 + k, fl))
        lab = a.newlabel("NOEP")
        a("s_or_b32 s56, s4, s3\ns_or_b32 s56, s56, s5\ns_cbranch_scc1 " + lab)
        self.poll(lambda: a("buffer_load_dwordx2 v[6:7], off, %s, 0 offset:%d sc1" % (ws, WS_NOTE)),
                  lambda: a("v_xor_b32 v12, s6, v6\nv_bitop3_b32 v12, v12, v7, s7 bitop3:0xf6"), 12)
        a("v_mov_b32 v6, s8\nv_mov_b32 v7, s9\ns_mov_b64 exec, 1")
        a("buffer_store_dwordx2 v[6:7], off, %s, 0 offset:%d sc1" % (ws, WS_EP))
        a("s_mov_b64 exec, -1")
        a.label(lab)
        self.end()

    def kv_tail(self):
        a = self.a
        ws = s(self.rWS, 4)
        a.label("KV_TAIL")
        a.unpk = bool(self.opt.get("unpk", 2) & 2)
        WO, PQ, RD, OP, AC = 128, 16, 48, 80, 96
        a("s_waitcnt vmcnt(0)")
        a("s_add_u32 s68, s67, 0x1000\ns_mov_b32 s62, s67\ns_mov_b32 s58, %s" % fhex(1e-6))
        pqload = lambda R=range(8): [a("buffer_load_dwordx4 %s, v2, %s, s%d offen offset:%d sc1" % (v(PQ + 4 * i, 4), ws, 68 if i >= 4 else 62, (i & 3) * 1024)) for i in R]
        self.diag_delay("d_pq")
        pql = self.opt.get("pqlate", 3)
        if pql == 3:
            pqload(range(4))
        elif pql != 1:
            pqload()
        if pql == 2:
            self.stamp()
            self.poll(pqload, lambda: self.markcheck(PQ, 32, 12), 12, first_issued=True)
        a("s_waitcnt lgkmcnt(0)\ns_barrier")
        self.stamp()
        if pql == 1:
            pqload()
        if pql == 3:
            pqload(range(4, 8))
        lab = a.newlabel("NOWO")
        a("s_cmp_lt_u32 s3, 4\ns_cbranch_scc1 " + lab)
        if self.opt.get("w2late", 0):
            self.read_wo(2)
        self.read_wo(3)
        a.label(lab)
        redat = self.opt.get("redat", -1)
        if pql != 2 and redat < 0:
            self.poll(pqload, lambda: self.markcheck(PQ, 32, 12), 12, first_issued=True)
            self.stamp()

        def issue():
            for pi in range(2):
                a("buffer_load_dwordx4 %s, v2, %s, s70 offen offset:%d sc1" % (v(RD + 8 * pi, 4), ws, pi * PLINE))
                a("buffer_load_dwordx4 %s, v8, %s, s70 offen offset:%d sc1" % (v(RD + 8 * pi + 4, 4), ws, pi * PLINE + 1024))

        a("""s_lshl_b32 s63, s5, 13
        s_and_b32 s64, s63, 0x6000
        s_add_u32 s64, s64, OBASE
        v_add_u32 v13, OBASE, v13
        v_add_u32 v4, s64, v2
        v_xor_b32 v5, 0x2000, v4
        v_xor_b32 v6, 0x4000, v4
        v_xor_b32 v7, 0x6000, v4
        s_lshl_b32 s69, s3, 12
        s_add_u32 s69, s69, STG
        v_and_b32 v10, 31, v1
        v_bfe_u32 v14, v1, 1, 2
        v_lshrrev_b32 v15, 5, v1
        v_lshlrev_b32 v15, 1, v15
        v_xor_b32 v14, v14, v15
        v_lshlrev_b32 v14, 4, v14
        v_lshl_add_u32 v10, v10, 6, v14
        v_add_u32 v10, s69, v10
        v_xor_b32 v14, 16, v10
        v_bfe_u32 v15, v1, 3, 2
        v_lshlrev_b32 v15, 4, v15
        v_xor_b32 v15, v15, v2
        v_add_u32 v15, s69, v15
        v_lshrrev_b32 v3, 2, v1
        v_and_b32 v11, 3, v1
        v_lshlrev_b32 v11, 4, v11
        v_lshl_add_u32 v3, v3, 11, v11
        s_lshl_b32 s65, s65, 17
        s_and_b32 s64, s3, 3
        s_lshl2_add_u32 s69, s14, s64
        s_lshl_b32 s69, s69, 6
        s_add_u32 s64, s65, s69
        s_add_u32 s65, s64, 0x8000
        s_add_u32 s66, s64, 0x10000
        s_add_u32 s67, s64, 0x18000""".replace("OBASE", "0x18000" if self.opt.get("w2late", 0) else "0").replace("STG", "0" if self.opt.get("w2late", 0) else "0x14000"))
        if self.opt.get("rbar", 1):
            a("s_barrier")
        self.diag_delay("d_red")
        if redat >= 0:
            lab = a.newlabel("LATE")
            a("s_waitcnt vmcnt(%d)\ns_cmp_ge_u32 s3, 4\ns_cbranch_scc1 %s\ns_waitcnt vmcnt(0)" % (redat, lab))
            self.diag_delay("d_old")
            a.label(lab)
            issue()
            a("s_waitcnt vmcnt(4)")
            self.markcheck(PQ, 32, 12)
            ok = a.newlabel("PQOK")
            a("v_cmp_ne_u32 vcc, 0, v12\ns_cbranch_vccz " + ok)
            self.poll(pqload, lambda: self.markcheck(PQ, 32, 12), 12)
            a.label(ok)
            self.stamp()
        self.poll(issue, lambda: self.markcheck(RD, 16, 12), 12, first_issued=redat >= 0)
        self.stamp()
        accs = [AC, AC + 16, RD, RD + 16]

        def sel(i):
            pi, h = i >> 1, i & 1
            b = RD + 8 * pi
            for j in range(4):
                x, y = (b + j, b + 4 + j) if h == 0 else (b + 4 + j, b + j)
                a("v_cndmask_b32 v%d, v%d, v%d, s[10:11]" % (OP + 4 * i + j, x, y))

        def mf(i, mb, d):
            return "%s %s, %s, %s, 0" % (M32, v(d, 16), v(OP + 4 * i, 4), v(PQ + 4 * (i * 2 + mb), 4))

        def post(i, mb, d):
            pi, h = i >> 1, i & 1
            num, den = (d, d + 8) if h == 0 else (d + 8, d)
            L = ["v_add_f32 v%d, s58, v%d" % (den, den), "v_rcp_f32 v%d, v%d" % (den, den)]
            for j in range(0, 8, 2):
                L.append("v_pk_mul_f32 %s, %s, %s op_sel_hi:[1,0]" % (v(num + j, 2), v(num + j, 2), v(den, 2)))
            for j in range(4):
                L.append("v_cvt_pk_bf16_f32 v%d, v%d, v%d" % (den + 4 + j, num + 2 * j, num + 2 * j + 1))
            L.append("ds_write_b128 v13, %s offset:%d" % (v(den + 4, 4), mb * 32768 + i * 1024))
            return L

        sel(0)
        sel(1)
        a(mf(0, 0, accs[0]))
        sel(2)
        a(mf(1, 0, accs[1]))
        sel(3)
        a(mf(2, 0, accs[2]))
        a(mf(3, 0, accs[3]))
        P = [post(i, 0, accs[i]) for i in range(4)]
        for x in P[0][:2]:
            a(x)
        for i in range(4):
            if i < 3:
                for x in P[i + 1][:2]:
                    a(x)
            for x in P[i][2:]:
                a(x)
        acc1 = [RD, RD + 16, AC + 16, RD]
        a(mf(0, 1, acc1[0]))
        a(mf(1, 1, acc1[1]))
        a("s_waitcnt lgkmcnt(0)\ns_barrier")
        self.stamp()
        a("s_cmp_ge_u32 s3, 4\ns_cbranch_scc1 OUT_GEMM")
        n0 = self.nst
        a(mf(2, 1, acc1[2]))
        a(mf(3, 1, AC))
        a.unpk = bool(self.opt.get("upf", 1))
        P = [post(i, 1, acc1[i] if i < 3 else AC) for i in range(4)]
        for x in P[0][:2]:
            a(x)
        for i in range(4):
            if i == 2:
                lab = a.newlabel("NOEP")
                a("s_or_b32 s56, s4, s3\ns_or_b32 s56, s56, s5\ns_cbranch_scc1 " + lab)
                a("buffer_load_dwordx2 v[6:7], off, %s, 0 offset:%d sc1" % (ws, WS_NOTE))
                a.label(lab)
            if i < 3:
                for x in P[i + 1][:2]:
                    a(x)
            for x in P[i][2:]:
                a(x)
        a.unpk = False
        a("s_waitcnt lgkmcnt(0)\ns_barrier")
        lab = a.newlabel("NOEP")
        a("s_cmp_lg_u32 s56, 0\ns_cbranch_scc1 " + lab)
        self.poll(lambda: a("buffer_load_dwordx2 v[6:7], off, %s, 0 offset:%d sc1" % (ws, WS_NOTE)),
                  lambda: a("v_xor_b32 v12, s6, v6\nv_bitop3_b32 v12, v12, v7, s7 bitop3:0xf6"), 12, first_issued=True)
        a("v_mov_b32 v6, s8\nv_mov_b32 v7, s9\ns_mov_b64 exec, 1")
        a("buffer_store_dwordx2 v[6:7], off, %s, 0 offset:%d sc1" % (ws, WS_EP))
        a("s_mov_b64 exec, -1")
        a.label(lab)
        self.end()
        self.nst = n0
        a.label("OUT_GEMM")
        if self.opt.get("oprio", 1):
            a("s_setprio %d" % self.opt.get("oprio", 1))
        fl = self.opt.get("outflag", "sc1")
        out = s(self.rOUT, 4)
        frags, mfl = {}, []
        pool = [PQ + 8 * i for i in range(4)] + [PQ + 4, PQ + 12]

        def b11b():
            assert not self.fq
            self.lds_wait(self.last_fill_lds)
            a("s_barrier")

        AC2 = OP
        for mb in range(2):
            d = v(AC2 if mb else AC, 16)
            for h in range(32):
                frags[(mb, h)] = (["ds_read_b128 {r}, v%d offset:%d" % (4 + (h >> 3), mb * 32768 + (h & 7) * 1024)],
                                  b11b if (mb, h) == (1, 0) else None)
                mfl.append(("%s %s, %s, {0}, %s" % (M32, d, v(WO + 4 * h, 4), d if h else "0"), [(mb, h)]))
                if mb == 0 and h == 0:
                    mfl.append((mf(2, 1, acc1[2]), []))
                if mb == 0 and h == self.opt.get("oh3", 8):
                    mfl.append((mf(3, 1, acc1[3]), []))

        def epi(mb, d, t):
            L = ["v_cvt_pk_bf16_f32 v%d, v%d, v%d" % (t + j, d + 2 * j, d + 2 * j + 1) for j in range(8)]
            L += ["ds_write_b128 v10, %s offset:%d" % (v(t, 4), mb * 2048), "ds_write_b128 v14, %s offset:%d" % (v(t + 4, 4), mb * 2048),
                  "ds_read_b128 %s, v15 offset:%d" % (v(t + 8, 4), mb * 2048), "ds_read_b128 %s, v15 offset:%d" % (v(t + 12, 4), mb * 2048 + 1024)]
            L2 = ["WAITLDS 1", "buffer_store_dwordx4 %s, v3, %s, s%d offen %s" % (v(t + 8, 4), out, 64 + 2 * mb, fl),
                  "WAITLDS 0", "buffer_store_dwordx4 %s, v3, %s, s%d offen %s" % (v(t + 12, 4), out, 65 + 2 * mb, fl)]
            return L, L2

        e0, e0b = epi(0, AC, RD)
        fillers = {0: post(0, 1, acc1[0]) + post(1, 1, acc1[1]), 7: post(2, 1, acc1[2]), self.opt.get("oh3", 8) + 6: post(3, 1, acc1[3]), 36: e0, 46: e0b}
        self.lds_reset()
        rest = self.run_mfmas(mfl, frags, pool, fillers, maxread=1, budget=self.opt.get("obud", 16))
        assert not rest
        e1, e1b = epi(1, AC2, RD + 16)
        for x in e1 + e1b:
            self.emit_filler(x)
        self.end()

    def role_b(self):
        a = self.a
        a.label("ROLE_B")
        a.unpk = bool(self.opt.get("unpk", 2) & 1)
        self.role = "B"
        ws = s(self.rWS, 4)
        XW, SW, XW3 = 0, 3, 1
        if self.opt.get("walk", 0) & 2:
            a("s_mov_b64 exec, 0")
            for w in range(1, 7):
                a("s_cmp_eq_u32 s3, %d\ns_cbranch_scc1 WKB%d" % (w, w - 1))
            a("s_cmp_eq_u32 s3, 7\ns_cbranch_scc1 WKC0")
            a.label("WRET_C")
            a("s_cmp_lt_u32 s5, 24\ns_cbranch_scc1 WRET_A" if self.opt.get("walk", 0) & 1 else "s_nop 0")
            a.label("WRET_B")
            a("s_mov_b64 exec, -1\ns_waitcnt lgkmcnt(0)\ns_nop 15")
        a(self.KARG)
        a("s_waitcnt lgkmcnt(0)")
        a("s_load_dwordx2 s[8:9], s[32:33], %d" % WS_EP)
        self.srd(self.rWS, self.pWS, WS_SIZE)
        a("""v_lshrrev_b32 v4, 5, v1
        v_and_b32 v5, 31, v1
        v_lshlrev_b32 v6, 4, v5
        v_lshl_add_u32 v3, s3, 3, v4
        v_xor_b32 v3, s60, v3
        v_lshl_add_u32 v3, v3, 9, v6
        v_lshl_add_u32 v11, v4, 3, s3
        v_xor_b32 v8, s60, v11
        v_lshl_add_u32 v11, v11, 15, v6
        v_lshl_add_u32 v11, v8, 9, v11
        s_lshl_b32 s66, s60, 15
        s_add_u32 s66, s66, 0x%x
        s_mov_b32 s13, 0x%x
        v_mov_b32 v14, 0xfffefffe""" % (WS_X1, WS_X1))
        a("""s_lshl_b32 s67, s4, 10
        s_add_u32 s67, s67, 0x%x
        v_and_b32 v12, 15, v1
        v_lshrrev_b32 v13, 4, v1
        s_xor_b32 s71, s61, 7
        s_xor_b32 s62, s3, %d
        s_or_b32 s71, s71, s62""" % (WS_X2S, SW))
        a("""s_bitcmp1_b32 s61, 0
        s_cselect_b64 s[48:49], s[26:27], s[24:25]
        s_cselect_b64 s[52:53], s[24:25], s[26:27]
        s_cselect_b32 s34, 0x8000, 0
        s_mov_b32 s50, 0x%x
        s_mov_b32 s51, 0x20000
        s_mov_b32 s54, 0x%x
        s_mov_b32 s55, 0x20000
        s_add_u32 s34, s34, s70
        s_add_u32 s34, s34, %d
        s_xor_b32 s35, s34, 0x8000""" % (2048 * 514, 2048 * 514, WB))
        self.srd(self.rOUT, self.pOUT, 2048 * 2048)

        CS, TW0, TWX, F16 = 16, 40, 48, 56
        RA = 64
        T = 144
        a("""v_cvt_f32_u32 v16, v5
        s_bfe_u32 s62, s3, 0x10001
        s_and_b32 s63, s3, 1
        s_lshl2_add_u32 s62, s62, s63
        s_lshl_b32 s62, s62, 7
        s_add_u32 s62, s62, s60
        v_lshl_add_u32 v17, v4, 8, s62
        v_cvt_f32_u32 v17, v17
        v_mul_f32 v17, v17, v16
        s_lshr_b32 s62, s3, 2
        v_xor_b32 v18, s62, v1
        v_lshlrev_b32 v18, 31, v18
        v_or_b32 v18, %s, v18
        v_fmamk_f32 v17, v17, %s, v18
        v_fmamk_f32 v18, v16, %s, v17
        s_lshl_b32 s62, s62, 31
        v_cos_f32 v20, v17
        v_sin_f32 v21, v17
        v_cos_f32 v22, v18
        v_sin_f32 v23, v18
        s_lshr_b32 s64, s3, 1
        s_lshl_b32 s64, s64, 10
        s_lshl3_add_u32 s64, s63, s64
        s_add_u32 s64, s64, %d
        v_add_u32 v15, s64, v2""" % (fhex(0.125), fhex(1 / 2048), fhex(1 / 32), RAB))
        a("""v_cvt_pk_bf16_f32 v24, v20, v21
        v_cvt_pk_bf16_f32 v25, v22, v23
        v_cvt_pk_bf16_f32 v26, -v21, v20
        v_cvt_pk_bf16_f32 v27, -v23, v22
        v_xor_b32 v24, s62, v24
        v_xor_b32 v25, s62, v25
        v_xor_b32 v26, s62, v26
        v_xor_b32 v27, s62, v27
        ds_write_b64 v15, v[24:25]
        ds_write_b64 v15, v[26:27] offset:4096""")
        self.ra_inv(0, 136)
        a("s_lshl_b32 s14, s60, 9\ns_add_u32 s14, s14, 0x%x\ns_and_b32 s63, s3, 1" % (WS_X1 + 64 * 32768))
        FA = 128
        a("""v_bfe_u32 v16, v1, 3, 2
        s_lshl_b32 s62, s4, 2
        v_add_u32 v17, s62, v16
        v_lshl_add_u32 v17, v4, 5, v17
        v_mul_u32_u24 v17, 514, v17
        v_and_b32 v17, -16, v17
        v_sub_u32 v16, v1, v16
        v_and_b32 v18, 7, v16
        v_xor_b32 v19, 4, v18
        v_cmp_gt_u32 s[68:69], 5, v18
        v_cmp_gt_u32 s[58:59], 5, v19
        v_lshl_add_u32 v128, v18, 4, v17
        v_lshl_add_u32 v129, v19, 4, v17""")
        a("""v_lshl_add_u32 v7, v1, 3, s70
        s_lshr_b32 s62, s3, 1
        s_lshl_b32 s62, s62, 13
        s_lshl3_add_u32 s62, s63, s62
        s_add_u32 s62, s62, %d
        v_lshlrev_b32 v8, 11, v13
        v_lshl_add_u32 v8, v12, 4, v8
        v_add_u32 v8, s62, v8
        v_lshl_add_u32 v10, s3, 5, v5
        v_lshlrev_b32 v130, 13, v4
        v_add_u32 v130, %d, v130
        v_lshl_add_u32 v9, v10, 4, v130
        v_sub_u32 v10, 0, v10
        v_and_b32 v10, 0x1ff, v10
        v_lshl_add_u32 v10, v10, 4, v130
        v_add_u32 v131, %d, v2
        s_mul_i32 s62, s3, %d
        s_lshl_b32 s63, s61, 6
        s_add_u32 s62, s62, s63
        s_add_u32 s63, s62, %d
        s_add_u32 s64, s62, %d
        s_add_u32 s65, s62, %d
        s_waitcnt lgkmcnt(0)""" % (ZB, ZB, TB, 8 * 32 * 514, 64 * 514 - 1024, 128 * 514 - 2048, 192 * 514 - 3072))
        self.tags()

        def tab(reg, q, n):
            for i in range(n):
                a("ds_read_b128 %s, v131 offset:%d" % (v(reg + 4 * i, 4), (q + i) * 1024))

        fdp = [int(x) for x in str(self.opt.get("fdp", "0404"))[-4:].rjust(4, "0")]
        fdn = [0]

        def fnext(n=1):
            for _ in range(n):
                fdma(fdn[0] >> 2, fdn[0] & 3)
                fdn[0] += 1

        def fdma(second, q):
            a("s_mov_b64 exec, %s\ns_mov_b32 m0, s%d\nbuffer_load_dwordx4 v%d, %s, s%d offen offset:%d NT lds\ns_mov_b64 exec, -1".replace("NT", "nt" if self.opt.get("ntf", 2) >> second & 1 else "") % (
                "s[58:59]" if q >> 1 else "s[68:69]", 35 if second else 34, FA + (q >> 1), s(52 if second else 48, 4), 62 + q, q * 1024),
              at=60 + self.opt.get("fgap", 170) * (fdn[0] - fdp[0]))

        ls = self.opt.get("ls", 0)
        msc = self.opt.get("msc", 10) / 10.0
        a("s_waitcnt vmcnt(%d)\ns_barrier" % 4)
        XF, T1, U = T, T + 16, T + 48
        early = self.opt.get("cearly", 6)
        tab(CS, TQ_CS, early)
        nb = 0
        bpf = self.opt.get("bpf", 0)
        if bpf:
            a("""s_lshl3_add_u32 s15, s61, s3
            s_lshl_b32 s15, s15, 2
            s_lshl_b32 s56, s4, 2
            s_xor_b32 s56, s56, s4
            s_andn2_b32 s56, 4, s56
            s_lshl_b32 s56, s56, 6
            s_add_u32 s15, s15, s56
            s_mul_i32 s15, s15, 3072
            s_and_b32 s56, s4, 1
            s_lshl_b32 s56, s56, 9
            s_add_u32 s15, s15, s56
            v_mul_u32_u24 v124, 0xc00, v13
            v_bfe_u32 v125, v1, 2, 2
            v_lshl_add_u32 v124, v125, 10, v124
            v_and_b32 v125, 3, v1
            v_lshl_add_u32 v124, v125, 7, v124
            s_mov_b64 s[44:45], s[18:19]
            s_mov_b32 s46, 0x180000""")

        def dobpf():
            a("""s_mov_b32 exec_lo, 0x0fff0fff
            s_mov_b32 exec_hi, 0x0fff0fff
            buffer_load_dword v126, v124, s[44:47], s15 offen
            s_mov_b64 exec, -1""")
        if bpf == 1:
            dobpf()
            nb = 1
        fnext(fdp[0])
        a("s_waitcnt vmcnt(%d)" % (fdp[0] + nb))
        self.stamp()
        a.label("WB_0")
        pre = ["ds_read_b128 %s, v131" % v(CS + 4 * i, 4) for i in range(early)]
        a.capture(ls & 1)
        for q in range(4):
            a("ds_read_b64_tr_b16 %s, v7 offset:%d" % (v(XF + 4 * q, 2), q * 1024))
            a("ds_read_b64_tr_b16 %s, v7 offset:%d" % (v(XF + 4 * q + 2, 2), q * 1024 + 512))
        tab(CS + 4 * early, TQ_CS + early, 12 - early)
        if bpf == 2:
            dobpf()
        a("s_mov_b32 s22, 0x80000\ns_mov_b32 s23, 0x20000\ns_lshl3_add_u32 s15, s60, s3\ns_lshl_b32 s15, s15, 10\nbuffer_load_dwordx4 v[116:119], v2, s[20:23], s15 offen" if self.opt.get("wopf", 1) else "s_nop 0", at=56)
        sp1 = [(fdp[1] + 3 - i) // 4 for i in range(4)]
        fnext(sp1[0])

        def stage_cs(re, im, out, conj):
            S, N = (CS + 16, CS + 8) if conj else (CS + 8, CS + 16)
            for tau in range(2):
                a("%s %s, %s, %s, 0" % (M16, v(out + 4 * tau, 4), v(re, 4), v(CS + 4 * tau, 4)))
                a("%s %s, %s, %s, 0" % (M16, v(out + 8 + 4 * tau, 4), v(im, 4), v(CS + 4 * tau, 4)))
                a("%s %s, %s, %s, %s" % (M16, v(out + 4 * tau, 4), v(im, 4), v(S + 4 * tau, 4), v(out + 4 * tau, 4)))
                a("%s %s, %s, %s, %s" % (M16, v(out + 8 + 4 * tau, 4), v(re, 4), v(N + 4 * tau, 4), v(out + 8 + 4 * tau, 4)))

        def twiddle(t, tws, tmp, conj):
            for tau in range(2):
                for j in (0, 2):
                    re, im = t + 4 * tau + j, t + 8 + 4 * tau + j
                    sn_ = tws[tau] + 4 + j
                    k = tmp + 8 * tau + 2 * j
                    a("v_pk_mul_f32 %s, %s, %s" % (v(k, 2), v(im, 2), v(sn_, 2)))
                    a("v_pk_mul_f32 %s, %s, %s" % (v(k + 2, 2), v(re, 2), v(sn_, 2)))
            ng = " neg_lo:[0,0,1] neg_hi:[0,0,1]"
            for tau in range(2):
                for j in (0, 2):
                    re, im = t + 4 * tau + j, t + 8 + 4 * tau + j
                    c = tws[tau] + j
                    k = tmp + 8 * tau + 2 * j
                    a("v_pk_fma_f32 %s, %s, %s, %s%s" % (v(re, 2), v(re, 2), v(c, 2), v(k, 2), ng if conj else ""))
                    a("v_pk_fma_f32 %s, %s, %s, %s%s" % (v(im, 2), v(im, 2), v(c, 2), v(k + 2, 2), "" if conj else ng))

        a("s_waitcnt lgkmcnt(%d)" % (16 - early))
        stage_cs(XF, XF + 4, T1, False)
        a("s_waitcnt lgkmcnt(%d)" % (12 - early))
        stage_cs(XF + 8, XF + 12, T1 + 16, False)
        fnext(sp1[1])
        a("s_waitcnt lgkmcnt(0)")
        tab(RA, 24, 8)
        for m in range(2):
            t = T1 + 16 * m
            twiddle(t, [TW0, TWX], T + 64 + 16 * m, False)
            for tau in range(2):
                u = U + 8 * m + 4 * tau
                self.cvt(u, v(t + 4 * tau), v(t + 4 * tau + 1))
                self.cvt(u + 1, v(t + 4 * tau + 2), v(t + 4 * tau + 3))
                self.cvt(u + 2, v(t + 8 + 4 * tau), v(t + 8 + 4 * tau + 1))
                self.cvt(u + 3, v(t + 8 + 4 * tau + 2), v(t + 8 + 4 * tau + 3))
            for tau in range(2):
                u = U + 8 * m + 4 * tau
                a("%s %s, %s, %s, 0" % (M16, v(t + 4 * tau, 4), v(F16, 4), v(u, 4)))
                a("%s %s, %s, %s, 0" % (M16, v(t + 8 + 4 * tau, 4), v(F16 + 4, 4), v(u, 4)))
            fnext(sp1[2 + m])
        fd = 2 if fdp[3] == 0 else 1
        ZW = T + 96
        for i in range(8):
            self.cvt(ZW + 2 * i, v(T1 + i), v(T1 + 8 + i))
        for i in range(8):
            self.cvt(ZW + 2 * i + 1, v(T1 + 16 + i), v(T1 + 24 + i))
            a("ds_write_b64 v8, %s offset:%d" % (v(ZW + 2 * i, 2), (i >> 2) * 256 + (i & 3) * 512))
        print("B1", a.flush(pre, mf_scale=msc))
        a("s_waitcnt lgkmcnt(0)\ns_barrier")
        self.stamp()
        for f in range(4):
            a("ds_read_b128 %s, v%d offset:%d" % (v(XF + 4 * f, 4), 9 + (f >> 1), (f & 1) * 16384))
        fnext(fdp[2])
        PC = T + 48

        def pieces(src, j, dst, mark=True):
            for h in range(2):
                self.cvt(dst + h, v(src + 4 * j + 2 * h), v(src + 4 * j + 2 * h + 1))
                self.cvt(dst + 2 + h, v(src + 16 + 4 * j + 2 * h), v(src + 16 + 4 * j + 2 * h + 1))
            if mark:
                for x in self.mark(dst, 14):
                    a(x)

        for f in range(4):
            a("s_waitcnt lgkmcnt(%d)" % (3 - f))
            for ri in range(2):
                d = v(T1 + 16 * ri, 16)
                a("%s %s, %s, %s, %s" % (M32, d, v(RA + 16 * ri + 4 * f, 4), v(XF + 4 * f, 4), d if f else "0"))
        XE, TE = T + 64, T + 80
        a("ds_write_b64 v142, v[140:141]")
        a("ds_read_b128 %s, v130 offset:4096\nds_read_b128 %s, v130 offset:%d" % (v(XE, 4), v(XE + 4, 4), 4096 + 16384))
        a("v_lshlrev_b32 v16, 1, v6\nv_lshl_add_u32 v16, v4, 4, v16")
        if fd == 2:
            a("s_waitcnt vmcnt(0)")
        for j in range(4):
            pieces(T1, j, PC + 4 * j)
            a("buffer_store_dwordx4 %s, v11, %s, s13 offen sc1" % (v(PC + 4 * j, 4), ws))
            if j < 3:
                a("v_xor_b32 v11, 0x%x, v11" % ((j ^ (j + 1)) * 0x82000))
        a("s_waitcnt lgkmcnt(0)")
        lab = a.newlabel("NOX")
        a("s_cmp_lg_u32 s3, %d\ns_cbranch_scc1 %s" % (XW, lab))
        for f in range(4):
            for ri in range(2):
                d = v(TE + 16 * ri, 16)
                a("%s %s, %s, %s, %s" % (M32, d, v(RA + 16 * ri + 4 * f, 4), v(XE + 4 * (f & 1), 4), d if f else "0"))
        for j in range(4):
            a("s_mov_b32 exec_lo, %d\ns_mov_b32 exec_hi, %d" % (1 << j, 1 << j))
            pieces(TE, j, XE + 8, False)
        a("s_mov_b32 exec_lo, 15\ns_mov_b32 exec_hi, 15")
        for x in self.mark(XE + 8, 14):
            a(x)
        a("buffer_store_dwordx4 %s, v16, %s, s14 offen sc1" % (v(XE + 8, 4), ws))
        a("s_mov_b64 exec, -1")
        a.label(lab)
        self.stamp()
        if self.opt.get("fbar", 1):
            a("s_barrier")
        fnext(fdp[3])
        assert fdn[0] == 8

        F32 = 16
        FL = 48
        LD, LD2 = 96, 112
        FL2 = T + 64
        DAT, FR, TM = T, T + 32, T + 48
        tab(F32, TQ_F32, 4)
        tab(FR, TQ_OM, 4)
        a("""v_lshrrev_b32 v11, 2, v1
        v_xor_b32 v11, v11, v4
        v_lshlrev_b32 v129, 9, v11
        v_and_b32 v11, 3, v1
        v_lshl_add_u32 v129, v11, 4, v129
        s_lshl_b32 s62, s4, 4
        v_xor_b32 v129, s62, v129
        v_bfe_u32 v6, v1, 2, 3
        v_lshlrev_b32 v6, 12, v6
        v_lshl_add_u32 v6, v11, 4, v6
        s_and_b32 s62, s3, 1
        v_xor_b32 v11, s62, v4
        v_lshl_add_u32 v6, v11, 6, v6
        s_lshl_b32 s62, s3, 9
        s_add_u32 s62, s62, %d
        v_add_u32 v6, s62, v6
        v_xor_b32 v11, 0x400, v3
        v_xor_b32 v134, 0x800, v3
        v_xor_b32 v135, 0xc00, v3
        s_add_u32 s70, s70, %d
        v_and_b32 v132, 1, v13
        v_lshl_add_u32 v132, v13, 3, v132
        v_bfe_u32 v133, v1, 3, 1
        v_lshl_add_u32 v132, v133, 1, v132
        v_lshlrev_b32 v132, 6, v132
        v_and_b32 v133, 3, v1
        v_lshl_add_u32 v132, v133, 4, v132
        v_bfe_u32 v133, v1, 2, 1
        v_lshl_add_u32 v132, v133, 3, v132
        v_add_u32 v132, s70, v132
        v_xor_b32 v133, 64, v132""" % (ZB, ZB))
        MB = [3, 11, 134, 135]

        def faddr(dst, kk, t1, t2):
            a("""v_and_b32 v{t2}, 3, v12
            s_lshl_b32 s15, s4, 2
            v_add_u32 v{t1}, s15, v{t2}
            v_and_b32 v{t1}, 7, v{t1}
            v_add_lshl_u32 v{t1}, v{t1}, v{kk}, 1
            v_lshl_add_u32 v{t1}, v{t2}, 4, v{t1}
            v_lshl_add_u32 v{t1}, v13, 6, v{t1}
            v_and_b32 v{t1}, 0x7f, v{t1}
            v_lshl_add_u32 v{t1}, v{t2}, 7, v{t1}
            v_lshl_add_u32 v{t1}, v13, 11, v{t1}
            v_add_u32 v{dst}, {wb}, v{t1}""".format(dst=dst, kk=kk, t1=t1, t2=t2, wb=WB))

        a("v_lshrrev_b32 v%d, 2, v12\nv_lshl_add_u32 v%d, s3, 2, v%d" % (LD, LD, LD))
        faddr(128, LD, LD + 1, LD + 2)
        a("""v_lshl_add_u32 v15, s3, 2, v13
        v_and_b32 v5, 7, v12
        v_xor_b32 v15, v15, v5
        v_lshlrev_b32 v15, 4, v15
        v_lshl_add_u32 v15, v12, 10, v15
        s_and_b32 s63, s3, 1
        s_lshl_b32 s64, s63, 6
        v_xor_b32 v7, s64, v2
        s_lshl_b32 s64, s3, 12
        v_add_u32 v7, s64, v7
        v_xor_b32 v136, 16, v7
        v_xor_b32 v137, 32, v7
        v_xor_b32 v138, 48, v7
        s_mov_b32 s64, 0x80008000
        s_waitcnt lgkmcnt(0)""")
        for i in range(16):
            a(("v_xor_b32 v%d, s64, v%d" if i & 1 else "v_mov_b32 v%d, v%d") % (F32 + 16 + i, F32 + i))
        if fd != 2:
            a("s_waitcnt vmcnt(0)")
        a("s_barrier")
        self.stamp()

        def fread(addr):
            for arr in range(2):
                for pm in range(2):
                    for t in range(8):
                        a("ds_read_u16_d16_hi v%d, v%d offset:%d" % (DAT + 16 * arr + 8 * pm + t, addr, arr * 32768 + pm * 16384 + (t >> 2) * 8192 + (t & 3) * 512))

        def filt(dst, raw, both=True):
            for j in range(0, 8, 2):
                a("v_pk_add_f32 %s, %s, %s" % (v(dst + j, 2), v(raw + j, 2), v(raw + 8 + j, 2)))
                a("v_pk_add_f32 %s, %s, %s" % (v(dst + 8 + j, 2), v(raw + 16 + j, 2), v(raw + 24 + j, 2)))
                a("v_pk_add_f32 %s, %s, %s neg_lo:[0,1] neg_hi:[0,1]" % (v(raw + j, 2), v(raw + j, 2), v(raw + 8 + j, 2)))
                a("v_pk_add_f32 %s, %s, %s neg_lo:[0,1] neg_hi:[0,1]" % (v(raw + 16 + j, 2), v(raw + 16 + j, 2), v(raw + 24 + j, 2)))
            ng = " neg_lo:[0,0,1] neg_hi:[0,0,1]"
            for j in range(0, 8, 2):
                dr, di, c, sn_ = v(raw + j, 2), v(raw + 16 + j, 2), v(FR + j, 2), v(FR + 8 + j, 2)
                t1, t2 = v(raw + 8 + j, 2), v(raw + 24 + j, 2)
                a("v_pk_mul_f32 %s, %s, %s" % (t1, di, sn_))
                a("v_pk_mul_f32 %s, %s, %s" % (t2, dr, sn_))
                a("v_pk_fma_f32 %s, %s, %s, %s" % (v(dst + 16 + j, 2), dr, c, t1))
                a("v_pk_fma_f32 %s, %s, %s, %s%s" % (v(dst + 24 + j, 2), di, c, t2, ng))
                if both:
                    a("v_pk_fma_f32 %s, %s, %s, %s%s" % (v(dst + 32 + j, 2), dr, c, t1, ng))
                    a("v_pk_fma_f32 %s, %s, %s, %s" % (v(dst + 40 + j, 2), di, c, t2))

        VS = 139

        sentinel = lambda base: self.markcheck(base, 16, VS)

        def x1load(special):
            for i in range(4):
                a("buffer_load_dwordx4 %s, v%d, %s, s%d offen sc1" % (v((LD2 if special else LD) + 4 * i, 4), 129 if special else MB[i], ws, 56 + i if special else 66))

        def x1first():
            lab = a.newlabel("NOSP")
            a("s_cmp_lg_u32 s71, 0\ns_cbranch_scc1 " + lab)
            for i in range(4):
                a("s_mov_b32 s%d, 0x%x" % (56 + i, WS_X1 + 64 * 32768 + 0x2000 * i))
            x1load(True)
            a.label(lab)
            x1load(False)

        x1l = self.opt.get("x1late", 2)
        if fd != 2 and x1l == 0:
            x1first()
        fread(128)
        a("s_waitcnt lgkmcnt(0)")
        if fd != 2 and x1l == 1:
            x1first()
        filt(FL, DAT)
        if fd != 2 and x1l == 2:
            self.diag_delay("d_x1")
            x1first()
        if fd == 2:
            a("s_waitcnt vmcnt(0)")
            self.diag_delay("d_x1")
            x1first()
        self.stamp()

        def hintx(pos):
            if self.opt.get("go", 4) == pos:
                lab = a.newlabel("NOH")
                a("s_cmp_lg_u32 s3, 7\ns_cbranch_scc1 " + lab)
                a("""s_lshl_b32 s14, s60, 7
                s_add_u32 s14, s14, 0x%x
                v_mov_b32 v140, s6
                v_mov_b32 v141, s7
                v_lshlrev_b32 v142, 3, v12
                buffer_store_dwordx2 v[140:141], v142, %s, s14 offen sc1""" % (WS_GO, ws))
                a.label(lab)

        def b2(fl, special):
            FR2, OUT, PO = T + 64, LD, T + 96
            a.capture(ls & 2)
            for p in range(2):
                for f in range(2):
                    for h in range(2):
                        a("ds_read_b64_tr_b16 %s, v%d offset:%d" % (v(FR + 8 * p + 4 * f + 2 * h, 2), 132 + p, f * 2048 + h * 256))
            for tau in range(2):
                for p in range(2):
                    for f in range(2):
                        if tau == 0:
                            a("s_waitcnt lgkmcnt(%d)" % (6 - 4 * p - 2 * f))
                        for ri in range(2):
                            d = v(DAT + 16 * p + 8 * ri + 4 * tau, 4)
                            a("%s %s, %s, %s, %s" % (M16, d, v(F32 + ((tau * 2 + ri) * 2 + f) * 4, 4), v(FR + 8 * p + 4 * f, 4), d if f else "0"))
            n1_ = " neg_lo:[1,0,0] neg_hi:[1,0,0]"

            for j in range(0, 8, 2):
                Er, Ei, Or, Oi = [v(DAT + 8 * k + j, 2) for k in range(4)]
                Ar, Ai, B1r, B1i, B2r, B2i = [v(fl + 8 * k + j, 2) for k in range(6)]
                k = (TM, TM + 8, T + 80, T + 88)[j >> 1]
                Pr, Pi, Qr, Qi = [v(k + 2 * i, 2) for i in range(4)]
                a("v_pk_mul_f32 %s, %s, %s" % (Pr, Ar, Er))
                a("v_pk_mul_f32 %s, %s, %s" % (Pi, Ar, Ei))
                a("v_pk_mul_f32 %s, %s, %s" % (Qr, B2r, Er))
                a("v_pk_mul_f32 %s, %s, %s" % (Qi, B2r, Ei))
                a("v_pk_fma_f32 %s, %s, %s, %s%s" % (Pr, Ai, Ei, Pr, n1_))
                a("v_pk_fma_f32 %s, %s, %s, %s" % (Pi, Ai, Er, Pi))
                a("v_pk_fma_f32 %s, %s, %s, %s%s" % (Qr, B2i, Ei, Qr, n1_))
                a("v_pk_fma_f32 %s, %s, %s, %s" % (Qi, B2i, Er, Qi))
                a("v_pk_fma_f32 %s, %s, %s, %s" % (Pr, B1r, Or, Pr))
                a("v_pk_fma_f32 %s, %s, %s, %s" % (Pi, B1r, Oi, Pi))
                a("v_pk_fma_f32 %s, %s, %s, %s" % (Qr, Ar, Or, Qr))
                a("v_pk_fma_f32 %s, %s, %s, %s" % (Qi, Ar, Oi, Qi))
                a("v_pk_fma_f32 %s, %s, %s, %s%s" % (Pr, B1i, Oi, Pr, n1_))
                a("v_pk_fma_f32 %s, %s, %s, %s" % (Pi, B1i, Or, Pi))
                a("v_pk_fma_f32 %s, %s, %s, %s%s" % (Qr, Ai, Oi, Qr, n1_))
                a("v_pk_fma_f32 %s, %s, %s, %s" % (Qi, Ai, Or, Qi))
                for e in range(2):
                    self.cvt(FR2 + j + e, v(k + e), "-" + v(k + 2 + e))
                    self.cvt(FR2 + 8 + j + e, v(k + 4 + e), "-" + v(k + 6 + e))
            for f in range(2):
                for p in range(2):
                    for tau in range(2):
                        for ri in range(2):
                            d = v(OUT + 16 * p + 8 * ri + 4 * tau, 4)
                            a("%s %s, %s, %s, %s" % (M16, d, v(FR2 + 8 * p + 4 * f, 4), v(F32 + ((tau * 2 + ri) * 2 + f) * 4, 4), d if f else "0"))
            for p in range(2):
                for tau in range(2):
                    o = PO + 8 * p + 4 * tau
                    for r in range(4):
                        self.cvt(o + r, v(OUT + 16 * p + 4 * tau + r), "-" + v(OUT + 16 * p + 8 + 4 * tau + r))
                    for x in self.mark(o, 14):
                        a(x)
                    a("ds_write_b128 v15, %s offset:%d" % (v(o, 4), tau * 16384 + p * 512))
            print("B2", a.flush(mf_scale=msc))

        lab = a.newlabel("NOSP")
        a("s_cmp_lg_u32 s71, 0\ns_cbranch_scc1 " + lab)
        a("v_mov_b32 v%d, 32" % TM)
        faddr(128, TM, TM + 1, TM + 2)
        fread(128)
        a("""v_lshlrev_b32 v{t}, 29, v1
        v_and_b32 v{t}, 0x80000000, v{t}
        v_and_b32 v{u}, 3, v1
        v_lshlrev_b32 v{u}, 4, v{u}
        v_xor_b32 v128, v132, v{u}
        v_and_b32 v{u}, 1, v1
        v_lshlrev_b32 v{u}, 6, v{u}
        v_xor_b32 v128, v128, v{u}
        v_subrev_u32 v128, s70, v128
        v_add_u32 v128, {sp}, v128
        v_add_u32 v5, {sp}, v2""".format(t=TM, u=TM + 1, sp=RAB + 4096))
        for j in range(8):
            a("v_xor_b32 v%d, v%d, v%d" % (FR + 8 + j, TM, FR + 8 + j))
        a("s_waitcnt lgkmcnt(0)")
        filt(FL2, DAT, False)
        a.label(lab)
        self.poll(lambda: x1load(False), lambda: sentinel(LD), VS, first_issued=True)
        if not self.opt.get("st4"):
            self.stamp()
        for i in range(4):
            a("ds_write_b128 v6, %s offset:%d" % (v(LD + 4 * i, 4), i * 128))
        a("s_waitcnt lgkmcnt(0)\ns_barrier")
        if self.opt.get("st4"):
            self.stamp()
        lab = a.newlabel("NOSP")
        a("s_cmp_lg_u32 s71, 0\ns_cbranch_scc1 " + lab)
        self.poll(lambda: x1load(True), lambda: sentinel(LD2), VS, first_issued=True)
        self.flip_marks()
        for i in range(4):
            a("ds_write_b128 v5, %s offset:%d" % (v(LD2 + 4 * i, 4), i * 1024))
        for f in range(2):
            for h in range(2):
                a("ds_read_b64_tr_b16 %s, v128 offset:%d" % (v(FR + 4 * f + 2 * h, 2), f * 2048 + h * 256))
        for f in range(2):
            a("s_waitcnt lgkmcnt(%d)" % (2 - 2 * f))
            for tau in range(2):
                for ri in range(2):
                    d = v(DAT + 8 * ri + 4 * tau, 4)
                    a("%s %s, %s, %s, %s" % (M16, d, v(F32 + ((tau * 2 + ri) * 2 + f) * 4, 4), v(FR + 4 * f, 4), d if f else "0"))
        for j in range(0, 8, 2):
            Xr, Xi, Ar, Ai = v(DAT + j, 2), v(DAT + 8 + j, 2), v(FL2 + j, 2), v(FL2 + 8 + j, 2)
            a("v_pk_mul_f32 %s, %s, %s" % (v(TM + j, 2), Ar, Xr))
            a("v_pk_mul_f32 %s, %s, %s" % (v(TM + 8 + j, 2), Ar, Xi))
            a("v_pk_fma_f32 %s, %s, %s, %s neg_lo:[1,0,0] neg_hi:[1,0,0]" % (v(TM + j, 2), Ai, Xi, v(TM + j, 2)))
            a("v_pk_fma_f32 %s, %s, %s, %s" % (v(TM + 8 + j, 2), Ai, Xr, v(TM + 8 + j, 2)))
        dpp = " row_ror:4 row_mask:0xf bank_mask:0xf"
        for k in range(2):
            for j in range(8):
                a("v_fmac_f32_dpp v%d, %sv%d, v%d%s" % (TM + j, "-" if k else "", DAT + 8 * k + j, FL2 + 16 + 8 * k + j, dpp))
                a("v_fmac_f32_dpp v%d, v%d, v%d%s" % (TM + 8 + j, DAT + 8 * (1 - k) + j, FL2 + 16 + 8 * k + j, dpp))
        for j in range(8):
            self.cvt(FR + j, v(TM + j), "-" + v(TM + 8 + j))
        for f in range(2):
            for tau in range(2):
                for ri in range(2):
                    d = v(DAT + 8 * ri + 4 * tau, 4)
                    a("%s %s, %s, %s, %s" % (M16, d, v(FR + 4 * f, 4), v(F32 + ((tau * 2 + ri) * 2 + f) * 4, 4), d if f else "0"))
        a("s_mov_b32 exec_hi, 0")
        for tau in range(2):
            o = FL2 + 4 * tau
            for r in range(4):
                self.cvt(o + r, v(DAT + 4 * tau + r), "-" + v(DAT + 8 + 4 * tau + r))
            for x in self.mark(o, 14):
                a(x)
            a("buffer_store_dwordx4 %s, v2, %s, s67 offen offset:%d sc1" % (v(o, 4), ws, tau * 512))
        a("s_mov_b32 exec_hi, -1")
        skip = a.newlabel("B2GO")
        a("s_branch " + skip)
        a.label(lab)
        self.flip_marks()
        a.label(skip)
        b2(FL, False)
        a("s_waitcnt lgkmcnt(0)")
        if self.opt.get("st4"):
            self.stamp()
        a("s_barrier")
        if not self.opt.get("st4"):
            self.stamp()
        hintx(4)
        ST = LD
        for i in range(4):
            a("ds_read_b128 %s, v%d offset:%d" % (v(ST + 4 * i, 4), 135 + i if i else 7, i * 1024))
        for i in range(4):
            a("s_waitcnt lgkmcnt(%d)" % (3 - i))
            a("buffer_store_dwordx4 %s, v%d, %s, s66 offen sc1" % (v(ST + 4 * i, 4), MB[i], ws))
        self.stamp()
        lab = a.newlabel("NONOTE")
        a("s_or_b32 s56, s60, s3\ns_cbranch_scc1 " + lab)
        a("v_mov_b32 v140, s6\nv_mov_b32 v141, s7\nv_lshlrev_b32 v142, 3, v12")
        a("buffer_store_dwordx2 v[140:141], v142, %s, 0 offen offset:%d sc1" % (ws, WS_NOTE))
        a.label(lab)
        a.label("WB_1")
        a("s_mov_b32 s34, 0")
        self.pad_stamps(9)

        a.label("B3_ENTRY")
        G16 = F16
        a("v_lshlrev_b32 v2, 4, v1\nv_add_u32 v131, %d, v2" % TB)
        tab(RA, 24, 4)
        tab(CS, TQ_CS, 8)
        tab(TWX, TQ_TW3, 4)
        a("""v_lshrrev_b32 v4, 5, v1
        v_and_b32 v5, 31, v1
        v_and_b32 v12, 15, v1
        v_lshrrev_b32 v13, 4, v1
        v_lshl_add_u32 v132, v4, 3, s3
        v_xor_b32 v8, s60, v132
        v_lshlrev_b32 v132, 15, v132
        v_lshl_add_u32 v132, v5, 4, v132
        v_lshl_add_u32 v132, v8, 9, v132
        v_xor_b32 v133, 0x82000, v132
        v_xor_b32 v134, 0x104000, v132
        v_xor_b32 v135, 0x186000, v132
        v_lshl_add_u32 v10, s3, 5, v5
        v_lshlrev_b32 v130, 13, v4
        v_add_u32 v130, %d, v130
        v_lshl_add_u32 v9, v10, 4, v130
        v_sub_u32 v10, 0, v10
        v_and_b32 v10, 0x1ff, v10
        v_lshl_add_u32 v10, v10, 4, v130
        s_lshr_b32 s63, s3, 2
        s_lshl_b32 s63, s63, 13
        s_and_b32 s64, s3, 3
        s_lshl2_add_u32 s63, s64, s63
        s_add_u32 s63, s63, %d
        v_lshlrev_b32 v8, 11, v13
        v_lshl_add_u32 v8, v12, 4, v8
        v_add_u32 v8, s63, v8
        s_lshl_b32 s63, s3, 11
        s_add_u32 s63, s63, %d
        v_bfe_u32 v5, v1, 2, 1
        v_lshlrev_b32 v5, 1, v5
        v_xor_b32 v5, v5, v13
        v_lshlrev_b32 v5, 3, v5
        v_lshl_add_u32 v5, v12, 5, v5
        v_add_u32 v5, s63, v5
        v_bfe_u32 v6, v1, 3, 1
        v_lshlrev_b32 v6, 4, v6
        v_xor_b32 v6, v6, v2
        v_add_u32 v6, s63, v6
        s_lshl_b32 s64, s3, 6
        s_add_u32 s64, s64, s60
        s_add_u32 s64, s64, s34
        s_lshl_b32 s64, s64, 11
        s_add_u32 s66, s64, 0x200000
        s_mov_b32 s56, 0.5
        s_mov_b32 s57, 0.5
        s_cmp_eq_u32 s3, 0
        s_cselect_b32 s68, -2, -1
        s_mov_b32 s69, s68
        s_lshr_b32 s63, s60, 5
        s_and_b32 s65, s60, 1
        s_lshl1_add_u32 s63, s63, s65
        s_bfe_u32 s65, s60, 0x40001
        s_lshl4_add_u32 s63, s63, s65
        v_and_b32 v11, 7, v1
        v_xor_b32 v11, s63, v11
        v_lshlrev_b32 v11, 4, v11
        v_lshl_add_u32 v11, v4, 10, v11
        s_mov_b32 s63, 0x%x
        s_mov_b32 s65, 0x%x""" % (ZB, ZB, WB, WS_X2S, WS_X2S + 4096))
        lab = a.newlabel("NOGO")
        a("s_cmp_eq_u32 s34, 0\ns_cbranch_scc1 " + lab)
        self.poll(lambda: a("buffer_load_dwordx2 v[140:141], off, %s, s62 sc1" % ws),
                  lambda: a("v_xor_b32 v%d, s6, v140\nv_bitop3_b32 v%d, v%d, v141, s7 bitop3:0xf6" % (VS, VS, VS)), VS)
        a.label(lab)
        a("s_mov_b32 s62, 0x%x" % WS_X1)
        RE, ZP, XS = T + 16, T + 48, LD2

        def radix_inv(x):
            for f in range(4):
                d = v(RE, 16)
                a("%s %s, %s, %s, %s" % (M32, d, v(RA + 4 * f, 4), v(x + 4 * f, 4), d if f else "0"))

        def average():
            a("s_mov_b32 exec_lo, 1\ns_mov_b32 exec_hi, 1")
            for j in (0, 2):
                a("v_pk_add_f32 %s, %s, %s" % (v(RE + j, 2), v(RE + j, 2), v(RE + 8 + j, 2)))
                a("v_pk_add_f32 %s, %s, %s neg_lo:[0,1] neg_hi:[0,1]" % (v(RE + 4 + j, 2), v(RE + 4 + j, 2), v(RE + 12 + j, 2)))
            for j in range(0, 8, 2):
                a("v_pk_mul_f32 %s, %s, s[56:57]" % (v(RE + j, 2), v(RE + j, 2)))

        def extra_tile():
            radix_inv(XS)
            average()
            for r in range(4):
                self.cvt(ZP + 8 + r, v(RE + r), v(RE + 4 + r))
            a("ds_write_b128 v130, %s offset:4096" % v(ZP + 8, 4))
            a("s_mov_b64 exec, -1")

        xsload = lambda: [a("buffer_load_dwordx4 %s, v11, %s, s%d offen offset:%d sc1" % (v(XS + 4 * f, 4), ws, 65 if f >> 1 else 63, (f & 1) * 2048)) for f in range(4)]
        x2load = lambda: [a("buffer_load_dwordx4 %s, v%d, %s, s62 offen sc1" % (v(XF + 4 * f, 4), 132 + f, ws)) for f in range(4)]
        lab = a.newlabel("NODR")
        a("s_and_b32 s15, s60, 7\ns_cmp_eq_u32 s15, 7\ns_cbranch_scc1 " + lab)
        a("s_waitcnt vmcnt(%d)" % self.opt.get("xdr", 0))
        self.diag_delay("d_x2")
        a.label(lab)
        x2load()
        lab = a.newlabel("NOX")
        a("s_cmp_lg_u32 s3, %d\ns_cbranch_scc1 %s" % (XW3, lab))
        xsload()
        a.label(lab)
        a("s_waitcnt lgkmcnt(0)")
        self.stamp()
        a.label("WC_0")
        self.poll(x2load, lambda: sentinel(XF), VS, first_issued=True)
        self.stamp()
        radix_inv(XF)
        lab = a.newlabel("NOAVG")
        a("s_nop 9")
        a("s_cmp_lg_u32 s3, 0\ns_cbranch_scc1 " + lab)
        average()
        a("s_mov_b64 exec, -1")
        a.label(lab)
        for r in range(4):
            self.cvt(ZP + r, v(RE + r), v(RE + 4 + r))
        a("ds_write_b128 v9, %s" % v(ZP, 4))
        for r in range(4):
            self.cvt(ZP + 4 + r, v(RE + 8 + r), "-" + v(RE + 12 + r))
        a("s_mov_b64 exec, s[68:69]")
        a("ds_write_b128 v10, %s" % v(ZP + 4, 4))
        a("s_mov_b64 exec, -1")
        lab = a.newlabel("NOX")
        a("s_cmp_lg_u32 s3, %d\ns_cbranch_scc1 %s" % (XW3, lab))
        self.poll(xsload, lambda: sentinel(XS), VS, first_issued=True)
        extra_tile()
        a.label(lab)
        a("s_waitcnt lgkmcnt(0)\ns_barrier")
        self.stamp()
        a.capture(ls & 4)
        ZF = T
        for tau in range(2):
            for j in range(2):
                a("ds_read2st64_b32 %s, v8 offset0:%d offset1:%d" % (v(ZF + 4 * tau + 2 * j, 2), tau + 4 * j, tau + 4 * j + 2))
        for tau in range(2):
            a("s_waitcnt lgkmcnt(%d)" % (2 - 2 * tau))
            a("%s %s, %s, %s, 0" % (M16, v(T1 + 4 * tau, 4), v(ZF + 4 * tau, 4), v(G16, 4)))
            a("%s %s, %s, %s, 0" % (M16, v(T1 + 8 + 4 * tau, 4), v(ZF + 4 * tau, 4), v(G16 + 4, 4)))
        O4 = T + 80
        twiddle(T1, [TW0, TWX], T + 64, True)
        for j in range(8):
            self.cvt(U + j, v(T1 + 2 * j), v(T1 + 2 * j + 1))
        stage_cs(U, U + 4, O4, True)
        fl = self.opt.get("outflag", "sc1")
        for ri in range(2):
            for tau in range(2):
                o = O4 + 8 * ri + 4 * tau
                d = T + 8 + 4 * ri + 2 * tau
                self.cvt(d, v(o), v(o + 1))
                self.cvt(d + 1, v(o + 2), v(o + 3))
                a("ds_write_b64 v5, %s offset:%d" % (v(d, 2), ri * 1024 + tau * 512))
            a("ds_read_b128 %s, v6 offset:%d" % (v(T1 + 16 + 4 * ri, 4), ri * 1024))
        for ri in range(2):
            a("s_waitcnt lgkmcnt(%d)" % (3 - 3 * ri))
            a("buffer_store_dwordx4 %s, v2, %s, s%d offen offset:1024 %s" % (v(T1 + 16 + 4 * ri, 4), s(self.rOUT, 4), 64 + 2 * ri, fl))
        print("B3", a.flush(mf_scale=msc))
        self.end()


TQ_CS, TQ_TW0, TQ_TW1, TQ_TW3, TQ_F32, TQ_OM = 0, 6, 8, 12, 16, 20


def make_table():
    import numpy as np
    from emu import bf16_rne
    l = np.arange(64)
    c, g = l & 15, l >> 4
    pk = lambda x, y: (bf16_rne(np.float32(x)) | (bf16_rne(np.float32(y)) << 16)).astype(np.uint32)
    fl = lambda x: np.float32(x).view(np.uint32)
    cs = lambda a_: (np.cos(2 * np.pi * a_), np.sin(2 * np.pi * a_))
    idx2 = [16 * (t >> 2) + 4 * g + (t & 3) for t in range(8)]
    R = []
    C = [[cs((c + 16 * tau) * idx2[t] / 32.0) for t in range(8)] for tau in range(2)]
    for k, sg in ((0, 1), (1, 1), (1, -1)):
        for tau in range(2):
            for j in range(4):
                R.append(pk(sg * C[tau][2 * j][k], sg * C[tau][2 * j + 1][k]))

    def tw(angs):
        for k in range(2):
            for x in angs:
                R.append(fl(cs(x)[k]))
    tw([c * idx2[r] / 512.0 for r in range(4)])
    tw([(c + 16) * idx2[r] / 512.0 for r in range(4)])
    H = [cs(c * idx2[x] / 16.0) for x in range(4)]
    R += [pk(H[0][0], H[1][0]), pk(H[2][0], H[3][0]), pk(H[0][1], H[1][1]), pk(H[2][1], H[3][1])]
    R += [pk(-H[0][1], -H[1][1]), pk(-H[2][1], -H[3][1]), pk(H[0][0], H[1][0]), pk(H[2][0], H[3][0])]
    tw([c * idx2[4 + r] / 512.0 for r in range(4)])
    sc = 2.0 ** -20
    R += [pk(sc * H[x][0], -sc * H[x][1]) for x in range(4)] + [pk(sc * H[x][1], sc * H[x][0]) for x in range(4)]
    R += [pk(C[0][t][0], C[0][t][1]) for t in range(8)] + [pk(-C[0][t][1], C[0][t][0]) for t in range(8)]
    for k in range(2):
        for t in range(8):
            R.append(fl(cs(idx2[t] / 64.0)[k]))
    R = np.array(R, np.uint32)
    assert R.shape == (96, 64)
    return np.ascontiguousarray(R.reshape(24, 4, 64).transpose(0, 2, 1)).reshape(-1)


def _sym_add(line, emuval=0):
    ins = Ins(line.rsplit(",", 1)[0] + ", %d" % emuval)
    ins.line = line
    return ins


NOTES = """;
; One persistent launch, 256 workgroups x 8 waves (one per CU), generated by my own script. Roles by workgroup id:
; Hand-offs: write-through (sc1) stores, sc1 polling loads. Payload validates itself: the two bf16 mantissa LSBs of every
; All polls are bounded. TABLE (after the code) holds the constant DFT / twiddle fragments.
"""


def generate(stamps=False, opt=None):
    g = G(stamps, opt)
    a = g.build()
    nv = a.maxreg("v") + 1
    ns = a.maxreg("s") + 1
    tb = make_table()
    tail = ".p2align 8\n.type TABLE,@object\nTABLE:\n"
    for i in range(0, len(tb), 8):
        tail += ".long " + ",".join("0x%08x" % x for x in tb[i:i + 8]) + "\n"
    tail += ".size TABLE, %d\n" % (4 * len(tb))
    render = lambda: wrap(a.render() + tail, 256, 512, LDS_SIZE, nv, ns, NOTES)
    if g.opt.get("align", 1):
        from align import align
        print("align:", align(a, render, g.opt.get("minrun", 6)))
    return a, render()


if __name__ == "__main__":
    stamps = "--stamps" in sys.argv
    opt = {}
    for x in sys.argv[1:]:
        if x.startswith("--") and "=" in x:
            k, val = x[2:].split("=", 1)
            opt[k] = int(val) if val.lstrip("-").isdigit() else val
    a, txt = generate(stamps, opt)
    out = [x for x in sys.argv[1:] if not x.startswith("--")]
    open(out[0] if out else "k.s", "w").write(txt)
    print("instructions:", sum(1 for k, _ in a.items if k == "i"), "vgpr", a.maxreg("v") + 1, "sgpr", a.maxreg("s") + 1)
```
